```python
import torch

def _softmax(x, axis=-1):
    return torch.softmax(x, dim=axis)

def _gelu(x):
    return torch.nn.functional.gelu(x, approximate='tanh')

def _silu(x):
    return torch.nn.functional.silu(x)

def _sigmoid(x):
    return torch.sigmoid(x)

def _layernorm(x, axis=-1, eps=1e-05):
    m = x.mean(dim=axis, keepdim=True)
    v = x.var(dim=axis, keepdim=True, unbiased=False)
    return (x - m) / torch.sqrt(v + eps)

def _scatter_add(tgt, idx, src, axis=0):
    return tgt.clone().index_add_(axis, idx, src)

def _segment_sum(src, seg, n):
    out = torch.zeros((n,) + src.shape[1:], dtype=src.dtype)
    return out.index_add_(0, seg, src)

def _pad(x, pw):
    flat = tuple((v for pair in reversed(pw) for v in pair))
    return torch.nn.functional.pad(x, flat)
kernel_name = 'adaLN_cond__gqa_block_cached__glu_gated_bilinear__prompt'

def setup_inputs():

    _w = lambda a: (lambda t: t.to(torch.bfloat16) if t.is_floating_point() else t)(torch.as_tensor(a))

    def _A_setup():
        B, Sq, D = (1, 2048, 512)
        Hq, Hkv, Sk, Dh = (32, 32, 2048, 128)
        assert Hq % Hkv == 0, (Hq, Hkv)
        return {'x': _w((lambda *s: torch.randn(*s, dtype=torch.bfloat16) * 0.05)(B, Sq, D)), 'k_cache': _w((lambda *s: torch.randn(*s, dtype=torch.bfloat16) * 0.8)(B, Hkv, Sk, Dh)), 'v_cache': _w((lambda *s: torch.randn(*s, dtype=torch.bfloat16) * 3.2)(B, Hkv, Sk, Dh)), 'wq': _w((lambda *s: torch.randn(*s, dtype=torch.bfloat16) * 0.8)(D, Hq * Dh) * D ** (-0.5)), 'wo': _w((lambda *s: torch.randn(*s, dtype=torch.bfloat16) * 3.2)(Hq * Dh, D) * (Hq * Dh) ** (-0.5))}
    _A_in = _A_setup()

    def _B_setup():
        B, S, D, F = (1, 2048, 512, 1376)
        return {'x': _w((lambda *s: torch.randn(*s, dtype=torch.bfloat16) * 0.05)(B, S, D)), 'w_gate': _w((lambda *s: torch.randn(*s, dtype=torch.bfloat16) * 3.2)(D, F) * D ** (-0.5)), 'w_up': _w((lambda *s: torch.randn(*s, dtype=torch.bfloat16) * 3.2)(D, F) * D ** (-0.5)), 'w_down': _w((lambda *s: torch.randn(*s, dtype=torch.bfloat16) * 3.2)(F, D) * F ** (-0.5))}
    _B_in = _B_setup()
    return {'A_x': _A_in['x'], 'A_k_cache': _A_in['k_cache'], 'A_v_cache': _A_in['v_cache'], 'A_wq': _A_in['wq'], 'A_wo': _A_in['wo'], 'B_x': _B_in['x'], 'B_w_gate': _B_in['w_gate'], 'B_w_up': _B_in['w_up'], 'B_w_down': _B_in['w_down'], 'c': _w((lambda *s: torch.randn(*s, dtype=torch.bfloat16) * 0.4)(1, 512) * 8.0), 'w_mod': _w((lambda *s: torch.randn(*s, dtype=torch.bfloat16) * 0.4)(512, 6 * 512) * 512 ** (-0.5) * 8.0)}

def reference(A_x, A_k_cache, A_v_cache, A_wq, A_wo, B_x, B_w_gate, B_w_up, B_w_down, c, w_mod):

    def _A_ref(x, k_cache, v_cache, wq, wo):
        B, Sq, D = x.shape
        Hq, Dh = (32, 128)
        Hkv = k_cache.shape[1]
        rep = Hq // Hkv
        q = (lambda x, *d: x.permute(*d))((x @ wq).reshape(B, Sq, Hq, Dh), 0, 2, 1, 3)
        k = (lambda x, n, axis: torch.repeat_interleave(x, n, dim=axis))(k_cache, rep, axis=1)
        v = (lambda x, n, axis: torch.repeat_interleave(x, n, dim=axis))(v_cache, rep, axis=1)
        scores = torch.einsum('bhqd,bhkd->bhqk', q, k) * Dh ** (-0.5)
        p = _softmax(scores, axis=-1)
        o = torch.einsum('bhqk,bhkd->bhqd', p, v)
        return (lambda x, *d: x.permute(*d))(o, 0, 2, 1, 3).reshape(B, Sq, Hq * Dh) @ wo

    def _B_ref(x, w_gate, w_up, w_down):
        g = torch.einsum('bsd,df->bsf', x, w_gate)
        u = torch.einsum('bsd,df->bsf', x, w_up)
        h = g * u
        return torch.einsum('bsf,fd->bsd', h, w_down)
    x = A_x
    mod = (_silu(c) @ w_mod).reshape(c.shape[0], 6, 1, -1)
    sa, ca, ga, sb, cb, gb = (mod[:, 0].clone(), mod[:, 1].clone(), mod[:, 2].clone(), mod[:, 3].clone(), mod[:, 4].clone(), mod[:, 5].clone())
    h = _layernorm(x, axis=-1) * (1 + ca) + sa
    x = x + ga * _A_ref(h, A_k_cache, A_v_cache, A_wq, A_wo)
    h = _layernorm(x, axis=-1) * (1 + cb) + sb
    x = x + gb * _B_ref(h, B_w_gate, B_w_up, B_w_down)
    return x
```

```python
import math, struct

NAME = "adaLN_cond__gqa_block_cached__glu_gated_bilinear__prompt"

KA_X, KA_K, KA_V, KA_WQ, KA_WO, KA_BX, KA_WG, KA_WU, KA_WD, KA_C, KA_WM, KA_OUT, KA_DBG, KA_WS = [8*i for i in range(14)]

WS_MOD  = 0x0
WS_XH   = 0x10000
WS_H2   = 0x210000
WS_X1   = 0x410000
WS_OF   = 0x800000
WS_PART = 0x1800000
WS_HF   = 0x2800000
WS_DBG  = 0x4000000

def f2u(x):
    return struct.unpack("<I", struct.pack("<f", x))[0]

def hexf(x):
    return "0x%08x" % f2u(x)

def vr(b, n=1):
    return f"v{b}" if n == 1 else f"v[{b}:{b+n-1}]"
def ar(b, n=1):
    return f"a{b}" if n == 1 else f"a[{b}:{b+n-1}]"
def sr(b, n=1):
    return f"s{b}" if n == 1 else f"s[{b}:{b+n-1}]"

class Kern:
    def __init__(self, name, grid, block, lds, vgpr, accum, sgpr=96):
        self.name = name; self.grid = grid; self.block = block; self.lds = lds
        self.vgpr = vgpr; self.accum = accum; self.sgpr = sgpr
        self.L = []
        self.vm = []
        self.nlab = 0
    def __call__(self, s):
        for ln in s.split("\n"):
            ln = ln.strip()
            if ln: self.L.append("    " + ln if not ln.endswith(":") else ln)
    def label(self, base):
        self.nlab += 1
        return f"{self.name}_{base}_{self.nlab}"
    def c(self, s):
        self.L.append("    ; " + s)
    def vmop(self, s, tag):
        self(s); self.vm.append(tag)
        assert len(self.vm) <= 63, "too many outstanding vmem ops"
    def vm_count_for(self, tag):
        idx = [i for i, t in enumerate(self.vm) if t == tag]
        if not idx: return None
        return len(self.vm) - 1 - idx[-1]
    def vmwait(self, tag, extra=""):
        n = self.vm_count_for(tag)
        if n is None:
            if extra: self(f"s_waitcnt {extra}")
            return
        self(f"s_waitcnt vmcnt({n}) {extra}")
        self.vm = self.vm[len(self.vm) - n:] if n else []
    def stamp(self, idx):
        if not getattr(self, 'prof', False): return
        self(f"s_memtime s[{64+4*idx}:{65+4*idx}]\ns_memrealtime s[{66+4*idx}:{67+4*idx}]")
    def dump_stamps(self, n, wsreg, vt):
        if not getattr(self, 'prof', False): return
        self("s_waitcnt lgkmcnt(0)")
        self(f"s_add_u32 s60, s{wsreg}, 0x{WS_DBG:x}\ns_addc_u32 s61, s{wsreg+1}, 0\ns_mov_b32 s62, 0x100000\ns_mov_b32 s63, 0x20000")
        self(f"v_lshrrev_b32 v{vt}, 6, v0\nv_lshl_add_u32 v{vt}, s2, 2, v{vt}\nv_lshlrev_b32 v{vt}, 6, v{vt}")
        for i in range(n):
            self(f"v_mov_b32 v{vt+2}, s{64+4*i}\nv_mov_b32 v{vt+3}, s{66+4*i}")
            self(f"buffer_store_dwordx2 v[{vt+2}:{vt+3}], v{vt}, s[60:63], 0 offen offset:{8*i}\ns_nop 1")
    def srd(self, d, base, nbytes, off=0):
        if off:
            self(f"s_add_u32 s{d}, s{base}, 0x{off:x}")
            self(f"s_addc_u32 s{d+1}, s{base+1}, 0")
        else:
            self(f"s_mov_b32 s{d}, s{base}")
            self(f"s_mov_b32 s{d+1}, s{base+1}")
        self(f"s_mov_b32 s{d+2}, 0x{nbytes:x}")
        self(f"s_mov_b32 s{d+3}, 0x20000")
    def text(self):
        return f".globl {self.name}\n.p2align 8\n.type {self.name},@function\n{self.name}:\n" + "\n".join(self.L) + "\n"
    def desc(self):
        return f""".p2align 6
.amdhsa_kernel {self.name}
  .amdhsa_next_free_vgpr {self.vgpr}
  .amdhsa_next_free_sgpr {self.sgpr}
  .amdhsa_accum_offset {self.accum}
  .amdhsa_group_segment_fixed_size 0
  .amdhsa_kernarg_size 112
  .amdhsa_user_sgpr_count 2
  .amdhsa_user_sgpr_kernarg_segment_ptr 1
  .amdhsa_system_sgpr_workgroup_id_x 1
  .amdhsa_float_denorm_mode_32 3
  .amdhsa_float_denorm_mode_16_64 3
.end_amdhsa_kernel
"""
    def launch(self):
        return f"; @launch kernel={self.name} grid=({self.grid},1,1) block=({self.block},1,1) lds={self.lds}\n"

HEADER = """; adaLN-conditioned block: LN+modulate -> Q proj -> attention over cached K/V -> O proj -> LN+modulate -> bilinear GLU
"""
def assemble(kerns):
    s = HEADER + "".join(k.launch() for k in kerns)
    s += '.amdgcn_target "amdgcn-amd-amdhsa--gfx950"\n.text\n'
    seen = []
    for k in kerns:
        if k.name in seen: continue
        seen.append(k.name); s += k.text()
    s += '.section .rodata,"a"\n'
    seen = []
    for k in kerns:
        if k.name in seen: continue
        seen.append(k.name); s += k.desc()
    return s
```

```python
from common import *

C1 = math.log2(math.e) / math.sqrt(128.0)

def round_bf16(k, v, tmp):
    k(f"v_cvt_pk_bf16_f32 v{tmp}, v{v}, v{v}")
    k(f"v_and_b32 v{v}, 0xffff0000, v{tmp}")

def gen_k0():
    k = Kern("k0_prep_kernel", 224, 256, 4096, 96, 96, 48)
    end = "k0_end"; ln = "k0_ln"
    k(f"s_cmp_ge_u32 s2, 224\ns_cbranch_scc1 {end}")
    k(f"s_load_dwordx2 s[4:5], s[0:1], {KA_X}")
    k(f"s_load_dwordx4 s[8:11], s[0:1], {KA_C}")
    k(f"s_load_dwordx2 s[6:7], s[0:1], {KA_WS}")
    k(f"s_cmp_ge_u32 s2, 96\ns_cbranch_scc1 {ln}")
    k("s_waitcnt lgkmcnt(0)")
    k.srd(12, 8, 1024)
    k.srd(16, 10, 512*3072*2)
    k.srd(20, 6, 6*512*4, WS_MOD)
    k("v_lshrrev_b32 v1, 2, v0")
    k("v_and_b32 v2, 3, v0")
    k("v_mul_u32_u24 v3, 6144, v1")
    k("v_lshl_add_u32 v3, v2, 4, v3")
    k("s_lshl_b32 s3, s2, 6")
    k("v_lshlrev_b32 v4, 1, v1")
    for i in range(8):
        k(f"buffer_load_ushort v{8+i}, v4, s[12:15], 0 offen offset:{128*i}")
    for i in range(8):
        k(f"buffer_load_dwordx4 v[{16+4*i}:{19+4*i}], v3, s[16:19], s3 offen")
        if i < 7: k(f"s_add_u32 s3, s3, {64*6144}")
    k("s_waitcnt vmcnt(8)")
    for i in range(8):
        k(f"v_lshlrev_b32 v{8+i}, 16, v{8+i}")
    for i in range(8):
        k(f"v_mul_f32 v{48+i}, {hexf(-math.log2(math.e))}, v{8+i}")
    for i in range(8):
        k(f"v_exp_f32 v{48+i}, v{48+i}")
    k("s_nop 0")
    for i in range(8):
        k(f"v_add_f32 v{48+i}, 1.0, v{48+i}")
    for i in range(8):
        k(f"v_rcp_f32 v{48+i}, v{48+i}")
    k("s_nop 0")
    for i in range(8):
        k(f"v_mul_f32 v{8+i}, v{8+i}, v{48+i}")
    for i in range(8):
        round_bf16(k, 8+i, 48+i)
    for e in range(8):
        k(f"v_mov_b32 v{56+e}, 0")
    for i in range(8):
        k(f"s_waitcnt vmcnt({7-i})")
        for d in range(4):
            w = 16+4*i+d
            k(f"v_lshlrev_b32 v64, 16, v{w}")
            k(f"v_and_b32 v65, 0xffff0000, v{w}")
            k(f"v_fmac_f32 v{56+2*d}, v{8+i}, v64")
            k(f"v_fmac_f32 v{57+2*d}, v{8+i}, v65")
    k("s_nop 1")
    for e in range(8):
        k(f"v_add_f32 v{56+e}, v{56+e}, v{56+e} row_ror:8")
    k("s_nop 1")
    for e in range(8):
        k(f"v_add_f32 v{56+e}, v{56+e}, v{56+e} row_ror:4")
    k("v_lshrrev_b32 v5, 4, v0")
    k("v_lshlrev_b32 v5, 7, v5")
    k("v_lshl_add_u32 v5, v2, 5, v5")
    k("v_and_b32 v6, 15, v0")
    k("v_cmp_gt_u32 vcc, 4, v6")
    k("s_and_saveexec_b64 s[24:25], vcc")
    k("ds_write_b128 v5, v[56:59]")
    k("ds_write_b128 v5, v[60:63] offset:16")
    k("s_mov_b64 exec, s[24:25]")
    k("s_waitcnt lgkmcnt(0)\ns_barrier")
    k("v_cmp_gt_u32 vcc, 32, v0")
    k("s_and_saveexec_b64 s[24:25], vcc")
    k(f"s_cbranch_execz {end}")
    k("v_lshlrev_b32 v5, 2, v0")
    for i in range(16):
        k(f"ds_read_b32 v{16+i}, v5 offset:{128*i}")
    k("s_waitcnt lgkmcnt(0)")
    for st in (8, 4, 2, 1):
        for i in range(st):
            k(f"v_add_f32 v{16+i}, v{16+i}, v{16+i+st}")
    round_bf16(k, 16, 17)
    k("s_lshr_b32 s26, s2, 4")
    k("v_add_f32 v18, 1.0, v16")
    round_bf16(k, 18, 17)
    k("s_cmp_eq_u32 s26, 1\ns_cselect_b32 s27, 1, 0\ns_cmp_eq_u32 s26, 4\ns_cselect_b32 s27, 1, s27")
    k("s_cmp_eq_u32 s27, 1\ns_cselect_b64 vcc, -1, 0")
    k("v_cndmask_b32 v16, v16, v18, vcc")
    k(f"s_cmp_lt_u32 s26, 2\ns_cselect_b32 s27, {hexf(C1)}, 1.0")
    k("v_mul_f32 v16, s27, v16")
    k("s_lshl_b32 s3, s2, 7")
    k("buffer_store_dword v16, v5, s[20:23], s3 offen")
    k("s_endpgm")
    k(f"{ln}:")
    k("s_waitcnt lgkmcnt(0)")
    k.srd(12, 4, 2048*512*2)
    k.srd(16, 6, 2048*512*2, WS_XH)
    k("s_sub_u32 s3, s2, 96")
    k("s_lshl_b32 s3, s3, 14")
    k("v_and_b32 v1, 15, v0")
    k("v_lshrrev_b32 v2, 4, v0")
    k("v_and_b32 v3, 3, v2")
    k("v_lshrrev_b32 v4, 6, v0")
    k("v_lshlrev_b32 v5, 10, v1")
    k("v_lshl_add_u32 v5, v4, 8, v5")
    k("v_lshl_add_u32 v5, v3, 4, v5")
    for j in range(4):
        k(f"buffer_load_dwordx4 v[{16+4*j}:{19+4*j}], v5, s[12:15], s3 offen offset:{64*j}")
    k("v_lshlrev_b32 v6, 6, v1")
    k("v_lshl_add_u32 v7, v2, 2, v6")
    k("s_waitcnt vmcnt(0)")
    for d in range(16):
        k(f"v_lshlrev_b32 v{32+2*d}, 16, v{16+d}")
        k(f"v_and_b32 v{33+2*d}, 0xffff0000, v{16+d}")
    def tree(src_list, tmp):
        n = len(src_list)//2
        for i in range(n):
            k(f"v_add_f32 v{tmp+i}, v{src_list[2*i]}, v{src_list[2*i+1]}")
        while n > 1:
            n //= 2
            for i in range(n):
                k(f"v_add_f32 v{tmp+i}, v{tmp+i}, v{tmp+i+n}")
    tree(list(range(32, 64)), 64)
    k("ds_write_b32 v7, v64")
    k("s_waitcnt lgkmcnt(0)\ns_barrier")
    for i in range(4):
        k(f"ds_read_b128 v[{64+4*i}:{67+4*i}], v6 offset:{16*i}")
    k("s_waitcnt lgkmcnt(0)")
    tree(list(range(64, 80)), 80)
    k(f"v_mul_f32 v8, {hexf(1/512)}, v80")
    for e in range(32):
        k(f"v_sub_f32 v{32+e}, v{32+e}, v8")
    for i in range(4):
        k(f"v_mul_f32 v{64+i}, v{32+i}, v{32+i}")
    for e in range(4, 32):
        k(f"v_fmac_f32 v{64+e%4}, v{32+e}, v{32+e}")
    k("v_add_f32 v64, v64, v65\nv_add_f32 v66, v66, v67\nv_add_f32 v64, v64, v66")
    k("ds_write_b32 v7, v64 offset:1024")
    k("s_waitcnt lgkmcnt(0)\ns_barrier")
    for i in range(4):
        k(f"ds_read_b128 v[{64+4*i}:{67+4*i}], v6 offset:{1024+16*i}")
    k("s_waitcnt lgkmcnt(0)")
    tree(list(range(64, 80)), 80)
    k(f"v_mov_b32 v9, {hexf(1e-5)}")
    k(f"v_fmac_f32 v9, {hexf(1/512)}, v80")
    k("v_rsq_f32 v9, v9")
    k("s_nop 0")
    for e in range(32):
        k(f"v_mul_f32 v{32+e}, v{32+e}, v9")
    for d in range(16):
        k(f"v_cvt_pk_f16_f32 v{16+d}, v{32+2*d}, v{33+2*d}")
    k("v_and_b32 v5, 63, v0")
    k("v_lshlrev_b32 v5, 4, v5")
    k("v_lshl_add_u32 v5, v4, 12, v5")
    for j in range(4):
        k(f"buffer_store_dwordx4 v[{16+4*j}:{19+4*j}], v5, s[16:19], s3 offen offset:{1024*j}")
    k(f"{end}:")
    k("s_endpgm")
    return k
```

```python
from common import *

MF = "v_mfma_f32_16x16x32_bf16"

SLOT = 16384
KB = 0
VB = 65536
PARB = 9*SLOT
FLAGB = PARB + 4096
WSLOT = [1, 4, 2, 5, 3, 6, 7, 8]

def O(db, qb): return (db*4+qb)*4
def LA(qb): return 128 + qb*4
def KF(i): return 144 + i*4
def VF(i): return 176 + i*4
ONES = 208
def Q(qb, s): return 128 + (qb*4+s)*4
def S(buf, kb, qb): return 64 + buf*32 + (kb*4+qb)*4
def P(buf, qb): return 32 + buf*16 + qb*4
def MN(qb): return 192 + qb*4
V_KA = 8
V_VA = 12
V_DK = 20
V_DV = 24
V_L16 = 26
V_LS = 28
V_T = 208
def XR(slot, qb): return 128 + (slot*4+qb)*4
def HF(buf, qb): return 32 + (buf*4+qb)*4
def PAR(buf): return 64 + buf*16
V_PT = 96
V_WA = 112
V_DW = 124
V_PA = 125
def WF(buf, t): return 128 + (buf*8+t)*4
S_K, S_V, S_W, S_X, S_M, S_O = 8, 12, 16, 20, 24, 28
S_W4 = 32
S_KOFF, S_VOFF = 33, 34
S_CNT = 35
S_T0 = 36
S_RERUN = 44
S_WAVE = 45

def emit_phase(k, mf, gaps):
    for f in gaps.get(-1, []): f(k) if callable(f) else k(f)
    for i, m in enumerate(mf):
        k(m)
        for f in gaps.get(i, []): f(k) if callable(f) else k(f)
    for g in gaps:
        assert g < len(mf), (g, len(mf))

def add(gaps, g, *items):
    gaps.setdefault(g, []).extend(items)

def qk_mfmas(buf, kf=KF, czero=False):
    r = []
    for kb in range(2):
        for s in range(4):
            for qb in range(4):
                d = vr(S(buf, kb, qb), 4)
                c = d if s else ("0" if czero else vr(MN(qb), 4))
                r.append(f"{MF} {d}, {ar(kf(kb*4+s),4)}, {vr(Q(qb,s),4)}, {c}")
    return r

def pv_mfmas(buf, sumq, vf=VF, czero=False):
    r = []
    for qb in sumq:
        d = ar(LA(qb), 4)
        r.append(f"{MF} {d}, {ar(ONES,4)}, {vr(P(buf,qb),4)}, {'0' if czero else d}")
    for db in range(8):
        for qb in range(4):
            d = ar(O(db, qb), 4)
            r.append(f"{MF} {d}, {ar(vf(db),4)}, {vr(P(buf,qb),4)}, {'0' if czero else d}")
    return r

def exps(buf, qbs):
    r = []
    for qb in qbs:
        for kb in range(2):
            for i in range(4):
                x = S(buf, kb, qb) + i
                r.append(f"v_exp_f32 v{x}, v{x}")
    return r
def cvts(buf, qbs):
    r = []
    for qb in qbs:
        for kb in range(2):
            for h in range(2):
                x = S(buf, kb, qb) + 2*h
                r.append(f"v_cvt_pk_bf16_f32 v{P(buf,qb)+kb*2+h}, v{x}, v{x+1}")
    return r
def adds(buf, qbs, addq):
    r = []
    for qb in qbs:
        for kb in range(2):
            for i in range(4):
                x = S(buf, kb, qb) + i
                r.append(f"v_add_f32 v{V_LS+qb}, v{x}, v{V_LS+qb}" if qb in addq else None)
    return r
def kreads(slot, blk, kf=KF):
    r = []
    for kb in range(2):
        for s in range(4):
            r.append(f"ds_read_b128 {ar(kf(kb*4+s),4)}, v{V_KA+s} offset:{KB+slot*SLOT+blk*8192+kb*4096}")
    return r
def vreads(slot, blk, vf=VF):
    r = []
    for db in range(8):
        for h in range(2):
            r.append(f"ds_read_b64_tr_b16 {ar(vf(db)+2*h,2)}, v{V_VA+db} offset:{slot*SLOT+blk*8192+h*4096}")
    return r
def dma_k(p): return f"buffer_load_dwordx4 v{V_DK+p}, {sr(S_K,4)}, s{S_KOFF} offen offset:{p*1024} lds"
def dma_v(p): return f"buffer_load_dwordx4 v{V_DV+(p&1)}, {sr(S_V,4)}, s{S_VOFF} offen offset:{p*1024} lds"

class Cfg:
    sumq = [0, 1, 2, 3]
    def addq(self): return [q for q in range(4) if q not in self.sumq]

def place_softmax(gaps, n, E, C, A, free, first_e=0):
    egap = []
    for i, e in enumerate(E):
        g = first_e + 2*i
        add(gaps, g, e); egap.append(g)
    items = []
    for p, c in enumerate(C): items.append((egap[2*p+1] + 1, c))
    for i, a in enumerate(A):
        if a: items.append((egap[i] + 1, a))
    items.sort(key=lambda t: t[0])
    free = sorted(free)
    for eg, txt in items:
        cand = [g for g in free if g >= eg]
        if cand:
            g = cand[0]; free.remove(g)
        else:
            g = n - 1
            assert g >= eg, (g, eg)
        add(gaps, g, txt)

def qk_phase(k, cfg, sbuf_out, sm_buf, vrd):
    mf = qk_mfmas(sbuf_out)
    gaps = {}
    add(gaps, -1, "s_waitcnt lgkmcnt(0)")
    free = []
    odd = list(range(1, 32, 2))
    vi = 0
    for g in odd:
        if vi < len(vrd):
            add(gaps, g, vrd[vi], vrd[vi+1]); vi += 2
        else:
            free += [g, g]
    qbs = [0, 1]
    place_softmax(gaps, 32, exps(sm_buf, qbs), cvts(sm_buf, qbs), adds(sm_buf, qbs, cfg.addq()), free)
    emit_phase(k, mf, gaps)

def pv_phase(k, cfg, pbuf, sm_buf, rd, dmas, m0, barrier, czero=False, vf=VF, qbs=(2, 3), post=(), extra_valu=()):
    mf = pv_mfmas(pbuf, cfg.sumq, vf, czero)
    n = len(mf); ns = len(cfg.sumq)
    gaps = {}
    w = "s_waitcnt vmcnt(16) lgkmcnt(0)\ns_barrier" if barrier else "s_waitcnt lgkmcnt(0)"
    add(gaps, ns - 1, w)
    free = []
    rd = list(rd); dmas = list(dmas)
    E = exps(sm_buf, qbs) if sm_buf is not None else []
    dense = len(E) > 16
    two = len(rd) > 8
    odd = [g for g in range(1, n) if (g % 2 == 1 or g >= 2*len(E))]
    first = True
    for g in odd:
        if g < ns:
            if g != ns - 1: free += [g, g]
            continue
        if rd:
            add(gaps, g, rd.pop(0))
            if two: add(gaps, g, rd.pop(0))
            else: free.append(g)
        elif dmas and (g // 2) % 2 == 0:
            if first:
                add(gaps, g - 1, m0); first = False
            add(gaps, g, dmas.pop(0))
        else:
            free += [g, g]
    assert not rd and not dmas
    if dense:
        C = cvts(sm_buf, qbs); A = adds(sm_buf, qbs, cfg.addq())
        for i, e in enumerate(E):
            add(gaps, i, e)
            if i >= 1 and A[i-1]: add(gaps, i, A[i-1])
            if i >= 2 and i % 2 == 0: add(gaps, i, C[i//2 - 1])
        gl = min(32, n - 1)
        if gl == 31: add(gaps, gl, "s_nop 0")
        if A[31]: add(gaps, gl, A[31])
        add(gaps, gl, C[15])
    elif E:
        place_softmax(gaps, n, E, cvts(sm_buf, qbs), adds(sm_buf, qbs, cfg.addq()), free)
    for f in post: add(gaps, n - 1, f)
    emit_phase(k, mf, gaps)

def iteration(k, cfg, t4, first=False, post=()):
    ks = t4; vs = (t4 - 1) % 4
    m0k = f"s_add_u32 m0, s{S_W4}, {KB + ((t4+3)%4)*SLOT}"
    m0v = f"s_add_u32 m0, s{S_W4}, {VB + ((t4+2)%4)*SLOT}"
    dk = [dma_k(p) for p in range(4)]; dv = [dma_v(p) for p in range(4)]
    k.c(f"---- iteration T%4={t4} ----")
    if not first:
        pv_phase(k, cfg, 1, 0, kreads(ks, 0), dk, m0k, True, post=[f"s_add_u32 s{S_KOFF}, s{S_KOFF}, {SLOT}"])
    qk_phase(k, cfg, 0, 1, vreads(vs, 0))
    pv_phase(k, cfg, 0, 1, kreads(ks, 1), dv, m0v, False, czero=first, post=[f"s_add_u32 s{S_VOFF}, s{S_VOFF}, {SLOT}"])
    qk_phase(k, cfg, 1, 0, vreads(vs, 1))
    for f in post: k(f)

def kv_dma_group(k, which, tile):
    r = []
    if which == 'K':
        r.append(f"s_add_u32 m0, s{S_W4}, {KB + tile*SLOT}\ns_mov_b32 s{S_KOFF}, {tile*SLOT}")
        r += [ (lambda kk, p=p: kk.vmop(dma_k(p), f"K{tile}")) for p in range(4)]
    else:
        r.append(f"s_add_u32 m0, s{S_W4}, {VB + tile*SLOT}\ns_mov_b32 s{S_VOFF}, {tile*SLOT}")
        r += [ (lambda kk, p=p: kk.vmop(dma_v(p), f"V{tile}")) for p in range(4)]
    return r

def rowmax_cross(k, regs, tmp):
    for sw in ("v_permlane32_swap_b32", "v_permlane16_swap_b32"):
        for i, r in enumerate(regs): k(f"v_mov_b32 v{tmp+i}, v{r}")
        k("s_nop 1")
        for i, r in enumerate(regs): k(f"{sw} v{tmp+i}, v{r}")
        k("s_nop 1")
        for i, r in enumerate(regs): k(f"v_max_f32 v{r}, v{r}, v{tmp+i}")

def gen_k1(cfg=None, prof=False):
    cfg = cfg or Cfg()
    k = Kern("k1_attn_kernel", 256, 256, 160*1024, 512, 256, 96 if prof else 64)
    k.prof = prof
    end = "k1_end"
    k(f"s_cmp_ge_u32 s2, 256\ns_cbranch_scc1 {end}")
    k.stamp(0)
    k(f"s_load_dwordx4 s[48:51], s[0:1], {KA_K}")
    k(f"s_load_dwordx2 s[52:53], s[0:1], {KA_WQ}")
    k(f"s_load_dwordx2 s[54:55], s[0:1], {KA_WS}")
    k("v_lshrrev_b32 v1, 6, v0")
    k("v_and_b32 v2, 63, v0")
    k(f"v_readfirstlane_b32 s{S_WAVE}, v1")
    k("s_and_b32 s4, s2, 31")
    k("s_lshr_b32 s5, s2, 5")
    k(f"s_lshl_b32 s{S_W4}, s{S_WAVE}, 12")
    k(f"s_mov_b32 s{S_RERUN}, 0")
    k("v_lshrrev_b32 v3, 4, v2")
    k("v_and_b32 v4, 15, v2")
    k("v_lshrrev_b32 v5, 2, v4")
    k("v_and_b32 v6, 3, v2")
    k(f"v_lshlrev_b32 v{V_L16}, 4, v2")
    k("v_lshlrev_b32 v7, 2, v3\nv_xor_b32 v7, v7, v4\nv_lshlrev_b32 v7, 4, v7")
    k(f"v_lshl_add_u32 v{V_DW}, v1, 4, v3\nv_lshl_add_u32 v{V_DW}, v{V_DW}, 13, v7")
    k("s_waitcnt lgkmcnt(0)")
    k("s_lshl_b32 s6, s4, 8")
    k(f"s_add_u32 s{S_W}, s52, s6\ns_addc_u32 s{S_W+1}, s53, 0\ns_sub_u32 s{S_W+2}, {512*8192}, s6\ns_mov_b32 s{S_W+3}, 0x20000")
    k.srd(S_M, 54, 4096, WS_MOD)
    k(f"s_lshl_b32 s6, s5, 2\ns_add_u32 s6, s6, s{S_WAVE}\ns_lshl_b32 s7, s6, 16")
    k(f"s_add_u32 s7, s7, 0x{WS_XH:x}")
    k(f"s_add_u32 s{S_X}, s54, s7\ns_addc_u32 s{S_X+1}, s55, 0\ns_mov_b32 s{S_X+2}, 0x10000\ns_mov_b32 s{S_X+3}, 0x20000")
    def w_chunk(c):
        r = [f"s_add_u32 m0, s{S_W4}, {WSLOT[c]*SLOT}"]
        for p in range(4):
            st = S_T0 + p
            r.append(f"s_mov_b32 s{st}, {c*64*8192 + p*(32768-1024)}")
            r.append(lambda kk, p=p, st=st: kk.vmop(f"buffer_load_dwordx4 v{V_DW}, {sr(S_W,4)}, s{st} offen offset:{p*1024} lds", f"W{c}"))
        return r
    def x_loads(j):
        r = []
        for qb in range(4):
            st = S_T0 + 4 + qb
            r.append(f"s_mov_b32 s{st}, {qb*16384 + (j>>2)*4096}")
            r.append(lambda kk, qb=qb, st=st: kk.vmop(f"buffer_load_dwordx4 {vr(XR(j%8,qb),4)}, v{V_L16}, {sr(S_X,4)}, s{st} offen offset:{(j&3)*1024}", f"X{j}"))
        return r
    def run(items):
        for f in items: f(k) if callable(f) else k(f)
    k(f"s_lshl_b32 s7, s{S_WAVE}, 10\ns_add_u32 m0, s7, {PARB}\ns_nop 0")
    k.vmop(f"buffer_load_dwordx4 v{V_L16}, {sr(S_M,4)}, s7 offen lds", "W0")
    for c in range(4):
        run(w_chunk(c)); run(x_loads(2*c)); run(x_loads(2*c+1))
    for c in range(4, 7): run(w_chunk(c))
    k("s_lshl_b32 s6, s4, 19")
    k(f"s_add_u32 s{S_K}, s48, s6\ns_addc_u32 s{S_K+1}, s49, 0\ns_mov_b32 s{S_K+2}, 0x80000\ns_mov_b32 s{S_K+3}, 0x20000")
    k(f"s_add_u32 s{S_V}, s50, s6\ns_addc_u32 s{S_V+1}, s51, 0\ns_mov_b32 s{S_V+2}, 0x80000\ns_mov_b32 s{S_V+3}, 0x20000")
    k(f"s_lshl_b32 s6, s5, 2\ns_add_u32 s6, s6, s{S_WAVE}\ns_lshl_b32 s6, s6, 19\ns_lshl_b32 s7, s4, 12\ns_add_u32 s6, s6, s7")
    k(f"s_add_u32 s6, s6, 0x{WS_OF:x}")
    k(f"s_add_u32 s{S_O}, s54, s6\ns_addc_u32 s{S_O+1}, s55, 0\ns_mov_b32 s{S_O+2}, {3*131072+4096}\ns_mov_b32 s{S_O+3}, 0x20000")
    k("v_lshl_add_u32 v7, v3, 3, v5\nv_lshlrev_b32 v7, 8, v7\nv_lshl_add_u32 v7, v6, 4, v7")
    for s in range(4):
        k(f"v_xor_b32 v27, {s}, v5\nv_lshl_add_u32 v{V_WA+s}, v27, 6, v7")
        k(f"v_add_u32 v{V_WA+4+s}, 0x10000, v{V_WA+s}\nv_add_u32 v{V_WA+8+s}, 0x20000, v{V_WA+s}")
    k(f"v_lshlrev_b32 v{V_PA}, 5, v3\nv_add_u32 v{V_PA}, {PARB}, v{V_PA}")
    for s in range(4):
        k(f"v_or_b32 v27, {4*s}, v3\nv_xor_b32 v27, v27, v4\nv_lshlrev_b32 v27, 4, v27\nv_lshl_add_u32 v{V_KA+s}, v4, 8, v27")
    k("v_lshl_add_u32 v7, v3, 2, v5\nv_and_b32 v27, 7, v7\nv_lshlrev_b32 v7, 8, v7\nv_lshl_add_u32 v7, v6, 3, v7")
    k(f"v_add_u32 v7, {VB}, v7")
    for db in range(8):
        k(f"v_xor_b32 v30, {db}, v27\nv_lshl_add_u32 v{V_VA+db}, v30, 5, v7")
    k("v_lshlrev_b32 v7, 8, v3\nv_lshl_add_u32 v7, v1, 12, v7")
    for p in range(4):
        k(f"v_or_b32 v27, {4*p}, v3\nv_xor_b32 v27, v27, v4\nv_lshl_add_u32 v{V_DK+p}, v27, 4, v7")
    for p in range(2):
        k(f"v_or_b32 v27, {4*p}, v3\nv_lshlrev_b32 v27, 1, v27\nv_xor_b32 v27, v27, v4\nv_lshl_add_u32 v{V_DV+p}, v27, 4, v7")
    k("v_mov_b32 v27, 0x3f803f80")
    for i in range(4): k(f"v_accvgpr_write_b32 a{ONES+i}, v27")

    def wreads(j):
        c = j >> 1; base = WSLOT[c]*SLOT; bank = base >> 16; off = (base & 0xffff) + (j & 1)*8192
        r = []
        for t in range(8):
            for h in range(2):
                r.append(f"ds_read_b64_tr_b16 {ar(WF(j&1,t)+2*h,2)}, v{V_WA+4*bank+(t>>1)} offset:{off + h*1024 + 8*(t&1)}")
        return r
    def preads(j):
        b = PAR(j & 1)
        return [f"ds_read_b128 {vr(b+4*i,4)}, v{V_PA} offset:{j*128 + (i&1)*16 + (i>>1)*2048}" for i in range(4)]
    def hcalc(j):
        b = PAR(j & 1); r = []
        for qb in range(4):
            t = V_PT + (qb & 1)*8
            for i in range(8):
                r.append(f"v_fma_mix_f32 v{t+i}, v{XR(j%8,qb)+(i>>1)}, v{b+8+i}, v{b+i} op_sel:[{i&1},0,0] op_sel_hi:[1,0,0]")
            for d in range(4):
                r.append(f"v_cvt_pk_bf16_f32 v{HF(j&1,qb)+d}, v{t+2*d}, v{t+2*d+1}")
        return r
    k.vmwait("W0"); k("s_barrier")
    run(preads(0)); run(preads(1)); run(wreads(0))
    k.vmwait("X0", "lgkmcnt(15)")
    k("s_waitcnt lgkmcnt(15)")
    k.stamp(1)
    run(hcalc(0))
    kvplan = {8: kv_dma_group(k, 'K', 0) + kv_dma_group(k, 'K', 1), 9: kv_dma_group(k, 'V', 0), 10: kv_dma_group(k, 'K', 2),
              11: kv_dma_group(k, 'V', 1), 12: kv_dma_group(k, 'K', 3), 13: kv_dma_group(k, 'V', 2)}
    for j in range(16):
        k.c(f"qproj stage {j}")
        mf = []
        for t in range(8):
            for qb in range(4):
                d = ar(O(t, qb), 4)
                mf.append(f"{MF} {d}, {ar(WF(j&1,t),4)}, {vr(HF(j&1,qb),4)}, {d if j else '0'}")
        gaps = {}
        add(gaps, -1, "s_waitcnt lgkmcnt(0)")
        lds = []; valu = []; vm = []
        if j < 15:
            def pre(kk, j=j):
                if (j + 1) % 2 == 0:
                    kk.vmwait(f"W{(j+1)//2}"); kk("s_barrier")
                kk.vmwait(f"X{j+1}")
            add(gaps, 0, pre)
            lds = wreads(j+1) + (preads(j+2) if j < 14 else [])
            valu = hcalc(j+1)
        if j == 0: vm += w_chunk(7)
        if j < 8: vm += x_loads(j+8)
        vm += kvplan.get(j, [])
        g = 1
        while lds:
            add(gaps, g, lds.pop(0))
            if valu: add(gaps, g, valu.pop(0))
            if valu and g % 2 == 0: add(gaps, g, valu.pop(0))
            g += 1
        vmq = list(vm)
        while g < 32 and (valu or vmq):
            if vmq:
                while vmq and not callable(vmq[0]): add(gaps, g, vmq.pop(0))
                if vmq: add(gaps, g, vmq.pop(0))
                if valu: add(gaps, g, valu.pop(0))
            else:
                for _ in range(3):
                    if valu: add(gaps, g, valu.pop(0))
            g += 1
        for f in vmq + valu: add(gaps, 31, f)
        if j < 15: add(gaps, 31, "s_nop 1")
        emit_phase(k, mf, gaps)
    k.stamp(2)
    k("s_nop 7")
    for s in range(4):
        for qb in range(4):
            t = V_PT + (qb & 1)*8
            for h in range(2):
                for i in range(4): k(f"v_accvgpr_read_b32 v{t+4*h+i}, a{O(2*s+h,qb)+i}")
            for d in range(4): k(f"v_cvt_pk_bf16_f32 v{Q(qb,s)+d}, v{t+2*d}, v{t+2*d+1}")
    k("k1_head:")
    assert k.vm[-28:] == ["K0"]*4 + ["K1"]*4 + ["V0"]*4 + ["K2"]*4 + ["V1"]*4 + ["K3"]*4 + ["V2"]*4, k.vm
    k("s_waitcnt vmcnt(24)\ns_barrier")
    run(kreads(0, 0)); run(kreads(0, 1, VF))
    k(f"s_mov_b32 s{S_KOFF}, {4*SLOT}\ns_mov_b32 s{S_VOFF}, {3*SLOT}\ns_mov_b32 s{S_CNT}, 8")
    for q in range(4): k(f"v_mov_b32 v{V_LS+q}, 0")
    k("s_waitcnt lgkmcnt(8)")
    for m in qk_mfmas(0, KF, True): k(m)
    k("s_waitcnt lgkmcnt(0)")
    mf = qk_mfmas(1, VF, True)
    for m in mf[:4]: k(m)
    k(f"s_cmp_lg_u32 s{S_RERUN}, 0\ns_cbranch_scc1 k1_have_max")
    for qb in range(4):
        a = S(0, 0, qb); b = S(0, 1, qb); t = V_T + qb
        k(f"v_max3_f32 v{t}, v{a}, v{a+1}, v{a+2}")
        k(f"v_max3_f32 v{t}, v{t}, v{a+3}, v{b}")
        k(f"v_max3_f32 v{t}, v{t}, v{b+1}, v{b+2}")
        k(f"v_max_f32 v{t}, v{t}, v{b+3}")
    rowmax_cross(k, [V_T+q for q in range(4)], V_T+4)
    k("k1_have_max:")
    gaps = {}
    va = []
    for qb in range(4):
        for i in range(4): va.append(f"v_sub_f32 v{MN(qb)+i}, 0, v{V_T+qb}")
    for qb in range(4):
        for kb in range(2):
            for i in range(4):
                x = S(0, kb, qb) + i
                va.append(f"v_sub_f32 v{x}, v{x}, v{V_T+qb}")
    for g in range(28):
        for _ in range(2):
            if va: add(gaps, g, va.pop(0))
    emit_phase(k, mf[4:], gaps)
    k("s_waitcnt vmcnt(16)\ns_barrier")
    run(kreads(1, 0))
    k(f"s_add_u32 m0, s{S_W4}, {KB + 0*SLOT}")
    E = exps(0, range(4)); C = cvts(0, range(4)); A = adds(0, range(4), cfg.addq())
    for i, e in enumerate(E):
        k(e)
        if i < 4: k(dma_k(i))
        if i >= 1 and A[i-1]: k(A[i-1])
        if i >= 2 and i % 2 == 0: k(C[i//2 - 1])
    k(f"s_add_u32 s{S_KOFF}, s{S_KOFF}, {SLOT}")
    if A[31]: k(A[31])
    k(C[15])
    for qb in range(4):
        for kb in range(2):
            for i in range(4):
                x = S(1, kb, qb) + i
                k(f"v_sub_f32 v{x}, v{x}, v{V_T+qb}")
    iteration(k, cfg, 1, first=True)
    k.stamp(3)
    k("s_branch k1_pos2")
    k(".p2align 6")
    k("k1_loop:")
    iteration(k, cfg, 0)
    iteration(k, cfg, 1)
    k("k1_pos2:")
    iteration(k, cfg, 2)
    iteration(k, cfg, 3, post=[f"s_sub_u32 s{S_CNT}, s{S_CNT}, 1\ns_cmp_lg_u32 s{S_CNT}, 0\ns_cbranch_scc1 k1_loop"])
    k.c("tail")
    k.stamp(4)
    pv_phase(k, cfg, 1, 0, vreads(3, 0, KF), [], None, True)
    pv_phase(k, cfg, 0, 1, vreads(3, 1, VF), [], None, False, vf=KF, qbs=(0, 1, 2, 3), post=["s_nop 1"])
    pv_phase(k, cfg, 1, None, [], [], None, False)
    k.stamp(5)
    k("s_nop 7")
    LT = V_T
    for qb in range(4):
        if qb in cfg.sumq: k(f"v_accvgpr_read_b32 v{LT+qb}, a{LA(qb)}")
        else: k(f"v_mov_b32 v{LT+qb}, v{V_LS+qb}")
    aq = cfg.addq()
    if aq:
        for sw in ("v_permlane32_swap_b32", "v_permlane16_swap_b32"):
            for q in aq: k(f"v_mov_b32 v{LT+4+q}, v{LT+q}")
            k("s_nop 1")
            for q in aq: k(f"{sw} v{LT+4+q}, v{LT+q}")
            k("s_nop 1")
            for q in aq: k(f"v_add_f32 v{LT+q}, v{LT+q}, v{LT+4+q}")
    k(f"v_add_f32 v{LT+4}, v{LT}, v{LT+1}\nv_add_f32 v{LT+5}, v{LT+2}, v{LT+3}\nv_add_f32 v{LT+4}, v{LT+4}, v{LT+5}")
    k(f"s_mov_b32 s6, {hexf(2.0**64)}")
    k(f"v_cmp_nle_f32 vcc, v{LT+4}, s6")
    k("s_cmp_lg_u64 vcc, 0\ns_cselect_b32 s6, 1, 0")
    k(f"v_mov_b32 v{LT+5}, s6\ns_lshl_b32 s7, s{S_WAVE}, 2\ns_add_u32 s7, s7, {FLAGB}\nv_mov_b32 v{LT+6}, s7\nv_mov_b32 v{LT+7}, {FLAGB}")
    k(f"ds_write_b32 v{LT+6}, v{LT+5}")
    k("s_waitcnt vmcnt(0) lgkmcnt(0)\ns_barrier")
    k(f"ds_read_b128 {vr(LT+8,4)}, v{LT+7}")
    for qb in range(4): k(f"v_rcp_f32 v{LT+qb}, v{LT+qb}")
    k("s_waitcnt lgkmcnt(0)")
    k(f"v_or_b32 v{LT+8}, v{LT+8}, v{LT+9}\nv_or3_b32 v{LT+8}, v{LT+8}, v{LT+10}, v{LT+11}\ns_nop 0")
    k(f"v_readfirstlane_b32 s6, v{LT+8}")
    k(f"s_andn2_b32 s6, s6, s{S_RERUN}\ns_cmp_lg_u32 s6, 0\ns_cbranch_scc1 k1_fallback")
    for qb in range(4):
        k(f"s_mov_b32 s{S_T0+qb}, {qb*131072}")
        for s in range(4):
            t = 64 + ((qb*4+s) & 3)*8; o = 32 + ((qb*4+s) & 7)*4
            for h in range(2):
                for i in range(4): k(f"v_accvgpr_read_b32 v{t+4*h+i}, a{O(2*s+h,qb)+i}")
            for i in range(8): k(f"v_mul_f32 v{t+i}, v{t+i}, v{LT+qb}")
            for d in range(4): k(f"v_cvt_pk_bf16_f32 v{o+d}, v{t+2*d}, v{t+2*d+1}")
            k(f"buffer_store_dwordx4 {vr(o,4)}, v{V_L16}, {sr(S_O,4)}, s{S_T0+qb} offen offset:{s*1024}")
    if prof:
        k.stamp(6)
        k("s_waitcnt vmcnt(0)")
        k.stamp(7)
        k.dump_stamps(8, 54, 100)
    k(f"{end}:")
    k("s_endpgm")
    k("k1_fallback:")
    k(f"s_mov_b32 s{S_RERUN}, 1")
    k("v_and_b32 v2, 63, v0\nv_lshrrev_b32 v3, 4, v2\nv_and_b32 v4, 15, v2")
    k("v_lshlrev_b32 v5, 8, v4\nv_lshl_add_u32 v5, v3, 4, v5")
    for q in range(4): k(f"v_mov_b32 v{V_T+q}, 0xff800000")
    k("s_mov_b32 s6, 0")
    k("k1_fb_loop:")
    for s in range(4): k(f"buffer_load_dwordx4 {ar(KF(s),4)}, v5, {sr(S_K,4)}, s6 offen offset:{64*s}")
    k("s_waitcnt vmcnt(0)")
    for s in range(4):
        for qb in range(4):
            d = vr(S(0,0,qb),4)
            k(f"{MF} {d}, {ar(KF(s),4)}, {vr(Q(qb,s),4)}, {d if s else '0'}")
    k("s_nop 15")
    for qb in range(4):
        a = S(0,0,qb)
        k(f"v_max3_f32 v{V_T+qb}, v{V_T+qb}, v{a}, v{a+1}")
        k(f"v_max3_f32 v{V_T+qb}, v{V_T+qb}, v{a+2}, v{a+3}")
    k("s_add_u32 s6, s6, 4096\ns_cmp_lt_u32 s6, 0x80000\ns_cbranch_scc1 k1_fb_loop")
    rowmax_cross(k, [V_T+q for q in range(4)], V_T+4)
    k("s_barrier")
    k.vm = []
    for wh, t in (('K',0),('K',1),('V',0),('K',2),('V',1),('K',3),('V',2)):
        it = kv_dma_group(k, wh, t)
        k(it[0]); k("s_nop 0"); run(it[1:])
    k("s_branch k1_head")
    return k
```

```python
from common import *
from k1 import emit_phase, add, MF

SLOT = 16384
def ACC(t, tb): return 64 + (t*4+tb)*4
def WF(buf, t): return 192 + (buf*8+t)*4
def BF(j, tb): return (j*4+tb)*4
V_DW = 8
V_L16 = 10
V_WA = 16
S_W, S_B, S_P = 8, 12, 16
S_W4, S_WAVE, S_T0 = 20, 21, 24

def gen_k2(prof=False):
    k = Kern("k2_oproj_kernel", 256, 256, 128*1024, 512, 256, 96 if prof else 64)
    k.prof = prof
    end = "k2_end"
    k(f"s_cmp_ge_u32 s2, 256\ns_cbranch_scc1 {end}")
    k.stamp(0)
    k(f"s_load_dwordx2 s[52:53], s[0:1], {KA_WO}")
    k(f"s_load_dwordx2 s[54:55], s[0:1], {KA_WS}")
    k("v_lshrrev_b32 v1, 6, v0\nv_and_b32 v2, 63, v0")
    k(f"v_readfirstlane_b32 s{S_WAVE}, v1")
    k("s_and_b32 s4, s2, 7")
    k("s_bfe_u32 s5, s2, 0x20003")
    k("s_lshr_b32 s6, s2, 5")
    k(f"s_lshl_b32 s{S_W4}, s{S_WAVE}, 12")
    k("v_lshrrev_b32 v3, 4, v2\nv_and_b32 v4, 15, v2\nv_lshrrev_b32 v5, 2, v4\nv_and_b32 v6, 3, v2")
    k(f"v_lshlrev_b32 v{V_L16}, 4, v2")
    k("v_lshl_add_u32 v7, v1, 4, v3\nv_lshlrev_b32 v7, 10, v7")
    for p in range(2):
        k(f"v_or_b32 v11, {4*p}, v3\nv_lshlrev_b32 v11, 1, v11\nv_xor_b32 v11, v11, v4\nv_lshl_add_u32 v{V_DW+p}, v11, 4, v7")
    k("s_waitcnt lgkmcnt(0)")
    k("s_lshl_b32 s7, s4, 17\ns_lshl_b32 s22, s5, 8\ns_add_u32 s7, s7, s22")
    k(f"s_add_u32 s{S_W}, s52, s7\ns_addc_u32 s{S_W+1}, s53, 0\ns_sub_u32 s{S_W+2}, {4096*1024}, s7\ns_mov_b32 s{S_W+3}, 0x20000")
    k(f"s_lshl_b32 s22, s6, 2\ns_add_u32 s22, s22, s{S_WAVE}")
    k(f"s_lshl_b32 s7, s22, 19\ns_lshl_b32 s23, s4, 12\ns_add_u32 s7, s7, s23\ns_add_u32 s7, s7, 0x{WS_OF:x}")
    k(f"s_add_u32 s{S_B}, s54, s7\ns_addc_u32 s{S_B+1}, s55, 0\ns_mov_b32 s{S_B+2}, {4*131072}\ns_mov_b32 s{S_B+3}, 0x20000")
    def w_chunk(c):
        r = [f"s_add_u32 m0, s{S_W4}, {c*SLOT}"]
        for p in range(4):
            st = S_T0 + p
            r.append(f"s_mov_b32 s{st}, {((c>>1)*1024 + (c&1)*64)*1024 + p*(4096-1024)}")
            r.append(lambda kk, p=p, st=st: kk.vmop(f"buffer_load_dwordx4 v{V_DW+(p&1)}, {sr(S_W,4)}, s{st} offen offset:{p*1024} lds", f"W{c}"))
        return r
    def b_loads(j):
        r = []
        for tb in range(4):
            st = S_T0 + 4 + tb
            r.append(f"s_mov_b32 s{st}, {tb*131072 + (j>>2)*32768}")
            r.append(lambda kk, tb=tb, st=st: kk.vmop(f"buffer_load_dwordx4 {ar(BF(j,tb),4)}, v{V_L16}, {sr(S_B,4)}, s{st} offen offset:{(j&3)*1024}", f"B{j}"))
        return r
    def run(items):
        for f in items: f(k) if callable(f) else k(f)
    for c in range(5):
        run(w_chunk(c)); run(b_loads(2*c)); run(b_loads(2*c+1))
    later = []
    for c in range(5, 8):
        later.append(w_chunk(c)); later.append(b_loads(2*c)); later.append(b_loads(2*c+1))
    k(f"s_lshl_b32 s7, s4, 21\ns_lshl_b32 s23, s22, 16\ns_add_u32 s7, s7, s23\ns_lshl_b32 s23, s5, 12\ns_add_u32 s7, s7, s23\ns_add_u32 s7, s7, 0x{WS_PART:x}")
    k(f"s_add_u32 s{S_P}, s54, s7\ns_addc_u32 s{S_P+1}, s55, 0\ns_mov_b32 s{S_P+2}, {3*16384+4096}\ns_mov_b32 s{S_P+3}, 0x20000")
    k("v_lshl_add_u32 v7, v3, 2, v5\nv_and_b32 v11, 7, v7\nv_lshlrev_b32 v7, 8, v7\nv_lshl_add_u32 v7, v6, 3, v7")
    for t in range(8):
        k(f"v_xor_b32 v12, {t}, v11\nv_lshl_add_u32 v{V_WA+t}, v12, 5, v7\nv_add_u32 v{V_WA+8+t}, 0x10000, v{V_WA+t}")
    def wreads(j):
        base = (j >> 1)*SLOT + (j & 1)*8192; bank = base >> 16; off = base & 0xffff
        return [f"ds_read_b64_tr_b16 {vr(WF(j&1,t)+2*h,2)}, v{V_WA+8*bank+t} offset:{off + h*4096}" for t in range(8) for h in range(2)]
    k.vmwait("W0"); k("s_barrier")
    run(wreads(0))
    k.stamp(1)
    for j in range(16):
        mf = []
        for t in range(8):
            for tb in range(4):
                d = vr(ACC(t, tb), 4)
                mf.append(f"{MF} {d}, {vr(WF(j&1,t),4)}, {ar(BF(j,tb),4)}, {d if j else '0'}")
        gaps = {}
        add(gaps, -1, lambda kk, j=j: kk.vmwait(f"B{j}", "lgkmcnt(0)"))
        g = 1
        if j < 15:
            if (j + 1) % 2 == 0:
                add(gaps, 0, lambda kk, j=j: (kk.vmwait(f"W{(j+1)//2}"), kk("s_barrier")))
            for x in wreads(j+1):
                add(gaps, g, x); g += 1
        nl = 2 if j % 2 == 0 else 1
        for _ in range(nl):
            if later:
                for f in later.pop(0):
                    add(gaps, g, f)
                    if callable(f): g += 1
        emit_phase(k, mf, gaps)
    k.stamp(2)
    k("s_nop 7")
    n = 0
    for tb in range(4):
        k(f"s_mov_b32 s{S_T0+tb}, {tb*16384}")
    for ns in range(4):
        for tb in range(4):
            o = 32 + (n & 7)*4; n += 1
            for h in range(2):
                a = ACC(2*ns+h, tb)
                k(f"v_cvt_pk_bf16_f32 v{o+2*h}, v{a}, v{a+1}\nv_cvt_pk_bf16_f32 v{o+2*h+1}, v{a+2}, v{a+3}")
            k(f"buffer_store_dwordx4 {vr(o,4)}, v{V_L16}, {sr(S_P,4)}, s{S_T0+tb} offen offset:{ns*1024}")
    if prof:
        k.stamp(3); k("s_waitcnt vmcnt(0)"); k.stamp(4); k.dump_stamps(5, 54, 100)
    k(f"{end}:\ns_endpgm")
    return k
```

```python
from common import *

def gen_k3(prof=False):
    k = Kern("k3_ln2_kernel", 256, 256, 4096, 168, 168, 96 if prof else 64)
    k.prof = prof
    end = "k3_end"
    k(f"s_cmp_ge_u32 s2, 256\ns_cbranch_scc1 {end}")
    k.stamp(0)
    k(f"s_load_dwordx2 s[4:5], s[0:1], {KA_X}")
    k(f"s_load_dwordx2 s[54:55], s[0:1], {KA_WS}")
    k("v_and_b32 v1, 7, v0")
    k("v_bfe_u32 v2, v0, 3, 2")
    k("v_lshrrev_b32 v3, 5, v0")
    k("v_lshlrev_b32 v4, 10, v3\nv_lshl_add_u32 v4, v2, 8, v4\nv_lshl_add_u32 v4, v1, 4, v4")
    k("v_lshlrev_b32 v5, 10, v1\nv_lshl_add_u32 v5, v3, 6, v5\nv_lshl_add_u32 v5, v2, 3, v5")
    k("v_lshlrev_b32 v6, 7, v3\nv_lshl_add_u32 v6, v2, 4, v6")
    k("s_lshr_b32 s6, s2, 1\ns_lshl_b32 s6, s6, 14\ns_and_b32 s7, s2, 1\ns_lshl_b32 s7, s7, 7\ns_add_u32 s6, s6, s7")
    k("s_lshl_b32 s7, s2, 13")
    k("s_waitcnt lgkmcnt(0)")
    k.srd(8, 54, 8*2048*1024, WS_PART)
    k.srd(12, 4, 2048*1024)
    k.srd(16, 54, 6*2048, WS_MOD)
    k.srd(20, 54, 2048*1024, WS_H2)
    k.srd(24, 54, 2048*1024, WS_X1)
    PR = 16
    XR = 80
    PA = 88
    AC = 136
    T = 152
    k("s_add_u32 s28, s6, 8192")
    for sp in range(8):
        k(f"buffer_load_dwordx4 {vr(PR+sp*8,4)}, v4, s[8:11], s6 offen")
        k(f"buffer_load_dwordx4 {vr(PR+sp*8+4,4)}, v4, s[8:11], s28 offen")
        if sp < 7: k(f"v_add_u32 v4, 0x200000, v4")
    for pc in range(2):
        for h in range(2):
            k(f"buffer_load_dwordx2 {vr(XR+pc*4+h*2,2)}, v5, s[12:15], s7 offen offset:{pc*512+h*32}")
    for wi, sec in enumerate((2, 3, 4)):
        k(f"s_mov_b32 s29, {sec*2048}")
        for pc in range(2):
            for h in range(2):
                k(f"buffer_load_dwordx4 {vr(PA+wi*16+pc*8+h*4,4)}, v6, s[16:19], s29 offen offset:{pc*1024+h*64}")
    k("v_add_u32 v4, 0xff200000, v4")
    k("v_lshlrev_b32 v7, 7, v1")
    k("v_lshrrev_b32 v8, 3, v0\nv_lshl_add_u32 v8, v8, 2, v7")
    for sp in range(8):
        k(f"s_waitcnt vmcnt({16 + 14 - 2*sp})")
        for d in range(8):
            w = PR + sp*8 + d
            if sp == 0:
                k(f"v_lshlrev_b32 v{AC+2*d}, 16, v{w}\nv_and_b32 v{AC+2*d+1}, 0xffff0000, v{w}")
            else:
                k(f"v_lshlrev_b32 v{T}, 16, v{w}\nv_and_b32 v{T+1}, 0xffff0000, v{w}")
                k(f"v_add_f32 v{AC+2*d}, v{AC+2*d}, v{T}\nv_add_f32 v{AC+2*d+1}, v{AC+2*d+1}, v{T+1}")
    k("s_waitcnt vmcnt(8)")
    for d in range(8):
        w = XR + d
        k(f"v_lshlrev_b32 v{T}, 16, v{w}\nv_and_b32 v{T+1}, 0xffff0000, v{w}")
        k(f"v_fma_f32 v{AC+2*d}, v{AC+2*d}, v{PA+2*d}, v{T}\nv_fma_f32 v{AC+2*d+1}, v{AC+2*d+1}, v{PA+2*d+1}, v{T+1}")
    for d in range(8):
        k(f"v_cvt_pk_bf16_f32 v{XR+d}, v{AC+2*d}, v{AC+2*d+1}")
    for pc in range(2):
        for h in range(2):
            k(f"buffer_store_dwordx2 {vr(XR+pc*4+h*2,2)}, v5, s[24:27], s7 offen offset:{pc*512+h*32}")
    for d in range(8):
        k(f"v_lshlrev_b32 v{AC+2*d}, 16, v{XR+d}\nv_and_b32 v{AC+2*d+1}, 0xffff0000, v{XR+d}")
    def tree(src, tmp):
        n = len(src)//2
        for i in range(n): k(f"v_add_f32 v{tmp+i}, v{src[2*i]}, v{src[2*i+1]}")
        while n > 1:
            n //= 2
            for i in range(n): k(f"v_add_f32 v{tmp+i}, v{tmp+i}, v{tmp+i+n}")
    tree(list(range(AC, AC+16)), T)
    k(f"ds_write_b32 v8, v{T}")
    k("s_waitcnt lgkmcnt(0)\ns_barrier")
    for i in range(8): k(f"ds_read_b128 {vr(PR+4*i,4)}, v7 offset:{16*i}")
    k("s_waitcnt lgkmcnt(0)")
    tree(list(range(PR, PR+32)), PR+32)
    k(f"v_mul_f32 v9, {hexf(1/512)}, v{PR+32}")
    for e in range(16): k(f"v_sub_f32 v{AC+e}, v{AC+e}, v9")
    for i in range(4): k(f"v_mul_f32 v{T+i}, v{AC+i}, v{AC+i}")
    for e in range(4, 16): k(f"v_fmac_f32 v{T+e%4}, v{AC+e}, v{AC+e}")
    k(f"v_add_f32 v{T}, v{T}, v{T+1}\nv_add_f32 v{T+2}, v{T+2}, v{T+3}\nv_add_f32 v{T}, v{T}, v{T+2}")
    k(f"ds_write_b32 v8, v{T} offset:1024")
    k("s_waitcnt lgkmcnt(0)\ns_barrier")
    for i in range(8): k(f"ds_read_b128 {vr(PR+4*i,4)}, v7 offset:{1024+16*i}")
    k("s_waitcnt lgkmcnt(0)")
    tree(list(range(PR, PR+32)), PR+32)
    k(f"v_mov_b32 v9, {hexf(1e-5)}\nv_fmac_f32 v9, {hexf(1/512)}, v{PR+32}\nv_rsq_f32 v9, v9\ns_waitcnt vmcnt(4)")
    for e in range(16): k(f"v_mul_f32 v{AC+e}, v{AC+e}, v9")
    for e in range(16): k(f"v_fma_f32 v{AC+e}, v{AC+e}, v{PA+32+e}, v{PA+16+e}")
    for d in range(8): k(f"v_cvt_pk_bf16_f32 v{PR+d}, v{AC+2*d}, v{AC+2*d+1}")
    k(f"buffer_store_dwordx4 {vr(PR,4)}, v4, s[20:23], s6 offen")
    k(f"buffer_store_dwordx4 {vr(PR+4,4)}, v4, s[20:23], s28 offen")
    if prof:
        k.stamp(1); k("s_waitcnt vmcnt(0)"); k.stamp(2); k.dump_stamps(3, 54, 100)
    k(f"{end}:\ns_endpgm")
    return k
```

```python
from common import *
from k1 import emit_phase, add, MF

STG = 12288
NST = 13
def ACC(m, t, tb): return 64 + ((m*6+t)*2+tb)*4
def WF(buf, m, t): return 160 + ((buf*2+m)*6+t)*4
def BF(j, tb): return (j*2+tb)*4
V_DW = 8
V_L16 = 11
V_WA = 16
S_G, S_U, S_B, S_H = 8, 12, 16, 20
S_WAVE, S_M0, S_T0 = 24, 25, 28

def gen_k4(prof=False):
    k = Kern("k4_glu_kernel", 240, 256, NST*STG, 384, 256, 96 if prof else 64)
    k.prof = prof
    end = "k4_end"
    k(f"s_cmp_ge_u32 s2, 240\ns_cbranch_scc1 {end}")
    k.stamp(0)
    k(f"s_load_dwordx4 s[48:51], s[0:1], {KA_WG}")
    k(f"s_load_dwordx2 s[54:55], s[0:1], {KA_WS}")
    k("v_lshrrev_b32 v1, 6, v0\nv_and_b32 v2, 63, v0")
    k(f"v_readfirstlane_b32 s{S_WAVE}, v1")
    k("s_and_b32 s4, s2, 7\ns_lshl_b32 s4, s4, 1\ns_bfe_u32 s5, s2, 0x10003\ns_add_u32 s4, s4, s5\ns_lshr_b32 s5, s2, 4")
    k("v_lshrrev_b32 v3, 4, v2\nv_and_b32 v4, 15, v2\nv_lshrrev_b32 v5, 2, v4\nv_and_b32 v6, 3, v2")
    k(f"v_lshlrev_b32 v{V_L16}, 4, v2")
    k("v_and_b32 v7, 1, v1\nv_lshlrev_b32 v7, 4, v7")
    for p in range(3):
        k(f"v_add_u32 v12, {64*p}, v2")
        k("v_mul_u32_u24 v13, 0x5556, v12\nv_lshrrev_b32 v13, 18, v13")
        k("v_mul_u32_u24 v14, 12, v13\nv_sub_u32 v14, v12, v14")
        k("v_lshrrev_b32 v15, 1, v13\nv_and_b32 v15, 2, v15\nv_xor_b32 v14, v14, v15")
        k("v_add_u32 v13, v13, v7\nv_mul_u32_u24 v13, 2752, v13")
        k(f"v_lshl_add_u32 v{V_DW+p}, v14, 4, v13")
        if p: k(f"v_subrev_u32 v{V_DW+p}, {1024*p}, v{V_DW+p}")
    k(f"s_mul_i32 s{S_M0}, s{S_WAVE}, 3072")
    k("s_waitcnt lgkmcnt(0)")
    k(f"s_cmp_lt_u32 s{S_WAVE}, 2\ns_cselect_b32 s6, s48, s50\ns_cselect_b32 s7, s49, s51")
    k("s_mul_i32 s26, s5, 192")
    k(f"s_add_u32 s{S_G}, s6, s26\ns_addc_u32 s{S_G+1}, s7, 0\ns_sub_u32 s{S_G+2}, {512*2752}, s26\ns_mov_b32 s{S_G+3}, 0x20000")
    k(f"s_lshl_b32 s26, s4, 2\ns_add_u32 s26, s26, s{S_WAVE}\ns_lshl_b32 s26, s26, 1")
    k(f"s_lshl_b32 s6, s26, 14\ns_add_u32 s6, s6, 0x{WS_H2:x}")
    k(f"s_add_u32 s{S_B}, s54, s6\ns_addc_u32 s{S_B+1}, s55, 0\ns_mov_b32 s{S_B+2}, 32768\ns_mov_b32 s{S_B+3}, 0x20000")
    def w_step(j):
        st = S_T0 + (j & 1)
        r = [f"s_add_u32 m0, s{S_M0}, {(j % NST)*STG}\ns_mov_b32 s{st}, {j*32*2752}"]
        for p in range(3):
            r.append(lambda kk, p=p: kk.vmop(f"buffer_load_dwordx4 v{V_DW+p}, {sr(S_G,4)}, s{st} offen offset:{p*1024} lds", f"W{j}"))
        return r
    def b_loads(j):
        r = []
        for tb in range(2):
            st = S_T0 + 2 + tb
            r.append(f"s_mov_b32 s{st}, {tb*16384 + (j>>2)*4096}")
            r.append(lambda kk, tb=tb, st=st: kk.vmop(f"buffer_load_dwordx4 {ar(BF(j,tb),4)}, v{V_L16}, {sr(S_B,4)}, s{st} offen offset:{(j&3)*1024}", f"B{j}"))
        return r
    def run(items):
        for f in items: f(k) if callable(f) else k(f)
    D = 6
    for j in range(D):
        run(w_step(j)); run(b_loads(j))
    k(f"s_mul_i32 s6, s26, {43*1024}\ns_mul_i32 s7, s5, 3072\ns_add_u32 s6, s6, s7\ns_add_u32 s6, s6, 0x{WS_HF:x}")
    k(f"s_add_u32 s{S_H}, s54, s6\ns_addc_u32 s{S_H+1}, s55, 0\ns_mov_b32 s{S_H+2}, {43*1024+3072}\ns_mov_b32 s{S_H+3}, 0x20000")
    k("v_lshl_add_u32 v7, v3, 2, v5\nv_mul_u32_u24 v7, 192, v7\nv_lshl_add_u32 v7, v6, 3, v7\nv_and_b32 v12, 1, v3")
    for par in range(2):
        k(f"v_xor_b32 v13, {par}, v12\nv_lshl_add_u32 v{V_WA+par}, v13, 5, v7")
        k(f"v_add_u32 v{V_WA+2+par}, {5*STG}, v{V_WA+par}\nv_add_u32 v{V_WA+4+par}, {10*STG}, v{V_WA+par}")
    def wreads(j):
        sl = j % NST; bank = sl // 5; off = (sl % 5)*STG
        r = []
        for t in range(6):
            for m in range(2):
                for h in range(2):
                    r.append(f"ds_read_b64_tr_b16 {vr(WF(j&1,m,t)+2*h,2)}, v{V_WA+2*bank+(t&1)} offset:{off + m*6144 + h*3072 + (t>>1)*64}")
        return r
    k.vmwait("W0"); k("s_barrier")
    run(wreads(0))
    k.stamp(1)
    for j in range(16):
        mf = []
        for t in range(6):
            for m in range(2):
                for tb in range(2):
                    d = vr(ACC(m, t, tb), 4)
                    mf.append(f"{MF} {d}, {vr(WF(j&1,m,t),4)}, {ar(BF(j,tb),4)}, {d if j else '0'}")
        gaps = {}
        add(gaps, -1, lambda kk, j=j: kk.vmwait(f"B{j}", "lgkmcnt(0)"))
        g = 1
        if j < 15:
            add(gaps, 0, lambda kk, j=j: (kk.vmwait(f"W{j+1}"), kk("s_barrier")))
            rd = wreads(j+1)
            while rd:
                add(gaps, g, rd.pop(0), rd.pop(0)); g += 1
        if j + D < 16:
            for f in w_step(j+D) + b_loads(j+D):
                add(gaps, g, f)
                if callable(f): g += 1
        emit_phase(k, mf, gaps)
    k.stamp(2)
    k("s_nop 7")
    k(f"s_mov_b32 s{S_T0}, 0\ns_mov_b32 s{S_T0+1}, {43*1024}")
    n = 0
    for u in range(3):
        if u == 1: k(f"s_cmp_eq_u32 s5, 14\ns_cbranch_scc1 k4_done")
        for tb in range(2):
            o = 32 + (n & 3)*4; n += 1
            for h in range(2):
                a = ACC(0, 2*u+h, tb); b = ACC(1, 2*u+h, tb)
                for i in range(4): k(f"v_mul_f32 v{a+i}, v{a+i}, v{b+i}")
                k(f"v_cvt_pk_bf16_f32 v{o+2*h}, v{a}, v{a+1}\nv_cvt_pk_bf16_f32 v{o+2*h+1}, v{a+2}, v{a+3}")
            k(f"buffer_store_dwordx4 {vr(o,4)}, v{V_L16}, {sr(S_H,4)}, s{S_T0+tb} offen offset:{u*1024}")
    k("k4_done:")
    if prof:
        k.stamp(3); k("s_waitcnt vmcnt(0)"); k.stamp(4); k.dump_stamps(5, 54, 100)
    k(f"{end}:\ns_endpgm")
    return k
```

```python
from common import *
from k1 import emit_phase, add, MF

NS = 11
RING = 9
def ACC(t, tb): return 64 + (t*4+tb)*4
def WF(buf, t): return 128 + (buf*4+t)*4
def BF(i, tb): return (i*4+tb)*4
V_DW, V_L16, V_WA = 8, 9, 12
S_W, S_B, S_O, S_X, S_M = 8, 12, 16, 20, 24
S_WAVE, S_M0, S_T0 = 28, 29, 32

def gen_k5(prof=False):
    k = Kern("k5_down_kernel", 256, 256, 4*RING*4096, 256+176, 256, 96 if prof else 64)
    k.prof = prof
    end = "k5_end"
    k(f"s_cmp_ge_u32 s2, 256\ns_cbranch_scc1 {end}")
    k.stamp(0)
    k(f"s_load_dwordx2 s[48:49], s[0:1], {KA_WD}")
    k(f"s_load_dwordx2 s[50:51], s[0:1], {KA_OUT}")
    k(f"s_load_dwordx2 s[54:55], s[0:1], {KA_WS}")
    k("v_lshrrev_b32 v1, 6, v0\nv_and_b32 v2, 63, v0")
    k(f"v_readfirstlane_b32 s{S_WAVE}, v1")
    k("s_and_b32 s4, s2, 7\ns_lshl_b32 s4, s4, 2\ns_bfe_u32 s5, s2, 0x20003\ns_add_u32 s4, s4, s5\ns_lshr_b32 s5, s2, 5")
    k("v_lshrrev_b32 v3, 4, v2\nv_and_b32 v4, 15, v2\nv_lshrrev_b32 v5, 2, v4\nv_and_b32 v6, 3, v2")
    k(f"v_lshlrev_b32 v{V_L16}, 4, v2")
    k("v_lshrrev_b32 v7, 3, v2\nv_and_b32 v10, 7, v2\nv_lshlrev_b32 v11, 1, v7\nv_and_b32 v11, 4, v11\nv_xor_b32 v10, v10, v11")
    k(f"v_lshlrev_b32 v7, 10, v7\nv_lshl_add_u32 v{V_DW}, v10, 4, v7")
    k(f"s_mul_i32 s{S_M0}, s{S_WAVE}, {RING*4096}")
    k("s_waitcnt lgkmcnt(0)")
    k(f"s_lshl_b32 s6, s5, 7\ns_lshl_b32 s7, s{S_WAVE}, 15\ns_add_u32 s6, s6, s7")
    k(f"s_add_u32 s{S_W}, s48, s6\ns_addc_u32 s{S_W+1}, s49, 0\ns_sub_u32 s{S_W+2}, {1376*1024}, s6\ns_mov_b32 s{S_W+3}, 0x20000")
    k(f"s_mul_i32 s6, s4, {4*43*1024}\ns_lshl_b32 s7, s{S_WAVE}, 10\ns_add_u32 s6, s6, s7\ns_add_u32 s6, s6, 0x{WS_HF:x}")
    k(f"s_add_u32 s{S_B}, s54, s6\ns_addc_u32 s{S_B+1}, s55, 0\ns_sub_u32 s{S_B+2}, {4*43*1024}, s7\ns_mov_b32 s{S_B+3}, 0x20000")
    def w_step(i):
        r = [f"s_add_u32 m0, s{S_M0}, {(i % RING)*4096}"]
        for p in range(4):
            st = S_T0 + p
            r.append(f"s_mov_b32 s{st}, {i*128*1024 + p*(8192-1024)}")
            r.append(lambda kk, p=p, st=st: kk.vmop(f"buffer_load_dwordx4 v{V_DW}, {sr(S_W,4)}, s{st} offen offset:{p*1024} lds", f"W{i}"))
        return r
    def b_loads(i):
        r = []
        for tb in range(4):
            st = S_T0 + 4 + tb
            r.append(f"s_mov_b32 s{st}, {tb*43*1024 + i*4096}")
            r.append(lambda kk, tb=tb, st=st: kk.vmop(f"buffer_load_dwordx4 {ar(BF(i,tb),4)}, v{V_L16}, {sr(S_B,4)}, s{st} offen", f"B{i}"))
        return r
    def run(items):
        for f in items: f(k) if callable(f) else k(f)
    D = 4
    for i in range(D):
        run(w_step(i)); run(b_loads(i))
    k.srd(S_M, 54, 6*2048, WS_MOD)
    k("s_lshl_b32 s6, s4, 16\ns_lshl_b32 s7, s5, 7\ns_add_u32 s6, s6, s7")
    k(f"s_add_u32 s{S_O}, s50, s6\ns_addc_u32 s{S_O+1}, s51, 0\ns_sub_u32 s{S_O+2}, {2048*1024}, s6\ns_mov_b32 s{S_O+3}, 0x20000")
    k(f"s_add_u32 s6, s6, 0x{WS_X1:x}")
    k(f"s_add_u32 s{S_X}, s54, s6\ns_addc_u32 s{S_X+1}, s55, 0\ns_mov_b32 s{S_X+2}, 65536\ns_mov_b32 s{S_X+3}, 0x20000")
    k("v_lshl_add_u32 v7, v3, 2, v5\nv_lshlrev_b32 v7, 7, v7\nv_lshl_add_u32 v7, v6, 4, v7")
    k(f"v_add_u32 v7, s{S_M0}, v7\nv_lshrrev_b32 v10, 1, v5")
    for s in range(2):
        k(f"v_xor_b32 v11, {s}, v10\nv_lshl_add_u32 v{V_WA+s}, v11, 6, v7")
    def wreads(i):
        off = (i % RING)*4096
        return [f"ds_read_b64_tr_b16 {vr(WF(i&1,t)+2*h,2)}, v{V_WA+(t>>1)} offset:{off + h*2048 + 8*(t&1)}" for t in range(4) for h in range(2)]
    k.vmwait("W0")
    run(wreads(0))
    k.stamp(1)
    for i in range(NS):
        mf = []
        for t in range(4):
            for tb in range(4):
                d = vr(ACC(t, tb), 4)
                mf.append(f"{MF} {d}, {vr(WF(i&1,t),4)}, {ar(BF(i,tb),4)}, {d if i else '0'}")
        gaps = {}
        add(gaps, -1, lambda kk, i=i: kk.vmwait(f"B{i}", "lgkmcnt(0)"))
        g = 0
        if i + D < NS:
            for f in w_step(i+D) + b_loads(i+D):
                add(gaps, g, f)
                if callable(f): g += 1
        if i < NS-1:
            add(gaps, g, lambda kk, i=i: kk.vmwait(f"W{i+1}"))
            rd = wreads(i+1)
            while rd:
                add(gaps, g, rd.pop(0), rd.pop(0)); g += 1
        if i == NS-1: add(gaps, -1, f"s_cmp_eq_u32 s{S_WAVE}, 3\ns_cbranch_scc1 k5_skip")
        emit_phase(k, mf, gaps)
    k("k5_skip:")
    k.stamp(2)
    k("v_lshlrev_b32 v16, 10, v4\nv_lshl_add_u32 v16, v3, 4, v16\nv_lshl_add_u32 v16, v1, 14, v16")
    k("v_lshlrev_b32 v17, 5, v3\ns_lshl_b32 s6, s5, 8\ns_add_u32 s6, s6, 10240")
    for s in range(2):
        k(f"buffer_load_dwordx4 {vr(32+4*s,4)}, v16, {sr(S_X,4)}, 0 offen offset:{64*s}")
        for h in range(2):
            k(f"buffer_load_dwordx4 {vr(40+8*s+4*h,4)}, v17, {sr(S_M,4)}, s6 offen offset:{128*s+16*h}")
    k("s_barrier")
    k(f"v_lshl_add_u32 v18, v1, 14, v{V_L16}\nv_lshl_add_u32 v19, v1, 12, v{V_L16}")
    for tb in range(4):
        for t in range(4):
            k(f"ds_write_b128 v18, {vr(ACC(t,tb),4)} offset:{tb*4096+t*1024}")
    k("s_waitcnt lgkmcnt(0)\ns_barrier")
    for w in range(4):
        for t in range(4):
            k(f"ds_read_b128 {vr(64+(w*4+t)*4,4)}, v19 offset:{w*16384+t*1024}")
        if w == 2: k("s_waitcnt lgkmcnt(4)")
    for e in range(16): k(f"v_add_f32 v{64+e}, v{64+e}, v{80+e}")
    k("s_waitcnt lgkmcnt(0)")
    for e in range(16): k(f"v_add_f32 v{96+e}, v{96+e}, v{112+e}")
    for e in range(16): k(f"v_add_f32 v{64+e}, v{64+e}, v{96+e}")
    k("s_waitcnt vmcnt(0)")
    for d in range(8):
        k(f"v_lshlrev_b32 v20, 16, v{32+d}\nv_and_b32 v21, 0xffff0000, v{32+d}")
        k(f"v_fma_f32 v{64+2*d}, v{64+2*d}, v{40+2*d}, v20\nv_fma_f32 v{65+2*d}, v{65+2*d}, v{41+2*d}, v21")
    for d in range(8): k(f"v_cvt_pk_bf16_f32 v{24+d}, v{64+2*d}, v{65+2*d}")
    for s in range(2):
        k(f"buffer_store_dwordx4 {vr(24+4*s,4)}, v16, {sr(S_O,4)}, 0 offen offset:{64*s}")
    if prof:
        k.stamp(3); k("s_waitcnt vmcnt(0)"); k.stamp(4); k.dump_stamps(5, 54, 100)
    k(f"{end}:\ns_endpgm")
    return k
```

```python
import sys
from common import *
from k0 import gen_k0
import k1, k2, k3
prof = [a[4:] for a in sys.argv if a.startswith("prof")]
cfg = k1.Cfg()
for a in sys.argv[2:]:
    if "=" in a:
        n, v = a.split("="); setattr(cfg, n, eval(v))
ks = [gen_k0(), k1.gen_k1(cfg, "1" in prof), k2.gen_k2("2" in prof), k3.gen_k3("3" in prof)]
try:
    import k4, k5
    ks += [k4.gen_k4("4" in prof), k5.gen_k5("5" in prof)]
except ImportError:
    pass
open(sys.argv[1], "w").write(assemble(ks))
```

```python
import math, struct

NAME = "adaLN_cond__gqa_block_cached__glu_gated_bilinear__prompt"

KA_X, KA_K, KA_V, KA_WQ, KA_WO, KA_BX, KA_WG, KA_WU, KA_WD, KA_C, KA_WM, KA_OUT, KA_DBG, KA_WS = [8*i for i in range(14)]

WS_MOD  = 0x0
WS_MODP = 0x4000
WS_FLAG = 0x700000
WS_XH   = 0x10000
WS_H2   = 0x210000
WS_X1   = 0x410000
WS_OF   = 0x800000
WS_PART = 0x1800000
WS_HF   = 0x2800000
WS_DBG  = 0x4000000

def f2u(x):
    return struct.unpack("<I", struct.pack("<f", x))[0]

def hexf(x):
    return "0x%08x" % f2u(x)

def vr(b, n=1):
    return f"v{b}" if n == 1 else f"v[{b}:{b+n-1}]"
def ar(b, n=1):
    return f"a{b}" if n == 1 else f"a[{b}:{b+n-1}]"
def sr(b, n=1):
    return f"s{b}" if n == 1 else f"s[{b}:{b+n-1}]"

class Kern:
    def __init__(self, name, grid, block, lds, vgpr, accum, sgpr=96):
        self.name = name; self.grid = grid; self.block = block; self.lds = lds
        self.vgpr = vgpr; self.accum = accum; self.sgpr = sgpr
        self.L = []
        self.vm = []
        self.lg = []
        self.nlab = 0
    def __call__(self, s):
        for ln in s.split("\n"):
            ln = ln.strip()
            if ln: self.L.append("    " + ln if not ln.endswith(":") else ln)
    def label(self, base):
        self.nlab += 1
        return f"{self.name}_{base}_{self.nlab}"
    def c(self, s):
        self.L.append("    ; " + s)
    def vmop(self, s, tag):
        self(s); self.vm.append(tag)
        assert len(self.vm) <= 63, "too many outstanding vmem ops"
    def vm_count_for(self, tag):
        idx = [i for i, t in enumerate(self.vm) if t == tag]
        if not idx: return None
        return len(self.vm) - 1 - idx[-1]
    def vmwait(self, tag, extra=""):
        n = self.vm_count_for(tag)
        if n is None:
            if extra: self(f"s_waitcnt {extra}")
            return
        self(f"s_waitcnt vmcnt({n}) {extra}")
        self.vm = self.vm[len(self.vm) - n:] if n else []
    def lgop(self, s, tag):
        self(s); self.lg.append(tag)
    def wait(self, vm=None, lg=None, barrier=False):
        parts = []
        if vm is not None:
            n = self.vm_count_for(vm)
            if n is not None:
                parts.append(f"vmcnt({n})"); self.vm = self.vm[len(self.vm) - n:] if n else []
        if lg is not None:
            if lg == 'all': n = 0 if self.lg else None
            else:
                idx = [i for i, t in enumerate(self.lg) if t == lg]
                n = len(self.lg) - 1 - idx[-1] if idx else None
            if n is not None:
                n = min(n, 15)
                parts.append(f"lgkmcnt({n})"); self.lg = self.lg[len(self.lg) - n:] if n else []
        if parts: self("s_waitcnt " + " ".join(parts))
        if barrier: self("s_barrier")
    def run(self, items):
        for f in items:
            if isinstance(f, (list, tuple)): self.run(f)
            else: f(self) if callable(f) else self(f)
    def stamp(self, idx):
        if not getattr(self, 'prof', False): return
        self(f"s_memtime s[{64+4*idx}:{65+4*idx}]\ns_memrealtime s[{66+4*idx}:{67+4*idx}]")
    def dump_stamps(self, n, wsreg, vt):
        if not getattr(self, 'prof', False): return
        self("s_waitcnt lgkmcnt(0)")
        self(f"s_add_u32 s60, s{wsreg}, 0x{WS_DBG + int(self.name[1])*0x10000:x}\ns_addc_u32 s61, s{wsreg+1}, 0\ns_mov_b32 s62, 0x100000\ns_mov_b32 s63, 0x20000")
        self(f"v_lshrrev_b32 v{vt}, 6, v0\nv_lshl_add_u32 v{vt}, s2, 2, v{vt}\nv_lshlrev_b32 v{vt}, 6, v{vt}")
        for i in range(n):
            self(f"v_mov_b32 v{vt+2}, s{64+4*i}\nv_mov_b32 v{vt+3}, s{66+4*i}")
            self(f"buffer_store_dwordx2 v[{vt+2}:{vt+3}], v{vt}, s[60:63], 0 offen offset:{8*i}\ns_nop 1")
    def code_pf(self, start, end, vt, st, idx_sgpr):
        lab = self.label("pc")
        self(f"s_getpc_b64 s[{st}:{st+1}]")
        self(f"{lab}:")
        self(f"s_add_u32 s{st}, s{st}, {start}-{lab}\ns_addc_u32 s{st+1}, s{st+1}, 0")
        self(f"v_and_b32 v{vt}, 63, v0\nv_lshlrev_b32 v{vt}, 7, v{vt}\ns_lshl_b32 s{st+2}, s{idx_sgpr}, 13\nv_add_u32 v{vt}, s{st+2}, v{vt}")
        self(f"v_min_u32 v{vt}, {end}-{start}-4, v{vt}")
        self(f"global_load_dword v{vt+1}, v{vt}, s[{st}:{st+1}]")
    def srd(self, d, base, nbytes, off=0):
        if off:
            self(f"s_add_u32 s{d}, s{base}, 0x{off:x}")
            self(f"s_addc_u32 s{d+1}, s{base+1}, 0")
        else:
            self(f"s_mov_b32 s{d}, s{base}")
            self(f"s_mov_b32 s{d+1}, s{base+1}")
        self(f"s_mov_b32 s{d+2}, 0x{nbytes:x}")
        self(f"s_mov_b32 s{d+3}, 0x20000")
    def text(self):
        return f".globl {self.name}\n.p2align 8\n.type {self.name},@function\n{self.name}:\n" + "\n".join(self.L) + "\n"
    def desc(self):
        return f""".p2align 6
.amdhsa_kernel {self.name}
  .amdhsa_next_free_vgpr {self.vgpr}
  .amdhsa_next_free_sgpr {self.sgpr}
  .amdhsa_accum_offset {self.accum}
  .amdhsa_group_segment_fixed_size 0
  .amdhsa_kernarg_size 112
  .amdhsa_user_sgpr_count 2
  .amdhsa_user_sgpr_kernarg_segment_ptr 1
  .amdhsa_system_sgpr_workgroup_id_x 1
  .amdhsa_float_denorm_mode_32 3
  .amdhsa_float_denorm_mode_16_64 3
.end_amdhsa_kernel
"""
    def launch(self):
        return f"; @launch kernel={self.name} grid=({self.grid},1,1) block=({self.block},1,1) lds={self.lds}\n"

HEADER = """; adaLN-conditioned block: LN+modulate -> Q proj -> attention over cached K/V -> O proj -> LN+modulate -> bilinear GLU
"""
def assemble(kerns):
    s = HEADER + "".join(k.launch() for k in kerns)
    s += '.amdgcn_target "amdgcn-amd-amdhsa--gfx950"\n.text\n'
    seen = []
    for k in kerns:
        if k.name in seen: continue
        seen.append(k.name); s += k.text()
    s += "code_end_marker:\n    s_endpgm\n"
    s += '.section .rodata,"a"\n'
    seen = []
    for k in kerns:
        if k.name in seen: continue
        seen.append(k.name); s += k.desc()
    return s

class Opt:
    st0 = ""; st1 = ""; st2 = "sc1"; st3 = "sc1"; st4 = "sc1"; st5 = "sc1"
    map4 = 1; d2 = 6; pf2 = 0; pf3 = 0; ramp4 = 1; la5 = 4; map5 = 0; achain = 1; opf = ""; wpf = ""; bk = 14; vsp = 6; v0 = 12; idle = 0; slowa = 0; slown = 32; ont = ""; fused = 1; cnw = 9; cnb = 4; dnw = 12; dnb = 6; cpre = "030303"; dpre = 0; psleep = 0; pdelay = 8; rep = 16; dmid = 12; fst = "sc1"; fld = "sc1"; serp = 1; prio = 0; lprio = 0; o3 = "xa0123bc"; wqpf = 1; wqnt = "nt"; qko = 4; pvo = 2; xnt = ""; cpf = 1; kvnt = "nt"
OPT = Opt()
```

```python
from common import *

C1 = math.log2(math.e) / math.sqrt(128.0)

def round_bf16(k, v, tmp):
    k(f"v_cvt_pk_bf16_f32 v{tmp}, v{v}, v{v}")
    k(f"v_and_b32 v{v}, 0xffff0000, v{tmp}")

def gen_k0(prof=False):
    k = Kern("k0_prep_kernel", 256, 256, 4096, 104, 104, 96 if prof else 48)
    k.prof = prof
    end = "k0_end"; ln = "k0_ln"
    k(f"s_cmp_ge_u32 s2, 256\ns_cbranch_scc1 {end}")
    k.stamp(0)
    k(f"s_load_dwordx2 s[28:29], s[0:1], {KA_WQ}")
    k(f"s_load_dwordx2 s[4:5], s[0:1], {KA_X}")
    k(f"s_load_dwordx4 s[8:11], s[0:1], {KA_C}")
    k(f"s_load_dwordx2 s[6:7], s[0:1], {KA_WS}")
    k("v_lshrrev_b32 v91, 4, v0\nv_lshlrev_b32 v91, 13, v91")
    k("v_bfe_u32 v92, v0, 1, 3\nv_lshl_add_u32 v91, v92, 10, v91\nv_and_b32 v92, 1, v0\nv_lshl_add_u32 v91, v92, 7, v91")
    k("s_and_b32 s30, s2, 3\ns_lshl_b32 s30, s30, 8\ns_lshr_b32 s31, s2, 3\ns_lshl_b32 s31, s31, 17\ns_add_u32 s36, s30, s31")
    k("s_waitcnt lgkmcnt(0)")
    k.srd(32, 28, 512*8192)
    k(f"s_cmp_ge_u32 s2, 224\ns_cbranch_scc1 k0_pfonly")
    k(f"s_cmp_ge_u32 s2, 96\ns_cbranch_scc1 {ln}")
    k.srd(12, 8, 1024)
    k.srd(16, 10, 512*3072*2)
    k.srd(20, 6, 6*512*4, WS_MOD)
    k("v_lshrrev_b32 v1, 2, v0")
    k("v_and_b32 v2, 3, v0")
    k("v_mul_u32_u24 v3, 6144, v1")
    k("v_lshl_add_u32 v3, v2, 4, v3")
    k("s_lshl_b32 s3, s2, 6")
    k("v_lshlrev_b32 v4, 1, v1")
    for i in range(8):
        k(f"buffer_load_ushort v{8+i}, v4, s[12:15], 0 offen offset:{128*i}")
    for i in range(8):
        k(f"buffer_load_dwordx4 v[{16+4*i}:{19+4*i}], v3, s[16:19], s3 offen nt")
        if i < 7: k(f"s_add_u32 s3, s3, {64*6144}")
    k("buffer_load_dword v93, v91, s[32:35], s36 offen nt")
    k("s_waitcnt vmcnt(9)")
    for i in range(8):
        k(f"v_lshlrev_b32 v{8+i}, 16, v{8+i}")
    for i in range(8):
        k(f"v_mul_f32 v{48+i}, {hexf(-math.log2(math.e))}, v{8+i}")
    for i in range(8):
        k(f"v_exp_f32 v{48+i}, v{48+i}")
    k("s_nop 0")
    for i in range(8):
        k(f"v_add_f32 v{48+i}, 1.0, v{48+i}")
    for i in range(8):
        k(f"v_rcp_f32 v{48+i}, v{48+i}")
    k("s_nop 0")
    for i in range(8):
        k(f"v_mul_f32 v{8+i}, v{8+i}, v{48+i}")
    for i in range(8):
        round_bf16(k, 8+i, 48+i)
    for e in range(8):
        k(f"v_mov_b32 v{56+e}, 0")
    for i in range(8):
        k(f"s_waitcnt vmcnt({8-i})")
        for d in range(4):
            w = 16+4*i+d
            k(f"v_lshlrev_b32 v64, 16, v{w}")
            k(f"v_and_b32 v65, 0xffff0000, v{w}")
            k(f"v_fmac_f32 v{56+2*d}, v{8+i}, v64")
            k(f"v_fmac_f32 v{57+2*d}, v{8+i}, v65")
    k("s_nop 1")
    for e in range(8):
        k(f"v_add_f32 v{56+e}, v{56+e}, v{56+e} row_ror:8")
    k("s_nop 1")
    for e in range(8):
        k(f"v_add_f32 v{56+e}, v{56+e}, v{56+e} row_ror:4")
    k("v_lshrrev_b32 v5, 4, v0")
    k("v_lshlrev_b32 v5, 7, v5")
    k("v_lshl_add_u32 v5, v2, 5, v5")
    k("v_and_b32 v6, 15, v0")
    k("v_cmp_gt_u32 vcc, 4, v6")
    k("s_and_saveexec_b64 s[24:25], vcc")
    k("ds_write_b128 v5, v[56:59]")
    k("ds_write_b128 v5, v[60:63] offset:16")
    k("s_mov_b64 exec, s[24:25]")
    k("s_waitcnt lgkmcnt(0)\ns_barrier")
    k("v_cmp_gt_u32 vcc, 32, v0")
    k("s_and_saveexec_b64 s[24:25], vcc")
    k(f"s_cbranch_execz k0_fin")
    k("v_lshlrev_b32 v5, 2, v0")
    for i in range(16):
        k(f"ds_read_b32 v{16+i}, v5 offset:{128*i}")
    k("s_waitcnt lgkmcnt(0)")
    for st in (8, 4, 2, 1):
        for i in range(st):
            k(f"v_add_f32 v{16+i}, v{16+i}, v{16+i+st}")
    round_bf16(k, 16, 17)
    k("s_lshr_b32 s26, s2, 4")
    k("v_add_f32 v18, 1.0, v16")
    round_bf16(k, 18, 17)
    k("s_cmp_eq_u32 s26, 1\ns_cselect_b32 s27, 1, 0\ns_cmp_eq_u32 s26, 4\ns_cselect_b32 s27, 1, s27")
    k("s_cmp_eq_u32 s27, 1\ns_cselect_b64 vcc, -1, 0")
    k("v_cndmask_b32 v16, v16, v18, vcc")
    k(f"s_cmp_lt_u32 s26, 2\ns_cselect_b32 s27, {hexf(C1)}, 1.0")
    k("v_mul_f32 v16, s27, v16")
    k("s_lshl_b32 s3, s2, 7")
    k(f"buffer_store_dword v16, v5, s[20:23], s3 offen {OPT.st0}")
    k("s_branch k0_fin" if prof else "s_endpgm")
    k("k0_pfonly:")
    if OPT.cpf:
        k("v_lshrrev_b32 v1, 6, v0\ns_nop 0\nv_readfirstlane_b32 s37, v1\ns_bfe_u32 s38, s2, 0x20003\ns_lshl_b32 s38, s38, 2\ns_add_u32 s37, s37, s38")
        k.code_pf("k1_attn_kernel", "code_end_marker", 2, 40, 37)
    k("buffer_load_dword v93, v91, s[32:35], s36 offen nt")
    k("s_branch k0_fin" if prof else "s_endpgm")
    k(f"{ln}:")
    k.srd(12, 4, 2048*512*2)
    k.srd(16, 6, 2048*512*2, WS_XH)
    k("s_sub_u32 s3, s2, 96")
    k("s_lshl_b32 s3, s3, 14")
    k("v_and_b32 v1, 15, v0")
    k("v_lshrrev_b32 v2, 4, v0")
    k("v_and_b32 v3, 3, v2")
    k("v_lshrrev_b32 v4, 6, v0")
    k("v_lshlrev_b32 v5, 10, v1")
    k("v_lshl_add_u32 v5, v4, 8, v5")
    k("v_lshl_add_u32 v5, v3, 4, v5")
    for j in range(4):
        k(f"buffer_load_dwordx4 v[{16+4*j}:{19+4*j}], v5, s[12:15], s3 offen offset:{64*j}")
    k("buffer_load_dword v93, v91, s[32:35], s36 offen nt")
    k("v_lshlrev_b32 v6, 6, v1")
    k("v_lshl_add_u32 v7, v2, 2, v6")
    k("s_waitcnt vmcnt(1)")
    for d in range(16):
        k(f"v_lshlrev_b32 v{32+2*d}, 16, v{16+d}")
        k(f"v_and_b32 v{33+2*d}, 0xffff0000, v{16+d}")
    def tree(src_list, tmp):
        n = len(src_list)//2
        for i in range(n):
            k(f"v_add_f32 v{tmp+i}, v{src_list[2*i]}, v{src_list[2*i+1]}")
        while n > 1:
            n //= 2
            for i in range(n):
                k(f"v_add_f32 v{tmp+i}, v{tmp+i}, v{tmp+i+n}")
    tree(list(range(32, 64)), 64)
    k("ds_write_b32 v7, v64")
    k("s_waitcnt lgkmcnt(0)\ns_barrier")
    for i in range(4):
        k(f"ds_read_b128 v[{64+4*i}:{67+4*i}], v6 offset:{16*i}")
    k("s_waitcnt lgkmcnt(0)")
    tree(list(range(64, 80)), 80)
    k(f"v_mul_f32 v8, {hexf(1/512)}, v80")
    for e in range(32):
        k(f"v_sub_f32 v{32+e}, v{32+e}, v8")
    for i in range(4):
        k(f"v_mul_f32 v{64+i}, v{32+i}, v{32+i}")
    for e in range(4, 32):
        k(f"v_fmac_f32 v{64+e%4}, v{32+e}, v{32+e}")
    k("v_add_f32 v64, v64, v65\nv_add_f32 v66, v66, v67\nv_add_f32 v64, v64, v66")
    k("ds_write_b32 v7, v64 offset:1024")
    k("s_waitcnt lgkmcnt(0)\ns_barrier")
    for i in range(4):
        k(f"ds_read_b128 v[{64+4*i}:{67+4*i}], v6 offset:{1024+16*i}")
    k("s_waitcnt lgkmcnt(0)")
    tree(list(range(64, 80)), 80)
    k(f"v_mov_b32 v9, {hexf(1e-5)}")
    k(f"v_fmac_f32 v9, {hexf(1/512)}, v80")
    k("v_rsq_f32 v9, v9")
    k("s_nop 0")
    for e in range(32):
        k(f"v_mul_f32 v{32+e}, v{32+e}, v9")
    for d in range(16):
        k(f"v_cvt_pk_f16_f32 v{16+d}, v{32+2*d}, v{33+2*d}")
    k("v_and_b32 v5, 63, v0")
    k("v_lshlrev_b32 v5, 4, v5")
    k("v_lshl_add_u32 v5, v4, 12, v5")
    for j in range(4):
        k(f"buffer_store_dwordx4 v[{16+4*j}:{19+4*j}], v5, s[16:19], s3 offen offset:{1024*j} {OPT.st0}")
    k("k0_fin:")
    if prof:
        k("s_mov_b64 exec, -1"); k.stamp(1); k("s_waitcnt vmcnt(0)"); k.stamp(2); k.dump_stamps(3, 6, 96)
    k(f"{end}:")
    k("s_endpgm")
    return k
```

```python
from common import *
from sched import fill

MF = "v_mfma_f32_16x16x32_bf16"

SLOT = 16384
KB = 0
VB = 65536
PARB = 9*SLOT
FLAGB = PARB + 4096
WSLOT = [1, 4, 2, 5, 3, 6, 7, 8]

def O(db, qb): return (db*4+qb)*4
def LA(qb): return 128 + qb*4
def KF(i): return 144 + i*4
def VF(i): return 176 + i*4
ONES = 208
def Q(qb, s): return 128 + (qb*4+s)*4
def S(buf, kb, qb): return 64 + buf*32 + (kb*4+qb)*4
def P(buf, qb): return 32 + buf*16 + qb*4
def MN(qb): return 192 + qb*4
V_KA = 8
V_VA = 12
V_DK = 20
V_DV = 24
V_L16 = 26
V_LS = 28
V_PF = 2
V_T = 208
def XR(slot, qb): return 128 + (slot*4+qb)*4
def HF(buf, qb): return 32 + (buf*4+qb)*4
def PAR(buf): return 64 + buf*16
V_PT = 96
V_WA = 112
V_DW = 124
V_PA = 125
def WF(buf, t): return 128 + (buf*8+t)*4
S_K, S_V, S_W, S_X, S_M, S_O = 8, 12, 16, 20, 24, 28
S_W4 = 32
S_KOFF, S_VOFF = 33, 34
S_CNT = 35
S_T0 = 36
S_RERUN = 44
S_WAVE = 45
S_W1 = 62

def emit_phase(k, mf, gaps):
    for f in gaps.get(-1, []): f(k) if callable(f) else k(f)
    for i, m in enumerate(mf):
        k(m)
        for f in gaps.get(i, []): f(k) if callable(f) else k(f)
    for g in gaps:
        assert g < len(mf), (g, len(mf))

def add(gaps, g, *items):
    gaps.setdefault(g, []).extend(items)

def qk_mfmas(buf, kf=KF, czero=False):
    r = []
    for kb in range(2):
        for s in range(4):
            for qb in range(4):
                d = vr(S(buf, kb, qb), 4)
                c = d if s else ("0" if czero else vr(MN(qb), 4))
                r.append(f"{MF} {d}, {ar(kf(kb*4+s),4)}, {vr(Q(qb,s),4)}, {c}")
    return r

def pv_mfmas(buf, sumq, vf=VF, czero=False):
    r = []
    for qb in sumq:
        d = ar(LA(qb), 4)
        r.append(f"{MF} {d}, {ar(ONES,4)}, {vr(P(buf,qb),4)}, {'0' if czero else d}")
    for db in range(8):
        for qb in range(4):
            d = ar(O(db, qb), 4)
            r.append(f"{MF} {d}, {ar(vf(db),4)}, {vr(P(buf,qb),4)}, {'0' if czero else d}")
    return r

def exps(buf, qbs):
    r = []
    for qb in qbs:
        for kb in range(2):
            for i in range(4):
                x = S(buf, kb, qb) + i
                r.append(f"v_exp_f32 v{x}, v{x}")
    return r
def cvts(buf, qbs):
    r = []
    for qb in qbs:
        for kb in range(2):
            for h in range(2):
                x = S(buf, kb, qb) + 2*h
                r.append(f"v_cvt_pk_bf16_f32 v{P(buf,qb)+kb*2+h}, v{x}, v{x+1}")
    return r
def adds(buf, qbs, addq):
    r = []
    for qb in qbs:
        for kb in range(2):
            for i in range(4):
                x = S(buf, kb, qb) + i
                r.append(f"v_add_f32 v{V_LS+qb}, v{x}, v{V_LS+qb}" if qb in addq else None)
    return r
def kreads(slot, blk, kf=KF):
    r = []
    for kb in range(2):
        for s in range(4):
            r.append(f"ds_read_b128 {ar(kf(kb*4+s),4)}, v{V_KA+s} offset:{KB+slot*SLOT+blk*8192+kb*4096}")
    return r
def vreads(slot, blk, vf=VF):
    r = []
    for db in range(8):
        for h in range(2):
            r.append(f"ds_read_b64_tr_b16 {ar(vf(db)+2*h,2)}, v{V_VA+db} offset:{slot*SLOT+blk*8192+h*4096}")
    return r
def dma_k(p): return f"buffer_load_dwordx4 v{V_DK+p}, {sr(S_K,4)}, s{S_KOFF} offen offset:{p*1024} {OPT.kvnt} lds"
def dma_v(p): return f"buffer_load_dwordx4 v{V_DV+(p&1)}, {sr(S_V,4)}, s{S_VOFF} offen offset:{p*1024} {OPT.kvnt} lds"

class Cfg:
    la = 4
    fine = 0
    kvper = 7
    x = 0
    pf = 2
    sumq = [0, 1, 2, 3]
    def addq(self): return [q for q in range(4) if q not in self.sumq]

def place_softmax(gaps, n, E, C, A, free, first_e=0):
    egap = []
    for i, e in enumerate(E):
        g = first_e + 2*i
        add(gaps, g, e); egap.append(g)
    items = []
    for p, c in enumerate(C): items.append((egap[2*p+1] + 1, c))
    for i, a in enumerate(A):
        if a: items.append((egap[i] + 1, a))
    items.sort(key=lambda t: t[0])
    free = sorted(free)
    for eg, txt in items:
        cand = [g for g in free if g >= eg]
        if cand:
            g = cand[0]; free.remove(g)
        else:
            g = n - 1
            assert g >= eg, (g, eg)
        add(gaps, g, txt)

def qk_phase(k, cfg, sbuf_out, sm_buf, vrd, pf=()):
    mf = qk_mfmas(sbuf_out)
    gaps = {}
    add(gaps, -1, "s_waitcnt lgkmcnt(0)")
    free = []
    odd = list(range(1, 32, 2))
    vi = 0
    for g in odd:
        if vi < len(vrd):
            add(gaps, g, vrd[vi], vrd[vi+1]); vi += 2
        else:
            free += [g, g]
    if pf:
        for i, g in enumerate((16, 18, 20, 22)): add(gaps, g, pf[i])
        add(gaps, 25, pf[4]); free.remove(25); free.remove(25)
        add(gaps, 26, pf[5]); add(gaps, 28, pf[6])
    qbs = [0, 1]
    place_softmax(gaps, 32, exps(sm_buf, qbs), cvts(sm_buf, qbs), adds(sm_buf, qbs, cfg.addq()), free)
    emit_phase(k, mf, gaps)

def pv_phase(k, cfg, pbuf, sm_buf, rd, dmas, m0, barrier, czero=False, vf=VF, qbs=(2, 3), post=(), extra_valu=()):
    mf = pv_mfmas(pbuf, cfg.sumq, vf, czero)
    n = len(mf); ns = len(cfg.sumq)
    gaps = {}
    w = "s_waitcnt vmcnt(16) lgkmcnt(0)\ns_barrier" if barrier else "s_waitcnt lgkmcnt(0)"
    add(gaps, ns - 1, w)
    free = []
    rd = list(rd); dmas = list(dmas)
    E = exps(sm_buf, qbs) if sm_buf is not None else []
    dense = len(E) > 16
    two = len(rd) > 8
    odd = [g for g in range(1, n) if (g % 2 == 1 or g >= 2*len(E))]
    first = True
    for g in odd:
        if g < ns:
            if g != ns - 1: free += [g, g]
            continue
        if rd:
            add(gaps, g, rd.pop(0))
            if two: add(gaps, g, rd.pop(0))
            else: free.append(g)
        elif dmas and (g // 2) % 2 == 0:
            if first:
                add(gaps, g - 1, m0); first = False
            add(gaps, g, dmas.pop(0))
        else:
            free += [g, g]
    assert not rd and not dmas
    if dense:
        C = cvts(sm_buf, qbs); A = adds(sm_buf, qbs, cfg.addq())
        for i, e in enumerate(E):
            add(gaps, i, e)
            if i >= 1 and A[i-1]: add(gaps, i, A[i-1])
            if i >= 2 and i % 2 == 0: add(gaps, i, C[i//2 - 1])
        gl = min(32, n - 1)
        if gl == 31: add(gaps, gl, "s_nop 0")
        if A[31]: add(gaps, gl, A[31])
        add(gaps, gl, C[15])
    elif E:
        place_softmax(gaps, n, E, cvts(sm_buf, qbs), adds(sm_buf, qbs, cfg.addq()), free)
    for f in post: add(gaps, n - 1, f)
    emit_phase(k, mf, gaps)

def iteration(k, cfg, t4, first=False, post=(), pf=()):
    ks = t4; vs = (t4 - 1) % 4
    m0k = f"s_add_u32 m0, s{S_W4}, {KB + ((t4+3)%4)*SLOT}"
    m0v = f"s_add_u32 m0, s{S_W4}, {VB + ((t4+2)%4)*SLOT}"
    dk = [dma_k(p) for p in range(4)]; dv = [dma_v(p) for p in range(4)]
    k.c(f"---- iteration T%4={t4} ----")
    if not first:
        pv_phase(k, cfg, 1, 0, kreads(ks, 0), dk, m0k, True, post=[f"s_add_u32 s{S_KOFF}, s{S_KOFF}, {SLOT}"])
    qk_phase(k, cfg, 0, 1, vreads(vs, 0), pf)
    pv_phase(k, cfg, 0, 1, kreads(ks, 1), dv, m0v, False, czero=first, post=[f"s_add_u32 s{S_VOFF}, s{S_VOFF}, {SLOT}"])
    qk_phase(k, cfg, 1, 0, vreads(vs, 1))
    for f in post: k(f)

def kv_dma_group(k, which, tile):
    r = []
    if which == 'K':
        r.append(f"s_add_u32 m0, s{S_W4}, {KB + tile*SLOT}\ns_mov_b32 s{S_KOFF}, {tile*SLOT}")
        r += [ (lambda kk, p=p: kk.vmop(dma_k(p), f"K{tile}")) for p in range(4)]
    else:
        r.append(f"s_add_u32 m0, s{S_W4}, {VB + tile*SLOT}\ns_mov_b32 s{S_VOFF}, {tile*SLOT}")
        r += [ (lambda kk, p=p: kk.vmop(dma_v(p), f"V{tile}")) for p in range(4)]
    return r

def rowmax_cross(k, regs, tmp):
    for sw in ("v_permlane32_swap_b32", "v_permlane16_swap_b32"):
        for i, r in enumerate(regs): k(f"v_mov_b32 v{tmp+i}, v{r}")
        k("s_nop 1")
        for i, r in enumerate(regs): k(f"{sw} v{tmp+i}, v{r}")
        k("s_nop 1")
        for i, r in enumerate(regs): k(f"v_max_f32 v{r}, v{r}, v{tmp+i}")

def gen_k1(cfg=None, prof=False):
    cfg = cfg or Cfg()
    k = Kern("k1_attn_kernel", 256, 256, 160*1024, 512, 256, 96 if prof else 64)
    k.prof = prof
    end = "k1_end"
    k(f"s_cmp_ge_u32 s2, 256\ns_cbranch_scc1 {end}")
    k.stamp(0)
    k(f"s_load_dwordx4 s[48:51], s[0:1], {KA_K}")
    k(f"s_load_dwordx2 s[52:53], s[0:1], {KA_WQ}")
    k(f"s_load_dwordx2 s[54:55], s[0:1], {KA_WS}")
    k(f"s_load_dwordx2 s[46:47], s[0:1], {KA_WO}")
    k(f"s_load_dwordx4 s[56:59], s[0:1], {KA_WG}")
    k(f"s_load_dwordx2 s[60:61], s[0:1], {KA_WD}")
    k("v_lshrrev_b32 v1, 6, v0")
    k("v_and_b32 v2, 63, v0")
    k(f"v_readfirstlane_b32 s{S_WAVE}, v1")
    m = OPT.map4
    k(f"s_and_b32 s4, s2, {(8>>m)-1}\ns_bfe_u32 s5, s2, {((2+m)<<16)|3}\ns_lshl_b32 s5, s5, {3-m}\ns_add_u32 s4, s4, s5")
    k(f"s_bfe_u32 s5, s2, {(m<<16)|(3-m)}\ns_lshl_b32 s5, s5, {3-m}\ns_lshr_b32 s6, s2, {5+m}\ns_add_u32 s5, s5, s6")
    k(f"s_lshl_b32 s{S_W4}, s{S_WAVE}, 12")
    k(f"s_mov_b32 s{S_RERUN}, 0")
    k("v_lshrrev_b32 v3, 4, v2")
    k("v_and_b32 v4, 15, v2")
    k("v_lshrrev_b32 v5, 2, v4")
    k("v_and_b32 v6, 3, v2")
    k(f"v_lshlrev_b32 v{V_L16}, 4, v2")
    k("v_lshlrev_b32 v7, 2, v3\nv_xor_b32 v7, v7, v4\nv_lshlrev_b32 v7, 4, v7")
    k(f"v_lshl_add_u32 v{V_DW}, v1, 2, v3\nv_lshl_add_u32 v{V_DW}, v{V_DW}, 13, v7")
    k(f"s_lshl_b32 s{S_W1}, s{S_WAVE}, 10")
    k("s_waitcnt lgkmcnt(0)")
    k("s_lshl_b32 s6, s4, 8")
    k(f"s_add_u32 s{S_W}, s52, s6\ns_addc_u32 s{S_W+1}, s53, 0\ns_sub_u32 s{S_W+2}, {512*8192}, s6\ns_mov_b32 s{S_W+3}, 0x20000")
    k.srd(S_M, 54, 4096, WS_MOD)
    k(f"s_lshl_b32 s6, s5, 2\ns_add_u32 s6, s6, s{S_WAVE}\ns_lshl_b32 s7, s6, 16")
    k(f"s_add_u32 s7, s7, 0x{WS_XH:x}")
    k(f"s_add_u32 s{S_X}, s54, s7\ns_addc_u32 s{S_X+1}, s55, 0\ns_mov_b32 s{S_X+2}, 0x10000\ns_mov_b32 s{S_X+3}, 0x20000")
    def w_step(j):
        r = []
        for p in range(2):
            st = S_T0 + p
            r.append([f"s_add_u32 m0, s{S_W1}, {WSLOT[j>>1]*SLOT + (j&1)*8192 + p*4096}\ns_mov_b32 s{st}, {(j*32 + p*16)*8192}",
                      lambda kk, st=st: kk.vmop(f"buffer_load_dwordx4 v{V_DW}, {sr(S_W,4)}, s{st} offen lds", f"W{j}")])
        return r
    def x_loads(j):
        r = []
        for qb in range(4):
            st = S_T0 + 4 + qb
            r.append([f"s_mov_b32 s{st}, {qb*16384 + (j>>2)*4096}",
                      lambda kk, qb=qb, st=st: kk.vmop(f"buffer_load_dwordx4 {vr(XR(j%8,qb),4)}, v{V_L16}, {sr(S_X,4)}, s{st} offen offset:{(j&3)*1024}", f"X{j}")])
        return r
    def run(items):
        for f in items:
            if isinstance(f, list): run(f)
            else: f(k) if callable(f) else k(f)
    k(f"s_add_u32 m0, s{S_W1}, {PARB}\ns_nop 0")
    k.vmop(f"buffer_load_dwordx4 v{V_L16}, {sr(S_M,4)}, s{S_W1} offen lds", "W0")
    LA_ = cfg.la
    run(x_loads(0)); run(w_step(0)); run(x_loads(1)); run(w_step(1))
    k("s_lshl_b32 s6, s4, 19")
    k(f"s_add_u32 s{S_K}, s48, s6\ns_addc_u32 s{S_K+1}, s49, 0\ns_mov_b32 s{S_K+2}, 0x80000\ns_mov_b32 s{S_K+3}, 0x20000")
    k(f"s_add_u32 s{S_V}, s50, s6\ns_addc_u32 s{S_V+1}, s51, 0\ns_mov_b32 s{S_V+2}, 0x80000\ns_mov_b32 s{S_V+3}, 0x20000")
    k(f"s_lshl_b32 s6, s5, 2\ns_add_u32 s6, s6, s{S_WAVE}\ns_lshl_b32 s6, s6, 19\ns_lshl_b32 s7, s4, 12\ns_add_u32 s6, s6, s7")
    k(f"s_add_u32 s6, s6, 0x{WS_OF:x}")
    k(f"s_add_u32 s{S_O}, s54, s6\ns_addc_u32 s{S_O+1}, s55, 0\ns_mov_b32 s{S_O+2}, {3*131072+4096}\ns_mov_b32 s{S_O+3}, 0x20000")
    k("v_lshl_add_u32 v7, v3, 3, v5\nv_lshlrev_b32 v7, 8, v7\nv_lshl_add_u32 v7, v6, 4, v7")
    for s in range(4):
        k(f"v_xor_b32 v27, {s}, v5\nv_lshl_add_u32 v{V_WA+s}, v27, 6, v7")
        k(f"v_add_u32 v{V_WA+4+s}, 0x10000, v{V_WA+s}\nv_add_u32 v{V_WA+8+s}, 0x20000, v{V_WA+s}")
    k(f"v_lshlrev_b32 v{V_PA}, 5, v3\nv_add_u32 v{V_PA}, {PARB}, v{V_PA}")
    for s in range(4):
        k(f"v_or_b32 v27, {4*s}, v3\nv_xor_b32 v27, v27, v4\nv_lshlrev_b32 v27, 4, v27\nv_lshl_add_u32 v{V_KA+s}, v4, 8, v27")
    k("v_lshl_add_u32 v7, v3, 2, v5\nv_and_b32 v27, 7, v7\nv_lshlrev_b32 v7, 8, v7\nv_lshl_add_u32 v7, v6, 3, v7")
    k(f"v_add_u32 v7, {VB}, v7")
    for db in range(8):
        k(f"v_xor_b32 v30, {db}, v27\nv_lshl_add_u32 v{V_VA+db}, v30, 5, v7")
    k("v_lshlrev_b32 v7, 8, v3\nv_lshl_add_u32 v7, v1, 12, v7")
    for p in range(4):
        k(f"v_or_b32 v27, {4*p}, v3\nv_xor_b32 v27, v27, v4\nv_lshl_add_u32 v{V_DK+p}, v27, 4, v7")
    for p in range(2):
        k(f"v_or_b32 v27, {4*p}, v3\nv_lshlrev_b32 v27, 1, v27\nv_xor_b32 v27, v27, v4\nv_lshl_add_u32 v{V_DV+p}, v27, 4, v7")
    k("v_mov_b32 v27, 0x3f803f80")
    for i in range(4): k(f"v_accvgpr_write_b32 a{ONES+i}, v27")

    def wreads(j):
        c = j >> 1; base = WSLOT[c]*SLOT; bank = base >> 16; off = (base & 0xffff) + (j & 1)*8192
        r = []
        for t in range(8):
            for h in range(2):
                r.append(f"ds_read_b64_tr_b16 {ar(WF(j&1,t)+2*h,2)}, v{V_WA+4*bank+(t>>1)} offset:{off + h*1024 + 8*(t&1)}")
        return r
    def preads(j):
        b = PAR(j & 1)
        return [f"ds_read_b128 {vr(b+4*i,4)}, v{V_PA} offset:{j*128 + (i&1)*16 + (i>>1)*2048}" for i in range(4)]
    def hcalc(j):
        b = PAR(j & 1); r = []
        for qb in range(4):
            t = V_PT + (qb & 1)*8
            for i in range(8):
                r.append(f"v_fma_mix_f32 v{t+i}, v{XR(j%8,qb)+(i>>1)}, v{b+8+i}, v{b+i} op_sel:[{i&1},0,0] op_sel_hi:[1,0,0]")
            for d in range(4):
                r.append(f"v_cvt_pk_bf16_f32 v{HF(j&1,qb)+d}, v{t+2*d}, v{t+2*d+1}")
        return r
    k.vmwait("W0"); k("s_barrier")
    run(preads(0)); run(preads(1)); run(wreads(0))
    pend = [g for j in range(2, LA_) for g in x_loads(j) + w_step(j)]
    k("s_waitcnt lgkmcnt(15)")
    k.stamp(1)
    for i, v in enumerate(hcalc(0)):
        if i % 6 == 0 and pend: run(pend.pop(0))
        k(v)
    kvl = [('K',0),('K',1),('V',0),('K',2),('V',1),('K',3),('V',2)]
    for wh, t in kvl:
        pass
    kvq = []
    for wh, t in kvl:
        it = kv_dma_group(k, wh, t)
        kvq += [[it[0], it[1]]] + [[x] for x in it[2:]]
    for j in range(16):
        k.c(f"qproj stage {j}")
        if cfg.fine and j in (0, 2, 4, 8, 12): k.stamp(2 + (0, 2, 4, 8, 12).index(j))
        mf = []
        for t in range(8):
            for qb in range(4):
                d = ar(O(t, qb), 4)
                mf.append(f"{MF} {d}, {ar(WF(j&1,t),4)}, {vr(HF(j&1,qb),4)}, {d if j else '0'}")
        lds = []; valu = []
        if j < 15:
            lds = wreads(j+1) + (preads(j+2) if j < 14 else [])
            valu = hcalc(j+1)
        jj = j + LA_
        if jj < 16: pend += x_loads(jj) + w_step(jj)
        else:
            per = cfg.kvper
            pend += kvq[:per]; kvq = kvq[per:]
        nvm = min(len(pend), 10)
        vm = pend[:nvm]; pend = pend[nvm:]
        if cfg.x == 1: valu = []
        if cfg.x == 2: lds = [x.replace("ds_read_b64_tr_b16", "ds_read_b64_tr_b16").replace(f"v{V_WA+0} ", "v12 ").replace(f"v{V_WA+1} ", "v13 ").replace(f"v{V_WA+2} ", "v14 ").replace(f"v{V_WA+3} ", "v15 ").replace(f"v{V_WA+4} ", "v12 ").replace(f"v{V_WA+5} ", "v13 ").replace(f"v{V_WA+6} ", "v14 ").replace(f"v{V_WA+7} ", "v15 ").replace(f"v{V_WA+8} ", "v12 ").replace(f"v{V_WA+9} ", "v13 ").replace(f"v{V_WA+10} ", "v14 ").replace(f"v{V_WA+11} ", "v15 ") for x in lds]
        if cfg.x == 4: lds = []
        gaps = fill(32, lds, valu, vm, g0=1, valu_end=31, pair_lds=(cfg.x == 5))
        add(gaps, -1, "s_waitcnt lgkmcnt(0)")
        if j < 15:
            add(gaps, 0, lambda kk, j=j: (kk.vmwait(f"W{j+1}"), kk("s_barrier" if cfg.x != 3 else "")))
        emit_phase(k, mf, gaps)
    assert not pend
    k.stamp(2) if not cfg.fine else k.stamp(7)
    k("s_nop 7")
    for s in range(4):
        for qb in range(4):
            t = V_PT + (qb & 1)*8
            for h in range(2):
                for i in range(4): k(f"v_accvgpr_read_b32 v{t+4*h+i}, a{O(2*s+h,qb)+i}")
            for d in range(4): k(f"v_cvt_pk_bf16_f32 v{Q(qb,s)+d}, v{t+2*d}, v{t+2*d+1}")
            for _ in range(2):
                if kvq: run(kvq.pop(0))
    assert not kvq
    PFS, PF_F, PF_W, PF_O = S_W, S_X, S_X+2, S_M
    k(f"s_cmp_eq_u32 s{S_WAVE}, 1\ns_cselect_b64 s[{PF_F}:{PF_F+1}], s[58:59], s[56:57]")
    k(f"s_cmp_eq_u32 s{S_WAVE}, 2\ns_cselect_b64 s[{PF_F}:{PF_F+1}], s[60:61], s[{PF_F}:{PF_F+1}]")
    k(f"s_mul_i32 s6, s2, {43*128}\ns_add_u32 s{PF_F}, s{PF_F}, s6\ns_addc_u32 s{PF_F+1}, s{PF_F+1}, 0")
    k(f"s_lshl_b32 s6, s4, 17\ns_and_b32 s7, s5, 3\ns_lshl_b32 s7, s7, 15\ns_add_u32 s6, s6, s7\ns_lshl_b32 s7, s{S_WAVE}, 13\ns_add_u32 s6, s6, s7")
    k(f"s_add_u32 s{PF_W}, s46, s6\ns_addc_u32 s{PF_W+1}, s47, 0")
    k(f"v_lshlrev_b32 v{V_PF}, 3, v{V_L16}")
    pfseq = [f"s_cmp_eq_u32 s{S_CNT}, 7\ns_cselect_b64 s[{PFS}:{PFS+1}], s[{PF_F}:{PF_F+1}], s[{PF_O}:{PF_O+1}]",
             f"s_cselect_b32 s{PFS+2}, {43*128}, s{S_T0+7}",
             f"s_cmp_eq_u32 s{S_CNT}, 6\ns_cselect_b64 s[{PFS}:{PFS+1}], s[{PF_W}:{PF_W+1}], s[{PFS}:{PFS+1}]\ns_cselect_b32 s{PFS+2}, 0x2000, s{PFS+2}",
             f"s_cmp_lt_u32 s{S_CNT}, 2\ns_cselect_b32 s{PFS+2}, 0, s{PFS+2}",
             f"buffer_load_dword v{V_PF+1}, v{V_PF}, {sr(PFS,4)}, 0 offen",
             f"s_cmp_lt_u32 s{S_CNT}, 6\ns_cselect_b32 s6, 0x20000, 0",
             f"s_add_u32 s{PF_O}, s{PF_O}, s6\ns_addc_u32 s{PF_O+1}, s{PF_O+1}, 0"]
    k("k1_head:")
    k(f"s_mov_b32 s{PF_O}, s{S_O}\ns_mov_b32 s{PF_O+1}, s{S_O+1}\ns_mov_b32 s{S_T0+7}, 4096")
    assert k.vm[-28:] == ["K0"]*4 + ["K1"]*4 + ["V0"]*4 + ["K2"]*4 + ["V1"]*4 + ["K3"]*4 + ["V2"]*4, k.vm
    k("s_waitcnt vmcnt(24)\ns_barrier")
    run(kreads(0, 0)); run(kreads(0, 1, VF))
    k(f"s_mov_b32 s{S_KOFF}, {4*SLOT}\ns_mov_b32 s{S_VOFF}, {3*SLOT}\ns_mov_b32 s{S_CNT}, 8")
    for q in range(4): k(f"v_mov_b32 v{V_LS+q}, 0")
    k("s_waitcnt lgkmcnt(8)")
    for m in qk_mfmas(0, KF, True): k(m)
    k("s_waitcnt lgkmcnt(0)")
    mf = qk_mfmas(1, VF, True)
    for m in mf[:4]: k(m)
    k(f"s_cmp_lg_u32 s{S_RERUN}, 0\ns_cbranch_scc1 k1_have_max")
    for qb in range(4):
        a = S(0, 0, qb); b = S(0, 1, qb); t = V_T + qb
        k(f"v_max3_f32 v{t}, v{a}, v{a+1}, v{a+2}")
        k(f"v_max3_f32 v{t}, v{t}, v{a+3}, v{b}")
        k(f"v_max3_f32 v{t}, v{t}, v{b+1}, v{b+2}")
        k(f"v_max_f32 v{t}, v{t}, v{b+3}")
    rowmax_cross(k, [V_T+q for q in range(4)], V_T+4)
    k("k1_have_max:")
    gaps = {}
    va = []
    for qb in range(4):
        for i in range(4): va.append(f"v_sub_f32 v{MN(qb)+i}, 0, v{V_T+qb}")
    for qb in range(4):
        for kb in range(2):
            for i in range(4):
                x = S(0, kb, qb) + i
                va.append(f"v_sub_f32 v{x}, v{x}, v{V_T+qb}")
    for g in range(28):
        for _ in range(2):
            if va: add(gaps, g, va.pop(0))
    emit_phase(k, mf[4:], gaps)
    k("s_waitcnt vmcnt(16)\ns_barrier")
    run(kreads(1, 0))
    k(f"s_add_u32 m0, s{S_W4}, {KB + 0*SLOT}")
    E = exps(0, range(4)); C = cvts(0, range(4)); A = adds(0, range(4), cfg.addq())
    for i, e in enumerate(E):
        k(e)
        if i < 4: k(dma_k(i))
        if i >= 1 and A[i-1]: k(A[i-1])
        if i >= 2 and i % 2 == 0: k(C[i//2 - 1])
    k(f"s_add_u32 s{S_KOFF}, s{S_KOFF}, {SLOT}")
    if A[31]: k(A[31])
    k(C[15])
    for qb in range(4):
        for kb in range(2):
            for i in range(4):
                x = S(1, kb, qb) + i
                k(f"v_sub_f32 v{x}, v{x}, v{V_T+qb}")
    iteration(k, cfg, 1, first=True)
    k.stamp(3) if not cfg.fine else None
    k("s_branch k1_pos2")
    k(".p2align 6")
    k("k1_loop:")
    iteration(k, cfg, 0, pf=pfseq if cfg.pf else ())
    iteration(k, cfg, 1)
    k("k1_pos2:")
    iteration(k, cfg, 2)
    iteration(k, cfg, 3, post=[f"s_sub_u32 s{S_CNT}, s{S_CNT}, 1\ns_cmp_lg_u32 s{S_CNT}, 0\ns_cbranch_scc1 k1_loop"])
    k.c("tail")
    k.stamp(4) if not cfg.fine else None
    pv_phase(k, cfg, 1, 0, vreads(3, 0, KF), [], None, True)
    pv_phase(k, cfg, 0, 1, vreads(3, 1, VF), [], None, False, vf=KF, qbs=(0, 1, 2, 3), post=["s_nop 1"])
    pv_phase(k, cfg, 1, None, [], [], None, False)
    k.stamp(5) if not cfg.fine else None
    k("s_nop 7")
    LT = V_T
    for qb in range(4):
        if qb in cfg.sumq: k(f"v_accvgpr_read_b32 v{LT+qb}, a{LA(qb)}")
        else: k(f"v_mov_b32 v{LT+qb}, v{V_LS+qb}")
    aq = cfg.addq()
    if aq:
        for sw in ("v_permlane32_swap_b32", "v_permlane16_swap_b32"):
            for q in aq: k(f"v_mov_b32 v{LT+4+q}, v{LT+q}")
            k("s_nop 1")
            for q in aq: k(f"{sw} v{LT+4+q}, v{LT+q}")
            k("s_nop 1")
            for q in aq: k(f"v_add_f32 v{LT+q}, v{LT+q}, v{LT+4+q}")
    k(f"v_add_f32 v{LT+4}, v{LT}, v{LT+1}\nv_add_f32 v{LT+5}, v{LT+2}, v{LT+3}\nv_add_f32 v{LT+4}, v{LT+4}, v{LT+5}")
    k(f"s_mov_b32 s6, {hexf(2.0**64)}")
    k(f"v_cmp_nle_f32 vcc, v{LT+4}, s6")
    k("s_cmp_lg_u64 vcc, 0\ns_cselect_b32 s6, 1, 0")
    k(f"v_mov_b32 v{LT+5}, s6\ns_lshl_b32 s7, s{S_WAVE}, 2\ns_add_u32 s7, s7, {FLAGB}\nv_mov_b32 v{LT+6}, s7\nv_mov_b32 v{LT+7}, {FLAGB}")
    k(f"ds_write_b32 v{LT+6}, v{LT+5}")
    k("s_waitcnt vmcnt(0) lgkmcnt(0)\ns_barrier")
    k(f"ds_read_b128 {vr(LT+8,4)}, v{LT+7}")
    for qb in range(4): k(f"v_rcp_f32 v{LT+qb}, v{LT+qb}")
    k("s_waitcnt lgkmcnt(0)")
    k(f"v_or_b32 v{LT+8}, v{LT+8}, v{LT+9}\nv_or3_b32 v{LT+8}, v{LT+8}, v{LT+10}, v{LT+11}\ns_nop 0")
    k(f"v_readfirstlane_b32 s6, v{LT+8}")
    k(f"s_andn2_b32 s6, s6, s{S_RERUN}\ns_cmp_lg_u32 s6, 0\ns_cbranch_scc1 k1_fallback")
    for qb in range(4):
        k(f"s_mov_b32 s{S_T0+qb}, {qb*131072}")
        for s in range(4):
            t = 64 + ((qb*4+s) & 3)*8; o = 32 + ((qb*4+s) & 7)*4
            for h in range(2):
                for i in range(4): k(f"v_accvgpr_read_b32 v{t+4*h+i}, a{O(2*s+h,qb)+i}")
            for i in range(8): k(f"v_mul_f32 v{t+i}, v{t+i}, v{LT+qb}")
            for d in range(4): k(f"v_cvt_pk_bf16_f32 v{o+d}, v{t+2*d}, v{t+2*d+1}")
            k(f"buffer_store_dwordx4 {vr(o,4)}, v{V_L16}, {sr(S_O,4)}, s{S_T0+qb} offen offset:{s*1024} {OPT.st1}")
    if prof:
        k.stamp(6) if not cfg.fine else None
        k("s_waitcnt vmcnt(0)")
        k.stamp(7) if not cfg.fine else None
        k.dump_stamps(8, 54, 100)
    k(f"{end}:")
    k("s_endpgm")
    k("k1_fallback:")
    k(f"s_mov_b32 s{S_RERUN}, 1")
    k("v_and_b32 v2, 63, v0\nv_lshrrev_b32 v3, 4, v2\nv_and_b32 v4, 15, v2")
    k("v_lshlrev_b32 v5, 8, v4\nv_lshl_add_u32 v5, v3, 4, v5")
    for q in range(4): k(f"v_mov_b32 v{V_T+q}, 0xff800000")
    k("s_mov_b32 s6, 0")
    k("k1_fb_loop:")
    for s in range(4): k(f"buffer_load_dwordx4 {ar(KF(s),4)}, v5, {sr(S_K,4)}, s6 offen offset:{64*s}")
    k("s_waitcnt vmcnt(0)")
    for s in range(4):
        for qb in range(4):
            d = vr(S(0,0,qb),4)
            k(f"{MF} {d}, {ar(KF(s),4)}, {vr(Q(qb,s),4)}, {d if s else '0'}")
    k("s_nop 15")
    for qb in range(4):
        a = S(0,0,qb)
        k(f"v_max3_f32 v{V_T+qb}, v{V_T+qb}, v{a}, v{a+1}")
        k(f"v_max3_f32 v{V_T+qb}, v{V_T+qb}, v{a+2}, v{a+3}")
    k("s_add_u32 s6, s6, 4096\ns_cmp_lt_u32 s6, 0x80000\ns_cbranch_scc1 k1_fb_loop")
    rowmax_cross(k, [V_T+q for q in range(4)], V_T+4)
    k(f"v_lshlrev_b32 v{V_PF}, 3, v{V_L16}")
    k("s_barrier")
    k.vm = []
    for wh, t in (('K',0),('K',1),('V',0),('K',2),('V',1),('K',3),('V',2)):
        it = kv_dma_group(k, wh, t)
        k(it[0]); k("s_nop 0"); run(it[1:])
    k("s_branch k1_head")
    return k
```

```python
from common import *
from sched import *
MF = "v_mfma_f32_16x16x32_bf16"

STG = 16384
NSL = 8
NK = 32
def ACC(t, tb): return 64 + (t*4+tb)*4
def WF(buf, t): return 128 + (buf*4+t)*4
def BF(buf, tb): return 160 + (buf*4+tb)*4
V_DW = 8
V_L16 = 10
V_WA = 16
V_BA = 24
V_PF = 12
S_W, S_B, S_P, S_F = 8, 12, 16, 36
S_W1, S_WAVE, S_T0 = 20, 21, 24

def gen_k2(prof=False):
    k = Kern("k2_oproj_kernel", 256, 512, NSL*STG, 192, 192, 96 if prof else 64)
    k.prof = prof
    end = "k2_end"
    k(f"s_cmp_ge_u32 s2, 256\ns_cbranch_scc1 {end}")
    k.stamp(0)
    k(f"s_load_dwordx2 s[52:53], s[0:1], {KA_WO}")
    k(f"s_load_dwordx2 s[54:55], s[0:1], {KA_WS}")
    k(f"s_load_dwordx4 s[48:51], s[0:1], {KA_WG}")
    k("v_lshrrev_b32 v1, 6, v0\nv_and_b32 v2, 63, v0")
    k(f"v_readfirstlane_b32 s{S_WAVE}, v1")
    k("s_and_b32 s4, s2, 3")
    k("s_bfe_u32 s5, s2, 0x20003")
    k("s_bfe_u32 s6, s2, 0x10002\ns_lshl_b32 s6, s6, 3\ns_lshr_b32 s7, s2, 5\ns_add_u32 s6, s6, s7")
    k("v_lshrrev_b32 v3, 4, v2\nv_and_b32 v4, 15, v2")
    k(f"v_lshlrev_b32 v{V_L16}, 4, v2")
    k(f"s_cmp_lt_u32 s{S_WAVE}, 4\ns_cbranch_scc1 k2_compute")
    k(f"v_and_b32 v1, 3, v1\ns_and_b32 s{S_WAVE}, s{S_WAVE}, 3\ns_lshl_b32 s{S_W1}, s{S_WAVE}, 10")
    k("v_lshl_add_u32 v7, v1, 2, v3\nv_and_b32 v11, 7, v7\nv_lshlrev_b32 v11, 1, v11\nv_xor_b32 v11, v11, v4\nv_lshlrev_b32 v7, 10, v7")
    k(f"v_lshl_add_u32 v{V_DW}, v11, 4, v7")
    k("s_lshl_b32 s7, s4, 17\ns_lshl_b32 s22, s5, 8\ns_add_u32 s7, s7, s22")
    k(f"s_lshl_b32 s22, s6, 3\ns_add_u32 s22, s22, s{S_WAVE}")
    k(f"s_lshl_b32 s23, s22, 17\ns_lshl_b32 s32, s4, 12\ns_add_u32 s23, s23, s32\ns_add_u32 s23, s23, 0x{WS_OF:x}")
    k("s_waitcnt lgkmcnt(0)")
    k(f"s_add_u32 s{S_W}, s52, s7\ns_addc_u32 s{S_W+1}, s53, 0\ns_sub_u32 s{S_W+2}, {4096*1024}, s7\ns_mov_b32 s{S_W+3}, 0x20000")
    k(f"s_add_u32 s{S_B}, s54, s23\ns_addc_u32 s{S_B+1}, s55, 0\ns_mov_b32 s{S_B+2}, {5*131072}\ns_mov_b32 s{S_B+3}, 0x20000")
    def step(j):
        for p in range(2):
            k(f"s_add_u32 m0, s{S_W1}, {(j % NSL)*STG + p*4096}\ns_mov_b32 s{S_T0}, {((j>>2)*512 + (j&3)*32 + p*16)*1024}")
            k.vmop(f"buffer_load_dwordx4 v{V_DW}, {sr(S_W,4)}, s{S_T0} offen lds", f"S{j}")
            k(f"s_add_u32 m0, s{S_W1}, {(j % NSL)*STG + 8192 + p*4096}\ns_mov_b32 s{S_T0+1}, {p*4*131072 + (j>>2)*16384 + (j&3)*1024}")
            k.vmop(f"buffer_load_dwordx4 v{V_L16}, {sr(S_B,4)}, s{S_T0+1} offen lds", f"S{j}")
    step(0); step(1)
    k.wait(vm="S0", barrier=True)
    step(2); step(3)
    k.wait(vm="S1", barrier=True)
    nxt = 4
    for j in range(1, NK-1, 2):
        for _ in range(2):
            if nxt < NK and nxt - NSL <= j - 3: step(nxt); nxt += 1
        k.wait(vm=f"S{j+2}", barrier=True)
    assert nxt == NK
    if OPT.pf2:
        k(f"s_cmp_lt_u32 s{S_WAVE}, 2\ns_cselect_b64 s[{S_F}:{S_F+1}], s[48:49], s[50:51]")
        k(f"s_lshr_b32 s7, s2, 3\ns_lshl_b32 s7, s7, 1\ns_and_b32 s23, s{S_WAVE}, 1\ns_add_u32 s7, s7, s23\ns_mul_i32 s7, s7, {172*128}")
        k(f"s_add_u32 s{S_F}, s{S_F}, s7\ns_addc_u32 s{S_F+1}, s{S_F+1}, 0\ns_mov_b32 s{S_F+2}, {172*128}\ns_mov_b32 s{S_F+3}, 0x20000")
        k(f"v_lshlrev_b32 v{V_PF}, 7, v2")
        for i in range(3):
            k(f"s_mov_b32 s{S_T0+4}, {i*8192}\nbuffer_load_dword v{V_PF+1}, v{V_PF}, {sr(S_F,4)}, s{S_T0+4} offen")
    k("s_endpgm")
    k("k2_compute:")
    k.vm = []
    k("v_lshrrev_b32 v5, 2, v4\nv_and_b32 v6, 3, v2")
    k("v_lshl_add_u32 v7, v3, 2, v5\nv_and_b32 v11, 7, v7\nv_lshlrev_b32 v7, 8, v7\nv_lshl_add_u32 v7, v6, 3, v7")
    k("v_lshlrev_b32 v13, 1, v1\nv_and_b32 v13, 4, v13\nv_xor_b32 v11, v11, v13")
    for t in range(4):
        k(f"v_xor_b32 v12, {t}, v11\nv_lshl_add_u32 v{V_WA+t}, v12, 5, v7\nv_add_u32 v{V_WA+4+t}, 0x10000, v{V_WA+t}")
    k(f"v_and_b32 v13, 1, v1\nv_lshl_add_u32 v{V_BA}, v13, 12, v{V_L16}\nv_add_u32 v{V_BA+1}, 0x10000, v{V_BA}")
    k(f"s_lshl_b32 s7, s4, 21\ns_lshl_b32 s23, s6, 17\ns_add_u32 s7, s7, s23\ns_lshl_b32 s23, s5, 12\ns_add_u32 s7, s7, s23")
    k(f"s_and_b32 s23, s{S_WAVE}, 1\ns_lshl_b32 s23, s23, 16\ns_add_u32 s7, s7, s23\ns_lshr_b32 s23, s{S_WAVE}, 1\ns_lshl_b32 s23, s23, 11\ns_add_u32 s7, s7, s23\ns_add_u32 s7, s7, 0x{WS_PART:x}")
    k("s_waitcnt lgkmcnt(0)")
    k(f"s_add_u32 s{S_P}, s54, s7\ns_addc_u32 s{S_P+1}, s55, 0\ns_mov_b32 s{S_P+2}, {3*16384+2048}\ns_mov_b32 s{S_P+3}, 0x20000")
    def reads(j):
        base = (j % NSL)*STG; bank = base >> 16; off = base & 0xffff
        w = [[L(f"ds_read_b64_tr_b16 {vr(WF(j&1,t)+2*h,2)}, v{V_WA+4*bank+t} offset:{off + h*4096}", f"R{j}_{t}") for h in range(2)] for t in range(4)]
        b = [L(f"ds_read_b128 {vr(BF(j&1,tb),4)}, v{V_BA+bank} offset:{off + 8192 + tb*1024}", f"R{j}_0") for tb in range(4)]
        return b + w[0] + w[1] + w[2] + w[3]
    k("s_barrier")
    k.run(reads(0))
    k.stamp(1)
    for j in range(NK):
        mf = []
        for t in range(4):
            for tb in range(4):
                d = vr(ACC(t, tb), 4)
                mf.append(f"{MF} {d}, {vr(WF(j&1,t),4)}, {vr(BF(j&1,tb),4)}, {d if j else '0'}")
        lds = reads(j+1) if j < NK-1 else []
        gaps = fill(16, lds, [], [], g0=1)
        add(gaps, -1, W(lg=f"R{j}_1"))
        if j < NK-1 and (j < 2 or j % 2 == 1): front(gaps, 0, "s_barrier")
        front(gaps, 6, W(lg=f"R{j}_3"))
        emit(k, mf, gaps)
    k.stamp(2)
    k("s_nop 4")
    n = 0
    for tb in range(4): k(f"s_mov_b32 s{S_T0+tb}, {tb*16384}")
    for ns in range(2):
        for tb in range(4):
            o = 32 + (n & 7)*4; n += 1
            for h in range(2):
                a = ACC(2*ns+h, tb)
                k(f"v_cvt_pk_bf16_f32 v{o+2*h}, v{a}, v{a+1}\nv_cvt_pk_bf16_f32 v{o+2*h+1}, v{a+2}, v{a+3}")
            k(f"buffer_store_dwordx4 {vr(o,4)}, v{V_L16}, {sr(S_P,4)}, s{S_T0+tb} offen offset:{ns*1024} {OPT.st2}")
    if prof:
        k.stamp(3); k("s_waitcnt vmcnt(0)"); k.stamp(4); k.dump_stamps(5, 54, 100)
    k(f"{end}:\ns_endpgm")
    return k
```

```python
from common import *
NSP = 4

def gen_k3(prof=False):
    k = Kern("k3_ln2_kernel", 256, 256, 1024, 128, 128, 96 if prof else 64)
    k.prof = prof
    end = "k3_end"
    k(f"s_cmp_ge_u32 s2, 256\ns_cbranch_scc1 {end}")
    k.stamp(0)
    k(f"s_load_dwordx2 s[4:5], s[0:1], {KA_X}")
    k(f"s_load_dwordx2 s[54:55], s[0:1], {KA_WS}")
    k("s_and_b32 s3, s2, 7\ns_lshl_b32 s3, s3, 5\ns_lshr_b32 s6, s2, 3\ns_add_u32 s3, s3, s6")
    k("v_and_b32 v1, 7, v0")
    k("v_bfe_u32 v2, v0, 3, 2")
    k("v_lshrrev_b32 v3, 5, v0")
    k("v_lshlrev_b32 v4, 10, v3\nv_lshl_add_u32 v4, v2, 8, v4\nv_lshl_add_u32 v4, v1, 4, v4")
    k("v_lshlrev_b32 v5, 10, v1\nv_lshl_add_u32 v5, v3, 6, v5\nv_lshl_add_u32 v5, v2, 3, v5")
    k("v_lshlrev_b32 v6, 7, v3\nv_lshl_add_u32 v6, v2, 4, v6")
    k("s_lshr_b32 s6, s3, 1\ns_lshl_b32 s6, s6, 14\ns_and_b32 s7, s3, 1\ns_lshl_b32 s7, s7, 7\ns_add_u32 s6, s6, s7")
    k("s_lshl_b32 s7, s3, 13")
    for i in range(2*NSP): k(f"s_add_u32 s{32+i}, s6, {(i>>1)*0x200000 + (i&1)*8192}")
    k("s_waitcnt lgkmcnt(0)")
    k.srd(8, 54, NSP*2048*1024, WS_PART)
    PR = 16
    XR = 48
    PA = 56
    AC = 104
    T = 120
    for i in range(2*NSP):
        k(f"buffer_load_dwordx4 {vr(PR+i*4,4)}, v4, s[8:11], s{32+i} offen")
    k.srd(12, 4, 2048*1024)
    k.srd(16, 54, 6*2048, WS_MOD)
    for pc in range(2):
        for h in range(2):
            k(f"buffer_load_dwordx2 {vr(XR+pc*4+h*2,2)}, v5, s[12:15], s7 offen offset:{pc*512+h*32}")
    for wi, sec in enumerate((2, 3, 4)):
        k(f"s_mov_b32 s29, {sec*2048}")
        for pc in range(2):
            for h in range(2):
                k(f"buffer_load_dwordx4 {vr(PA+wi*16+pc*8+h*4,4)}, v6, s[16:19], s29 offen offset:{pc*1024+h*64}")
    k.srd(20, 54, 2048*1024, WS_H2)
    k.srd(24, 54, 2048*1024, WS_X1)
    npf = 0
    if OPT.pf3:
        k.srd(28, 54, 128*43*1024, WS_HF)
        k(f"v_min_u32 v10, 175, v0\nv_lshlrev_b32 v10, 7, v10\ns_mul_i32 s30, s3, {176*128}\nv_add_u32 v10, s30, v10\ns_mov_b32 s30, {128*43*1024}")
        k("buffer_load_dword v11, v10, s[28:31], 0 offen")
        npf = 1
    k("v_lshlrev_b32 v7, 4, v1")
    k("v_lshrrev_b32 v8, 6, v0\nv_lshl_add_u32 v8, v8, 2, v7")
    for sp in range(NSP):
        k(f"s_waitcnt vmcnt({npf + 16 + 2*(NSP-1-sp)})")
        for d in range(8):
            w = PR + sp*8 + d
            if sp == 0:
                k(f"v_lshlrev_b32 v{AC+2*d}, 16, v{w}\nv_and_b32 v{AC+2*d+1}, 0xffff0000, v{w}")
            else:
                k(f"v_lshlrev_b32 v{T}, 16, v{w}\nv_and_b32 v{T+1}, 0xffff0000, v{w}")
                k(f"v_add_f32 v{AC+2*d}, v{AC+2*d}, v{T}\nv_add_f32 v{AC+2*d+1}, v{AC+2*d+1}, v{T+1}")
    k(f"s_waitcnt vmcnt({npf + 8})")
    for d in range(8):
        w = XR + d
        k(f"v_lshlrev_b32 v{T}, 16, v{w}\nv_and_b32 v{T+1}, 0xffff0000, v{w}")
        k(f"v_fma_f32 v{AC+2*d}, v{AC+2*d}, v{PA+2*d}, v{T}\nv_fma_f32 v{AC+2*d+1}, v{AC+2*d+1}, v{PA+2*d+1}, v{T+1}")
    for d in range(8):
        k(f"v_cvt_pk_bf16_f32 v{XR+d}, v{AC+2*d}, v{AC+2*d+1}")
    for d in range(8):
        k(f"v_lshlrev_b32 v{AC+2*d}, 16, v{XR+d}\nv_and_b32 v{AC+2*d+1}, 0xffff0000, v{XR+d}")
    def tree(src, tmp):
        n = len(src)//2
        for i in range(n): k(f"v_add_f32 v{tmp+i}, v{src[2*i]}, v{src[2*i+1]}")
        while n > 1:
            n //= 2
            for i in range(n): k(f"v_add_f32 v{tmp+i}, v{tmp+i}, v{tmp+i+n}")
    def rowsum(r, off, mid=None):
        k(f"s_nop 1\nv_add_f32 v{r}, v{r}, v{r} row_ror:8")
        for sw in ("v_permlane16_swap_b32", "v_permlane32_swap_b32"):
            k(f"v_mov_b32 v{r+1}, v{r}\ns_nop 1\n{sw} v{r+1}, v{r}\ns_nop 1\nv_add_f32 v{r}, v{r}, v{r+1}")
        k(f"ds_write_b32 v8, v{r} offset:{off}")
        if mid: mid()
        k("s_waitcnt lgkmcnt(0)\ns_barrier")
        k(f"ds_read_b128 {vr(r,4)}, v7 offset:{off}\ns_waitcnt lgkmcnt(0)")
        k(f"v_add_f32 v{r}, v{r}, v{r+1}\nv_add_f32 v{r+2}, v{r+2}, v{r+3}\nv_add_f32 v{r}, v{r}, v{r+2}")
    def x1st():
        for pc in range(2):
            k(f"buffer_store_dwordx4 {vr(XR+pc*4,4)}, v4, s[24:27], s{32+pc} offen {OPT.st3}")
    tree(list(range(AC, AC+16)), T)
    rowsum(T, 0, x1st)
    k(f"v_mul_f32 v9, {hexf(1/512)}, v{T}")
    for e in range(16): k(f"v_sub_f32 v{AC+e}, v{AC+e}, v9")
    for i in range(4): k(f"v_mul_f32 v{T+i}, v{AC+i}, v{AC+i}")
    for e in range(4, 16): k(f"v_fmac_f32 v{T+e%4}, v{AC+e}, v{AC+e}")
    k(f"v_add_f32 v{T}, v{T}, v{T+1}\nv_add_f32 v{T+2}, v{T+2}, v{T+3}\nv_add_f32 v{T}, v{T}, v{T+2}")
    def mid2():
        k(f"s_waitcnt vmcnt({npf + 2})")
        for e in range(16): k(f"v_mul_f32 v{AC+e}, v{AC+e}, v{PA+32+e}")
    rowsum(T, 128, mid2)
    k(f"v_mov_b32 v9, {hexf(1e-5)}\nv_fmac_f32 v9, {hexf(1/512)}, v{T}\nv_rsq_f32 v9, v9\ns_nop 0")
    for e in range(16): k(f"v_fma_f32 v{AC+e}, v{AC+e}, v9, v{PA+16+e}")
    for d in range(8): k(f"v_cvt_pk_bf16_f32 v{PR+d}, v{AC+2*d}, v{AC+2*d+1}")
    k(f"buffer_store_dwordx4 {vr(PR,4)}, v4, s[20:23], s32 offen {OPT.st3}")
    k(f"buffer_store_dwordx4 {vr(PR+4,4)}, v4, s[20:23], s33 offen {OPT.st3}")
    if prof:
        k.stamp(1); k("s_waitcnt vmcnt(0)"); k.stamp(2); k.dump_stamps(3, 54, 100)
    k(f"{end}:\ns_endpgm")
    return k
```

```python
from common import *
from sched import *
MF = "v_mfma_f32_16x16x32_bf16"

STG = 20480
NSL = 8
NK = 16
def ACC(m, t, tb): return 64 + ((t*2+m)*4+tb)*4
def WF(buf, m, t): return 160 + ((buf*3+t)*2+m)*4
def BF(buf, tb): return 208 + (buf*4+tb)*4
V_DW = 8
V_L16 = 11
V_WA = 16
V_BA = 26
S_G, S_B, S_H = 8, 16, 20
S_WAVE, S_M0, S_M1, S_T0 = 24, 25, 27, 28

def gen_k4(prof=False):
    k = Kern("k4_glu_kernel", 256, 512, NSL*STG, 240, 240, 96 if prof else 64)
    k.prof = prof
    end = "k4_end"
    k(f"s_cmp_ge_u32 s2, 256\ns_cbranch_scc1 {end}")
    k("s_bfe_u32 s4, s2, 0x10002\ns_lshl_b32 s4, s4, 3\ns_bfe_u32 s5, s2, 0x30003\ns_add_u32 s4, s4, s5")
    k("s_and_b32 s5, s2, 3\ns_lshl_b32 s5, s5, 2\ns_lshr_b32 s6, s2, 6\ns_add_u32 s5, s5, s6")
    k(f"s_cmp_eq_u32 s5, 15\ns_cbranch_scc1 {end}")
    k.stamp(0)
    k(f"s_load_dwordx4 s[48:51], s[0:1], {KA_WG}")
    k(f"s_load_dwordx2 s[54:55], s[0:1], {KA_WS}")
    k("v_lshrrev_b32 v1, 6, v0\nv_and_b32 v2, 63, v0")
    k(f"v_readfirstlane_b32 s{S_WAVE}, v1")
    k(f"v_lshlrev_b32 v{V_L16}, 4, v2")
    k(f"s_cmp_lt_u32 s{S_WAVE}, 4\ns_cbranch_scc1 k4_compute")
    k(f"s_and_b32 s{S_WAVE}, s{S_WAVE}, 3")
    k("v_and_b32 v7, 1, v1\nv_lshlrev_b32 v7, 4, v7")
    for p in range(3):
        k(f"v_add_u32 v12, {64*p}, v2")
        k("v_mul_u32_u24 v13, 0x5556, v12\nv_lshrrev_b32 v13, 18, v13")
        k("v_mul_u32_u24 v14, 12, v13\nv_sub_u32 v14, v12, v14")
        k("v_lshrrev_b32 v15, 1, v13\nv_and_b32 v15, 2, v15\nv_xor_b32 v14, v14, v15")
        k("v_add_u32 v13, v13, v7\nv_mul_u32_u24 v13, 2752, v13")
        k(f"v_lshl_add_u32 v{V_DW+p}, v14, 4, v13")
        if p: k(f"v_subrev_u32 v{V_DW+p}, {1024*p}, v{V_DW+p}")
    k(f"s_mul_i32 s{S_M0}, s{S_WAVE}, 3072\ns_lshl_b32 s{S_M1}, s{S_WAVE}, 10\ns_add_u32 s{S_M1}, s{S_M1}, 12288")
    k(f"s_mul_i32 s26, s5, 192\ns_lshl_b32 s32, s4, 3\ns_add_u32 s32, s32, s{S_WAVE}\ns_lshl_b32 s32, s32, 14\ns_add_u32 s32, s32, 0x{WS_H2:x}")
    k("s_waitcnt lgkmcnt(0)")
    k(f"s_cmp_lt_u32 s{S_WAVE}, 2\ns_cselect_b32 s6, s48, s50\ns_cselect_b32 s7, s49, s51")
    k(f"s_add_u32 s{S_G}, s6, s26\ns_addc_u32 s{S_G+1}, s7, 0\ns_sub_u32 s{S_G+2}, {512*2752}, s26\ns_mov_b32 s{S_G+3}, 0x20000")
    k(f"s_add_u32 s{S_B}, s54, s32\ns_addc_u32 s{S_B+1}, s55, 0\ns_mov_b32 s{S_B+2}, {5*16384}\ns_mov_b32 s{S_B+3}, 0x20000")
    def step(j):
        sl = (j % NSL)*STG
        k(f"s_add_u32 m0, s{S_M0}, {sl}\ns_mov_b32 s{S_T0}, {j*32*2752}")
        for p in range(3):
            k.vmop(f"buffer_load_dwordx4 v{V_DW+p}, {sr(S_G,4)}, s{S_T0} offen offset:{p*1024} lds", f"S{j}")
        for p in range(2):
            k(f"s_add_u32 m0, s{S_M1}, {sl + p*4096}\ns_mov_b32 s{S_T0+1}, {p*65536 + j*1024}")
            k.vmop(f"buffer_load_dwordx4 v{V_L16}, {sr(S_B,4)}, s{S_T0+1} offen lds", f"S{j}")
    step(0); step(1)
    k.wait(vm="S0", barrier=True)
    nxt = 2
    for j in range(NK-1):
        for _ in range(2 if j < OPT.ramp4 else 1):
            if nxt < NK and nxt - NSL <= j - 2: step(nxt); nxt += 1
        k.wait(vm=f"S{j+1}", barrier=True)
    assert nxt == NK
    k("s_endpgm")
    k("k4_compute:")
    k.vm = []
    k("v_lshrrev_b32 v3, 4, v2\nv_and_b32 v4, 15, v2\nv_lshrrev_b32 v5, 2, v4\nv_and_b32 v6, 3, v2")
    k("v_lshl_add_u32 v7, v3, 2, v5\nv_mul_u32_u24 v7, 192, v7\nv_lshl_add_u32 v7, v6, 3, v7\nv_and_b32 v12, 1, v3")
    k("v_lshrrev_b32 v13, 1, v1\nv_mul_u32_u24 v13, 3, v13")
    for t in range(3):
        k(f"v_add_u32 v14, {t}, v13\nv_xor_b32 v14, v14, v12\nv_lshl_add_u32 v{V_WA+t}, v14, 5, v7")
        k(f"v_add_u32 v{V_WA+3+t}, {3*STG}, v{V_WA+t}\nv_add_u32 v{V_WA+6+t}, {6*STG}, v{V_WA+t}")
    k(f"v_and_b32 v13, 1, v1\nv_lshl_add_u32 v{V_BA}, v13, 12, v{V_L16}\nv_add_u32 v{V_BA+1}, {3*STG}, v{V_BA}\nv_add_u32 v{V_BA+2}, {6*STG}, v{V_BA}")
    k(f"s_lshl_b32 s26, s4, 1\ns_and_b32 s6, s{S_WAVE}, 1\ns_add_u32 s26, s26, s6\ns_mul_i32 s6, s26, {4*43*1024}\ns_mul_i32 s7, s5, 3072\ns_add_u32 s6, s6, s7\ns_add_u32 s6, s6, 0x{WS_HF:x}")
    k("s_waitcnt lgkmcnt(0)")
    k(f"s_add_u32 s{S_H}, s54, s6\ns_addc_u32 s{S_H+1}, s55, 0\ns_mov_b32 s{S_H+2}, {3*43*1024+3072}\ns_mov_b32 s{S_H+3}, 0x20000")
    def reads(j):
        sl = j % NSL; bank = sl // 3; off = (sl % 3)*STG
        b = [L(f"ds_read_b128 {vr(BF(j&1,tb),4)}, v{V_BA+bank} offset:{off + 12288 + tb*1024}", f"R{j}_0") for tb in range(4)]
        w = [L(f"ds_read_b64_tr_b16 {vr(WF(j&1,m,t)+2*h,2)}, v{V_WA+3*bank+t} offset:{off + m*6144 + h*3072}", f"R{j}_{t}")
             for t in range(3) for m in range(2) for h in range(2)]
        return b + w
    k("s_barrier")
    k.run(reads(0))
    k.stamp(1)
    for j in range(NK):
        mf = []
        for t in range(3):
            for m in range(2):
                for tb in range(4):
                    d = vr(ACC(m, t, tb), 4)
                    mf.append(f"{MF} {d}, {vr(WF(j&1,m,t),4)}, {vr(BF(j&1,tb),4)}, {d if j else '0'}")
        lds = reads(j+1) if j < NK-1 else []
        gaps = fill(24, lds, [], [], g0=1)
        if j == 0:
            add(gaps, -1, W(lg=f"R{j}_0")); front(gaps, 6, W(lg=f"R{j}_2"))
        else:
            add(gaps, -1, W(lg=f"R{j}_2"))
        if j < NK-1: front(gaps, 0, "s_barrier")
        emit(k, mf, gaps)
    k.stamp(2)
    k(f"s_nop 4\ns_lshr_b32 s6, s{S_WAVE}, 1\ns_cmp_eq_u32 s6, 0\ns_cbranch_scc0 k4_fh1")
    def prod(t, tb, o):
        a = ACC(0, t, tb); b = ACC(1, t, tb)
        for i in range(0, 4, 2): k(f"v_pk_mul_f32 {vr(a+i,2)}, {vr(a+i,2)}, {vr(b+i,2)}")
        k(f"v_cvt_pk_bf16_f32 v{o}, v{a}, v{a+1}\nv_cvt_pk_bf16_f32 v{o+1}, v{a+2}, v{a+3}")
    for fh in range(2):
        if fh: k("k4_fh1:")
        odd = 2 if fh == 0 else 0; t0 = 0 if fh == 0 else 1; unit = 0 if fh == 0 else 2
        keep = (0, 1) if fh == 0 else (2, 3); send = (2, 3) if fh == 0 else (0, 1)
        k(f"v_and_b32 v13, 1, v1\nv_lshl_add_u32 v12, v13, 11, v{V_L16}")
        for i, tb in enumerate(send): prod(odd, tb, 48 + 2*i)
        k(f"ds_write_b128 v12, v[48:51] offset:{fh*1024}")
        for i, tb in enumerate(keep): prod(odd, tb, 52 + 4*i + 2*fh)
        for tb in range(4): k(f"s_mov_b32 s{S_T0+tb}, {tb*43*1024}")
        skip = f"k4_skip{fh}"
        if fh: k(f"s_cmp_eq_u32 s5, 14\ns_cbranch_scc1 {skip}")
        for tb in range(4):
            o = 32 + tb*4
            prod(t0, tb, o); prod(t0+1, tb, o+2)
            k(f"buffer_store_dwordx4 {vr(o,4)}, v{V_L16}, {sr(S_H,4)}, s{S_T0+tb} offen offset:{unit*1024} {OPT.st4}")
        if fh: k(f"{skip}:")
        k("s_waitcnt lgkmcnt(0)\ns_barrier")
        k(f"s_cmp_eq_u32 s5, 14\ns_cbranch_scc1 k4_done")
        for i in range(2): k(f"ds_read_b64 {vr(52 + 4*i + 2*(1-fh),2)}, v12 offset:{(1-fh)*1024 + 8*i}")
        k("s_waitcnt lgkmcnt(0)")
        for i, tb in enumerate(keep):
            k(f"buffer_store_dwordx4 {vr(52+4*i,4)}, v{V_L16}, {sr(S_H,4)}, s{S_T0+tb} offen offset:1024 {OPT.st4}")
        if not fh: k("s_branch k4_done")
    k("k4_done:")
    if prof:
        k.stamp(3); k("s_waitcnt vmcnt(0)"); k.stamp(4); k.dump_stamps(5, 54, 100)
    k(f"{end}:\ns_endpgm")
    return k
```

```python
from common import *
from sched import *
MF = "v_mfma_f32_16x16x32_bf16"

STP = 8192
NK = 43
NSTG = 22
NSL = 8
def ACC(t, tb): return 64 + (t*2+tb)*4
def WF(buf, i, t): return 80 + ((buf*2+i)*2+t)*4
def BF(buf, i, tb): return 112 + ((buf*2+i)*2+tb)*4
V_DW, V_L16, V_WA, V_BA = 8, 9, 12, 14
S_W, S_B, S_O, S_X, S_M = 8, 12, 16, 20, 24
S_WAVE, S_M0, S_T0 = 28, 29, 32

def gen_k5(prof=False):
    k = Kern("k5_down_kernel", 256, 512, NSL*2*STP, 144, 144, 96 if prof else 64)
    k.prof = prof
    end = "k5_end"
    k(f"s_cmp_ge_u32 s2, 256\ns_cbranch_scc1 {end}")
    k.stamp(0)
    k(f"s_load_dwordx2 s[48:49], s[0:1], {KA_WD}")
    k(f"s_load_dwordx2 s[50:51], s[0:1], {KA_OUT}")
    k(f"s_load_dwordx2 s[54:55], s[0:1], {KA_WS}")
    k("v_lshrrev_b32 v1, 6, v0\nv_and_b32 v2, 63, v0")
    k(f"v_readfirstlane_b32 s{S_WAVE}, v1")
    if OPT.map5 == 0:
        k("s_and_b32 s4, s2, 7\ns_lshl_b32 s4, s4, 2\ns_bfe_u32 s5, s2, 0x20003\ns_add_u32 s4, s4, s5\ns_lshr_b32 s5, s2, 5")
    else:
        k("s_bfe_u32 s4, s2, 0x20001\ns_lshl_b32 s4, s4, 3\ns_bfe_u32 s5, s2, 0x30003\ns_add_u32 s4, s4, s5")
        k("s_and_b32 s5, s2, 1\ns_lshl_b32 s5, s5, 2\ns_lshr_b32 s6, s2, 6\ns_add_u32 s5, s5, s6")
    k(f"v_lshlrev_b32 v{V_L16}, 4, v2")
    k(f"s_cmp_lt_u32 s{S_WAVE}, 4\ns_cbranch_scc1 k5_compute")
    if OPT.lprio: k(f"s_setprio {OPT.lprio}")
    k(f"s_and_b32 s{S_WAVE}, s{S_WAVE}, 3\ns_lshl_b32 s{S_M0}, s{S_WAVE}, 10")
    k("v_lshrrev_b32 v7, 3, v2\nv_and_b32 v10, 7, v2\nv_lshlrev_b32 v11, 1, v7\nv_and_b32 v11, 4, v11\nv_xor_b32 v10, v10, v11")
    k(f"v_lshlrev_b32 v7, 10, v7\nv_lshl_add_u32 v{V_DW}, v10, 4, v7")
    k(f"s_lshl_b32 s6, s5, 7\ns_lshl_b32 s7, s{S_WAVE}, 13\ns_add_u32 s6, s6, s7")
    k(f"s_lshl_b32 s7, s4, 2\ns_add_u32 s7, s7, s{S_WAVE}\ns_mul_i32 s7, s7, {43*1024}\ns_add_u32 s7, s7, 0x{WS_HF:x}")
    k("s_waitcnt lgkmcnt(0)")
    k(f"s_add_u32 s{S_W}, s48, s6\ns_addc_u32 s{S_W+1}, s49, 0\ns_sub_u32 s{S_W+2}, {1376*1024}, s6\ns_mov_b32 s{S_W+3}, 0x20000")
    k(f"s_add_u32 s{S_B}, s54, s7\ns_addc_u32 s{S_B+1}, s55, 0\ns_mov_b32 s{S_B+2}, {43*1024}\ns_mov_b32 s{S_B+3}, 0x20000")
    def stage(g):
        for i in range(2):
            j = 2*g + i
            if j >= NK: break
            sl = (g % NSL)*2*STP + i*STP
            k(f"s_add_u32 m0, s{S_M0}, {sl}\ns_mov_b32 s{S_T0}, {j*32*1024}")
            k.vmop(f"buffer_load_dwordx4 v{V_DW}, {sr(S_W,4)}, s{S_T0} offen lds", f"S{g}")
            k(f"s_add_u32 m0, s{S_M0}, {sl + 4096}\ns_mov_b32 s{S_T0+1}, {j*1024}")
            k.vmop(f"buffer_load_dwordx4 v{V_L16}, {sr(S_B,4)}, s{S_T0+1} offen lds", f"S{g}")
    nxt = OPT.la5
    for g in range(nxt): stage(g)
    k.wait(vm="S0", barrier=True)
    for g in range(NSTG-1):
        if nxt < NSTG:
            assert nxt - NSL <= g - 2
            stage(nxt); nxt += 1
        k.wait(vm=f"S{g+1}", barrier=True)
    k("s_endpgm")
    k("k5_compute:")
    if OPT.prio: k(f"s_setprio {OPT.prio}")
    k.vm = []
    k("v_lshrrev_b32 v3, 4, v2\nv_and_b32 v4, 15, v2\nv_lshrrev_b32 v5, 2, v4\nv_and_b32 v6, 3, v2")
    k("v_lshl_add_u32 v7, v3, 2, v5\nv_lshlrev_b32 v7, 7, v7\nv_lshl_add_u32 v7, v6, 4, v7")
    k(f"v_lshrrev_b32 v10, 1, v5\nv_lshrrev_b32 v11, 1, v1\nv_xor_b32 v10, v10, v11\nv_lshl_add_u32 v{V_WA}, v10, 6, v7\nv_add_u32 v{V_WA+1}, 0x10000, v{V_WA}")
    k(f"v_and_b32 v10, 1, v1\nv_lshl_add_u32 v{V_BA}, v10, 11, v{V_L16}\nv_add_u32 v{V_BA+1}, 0x10000, v{V_BA}")
    k("v_lshlrev_b32 v16, 10, v4\nv_lshl_add_u32 v16, v3, 4, v16\nv_lshl_add_u32 v16, v10, 15, v16\nv_lshl_add_u32 v16, v11, 6, v16")
    k("v_lshlrev_b32 v17, 5, v3\nv_lshl_add_u32 v17, v11, 7, v17")
    k("v_and_b32 v18, 1, v3\nv_lshlrev_b32 v18, 9, v18\nv_lshl_add_u32 v18, v4, 4, v18\nv_lshrrev_b32 v19, 1, v3\nv_lshl_add_u32 v18, v19, 3, v18")
    k("v_lshl_add_u32 v18, v11, 10, v18\nv_lshl_add_u32 v18, v10, 15, v18")
    k("s_lshl_b32 s6, s4, 16\ns_lshl_b32 s7, s5, 7\ns_add_u32 s7, s6, s7")
    k(f"s_lshl_b32 s30, s5, 11\ns_add_u32 s6, s6, s30\ns_add_u32 s6, s6, 0x{WS_X1:x}\ns_lshl_b32 s30, s5, 8\ns_add_u32 s30, s30, 10240\ns_mov_b32 s31, 16384")
    k("s_waitcnt lgkmcnt(0)")
    k.srd(S_M, 54, 6*2048, WS_MOD)
    k(f"s_add_u32 s{S_O}, s50, s7\ns_addc_u32 s{S_O+1}, s51, 0\ns_sub_u32 s{S_O+2}, {2048*1024}, s7\ns_mov_b32 s{S_O+3}, 0x20000")
    k(f"s_add_u32 s{S_X}, s54, s6\ns_addc_u32 s{S_X+1}, s55, 0\ns_mov_b32 s{S_X+2}, 65536\ns_mov_b32 s{S_X+3}, 0x20000")
    def reads(g):
        base = (g % NSL)*2*STP; bank = base >> 16; off = base & 0xffff
        r = []
        for i in range(2):
            if 2*g + i >= NK: break
            r += [L(f"ds_read_b128 {vr(BF(g&1,i,tb),4)}, v{V_BA+bank} offset:{off + i*STP + 4096 + tb*1024}", f"R{g}_{i}") for tb in range(2)]
            r += [L(f"ds_read_b64_tr_b16 {vr(WF(g&1,i,t)+2*h,2)}, v{V_WA+bank} offset:{off + i*STP + h*2048 + 8*t}", f"R{g}_{i}") for t in range(2) for h in range(2)]
        return r
    k("s_barrier")
    k.run(reads(0))
    k.stamp(1)
    for g in range(NSTG):
        mf = []
        for i in range(2):
            if 2*g + i >= NK: break
            for t in range(2):
                for tb in range(2):
                    d = vr(ACC(t, tb), 4)
                    mf.append(f"{MF} {d}, {vr(WF(g&1,i,t),4)}, {vr(BF(g&1,i,tb),4)}, {d if (g or i) else '0'}")
        k.wait(lg='all')
        if g < NSTG-1:
            k("s_barrier")
            gaps = fill(8, reads(g+1), [], [], g0=0, pair_lds=True)
        else: gaps = {}
        if g == NSTG-6:
            ld = []
            for tb in range(2):
                for h in range(2):
                    ld.append(f"buffer_load_dwordx2 {vr(32+4*tb+2*h,2)}, v18, {sr(S_X,4)}, {'s31' if tb else '0'} offen offset:{256*h}")
            for h in range(2): ld.append(f"buffer_load_dwordx4 {vr(40+4*h,4)}, v17, {sr(S_M,4)}, s30 offen offset:{16*h}")
            add(gaps, 7, *ld)
        emit(k, mf, gaps)
    k.stamp(2)
    k("s_waitcnt vmcnt(0)")
    for d in range(8):
        k(f"v_lshlrev_b32 v{48+2*d}, 16, v{32+d}\nv_and_b32 v{49+2*d}, 0xffff0000, v{32+d}")
    for tb in range(2):
        for t in range(2):
            for i in range(4):
                k(f"v_fma_f32 v{48+8*tb+4*t+i}, v{ACC(t,tb)+i}, v{40+4*t+i}, v{48+8*tb+4*t+i}")
        for d in range(4): k(f"v_cvt_pk_bf16_f32 v{24+4*tb+d}, v{48+8*tb+2*d}, v{49+8*tb+2*d}")
        k(f"buffer_store_dwordx4 {vr(24+4*tb,4)}, v16, {sr(S_O,4)}, {'s31' if tb else '0'} offen {OPT.st5}")
    if prof:
        k.stamp(3); k("s_waitcnt vmcnt(0)"); k.stamp(4); k.dump_stamps(5, 54, 100)
    k(f"{end}:\ns_endpgm")
    return k
```

```python
def add(gaps, g, *items):
    gaps.setdefault(g, []).extend(items)

def fill(n, lds=(), valu=(), vm=(), g0=1, lds_end=None, valu_end=None, vm_pos=None, pair_lds=False):
    gaps = {}
    lds = list(lds); valu = list(valu); vm = list(vm)
    used = {g: 0 for g in range(n)}
    if vm:
        if vm_pos is None:
            span = n - g0
            vm_pos = [g0 + (2*i+1)*span//(2*len(vm)) for i in range(len(vm))]
        for g, grp in zip(vm_pos, vm):
            add(gaps, g, *grp); used[g] += 8
    g = g0
    while lds:
        assert g < n, "lds overflow"
        if used[g] == 0:
            add(gaps, g, lds.pop(0)); used[g] += 4
            if pair_lds and lds:
                add(gaps, g, lds.pop(0)); used[g] += 4
        g += 1
    ve = valu_end if valu_end is not None else n
    cnt = {g: 0 for g in range(n)}
    left = len(valu); cap = 8
    while left:
        cand = [g for g in range(g0, ve) if used[g] + 4 <= cap]
        if not cand:
            cap += 4; continue
        if len(cand) > left:
            cand = [cand[(2*i+1)*len(cand)//(2*left)] for i in range(left)]
        for g in cand:
            used[g] += 4; cnt[g] += 1; left -= 1
    for g in range(n):
        for _ in range(cnt[g]): add(gaps, g, valu.pop(0))
    return gaps

def L(text, tag): return lambda kk: kk.lgop(text, tag)
def V(text, tag): return lambda kk: kk.vmop(text, tag)
def W(**kw): return lambda kk: kk.wait(**kw)
def front(gaps, g, *items):
    gaps.setdefault(g, [])[0:0] = list(items)
def emit(k, mf, gaps):
    k.run(gaps.get(-1, []))
    for i, m in enumerate(mf):
        k(m); k.run(gaps.get(i, []))
    for g in gaps: assert g < len(mf), (g, len(mf))
```

```python
import sys
from common import *
from k0 import gen_k0
import k1, k2, k3
prof = "".join(a[4:] for a in sys.argv if a.startswith("prof"))
cfg = k1.Cfg()
for a in sys.argv[2:]:
    if "=" in a:
        n, v = a.split("=")
        if hasattr(OPT, n): setattr(OPT, n, v.replace("+", " ") if isinstance(getattr(OPT, n), str) else eval(v))
        else: setattr(cfg, n, eval(v))
ks = [gen_k0("0" in prof), k1.gen_k1(cfg, "1" in prof), k2.gen_k2("2" in prof), k3.gen_k3("3" in prof)]
try:
    import k4, k5
    ks += [k4.gen_k4("4" in prof), k5.gen_k5("5" in prof)]
except ImportError:
    pass
open(sys.argv[1], "w").write(assemble(ks))
```

```python
import sys
from common import *
from k0 import gen_k0
import k1, k2, k3, k4, k5
def empty():
    k = Kern("e0_empty_kernel", 256, 256, 0, 16, 16, 16); k("s_endpgm"); return k
base = lambda: [gen_k0(), k1.gen_k1(), k2.gen_k2(), k3.gen_k3(), k4.gen_k4(), k5.gen_k5()]
e = empty()
b = base()
open("../eA.s","w").write(assemble([e]+b))
open("../eB.s","w").write(assemble(b+[e]))
open("../eC.s","w").write(assemble(b))
open("../eD.s","w").write(assemble([e,e,e]+b))
open("../eE.s","w").write(assemble(b[:1]+b))
open("../eF.s","w").write(assemble(b[:2]+b[1:]))
```

```python
from common import *

C1 = math.log2(math.e) / math.sqrt(128.0)

def round_bf16(k, v, tmp):
    k(f"v_cvt_pk_bf16_f32 v{tmp}, v{v}, v{v}")
    k(f"v_and_b32 v{v}, 0xffff0000, v{tmp}")

def gen_k0(prof=False):
    k = Kern("k0_prep_kernel", 256, 512, 2048, 64, 64, 96 if prof else 48)
    k.prof = prof
    end = "k0_end"
    k(f"s_cmp_ge_u32 s2, 256\ns_cbranch_scc1 {end}")
    k.stamp(0)
    k(f"s_load_dwordx2 s[4:5], s[0:1], {KA_X}")
    k(f"s_load_dwordx4 s[8:11], s[0:1], {KA_C}")
    k(f"s_load_dwordx2 s[6:7], s[0:1], {KA_WS}")
    k(f"s_load_dwordx2 s[28:29], s[0:1], {KA_WQ}")
    k("v_lshrrev_b32 v1, 6, v0\nv_and_b32 v2, 63, v0")
    k("v_readfirstlane_b32 s24, v1")
    k("s_cmp_ge_u32 s24, 4\ns_cbranch_scc1 k0_mod")
    k("v_lshrrev_b32 v3, 5, v0\nv_and_b32 v4, 31, v0")
    k("v_lshlrev_b32 v5, 10, v3\nv_lshl_add_u32 v5, v4, 4, v5\ns_lshl_b32 s3, s2, 13")
    k("v_lshlrev_b32 v6, 8, v4\nv_lshl_add_u32 v6, v3, 4, v6")
    k("s_lshr_b32 s25, s2, 1\ns_lshl_b32 s25, s25, 14\ns_and_b32 s26, s2, 1\ns_lshl_b32 s26, s26, 7\ns_add_u32 s25, s25, s26\ns_add_u32 s26, s25, 8192")
    k("s_waitcnt lgkmcnt(0)")
    k.srd(12, 4, 2048*512*2)
    for j in range(2):
        k(f"buffer_load_dwordx4 v[{8+4*j}:{11+4*j}], v5, s[12:15], s3 offen offset:{512*j} {OPT.xnt}")
    k.srd(16, 6, 2048*512*2, WS_XH)
    E = 16; T = 32
    def rowsum(r):
        for sh in (8, 4, 2, 1):
            k(f"s_nop 1\nv_add_f32 v{r}, v{r}, v{r} row_ror:{sh}")
        k(f"v_mov_b32 v{r+1}, v{r}\ns_nop 1\nv_permlane16_swap_b32 v{r+1}, v{r}\ns_nop 1\nv_add_f32 v{r}, v{r}, v{r+1}")
    for j in range(2):
        k(f"s_waitcnt vmcnt({1-j})")
        for d in range(4):
            k(f"v_lshlrev_b32 v{E+8*j+2*d}, 16, v{8+4*j+d}\nv_and_b32 v{E+8*j+2*d+1}, 0xffff0000, v{8+4*j+d}")
    for i in range(4): k(f"v_pk_add_f32 {vr(T+2*i,2)}, {vr(E+2*i,2)}, {vr(E+8+2*i,2)}")
    for i in range(2): k(f"v_pk_add_f32 {vr(T+2*i,2)}, {vr(T+2*i,2)}, {vr(T+4+2*i,2)}")
    k(f"v_pk_add_f32 {vr(T,2)}, {vr(T,2)}, {vr(T+2,2)}\nv_add_f32 v{T}, v{T}, v{T+1}")
    rowsum(T)
    k(f"v_mul_f32 v{T+2}, {hexf(-1/512)}, v{T}")
    for i in range(8): k(f"v_pk_add_f32 {vr(E+2*i,2)}, {vr(E+2*i,2)}, {vr(T+2,2)} op_sel_hi:[1,0]")
    for i in range(2): k(f"v_pk_mul_f32 {vr(T+2*i,2)}, {vr(E+2*i,2)}, {vr(E+2*i,2)}")
    for i in range(2, 8): k(f"v_pk_fma_f32 {vr(T+2*(i&1),2)}, {vr(E+2*i,2)}, {vr(E+2*i,2)}, {vr(T+2*(i&1),2)}")
    k(f"v_pk_add_f32 {vr(T,2)}, {vr(T,2)}, {vr(T+2,2)}\nv_add_f32 v{T}, v{T}, v{T+1}")
    rowsum(T)
    k(f"v_mov_b32 v{T+2}, {hexf(1e-5)}\nv_fmac_f32 v{T+2}, {hexf(1/512)}, v{T}\nv_rsq_f32 v{T+2}, v{T+2}\ns_nop 0")
    for i in range(8): k(f"v_pk_mul_f32 {vr(E+2*i,2)}, {vr(E+2*i,2)}, {vr(T+2,2)} op_sel_hi:[1,0]")
    for d in range(8): k(f"v_cvt_pk_f16_f32 v{8+d}, v{E+2*d}, v{E+2*d+1}")
    k(f"buffer_store_dwordx4 v[8:11], v6, s[16:19], s25 offen {OPT.st0}")
    k(f"buffer_store_dwordx4 v[12:15], v6, s[16:19], s26 offen {OPT.st0}")
    k("s_branch k0_fin" if prof else "s_endpgm")
    k("k0_mod:")
    k("s_cmp_ge_u32 s2, 192\ns_cbranch_scc1 k0_pf")
    k("s_mul_i32 s25, s2, 0x556\ns_lshr_b32 s25, s25, 16\ns_mul_i32 s26, s25, 48\ns_sub_u32 s26, s2, s26")
    k("v_and_b32 v3, 255, v0\nv_lshrrev_b32 v4, 3, v3\nv_and_b32 v5, 7, v3")
    k("v_mul_u32_u24 v6, 6144, v4\nv_lshl_add_u32 v6, v5, 4, v6\nv_lshlrev_b32 v7, 1, v4")
    k(f"s_mul_i32 s3, s25, {128*6144}\ns_lshl_b32 s27, s26, 7\ns_add_u32 s3, s3, s27\ns_lshl_b32 s27, s25, 8")
    k("s_waitcnt lgkmcnt(0)")
    k.srd(16, 10, 512*3072*2)
    k.srd(12, 8, 1024)
    for i in range(4):
        k(f"buffer_load_ushort v{8+i}, v7, s[12:15], s27 offen offset:{64*i}")
    for i in range(4):
        k(f"buffer_load_dwordx4 v[{16+4*i}:{19+4*i}], v6, s[16:19], s3 offen nt")
        if i < 3: k(f"s_add_u32 s3, s3, {32*6144}")
    k.srd(20, 6, 4*3072*4, WS_MODP)
    npf = 0
    if OPT.wqpf >= 2:
        npf = 1
        k.srd(32, 28, 512*8192)
        k("s_cmp_eq_u32 s24, 5\ns_cselect_b32 s34, s34, 0")
        k("v_lshrrev_b32 v56, 4, v2\nv_lshlrev_b32 v56, 13, v56\nv_bfe_u32 v57, v2, 1, 3\nv_lshl_add_u32 v56, v57, 10, v56\nv_and_b32 v57, 1, v2\nv_lshl_add_u32 v56, v57, 7, v56")
        k("s_lshr_b32 s37, s2, 3\ns_add_u32 s37, s37, 22\ns_lshl_b32 s37, s37, 15\ns_and_b32 s38, s2, 3\ns_lshl_b32 s38, s38, 8\ns_add_u32 s37, s37, s38")
        k("buffer_load_dword v57, v56, s[32:35], s37 offen nt")
    k(f"s_waitcnt vmcnt({4+npf})")
    for i in range(4): k(f"v_lshlrev_b32 v{8+i}, 16, v{8+i}")
    for i in range(4): k(f"v_mul_f32 v{12+i}, {hexf(-math.log2(math.e))}, v{8+i}")
    for i in range(4): k(f"v_exp_f32 v{12+i}, v{12+i}")
    k("s_nop 0")
    for i in range(4): k(f"v_add_f32 v{12+i}, 1.0, v{12+i}")
    for i in range(4): k(f"v_rcp_f32 v{12+i}, v{12+i}")
    k("s_nop 0")
    for i in range(4): k(f"v_mul_f32 v{8+i}, v{8+i}, v{12+i}")
    for i in range(4):
        k(f"v_cvt_pk_bf16_f32 v{12+i}, v{8+i}, v{8+i}")
    for i in range(4):
        k(f"v_and_b32 v{48+2*i}, 0xffff0000, v{12+i}")
    A = 32
    for i in range(4):
        k(f"s_waitcnt vmcnt({3-i+npf})")
        for d in range(4):
            w = 16+4*i+d; t = 40 + 2*(d & 1)*2
            k(f"v_lshlrev_b32 v{t}, 16, v{w}\nv_and_b32 v{t+1}, 0xffff0000, v{w}")
            if i == 0: k(f"v_pk_mul_f32 {vr(A+2*d,2)}, {vr(t,2)}, {vr(48+2*i,2)} op_sel_hi:[1,0]")
            else: k(f"v_pk_fma_f32 {vr(A+2*d,2)}, {vr(t,2)}, {vr(48+2*i,2)}, {vr(A+2*d,2)} op_sel_hi:[1,0,1]")
    k("s_nop 1")
    for e in range(8): k(f"v_add_f32 v{A+e}, v{A+e}, v{A+e} row_ror:8")
    k("s_nop 1")
    for e in range(4): k(f"v_permlane16_swap_b32 v{A+e}, v{A+4+e}")
    k("s_nop 1")
    for e in range(4): k(f"v_add_f32 v{A+e}, v{A+e}, v{A+4+e}")
    k("s_nop 1")
    for e in range(2): k(f"v_permlane32_swap_b32 v{A+e}, v{A+2+e}")
    k("s_nop 1")
    for e in range(2): k(f"v_add_f32 v{A+e}, v{A+e}, v{A+2+e}")
    k("v_lshlrev_b32 v8, 5, v5\nv_and_b32 v9, 16, v2\nv_add_u32 v8, v8, v9\nv_lshrrev_b32 v9, 2, v2\nv_and_b32 v9, 8, v9\nv_add_u32 v8, v8, v9")
    k("v_and_b32 v9, 3, v1\nv_lshl_add_u32 v8, v9, 8, v8")
    k(f"ds_write_b64 v8, {vr(A,2)}")
    k("s_waitcnt lgkmcnt(0)\ns_barrier")
    k(f"s_cmp_lg_u32 s24, 4\ns_cbranch_scc1 {'k0_fin' if prof else end}")
    k("v_lshlrev_b32 v8, 2, v2")
    for i in range(4): k(f"ds_read_b32 v{16+i}, v8 offset:{256*i}")
    k(f"s_mul_i32 s3, s25, {3072*4}\ns_lshl_b32 s27, s26, 8\ns_add_u32 s3, s3, s27")
    k("s_waitcnt lgkmcnt(0)")
    k("v_add_f32 v16, v16, v17\nv_add_f32 v18, v18, v19\nv_add_f32 v16, v16, v18")
    k(f"buffer_store_dword v16, v8, s[20:23], s3 offen {OPT.st0}")
    k("s_branch k0_fin" if prof else "s_endpgm")
    k("k0_pf:")
    k("s_bfe_u32 s38, s2, 0x30003\ns_lshl_b32 s38, s38, 2\ns_and_b32 s37, s24, 3\ns_add_u32 s37, s37, s38")
    k("s_waitcnt lgkmcnt(0)")
    k("s_cmp_ge_u32 s37, 10\ns_cbranch_scc1 k0_pfw")
    k.code_pf("k1_attn_kernel", "code_end_marker", 4, 40, 37)
    k("s_branch k0_fin" if prof else "s_endpgm")
    k("k0_pfw:")
    k.srd(32, 28, 512*8192 if OPT.wqpf else 0)
    k("v_lshrrev_b32 v4, 4, v2\nv_lshlrev_b32 v4, 13, v4\nv_bfe_u32 v5, v2, 1, 3\nv_lshl_add_u32 v4, v5, 10, v4\nv_and_b32 v5, 1, v2\nv_lshl_add_u32 v4, v5, 7, v4")
    k("s_sub_u32 s37, s37, 10\ns_lshl_b32 s37, s37, 15\ns_and_b32 s38, s2, 3\ns_lshl_b32 s38, s38, 8\ns_add_u32 s37, s37, s38")
    k("buffer_load_dword v6, v4, s[32:35], s37 offen nt")
    k("k0_fin:")
    if prof:
        k.stamp(1); k("s_waitcnt vmcnt(0)"); k.stamp(2)
        k("v_and_b32 v0, 0xff, v0\ns_cmp_lt_u32 s24, 2\ns_cbranch_scc1 k0_dump\ns_cmp_eq_u32 s24, 4\ns_cbranch_scc0 k0_end\nv_add_u32 v0, 128, v0")
        k("k0_dump:")
        k.dump_stamps(3, 6, 56)
    k(f"{end}:")
    k("s_endpgm")
    return k

def mod_loads(k, srd, voff, st, R, base, tag=None):
    for i in range(4):
        if isinstance(base, int): k(f"s_mov_b32 s{st+i}, {base + i*12288}")
        else: k(f"s_add_u32 s{st+i}, {base}, {i*12288}")
        t = f"buffer_load_dwordx4 {vr(R+4*i,4)}, v{voff}, {sr(srd,4)}, s{st+i} offen"
        k.vmop(t, tag) if tag else k(t)

def mod_finish(k, R, s_add, mul=None):
    for h in range(2):
        k(f"v_pk_add_f32 {vr(R+2*h,2)}, {vr(R+2*h,2)}, {vr(R+4+2*h,2)}\nv_pk_add_f32 {vr(R+8+2*h,2)}, {vr(R+8+2*h,2)}, {vr(R+12+2*h,2)}")
    for h in range(2): k(f"v_pk_add_f32 {vr(R+2*h,2)}, {vr(R+2*h,2)}, {vr(R+8+2*h,2)}")
    for rep in range(2):
        for h in range(2): k(f"v_cvt_pk_bf16_f32 v{R+4+h}, v{R+2*h}, v{R+2*h+1}")
        for h in range(2): k(f"v_lshlrev_b32 v{R+2*h}, 16, v{R+4+h}\nv_and_b32 v{R+2*h+1}, 0xffff0000, v{R+4+h}")
        if rep == 0:
            for i in range(4): k(f"v_add_f32 v{R+i}, s{s_add}, v{R+i}")
    if mul is not None:
        for i in range(4): k(f"v_mul_f32 v{R+i}, {hexf(mul)}, v{R+i}")
```

```python
from common import *
from sched import fill, L, V, W, front, emit, It, merge
from k0 import mod_loads, mod_finish, C1

MF = "v_mfma_f32_16x16x32_bf16"

SLOT = 16384
KB = 0
VB = 65536
PARB = 9*SLOT
FLAGB = PARB + 4096
WSLOT = [1, 4, 2, 5, 3, 6, 7, 8]

def O(db, qb): return (db*4+qb)*4
def LA(qb): return 128 + qb*4
def KF(i): return 144 + i*4
def VF(i): return 176 + i*4
ONES = 208
def Q(qb, s): return 128 + (qb*4+s)*4
def S(buf, kb, qb): return 64 + buf*32 + (kb*4+qb)*4
def P(buf, qb): return 32 + buf*16 + qb*4
def MN(qb): return 192 + qb*4
V_KA = 8
V_VA = 12
V_DK = 20
V_DV = 24
V_L16 = 26
V_LS = 28
V_PF = 2
V_T = 208
def XR(slot, qb): return 128 + ((slot%4)*4+qb)*4
def QA(t, qb): return vr(192 + (qb*8+t)*4, 4) if qb < 2 else ar(((qb-2)*8+t)*4, 4)
def HK(b): return (lambda i: 64 + b*32 + i*4)
def HF(buf, qb): return 32 + (buf*4+qb)*4
def PAR(buf): return 64 + buf*16
V_PT = 96
V_WA = 112
V_DW = 124
V_PA = 125
def WF(buf, t): return 128 + (buf*8+t)*4
S_K, S_V, S_W, S_X, S_M, S_O = 8, 12, 16, 20, 24, 28
S_W4 = 32
S_KOFF, S_VOFF = 33, 34
S_CNT = 35
S_T0 = 36
S_RERUN = 44
S_WAVE = 45
S_W1 = 62

def emit_phase(k, mf, gaps):
    for f in gaps.get(-1, []): f(k) if callable(f) else k(f)
    for i, m in enumerate(mf):
        k(m)
        for f in gaps.get(i, []): f(k) if callable(f) else k(f)
    for g in gaps:
        assert g < len(mf), (g, len(mf))

def add(gaps, g, *items):
    gaps.setdefault(g, []).extend(items)

def qk_mfmas(buf, kf=KF, czero=False):
    r = []
    order = {0: [(kb,s,qb) for kb in range(2) for s in range(4) for qb in range(4)],
             1: [(kb,s,qb) for kb in range(2) for qb in range(4) for s in range(4)],
             2: [(kb,s,qb) for qb in range(4) for s in range(4) for kb in range(2)],
             4: [(kb,s if qb%2==0 else 3-s,qb) for kb in range(2) for qb in range(4) for s in range(4)],
             5: [(kb,s if kb%2==0 else 3-s,qb) for qb in range(4) for kb in range(2) for s in range(4)],
             3: [(kb,s,qb if s%2==0 else 3-qb) for kb in range(2) for s in range(4) for qb in range(4)]}[OPT.qko]
    seen = set()
    for kb, s, qb in order:
            if True:
                d = vr(S(buf, kb, qb), 4)
                started = (kb, qb) in seen; seen.add((kb, qb))
                c = d if started else ("0" if czero else vr(MN(qb), 4))
                r.append(f"{MF} {d}, {ar(kf(kb*4+s),4)}, {vr(Q(qb,s),4)}, {c}")
    return r

def pv_mfmas(buf, sumq, vf=VF, czero=False):
    r = []
    for qb in sumq:
        d = ar(LA(qb), 4)
        r.append(f"{MF} {d}, {ar(ONES,4)}, {vr(P(buf,qb),4)}, {'0' if czero else d}")
    order = {0: [(db,qb) for db in range(8) for qb in range(4)],
             1: [(db,qb) for qb in range(4) for db in range(8)],
             3: [(db if qb%2==0 else 7-db,qb) for qb in range(4) for db in range(8)],
             2: [(db,qb if db%2==0 else 3-qb) for db in range(8) for qb in range(4)]}[OPT.pvo]
    for db, qb in order:
        if True:
            d = ar(O(db, qb), 4)
            r.append(f"{MF} {d}, {ar(vf(db),4)}, {vr(P(buf,qb),4)}, {'0' if czero else d}")
    return r

def exps(buf, qbs):
    r = []
    for qb in qbs:
        for kb in range(2):
            for i in range(4):
                x = S(buf, kb, qb) + i
                r.append(f"v_exp_f32 v{x}, v{x}")
    return r
def cvts(buf, qbs):
    r = []
    for qb in qbs:
        for kb in range(2):
            for h in range(2):
                x = S(buf, kb, qb) + 2*h
                r.append(f"v_cvt_pk_bf16_f32 v{P(buf,qb)+kb*2+h}, v{x}, v{x+1}")
    return r
def adds(buf, qbs, addq):
    r = []
    for qb in qbs:
        for kb in range(2):
            for i in range(4):
                x = S(buf, kb, qb) + i
                r.append(f"v_add_f32 v{V_LS+qb}, v{x}, v{V_LS+qb}" if qb in addq else None)
    return r
def kreads(slot, blk, kf=KF):
    r = []
    for kb in range(2):
        for s in range(4):
            r.append(f"ds_read_b128 {ar(kf(kb*4+s),4)}, v{V_KA+s} offset:{KB+slot*SLOT+blk*8192+kb*4096}")
    return r
def vreads(slot, blk, vf=VF):
    r = []
    for db in range(8):
        for h in range(2):
            r.append(f"ds_read_b64_tr_b16 {ar(vf(db)+2*h,2)}, v{V_VA+db} offset:{slot*SLOT+blk*8192+h*4096}")
    return r
def dma_k(p): return f"buffer_load_dwordx4 v{V_DK+p}, {sr(S_K,4)}, s{S_KOFF} offen offset:{p*1024} {OPT.kvnt} lds"
def dma_v(p): return f"buffer_load_dwordx4 v{V_DV+(p&1)}, {sr(S_V,4)}, s{S_VOFF} offen offset:{p*1024} {OPT.kvnt} lds"

class Cfg:
    la = 4
    ppf = 0
    wocnt = 1
    bar2 = 0
    kvspread = 1
    w1pf = 0
    fine = 0
    kvper = 7
    x = 0
    pf = 2
    sumq = [1, 3]
    def addq(self): return [q for q in range(4) if q not in self.sumq]

def place_softmax(gaps, n, E, C, A, free, first_e=0):
    egap = []
    for i, e in enumerate(E):
        g = first_e + 2*i
        add(gaps, g, e); egap.append(g)
    items = []
    for p, c in enumerate(C): items.append((egap[2*p+1] + 1, c))
    for i, a in enumerate(A):
        if a: items.append((egap[i] + 1, a))
    items.sort(key=lambda t: t[0])
    free = sorted(free)
    for eg, txt in items:
        cand = [g for g in free if g >= eg]
        if cand:
            g = cand[0]; free.remove(g)
        else:
            g = n - 1
            assert g >= eg, (g, eg)
        add(gaps, g, txt)

def qk_phase(k, cfg, sbuf_out, sm_buf, vrd, pf=(), dmas=()):
    mf = qk_mfmas(sbuf_out)
    gaps = {}
    add(gaps, -1, "s_waitcnt lgkmcnt(0)")
    free = []
    odd = list(range(1, 32, 2))
    vi = 0
    for g in odd:
        if vi < len(vrd):
            add(gaps, g, vrd[vi], vrd[vi+1]); vi += 2
        else:
            free += [g, g]
    if pf:
        for i, g in enumerate((16, 18, 20, 22)): add(gaps, g, pf[i])
        add(gaps, 25, pf[4]); free.remove(25); free.remove(25)
        add(gaps, 26, pf[5]); add(gaps, 28, pf[6])
    for i, d in enumerate(dmas): add(gaps, 17 + 4*i, *d)
    qbs = [0, 1]
    place_softmax(gaps, 32, exps(sm_buf, qbs), cvts(sm_buf, qbs), adds(sm_buf, qbs, cfg.addq()), free)
    emit_phase(k, mf, gaps)

def pv_phase(k, cfg, pbuf, sm_buf, rd, dmas, m0, barrier, czero=False, vf=VF, qbs=(2, 3), post=(), extra_valu=()):
    mf = pv_mfmas(pbuf, cfg.sumq, vf, czero)
    n = len(mf); ns = len(cfg.sumq)
    gaps = {}
    w = "s_waitcnt vmcnt(16) lgkmcnt(0)\ns_barrier" if barrier else "s_waitcnt lgkmcnt(0)"
    add(gaps, ns - 1, w)
    free = []
    rd = list(rd); dmas = list(dmas)
    E = exps(sm_buf, qbs) if sm_buf is not None else []
    dense = len(E) > 16
    two = len(rd) > 8
    many = len(dmas) > 4
    odd = [g for g in range(1, n) if (g % 2 == 1 or g >= 2*len(E))]
    first = True
    for g in odd:
        if g < ns:
            if g != ns - 1: free += [g, g]
            continue
        if rd:
            add(gaps, g, rd.pop(0))
            if two: add(gaps, g, rd.pop(0))
            else: free.append(g)
        elif dmas and ((g // 2) % 2 == 0 or many):
            if first and m0:
                add(gaps, g - 1, m0); first = False
            d = dmas.pop(0)
            add(gaps, g, *(d if isinstance(d, list) else [d]))
        else:
            free += [g, g]
    assert not rd and not dmas
    if dense:
        C = cvts(sm_buf, qbs); A = adds(sm_buf, qbs, cfg.addq())
        for i, e in enumerate(E):
            add(gaps, i, e)
            if i >= 1 and A[i-1]: add(gaps, i, A[i-1])
            if i >= 2 and i % 2 == 0: add(gaps, i, C[i//2 - 1])
        gl = min(32, n - 1)
        if gl == 31: add(gaps, gl, "s_nop 0")
        if A[31]: add(gaps, gl, A[31])
        add(gaps, gl, C[15])
    elif E:
        place_softmax(gaps, n, E, cvts(sm_buf, qbs), adds(sm_buf, qbs, cfg.addq()), free)
    for f in post: add(gaps, n - 1, f)
    emit_phase(k, mf, gaps)

def iteration(k, cfg, t4, first=False, post=(), pf=()):
    ks = t4; vs = (t4 - 1) % 4
    m0k = f"s_add_u32 m0, s{S_W4}, {KB + ((t4+3)%4)*SLOT}"
    m0v = f"s_add_u32 m0, s{S_W4}, {VB + ((t4+2)%4)*SLOT}"
    dk = [dma_k(p) for p in range(4)]; dv = [dma_v(p) for p in range(4)]
    k.c(f"---- iteration T%4={t4} ----")
    if not first:
        pv_phase(k, cfg, 1, 0, kreads(ks, 0), dk, m0k, True, post=[f"s_add_u32 s{S_KOFF}, s{S_KOFF}, {SLOT}"])
    if first:
        g = lambda wh, t: [[kv_setup(wh, t), dma_k(p) if wh == 'K' else dma_v(p)] for p in range(4)]
        qk_phase(k, cfg, 0, 1, vreads(vs, 0), dmas=g('V', 2))
        pv_phase(k, cfg, 0, 1, kreads(ks, 1), g('K', 4), None, False, czero=True)
        qk_phase(k, cfg, 1, 0, vreads(vs, 1), dmas=g('V', 3))
        k(f"s_mov_b32 s{S_KOFF}, {5*SLOT}\ns_mov_b32 s{S_VOFF}, {4*SLOT}")
        return
    qk_phase(k, cfg, 0, 1, vreads(vs, 0), pf)
    pv_phase(k, cfg, 0, 1, kreads(ks, 1), dv, m0v, False, post=[f"s_add_u32 s{S_VOFF}, s{S_VOFF}, {SLOT}"])
    qk_phase(k, cfg, 1, 0, vreads(vs, 1))
    for f in post: k(f)

def kv_setup(which, tile):
    if which == 'K': return f"s_add_u32 m0, s{S_W4}, {KB + (tile%4)*SLOT}\ns_mov_b32 s{S_KOFF}, {tile*SLOT}"
    return f"s_add_u32 m0, s{S_W4}, {VB + (tile%4)*SLOT}\ns_mov_b32 s{S_VOFF}, {tile*SLOT}"
def kv_group(which, tile):
    return [[kv_setup(which, tile), V(dma_k(p) if which == 'K' else dma_v(p), f"{which}{tile}")] for p in range(4)]

def rowmax_cross(k, regs, tmp):
    for sw in ("v_permlane32_swap_b32", "v_permlane16_swap_b32"):
        for i, r in enumerate(regs): k(f"v_mov_b32 v{tmp+i}, v{r}")
        k("s_nop 1")
        for i, r in enumerate(regs): k(f"{sw} v{tmp+i}, v{r}")
        k("s_nop 1")
        for i, r in enumerate(regs): k(f"v_max_f32 v{r}, v{r}, v{tmp+i}")

def gen_k1(cfg=None, prof=False):
    cfg = cfg or Cfg()
    k = Kern("k1_attn_kernel", 256, 256, 160*1024, 512, 256, 96 if prof else 64)
    k.prof = prof
    end = "k1_end"
    k(f"s_cmp_ge_u32 s2, 256\ns_cbranch_scc1 {end}")
    k.stamp(0)
    k(f"s_load_dwordx4 s[48:51], s[0:1], {KA_K}")
    k(f"s_load_dwordx2 s[52:53], s[0:1], {KA_WQ}")
    k(f"s_load_dwordx2 s[54:55], s[0:1], {KA_WS}")
    k(f"s_load_dwordx2 s[46:47], s[0:1], {KA_WO}")
    k(f"s_load_dwordx4 s[56:59], s[0:1], {KA_WG}")
    k(f"s_load_dwordx2 s[60:61], s[0:1], {KA_WD}")
    k("v_lshrrev_b32 v1, 6, v0")
    k("v_and_b32 v2, 63, v0")
    k(f"v_readfirstlane_b32 s{S_WAVE}, v1")
    m = OPT.map4
    k(f"s_and_b32 s4, s2, {(8>>m)-1}\ns_bfe_u32 s5, s2, {((2+m)<<16)|3}\ns_lshl_b32 s5, s5, {3-m}\ns_add_u32 s4, s4, s5")
    k(f"s_bfe_u32 s5, s2, {(m<<16)|(3-m)}\ns_lshl_b32 s5, s5, {3-m}\ns_lshr_b32 s6, s2, {5+m}\ns_add_u32 s5, s5, s6")
    k(f"s_lshl_b32 s{S_W4}, s{S_WAVE}, 12")
    k(f"s_mov_b32 s{S_RERUN}, 0")
    k("v_lshrrev_b32 v3, 4, v2")
    k("v_and_b32 v4, 15, v2")
    k("v_lshrrev_b32 v5, 2, v4")
    k("v_and_b32 v6, 3, v2")
    k(f"v_lshlrev_b32 v{V_L16}, 4, v2")
    k("v_lshlrev_b32 v7, 2, v3\nv_xor_b32 v7, v7, v4\nv_lshlrev_b32 v7, 4, v7")
    k(f"v_lshl_add_u32 v{V_DW}, v1, 2, v3\nv_lshl_add_u32 v{V_DW}, v{V_DW}, 13, v7")
    k(f"s_lshl_b32 s{S_W1}, s{S_WAVE}, 10")
    k("s_waitcnt lgkmcnt(0)")
    k("s_lshl_b32 s6, s4, 8")
    k(f"s_add_u32 s{S_W}, s52, s6\ns_addc_u32 s{S_W+1}, s53, 0\ns_sub_u32 s{S_W+2}, {512*8192}, s6\ns_mov_b32 s{S_W+3}, 0x20000")
    k.srd(S_M, 54, 4*12288, WS_MODP)
    k(f"s_lshl_b32 s6, s5, 2\ns_add_u32 s6, s6, s{S_WAVE}\ns_lshl_b32 s7, s6, 16")
    k(f"s_add_u32 s7, s7, 0x{WS_XH:x}")
    k(f"s_add_u32 s{S_X}, s54, s7\ns_addc_u32 s{S_X+1}, s55, 0\ns_mov_b32 s{S_X+2}, 0x10000\ns_mov_b32 s{S_X+3}, 0x20000")
    def w_step(j):
        r = []
        for p in range(2):
            st = S_T0 + p
            r.append([f"s_add_u32 m0, s{S_W1}, {WSLOT[j>>1]*SLOT + (j&1)*8192 + p*4096}\ns_mov_b32 s{st}, {(j*32 + p*16)*8192}",
                      lambda kk, st=st: kk.vmop(f"buffer_load_dwordx4 v{V_DW}, {sr(S_W,4)}, s{st} offen {OPT.wqnt} lds", f"W{j}")])
        return r
    def x_loads(j):
        r = []
        for qb in range(4):
            st = S_T0 + 4 + qb
            r.append([f"s_mov_b32 s{st}, {qb*16384 + (j>>2)*4096}",
                      lambda kk, qb=qb, st=st: kk.vmop(f"buffer_load_dwordx4 {vr(XR(j,qb),4)}, v{V_L16}, {sr(S_X,4)}, s{st} offen offset:{(j&3)*1024}", f"X{j}" if j else f"X0_{qb}")])
        return r
    def run(items):
        for f in items:
            if isinstance(f, list): run(f)
            else: f(k) if callable(f) else k(f)
    k("v_lshlrev_b32 v31, 4, v0")
    mod_loads(k, S_M, 31, S_T0, V_PT, 0, "M")
    LA_ = cfg.la
    run(w_step(0)); run(x_loads(0))
    k("s_lshl_b32 s6, s4, 19")
    k(f"s_add_u32 s{S_K}, s48, s6\ns_addc_u32 s{S_K+1}, s49, 0\ns_mov_b32 s{S_K+2}, 0x80000\ns_mov_b32 s{S_K+3}, 0x20000")
    k(f"s_add_u32 s{S_V}, s50, s6\ns_addc_u32 s{S_V+1}, s51, 0\ns_mov_b32 s{S_V+2}, 0x80000\ns_mov_b32 s{S_V+3}, 0x20000")
    k(f"s_lshl_b32 s6, s5, 2\ns_add_u32 s6, s6, s{S_WAVE}\ns_lshl_b32 s6, s6, 19\ns_lshl_b32 s7, s4, 12\ns_add_u32 s6, s6, s7")
    k(f"s_add_u32 s6, s6, 0x{WS_OF:x}")
    k(f"s_add_u32 s{S_O}, s54, s6\ns_addc_u32 s{S_O+1}, s55, 0\ns_mov_b32 s{S_O+2}, {3*131072+4096}\ns_mov_b32 s{S_O+3}, 0x20000")
    k("v_lshl_add_u32 v7, v3, 3, v5\nv_lshlrev_b32 v7, 8, v7\nv_lshl_add_u32 v7, v6, 4, v7")
    for s in range(4):
        k(f"v_xor_b32 v27, {s}, v5\nv_lshl_add_u32 v{V_WA+s}, v27, 6, v7")
        k(f"v_add_u32 v{V_WA+4+s}, 0x10000, v{V_WA+s}\nv_add_u32 v{V_WA+8+s}, 0x20000, v{V_WA+s}")
    k(f"v_lshlrev_b32 v{V_PA}, 5, v3\nv_add_u32 v{V_PA}, {PARB}, v{V_PA}")
    for s in range(4):
        k(f"v_or_b32 v27, {4*s}, v3\nv_xor_b32 v27, v27, v4\nv_lshlrev_b32 v27, 4, v27\nv_lshl_add_u32 v{V_KA+s}, v4, 8, v27")
    k("v_lshl_add_u32 v7, v3, 2, v5\nv_and_b32 v27, 7, v7\nv_lshlrev_b32 v7, 8, v7\nv_lshl_add_u32 v7, v6, 3, v7")
    k(f"v_add_u32 v7, {VB}, v7")
    for db in range(8):
        k(f"v_xor_b32 v30, {db}, v27\nv_lshl_add_u32 v{V_VA+db}, v30, 5, v7")
    k("v_lshlrev_b32 v7, 8, v3\nv_lshl_add_u32 v7, v1, 12, v7")
    for p in range(4):
        k(f"v_or_b32 v27, {4*p}, v3\nv_xor_b32 v27, v27, v4\nv_lshl_add_u32 v{V_DK+p}, v27, 4, v7")
    for p in range(2):
        k(f"v_or_b32 v27, {4*p}, v3\nv_lshlrev_b32 v27, 1, v27\nv_xor_b32 v27, v27, v4\nv_lshl_add_u32 v{V_DV+p}, v27, 4, v7")
    k("v_mov_b32 v27, 0x3f803f80")
    for i in range(4): k(f"v_accvgpr_write_b32 a{ONES+i}, v27")

    def wreads(j):
        c = j >> 1; base = WSLOT[c]*SLOT; bank = base >> 16; off = (base & 0xffff) + (j & 1)*8192
        return [L(f"ds_read_b64_tr_b16 {ar(WF(j&1,t)+2*h,2)}, v{V_WA+4*bank+(t>>1)} offset:{off + h*1024 + 8*(t&1)}", f"R{j}_{t}")
                for t in range(8) for h in range(2)]
    def preads(j):
        b = PAR(j & 1)
        return [L(f"ds_read_b128 {vr(b+4*i,4)}, v{V_PA} offset:{j*128 + (i&1)*16 + (i>>1)*2048}", f"P{j}") for i in range(4)]
    def hcalc(j):
        b = PAR(j & 1); r = []
        for qb in range(4):
            t = V_PT + (qb & 1)*8
            for i in range(8):
                r.append(f"v_fma_mix_f32 v{t+i}, v{XR(j,qb)+(i>>1)}, v{b+8+i}, v{b+i} op_sel:[{i&1},0,0] op_sel_hi:[1,0,0]")
            for d in range(4):
                r.append(f"v_cvt_pk_bf16_f32 v{HF(j&1,qb)+d}, v{t+2*d}, v{t+2*d+1}")
        return r
    k(f"s_cmp_ge_u32 s{S_WAVE}, 2\ns_cselect_b32 s6, 1.0, 0\nv_add_u32 v31, {PARB}, v31")
    k.vmwait("M")
    mod_finish(k, V_PT, 6, C1)
    k(f"ds_write_b128 v31, {vr(V_PT,4)}")
    run(x_loads(1)); run(w_step(1))
    k.vmwait("W0", "lgkmcnt(0)"); k("s_barrier")
    run(preads(0)); run(preads(1)); run(wreads(0))
    assert LA_ == 4
    pend = [g for j in range(2, LA_) for g in x_loads(j) + w_step(j)]
    k.wait(lg="P0")
    k.stamp(1)
    for i, v in enumerate(hcalc(0)):
        if i % 12 == 0: k.wait(vm=f"X0_{i//12}")
        if i % 6 == 0 and pend: run(pend.pop(0))
        k(v)
    kvplan = {12: kv_group('K', 0), 13: kv_group('K', 1), 14: kv_group('V', 0)}
    for j in range(15):
        k.c(f"qproj stage {j}")
        if cfg.fine and j in (0, 2, 4, 8, 12): k.stamp(2 + (0, 2, 4, 8, 12).index(j))
        mf = []
        for t in range(8):
            for q in range(4):
                qb = q if t % 2 == 0 else 3 - q
                d = QA(t, qb)
                mf.append(f"{MF} {d}, {ar(WF(j&1,t),4)}, {vr(HF(j&1,qb),4)}, {d if j else '0'}")
        lds = (preads(j+2) if j < 14 else []) + wreads(j+1)
        valu = hcalc(j+1)
        jj = j + LA_
        pend += x_loads(jj) + w_step(jj) if jj < 16 else kvplan[j]
        nvm = min(len(pend), 8)
        vm = pend[:nvm]; pend = pend[nvm:]
        gaps = fill(32, lds, valu, vm, g0=1, valu_end=31)
        add(gaps, -1, W(lg=f"R{j}_3"))
        front(gaps, 12, W(lg=f"R{j}_7"))
        if j < 2 or j % 2 == 1 or not cfg.bar2:
            tgt = j+1 if (j < 1 or not cfg.bar2) else j+2
            front(gaps, 0, W(vm=f"W{tgt}", barrier=True))
        else:
            front(gaps, 0, W(vm=f"X{j+1}"))
        emit(k, mf, gaps)
    assert not pend
    k.stamp(2) if not cfg.fine else k.stamp(7)
    PFS, PF_F, PF_W, PF_O, PF_P = S_W, S_X, S_X+2, S_M, S_M+2
    pfsetup = [f"s_cmp_eq_u32 s{S_WAVE}, 1\ns_cselect_b64 s[{PF_F}:{PF_F+1}], s[58:59], s[56:57]",
        f"s_cmp_eq_u32 s{S_WAVE}, 2\ns_cselect_b64 s[{PF_F}:{PF_F+1}], s[60:61], s[{PF_F}:{PF_F+1}]",
        f"s_mul_i32 s6, s2, {43*128}\ns_add_u32 s{PF_F}, s{PF_F}, s6\ns_addc_u32 s{PF_F+1}, s{PF_F+1}, 0",
        f"s_lshl_b32 s6, s4, 17\ns_and_b32 s7, s5, 3\ns_lshl_b32 s7, s7, 15",
        f"s_add_u32 s6, s6, s7\ns_lshl_b32 s7, s{S_WAVE}, 13\ns_add_u32 s6, s6, s7",
        f"s_add_u32 s{PF_W}, s46, s6\ns_addc_u32 s{PF_W+1}, s47, 0",
        f"s_and_b32 s6, s2, 3\ns_lshl_b32 s6, s6, 21\ns_add_u32 s6, s6, s7",
        f"s_lshr_b32 s7, s2, 3\ns_lshl_b32 s7, s7, 15\ns_add_u32 s6, s6, s7",
        f"s_bfe_u32 s7, s2, 0x10002\ns_lshl_b32 s7, s7, 20\ns_add_u32 s6, s6, s7",
        f"s_add_u32 s6, s6, 0x{WS_PART:x}\ns_add_u32 s{PF_P}, s54, s6\ns_addc_u32 s{PF_P+1}, s55, 0"]
    pfseq = [f"s_cmp_eq_u32 s{S_CNT}, 7\ns_cselect_b64 s[{PFS}:{PFS+1}], s[{PF_F}:{PF_F+1}], s[{PF_O}:{PF_O+1}]",
             f"s_cselect_b32 s{PFS+2}, {43*128}, s{S_T0+7}",
             f"s_cmp_eq_u32 s{S_CNT}, {cfg.wocnt}\ns_cselect_b64 s[{PFS}:{PFS+1}], s[{PF_W}:{PF_W+1}], s[{PFS}:{PFS+1}]\ns_cselect_b32 s{PFS+2}, 0x2000, s{PFS+2}",
             f"s_cmp_eq_u32 s{S_CNT}, {7-cfg.wocnt}\ns_cselect_b64 s[{PFS}:{PFS+1}], s[{PF_P}:{PF_P+1}], s[{PFS}:{PFS+1}]\ns_cselect_b32 s{PFS+2}, {0x2000 if cfg.ppf else 0}, s{PFS+2}",
             f"buffer_load_dword v{V_PF+1}, v{V_PF}, {sr(PFS,4)}, 0 offen",
             f"s_cmp_lt_u32 s{S_CNT}, 6\ns_cselect_b32 s6, 0x20000, 0",
             f"s_add_u32 s{PF_O}, s{PF_O}, s6\ns_addc_u32 s{PF_O+1}, s{PF_O+1}, 0"]
    loopinit = f"s_mov_b32 s{PF_O}, s{S_O}\ns_mov_b32 s{PF_O+1}, s{S_O+1}\ns_mov_b32 s{S_T0+7}, 4096\ns_mov_b32 s{S_CNT}, 8"
    k.c("merged head")
    k.wait(lg='all')
    def qk_q(buf, qb, czero):
        r = []
        for kb in range(2):
            for i in range(4):
                s_ = i if kb == 0 else 3 - i
                d = vr(S(buf, kb, qb), 4)
                c = d if i else ("0" if czero else vr(MN(qb), 4))
                nd = {f"Q{qb}": 2, f"KR{buf}": 0}
                if not czero: nd[f"MN{qb}"] = 2
                r.append(It(f"{MF} {d}, {ar(HK(buf)(kb*4+s_),4)}, {vr(Q(qb,s_),4)}, {c}", needs=nd, gives=f"S{buf}_{qb}"))
        return r
    mq = []
    for qb in range(4):
        for t in range(8):
            d = QA(t, qb)
            mq.append(It(f"{MF} {d}, {ar(WF(1,t),4)}, {vr(HF(1,qb),4)}, {d}", gives=f"A{t}_{qb}"))
    mq += qk_q(0,0,True) + qk_q(0,1,True) + qk_q(0,2,True) + qk_q(1,0,False) + qk_q(1,1,False) + qk_q(0,3,True) + qk_q(1,2,False) + qk_q(1,3,False)
    def conv(qb):
        r = []
        for s_ in range(4):
            for h in range(2):
                t = 2*s_ + h; nd = {f"A{t}_{qb}": 8}
                if qb < 2: a = 192 + (qb*8+t)*4
                else:
                    a = 224 + (t & 3)*4
                    for i in range(4): r.append(It(f"v_accvgpr_read_b32 v{a+i}, a{((qb-2)*8+t)*4+i}", needs=nd))
                for d in range(2): r.append(It(f"v_cvt_pk_bf16_f32 v{Q(qb,s_)+2*h+d}, v{a+2*d}, v{a+2*d+1}", needs=nd, gives=f"Q{qb}x"))
        r[-1].gives = f"Q{qb}"
        return r
    def rmax(qs):
        r = []
        for qb in qs:
            a = S(0, 0, qb); b = S(0, 1, qb); t = V_T + qb; nd = {f"S0_{qb}e": 8}
            r += [It(f"v_max3_f32 v{t}, v{a}, v{a+1}, v{a+2}", needs=nd), It(f"v_max3_f32 v{t+4}, v{b}, v{b+1}, v{b+2}"),
                  It(f"v_max3_f32 v{t}, v{t}, v{a+3}, v{b+3}"), It(f"v_max_f32 v{t}, v{t}, v{t+4}")]
        for n_, sw in enumerate(("v_permlane32_swap_b32", "v_permlane16_swap_b32")):
            for qb in qs: r.append(It(f"v_mov_b32 v{V_T+4+qb}, v{V_T+qb}", gives=f"mv{n_}_{qb}"))
            for qb in qs: r.append(It(f"{sw} v{V_T+4+qb}, v{V_T+qb}", cost=2, needs={f"mv{n_}_{qb}": 2}, gives=f"sw{n_}_{qb}"))
            for qb in qs: r.append(It(f"v_max_f32 v{V_T+qb}, v{V_T+qb}, v{V_T+4+qb}", needs={f"sw{n_}_{qb}": 1}))
        for qb in qs:
            for i in range(4): r.append(It(f"v_sub_f32 v{MN(qb)+i}, 0, v{V_T+qb}", gives=f"MN{qb}" if i == 3 else None))
        return r
    def sm0(qs, sub=True):
        r = []
        E = exps(0, qs); C = cvts(0, qs); A = adds(0, qs, cfg.addq())
        regs = [S(0, kb, qb) + i for qb in qs for kb in range(2) for i in range(4)]
        qof = [qb for qb in qs for _ in range(8)]
        n_ = len(E)
        for i in range(n_ + 2):
            if sub and i < n_: r.append(It(f"v_add_f32 v{regs[i]}, v{regs[i]}, v{MN(qof[i])}"))
            if 1 <= i <= n_: r.append(It(E[i-1], cost=2, gives=f"e{qs[0]}_{i-1}"))
            if i >= 2:
                if A[i-2]: r.append(It(A[i-2], needs={f"e{qs[0]}_{i-2}": 1}))
                if (i-2) % 2 == 1: r.append(It(C[(i-2)//2], needs={f"e{qs[0]}_{i-2}": 1}))
        return r
    last = {}
    for it in mq:
        if isinstance(it.gives, str) and it.gives.startswith("S"): last[it.gives] = it
    for g, it in last.items(): it.gives = g + "e"
    init = [It(f"v_mov_b32 v{V_LS+q}, 0") for q in range(4)] + [It(f"v_lshlrev_b32 v{V_PF}, 3, v{V_L16}")]
    vq = init + conv(0) + conv(1) + conv(2) + rmax([0, 1]) + conv(3) + sm0([0, 1]) + rmax([2, 3]) + sm0([2, 3])
    side = [It(W(vm="K0", barrier=True), cost=0, n=2)]
    for b in range(2):
        side += [It(L(x, f"HK{b}")) for x in kreads(0, b, HK(b))]
    side += [It(x, cost=0, n=3) for x in pfsetup]
    side += [It(W(lg="HK0"), cost=0, gives="KR0", needs={"A7_2": 0}), It(W(lg="HK1"), cost=0, gives="KR1")]
    G = lambda grp, nd=None: It(lambda kk, grp=grp: kk.run(grp), cost=2, n=3, needs=nd)
    side += [G(x) for x in kv_group('K', 2)] + [G(x, {"S0_2e": 0}) for x in kv_group('V', 1)]
    side += [It(W(vm="V0", barrier=True), cost=0, n=2, needs={"S0_3e": 0})]
    side += [It(x) for x in kreads(1, 0)] + [G(x) for x in kv_group('K', 3)] + [It(loopinit, cost=0, n=4)]
    merge(k, mq, vq, side)
    k("k1_first:")
    iteration(k, cfg, 1, first=True)
    k.stamp(3) if not cfg.fine else None
    k("s_branch k1_pos2")
    k(".p2align 6")
    k("k1_loop:")
    iteration(k, cfg, 0, pf=pfseq if cfg.pf else ())
    iteration(k, cfg, 1)
    k("k1_pos2:")
    iteration(k, cfg, 2)
    iteration(k, cfg, 3, post=[f"s_sub_u32 s{S_CNT}, s{S_CNT}, 1\ns_cmp_lg_u32 s{S_CNT}, 0\ns_cbranch_scc1 k1_loop"])
    k.c("tail")
    k.stamp(4) if not cfg.fine else None
    pv_phase(k, cfg, 1, 0, vreads(3, 0, KF), [], None, True)
    pv_phase(k, cfg, 0, 1, vreads(3, 1, VF), [], None, False, vf=KF, qbs=(0, 1, 2, 3), post=["s_nop 1"])
    pv_phase(k, cfg, 1, None, [], [], None, False)
    k.stamp(5) if not cfg.fine else None
    k("s_nop 7")
    LT = V_T
    for qb in range(4):
        if qb in cfg.sumq: k(f"v_accvgpr_read_b32 v{LT+qb}, a{LA(qb)}")
        else: k(f"v_mov_b32 v{LT+qb}, v{V_LS+qb}")
    aq = cfg.addq()
    if aq:
        for sw in ("v_permlane32_swap_b32", "v_permlane16_swap_b32"):
            for q in aq: k(f"v_mov_b32 v{LT+4+q}, v{LT+q}")
            k("s_nop 1")
            for q in aq: k(f"{sw} v{LT+4+q}, v{LT+q}")
            k("s_nop 1")
            for q in aq: k(f"v_add_f32 v{LT+q}, v{LT+q}, v{LT+4+q}")
    k(f"v_add_f32 v{LT+4}, v{LT}, v{LT+1}\nv_add_f32 v{LT+5}, v{LT+2}, v{LT+3}\nv_add_f32 v{LT+4}, v{LT+4}, v{LT+5}")
    k(f"s_mov_b32 s6, {hexf(2.0**64)}")
    k(f"v_cmp_nle_f32 vcc, v{LT+4}, s6")
    k("s_cmp_lg_u64 vcc, 0\ns_cselect_b32 s6, 1, 0")
    k(f"v_mov_b32 v{LT+5}, s6\ns_lshl_b32 s7, s{S_WAVE}, 2\ns_add_u32 s7, s7, {FLAGB}\nv_mov_b32 v{LT+6}, s7\nv_mov_b32 v{LT+7}, {FLAGB}")
    k(f"ds_write_b32 v{LT+6}, v{LT+5}")
    k("s_waitcnt vmcnt(0) lgkmcnt(0)\ns_barrier")
    k(f"ds_read_b128 {vr(LT+8,4)}, v{LT+7}")
    for qb in range(4): k(f"v_rcp_f32 v{LT+qb}, v{LT+qb}")
    k("s_waitcnt lgkmcnt(0)")
    k(f"v_or_b32 v{LT+8}, v{LT+8}, v{LT+9}\nv_or3_b32 v{LT+8}, v{LT+8}, v{LT+10}, v{LT+11}\ns_nop 0")
    k(f"v_readfirstlane_b32 s6, v{LT+8}")
    k(f"s_andn2_b32 s6, s6, s{S_RERUN}\ns_cmp_lg_u32 s6, 0\ns_cbranch_scc1 k1_fallback")
    for qb in range(4):
        k(f"s_mov_b32 s{S_T0+qb}, {qb*131072}")
        for s in range(4):
            t = 64 + ((qb*4+s) & 3)*8; o = 32 + ((qb*4+s) & 7)*4
            for h in range(2):
                for i in range(4): k(f"v_accvgpr_read_b32 v{t+4*h+i}, a{O(2*s+h,qb)+i}")
            for i in range(8): k(f"v_mul_f32 v{t+i}, v{t+i}, v{LT+qb}")
            for d in range(4): k(f"v_cvt_pk_bf16_f32 v{o+d}, v{t+2*d}, v{t+2*d+1}")
            k(f"buffer_store_dwordx4 {vr(o,4)}, v{V_L16}, {sr(S_O,4)}, s{S_T0+qb} offen offset:{s*1024} {OPT.st1}")
    if prof:
        k.stamp(6) if not cfg.fine else None
        k("s_waitcnt vmcnt(0)")
        k.stamp(7) if not cfg.fine else None
        k.dump_stamps(8, 54, 100)
    k(f"{end}:")
    k("s_endpgm")
    k("k1_fallback:")
    k(f"s_mov_b32 s{S_RERUN}, 1")
    k("v_and_b32 v2, 63, v0\nv_lshrrev_b32 v3, 4, v2\nv_and_b32 v4, 15, v2")
    k("v_lshlrev_b32 v5, 8, v4\nv_lshl_add_u32 v5, v3, 4, v5")
    for q in range(4): k(f"v_mov_b32 v{V_T+q}, 0xff800000")
    k("s_mov_b32 s6, 0")
    k("k1_fb_loop:")
    for s in range(4): k(f"buffer_load_dwordx4 {ar(KF(s),4)}, v5, {sr(S_K,4)}, s6 offen offset:{64*s}")
    k("s_waitcnt vmcnt(0)")
    for s in range(4):
        for qb in range(4):
            d = vr(S(0,0,qb),4)
            k(f"{MF} {d}, {ar(KF(s),4)}, {vr(Q(qb,s),4)}, {d if s else '0'}")
    k("s_nop 15")
    for qb in range(4):
        a = S(0,0,qb)
        k(f"v_max3_f32 v{V_T+qb}, v{V_T+qb}, v{a}, v{a+1}")
        k(f"v_max3_f32 v{V_T+qb}, v{V_T+qb}, v{a+2}, v{a+3}")
    k("s_add_u32 s6, s6, 4096\ns_cmp_lt_u32 s6, 0x80000\ns_cbranch_scc1 k1_fb_loop")
    rowmax_cross(k, [V_T+q for q in range(4)], V_T+4)
    k(f"v_lshlrev_b32 v{V_PF}, 3, v{V_L16}")
    for qb in range(4):
        k(f"v_mov_b32 v{V_LS+qb}, 0")
        for i in range(4): k(f"v_sub_f32 v{MN(qb)+i}, 0, v{V_T+qb}")
    k("s_barrier")
    k.vm = []; k.lg = []
    for wh, t in (('K',0),('K',1),('V',0),('K',2),('V',1),('K',3)): run(kv_group(wh, t))
    k.wait(vm="V0", barrier=True)
    run(kreads(0, 0, HK(0))); k("s_waitcnt lgkmcnt(0)"); run(kreads(0, 1, HK(1)))
    for m in qk_mfmas(0, HK(0)): k(m)
    k("s_waitcnt lgkmcnt(0)\ns_barrier")
    run(kreads(1, 0))
    for m in qk_mfmas(1, HK(1)): k(m)
    merge(k, [], sm0([0, 1, 2, 3], sub=False))
    k(loopinit)
    k("s_branch k1_first")
    return k
```

```python
from common import *
from sched import *
from k0 import mod_loads, mod_finish
MF = "v_mfma_f32_16x16x32_bf16"

STG = 16384
NSL = 8
NK = 32
def ACC(t, tb): return 64 + (t*4+tb)*4
def WF(buf, t): return 128 + (buf*4+t)*4
def BF(buf, tb): return 160 + (buf*4+tb)*4
V_DW = 8
V_L16 = 10
V_WA = 16
V_BA = 24
V_PF = 12
S_W, S_B, S_P, S_F = 8, 12, 16, 36
S_W1, S_WAVE, S_T0 = 20, 21, 24

def gen_k2(prof=False):
    k = Kern("k2_oproj_kernel", 256, 512, NSL*STG, 192, 192, 96 if prof else 64)
    k.prof = prof
    end = "k2_end"
    k(f"s_cmp_ge_u32 s2, 256\ns_cbranch_scc1 {end}")
    k.stamp(0)
    k(f"s_load_dwordx2 s[52:53], s[0:1], {KA_WO}")
    k(f"s_load_dwordx2 s[54:55], s[0:1], {KA_WS}")
    k(f"s_load_dwordx4 s[48:51], s[0:1], {KA_WG}")
    k("v_lshrrev_b32 v1, 6, v0\nv_and_b32 v2, 63, v0")
    k(f"v_readfirstlane_b32 s{S_WAVE}, v1")
    k("s_and_b32 s4, s2, 3")
    k("s_bfe_u32 s5, s2, 0x20003")
    k("s_bfe_u32 s6, s2, 0x10002\ns_lshl_b32 s6, s6, 3\ns_lshr_b32 s7, s2, 5\ns_add_u32 s6, s6, s7")
    k("v_lshrrev_b32 v3, 4, v2\nv_and_b32 v4, 15, v2")
    k(f"v_lshlrev_b32 v{V_L16}, 4, v2")
    k(f"s_cmp_lt_u32 s{S_WAVE}, 4\ns_cbranch_scc1 k2_compute")
    if OPT.lprio: k(f"s_setprio {OPT.lprio}")
    k(f"v_and_b32 v1, 3, v1\ns_and_b32 s{S_WAVE}, s{S_WAVE}, 3\ns_lshl_b32 s{S_W1}, s{S_WAVE}, 10")
    k("v_lshl_add_u32 v7, v1, 2, v3\nv_and_b32 v11, 7, v7\nv_lshlrev_b32 v11, 1, v11\nv_xor_b32 v11, v11, v4\nv_lshlrev_b32 v7, 10, v7")
    k(f"v_lshl_add_u32 v{V_DW}, v11, 4, v7")
    k("s_lshl_b32 s7, s4, 17\ns_lshl_b32 s22, s5, 8\ns_add_u32 s7, s7, s22")
    k(f"s_lshl_b32 s22, s6, 3\ns_add_u32 s22, s22, s{S_WAVE}")
    k(f"s_lshl_b32 s23, s22, 17\ns_lshl_b32 s32, s4, 12\ns_add_u32 s23, s23, s32\ns_add_u32 s23, s23, 0x{WS_OF:x}")
    k("s_waitcnt lgkmcnt(0)")
    k(f"s_add_u32 s{S_W}, s52, s7\ns_addc_u32 s{S_W+1}, s53, 0\ns_sub_u32 s{S_W+2}, {4096*1024}, s7\ns_mov_b32 s{S_W+3}, 0x20000")
    k(f"s_add_u32 s{S_B}, s54, s23\ns_addc_u32 s{S_B+1}, s55, 0\ns_mov_b32 s{S_B+2}, {5*131072}\ns_mov_b32 s{S_B+3}, 0x20000")
    def step(j):
        for p in range(2):
            k(f"s_add_u32 m0, s{S_W1}, {(j % NSL)*STG + p*4096}\ns_mov_b32 s{S_T0}, {((j>>2)*512 + (j&3)*32 + p*16)*1024}")
            k.vmop(f"buffer_load_dwordx4 v{V_DW}, {sr(S_W,4)}, s{S_T0} offen lds", f"S{j}")
            k(f"s_add_u32 m0, s{S_W1}, {(j % NSL)*STG + 8192 + p*4096}\ns_mov_b32 s{S_T0+1}, {p*4*131072 + (j>>2)*16384 + (j&3)*1024}")
            k.vmop(f"buffer_load_dwordx4 v{V_L16}, {sr(S_B,4)}, s{S_T0+1} offen lds", f"S{j}")
    step(0); step(1)
    k.wait(vm="S0", barrier=True)
    step(2); step(3)
    k.wait(vm="S1", barrier=True)
    nxt = 4
    for j in range(1, NK-1, 2):
        for _ in range(2):
            if nxt < NK and nxt - NSL <= j - 3: step(nxt); nxt += 1
        k.wait(vm=f"S{j+2}", barrier=True)
    assert nxt == NK
    if OPT.pf2:
        k(f"s_cmp_lt_u32 s{S_WAVE}, 2\ns_cselect_b64 s[{S_F}:{S_F+1}], s[48:49], s[50:51]")
        k(f"s_lshr_b32 s7, s2, 3\ns_lshl_b32 s7, s7, 1\ns_and_b32 s23, s{S_WAVE}, 1\ns_add_u32 s7, s7, s23\ns_mul_i32 s7, s7, {172*128}")
        k(f"s_add_u32 s{S_F}, s{S_F}, s7\ns_addc_u32 s{S_F+1}, s{S_F+1}, 0\ns_mov_b32 s{S_F+2}, {172*128}\ns_mov_b32 s{S_F+3}, 0x20000")
        k(f"v_lshlrev_b32 v{V_PF}, 7, v2")
        for i in range(3):
            k(f"s_mov_b32 s{S_T0+4}, {i*8192}\nbuffer_load_dword v{V_PF+1}, v{V_PF}, {sr(S_F,4)}, s{S_T0+4} offen")
    k("s_cmp_ge_u32 s2, 2\ns_cbranch_scc1 k2_nomod")
    k.srd(S_W, 54, 4*12288, WS_MODP)
    k.srd(S_B, 54, 12288, WS_MOD)
    k("v_and_b32 v30, 255, v0\nv_lshlrev_b32 v30, 4, v30\ns_add_u32 s7, s2, 1\ns_lshl_b32 s7, s7, 12")
    mod_loads(k, S_W, 30, S_T0, 32, "s7")
    k(f"s_lshl_b32 s23, s2, 1\ns_cmp_lt_u32 s{S_WAVE}, s23\ns_cselect_b32 s23, 1.0, 0\ns_waitcnt vmcnt(0)")
    mod_finish(k, 32, 23)
    k(f"buffer_store_dwordx4 v[32:35], v30, {sr(S_B,4)}, s7 offen {OPT.st2}")
    k("k2_nomod:")
    k("s_endpgm")
    k("k2_compute:")
    if OPT.prio: k(f"s_setprio {OPT.prio}")
    k.vm = []
    k("v_lshrrev_b32 v5, 2, v4\nv_and_b32 v6, 3, v2")
    k("v_lshl_add_u32 v7, v3, 2, v5\nv_and_b32 v11, 7, v7\nv_lshlrev_b32 v7, 8, v7\nv_lshl_add_u32 v7, v6, 3, v7")
    k("v_lshlrev_b32 v13, 1, v1\nv_and_b32 v13, 4, v13\nv_xor_b32 v11, v11, v13")
    for t in range(4):
        k(f"v_xor_b32 v12, {t}, v11\nv_lshl_add_u32 v{V_WA+t}, v12, 5, v7\nv_add_u32 v{V_WA+4+t}, 0x10000, v{V_WA+t}")
    k(f"v_and_b32 v13, 1, v1\nv_lshl_add_u32 v{V_BA}, v13, 12, v{V_L16}\nv_add_u32 v{V_BA+1}, 0x10000, v{V_BA}")
    k(f"s_lshl_b32 s7, s4, 21\ns_lshl_b32 s23, s6, 17\ns_add_u32 s7, s7, s23\ns_lshl_b32 s23, s5, 12\ns_add_u32 s7, s7, s23")
    k(f"s_and_b32 s23, s{S_WAVE}, 1\ns_lshl_b32 s23, s23, 16\ns_add_u32 s7, s7, s23\ns_lshr_b32 s23, s{S_WAVE}, 1\ns_lshl_b32 s23, s23, 11\ns_add_u32 s7, s7, s23\ns_add_u32 s7, s7, 0x{WS_PART:x}")
    k("s_waitcnt lgkmcnt(0)")
    k(f"s_add_u32 s{S_P}, s54, s7\ns_addc_u32 s{S_P+1}, s55, 0\ns_mov_b32 s{S_P+2}, {3*16384+2048}\ns_mov_b32 s{S_P+3}, 0x20000")
    def reads(j):
        base = (j % NSL)*STG; bank = base >> 16; off = base & 0xffff
        w = [[L(f"ds_read_b64_tr_b16 {vr(WF(j&1,t)+2*h,2)}, v{V_WA+4*bank+t} offset:{off + h*4096}", f"R{j}_{t}") for h in range(2)] for t in range(4)]
        b = [L(f"ds_read_b128 {vr(BF(j&1,tb),4)}, v{V_BA+bank} offset:{off + 8192 + tb*1024}", f"R{j}_0") for tb in range(4)]
        return b + w[0] + w[1] + w[2] + w[3]
    k("s_barrier")
    k.run(reads(0))
    k.stamp(1)
    for j in range(NK):
        mf = []
        for t in range(4):
            for tb_ in range(4):
                tb = tb_ if (t % 2 == 0 or not OPT.serp) else 3 - tb_
                d = vr(ACC(t, tb), 4)
                mf.append(f"{MF} {d}, {vr(WF(j&1,t),4)}, {vr(BF(j&1,tb),4)}, {d if j else '0'}")
        lds = reads(j+1) if j < NK-1 else []
        gaps = fill(16, lds, [], [], g0=1)
        add(gaps, -1, W(lg=f"R{j}_1"))
        if j < NK-1 and (j < 2 or j % 2 == 1): front(gaps, 0, "s_barrier")
        front(gaps, 6, W(lg=f"R{j}_3"))
        emit(k, mf, gaps)
    k.stamp(2)
    k("s_nop 1")
    n = 0
    for tb in range(4): k(f"s_mov_b32 s{S_T0+tb}, {tb*16384}")
    for ns in range(2):
        for tb in range(4):
            o = 32 + (n & 7)*4; n += 1
            for h in range(2):
                a = ACC(2*ns+h, tb)
                k(f"v_cvt_pk_bf16_f32 v{o+2*h}, v{a}, v{a+1}\nv_cvt_pk_bf16_f32 v{o+2*h+1}, v{a+2}, v{a+3}")
            k(f"buffer_store_dwordx4 {vr(o,4)}, v{V_L16}, {sr(S_P,4)}, s{S_T0+tb} offen offset:{ns*1024} {OPT.st2}")
    if prof:
        k.stamp(3); k("s_waitcnt vmcnt(0)"); k.stamp(4); k.dump_stamps(5, 54, 100)
    k(f"{end}:\ns_endpgm")
    return k
```

```python
from common import *
NSP = 4

def gen_k3(prof=False):
    k = Kern("k3_ln2_kernel", 256, 256, 1024, 128, 128, 96 if prof else 64)
    k.prof = prof
    end = "k3_end"
    k(f"s_cmp_ge_u32 s2, 256\ns_cbranch_scc1 {end}")
    k.stamp(0)
    k(f"s_load_dwordx2 s[4:5], s[0:1], {KA_X}")
    k(f"s_load_dwordx2 s[54:55], s[0:1], {KA_WS}")
    k("s_and_b32 s3, s2, 7\ns_lshl_b32 s3, s3, 5\ns_lshr_b32 s6, s2, 3\ns_add_u32 s3, s3, s6")
    k("v_and_b32 v1, 7, v0")
    k("v_bfe_u32 v2, v0, 3, 2")
    k("v_lshrrev_b32 v3, 5, v0")
    k("v_lshlrev_b32 v4, 10, v3\nv_lshl_add_u32 v4, v2, 8, v4\nv_lshl_add_u32 v4, v1, 4, v4")
    k("v_lshlrev_b32 v5, 10, v1\nv_lshl_add_u32 v5, v3, 6, v5\nv_lshl_add_u32 v5, v2, 3, v5")
    k("v_lshlrev_b32 v6, 7, v3\nv_lshl_add_u32 v6, v2, 4, v6")
    k("s_lshr_b32 s6, s3, 1\ns_lshl_b32 s6, s6, 14\ns_and_b32 s7, s3, 1\ns_lshl_b32 s7, s7, 7\ns_add_u32 s6, s6, s7")
    k("s_lshl_b32 s7, s3, 13")
    for i in range(2*NSP): k(f"s_add_u32 s{32+i}, s6, {(i>>1)*0x200000 + (i&1)*8192}")
    for wi, sec in enumerate((2, 3, 4)): k(f"s_mov_b32 s{44+wi}, {sec*2048}")
    k("v_lshlrev_b32 v7, 4, v1")
    k("v_lshrrev_b32 v8, 6, v0\nv_lshl_add_u32 v8, v8, 2, v7")
    k("s_waitcnt lgkmcnt(0)")
    k.stamp(1)
    PR = 16
    XR = 48
    PA = 56
    AC = 104
    T = 120
    k.srd(12, 4, 2048*1024)
    k.srd(8, 54, NSP*2048*1024, WS_PART)
    k.srd(16, 54, 6*2048, WS_MOD)
    def xl():
        for pc in range(2):
            for h in range(2):
                k.vmop(f"buffer_load_dwordx2 {vr(XR+pc*4+h*2,2)}, v5, s[12:15], s7 offen offset:{pc*512+h*32}", "X")
    def pl(wi):
        for pc in range(2):
            for h in range(2):
                k.vmop(f"buffer_load_dwordx4 {vr(PA+wi*16+pc*8+h*4,4)}, v6, s[16:19], s{44+wi} offen offset:{pc*1024+h*64}", f"M{wi}")
    def sl(sp):
        for pc in range(2): k.vmop(f"buffer_load_dwordx4 {vr(PR+(sp*2+pc)*4,4)}, v4, s[8:11], s{32+sp*2+pc} offen", f"S{sp}")
    for a in OPT.o3:
        if a == 'x': xl()
        elif a in 'abc': pl('abc'.index(a))
        else: sl(int(a))
    k.srd(20, 54, 2048*1024, WS_H2)
    k.srd(24, 54, 2048*1024, WS_X1)
    k.stamp(2)
    for sp in range(NSP):
        k.wait(vm=f"S{sp}")
        if sp == 0: k.stamp(3)
        if sp == NSP-1: k.stamp(4)
        for d in range(8):
            w = PR + sp*8 + d; t_ = T + 2*(d & 3)
            if sp == 0:
                k(f"v_lshlrev_b32 v{AC+2*d}, 16, v{w}\nv_and_b32 v{AC+2*d+1}, 0xffff0000, v{w}")
            else:
                k(f"v_lshlrev_b32 v{t_}, 16, v{w}\nv_and_b32 v{t_+1}, 0xffff0000, v{w}")
                k(f"v_pk_add_f32 {vr(AC+2*d,2)}, {vr(AC+2*d,2)}, {vr(t_,2)}")
    k.wait(vm="X"); k.wait(vm="M0")
    k.stamp(5)
    for d in range(8):
        w = XR + d; t_ = T + 2*(d & 3)
        k(f"v_lshlrev_b32 v{t_}, 16, v{w}\nv_and_b32 v{t_+1}, 0xffff0000, v{w}")
        k(f"v_pk_fma_f32 {vr(AC+2*d,2)}, {vr(AC+2*d,2)}, {vr(PA+2*d,2)}, {vr(t_,2)}")
    for d in range(8): k(f"v_cvt_pk_bf16_f32 v{XR+d}, v{AC+2*d}, v{AC+2*d+1}")
    for d in range(8): k(f"v_lshlrev_b32 v{AC+2*d}, 16, v{XR+d}\nv_and_b32 v{AC+2*d+1}, 0xffff0000, v{XR+d}")
    def rowsum(r, off, mid=None):
        k(f"s_nop 1\nv_add_f32 v{r}, v{r}, v{r} row_ror:8")
        for sw in ("v_permlane16_swap_b32", "v_permlane32_swap_b32"):
            k(f"v_mov_b32 v{r+1}, v{r}\ns_nop 1\n{sw} v{r+1}, v{r}\ns_nop 1\nv_add_f32 v{r}, v{r}, v{r+1}")
        k(f"ds_write_b32 v8, v{r} offset:{off}")
        if mid: mid()
        k("s_waitcnt lgkmcnt(0)\ns_barrier")
        k(f"ds_read_b128 {vr(r,4)}, v7 offset:{off}\ns_waitcnt lgkmcnt(0)")
        k(f"v_pk_add_f32 {vr(r,2)}, {vr(r,2)}, {vr(r+2,2)}\nv_add_f32 v{r}, v{r}, v{r+1}")
    def x1st():
        for pc in range(2):
            k.vmop(f"buffer_store_dwordx4 {vr(XR+pc*4,4)}, v4, s[24:27], s{32+pc} offen {OPT.st3}", "W")
    for i in range(4): k(f"v_pk_add_f32 {vr(T+2*i,2)}, {vr(AC+2*i,2)}, {vr(AC+8+2*i,2)}")
    for i in range(2): k(f"v_pk_add_f32 {vr(T+2*i,2)}, {vr(T+2*i,2)}, {vr(T+4+2*i,2)}")
    k(f"v_pk_add_f32 {vr(T,2)}, {vr(T,2)}, {vr(T+2,2)}\nv_add_f32 v{T}, v{T}, v{T+1}")
    rowsum(T, 0, x1st)
    k(f"v_mul_f32 v10, {hexf(-1/512)}, v{T}")
    for i in range(8): k(f"v_pk_add_f32 {vr(AC+2*i,2)}, {vr(AC+2*i,2)}, v[10:11] op_sel_hi:[1,0]")
    for i in range(2): k(f"v_pk_mul_f32 {vr(T+2*i,2)}, {vr(AC+2*i,2)}, {vr(AC+2*i,2)}")
    for i in range(2, 8): k(f"v_pk_fma_f32 {vr(T+2*(i&1),2)}, {vr(AC+2*i,2)}, {vr(AC+2*i,2)}, {vr(T+2*(i&1),2)}")
    k(f"v_pk_add_f32 {vr(T,2)}, {vr(T,2)}, {vr(T+2,2)}\nv_add_f32 v{T}, v{T}, v{T+1}")
    def mid2():
        k.wait(vm="M1"); k.wait(vm="M2")
        for i in range(8): k(f"v_pk_mul_f32 {vr(AC+2*i,2)}, {vr(AC+2*i,2)}, {vr(PA+32+2*i,2)}")
    rowsum(T, 128, mid2)
    k(f"v_mov_b32 v10, {hexf(1e-5)}\nv_fmac_f32 v10, {hexf(1/512)}, v{T}\nv_rsq_f32 v10, v10\ns_nop 0")
    for pc in range(2):
        for i in range(4*pc, 4*pc+4): k(f"v_pk_fma_f32 {vr(AC+2*i,2)}, {vr(AC+2*i,2)}, v[10:11], {vr(PA+16+2*i,2)} op_sel_hi:[1,0,1]")
        for d in range(4*pc, 4*pc+4): k(f"v_cvt_pk_bf16_f32 v{PR+d}, v{AC+2*d}, v{AC+2*d+1}")
        k(f"buffer_store_dwordx4 {vr(PR+4*pc,4)}, v4, s[20:23], s{32+pc} offen {OPT.st3}")
    if prof:
        k.stamp(6); k("s_waitcnt vmcnt(0)"); k.stamp(7); k.dump_stamps(8, 54, 100)
    k(f"{end}:\ns_endpgm")
    return k
```

```python
from common import *
from sched import *
MF = "v_mfma_f32_16x16x32_bf16"

STG = 20480
NSL = 8
NK = 16
def ACC(m, t, tb): return 64 + ((t*2+m)*4+tb)*4
def WF(buf, m, t): return 160 + ((buf*3+t)*2+m)*4
def BF(buf, tb): return 208 + (buf*4+tb)*4
V_DW = 8
V_L16 = 11
V_WA = 16
V_BA = 26
S_G, S_B, S_H = 8, 16, 20
S_WAVE, S_M0, S_M1, S_T0 = 24, 25, 27, 28

def gen_k4(prof=False):
    k = Kern("k4_glu_kernel", 256, 512, NSL*STG, 240, 240, 96 if prof else 64)
    k.prof = prof
    end = "k4_end"
    k(f"s_cmp_ge_u32 s2, 256\ns_cbranch_scc1 {end}")
    k("s_bfe_u32 s4, s2, 0x10002\ns_lshl_b32 s4, s4, 3\ns_bfe_u32 s5, s2, 0x30003\ns_add_u32 s4, s4, s5")
    k("s_and_b32 s5, s2, 3\ns_lshl_b32 s5, s5, 2\ns_lshr_b32 s6, s2, 6\ns_add_u32 s5, s5, s6")
    k(f"s_cmp_eq_u32 s5, 15\ns_cbranch_scc1 {end}")
    k.stamp(0)
    k(f"s_load_dwordx4 s[48:51], s[0:1], {KA_WG}")
    k(f"s_load_dwordx2 s[54:55], s[0:1], {KA_WS}")
    k("v_lshrrev_b32 v1, 6, v0\nv_and_b32 v2, 63, v0")
    k(f"v_readfirstlane_b32 s{S_WAVE}, v1")
    k(f"v_lshlrev_b32 v{V_L16}, 4, v2")
    k(f"s_cmp_lt_u32 s{S_WAVE}, 4\ns_cbranch_scc1 k4_compute")
    if OPT.lprio: k(f"s_setprio {OPT.lprio}")
    k(f"s_and_b32 s{S_WAVE}, s{S_WAVE}, 3")
    k("v_and_b32 v7, 1, v1\nv_lshlrev_b32 v7, 4, v7")
    for p in range(3):
        k(f"v_add_u32 v12, {64*p}, v2")
        k("v_mul_u32_u24 v13, 0x5556, v12\nv_lshrrev_b32 v13, 18, v13")
        k("v_mul_u32_u24 v14, 12, v13\nv_sub_u32 v14, v12, v14")
        k("v_lshrrev_b32 v15, 1, v13\nv_and_b32 v15, 2, v15\nv_xor_b32 v14, v14, v15")
        k("v_add_u32 v13, v13, v7\nv_mul_u32_u24 v13, 2752, v13")
        k(f"v_lshl_add_u32 v{V_DW+p}, v14, 4, v13")
        if p: k(f"v_subrev_u32 v{V_DW+p}, {1024*p}, v{V_DW+p}")
    k(f"s_mul_i32 s{S_M0}, s{S_WAVE}, 3072\ns_lshl_b32 s{S_M1}, s{S_WAVE}, 10\ns_add_u32 s{S_M1}, s{S_M1}, 12288")
    k(f"s_mul_i32 s26, s5, 192\ns_lshl_b32 s32, s4, 3\ns_add_u32 s32, s32, s{S_WAVE}\ns_lshl_b32 s32, s32, 14\ns_add_u32 s32, s32, 0x{WS_H2:x}")
    k("s_waitcnt lgkmcnt(0)")
    k(f"s_cmp_lt_u32 s{S_WAVE}, 2\ns_cselect_b32 s6, s48, s50\ns_cselect_b32 s7, s49, s51")
    k(f"s_add_u32 s{S_G}, s6, s26\ns_addc_u32 s{S_G+1}, s7, 0\ns_sub_u32 s{S_G+2}, {512*2752}, s26\ns_mov_b32 s{S_G+3}, 0x20000")
    k(f"s_add_u32 s{S_B}, s54, s32\ns_addc_u32 s{S_B+1}, s55, 0\ns_mov_b32 s{S_B+2}, {5*16384}\ns_mov_b32 s{S_B+3}, 0x20000")
    def step(j):
        sl = (j % NSL)*STG
        k(f"s_add_u32 m0, s{S_M0}, {sl}\ns_mov_b32 s{S_T0}, {j*32*2752}")
        for p in range(3):
            k.vmop(f"buffer_load_dwordx4 v{V_DW+p}, {sr(S_G,4)}, s{S_T0} offen offset:{p*1024} lds", f"S{j}")
        for p in range(2):
            k(f"s_add_u32 m0, s{S_M1}, {sl + p*4096}\ns_mov_b32 s{S_T0+1}, {p*65536 + j*1024}")
            k.vmop(f"buffer_load_dwordx4 v{V_L16}, {sr(S_B,4)}, s{S_T0+1} offen lds", f"S{j}")
    step(0); step(1)
    k.wait(vm="S0", barrier=True)
    nxt = 2
    for j in range(NK-1):
        for _ in range(2 if j < OPT.ramp4 else 1):
            if nxt < NK and nxt - NSL <= j - 2: step(nxt); nxt += 1
        k.wait(vm=f"S{j+1}", barrier=True)
    assert nxt == NK
    k("s_endpgm")
    k("k4_compute:")
    if OPT.prio: k(f"s_setprio {OPT.prio}")
    k.vm = []
    k("v_lshrrev_b32 v3, 4, v2\nv_and_b32 v4, 15, v2\nv_lshrrev_b32 v5, 2, v4\nv_and_b32 v6, 3, v2")
    k("v_lshl_add_u32 v7, v3, 2, v5\nv_mul_u32_u24 v7, 192, v7\nv_lshl_add_u32 v7, v6, 3, v7\nv_and_b32 v12, 1, v3")
    k("v_lshrrev_b32 v13, 1, v1\nv_mul_u32_u24 v13, 3, v13")
    for t in range(3):
        k(f"v_add_u32 v14, {t}, v13\nv_xor_b32 v14, v14, v12\nv_lshl_add_u32 v{V_WA+t}, v14, 5, v7")
        k(f"v_add_u32 v{V_WA+3+t}, {3*STG}, v{V_WA+t}\nv_add_u32 v{V_WA+6+t}, {6*STG}, v{V_WA+t}")
    k(f"v_and_b32 v13, 1, v1\nv_lshl_add_u32 v{V_BA}, v13, 12, v{V_L16}\nv_add_u32 v{V_BA+1}, {3*STG}, v{V_BA}\nv_add_u32 v{V_BA+2}, {6*STG}, v{V_BA}")
    k(f"s_lshl_b32 s26, s4, 1\ns_and_b32 s6, s{S_WAVE}, 1\ns_add_u32 s26, s26, s6\ns_mul_i32 s6, s26, {4*43*1024}\ns_mul_i32 s7, s5, 3072\ns_add_u32 s6, s6, s7\ns_add_u32 s6, s6, 0x{WS_HF:x}")
    k("s_waitcnt lgkmcnt(0)")
    k(f"s_add_u32 s{S_H}, s54, s6\ns_addc_u32 s{S_H+1}, s55, 0\ns_mov_b32 s{S_H+2}, {3*43*1024+3072}\ns_mov_b32 s{S_H+3}, 0x20000")
    def reads(j):
        sl = j % NSL; bank = sl // 3; off = (sl % 3)*STG
        b = [L(f"ds_read_b128 {vr(BF(j&1,tb),4)}, v{V_BA+bank} offset:{off + 12288 + tb*1024}", f"R{j}_0") for tb in range(4)]
        w = [L(f"ds_read_b64_tr_b16 {vr(WF(j&1,m,t)+2*h,2)}, v{V_WA+3*bank+t} offset:{off + m*6144 + h*3072}", f"R{j}_{t}")
             for t in range(3) for m in range(2) for h in range(2)]
        return b + w
    k("s_barrier")
    k.run(reads(0))
    k.stamp(1)
    for j in range(NK):
        mf = []
        for t in range(3):
            for m in range(2):
                for tb_ in range(4):
                    tb = tb_ if (m == 0 or not OPT.serp) else 3 - tb_
                    d = vr(ACC(m, t, tb), 4)
                    mf.append(f"{MF} {d}, {vr(WF(j&1,m,t),4)}, {vr(BF(j&1,tb),4)}, {d if j else '0'}")
        lds = reads(j+1) if j < NK-1 else []
        gaps = fill(24, lds, [], [], g0=1)
        if j == 0:
            add(gaps, -1, W(lg=f"R{j}_0")); front(gaps, 6, W(lg=f"R{j}_2"))
        else:
            add(gaps, -1, W(lg=f"R{j}_2"))
        if j < NK-1: front(gaps, 0, "s_barrier")
        emit(k, mf, gaps)
    k.stamp(2)
    k(f"s_nop 6\ns_lshr_b32 s6, s{S_WAVE}, 1\ns_cmp_eq_u32 s6, 0\ns_cbranch_scc0 k4_fh1")
    def prod(t, tb, o):
        a = ACC(0, t, tb); b = ACC(1, t, tb)
        for i in range(0, 4, 2): k(f"v_pk_mul_f32 {vr(a+i,2)}, {vr(a+i,2)}, {vr(b+i,2)}")
        k(f"v_cvt_pk_bf16_f32 v{o}, v{a}, v{a+1}\nv_cvt_pk_bf16_f32 v{o+1}, v{a+2}, v{a+3}")
    for fh in range(2):
        if fh: k("k4_fh1:")
        odd = 2 if fh == 0 else 0; t0 = 0 if fh == 0 else 1; unit = 0 if fh == 0 else 2
        keep = (0, 1) if fh == 0 else (2, 3); send = (2, 3) if fh == 0 else (0, 1)
        k(f"v_and_b32 v13, 1, v1\nv_lshl_add_u32 v12, v13, 11, v{V_L16}")
        for i, tb in enumerate(send): prod(odd, tb, 48 + 2*i)
        k(f"ds_write_b128 v12, v[48:51] offset:{fh*1024}")
        for i, tb in enumerate(keep): prod(odd, tb, 52 + 4*i + 2*fh)
        for tb in range(4): k(f"s_mov_b32 s{S_T0+tb}, {tb*43*1024}")
        skip = f"k4_skip{fh}"
        if fh: k(f"s_cmp_eq_u32 s5, 14\ns_cbranch_scc1 {skip}")
        for tb in range(4):
            o = 32 + tb*4
            prod(t0, tb, o); prod(t0+1, tb, o+2)
            k(f"buffer_store_dwordx4 {vr(o,4)}, v{V_L16}, {sr(S_H,4)}, s{S_T0+tb} offen offset:{unit*1024} {OPT.st4}")
        if fh: k(f"{skip}:")
        k("s_waitcnt lgkmcnt(0)\ns_barrier")
        k(f"s_cmp_eq_u32 s5, 14\ns_cbranch_scc1 k4_done")
        for i in range(2): k(f"ds_read_b64 {vr(52 + 4*i + 2*(1-fh),2)}, v12 offset:{(1-fh)*1024 + 8*i}")
        k("s_waitcnt lgkmcnt(0)")
        for i, tb in enumerate(keep):
            k(f"buffer_store_dwordx4 {vr(52+4*i,4)}, v{V_L16}, {sr(S_H,4)}, s{S_T0+tb} offen offset:1024 {OPT.st4}")
        if not fh: k("s_branch k4_done")
    k("k4_done:")
    if prof:
        k.stamp(3); k("s_waitcnt vmcnt(0)"); k.stamp(4); k.dump_stamps(5, 54, 100)
    k(f"{end}:\ns_endpgm")
    return k
```

```python
def add(gaps, g, *items):
    gaps.setdefault(g, []).extend(items)

def fill(n, lds=(), valu=(), vm=(), g0=1, lds_end=None, valu_end=None, vm_pos=None, pair_lds=False):
    gaps = {}
    lds = list(lds); valu = list(valu); vm = list(vm)
    used = {g: 0 for g in range(n)}
    if vm:
        if vm_pos is None:
            span = n - g0
            vm_pos = [g0 + (2*i+1)*span//(2*len(vm)) for i in range(len(vm))]
        for g, grp in zip(vm_pos, vm):
            add(gaps, g, *grp); used[g] += 8
    g = g0
    while lds:
        assert g < n, "lds overflow"
        if used[g] == 0:
            add(gaps, g, lds.pop(0)); used[g] += 4
            if pair_lds and lds:
                add(gaps, g, lds.pop(0)); used[g] += 4
        g += 1
    ve = valu_end if valu_end is not None else n
    cnt = {g: 0 for g in range(n)}
    left = len(valu); cap = 8
    while left:
        cand = [g for g in range(g0, ve) if used[g] + 4 <= cap]
        if not cand:
            cap += 4; continue
        if len(cand) > left:
            cand = [cand[(2*i+1)*len(cand)//(2*left)] for i in range(left)]
        for g in cand:
            used[g] += 4; cnt[g] += 1; left -= 1
    for g in range(n):
        for _ in range(cnt[g]): add(gaps, g, valu.pop(0))
    return gaps

def L(text, tag): return lambda kk: kk.lgop(text, tag)
def V(text, tag): return lambda kk: kk.vmop(text, tag)
def W(**kw): return lambda kk: kk.wait(**kw)
def front(gaps, g, *items):
    gaps.setdefault(g, [])[0:0] = list(items)
def emit(k, mf, gaps):
    k.run(gaps.get(-1, []))
    for i, m in enumerate(mf):
        k(m); k.run(gaps.get(i, []))
    for g in gaps: assert g < len(mf), (g, len(mf))

class It:
    def __init__(self, text, cost=1, needs=None, gives=None, n=1):
        self.text = text; self.cost = cost; self.needs = needs or {}; self.gives = gives; self.n = n

def merge(k, mq, vq, side=(), done=None, budget=2):
    mq = list(mq); vq = list(vq); side = list(side)
    pos = 0; when = dict(done or {})
    def ready(it): return all(t in when and pos - when[t] > d for t, d in it.needs.items())
    def put(it):
        nonlocal pos
        n0 = len(k.L)
        it.text(k) if callable(it.text) else k(it.text)
        pos += len(k.L) - n0
        if it.gives:
            for g in (it.gives if isinstance(it.gives, (list, tuple)) else [it.gives]): when[g] = pos - 1
    while mq or vq or side:
        prog = False
        left = budget(when) if callable(budget) else budget
        if mq and ready(mq[0]):
            put(mq.pop(0)); prog = True
        if side and ready(side[0]):
            it = side.pop(0); put(it); left -= it.cost; prog = True
        while vq and ready(vq[0]) and (left >= vq[0].cost or (left > 0 and not mq) or not (mq and ready(mq[0]))):
            it = vq.pop(0); put(it); left -= it.cost; prog = True
            if mq and ready(mq[0]) and left <= 0: break
            if left <= -2 and side and ready(side[0]): break
        if not prog:
            pend = [x for q in (mq, vq, side) for x in q[:1]]
            assert any(all(t in when for t in it.needs) for it in pend), "deadlock: %s" % [(it.text, it.needs) for it in pend]
            k("s_nop 0"); pos += 1
    return when
```

```python
from common import *

C1 = math.log2(math.e) / math.sqrt(128.0)

def round_bf16(k, v, tmp):
    k(f"v_cvt_pk_bf16_f32 v{tmp}, v{v}, v{v}")
    k(f"v_and_b32 v{v}, 0xffff0000, v{tmp}")

def gen_k0(prof=False):
    k = Kern("k0_prep_kernel", 256, 512, 2048, 64, 64, 96 if prof else 48)
    k.prof = prof
    end = "k0_end"
    k(f"s_cmp_ge_u32 s2, 256\ns_cbranch_scc1 {end}")
    k.stamp(0)
    k.dbg_begin(0)
    k(f"s_load_dwordx2 s[4:5], s[0:1], {KA_X}")
    k(f"s_load_dwordx4 s[8:11], s[0:1], {KA_C}")
    k(f"s_load_dwordx2 s[6:7], s[0:1], {KA_WS}")
    k(f"s_load_dwordx2 s[28:29], s[0:1], {KA_WQ}")
    k("v_lshrrev_b32 v1, 6, v0\nv_and_b32 v2, 63, v0")
    k("v_readfirstlane_b32 s24, v1")
    k("s_cmp_ge_u32 s24, 4\ns_cbranch_scc1 k0_mod")
    k("v_lshrrev_b32 v3, 5, v0\nv_and_b32 v4, 31, v0")
    k("v_lshlrev_b32 v5, 10, v3\nv_lshl_add_u32 v5, v4, 4, v5\ns_lshl_b32 s3, s2, 13")
    k("v_lshlrev_b32 v6, 8, v4\nv_lshl_add_u32 v6, v3, 4, v6")
    k("s_lshr_b32 s25, s2, 1\ns_lshl_b32 s25, s25, 14\ns_and_b32 s26, s2, 1\ns_lshl_b32 s26, s26, 7\ns_add_u32 s25, s25, s26\ns_add_u32 s26, s25, 8192")
    k("s_waitcnt lgkmcnt(0)")
    k.srd(12, 4, 2048*512*2)
    for j in range(2):
        k(f"buffer_load_dwordx4 v[{8+4*j}:{11+4*j}], v5, s[12:15], s3 offen offset:{512*j} {OPT.xnt}")
    k.srd(16, 6, 2048*512*2, WS_XH)
    k.srd(20, 6, 3*32768, WS_FLAG)
    k("v_lshlrev_b32 v40, 2, v0\nv_mov_b32 v41, 0\ns_lshl_b32 s27, s2, 10")
    k("buffer_store_dword v41, v40, s[20:23], s27 offen")
    E = 16; T = 32
    def rowsum(r):
        for sh in (8, 4, 2, 1):
            k(f"s_nop 1\nv_add_f32 v{r}, v{r}, v{r} row_ror:{sh}")
        k(f"v_mov_b32 v{r+1}, v{r}\ns_nop 1\nv_permlane16_swap_b32 v{r+1}, v{r}\ns_nop 1\nv_add_f32 v{r}, v{r}, v{r+1}")
    for j in range(2):
        k(f"s_waitcnt vmcnt({2-j})")
        for d in range(4):
            k(f"v_lshlrev_b32 v{E+8*j+2*d}, 16, v{8+4*j+d}\nv_and_b32 v{E+8*j+2*d+1}, 0xffff0000, v{8+4*j+d}")
    for i in range(4): k(f"v_pk_add_f32 {vr(T+2*i,2)}, {vr(E+2*i,2)}, {vr(E+8+2*i,2)}")
    for i in range(2): k(f"v_pk_add_f32 {vr(T+2*i,2)}, {vr(T+2*i,2)}, {vr(T+4+2*i,2)}")
    k(f"v_pk_add_f32 {vr(T,2)}, {vr(T,2)}, {vr(T+2,2)}\nv_add_f32 v{T}, v{T}, v{T+1}")
    rowsum(T)
    k(f"v_mul_f32 v{T+2}, {hexf(-1/512)}, v{T}")
    for i in range(8): k(f"v_pk_add_f32 {vr(E+2*i,2)}, {vr(E+2*i,2)}, {vr(T+2,2)} op_sel_hi:[1,0]")
    for i in range(2): k(f"v_pk_mul_f32 {vr(T+2*i,2)}, {vr(E+2*i,2)}, {vr(E+2*i,2)}")
    for i in range(2, 8): k(f"v_pk_fma_f32 {vr(T+2*(i&1),2)}, {vr(E+2*i,2)}, {vr(E+2*i,2)}, {vr(T+2*(i&1),2)}")
    k(f"v_pk_add_f32 {vr(T,2)}, {vr(T,2)}, {vr(T+2,2)}\nv_add_f32 v{T}, v{T}, v{T+1}")
    rowsum(T)
    k(f"v_mov_b32 v{T+2}, {hexf(1e-5)}\nv_fmac_f32 v{T+2}, {hexf(1/512)}, v{T}\nv_rsq_f32 v{T+2}, v{T+2}\ns_nop 0")
    for i in range(8): k(f"v_pk_mul_f32 {vr(E+2*i,2)}, {vr(E+2*i,2)}, {vr(T+2,2)} op_sel_hi:[1,0]")
    for d in range(8): k(f"v_cvt_pk_f16_f32 v{8+d}, v{E+2*d}, v{E+2*d+1}")
    k(f"buffer_store_dwordx4 v[8:11], v6, s[16:19], s25 offen {OPT.st0}")
    k(f"buffer_store_dwordx4 v[12:15], v6, s[16:19], s26 offen {OPT.st0}")
    k.dbg_mark(0, 60, 61, True); k.dbg_mark(1, 62, 63)
    k("s_branch k0_fin" if prof else "s_endpgm")
    k("k0_mod:")
    k("s_cmp_ge_u32 s2, 192\ns_cbranch_scc1 k0_pf")
    k("s_mul_i32 s25, s2, 0x556\ns_lshr_b32 s25, s25, 16\ns_mul_i32 s26, s25, 48\ns_sub_u32 s26, s2, s26")
    k("v_and_b32 v3, 255, v0\nv_lshrrev_b32 v4, 3, v3\nv_and_b32 v5, 7, v3")
    k("v_mul_u32_u24 v6, 6144, v4\nv_lshl_add_u32 v6, v5, 4, v6\nv_lshlrev_b32 v7, 1, v4")
    k(f"s_mul_i32 s3, s25, {128*6144}\ns_lshl_b32 s27, s26, 7\ns_add_u32 s3, s3, s27\ns_lshl_b32 s27, s25, 8")
    k("s_waitcnt lgkmcnt(0)")
    k.srd(16, 10, 512*3072*2)
    k.srd(12, 8, 1024)
    for i in range(4):
        k(f"buffer_load_ushort v{8+i}, v7, s[12:15], s27 offen offset:{64*i}")
    for i in range(4):
        k(f"buffer_load_dwordx4 v[{16+4*i}:{19+4*i}], v6, s[16:19], s3 offen nt")
        if i < 3: k(f"s_add_u32 s3, s3, {32*6144}")
    k.srd(20, 6, 4*3072*4, WS_MODP)
    npf = 0
    if OPT.wqpf >= 2:
        npf = 1
        k.srd(32, 28, 512*8192)
        k("s_cmp_eq_u32 s24, 5\ns_cselect_b32 s34, s34, 0")
        k("v_lshrrev_b32 v56, 4, v2\nv_lshlrev_b32 v56, 13, v56\nv_bfe_u32 v57, v2, 1, 3\nv_lshl_add_u32 v56, v57, 10, v56\nv_and_b32 v57, 1, v2\nv_lshl_add_u32 v56, v57, 7, v56")
        k("s_lshr_b32 s37, s2, 3\ns_add_u32 s37, s37, 22\ns_lshl_b32 s37, s37, 15\ns_and_b32 s38, s2, 3\ns_lshl_b32 s38, s38, 8\ns_add_u32 s37, s37, s38")
        k("buffer_load_dword v57, v56, s[32:35], s37 offen nt")
    k(f"s_waitcnt vmcnt({4+npf})")
    for i in range(4): k(f"v_lshlrev_b32 v{8+i}, 16, v{8+i}")
    for i in range(4): k(f"v_mul_f32 v{12+i}, {hexf(-math.log2(math.e))}, v{8+i}")
    for i in range(4): k(f"v_exp_f32 v{12+i}, v{12+i}")
    k("s_nop 0")
    for i in range(4): k(f"v_add_f32 v{12+i}, 1.0, v{12+i}")
    for i in range(4): k(f"v_rcp_f32 v{12+i}, v{12+i}")
    k("s_nop 0")
    for i in range(4): k(f"v_mul_f32 v{8+i}, v{8+i}, v{12+i}")
    for i in range(4):
        k(f"v_cvt_pk_bf16_f32 v{12+i}, v{8+i}, v{8+i}")
    for i in range(4):
        k(f"v_and_b32 v{48+2*i}, 0xffff0000, v{12+i}")
    A = 32
    for i in range(4):
        k(f"s_waitcnt vmcnt({3-i+npf})")
        for d in range(4):
            w = 16+4*i+d; t = 40 + 2*(d & 1)*2
            k(f"v_lshlrev_b32 v{t}, 16, v{w}\nv_and_b32 v{t+1}, 0xffff0000, v{w}")
            if i == 0: k(f"v_pk_mul_f32 {vr(A+2*d,2)}, {vr(t,2)}, {vr(48+2*i,2)} op_sel_hi:[1,0]")
            else: k(f"v_pk_fma_f32 {vr(A+2*d,2)}, {vr(t,2)}, {vr(48+2*i,2)}, {vr(A+2*d,2)} op_sel_hi:[1,0,1]")
    k("s_nop 1")
    for e in range(8): k(f"v_add_f32 v{A+e}, v{A+e}, v{A+e} row_ror:8")
    k("s_nop 1")
    for e in range(4): k(f"v_permlane16_swap_b32 v{A+e}, v{A+4+e}")
    k("s_nop 1")
    for e in range(4): k(f"v_add_f32 v{A+e}, v{A+e}, v{A+4+e}")
    k("s_nop 1")
    for e in range(2): k(f"v_permlane32_swap_b32 v{A+e}, v{A+2+e}")
    k("s_nop 1")
    for e in range(2): k(f"v_add_f32 v{A+e}, v{A+e}, v{A+2+e}")
    k("v_lshlrev_b32 v8, 5, v5\nv_and_b32 v9, 16, v2\nv_add_u32 v8, v8, v9\nv_lshrrev_b32 v9, 2, v2\nv_and_b32 v9, 8, v9\nv_add_u32 v8, v8, v9")
    k("v_and_b32 v9, 3, v1\nv_lshl_add_u32 v8, v9, 8, v8")
    k(f"ds_write_b64 v8, {vr(A,2)}")
    k("s_waitcnt lgkmcnt(0)\ns_barrier")
    k(f"s_cmp_lg_u32 s24, 4\ns_cbranch_scc1 {'k0_fin' if prof else end}")
    k("v_lshlrev_b32 v8, 2, v2")
    for i in range(4): k(f"ds_read_b32 v{16+i}, v8 offset:{256*i}")
    k(f"s_mul_i32 s3, s25, {3072*4}\ns_lshl_b32 s27, s26, 8\ns_add_u32 s3, s3, s27")
    k("s_waitcnt lgkmcnt(0)")
    k("v_add_f32 v16, v16, v17\nv_add_f32 v18, v18, v19\nv_add_f32 v16, v16, v18")
    k(f"buffer_store_dword v16, v8, s[20:23], s3 offen {OPT.st0}")
    k.dbg_mark(2, 62, 63)
    k("s_branch k0_fin" if prof else "s_endpgm")
    k("k0_pf:")
    k("s_bfe_u32 s38, s2, 0x30003\ns_lshl_b32 s38, s38, 2\ns_and_b32 s37, s24, 3\ns_add_u32 s37, s37, s38")
    k("s_waitcnt lgkmcnt(0)")
    k("s_cmp_ge_u32 s37, 10\ns_cbranch_scc1 k0_pfw")
    k.code_pf("k1_attn_kernel", "code_end_marker", 4, 40, 37)
    k("s_branch k0_fin" if prof else "s_endpgm")
    k("k0_pfw:")
    k.srd(32, 28, 512*8192 if OPT.wqpf else 0)
    k("v_lshrrev_b32 v4, 4, v2\nv_lshlrev_b32 v4, 13, v4\nv_bfe_u32 v5, v2, 1, 3\nv_lshl_add_u32 v4, v5, 10, v4\nv_and_b32 v5, 1, v2\nv_lshl_add_u32 v4, v5, 7, v4")
    k("s_sub_u32 s37, s37, 10\ns_lshl_b32 s37, s37, 15\ns_and_b32 s38, s2, 3\ns_lshl_b32 s38, s38, 8\ns_add_u32 s37, s37, s38")
    k("buffer_load_dword v6, v4, s[32:35], s37 offen nt")
    k("k0_fin:")
    if prof:
        k.stamp(1); k("s_waitcnt vmcnt(0)"); k.stamp(2)
        k("v_and_b32 v0, 0xff, v0\ns_cmp_lt_u32 s24, 2\ns_cbranch_scc1 k0_dump\ns_cmp_eq_u32 s24, 4\ns_cbranch_scc0 k0_end\nv_add_u32 v0, 128, v0")
        k("k0_dump:")
        k.dump_stamps(3, 6, 56)
    k(f"{end}:")
    k("s_endpgm")
    return k

def mod_loads(k, srd, voff, st, R, base, tag=None):
    for i in range(4):
        if isinstance(base, int): k(f"s_mov_b32 s{st+i}, {base + i*12288}")
        else: k(f"s_add_u32 s{st+i}, {base}, {i*12288}")
        t = f"buffer_load_dwordx4 {vr(R+4*i,4)}, v{voff}, {sr(srd,4)}, s{st+i} offen"
        k.vmop(t, tag) if tag else k(t)

def mod_finish(k, R, s_add, mul=None):
    for h in range(2):
        k(f"v_pk_add_f32 {vr(R+2*h,2)}, {vr(R+2*h,2)}, {vr(R+4+2*h,2)}\nv_pk_add_f32 {vr(R+8+2*h,2)}, {vr(R+8+2*h,2)}, {vr(R+12+2*h,2)}")
    for h in range(2): k(f"v_pk_add_f32 {vr(R+2*h,2)}, {vr(R+2*h,2)}, {vr(R+8+2*h,2)}")
    for rep in range(2):
        for h in range(2): k(f"v_cvt_pk_bf16_f32 v{R+4+h}, v{R+2*h}, v{R+2*h+1}")
        for h in range(2): k(f"v_lshlrev_b32 v{R+2*h}, 16, v{R+4+h}\nv_and_b32 v{R+2*h+1}, 0xffff0000, v{R+4+h}")
        if rep == 0:
            for i in range(4): k(f"v_add_f32 v{R+i}, s{s_add}, v{R+i}")
    if mul is not None:
        for i in range(4): k(f"v_mul_f32 v{R+i}, {hexf(mul)}, v{R+i}")
```

```python
from common import *
from sched import *
from k0 import mod_loads, mod_finish
MF = "v_mfma_f32_16x16x32_bf16"

TOP = 147456
SCR = TOP + 8192
S_WAVE, S_TT, S_M = 3, 4, 5
S_A, S_B, S_C, S_D, S_E, S_FL = 8, 12, 16, 20, 24, 28
S_W1, S_X0, S_T0 = 32, 33, 36
V_L16 = 10

def handoff_signal(k, ph):
    lab = f"kt_h{ph}"
    k("s_waitcnt vmcnt(0)\ns_barrier")
    k(f"s_lshl_b32 s6, s{S_TT}, 8\ns_add_u32 s6, s6, {ph*4096}")
    k(f"s_cmp_eq_u32 s{S_WAVE}, 1\ns_cbranch_scc0 {lab}_a")
    k(f"v_mov_b32 v12, 1\ns_lshl_b32 s7, s{S_M}, 2\nv_mov_b32 v13, s7\ns_mov_b64 exec, 1")
    k(f"buffer_store_dword v12, v13, {sr(S_FL,4)}, s6 offen sc1\ns_mov_b64 exec, -1")
    k(f"{lab}_a:")
    k(f"s_cmp_eq_u32 s{S_WAVE}, 0\ns_cbranch_scc0 {lab}_c")
    k("v_and_b32 v13, 15, v0\nv_lshlrev_b32 v13, 2, v13\ns_mov_b32 s7, 0")
    NP = OPT.npoll
    R = [248, 249, 250, 251][:NP]
    for r in R[:-1]: k(f"buffer_load_dword v{r}, v13, {sr(S_FL,4)}, s6 offen sc1\ns_sleep {OPT.psleep}")
    k(f"{lab}_b:")
    for i in range(NP):
        k(f"buffer_load_dword v{R[i-1]}, v13, {sr(S_FL,4)}, s6 offen sc1\ns_waitcnt vmcnt({NP-1})\nv_cmp_ne_u32 vcc, 1, v{R[i]}")
        k(f"s_cbranch_vccz {lab}_d")
    k(f"s_add_u32 s7, s7, 1\ns_cmp_lt_u32 s7, 0x10000\ns_cbranch_scc1 {lab}_b")
    k(f"{lab}_d:")
    k(f"{lab}_c:")
    k("s_barrier")


def gen_kt(prof=False):
    k = Kern("k2_tail_kernel", 256, 512, 160*1024, 256, 256, 96 if prof else 64)
    k.prof = prof
    end = "kt_end"
    k(f"s_cmp_ge_u32 s2, 256\ns_cbranch_scc1 {end}")
    k.stamp(0)
    k(f"s_load_dwordx2 s[52:53], s[0:1], {KA_WO}")
    k(f"s_load_dwordx2 s[54:55], s[0:1], {KA_WS}")
    k(f"s_load_dwordx4 s[48:51], s[0:1], {KA_WG}")
    k(f"s_load_dwordx2 s[56:57], s[0:1], {KA_WD}")
    k(f"s_load_dwordx2 s[58:59], s[0:1], {KA_OUT}")
    k(f"s_load_dwordx2 s[46:47], s[0:1], {KA_X}")
    k("v_lshrrev_b32 v1, 6, v0\nv_and_b32 v2, 63, v0")
    k(f"v_readfirstlane_b32 s{S_WAVE}, v1")
    k(f"s_bfe_u32 s{S_TT}, s2, 0x10002\ns_lshl_b32 s{S_TT}, s{S_TT}, 3\ns_bfe_u32 s6, s2, 0x30003\ns_add_u32 s{S_TT}, s{S_TT}, s6")
    k(f"s_and_b32 s{S_M}, s2, 3\ns_lshl_b32 s{S_M}, s{S_M}, 2\ns_lshr_b32 s6, s2, 6\ns_add_u32 s{S_M}, s{S_M}, s6")
    k("v_lshrrev_b32 v3, 4, v2\nv_and_b32 v4, 15, v2")
    k(f"v_lshlrev_b32 v{V_L16}, 4, v2")
    k(f"s_cmp_lt_u32 s{S_WAVE}, 4\ns_cbranch_scc1 kt_compute")

    A_STG, A_NSL, A_NK = 16384, 8, 32
    C_W, C_NW, C_B, C_NB, C_NK = 12288, OPT.cnw, 8192, OPT.cnb, 16
    C_BB = C_W*C_NW
    assert C_BB + C_B*C_NB <= TOP
    D_W, D_NW, D_B, D_NB, D_NK, D_NS = 8192, OPT.dnw, 8192, OPT.dnb, 43, 22
    D_BB = D_W*D_NW
    assert D_BB + D_B*D_NB <= TOP

    k(f"v_and_b32 v1, 3, v1\ns_and_b32 s{S_WAVE}, s{S_WAVE}, 3\ns_lshl_b32 s{S_W1}, s{S_WAVE}, 10")
    V_DA, V_DC, V_DD = 16, 17, 20
    k("v_lshl_add_u32 v7, v1, 2, v3\nv_and_b32 v11, 7, v7\nv_lshlrev_b32 v11, 1, v11\nv_xor_b32 v11, v11, v4\nv_lshlrev_b32 v7, 10, v7")
    k(f"v_lshl_add_u32 v{V_DA}, v11, 4, v7")
    k(f"s_lshr_b32 s6, s{S_M}, 2\ns_lshl_b32 s7, s6, 17\ns_and_b32 s33, s{S_M}, 3\ns_lshl_b32 s33, s33, 8\ns_add_u32 s7, s7, s33")
    k(f"s_lshl_b32 s33, s{S_TT}, 3\ns_add_u32 s33, s33, s{S_WAVE}")
    k(f"s_lshl_b32 s34, s33, 17\ns_lshl_b32 s6, s6, 12\ns_add_u32 s34, s34, s6\ns_add_u32 s34, s34, 0x{WS_OF:x}")
    k("s_waitcnt lgkmcnt(0)")
    k(f"s_add_u32 s{S_A}, s52, s7\ns_addc_u32 s{S_A+1}, s53, 0\ns_sub_u32 s{S_A+2}, {4096*1024}, s7\ns_mov_b32 s{S_A+3}, 0x20000")
    k(f"s_add_u32 s{S_B}, s54, s34\ns_addc_u32 s{S_B+1}, s55, 0\ns_mov_b32 s{S_B+2}, {5*131072}\ns_mov_b32 s{S_B+3}, 0x20000")
    def a_step(j):
        for p in range(2):
            k(f"s_add_u32 m0, s{S_W1}, {(j % A_NSL)*A_STG + p*4096}\ns_mov_b32 s{S_T0}, {((j>>2)*512 + (j&3)*32 + p*16)*1024}")
            k.vmop(f"buffer_load_dwordx4 v{V_DA}, {sr(S_A,4)}, s{S_T0} offen lds", f"S{j}")
            k(f"s_add_u32 m0, s{S_W1}, {(j % A_NSL)*A_STG + 8192 + p*4096}\ns_mov_b32 s{S_T0+1}, {p*4*131072 + (j>>2)*16384 + (j&3)*1024}")
            k.vmop(f"buffer_load_dwordx4 v{V_L16}, {sr(S_B,4)}, s{S_T0+1} offen {OPT.ont} lds", f"S{j}")
    a_step(0); a_step(1)
    k.wait(vm="S0", barrier=True)
    a_step(2); a_step(3)
    k.wait(vm="S1", barrier=True)
    nxt = 4
    for j in range(1, A_NK-1, 2):
        for _ in range(2):
            if nxt < A_NK: a_step(nxt); nxt += 1
        if j == A_NK-3:
            k.srd(S_E, 54, 4*12288, WS_MODP)
            k("v_and_b32 v30, 255, v0\nv_lshlrev_b32 v30, 4, v30")
            mod_loads(k, S_E, 30, S_T0, 32, 4096, "M0")
            mod_loads(k, S_E, 30, S_T0+4, 48, 8192, "M1")
        k.wait(vm=f"S{j+2}", barrier=True)
    k("v_and_b32 v7, 1, v1\nv_lshlrev_b32 v7, 4, v7")
    for p in range(3):
        k(f"v_add_u32 v12, {64*p}, v2")
        k("v_mul_u32_u24 v13, 0x5556, v12\nv_lshrrev_b32 v13, 18, v13")
        k("v_mul_u32_u24 v14, 12, v13\nv_sub_u32 v14, v12, v14")
        k("v_lshrrev_b32 v15, 1, v13\nv_and_b32 v15, 2, v15\nv_xor_b32 v14, v14, v15")
        k("v_add_u32 v13, v13, v7\nv_mul_u32_u24 v13, 2752, v13")
        k(f"v_lshl_add_u32 v{V_DC+p}, v14, 4, v13")
        if p: k(f"v_subrev_u32 v{V_DC+p}, {1024*p}, v{V_DC+p}")
    k("v_lshrrev_b32 v7, 3, v2\nv_and_b32 v12, 7, v2\nv_lshlrev_b32 v11, 1, v7\nv_and_b32 v11, 4, v11\nv_xor_b32 v12, v12, v11")
    k(f"v_lshlrev_b32 v7, 10, v7\nv_lshl_add_u32 v{V_DD}, v12, 4, v7")
    k(f"s_mul_i32 s35, s{S_WAVE}, 3072\ns_mul_i32 s7, s{S_M}, 192")
    k(f"s_cmp_lt_u32 s{S_WAVE}, 2\ns_cselect_b64 s[{S_A}:{S_A+1}], s[48:49], s[50:51]")
    k(f"s_add_u32 s{S_A}, s{S_A}, s7\ns_addc_u32 s{S_A+1}, s{S_A+1}, 0\ns_sub_u32 s{S_A+2}, {512*2752}, s7")
    k(f"s_lshl_b32 s34, s33, 14\ns_add_u32 s34, s34, 0x{WS_H2:x}")
    k(f"s_add_u32 s{S_B}, s54, s34\ns_addc_u32 s{S_B+1}, s55, 0\ns_mov_b32 s{S_B+2}, {5*16384}")
    k(f"s_and_b32 s6, s{S_M}, 7\ns_lshl_b32 s6, s6, 7\ns_lshl_b32 s7, s{S_WAVE}, 13\ns_add_u32 s6, s6, s7")
    k(f"s_add_u32 s{S_C}, s56, s6\ns_addc_u32 s{S_C+1}, s57, 0\ns_sub_u32 s{S_C+2}, {1376*1024}, s6\ns_mov_b32 s{S_C+3}, 0x20000")
    k(f"s_lshr_b32 s6, s{S_M}, 3\ns_lshl_b32 s6, s6, 2\ns_add_u32 s6, s6, s33\ns_mul_i32 s6, s6, {43*1024}\ns_add_u32 s6, s6, 0x{WS_HF:x}")
    k(f"s_add_u32 s{S_D}, s54, s6\ns_addc_u32 s{S_D+1}, s55, 0\ns_mov_b32 s{S_D+2}, {43*1024}\ns_mov_b32 s{S_D+3}, 0x20000")
    k(f"s_mov_b32 s6, 0\ns_cmp_lt_u32 s{S_WAVE}, 2\ns_cselect_b32 s7, 1.0, 0\nv_add_u32 v30, {TOP}, v30")
    k.wait(vm="M1")
    mod_finish(k, 32, 6); mod_finish(k, 48, 7)
    k("ds_write_b128 v30, v[32:35]\nds_write_b128 v30, v[48:51] offset:4096\ns_waitcnt lgkmcnt(0)")
    def c_w(j):
        k(f"s_add_u32 m0, s35, {(j % C_NW)*C_W}\ns_mov_b32 s{S_T0}, {j*32*2752}")
        for p in range(3): k.vmop(f"buffer_load_dwordx4 v{V_DC+p}, {sr(S_A,4)}, s{S_T0} offen offset:{p*1024} lds", f"CW{j}")
    def c_b(j):
        for p in range(2):
            k(f"s_add_u32 m0, s{S_W1}, {C_BB + (j % C_NB)*C_B + p*4096}\ns_mov_b32 s{S_T0+1}, {p*65536 + j*1024}")
            k.vmop(f"buffer_load_dwordx4 v{V_L16}, {sr(S_B,4)}, s{S_T0+1} offen sc1 lds", f"CB{j}")
    def d_w(g):
        for i in range(2):
            j = 2*g + i
            if j >= D_NK: break
            k(f"s_add_u32 m0, s{S_W1}, {(g % D_NW)*D_W + i*4096}\ns_mov_b32 s{S_T0}, {j*32*1024}")
            k.vmop(f"buffer_load_dwordx4 v{V_DD}, {sr(S_C,4)}, s{S_T0} offen lds", f"DW{g}")
    def d_b(g):
        for i in range(2):
            j = 2*g + i
            if j >= D_NK: break
            k(f"s_add_u32 m0, s{S_W1}, {D_BB + (g % D_NB)*D_B + i*4096}\ns_mov_b32 s{S_T0+1}, {j*1024}")
            k.vmop(f"buffer_load_dwordx4 v{V_L16}, {sr(S_D,4)}, s{S_T0+1} offen sc1 lds", f"DB{g}")
    def ring(n, nw, nb, fw, fb, tw, tb, lag=1):
        nB = min(nb, n); nW = min(nw, n)
        for j in range(nB): fb(j)
        k.wait(vm=f"{tb}0", barrier=True)
        for j in range(n-1):
            order = []
            if nB < n and nB - nb <= j - lag: order.append('B')
            if nW < n and nW - nw <= j - 2: order.append('W')
            for o in order:
                if o == 'B': fb(nB); nB += 1
                else: fw(nW); nW += 1
            assert nB > j + 1 and nW > j + 1, (j, nB, nW)
            k.wait(vm=f"{tw}{j+1}"); k.wait(vm=f"{tb}{j+1}", barrier=True)
    pre = [int(c) for c in OPT.cpre]
    assert sum(pre) == C_NW and pre[0] <= 6
    k(f"s_cmp_eq_u32 s{S_M}, 15\ns_cbranch_scc1 kt_l15")
    nw_ = 0
    for n_ in pre:
        for _ in range(n_): c_w(nw_); nw_ += 1
        k("s_barrier")
    ring(C_NK, C_NW, C_NB, c_w, c_b, "CW", "CB")
    k("s_barrier")
    k("s_branch kt_l_d")
    k("kt_l15:")
    k("s_barrier\ns_barrier\ns_barrier\ns_barrier\ns_barrier\ns_barrier")
    k("kt_l_d:")
    k.vm = []
    for g in range(OPT.dpre): d_w(g)
    k("s_barrier")
    for g in range(OPT.dpre, D_NW): d_w(g)
    k("s_barrier")
    ring(D_NS, D_NW, D_NB, d_w, d_b, "DW", "DB", 2)
    k("s_endpgm")

    k("kt_compute:")
    k.vm = []
    k("v_lshrrev_b32 v5, 2, v4\nv_and_b32 v6, 3, v2")
    ACC = lambda t, tb: 64 + (t*4+tb)*4
    WF = lambda buf, t: 128 + (buf*4+t)*4
    BF = lambda buf, tb: 160 + (buf*4+tb)*4
    V_WA, V_BA = 16, 24
    k("v_lshl_add_u32 v7, v3, 2, v5\nv_and_b32 v11, 7, v7\nv_lshlrev_b32 v7, 8, v7\nv_lshl_add_u32 v7, v6, 3, v7")
    k("v_lshlrev_b32 v13, 1, v1\nv_and_b32 v13, 4, v13\nv_xor_b32 v11, v11, v13")
    for t in range(4):
        k(f"v_xor_b32 v12, {t}, v11\nv_lshl_add_u32 v{V_WA+t}, v12, 5, v7\nv_add_u32 v{V_WA+4+t}, 0x10000, v{V_WA+t}")
    k(f"v_and_b32 v13, 1, v1\nv_lshl_add_u32 v{V_BA}, v13, 12, v{V_L16}\nv_add_u32 v{V_BA+1}, 0x10000, v{V_BA}")
    k(f"s_lshr_b32 s7, s{S_M}, 2\ns_lshl_b32 s7, s7, 21\ns_lshl_b32 s6, s{S_TT}, 17\ns_add_u32 s7, s7, s6\ns_and_b32 s6, s{S_M}, 3\ns_lshl_b32 s6, s6, 12\ns_add_u32 s7, s7, s6")
    k(f"s_and_b32 s6, s{S_WAVE}, 1\ns_lshl_b32 s6, s6, 16\ns_add_u32 s7, s7, s6\ns_lshr_b32 s6, s{S_WAVE}, 1\ns_lshl_b32 s6, s6, 11\ns_add_u32 s7, s7, s6\ns_add_u32 s7, s7, 0x{WS_PART:x}")
    VB4, VB5, VB6, VB7, VB8 = 26, 27, 28, 29, 30
    k("v_and_b32 v12, 7, v0\nv_bfe_u32 v13, v0, 3, 2\nv_lshrrev_b32 v14, 5, v0")
    k(f"v_lshlrev_b32 v{VB4}, 10, v14\nv_lshl_add_u32 v{VB4}, v13, 8, v{VB4}\nv_lshl_add_u32 v{VB4}, v12, 4, v{VB4}")
    k(f"v_lshlrev_b32 v{VB5}, 10, v12\nv_lshl_add_u32 v{VB5}, v14, 6, v{VB5}\nv_lshl_add_u32 v{VB5}, v13, 3, v{VB5}")
    k(f"v_lshlrev_b32 v{VB6}, 7, v14\nv_lshl_add_u32 v{VB6}, v13, 4, v{VB6}\nv_add_u32 v{VB6}, {TOP}, v{VB6}")
    k(f"v_lshlrev_b32 v{VB7}, 4, v12\nv_add_u32 v{VB7}, {SCR}, v{VB7}\nv_lshl_add_u32 v{VB8}, v1, 2, v{VB7}")
    k(f"s_lshl_b32 s33, s{S_TT}, 4\ns_add_u32 s33, s33, s{S_M}\ns_lshr_b32 s34, s33, 1\ns_lshl_b32 s34, s34, 14\ns_and_b32 s6, s33, 1\ns_lshl_b32 s6, s6, 7\ns_add_u32 s34, s34, s6\ns_lshl_b32 s33, s33, 13")
    k("s_waitcnt lgkmcnt(0)")
    k(f"s_add_u32 s{S_A}, s54, s7\ns_addc_u32 s{S_A+1}, s55, 0\ns_mov_b32 s{S_A+2}, {3*16384+2048}\ns_mov_b32 s{S_A+3}, 0x20000")
    k.srd(S_FL, 54, 3*4096, WS_FLAG)
    k.srd(S_B, 46, 2048*1024)
    k.srd(S_C, 54, 4*2048*1024, WS_PART)
    k.srd(S_D, 54, 2048*1024, WS_H2)
    k.srd(S_E, 54, 2048*1024, WS_X1)
    def a_reads(j):
        base = (j % A_NSL)*A_STG; bank = base >> 16; off = base & 0xffff
        w = [[L(f"ds_read_b64_tr_b16 {vr(WF(j&1,t)+2*h,2)}, v{V_WA+4*bank+t} offset:{off + h*4096}", f"R{j}_{t}") for h in range(2)] for t in range(4)]
        b = [L(f"ds_read_b128 {vr(BF(j&1,tb),4)}, v{V_BA+bank} offset:{off + 8192 + tb*1024}", f"R{j}_0") for tb in range(4)]
        return b + w[0] + w[1] + w[2] + w[3]
    k("s_barrier")
    k.run(a_reads(0))
    XR = 192
    for j in range(A_NK):
        mf = []
        for t in range(4):
            for tb_ in range(4):
                tb = tb_ if t % 2 == 0 else 3 - tb_
                d = vr(ACC(t, tb), 4)
                mf.append(f"{MF} {d}, {vr(WF(j&1,t),4)}, {vr(BF(j&1,tb),4)}, {d if j else '0'}")
        lds = a_reads(j+1) if j < A_NK-1 else []
        vm = []
        if j == A_NK-1:
            vm = [[f"buffer_load_dwordx2 {vr(XR+pc*4+h*2,2)}, v{VB5}, {sr(S_B,4)}, s33 offen offset:{pc*512+h*32}"] for pc in range(2) for h in range(2)]
        gaps = fill(16, lds, [], vm, g0=1)
        add(gaps, -1, W(lg=f"R{j}_1"))
        if j < A_NK-1 and (j < 2 or j % 2 == 1): front(gaps, 0, "s_barrier")
        front(gaps, 6, W(lg=f"R{j}_3"))
        if OPT.slowa and j < OPT.slown: add(gaps, 15, f"s_sleep {OPT.slowa}")
        emit(k, mf, gaps)
    k.stamp(1)
    n = 0
    for tb in range(4): k(f"s_mov_b32 s{S_T0+tb}, {tb*16384}")
    for ns in range(2):
        for tb in range(4):
            o = 32 + (n & 7)*4; n += 1
            for h in range(2):
                a = ACC(2*ns+h, tb)
                k(f"v_cvt_pk_bf16_f32 v{o+2*h}, v{a}, v{a+1}\nv_cvt_pk_bf16_f32 v{o+2*h+1}, v{a+2}, v{a+3}")
            k(f"buffer_store_dwordx4 {vr(o,4)}, v{V_L16}, {sr(S_A,4)}, s{S_T0+tb} offen offset:{ns*1024} sc1")
    for i in range(8): k(f"s_add_u32 s{S_T0+i}, s34, {(i>>1)*0x200000 + (i&1)*8192}")
    handoff_signal(k, 0)
    k.stamp(2)
    PR, PA, AC, T, XF = 64, 96, 144, 160, 168
    k.vm = []; k.lg = []
    for i in range(8): k.vmop(f"buffer_load_dwordx4 {vr(PR+i*4,4)}, v{VB4}, {sr(S_C,4)}, s{S_T0+i} offen sc1", f"S{i>>1}")
    for wi in range(3):
        for pc in range(2):
            for h in range(2): k(f"ds_read_b128 {vr(PA+wi*16+pc*8+h*4,4)}, v{VB6} offset:{wi*2048 + pc*1024 + h*64}")
    GB = 240
    k(f"v_lshrrev_b32 v11, 1, v1\nv_lshlrev_b32 v12, 5, v3\nv_lshl_add_u32 v12, v11, 7, v12\ns_and_b32 s6, s{S_M}, 7\ns_lshl_b32 s6, s6, 8\ns_add_u32 s6, s6, {TOP+6144}\nv_add_u32 v12, s6, v12")
    k(f"ds_read_b128 {vr(GB,4)}, v12\nds_read_b128 {vr(GB+4,4)}, v12 offset:16")
    for d in range(8): k(f"v_lshlrev_b32 v{XF+2*d}, 16, v{XR+d}\nv_and_b32 v{XF+2*d+1}, 0xffff0000, v{XR+d}")
    for sp in range(4):
        k.wait(vm=f"S{sp}")
        for d in range(8):
            w = PR + sp*8 + d; t_ = T + 2*(d & 3)
            if sp == 0:
                k(f"v_lshlrev_b32 v{AC+2*d}, 16, v{w}\nv_and_b32 v{AC+2*d+1}, 0xffff0000, v{w}")
            else:
                k(f"v_lshlrev_b32 v{t_}, 16, v{w}\nv_and_b32 v{t_+1}, 0xffff0000, v{w}")
                k(f"v_pk_add_f32 {vr(AC+2*d,2)}, {vr(AC+2*d,2)}, {vr(t_,2)}")
    k("s_waitcnt lgkmcnt(0)")
    for d in range(8): k(f"v_pk_fma_f32 {vr(AC+2*d,2)}, {vr(AC+2*d,2)}, {vr(PA+2*d,2)}, {vr(XF+2*d,2)}")
    for d in range(8): k(f"v_cvt_pk_bf16_f32 v{XR+d}, v{AC+2*d}, v{AC+2*d+1}")
    for d in range(8): k(f"v_lshlrev_b32 v{AC+2*d}, 16, v{XR+d}\nv_and_b32 v{AC+2*d+1}, 0xffff0000, v{XR+d}")
    def rowsum(r, off, mid=None):
        k(f"s_nop 1\nv_add_f32 v{r}, v{r}, v{r} row_ror:8")
        for sw in ("v_permlane16_swap_b32", "v_permlane32_swap_b32"):
            k(f"v_mov_b32 v{r+1}, v{r}\ns_nop 1\n{sw} v{r+1}, v{r}\ns_nop 1\nv_add_f32 v{r}, v{r}, v{r+1}")
        k(f"ds_write_b32 v{VB8}, v{r} offset:{off}")
        if mid: mid()
        k("s_waitcnt lgkmcnt(0)\ns_barrier")
        k(f"ds_read_b128 {vr(r,4)}, v{VB7} offset:{off}\ns_waitcnt lgkmcnt(0)")
        k(f"v_pk_add_f32 {vr(r,2)}, {vr(r,2)}, {vr(r+2,2)}\nv_add_f32 v{r}, v{r}, v{r+1}")
    def x1st():
        for pc in range(2): k(f"buffer_store_dwordx4 {vr(XR+pc*4,4)}, v{VB4}, {sr(S_E,4)}, s{S_T0+pc} offen sc1")
    for i in range(4): k(f"v_pk_add_f32 {vr(T+2*i,2)}, {vr(AC+2*i,2)}, {vr(AC+8+2*i,2)}")
    for i in range(2): k(f"v_pk_add_f32 {vr(T+2*i,2)}, {vr(T+2*i,2)}, {vr(T+4+2*i,2)}")
    k(f"v_pk_add_f32 {vr(T,2)}, {vr(T,2)}, {vr(T+2,2)}\nv_add_f32 v{T}, v{T}, v{T+1}")
    rowsum(T, 0, x1st)
    k(f"v_mul_f32 v14, {hexf(-1/512)}, v{T}")
    for i in range(8): k(f"v_pk_add_f32 {vr(AC+2*i,2)}, {vr(AC+2*i,2)}, v[14:15] op_sel_hi:[1,0]")
    for i in range(2): k(f"v_pk_mul_f32 {vr(T+2*i,2)}, {vr(AC+2*i,2)}, {vr(AC+2*i,2)}")
    for i in range(2, 8): k(f"v_pk_fma_f32 {vr(T+2*(i&1),2)}, {vr(AC+2*i,2)}, {vr(AC+2*i,2)}, {vr(T+2*(i&1),2)}")
    k(f"v_pk_add_f32 {vr(T,2)}, {vr(T,2)}, {vr(T+2,2)}\nv_add_f32 v{T}, v{T}, v{T+1}")
    def mid2():
        for i in range(8): k(f"v_pk_mul_f32 {vr(AC+2*i,2)}, {vr(AC+2*i,2)}, {vr(PA+32+2*i,2)}")
    rowsum(T, 128, mid2)
    k(f"v_mov_b32 v14, {hexf(1e-5)}\nv_fmac_f32 v14, {hexf(1/512)}, v{T}\nv_rsq_f32 v14, v14\ns_nop 0")
    for pc in range(2):
        for i in range(4*pc, 4*pc+4): k(f"v_pk_fma_f32 {vr(AC+2*i,2)}, {vr(AC+2*i,2)}, v[14:15], {vr(PA+16+2*i,2)} op_sel_hi:[1,0,1]")
        for d in range(4*pc, 4*pc+4): k(f"v_cvt_pk_bf16_f32 v{PR+d}, v{AC+2*d}, v{AC+2*d+1}")
        k(f"buffer_store_dwordx4 {vr(PR+4*pc,4)}, v{VB4}, {sr(S_D,4)}, s{S_T0+pc} offen sc1")
    k.stamp(3)
    CA = lambda m, t, tb: 64 + ((t*2+m)*4+tb)*4
    CW = lambda buf, m, t: 160 + ((buf*3+t)*2+m)*4
    CB = lambda buf, tb: 208 + (buf*4+tb)*4
    V_CW, V_CB = 16, 24
    k("v_lshl_add_u32 v7, v3, 2, v5\nv_mul_u32_u24 v7, 192, v7\nv_lshl_add_u32 v7, v6, 3, v7\nv_and_b32 v12, 1, v3")
    k("v_lshrrev_b32 v13, 1, v1\nv_mul_u32_u24 v13, 3, v13")
    for t in range(3):
        k(f"v_add_u32 v14, {t}, v13\nv_xor_b32 v14, v14, v12\nv_lshl_add_u32 v{V_CW+t}, v14, 5, v7\nv_add_u32 v{V_CW+3+t}, {5*C_W}, v{V_CW+t}")
    k(f"v_and_b32 v13, 1, v1\nv_lshl_add_u32 v{V_CB}, v13, 12, v{V_L16}\nv_add_u32 v{V_CB}, {C_BB}, v{V_CB}")
    k(f"s_lshl_b32 s7, s{S_TT}, 1\ns_and_b32 s6, s{S_WAVE}, 1\ns_add_u32 s7, s7, s6\ns_mul_i32 s6, s7, {4*43*1024}\ns_mul_i32 s7, s{S_M}, 3072\ns_add_u32 s6, s6, s7\ns_add_u32 s6, s6, 0x{WS_HF:x}")
    k(f"s_add_u32 s{S_A}, s54, s6\ns_addc_u32 s{S_A+1}, s55, 0\ns_mov_b32 s{S_A+2}, {3*43*1024+3072}")
    handoff_signal(k, 1)
    k.stamp(4)
    k(f"s_cmp_eq_u32 s{S_M}, 15\ns_cbranch_scc1 kt_c_done")
    k.lg = []
    def c_reads(j):
        sl = j % C_NW; bank = sl // 5; off = (sl % 5)*C_W
        b = [L(f"ds_read_b128 {vr(CB(j&1,tb),4)}, v{V_CB} offset:{(j % C_NB)*C_B + tb*1024}", f"R{j}_0") for tb in range(4)]
        w = [L(f"ds_read_b64_tr_b16 {vr(CW(j&1,m,t)+2*h,2)}, v{V_CW+3*bank+t} offset:{off + m*6144 + h*3072}", f"R{j}_{t}")
             for t in range(3) for m in range(2) for h in range(2)]
        return b + w
    k("s_barrier")
    k.run(c_reads(0))
    for j in range(C_NK):
        mf = []
        for t in range(3):
            for m in range(2):
                for tb_ in range(4):
                    tb = tb_ if m == 0 else 3 - tb_
                    d = vr(CA(m, t, tb), 4)
                    mf.append(f"{MF} {d}, {vr(CW(j&1,m,t),4)}, {vr(CB(j&1,tb),4)}, {d if j else '0'}")
        lds = c_reads(j+1) if j < C_NK-1 else []
        gaps = fill(24, lds, [], [], g0=1)
        if j == 0:
            add(gaps, -1, W(lg=f"R{j}_0")); front(gaps, 6, W(lg=f"R{j}_2"))
        else:
            add(gaps, -1, W(lg=f"R{j}_2"))
        if j < C_NK-1: front(gaps, 0, "s_barrier")
        emit(k, mf, gaps)
    k(f"s_nop 6\ns_lshr_b32 s6, s{S_WAVE}, 1\ns_cmp_eq_u32 s6, 0\ns_cbranch_scc0 kt_fh1")
    def prod(t, tb, o):
        a = CA(0, t, tb); b = CA(1, t, tb)
        for i in range(0, 4, 2): k(f"v_pk_mul_f32 {vr(a+i,2)}, {vr(a+i,2)}, {vr(b+i,2)}")
        k(f"v_cvt_pk_bf16_f32 v{o}, v{a}, v{a+1}\nv_cvt_pk_bf16_f32 v{o+1}, v{a+2}, v{a+3}")
    for fh in range(2):
        if fh: k("kt_fh1:")
        odd = 2 if fh == 0 else 0; t0 = 0 if fh == 0 else 1; unit = 0 if fh == 0 else 2
        keep = (0, 1) if fh == 0 else (2, 3); send = (2, 3) if fh == 0 else (0, 1)
        k(f"v_and_b32 v13, 1, v1\nv_lshl_add_u32 v12, v13, 11, v{V_L16}\nv_add_u32 v12, {TOP}, v12")
        for i, tb in enumerate(send): prod(odd, tb, 48 + 2*i)
        k(f"ds_write_b128 v12, v[48:51] offset:{fh*1024}")
        for i, tb in enumerate(keep): prod(odd, tb, 52 + 4*i + 2*fh)
        for tb in range(4): k(f"s_mov_b32 s{S_T0+tb}, {tb*43*1024}")
        skip = f"kt_skip{fh}"
        if fh: k(f"s_cmp_eq_u32 s{S_M}, 14\ns_cbranch_scc1 {skip}")
        for tb in range(4):
            o = 32 + tb*4
            prod(t0, tb, o); prod(t0+1, tb, o+2)
            k(f"buffer_store_dwordx4 {vr(o,4)}, v{V_L16}, {sr(S_A,4)}, s{S_T0+tb} offen offset:{unit*1024} sc1")
        if fh: k(f"{skip}:")
        k("s_waitcnt lgkmcnt(0)\ns_barrier")
        k(f"s_cmp_eq_u32 s{S_M}, 14\ns_cbranch_scc1 kt_c_done")
        for i in range(2): k(f"ds_read_b64 {vr(52 + 4*i + 2*(1-fh),2)}, v12 offset:{(1-fh)*1024 + 8*i}")
        k("s_waitcnt lgkmcnt(0)")
        for i, tb in enumerate(keep):
            k(f"buffer_store_dwordx4 {vr(52+4*i,4)}, v{V_L16}, {sr(S_A,4)}, s{S_T0+tb} offen offset:1024 sc1")
        if not fh: k("s_branch kt_c_done")
    k("kt_c_done:")
    k.stamp(5)
    DA = lambda t, tb: 64 + (t*2+tb)*4
    DW = lambda buf, i, t: 80 + ((buf*2+i)*2+t)*4
    DB = lambda buf, i, tb: 112 + ((buf*2+i)*2+tb)*4
    V_DWA, V_DBA = 16, 18
    k("v_lshl_add_u32 v7, v3, 2, v5\nv_lshlrev_b32 v7, 7, v7\nv_lshl_add_u32 v7, v6, 4, v7")
    k(f"v_lshrrev_b32 v14, 1, v5\nv_lshrrev_b32 v11, 1, v1\nv_xor_b32 v14, v14, v11\nv_lshl_add_u32 v{V_DWA}, v14, 6, v7\nv_add_u32 v{V_DWA+1}, 0x10000, v{V_DWA}")
    k(f"v_and_b32 v14, 1, v1\nv_lshl_add_u32 v{V_DBA}, v14, 11, v{V_L16}\nv_add_u32 v{V_DBA}, {D_BB}, v{V_DBA}")
    k("v_lshlrev_b32 v20, 10, v4\nv_lshl_add_u32 v20, v3, 4, v20\nv_lshl_add_u32 v20, v14, 15, v20\nv_lshl_add_u32 v20, v11, 6, v20")
    k("v_and_b32 v21, 1, v3\nv_lshlrev_b32 v21, 9, v21\nv_lshl_add_u32 v21, v4, 4, v21\nv_lshrrev_b32 v22, 1, v3\nv_lshl_add_u32 v21, v22, 3, v21")
    k("v_lshl_add_u32 v21, v11, 10, v21\nv_lshl_add_u32 v21, v14, 15, v21")
    k(f"s_lshl_b32 s6, s{S_TT}, 1\ns_lshr_b32 s7, s{S_M}, 3\ns_add_u32 s6, s6, s7\ns_lshl_b32 s6, s6, 16\ns_and_b32 s33, s{S_M}, 7\ns_lshl_b32 s7, s33, 7\ns_add_u32 s7, s6, s7")
    k(f"s_add_u32 s{S_B}, s58, s7\ns_addc_u32 s{S_B+1}, s59, 0\ns_sub_u32 s{S_B+2}, {2048*1024}, s7")
    k(f"s_lshl_b32 s33, s33, 11\ns_add_u32 s33, s33, s6\ns_add_u32 s34, s33, 16384\ns_mov_b32 s35, 16384")
    for tb in range(2):
        for h in range(2):
            k(f"buffer_load_dwordx2 {vr(144+4*tb+2*h,2)}, v21, {sr(S_E,4)}, s{33+tb} offen offset:{256*h} sc1")
    handoff_signal(k, 2)
    k.stamp(6)
    k.lg = []
    for d in range(8): k(f"v_lshlrev_b32 v{48+2*d}, 16, v{144+d}\nv_and_b32 v{49+2*d}, 0xffff0000, v{144+d}")
    def d_reads(g):
        base = (g % D_NW)*D_W; bank = base >> 16; off = base & 0xffff
        r = []
        for i in range(2):
            if 2*g + i >= D_NK: break
            r += [L(f"ds_read_b128 {vr(DB(g&1,i,tb),4)}, v{V_DBA} offset:{(g % D_NB)*D_B + i*4096 + tb*1024}", f"R{g}") for tb in range(2)]
            r += [L(f"ds_read_b64_tr_b16 {vr(DW(g&1,i,t)+2*h,2)}, v{V_DWA+bank} offset:{off + i*4096 + h*2048 + 8*t}", f"R{g}") for t in range(2) for h in range(2)]
        return r
    k("s_barrier")
    k.run(d_reads(0))
    for g in range(D_NS):
        mf = []
        ii = [i for i in range(2) if 2*g + i < D_NK]
        for t in range(2):
            for tb in range(2):
                for i in ii:
                    d = vr(DA(t, tb), 4)
                    mf.append(f"{MF} {d}, {vr(DW(g&1,i,t),4)}, {vr(DB(g&1,i,tb),4)}, {d if (g or i) else '0'}")
        if g < D_NS-1:
            k("s_barrier")
            rd = d_reads(g+1)
            k.run(rd[:2])
            gaps = fill(8, rd[2:], [], [], g0=0, pair_lds=True)
        else: gaps = {}
        k.wait(lg=f"R{g}")
        emit(k, mf, gaps)
    k("s_nop 7")
    for tb in range(2):
        for t in range(2):
            for i in range(0, 4, 2):
                k(f"v_pk_fma_f32 {vr(48+8*tb+4*t+i,2)}, {vr(DA(t,tb)+i,2)}, {vr(GB+4*t+i,2)}, {vr(48+8*tb+4*t+i,2)}")
        for d in range(4): k(f"v_cvt_pk_bf16_f32 v{24+4*tb+d}, v{48+8*tb+2*d}, v{49+8*tb+2*d}")
        k(f"buffer_store_dwordx4 {vr(24+4*tb,4)}, v20, {sr(S_B,4)}, {'s35' if tb else '0'} offen {OPT.st5}")
    if prof:
        k("s_waitcnt vmcnt(0)"); k.stamp(7); k.dump_stamps(8, 54, 100)
    k(f"{end}:\ns_endpgm")
    return k
```

```python
import sys
from common import *
from k0 import gen_k0
import k1, k2, k3
prof = "".join(a[4:] for a in sys.argv if a.startswith("prof"))
cfg = k1.Cfg()
for a in sys.argv[2:]:
    if "=" in a:
        n, v = a.split("=")
        if hasattr(OPT, n): setattr(OPT, n, v.replace("+", " ") if isinstance(getattr(OPT, n), str) else eval(v))
        else: setattr(cfg, n, eval(v))
import k4, k5, kt
ks = ([] if OPT.mk0 else [gen_k0("0" in prof)]) + [k1.gen_k1(cfg, "1" in prof)]
if OPT.idle:
    e = Kern("e9_idle_kernel", 1, 64, 0, 16, 16, 16)
    e("\n".join(["s_sleep 127"]*OPT.idle) + "\ns_endpgm"); ks.append(e)
if OPT.ff: pass
elif OPT.fused: ks += [kt.gen_kt("2" in prof)]
else: ks += [k2.gen_k2("2" in prof), k3.gen_k3("3" in prof), k4.gen_k4("4" in prof), k5.gen_k5("5" in prof)]
open(sys.argv[1], "w").write(assemble(ks))
```

```python
from common import *
from sched import fill, L, V, W, front, emit, It, merge
from k0 import mod_loads, mod_finish, C1

MF = "v_mfma_f32_16x16x32_bf16"

SLOT = 16384
KB = 0
VB = 65536
PARB = 9*SLOT
FLAGB = PARB + 4096
WSLOT = [1, 4, 2, 5, 3, 6, 7, 8]

def O(db, qb): return (db*4+qb)*4
def LA(qb): return 128 + qb*4
def KF(i): return 144 + i*4
def VF(i): return 176 + i*4
ONES = 208
def Q(qb, s): return 128 + (qb*4+s)*4
def S(buf, kb, qb): return 64 + buf*32 + (kb*4+qb)*4
def P(buf, qb): return 32 + buf*16 + qb*4
def MN(qb): return 192 + qb*4
V_KA = 8
V_VA = 12
V_DK = 20
V_DV = 24
V_L16 = 26
V_LS = 28
V_PF = 2
V_T = 208
def XR(slot, qb): return 128 + ((slot%4)*4+qb)*4
def QA(t, qb): return vr(192 + (qb*8+t)*4, 4) if qb < 2 else ar(((qb-2)*8+t)*4, 4)
def HK(b): return (lambda i: 64 + b*32 + i*4)
def HF(buf, qb): return 32 + (buf*4+qb)*4
def PAR(buf): return 64 + buf*16
V_PT = 96
V_WA = 112
V_DW = 124
V_PA = 125
def WF(buf, t): return 128 + (buf*8+t)*4
S_K, S_V, S_W, S_X, S_M, S_O = 8, 12, 16, 20, 24, 28
S_W4 = 32
S_KOFF, S_VOFF = 33, 34
S_CNT = 35
S_T0 = 36
S_RERUN = 44
S_WAVE = 45
S_W1 = 62

def emit_phase(k, mf, gaps):
    for f in gaps.get(-1, []): f(k) if callable(f) else k(f)
    for i, m in enumerate(mf):
        k(m)
        for f in gaps.get(i, []): f(k) if callable(f) else k(f)
    for g in gaps:
        assert g < len(mf), (g, len(mf))

def add(gaps, g, *items):
    gaps.setdefault(g, []).extend(items)

def qk_mfmas(buf, kf=KF, czero=False):
    r = []
    order = {0: [(kb,s,qb) for kb in range(2) for s in range(4) for qb in range(4)],
             1: [(kb,s,qb) for kb in range(2) for qb in range(4) for s in range(4)],
             2: [(kb,s,qb) for qb in range(4) for s in range(4) for kb in range(2)],
             4: [(kb,s if qb%2==0 else 3-s,qb) for kb in range(2) for qb in range(4) for s in range(4)],
             5: [(kb,s if kb%2==0 else 3-s,qb) for qb in range(4) for kb in range(2) for s in range(4)],
             3: [(kb,s,qb if s%2==0 else 3-qb) for kb in range(2) for s in range(4) for qb in range(4)]}[OPT.qko]
    seen = set()
    for kb, s, qb in order:
            if True:
                d = vr(S(buf, kb, qb), 4)
                started = (kb, qb) in seen; seen.add((kb, qb))
                c = d if started else ("0" if czero else vr(MN(qb), 4))
                r.append(f"{MF} {d}, {ar(kf(kb*4+s),4)}, {vr(Q(qb,s),4)}, {c}")
    return r

def pv_mfmas(buf, sumq, vf=VF, czero=False):
    r = []
    for qb in sumq:
        d = ar(LA(qb), 4)
        r.append(f"{MF} {d}, {ar(ONES,4)}, {vr(P(buf,qb),4)}, {'0' if czero else d}")
    order = {0: [(db,qb) for db in range(8) for qb in range(4)],
             1: [(db,qb) for qb in range(4) for db in range(8)],
             3: [(db if qb%2==0 else 7-db,qb) for qb in range(4) for db in range(8)],
             2: [(db,qb if db%2==0 else 3-qb) for db in range(8) for qb in range(4)]}[OPT.pvo]
    for db, qb in order:
        if True:
            d = ar(O(db, qb), 4)
            r.append(f"{MF} {d}, {ar(vf(db),4)}, {vr(P(buf,qb),4)}, {'0' if czero else d}")
    return r

def exps(buf, qbs):
    r = []
    for qb in qbs:
        for kb in range(2):
            for i in range(4):
                x = S(buf, kb, qb) + i
                r.append(f"v_exp_f32 v{x}, v{x}")
    return r
def cvts(buf, qbs):
    r = []
    for qb in qbs:
        for kb in range(2):
            for h in range(2):
                x = S(buf, kb, qb) + 2*h
                r.append(f"v_cvt_pk_bf16_f32 v{P(buf,qb)+kb*2+h}, v{x}, v{x+1}")
    return r
def adds(buf, qbs, addq):
    r = []
    for qb in qbs:
        for kb in range(2):
            for i in range(4):
                x = S(buf, kb, qb) + i
                r.append(f"v_add_f32 v{V_LS+qb}, v{x}, v{V_LS+qb}" if qb in addq else None)
    return r
def kreads(slot, blk, kf=KF):
    r = []
    for kb in range(2):
        for s in range(4):
            r.append(f"ds_read_b128 {ar(kf(kb*4+s),4)}, v{V_KA+s} offset:{KB+slot*SLOT+blk*8192+kb*4096}")
    return r
def vreads(slot, blk, vf=VF):
    r = []
    for db in range(8):
        for h in range(2):
            r.append(f"ds_read_b64_tr_b16 {ar(vf(db)+2*h,2)}, v{V_VA+db} offset:{slot*SLOT+blk*8192+h*4096}")
    return r
def dma_k(p): return f"buffer_load_dwordx4 v{V_DK+p}, {sr(S_K,4)}, s{S_KOFF} offen offset:{p*1024} {OPT.kvnt} lds"
def dma_v(p): return f"buffer_load_dwordx4 v{V_DV+(p&1)}, {sr(S_V,4)}, s{S_VOFF} offen offset:{p*1024} {OPT.kvnt} lds"

class Cfg:
    la = 4
    pfo = 5
    pfc = (2, 3, 4)
    ppf = 0
    wocnt = 1
    bar2 = 0
    kvspread = 1
    w1pf = 0
    fine = 0
    kvper = 7
    x = 0
    pf = 2
    sumq = [1, 3]
    def addq(self): return [q for q in range(4) if q not in self.sumq]

def place_softmax(gaps, n, E, C, A, free, first_e=0):
    egap = []
    for i, e in enumerate(E):
        g = first_e + 2*i
        add(gaps, g, e); egap.append(g)
    items = []
    for p, c in enumerate(C): items.append((egap[2*p+1] + 1, c))
    for i, a in enumerate(A):
        if a: items.append((egap[i] + 1, a))
    items.sort(key=lambda t: t[0])
    free = sorted(free)
    for eg, txt in items:
        cand = [g for g in free if g >= eg]
        if cand:
            g = cand[0]; free.remove(g)
        else:
            g = n - 1
            assert g >= eg, (g, eg)
        add(gaps, g, txt)

def qk_phase(k, cfg, sbuf_out, sm_buf, vrd, pf=(), dmas=()):
    mf = qk_mfmas(sbuf_out)
    gaps = {}
    add(gaps, -1, "s_waitcnt lgkmcnt(0)")
    free = []
    odd = list(range(1, 32, 2))
    vi = 0
    for g in odd:
        if vi < len(vrd):
            add(gaps, g, vrd[vi], vrd[vi+1]); vi += 2
        else:
            free += [g, g]
    if pf:
        add(gaps, 16, pf[0]); add(gaps, 17, pf[1])
    for i, d in enumerate(dmas): add(gaps, 17 + 4*i, *d)
    qbs = [0, 1]
    place_softmax(gaps, 32, exps(sm_buf, qbs), cvts(sm_buf, qbs), adds(sm_buf, qbs, cfg.addq()), free)
    emit_phase(k, mf, gaps)

def pv_phase(k, cfg, pbuf, sm_buf, rd, dmas, m0, barrier, czero=False, vf=VF, qbs=(2, 3), post=(), extra_valu=()):
    mf = pv_mfmas(pbuf, cfg.sumq, vf, czero)
    n = len(mf); ns = len(cfg.sumq)
    gaps = {}
    w = "s_waitcnt vmcnt(16) lgkmcnt(0)\ns_barrier" if barrier else "s_waitcnt lgkmcnt(0)"
    add(gaps, ns - 1, w)
    free = []
    rd = list(rd); dmas = list(dmas)
    E = exps(sm_buf, qbs) if sm_buf is not None else []
    dense = len(E) > 16
    two = len(rd) > 8
    many = len(dmas) > 4
    odd = [g for g in range(1, n) if (g % 2 == 1 or g >= 2*len(E))]
    first = True
    for g in odd:
        if g < ns:
            if g != ns - 1: free += [g, g]
            continue
        if rd:
            add(gaps, g, rd.pop(0))
            if two: add(gaps, g, rd.pop(0))
            else: free.append(g)
        elif dmas and ((g // 2) % 2 == 0 or many):
            if first and m0:
                add(gaps, g - 1, m0); first = False
            d = dmas.pop(0)
            add(gaps, g, *(d if isinstance(d, list) else [d]))
        else:
            free += [g, g]
    assert not rd and not dmas
    if dense:
        C = cvts(sm_buf, qbs); A = adds(sm_buf, qbs, cfg.addq())
        for i, e in enumerate(E):
            add(gaps, i, e)
            if i >= 1 and A[i-1]: add(gaps, i, A[i-1])
            if i >= 2 and i % 2 == 0: add(gaps, i, C[i//2 - 1])
        gl = min(32, n - 1)
        if gl == 31: add(gaps, gl, "s_nop 0")
        if A[31]: add(gaps, gl, A[31])
        add(gaps, gl, C[15])
    elif E:
        place_softmax(gaps, n, E, cvts(sm_buf, qbs), adds(sm_buf, qbs, cfg.addq()), free)
    for f in post: add(gaps, n - 1, f)
    emit_phase(k, mf, gaps)

def iteration(k, cfg, t4, first=False, post=(), pf=()):
    ks = t4; vs = (t4 - 1) % 4
    m0k = f"s_add_u32 m0, s{S_W4}, {KB + ((t4+3)%4)*SLOT}"
    m0v = f"s_add_u32 m0, s{S_W4}, {VB + ((t4+2)%4)*SLOT}"
    dk = [dma_k(p) for p in range(4)]; dv = [dma_v(p) for p in range(4)]
    k.c(f"---- iteration T%4={t4} ----")
    if not first:
        pv_phase(k, cfg, 1, 0, kreads(ks, 0), dk, m0k, True, post=[f"s_add_u32 s{S_KOFF}, s{S_KOFF}, {SLOT}"])
    if first:
        g = lambda wh, t: [[kv_setup(wh, t), dma_k(p) if wh == 'K' else dma_v(p)] for p in range(4)]
        qk_phase(k, cfg, 0, 1, vreads(vs, 0), dmas=g('V', 2))
        pv_phase(k, cfg, 0, 1, kreads(ks, 1), g('K', 4), None, False, czero=True)
        qk_phase(k, cfg, 1, 0, vreads(vs, 1), dmas=g('V', 3))
        k(f"s_mov_b32 s{S_KOFF}, {5*SLOT}\ns_mov_b32 s{S_VOFF}, {4*SLOT}")
        return
    qk_phase(k, cfg, 0, 1, vreads(vs, 0), pf)
    pv_phase(k, cfg, 0, 1, kreads(ks, 1), dv, m0v, False, post=[f"s_add_u32 s{S_VOFF}, s{S_VOFF}, {SLOT}"])
    qk_phase(k, cfg, 1, 0, vreads(vs, 1))
    for f in post: k(f)

def kv_setup(which, tile):
    if which == 'K': return f"s_add_u32 m0, s{S_W4}, {KB + (tile%4)*SLOT}\ns_mov_b32 s{S_KOFF}, {tile*SLOT}"
    return f"s_add_u32 m0, s{S_W4}, {VB + (tile%4)*SLOT}\ns_mov_b32 s{S_VOFF}, {tile*SLOT}"
def kv_group(which, tile):
    return [[kv_setup(which, tile), V(dma_k(p) if which == 'K' else dma_v(p), f"{which}{tile}")] for p in range(4)]

def rowmax_cross(k, regs, tmp):
    for sw in ("v_permlane32_swap_b32", "v_permlane16_swap_b32"):
        for i, r in enumerate(regs): k(f"v_mov_b32 v{tmp+i}, v{r}")
        k("s_nop 1")
        for i, r in enumerate(regs): k(f"{sw} v{tmp+i}, v{r}")
        k("s_nop 1")
        for i, r in enumerate(regs): k(f"v_max_f32 v{r}, v{r}, v{tmp+i}")

def gen_k1(cfg=None, prof=False):
    cfg = cfg or Cfg()
    k = Kern("k1_attn_kernel", 256, 256, 160*1024, 512, 256, 96 if prof else 64)
    k.prof = prof
    end = "k1_end"
    k(f"s_cmp_ge_u32 s2, 256\ns_cbranch_scc1 {end}")
    k.stamp(0)
    k(f"s_load_dwordx4 s[48:51], s[0:1], {KA_K}")
    k(f"s_load_dwordx2 s[52:53], s[0:1], {KA_WQ}")
    k(f"s_load_dwordx2 s[54:55], s[0:1], {KA_WS}")
    k(f"s_load_dwordx2 s[46:47], s[0:1], {KA_WO}")
    k(f"s_load_dwordx4 s[56:59], s[0:1], {KA_WG}")
    k(f"s_load_dwordx2 s[60:61], s[0:1], {KA_WD}")
    k("v_lshrrev_b32 v1, 6, v0")
    k("v_and_b32 v2, 63, v0")
    k(f"v_readfirstlane_b32 s{S_WAVE}, v1")
    m = OPT.map4
    k(f"s_and_b32 s4, s2, {(8>>m)-1}\ns_bfe_u32 s5, s2, {((2+m)<<16)|3}\ns_lshl_b32 s5, s5, {3-m}\ns_add_u32 s4, s4, s5")
    k(f"s_bfe_u32 s5, s2, {(m<<16)|(3-m)}\ns_lshl_b32 s5, s5, {3-m}\ns_lshr_b32 s6, s2, {5+m}\ns_add_u32 s5, s5, s6")
    k(f"s_lshl_b32 s{S_W4}, s{S_WAVE}, 12")
    k(f"s_mov_b32 s{S_RERUN}, 0")
    k("v_lshrrev_b32 v3, 4, v2")
    k("v_and_b32 v4, 15, v2")
    k("v_lshrrev_b32 v5, 2, v4")
    k("v_and_b32 v6, 3, v2")
    k(f"v_lshlrev_b32 v{V_L16}, 4, v2")
    k("v_lshlrev_b32 v7, 2, v3\nv_xor_b32 v7, v7, v4\nv_lshlrev_b32 v7, 4, v7")
    k(f"v_lshl_add_u32 v{V_DW}, v1, 2, v3\nv_lshl_add_u32 v{V_DW}, v{V_DW}, 13, v7")
    k(f"s_lshl_b32 s{S_W1}, s{S_WAVE}, 10")
    k("s_waitcnt lgkmcnt(0)")
    k("s_lshl_b32 s6, s4, 8")
    k(f"s_add_u32 s{S_W}, s52, s6\ns_addc_u32 s{S_W+1}, s53, 0\ns_sub_u32 s{S_W+2}, {512*8192}, s6\ns_mov_b32 s{S_W+3}, 0x20000")
    k.srd(S_M, 54, 4*12288, WS_MODP)
    k(f"s_lshl_b32 s6, s5, 2\ns_add_u32 s6, s6, s{S_WAVE}\ns_lshl_b32 s7, s6, 16")
    k(f"s_add_u32 s7, s7, 0x{WS_XH:x}")
    k(f"s_add_u32 s{S_X}, s54, s7\ns_addc_u32 s{S_X+1}, s55, 0\ns_mov_b32 s{S_X+2}, 0x10000\ns_mov_b32 s{S_X+3}, 0x20000")
    def w_step(j):
        r = []
        for p in range(2):
            st = S_T0 + p
            r.append([f"s_add_u32 m0, s{S_W1}, {WSLOT[j>>1]*SLOT + (j&1)*8192 + p*4096}\ns_mov_b32 s{st}, {(j*32 + p*16)*8192}",
                      lambda kk, st=st: kk.vmop(f"buffer_load_dwordx4 v{V_DW}, {sr(S_W,4)}, s{st} offen {OPT.wqnt} lds", f"W{j}")])
        return r
    def x_loads(j):
        r = []
        for qb in range(4):
            st = S_T0 + 4 + qb
            r.append([f"s_mov_b32 s{st}, {qb*16384 + (j>>2)*4096}",
                      lambda kk, qb=qb, st=st: kk.vmop(f"buffer_load_dwordx4 {vr(XR(j,qb),4)}, v{V_L16}, {sr(S_X,4)}, s{st} offen offset:{(j&3)*1024}", f"X{j}" if j else f"X0_{qb}")])
        return r
    def run(items):
        for f in items:
            if isinstance(f, list): run(f)
            else: f(k) if callable(f) else k(f)
    k("v_lshlrev_b32 v31, 4, v0")
    mod_loads(k, S_M, 31, S_T0, V_PT, 0, "M")
    LA_ = cfg.la
    run(w_step(0)); run(x_loads(0))
    k("s_lshl_b32 s6, s4, 19")
    k(f"s_add_u32 s{S_K}, s48, s6\ns_addc_u32 s{S_K+1}, s49, 0\ns_mov_b32 s{S_K+2}, 0x80000\ns_mov_b32 s{S_K+3}, 0x20000")
    k(f"s_add_u32 s{S_V}, s50, s6\ns_addc_u32 s{S_V+1}, s51, 0\ns_mov_b32 s{S_V+2}, 0x80000\ns_mov_b32 s{S_V+3}, 0x20000")
    k(f"s_lshl_b32 s6, s5, 2\ns_add_u32 s6, s6, s{S_WAVE}\ns_lshl_b32 s6, s6, 19\ns_lshl_b32 s7, s4, 12\ns_add_u32 s6, s6, s7")
    k(f"s_add_u32 s6, s6, 0x{WS_OF:x}")
    k(f"s_add_u32 s{S_O}, s54, s6\ns_addc_u32 s{S_O+1}, s55, 0\ns_mov_b32 s{S_O+2}, {3*131072+4096}\ns_mov_b32 s{S_O+3}, 0x20000")
    k("v_lshl_add_u32 v7, v3, 3, v5\nv_lshlrev_b32 v7, 8, v7\nv_lshl_add_u32 v7, v6, 4, v7")
    for s in range(4):
        k(f"v_xor_b32 v27, {s}, v5\nv_lshl_add_u32 v{V_WA+s}, v27, 6, v7")
        k(f"v_add_u32 v{V_WA+4+s}, 0x10000, v{V_WA+s}\nv_add_u32 v{V_WA+8+s}, 0x20000, v{V_WA+s}")
    k(f"v_lshlrev_b32 v{V_PA}, 5, v3\nv_add_u32 v{V_PA}, {PARB}, v{V_PA}")
    for s in range(4):
        k(f"v_or_b32 v27, {4*s}, v3\nv_xor_b32 v27, v27, v4\nv_lshlrev_b32 v27, 4, v27\nv_lshl_add_u32 v{V_KA+s}, v4, 8, v27")
    k("v_lshl_add_u32 v7, v3, 2, v5\nv_and_b32 v27, 7, v7\nv_lshlrev_b32 v7, 8, v7\nv_lshl_add_u32 v7, v6, 3, v7")
    k(f"v_add_u32 v7, {VB}, v7")
    for db in range(8):
        k(f"v_xor_b32 v30, {db}, v27\nv_lshl_add_u32 v{V_VA+db}, v30, 5, v7")
    k("v_lshlrev_b32 v7, 8, v3\nv_lshl_add_u32 v7, v1, 12, v7")
    for p in range(4):
        k(f"v_or_b32 v27, {4*p}, v3\nv_xor_b32 v27, v27, v4\nv_lshl_add_u32 v{V_DK+p}, v27, 4, v7")
    for p in range(2):
        k(f"v_or_b32 v27, {4*p}, v3\nv_lshlrev_b32 v27, 1, v27\nv_xor_b32 v27, v27, v4\nv_lshl_add_u32 v{V_DV+p}, v27, 4, v7")
    k("v_mov_b32 v27, 0x3f803f80")
    for i in range(4): k(f"v_accvgpr_write_b32 a{ONES+i}, v27")

    def wreads(j):
        c = j >> 1; base = WSLOT[c]*SLOT; bank = base >> 16; off = (base & 0xffff) + (j & 1)*8192
        return [L(f"ds_read_b64_tr_b16 {ar(WF(j&1,t)+2*h,2)}, v{V_WA+4*bank+(t>>1)} offset:{off + h*1024 + 8*(t&1)}", f"R{j}_{t}")
                for t in range(8) for h in range(2)]
    def preads(j):
        b = PAR(j & 1)
        return [L(f"ds_read_b128 {vr(b+4*i,4)}, v{V_PA} offset:{j*128 + (i&1)*16 + (i>>1)*2048}", f"P{j}") for i in range(4)]
    def hcalc(j):
        b = PAR(j & 1); r = []
        for qb in range(4):
            t = V_PT + (qb & 1)*8
            for i in range(8):
                r.append(f"v_fma_mix_f32 v{t+i}, v{XR(j,qb)+(i>>1)}, v{b+8+i}, v{b+i} op_sel:[{i&1},0,0] op_sel_hi:[1,0,0]")
            for d in range(4):
                r.append(f"v_cvt_pk_bf16_f32 v{HF(j&1,qb)+d}, v{t+2*d}, v{t+2*d+1}")
        return r
    k(f"s_cmp_ge_u32 s{S_WAVE}, 2\ns_cselect_b32 s6, 1.0, 0\nv_add_u32 v31, {PARB}, v31")
    k.vmwait("M")
    mod_finish(k, V_PT, 6, C1)
    k(f"ds_write_b128 v31, {vr(V_PT,4)}")
    run(x_loads(1)); run(w_step(1))
    k.vmwait("W0", "lgkmcnt(0)"); k("s_barrier")
    run(preads(0)); run(preads(1)); run(wreads(0))
    assert LA_ == 4
    pend = [g for j in range(2, LA_) for g in x_loads(j) + w_step(j)]
    k.wait(lg="P0")
    k.stamp(1)
    for i, v in enumerate(hcalc(0)):
        if i % 12 == 0: k.wait(vm=f"X0_{i//12}")
        if i % 6 == 0 and pend: run(pend.pop(0))
        k(v)
    kvplan = {12: kv_group('K', 0), 13: kv_group('K', 1), 14: kv_group('V', 0)}
    for j in range(15):
        k.c(f"qproj stage {j}")
        if cfg.fine and j in (0, 2, 4, 8, 12): k.stamp(2 + (0, 2, 4, 8, 12).index(j))
        mf = []
        for t in range(8):
            for q in range(4):
                qb = q if t % 2 == 0 else 3 - q
                d = QA(t, qb)
                mf.append(f"{MF} {d}, {ar(WF(j&1,t),4)}, {vr(HF(j&1,qb),4)}, {d if j else '0'}")
        lds = (preads(j+2) if j < 14 else []) + wreads(j+1)
        valu = hcalc(j+1)
        jj = j + LA_
        pend += x_loads(jj) + w_step(jj) if jj < 16 else kvplan[j]
        nvm = min(len(pend), 8)
        vm = pend[:nvm]; pend = pend[nvm:]
        gaps = fill(32, lds, valu, vm, g0=1, valu_end=31)
        add(gaps, -1, W(lg=f"R{j}_3"))
        front(gaps, 12, W(lg=f"R{j}_7"))
        if j < 2 or j % 2 == 1 or not cfg.bar2:
            tgt = j+1 if (j < 1 or not cfg.bar2) else j+2
            front(gaps, 0, W(vm=f"W{tgt}", barrier=True))
        else:
            front(gaps, 0, W(vm=f"X{j+1}"))
        emit(k, mf, gaps)
    assert not pend
    k.stamp(2) if not cfg.fine else k.stamp(7)
    P0, P1, P2 = S_W, S_X, S_M
    pfsetup = [
        f"s_lshl_b32 s6, s4, 17\ns_and_b32 s7, s5, 3\ns_lshl_b32 s7, s7, 15",
        f"s_add_u32 s6, s6, s7\ns_lshl_b32 s7, s{S_WAVE}, 13\ns_add_u32 s6, s6, s7",
        f"s_add_u32 s{P0}, s46, s6\ns_addc_u32 s{P0+1}, s47, 0",
        f"s_lshr_b32 s6, s2, 3\ns_lshl_b32 s6, s6, 2\ns_add_u32 s{S_T0}, s6, s{S_WAVE}",
        f"s_cmp_lt_u32 s{S_T0}, 64\ns_cselect_b64 s[{P1}:{P1+1}], s[56:57], s[58:59]",
        f"s_and_b32 s6, s{S_T0}, 63\ns_mul_i32 s6, s6, {8*2752}\ns_and_b32 s7, s2, 3",
        f"s_mul_i32 s7, s7, 768\ns_add_u32 s6, s6, s7\ns_sub_u32 s{S_T0+5}, {512*2752}, s6",
        f"s_add_u32 s{P1}, s{P1}, s6\ns_addc_u32 s{P1+1}, s{P1+1}, 0",
        f"s_mul_i32 s6, s{S_T0}, {11*1024}\ns_and_b32 s7, s2, 1\ns_lshl_b32 s7, s7, 9",
        f"s_add_u32 s6, s6, s7\ns_min_u32 s6, s6, {1376*1024}\ns_sub_u32 s{S_T0+6}, {1376*1024}, s6",
        f"s_add_u32 s{P2}, s60, s6\ns_addc_u32 s{P2+1}, s61, 0\ns_mov_b32 s{S_T0+4}, 0x2000"]
    pfv = [f"v_lshlrev_b32 v{V_PF}, 3, v{V_L16}",
           f"v_lshrrev_b32 v{V_PF+1}, 7, v{V_L16}", f"v_mul_u32_u24 v{V_PF+1}, 2752, v{V_PF+1}", f"v_and_b32 v{V_PF+3}, 0x380, v{V_PF}",
           f"v_min_u32 v{V_PF+3}, 764, v{V_PF+3}", f"v_add_u32 v{V_PF+1}, v{V_PF+1}, v{V_PF+3}",
           f"v_lshrrev_b32 v{V_PF+2}, 6, v{V_L16}", f"v_min_u32 v{V_PF+2}, 10, v{V_PF+2}", f"v_and_b32 v{V_PF+3}, 0x180, v{V_PF}",
           f"v_lshl_add_u32 v{V_PF+2}, v{V_PF+2}, 10, v{V_PF+3}"]
    pfs = [[f"s_cmp_eq_u32 s{S_CNT}, {cfg.pfc[i]}\ns_cselect_b32 s{p+2}, s{S_T0+4+i}, 0",
            f"buffer_load_dword v{V_PF+3}, v{V_PF+i}, {sr(p,4)}, 0 offen"] for i, p in enumerate((P0, P1, P2))]
    pfs.append([f"s_sub_u32 s6, s{S_CNT}, {cfg.pfo}\ns_min_u32 s6, s6, 4\ns_lshl_b32 s6, s6, 17",
                f"buffer_load_dword v{V_PF+3}, v{V_PF+4}, {sr(S_O,4)}, s6 offen"])
    pfv.append(f"v_and_b32 v{V_PF+4}, 0xf80, v{V_PF}")
    loopinit = f"s_mov_b32 s{S_CNT}, 8"
    k.c("merged head")
    k.wait(lg='all')
    def qk_q(buf, qb, czero):
        r = []
        for kb in range(2):
            for i in range(4):
                s_ = i if kb == 0 else 3 - i
                d = vr(S(buf, kb, qb), 4)
                c = d if i else ("0" if czero else vr(MN(qb), 4))
                nd = {f"Q{qb}": 2, f"KR{buf}": 0}
                if not czero: nd[f"MN{qb}"] = 2
                r.append(It(f"{MF} {d}, {ar(HK(buf)(kb*4+s_),4)}, {vr(Q(qb,s_),4)}, {c}", needs=nd, gives=f"S{buf}_{qb}"))
        return r
    mq = []
    for qb in range(4):
        for t in range(8):
            d = QA(t, qb)
            mq.append(It(f"{MF} {d}, {ar(WF(1,t),4)}, {vr(HF(1,qb),4)}, {d}", gives=f"A{t}_{qb}"))
    mq += qk_q(0,0,True) + qk_q(0,1,True) + qk_q(0,2,True) + qk_q(1,0,False) + qk_q(1,1,False) + qk_q(0,3,True) + qk_q(1,2,False) + qk_q(1,3,False)
    def conv(qb):
        r = []
        for s_ in range(4):
            for h in range(2):
                t = 2*s_ + h; nd = {f"A{t}_{qb}": 8}
                if qb < 2: a = 192 + (qb*8+t)*4
                else:
                    a = 224 + (t & 3)*4
                    for i in range(4): r.append(It(f"v_accvgpr_read_b32 v{a+i}, a{((qb-2)*8+t)*4+i}", needs=nd))
                for d in range(2): r.append(It(f"v_cvt_pk_bf16_f32 v{Q(qb,s_)+2*h+d}, v{a+2*d}, v{a+2*d+1}", needs=nd, gives=f"Q{qb}x"))
        r[-1].gives = f"Q{qb}"
        return r
    def rmax(qs):
        r = []
        for qb in qs:
            a = S(0, 0, qb); b = S(0, 1, qb); t = V_T + qb; nd = {f"S0_{qb}e": 8}
            r += [It(f"v_max3_f32 v{t}, v{a}, v{a+1}, v{a+2}", needs=nd), It(f"v_max3_f32 v{t+4}, v{b}, v{b+1}, v{b+2}"),
                  It(f"v_max3_f32 v{t}, v{t}, v{a+3}, v{b+3}"), It(f"v_max_f32 v{t}, v{t}, v{t+4}")]
        for n_, sw in enumerate(("v_permlane32_swap_b32", "v_permlane16_swap_b32")):
            for qb in qs: r.append(It(f"v_mov_b32 v{V_T+4+qb}, v{V_T+qb}", gives=f"mv{n_}_{qb}"))
            for qb in qs: r.append(It(f"{sw} v{V_T+4+qb}, v{V_T+qb}", cost=2, needs={f"mv{n_}_{qb}": 2}, gives=f"sw{n_}_{qb}"))
            for qb in qs: r.append(It(f"v_max_f32 v{V_T+qb}, v{V_T+qb}, v{V_T+4+qb}", needs={f"sw{n_}_{qb}": 1}))
        for qb in qs:
            for i in range(4): r.append(It(f"v_sub_f32 v{MN(qb)+i}, 0, v{V_T+qb}", gives=f"MN{qb}" if i == 3 else None))
        return r
    def sm0(qs, sub=True):
        r = []
        E = exps(0, qs); C = cvts(0, qs); A = adds(0, qs, cfg.addq())
        regs = [S(0, kb, qb) + i for qb in qs for kb in range(2) for i in range(4)]
        qof = [qb for qb in qs for _ in range(8)]
        n_ = len(E)
        for i in range(n_ + 2):
            if sub and i < n_: r.append(It(f"v_add_f32 v{regs[i]}, v{regs[i]}, v{MN(qof[i])}"))
            if 1 <= i <= n_: r.append(It(E[i-1], cost=2, gives=f"e{qs[0]}_{i-1}"))
            if i >= 2:
                if A[i-2]: r.append(It(A[i-2], needs={f"e{qs[0]}_{i-2}": 1}))
                if (i-2) % 2 == 1: r.append(It(C[(i-2)//2], needs={f"e{qs[0]}_{i-2}": 1}))
        return r
    last = {}
    for it in mq:
        if isinstance(it.gives, str) and it.gives.startswith("S"): last[it.gives] = it
    for g, it in last.items(): it.gives = g + "e"
    init = [It(f"v_mov_b32 v{V_LS+q}, 0") for q in range(4)] + [It(x) for x in pfv]
    vq = init + conv(0) + conv(1) + conv(2) + rmax([0, 1]) + conv(3) + sm0([0, 1]) + rmax([2, 3]) + sm0([2, 3])
    side = [It(W(vm="K0", barrier=True), cost=0, n=2)]
    for b in range(2):
        side += [It(L(x, f"HK{b}")) for x in kreads(0, b, HK(b))]
    side += [It(x, cost=0, n=3) for x in pfsetup]
    side += [It(W(lg="HK0"), cost=0, gives="KR0", needs={"A7_2": 0}), It(W(lg="HK1"), cost=0, gives="KR1")]
    G = lambda grp, nd=None: It(lambda kk, grp=grp: kk.run(grp), cost=2, n=3, needs=nd)
    side += [G(x) for x in kv_group('K', 2)] + [G(x, {"S0_2e": 0}) for x in kv_group('V', 1)]
    side += [It(W(vm="V0", barrier=True), cost=0, n=2, needs={"S0_3e": 0})]
    side += [It(x) for x in kreads(1, 0)] + [G(x) for x in kv_group('K', 3)] + [It(loopinit, cost=0, n=4)]
    merge(k, mq, vq, side)
    k("k1_first:")
    iteration(k, cfg, 1, first=True)
    k.stamp(3) if not cfg.fine else None
    k("s_branch k1_pos2")
    k(".p2align 6")
    k("k1_loop:")
    iteration(k, cfg, 0, pf=pfs[0] if cfg.pf else ())
    iteration(k, cfg, 1, pf=pfs[1] if cfg.pf else ())
    k("k1_pos2:")
    iteration(k, cfg, 2, pf=pfs[2] if cfg.pf else ())
    iteration(k, cfg, 3, pf=pfs[3] if cfg.pfo else (), post=[f"s_sub_u32 s{S_CNT}, s{S_CNT}, 1\ns_cmp_lg_u32 s{S_CNT}, 0\ns_cbranch_scc1 k1_loop"])
    k.c("tail")
    k.stamp(4) if not cfg.fine else None
    pv_phase(k, cfg, 1, 0, vreads(3, 0, KF), [], None, True)
    pv_phase(k, cfg, 0, 1, vreads(3, 1, VF), [], None, False, vf=KF, qbs=(0, 1, 2, 3), post=["s_nop 1"])
    pv_phase(k, cfg, 1, None, [], [], None, False)
    k.stamp(5) if not cfg.fine else None
    k("s_nop 7")
    LT = V_T
    for qb in range(4):
        if qb in cfg.sumq: k(f"v_accvgpr_read_b32 v{LT+qb}, a{LA(qb)}")
        else: k(f"v_mov_b32 v{LT+qb}, v{V_LS+qb}")
    aq = cfg.addq()
    if aq:
        for sw in ("v_permlane32_swap_b32", "v_permlane16_swap_b32"):
            for q in aq: k(f"v_mov_b32 v{LT+4+q}, v{LT+q}")
            k("s_nop 1")
            for q in aq: k(f"{sw} v{LT+4+q}, v{LT+q}")
            k("s_nop 1")
            for q in aq: k(f"v_add_f32 v{LT+q}, v{LT+q}, v{LT+4+q}")
    k(f"v_add_f32 v{LT+4}, v{LT}, v{LT+1}\nv_add_f32 v{LT+5}, v{LT+2}, v{LT+3}\nv_add_f32 v{LT+4}, v{LT+4}, v{LT+5}")
    k(f"s_mov_b32 s6, {hexf(2.0**64)}")
    k(f"v_cmp_nle_f32 vcc, v{LT+4}, s6")
    k("s_cmp_lg_u64 vcc, 0\ns_cselect_b32 s6, 1, 0")
    k(f"v_mov_b32 v{LT+5}, s6\ns_lshl_b32 s7, s{S_WAVE}, 2\ns_add_u32 s7, s7, {FLAGB}\nv_mov_b32 v{LT+6}, s7\nv_mov_b32 v{LT+7}, {FLAGB}")
    k(f"ds_write_b32 v{LT+6}, v{LT+5}")
    k("s_waitcnt vmcnt(0) lgkmcnt(0)\ns_barrier")
    k(f"ds_read_b128 {vr(LT+8,4)}, v{LT+7}")
    for qb in range(4): k(f"v_rcp_f32 v{LT+qb}, v{LT+qb}")
    k("s_waitcnt lgkmcnt(0)")
    k(f"v_or_b32 v{LT+8}, v{LT+8}, v{LT+9}\nv_or3_b32 v{LT+8}, v{LT+8}, v{LT+10}, v{LT+11}\ns_nop 0")
    k(f"v_readfirstlane_b32 s6, v{LT+8}")
    k(f"s_andn2_b32 s6, s6, s{S_RERUN}\ns_cmp_lg_u32 s6, 0\ns_cbranch_scc1 k1_fallback")
    for qb in range(4):
        k(f"s_mov_b32 s{S_T0+qb}, {qb*131072}")
        for s in range(4):
            t = 64 + ((qb*4+s) & 3)*8; o = 32 + ((qb*4+s) & 7)*4
            for h in range(2):
                for i in range(4): k(f"v_accvgpr_read_b32 v{t+4*h+i}, a{O(2*s+h,qb)+i}")
            for i in range(8): k(f"v_mul_f32 v{t+i}, v{t+i}, v{LT+qb}")
            for d in range(4): k(f"v_cvt_pk_bf16_f32 v{o+d}, v{t+2*d}, v{t+2*d+1}")
            k(f"buffer_store_dwordx4 {vr(o,4)}, v{V_L16}, {sr(S_O,4)}, s{S_T0+qb} offen offset:{s*1024} {OPT.st1}")
    if prof:
        k.stamp(6) if not cfg.fine else None
        k("s_waitcnt vmcnt(0)")
        k.stamp(7) if not cfg.fine else None
        k.dump_stamps(8, 54, 100)
    k(f"{end}:")
    k("s_endpgm")
    k("k1_fallback:")
    k(f"s_mov_b32 s{S_RERUN}, 1")
    k("v_and_b32 v2, 63, v0\nv_lshrrev_b32 v3, 4, v2\nv_and_b32 v4, 15, v2")
    k("v_lshlrev_b32 v5, 8, v4\nv_lshl_add_u32 v5, v3, 4, v5")
    for q in range(4): k(f"v_mov_b32 v{V_T+q}, 0xff800000")
    k("s_mov_b32 s6, 0")
    k("k1_fb_loop:")
    for s in range(4): k(f"buffer_load_dwordx4 {ar(KF(s),4)}, v5, {sr(S_K,4)}, s6 offen offset:{64*s}")
    k("s_waitcnt vmcnt(0)")
    for s in range(4):
        for qb in range(4):
            d = vr(S(0,0,qb),4)
            k(f"{MF} {d}, {ar(KF(s),4)}, {vr(Q(qb,s),4)}, {d if s else '0'}")
    k("s_nop 15")
    for qb in range(4):
        a = S(0,0,qb)
        k(f"v_max3_f32 v{V_T+qb}, v{V_T+qb}, v{a}, v{a+1}")
        k(f"v_max3_f32 v{V_T+qb}, v{V_T+qb}, v{a+2}, v{a+3}")
    k("s_add_u32 s6, s6, 4096\ns_cmp_lt_u32 s6, 0x80000\ns_cbranch_scc1 k1_fb_loop")
    rowmax_cross(k, [V_T+q for q in range(4)], V_T+4)
    for x in pfv: k(x)
    for qb in range(4):
        k(f"v_mov_b32 v{V_LS+qb}, 0")
        for i in range(4): k(f"v_sub_f32 v{MN(qb)+i}, 0, v{V_T+qb}")
    k("s_barrier")
    k.vm = []; k.lg = []
    for wh, t in (('K',0),('K',1),('V',0),('K',2),('V',1),('K',3)): run(kv_group(wh, t))
    k.wait(vm="V0", barrier=True)
    run(kreads(0, 0, HK(0))); k("s_waitcnt lgkmcnt(0)"); run(kreads(0, 1, HK(1)))
    for m in qk_mfmas(0, HK(0)): k(m)
    k("s_waitcnt lgkmcnt(0)\ns_barrier")
    run(kreads(1, 0))
    for m in qk_mfmas(1, HK(1)): k(m)
    merge(k, [], sm0([0, 1, 2, 3], sub=False))
    k(loopinit)
    k("s_branch k1_first")
    return k
```

```python
from common import *
from sched import fill, L, V, W, front, emit, It, merge
from k0 import mod_loads, mod_finish, C1

MF = "v_mfma_f32_16x16x32_bf16"

SLOT = 16384
KB = 0
VB = 65536
PARB = 9*SLOT
FLAGB = PARB + 4096
WSLOT = [1, 4, 2, 5, 3, 6, 7, 8]

def O(db, qb): return (db*4+qb)*4
def LA(qb): return 128 + qb*4
def KF(i): return 144 + i*4
def VF(i): return 176 + i*4
ONES = 208
def Q(qb, s): return 128 + (qb*4+s)*4
def S(buf, kb, qb): return 64 + buf*32 + (kb*4+qb)*4
def P(buf, qb): return 32 + buf*16 + qb*4
def MN(qb): return 192 + qb*4
V_KA = 8
V_VA = 12
V_DK = 20
V_DV = 24
V_L16 = 26
V_LS = 28
V_PF = 2
V_T = 208
def XR(slot, qb): return 128 + ((slot%4)*4+qb)*4
def QA(t, qb): return vr(192 + (qb*8+t)*4, 4) if qb < 2 else ar(((qb-2)*8+t)*4, 4)
def HK(b): return (lambda i: 64 + b*32 + i*4)
def HF(buf, qb): return 32 + (buf*4+qb)*4
def PAR(buf): return 64 + buf*16
V_PT = 96
V_WA = 112
V_DW = 124
V_PA = 125
def WF(buf, t): return 128 + (buf*8+t)*4
S_K, S_V, S_W, S_X, S_M, S_O = 8, 12, 16, 20, 24, 28
S_W4 = 32
S_KOFF, S_VOFF = 33, 34
S_CNT = 35
S_T0 = 36
S_RERUN = 44
S_WAVE = 45
S_W1 = 62

def emit_phase(k, mf, gaps):
    for f in gaps.get(-1, []): f(k) if callable(f) else k(f)
    for i, m in enumerate(mf):
        k(m)
        for f in gaps.get(i, []): f(k) if callable(f) else k(f)
    for g in gaps:
        assert g < len(mf), (g, len(mf))

def add(gaps, g, *items):
    gaps.setdefault(g, []).extend(items)

def qk_mfmas(buf, kf=KF, czero=False):
    r = []
    order = {0: [(kb,s,qb) for kb in range(2) for s in range(4) for qb in range(4)],
             1: [(kb,s,qb) for kb in range(2) for qb in range(4) for s in range(4)],
             2: [(kb,s,qb) for qb in range(4) for s in range(4) for kb in range(2)],
             4: [(kb,s if qb%2==0 else 3-s,qb) for kb in range(2) for qb in range(4) for s in range(4)],
             5: [(kb,s if kb%2==0 else 3-s,qb) for qb in range(4) for kb in range(2) for s in range(4)],
             3: [(kb,s,qb if s%2==0 else 3-qb) for kb in range(2) for s in range(4) for qb in range(4)]}[OPT.qko]
    seen = set()
    for kb, s, qb in order:
            if True:
                d = vr(S(buf, kb, qb), 4)
                started = (kb, qb) in seen; seen.add((kb, qb))
                c = d if started else ("0" if czero else vr(MN(qb), 4))
                r.append(f"{MF} {d}, {ar(kf(kb*4+s),4)}, {vr(Q(qb,s),4)}, {c}")
    return r

def pv_mfmas(buf, sumq, vf=VF, czero=False):
    r = []
    for qb in sumq:
        d = ar(LA(qb), 4)
        r.append(f"{MF} {d}, {ar(ONES,4)}, {vr(P(buf,qb),4)}, {'0' if czero else d}")
    order = {0: [(db,qb) for db in range(8) for qb in range(4)],
             1: [(db,qb) for qb in range(4) for db in range(8)],
             3: [(db if qb%2==0 else 7-db,qb) for qb in range(4) for db in range(8)],
             2: [(db,qb if db%2==0 else 3-qb) for db in range(8) for qb in range(4)]}[OPT.pvo]
    for db, qb in order:
        if True:
            d = ar(O(db, qb), 4)
            r.append(f"{MF} {d}, {ar(vf(db),4)}, {vr(P(buf,qb),4)}, {'0' if czero else d}")
    return r

def exps(buf, qbs):
    r = []
    for qb in qbs:
        for kb in range(2):
            for i in range(4):
                x = S(buf, kb, qb) + i
                r.append(f"v_exp_f32 v{x}, v{x}")
    return r
def cvts(buf, qbs):
    r = []
    for qb in qbs:
        for kb in range(2):
            for h in range(2):
                x = S(buf, kb, qb) + 2*h
                r.append(f"v_cvt_pk_bf16_f32 v{P(buf,qb)+kb*2+h}, v{x}, v{x+1}")
    return r
def adds(buf, qbs, addq):
    r = []
    for qb in qbs:
        for kb in range(2):
            for i in range(4):
                x = S(buf, kb, qb) + i
                r.append(f"v_add_f32 v{V_LS+qb}, v{x}, v{V_LS+qb}" if qb in addq else None)
    return r
def kreads(slot, blk, kf=KF):
    r = []
    for kb in range(2):
        for s in range(4):
            r.append(f"ds_read_b128 {ar(kf(kb*4+s),4)}, v{V_KA+s} offset:{KB+slot*SLOT+blk*8192+kb*4096}")
    return r
def vreads(slot, blk, vf=VF):
    r = []
    for db in range(8):
        for h in range(2):
            r.append(f"ds_read_b64_tr_b16 {ar(vf(db)+2*h,2)}, v{V_VA+db} offset:{slot*SLOT+blk*8192+h*4096}")
    return r
def dma_k(p): return f"buffer_load_dwordx4 v{V_DK+p}, {sr(S_K,4)}, s{S_KOFF} offen offset:{p*1024} {OPT.kvnt} lds"
def dma_v(p): return f"buffer_load_dwordx4 v{V_DV+(p&1)}, {sr(S_V,4)}, s{S_VOFF} offen offset:{p*1024} {OPT.kvnt} lds"

class Cfg:
    la = 4
    wb = 0
    pfo = 2
    pfc = (1, 6, 7)
    ppf = 0
    wocnt = 1
    bar2 = 0
    kvspread = 1
    w1pf = 0
    fine = 0
    kvper = 7
    x = 0
    pf = 2
    sumq = [1, 3]
    def addq(self): return [q for q in range(4) if q not in self.sumq]

def place_softmax(gaps, n, E, C, A, free, first_e=0):
    egap = []
    for i, e in enumerate(E):
        g = first_e + 2*i
        add(gaps, g, e); egap.append(g)
    items = []
    for p, c in enumerate(C): items.append((egap[2*p+1] + 1, c))
    for i, a in enumerate(A):
        if a: items.append((egap[i] + 1, a))
    items.sort(key=lambda t: t[0])
    free = sorted(free)
    for eg, txt in items:
        cand = [g for g in free if g >= eg]
        if cand:
            g = cand[0]; free.remove(g)
        else:
            g = n - 1
            assert g >= eg, (g, eg)
        add(gaps, g, txt)

def qk_phase(k, cfg, sbuf_out, sm_buf, vrd, pf=(), dmas=()):
    mf = qk_mfmas(sbuf_out)
    gaps = {}
    add(gaps, -1, "s_waitcnt lgkmcnt(0)")
    free = []
    odd = list(range(1, 32, 2))
    vi = 0
    for g in odd:
        if vi < len(vrd):
            add(gaps, g, vrd[vi], vrd[vi+1]); vi += 2
        else:
            free += [g, g]
    if pf:
        add(gaps, 16, pf[0]); add(gaps, 17, pf[1])
    for i, d in enumerate(dmas): add(gaps, 17 + 4*i, *d)
    qbs = [0, 1]
    place_softmax(gaps, 32, exps(sm_buf, qbs), cvts(sm_buf, qbs), adds(sm_buf, qbs, cfg.addq()), free)
    emit_phase(k, mf, gaps)

def pv_phase(k, cfg, pbuf, sm_buf, rd, dmas, m0, barrier, czero=False, vf=VF, qbs=(2, 3), post=(), extra_valu=()):
    mf = pv_mfmas(pbuf, cfg.sumq, vf, czero)
    n = len(mf); ns = len(cfg.sumq)
    gaps = {}
    w = "s_waitcnt vmcnt(16) lgkmcnt(0)\ns_barrier" if barrier else "s_waitcnt lgkmcnt(0)"
    add(gaps, ns - 1, w)
    free = []
    rd = list(rd); dmas = list(dmas)
    E = exps(sm_buf, qbs) if sm_buf is not None else []
    dense = len(E) > 16
    two = len(rd) > 8
    many = len(dmas) > 4
    odd = [g for g in range(1, n) if (g % 2 == 1 or g >= 2*len(E))]
    first = True
    for g in odd:
        if g < ns:
            if g != ns - 1: free += [g, g]
            continue
        if rd:
            add(gaps, g, rd.pop(0))
            if two: add(gaps, g, rd.pop(0))
            else: free.append(g)
        elif dmas and ((g // 2) % 2 == 0 or many):
            if first and m0:
                add(gaps, g - 1, m0); first = False
            d = dmas.pop(0)
            add(gaps, g, *(d if isinstance(d, list) else [d]))
        else:
            free += [g, g]
    assert not rd and not dmas
    if dense:
        C = cvts(sm_buf, qbs); A = adds(sm_buf, qbs, cfg.addq())
        for i, e in enumerate(E):
            add(gaps, i, e)
            if i >= 1 and A[i-1]: add(gaps, i, A[i-1])
            if i >= 2 and i % 2 == 0: add(gaps, i, C[i//2 - 1])
        gl = min(32, n - 1)
        if gl == 31: add(gaps, gl, "s_nop 0")
        if A[31]: add(gaps, gl, A[31])
        add(gaps, gl, C[15])
    elif E:
        place_softmax(gaps, n, E, cvts(sm_buf, qbs), adds(sm_buf, qbs, cfg.addq()), free)
    for f in post: add(gaps, n - 1, f)
    emit_phase(k, mf, gaps)

def iteration(k, cfg, t4, first=False, post=(), pf=()):
    ks = t4; vs = (t4 - 1) % 4
    m0k = f"s_add_u32 m0, s{S_W4}, {KB + ((t4+3)%4)*SLOT}"
    m0v = f"s_add_u32 m0, s{S_W4}, {VB + ((t4+2)%4)*SLOT}"
    dk = [dma_k(p) for p in range(4)]; dv = [dma_v(p) for p in range(4)]
    k.c(f"---- iteration T%4={t4} ----")
    if not first:
        pv_phase(k, cfg, 1, 0, kreads(ks, 0), dk, m0k, True, post=[f"s_add_u32 s{S_KOFF}, s{S_KOFF}, {SLOT}"])
    if first:
        g = lambda wh, t: [[kv_setup(wh, t), dma_k(p) if wh == 'K' else dma_v(p)] for p in range(4)]
        qk_phase(k, cfg, 0, 1, vreads(vs, 0), dmas=g('V', 2))
        pv_phase(k, cfg, 0, 1, kreads(ks, 1), g('K', 4), None, False, czero=True)
        qk_phase(k, cfg, 1, 0, vreads(vs, 1), dmas=g('V', 3))
        k(f"s_mov_b32 s{S_KOFF}, {5*SLOT}\ns_mov_b32 s{S_VOFF}, {4*SLOT}")
        return
    qk_phase(k, cfg, 0, 1, vreads(vs, 0), pf)
    pv_phase(k, cfg, 0, 1, kreads(ks, 1), dv, m0v, False, post=[f"s_add_u32 s{S_VOFF}, s{S_VOFF}, {SLOT}"])
    qk_phase(k, cfg, 1, 0, vreads(vs, 1))
    for f in post: k(f)

def kv_setup(which, tile):
    if which == 'K': return f"s_add_u32 m0, s{S_W4}, {KB + (tile%4)*SLOT}\ns_mov_b32 s{S_KOFF}, {tile*SLOT}"
    return f"s_add_u32 m0, s{S_W4}, {VB + (tile%4)*SLOT}\ns_mov_b32 s{S_VOFF}, {tile*SLOT}"
def kv_group(which, tile):
    return [[kv_setup(which, tile), V(dma_k(p) if which == 'K' else dma_v(p), f"{which}{tile}")] for p in range(4)]

def rowmax_cross(k, regs, tmp):
    for sw in ("v_permlane32_swap_b32", "v_permlane16_swap_b32"):
        for i, r in enumerate(regs): k(f"v_mov_b32 v{tmp+i}, v{r}")
        k("s_nop 1")
        for i, r in enumerate(regs): k(f"{sw} v{tmp+i}, v{r}")
        k("s_nop 1")
        for i, r in enumerate(regs): k(f"v_max_f32 v{r}, v{r}, v{tmp+i}")

def gen_k1(cfg=None, prof=False):
    cfg = cfg or Cfg()
    k = Kern("k1_attn_kernel", 256, 256, 160*1024, 512, 256, 96 if prof else 64)
    k.prof = prof
    end = "k1_end"
    k(f"s_cmp_ge_u32 s2, 256\ns_cbranch_scc1 {end}")
    k.stamp(0)
    k(f"s_load_dwordx4 s[48:51], s[0:1], {KA_K}")
    k(f"s_load_dwordx2 s[52:53], s[0:1], {KA_WQ}")
    k(f"s_load_dwordx2 s[54:55], s[0:1], {KA_WS}")
    k(f"s_load_dwordx2 s[46:47], s[0:1], {KA_WO}")
    k(f"s_load_dwordx4 s[56:59], s[0:1], {KA_WG}")
    k(f"s_load_dwordx2 s[60:61], s[0:1], {KA_WD}")
    k("v_lshrrev_b32 v1, 6, v0")
    k("v_and_b32 v2, 63, v0")
    k(f"v_readfirstlane_b32 s{S_WAVE}, v1")
    m = OPT.map4
    k(f"s_and_b32 s4, s2, {(8>>m)-1}\ns_bfe_u32 s5, s2, {((2+m)<<16)|3}\ns_lshl_b32 s5, s5, {3-m}\ns_add_u32 s4, s4, s5")
    k(f"s_bfe_u32 s5, s2, {(m<<16)|(3-m)}\ns_lshl_b32 s5, s5, {3-m}\ns_lshr_b32 s6, s2, {5+m}\ns_add_u32 s5, s5, s6")
    k(f"s_lshl_b32 s{S_W4}, s{S_WAVE}, 12")
    k(f"s_mov_b32 s{S_RERUN}, 0")
    k("v_lshrrev_b32 v3, 4, v2")
    k("v_and_b32 v4, 15, v2")
    k("v_lshrrev_b32 v5, 2, v4")
    k("v_and_b32 v6, 3, v2")
    k(f"v_lshlrev_b32 v{V_L16}, 4, v2")
    k("v_lshlrev_b32 v7, 2, v3\nv_xor_b32 v7, v7, v4\nv_lshlrev_b32 v7, 4, v7")
    k(f"v_lshl_add_u32 v{V_DW}, v1, 2, v3\nv_lshl_add_u32 v{V_DW}, v{V_DW}, 13, v7")
    k(f"s_lshl_b32 s{S_W1}, s{S_WAVE}, 10")
    k("s_waitcnt lgkmcnt(0)")
    k("s_lshl_b32 s6, s4, 8")
    k(f"s_add_u32 s{S_W}, s52, s6\ns_addc_u32 s{S_W+1}, s53, 0\ns_sub_u32 s{S_W+2}, {512*8192}, s6\ns_mov_b32 s{S_W+3}, 0x20000")
    k.srd(S_M, 54, 4*12288, WS_MODP)
    k(f"s_lshl_b32 s6, s5, 2\ns_add_u32 s6, s6, s{S_WAVE}\ns_lshl_b32 s7, s6, 16")
    k(f"s_add_u32 s7, s7, 0x{WS_XH:x}")
    k(f"s_add_u32 s{S_X}, s54, s7\ns_addc_u32 s{S_X+1}, s55, 0\ns_mov_b32 s{S_X+2}, 0x10000\ns_mov_b32 s{S_X+3}, 0x20000")
    def w_step(j):
        r = []
        for p in range(2):
            st = S_T0 + p
            r.append([f"s_add_u32 m0, s{S_W1}, {WSLOT[j>>1]*SLOT + (j&1)*8192 + p*4096}\ns_mov_b32 s{st}, {(j*32 + p*16)*8192}",
                      lambda kk, st=st: kk.vmop(f"buffer_load_dwordx4 v{V_DW}, {sr(S_W,4)}, s{st} offen {OPT.wqnt} lds", f"W{j}")])
        return r
    def x_loads(j):
        r = []
        for qb in range(4):
            st = S_T0 + 4 + qb
            r.append([f"s_mov_b32 s{st}, {qb*16384 + (j>>2)*4096}",
                      lambda kk, qb=qb, st=st: kk.vmop(f"buffer_load_dwordx4 {vr(XR(j,qb),4)}, v{V_L16}, {sr(S_X,4)}, s{st} offen offset:{(j&3)*1024}", f"X{j}" if j else f"X0_{qb}")])
        return r
    def run(items):
        for f in items:
            if isinstance(f, list): run(f)
            else: f(k) if callable(f) else k(f)
    k("v_lshlrev_b32 v31, 4, v0")
    mod_loads(k, S_M, 31, S_T0, V_PT, 0, "M")
    LA_ = cfg.la
    run(w_step(0)); run(x_loads(0))
    k("s_lshl_b32 s6, s4, 19")
    k(f"s_add_u32 s{S_K}, s48, s6\ns_addc_u32 s{S_K+1}, s49, 0\ns_mov_b32 s{S_K+2}, 0x80000\ns_mov_b32 s{S_K+3}, 0x20000")
    k(f"s_add_u32 s{S_V}, s50, s6\ns_addc_u32 s{S_V+1}, s51, 0\ns_mov_b32 s{S_V+2}, 0x80000\ns_mov_b32 s{S_V+3}, 0x20000")
    k(f"s_lshl_b32 s6, s5, 2\ns_add_u32 s6, s6, s{S_WAVE}\ns_lshl_b32 s6, s6, 19\ns_lshl_b32 s7, s4, 12\ns_add_u32 s6, s6, s7")
    k(f"s_add_u32 s6, s6, 0x{WS_OF:x}")
    k(f"s_add_u32 s{S_O}, s54, s6\ns_addc_u32 s{S_O+1}, s55, 0\ns_mov_b32 s{S_O+2}, {3*131072+4096}\ns_mov_b32 s{S_O+3}, 0x20000")
    k("v_lshl_add_u32 v7, v3, 3, v5\nv_lshlrev_b32 v7, 8, v7\nv_lshl_add_u32 v7, v6, 4, v7")
    for s in range(4):
        k(f"v_xor_b32 v27, {s}, v5\nv_lshl_add_u32 v{V_WA+s}, v27, 6, v7")
        k(f"v_add_u32 v{V_WA+4+s}, 0x10000, v{V_WA+s}\nv_add_u32 v{V_WA+8+s}, 0x20000, v{V_WA+s}")
    k(f"v_lshlrev_b32 v{V_PA}, 5, v3\nv_add_u32 v{V_PA}, {PARB}, v{V_PA}")
    for s in range(4):
        k(f"v_or_b32 v27, {4*s}, v3\nv_xor_b32 v27, v27, v4\nv_lshlrev_b32 v27, 4, v27\nv_lshl_add_u32 v{V_KA+s}, v4, 8, v27")
    k("v_lshl_add_u32 v7, v3, 2, v5\nv_and_b32 v27, 7, v7\nv_lshlrev_b32 v7, 8, v7\nv_lshl_add_u32 v7, v6, 3, v7")
    k(f"v_add_u32 v7, {VB}, v7")
    for db in range(8):
        k(f"v_xor_b32 v30, {db}, v27\nv_lshl_add_u32 v{V_VA+db}, v30, 5, v7")
    k("v_lshlrev_b32 v7, 8, v3\nv_lshl_add_u32 v7, v1, 12, v7")
    for p in range(4):
        k(f"v_or_b32 v27, {4*p}, v3\nv_xor_b32 v27, v27, v4\nv_lshl_add_u32 v{V_DK+p}, v27, 4, v7")
    for p in range(2):
        k(f"v_or_b32 v27, {4*p}, v3\nv_lshlrev_b32 v27, 1, v27\nv_xor_b32 v27, v27, v4\nv_lshl_add_u32 v{V_DV+p}, v27, 4, v7")
    k("v_mov_b32 v27, 0x3f803f80")
    for i in range(4): k(f"v_accvgpr_write_b32 a{ONES+i}, v27")

    def wreads(j):
        c = j >> 1; base = WSLOT[c]*SLOT; bank = base >> 16; off = (base & 0xffff) + (j & 1)*8192
        return [L(f"ds_read_b64_tr_b16 {ar(WF(j&1,t)+2*h,2)}, v{V_WA+4*bank+(t>>1)} offset:{off + h*1024 + 8*(t&1)}", f"R{j}_{t}")
                for t in range(8) for h in range(2)]
    def preads(j):
        b = PAR(j & 1)
        return [L(f"ds_read_b128 {vr(b+4*i,4)}, v{V_PA} offset:{j*128 + (i&1)*16 + (i>>1)*2048}", f"P{j}") for i in range(4)]
    def hcalc(j):
        b = PAR(j & 1); r = []
        for qb in range(4):
            t = V_PT + (qb & 1)*8
            for i in range(8):
                r.append(f"v_fma_mix_f32 v{t+i}, v{XR(j,qb)+(i>>1)}, v{b+8+i}, v{b+i} op_sel:[{i&1},0,0] op_sel_hi:[1,0,0]")
            for d in range(4):
                r.append(f"v_cvt_pk_bf16_f32 v{HF(j&1,qb)+d}, v{t+2*d}, v{t+2*d+1}")
        return r
    k(f"s_cmp_ge_u32 s{S_WAVE}, 2\ns_cselect_b32 s6, 1.0, 0\nv_add_u32 v31, {PARB}, v31")
    k.vmwait("M")
    mod_finish(k, V_PT, 6, C1)
    k(f"ds_write_b128 v31, {vr(V_PT,4)}")
    run(x_loads(1)); run(w_step(1))
    k.vmwait("W0", "lgkmcnt(0)"); k("s_barrier")
    run(preads(0)); run(preads(1)); run(wreads(0))
    assert LA_ == 4
    pend = [g for j in range(2, LA_) for g in x_loads(j) + w_step(j)]
    k.wait(lg="P0")
    k.stamp(1)
    for i, v in enumerate(hcalc(0)):
        if i % 12 == 0: k.wait(vm=f"X0_{i//12}")
        if i % 6 == 0 and pend: run(pend.pop(0))
        k(v)
    kvplan = {12: kv_group('K', 0), 13: kv_group('K', 1), 14: kv_group('V', 0)}
    for j in range(15):
        k.c(f"qproj stage {j}")
        if cfg.fine and j in (0, 2, 4, 8, 12): k.stamp(2 + (0, 2, 4, 8, 12).index(j))
        mf = []
        for t in range(8):
            for q in range(4):
                qb = q if t % 2 == 0 else 3 - q
                d = QA(t, qb)
                mf.append(f"{MF} {d}, {ar(WF(j&1,t),4)}, {vr(HF(j&1,qb),4)}, {d if j else '0'}")
        lds = (preads(j+2) if j < 14 else []) + wreads(j+1)
        valu = hcalc(j+1)
        jj = j + LA_
        pend += x_loads(jj) + w_step(jj) if jj < 16 else kvplan[j]
        nvm = min(len(pend), 8)
        vm = pend[:nvm]; pend = pend[nvm:]
        gaps = fill(32, lds, valu, vm, g0=1, valu_end=31)
        add(gaps, -1, W(lg=f"R{j}_3"))
        front(gaps, 12, W(lg=f"R{j}_7"))
        if j < 2 or j % 2 == 1 or not cfg.bar2:
            tgt = j+1 if (j < 1 or not cfg.bar2) else j+2
            front(gaps, 0, W(vm=f"W{tgt}", barrier=True))
        else:
            front(gaps, 0, W(vm=f"X{j+1}"))
        emit(k, mf, gaps)
    assert not pend
    k.stamp(2) if not cfg.fine else k.stamp(7)
    P0, P1, P2 = S_W, S_X, S_M
    pfsetup = [
        f"s_lshl_b32 s6, s4, 17\ns_and_b32 s7, s5, 3\ns_lshl_b32 s7, s7, 15",
        f"s_add_u32 s6, s6, s7\ns_lshl_b32 s7, s{S_WAVE}, 13\ns_add_u32 s6, s6, s7",
        f"s_add_u32 s{P0}, s46, s6\ns_addc_u32 s{P0+1}, s47, 0",
        f"s_lshr_b32 s6, s2, 3\ns_lshl_b32 s6, s6, 2\ns_add_u32 s{S_T0}, s6, s{S_WAVE}",
        f"s_cmp_lt_u32 s{S_T0}, 64\ns_cselect_b64 s[{P1}:{P1+1}], s[56:57], s[58:59]",
        f"s_and_b32 s6, s{S_T0}, 63\ns_mul_i32 s6, s6, {8*2752}\ns_and_b32 s7, s2, 3",
        f"s_mul_i32 s7, s7, 768\ns_add_u32 s6, s6, s7\ns_sub_u32 s{S_T0+5}, {512*2752}, s6",
        f"s_add_u32 s{P1}, s{P1}, s6\ns_addc_u32 s{P1+1}, s{P1+1}, 0",
        f"s_mul_i32 s6, s{S_T0}, {11*1024}\ns_and_b32 s7, s2, 1\ns_lshl_b32 s7, s7, 9",
        f"s_add_u32 s6, s6, s7\ns_min_u32 s6, s6, {1376*1024}\ns_sub_u32 s{S_T0+6}, {1376*1024}, s6",
        f"s_add_u32 s{P2}, s60, s6\ns_addc_u32 s{P2+1}, s61, 0\ns_mov_b32 s{S_T0+4}, 0x2000"]
    pfv = [f"v_lshlrev_b32 v{V_PF}, 3, v{V_L16}",
           f"v_lshrrev_b32 v{V_PF+1}, 7, v{V_L16}", f"v_mul_u32_u24 v{V_PF+1}, 2752, v{V_PF+1}", f"v_and_b32 v{V_PF+3}, 0x380, v{V_PF}",
           f"v_min_u32 v{V_PF+3}, 764, v{V_PF+3}", f"v_add_u32 v{V_PF+1}, v{V_PF+1}, v{V_PF+3}",
           f"v_lshrrev_b32 v{V_PF+2}, 6, v{V_L16}", f"v_min_u32 v{V_PF+2}, 10, v{V_PF+2}", f"v_and_b32 v{V_PF+3}, 0x180, v{V_PF}",
           f"v_lshl_add_u32 v{V_PF+2}, v{V_PF+2}, 10, v{V_PF+3}"]
    pfs = [[f"s_cmp_eq_u32 s{S_CNT}, {cfg.pfc[i]}\ns_cselect_b32 s{p+2}, s{S_T0+4+i}, 0",
            f"buffer_load_dword v{V_PF+3}, v{V_PF+i}, {sr(p,4)}, 0 offen"] for i, p in enumerate((P0, P1, P2))]
    pfs.append([f"s_sub_u32 s6, s{S_CNT}, {cfg.pfo}\ns_min_u32 s6, s6, 4\ns_lshl_b32 s6, s6, 17",
                f"buffer_load_dword v{V_PF+3}, v{V_PF+4}, {sr(S_O,4)}, s6 offen"])
    pfv.append(f"v_and_b32 v{V_PF+4}, 0xf80, v{V_PF}")
    loopinit = f"s_mov_b32 s{S_CNT}, 8"
    k.c("merged head")
    k.wait(lg='all')
    def qk_q(buf, qb, czero):
        r = []
        for kb in range(2):
            for i in range(4):
                s_ = i if kb == 0 else 3 - i
                d = vr(S(buf, kb, qb), 4)
                c = d if i else ("0" if czero else vr(MN(qb), 4))
                nd = {f"Q{qb}": 2, f"KR{buf}": 0}
                if not czero: nd[f"MN{qb}"] = 2
                r.append(It(f"{MF} {d}, {ar(HK(buf)(kb*4+s_),4)}, {vr(Q(qb,s_),4)}, {c}", needs=nd, gives=f"S{buf}_{qb}"))
        return r
    mq = []
    for qb in range(4):
        for t in range(8):
            d = QA(t, qb)
            mq.append(It(f"{MF} {d}, {ar(WF(1,t),4)}, {vr(HF(1,qb),4)}, {d}", gives=f"A{t}_{qb}"))
    mq += qk_q(0,0,True) + qk_q(0,1,True) + qk_q(0,2,True) + qk_q(1,0,False) + qk_q(1,1,False) + qk_q(0,3,True) + qk_q(1,2,False) + qk_q(1,3,False)
    def conv(qb):
        r = []
        for s_ in range(4):
            for h in range(2):
                t = 2*s_ + h; nd = {f"A{t}_{qb}": 8}
                if qb < 2: a = 192 + (qb*8+t)*4
                else:
                    a = 224 + (t & 3)*4
                    for i in range(4): r.append(It(f"v_accvgpr_read_b32 v{a+i}, a{((qb-2)*8+t)*4+i}", needs=nd))
                for d in range(2): r.append(It(f"v_cvt_pk_bf16_f32 v{Q(qb,s_)+2*h+d}, v{a+2*d}, v{a+2*d+1}", needs=nd, gives=f"Q{qb}x"))
        r[-1].gives = f"Q{qb}"
        return r
    def rmax(qs):
        r = []
        for qb in qs:
            a = S(0, 0, qb); b = S(0, 1, qb); t = V_T + qb; nd = {f"S0_{qb}e": 8}
            r += [It(f"v_max3_f32 v{t}, v{a}, v{a+1}, v{a+2}", needs=nd), It(f"v_max3_f32 v{t+4}, v{b}, v{b+1}, v{b+2}"),
                  It(f"v_max3_f32 v{t}, v{t}, v{a+3}, v{b+3}"), It(f"v_max_f32 v{t}, v{t}, v{t+4}")]
        for n_, sw in enumerate(("v_permlane32_swap_b32", "v_permlane16_swap_b32")):
            for qb in qs: r.append(It(f"v_mov_b32 v{V_T+4+qb}, v{V_T+qb}", gives=f"mv{n_}_{qb}"))
            for qb in qs: r.append(It(f"{sw} v{V_T+4+qb}, v{V_T+qb}", cost=2, needs={f"mv{n_}_{qb}": 2}, gives=f"sw{n_}_{qb}"))
            for qb in qs: r.append(It(f"v_max_f32 v{V_T+qb}, v{V_T+qb}, v{V_T+4+qb}", needs={f"sw{n_}_{qb}": 1}))
        for qb in qs:
            for i in range(4): r.append(It(f"v_sub_f32 v{MN(qb)+i}, 0, v{V_T+qb}", gives=f"MN{qb}" if i == 3 else None))
        return r
    def sm0(qs, sub=True):
        r = []
        E = exps(0, qs); C = cvts(0, qs); A = adds(0, qs, cfg.addq())
        regs = [S(0, kb, qb) + i for qb in qs for kb in range(2) for i in range(4)]
        qof = [qb for qb in qs for _ in range(8)]
        n_ = len(E)
        for i in range(n_ + 2):
            if sub and i < n_: r.append(It(f"v_add_f32 v{regs[i]}, v{regs[i]}, v{MN(qof[i])}"))
            if 1 <= i <= n_: r.append(It(E[i-1], cost=2, gives=f"e{qs[0]}_{i-1}"))
            if i >= 2:
                if A[i-2]: r.append(It(A[i-2], needs={f"e{qs[0]}_{i-2}": 1}))
                if (i-2) % 2 == 1: r.append(It(C[(i-2)//2], needs={f"e{qs[0]}_{i-2}": 1}))
        return r
    last = {}
    for it in mq:
        if isinstance(it.gives, str) and it.gives.startswith("S"): last[it.gives] = it
    for g, it in last.items(): it.gives = g + "e"
    init = [It(f"v_mov_b32 v{V_LS+q}, 0") for q in range(4)] + [It(x) for x in pfv]
    vq = init + conv(0) + conv(1) + conv(2) + rmax([0, 1]) + conv(3) + sm0([0, 1]) + rmax([2, 3]) + sm0([2, 3])
    side = [It(W(vm="K0", barrier=True), cost=0, n=2)]
    for b in range(2):
        side += [It(L(x, f"HK{b}")) for x in kreads(0, b, HK(b))]
    side += [It(x, cost=0, n=3) for x in pfsetup]
    side += [It(W(lg="HK0"), cost=0, gives="KR0", needs={"A7_2": 0}), It(W(lg="HK1"), cost=0, gives="KR1")]
    G = lambda grp, nd=None: It(lambda kk, grp=grp: kk.run(grp), cost=2, n=3, needs=nd)
    side += [G(x) for x in kv_group('K', 2)] + [G(x, {"S0_2e": 0}) for x in kv_group('V', 1)]
    side += [It(W(vm="V0", barrier=True), cost=0, n=2, needs={"S0_3e": 0})]
    side += [It(x) for x in kreads(1, 0)] + [G(x) for x in kv_group('K', 3)] + [It(loopinit, cost=0, n=4)]
    merge(k, mq, vq, side)
    k("k1_first:")
    iteration(k, cfg, 1, first=True)
    k.stamp(3) if not cfg.fine else None
    k("s_branch k1_pos2")
    k(".p2align 6")
    k("k1_loop:")
    iteration(k, cfg, 0, pf=pfs[0] if cfg.pf else ())
    iteration(k, cfg, 1, pf=pfs[1] if cfg.pf else ())
    k("k1_pos2:")
    iteration(k, cfg, 2, pf=pfs[2] if cfg.pf else ())
    iteration(k, cfg, 3, pf=pfs[3] if cfg.pfo else (), post=[f"s_sub_u32 s{S_CNT}, s{S_CNT}, 1\ns_cmp_lg_u32 s{S_CNT}, 0\ns_cbranch_scc1 k1_loop"])
    k.c("tail")
    k.stamp(4) if not cfg.fine else None
    pv_phase(k, cfg, 1, 0, vreads(3, 0, KF), [], None, True)
    pv_phase(k, cfg, 0, 1, vreads(3, 1, VF), [], None, False, vf=KF, qbs=(0, 1, 2, 3), post=["s_nop 1"])
    pv_phase(k, cfg, 1, None, [], [], None, False)
    k.stamp(5) if not cfg.fine else None
    k("s_nop 7")
    LT = V_T
    for qb in range(4):
        if qb in cfg.sumq: k(f"v_accvgpr_read_b32 v{LT+qb}, a{LA(qb)}")
        else: k(f"v_mov_b32 v{LT+qb}, v{V_LS+qb}")
    aq = cfg.addq()
    if aq:
        for sw in ("v_permlane32_swap_b32", "v_permlane16_swap_b32"):
            for q in aq: k(f"v_mov_b32 v{LT+4+q}, v{LT+q}")
            k("s_nop 1")
            for q in aq: k(f"{sw} v{LT+4+q}, v{LT+q}")
            k("s_nop 1")
            for q in aq: k(f"v_add_f32 v{LT+q}, v{LT+q}, v{LT+4+q}")
    k(f"v_add_f32 v{LT+4}, v{LT}, v{LT+1}\nv_add_f32 v{LT+5}, v{LT+2}, v{LT+3}\nv_add_f32 v{LT+4}, v{LT+4}, v{LT+5}")
    k(f"s_mov_b32 s6, {hexf(2.0**64)}")
    k(f"v_cmp_nle_f32 vcc, v{LT+4}, s6")
    k("s_cmp_lg_u64 vcc, 0\ns_cselect_b32 s6, 1, 0")
    k(f"v_mov_b32 v{LT+5}, s6\ns_lshl_b32 s7, s{S_WAVE}, 2\ns_add_u32 s7, s7, {FLAGB}\nv_mov_b32 v{LT+6}, s7\nv_mov_b32 v{LT+7}, {FLAGB}")
    k(f"ds_write_b32 v{LT+6}, v{LT+5}")
    k("s_waitcnt vmcnt(0) lgkmcnt(0)\ns_barrier")
    k(f"ds_read_b128 {vr(LT+8,4)}, v{LT+7}")
    for qb in range(4): k(f"v_rcp_f32 v{LT+qb}, v{LT+qb}")
    k("s_waitcnt lgkmcnt(0)")
    k(f"v_or_b32 v{LT+8}, v{LT+8}, v{LT+9}\nv_or3_b32 v{LT+8}, v{LT+8}, v{LT+10}, v{LT+11}\ns_nop 0")
    k(f"v_readfirstlane_b32 s6, v{LT+8}")
    k(f"s_andn2_b32 s6, s6, s{S_RERUN}\ns_cmp_lg_u32 s6, 0\ns_cbranch_scc1 k1_fallback")
    for qb in range(4):
        k(f"s_mov_b32 s{S_T0+qb}, {qb*131072}")
        for s in range(4):
            t = 64 + ((qb*4+s) & 3)*8; o = 32 + ((qb*4+s) & 7)*4
            for h in range(2):
                for i in range(4): k(f"v_accvgpr_read_b32 v{t+4*h+i}, a{O(2*s+h,qb)+i}")
            for i in range(8): k(f"v_mul_f32 v{t+i}, v{t+i}, v{LT+qb}")
            for d in range(4): k(f"v_cvt_pk_bf16_f32 v{o+d}, v{t+2*d}, v{t+2*d+1}")
            k(f"buffer_store_dwordx4 {vr(o,4)}, v{V_L16}, {sr(S_O,4)}, s{S_T0+qb} offen offset:{s*1024} {OPT.st1}")
    if cfg.wb == 1:
        k("s_waitcnt vmcnt(0)\nbuffer_wbl2 sc1")
    if cfg.wb == 2:
        k(f"s_waitcnt vmcnt(0)\ns_barrier\ns_cmp_eq_u32 s{S_WAVE}, 0\ns_cbranch_scc0 k1_nowb\nbuffer_wbl2 sc1\nk1_nowb:")
    if prof:
        k.stamp(6) if not cfg.fine else None
        k("s_waitcnt vmcnt(0)")
        k.stamp(7) if not cfg.fine else None
        k.dump_stamps(8, 54, 100)
    k(f"{end}:")
    k("s_endpgm")
    k("k1_fallback:")
    k(f"s_mov_b32 s{S_RERUN}, 1")
    k("v_and_b32 v2, 63, v0\nv_lshrrev_b32 v3, 4, v2\nv_and_b32 v4, 15, v2")
    k("v_lshlrev_b32 v5, 8, v4\nv_lshl_add_u32 v5, v3, 4, v5")
    for q in range(4): k(f"v_mov_b32 v{V_T+q}, 0xff800000")
    k("s_mov_b32 s6, 0")
    k("k1_fb_loop:")
    for s in range(4): k(f"buffer_load_dwordx4 {ar(KF(s),4)}, v5, {sr(S_K,4)}, s6 offen offset:{64*s}")
    k("s_waitcnt vmcnt(0)")
    for s in range(4):
        for qb in range(4):
            d = vr(S(0,0,qb),4)
            k(f"{MF} {d}, {ar(KF(s),4)}, {vr(Q(qb,s),4)}, {d if s else '0'}")
    k("s_nop 15")
    for qb in range(4):
        a = S(0,0,qb)
        k(f"v_max3_f32 v{V_T+qb}, v{V_T+qb}, v{a}, v{a+1}")
        k(f"v_max3_f32 v{V_T+qb}, v{V_T+qb}, v{a+2}, v{a+3}")
    k("s_add_u32 s6, s6, 4096\ns_cmp_lt_u32 s6, 0x80000\ns_cbranch_scc1 k1_fb_loop")
    rowmax_cross(k, [V_T+q for q in range(4)], V_T+4)
    for x in pfv: k(x)
    for qb in range(4):
        k(f"v_mov_b32 v{V_LS+qb}, 0")
        for i in range(4): k(f"v_sub_f32 v{MN(qb)+i}, 0, v{V_T+qb}")
    k("s_barrier")
    k.vm = []; k.lg = []
    for wh, t in (('K',0),('K',1),('V',0),('K',2),('V',1),('K',3)): run(kv_group(wh, t))
    k.wait(vm="V0", barrier=True)
    run(kreads(0, 0, HK(0))); k("s_waitcnt lgkmcnt(0)"); run(kreads(0, 1, HK(1)))
    for m in qk_mfmas(0, HK(0)): k(m)
    k("s_waitcnt lgkmcnt(0)\ns_barrier")
    run(kreads(1, 0))
    for m in qk_mfmas(1, HK(1)): k(m)
    merge(k, [], sm0([0, 1, 2, 3], sub=False))
    k(loopinit)
    k("s_branch k1_first")
    return k
```

```python
from common import *
from sched import *
from k0 import mod_loads, mod_finish
MF = "v_mfma_f32_16x16x32_bf16"

TOP = 147456
SCR = TOP + 8192
S_WAVE, S_TT, S_M = 3, 4, 5
S_A, S_B, S_C, S_D, S_E, S_FL = 8, 12, 16, 20, 24, 28
S_W1, S_X0, S_T0 = 32, 33, 36
V_L16 = 10

def handoff_signal(k, ph):
    lab = f"kt_h{ph}"
    rep = OPT.rep
    k(f"s_lshl_b32 s6, s{S_TT}, 11\ns_add_u32 s6, s6, {ph*32768}")
    k(f"v_and_b32 v252, 15, v0\nv_lshlrev_b32 v253, 7, v252\nv_lshlrev_b32 v252, 2, v252\ns_lshl_b32 s7, s{S_M}, 2\nv_add_u32 v253, s7, v253\nv_mov_b32 v254, 1")
    if rep > 1:
        k(f"s_lshr_b32 s7, s{S_M}, {2 if rep == 4 else 0}\ns_lshl_b32 s7, s7, 7\nv_add_u32 v252, s7, v252")
    k("s_waitcnt vmcnt(0)\ns_barrier")
    k(f"s_cmp_eq_u32 s{S_WAVE}, {1 if OPT.pdelay >= 0 else 0}\ns_cbranch_scc0 {lab}_a")
    k(f"s_mov_b64 exec, {(1 << rep) - 1}")
    k(f"buffer_store_dword v254, v253, {sr(S_FL,4)}, s6 offen {OPT.fst}\ns_mov_b64 exec, -1")
    k(f"{lab}_a:")
    k(f"s_cmp_eq_u32 s{S_WAVE}, 0\ns_cbranch_scc0 {lab}_c")
    k("s_mov_b32 s7, 0")
    if OPT.pdelay > 0: k(f"s_sleep {OPT.pdelay}")
    if OPT.pdelay < 0: k("s_waitcnt vmcnt(0)")
    k(f"{lab}_b:")
    k(f"buffer_load_dword v248, v252, {sr(S_FL,4)}, s6 offen {OPT.fld}\ns_waitcnt vmcnt(0)\nv_cmp_ne_u32 vcc, 1, v248")
    k(f"s_cbranch_vccz {lab}_c")
    if OPT.psleep: k(f"s_sleep {OPT.psleep}")
    k(f"s_add_u32 s7, s7, 1\ns_cmp_lt_u32 s7, 0x10000\ns_cbranch_scc1 {lab}_b")
    k(f"{lab}_c:")
    k("s_barrier")

def gen_kt(prof=False):
    k = Kern("k2_tail_kernel", 256, 512, 160*1024, 256, 256, 96 if prof else 64)
    k.prof = prof
    end = "kt_end"
    k(f"s_cmp_ge_u32 s2, 256\ns_cbranch_scc1 {end}")
    k.stamp(0)
    k(f"s_load_dwordx2 s[52:53], s[0:1], {KA_WO}")
    k(f"s_load_dwordx2 s[54:55], s[0:1], {KA_WS}")
    k(f"s_load_dwordx4 s[48:51], s[0:1], {KA_WG}")
    k(f"s_load_dwordx2 s[56:57], s[0:1], {KA_WD}")
    k(f"s_load_dwordx2 s[58:59], s[0:1], {KA_OUT}")
    k(f"s_load_dwordx2 s[46:47], s[0:1], {KA_X}")
    k("v_lshrrev_b32 v1, 6, v0\nv_and_b32 v2, 63, v0")
    k(f"v_readfirstlane_b32 s{S_WAVE}, v1")
    k(f"s_bfe_u32 s{S_TT}, s2, 0x10002\ns_lshl_b32 s{S_TT}, s{S_TT}, 3\ns_bfe_u32 s6, s2, 0x30003\ns_add_u32 s{S_TT}, s{S_TT}, s6")
    k(f"s_and_b32 s{S_M}, s2, 3\ns_lshl_b32 s{S_M}, s{S_M}, 2\ns_lshr_b32 s6, s2, 6\ns_add_u32 s{S_M}, s{S_M}, s6")
    k("v_lshrrev_b32 v3, 4, v2\nv_and_b32 v4, 15, v2")
    k(f"v_lshlrev_b32 v{V_L16}, 4, v2")
    k(f"s_cmp_lt_u32 s{S_WAVE}, 4\ns_cbranch_scc1 kt_compute")

    A_STG, A_NSL, A_NK = 16384, 8, 32
    C_W, C_NW, C_B, C_NB, C_NK = 12288, OPT.cnw, 8192, OPT.cnb, 16
    C_BB = C_W*C_NW
    assert C_BB + C_B*C_NB <= TOP
    D_W, D_NW, D_B, D_NB, D_NK, D_NS = 8192, OPT.dnw, 8192, OPT.dnb, 43, 22
    D_BB = D_W*D_NW
    assert D_BB + D_B*D_NB <= TOP

    k(f"v_and_b32 v1, 3, v1\ns_and_b32 s{S_WAVE}, s{S_WAVE}, 3\ns_lshl_b32 s{S_W1}, s{S_WAVE}, 10")
    V_DA, V_DC, V_DD = 16, 17, 20
    k("v_lshl_add_u32 v7, v1, 2, v3\nv_and_b32 v11, 7, v7\nv_lshlrev_b32 v11, 1, v11\nv_xor_b32 v11, v11, v4\nv_lshlrev_b32 v7, 10, v7")
    k(f"v_lshl_add_u32 v{V_DA}, v11, 4, v7")
    k(f"s_lshr_b32 s6, s{S_M}, 2\ns_lshl_b32 s7, s6, 17\ns_and_b32 s33, s{S_M}, 3\ns_lshl_b32 s33, s33, 8\ns_add_u32 s7, s7, s33")
    k(f"s_lshl_b32 s33, s{S_TT}, 3\ns_add_u32 s33, s33, s{S_WAVE}")
    k(f"s_lshl_b32 s34, s33, 17\ns_lshl_b32 s6, s6, 12\ns_add_u32 s34, s34, s6\ns_add_u32 s34, s34, 0x{WS_OF:x}")
    k("s_waitcnt lgkmcnt(0)")
    k(f"s_add_u32 s{S_A}, s52, s7\ns_addc_u32 s{S_A+1}, s53, 0\ns_sub_u32 s{S_A+2}, {4096*1024}, s7\ns_mov_b32 s{S_A+3}, 0x20000")
    k(f"s_add_u32 s{S_B}, s54, s34\ns_addc_u32 s{S_B+1}, s55, 0\ns_mov_b32 s{S_B+2}, {5*131072}\ns_mov_b32 s{S_B+3}, 0x20000")
    def a_step(j):
        for p in range(2):
            k(f"s_add_u32 m0, s{S_W1}, {(j % A_NSL)*A_STG + p*4096}\ns_mov_b32 s{S_T0}, {((j>>2)*512 + (j&3)*32 + p*16)*1024}")
            k.vmop(f"buffer_load_dwordx4 v{V_DA}, {sr(S_A,4)}, s{S_T0} offen lds", f"S{j}")
            k(f"s_add_u32 m0, s{S_W1}, {(j % A_NSL)*A_STG + 8192 + p*4096}\ns_mov_b32 s{S_T0+1}, {p*4*131072 + (j>>2)*16384 + (j&3)*1024}")
            k.vmop(f"buffer_load_dwordx4 v{V_L16}, {sr(S_B,4)}, s{S_T0+1} offen {OPT.ont} lds", f"S{j}")
    a_step(0); a_step(1)
    k.wait(vm="S0", barrier=True)
    a_step(2); a_step(3)
    k.wait(vm="S1", barrier=True)
    nxt = 4
    for j in range(1, A_NK-1, 2):
        for _ in range(2):
            if nxt < A_NK: a_step(nxt); nxt += 1
        if j == A_NK-3:
            k.srd(S_E, 54, 4*12288, WS_MODP)
            k("v_and_b32 v30, 255, v0\nv_lshlrev_b32 v30, 4, v30")
            mod_loads(k, S_E, 30, S_T0, 32, 4096, "M0")
            mod_loads(k, S_E, 30, S_T0+4, 48, 8192, "M1")
        k.wait(vm=f"S{j+2}", barrier=True)
    k("v_and_b32 v7, 1, v1\nv_lshlrev_b32 v7, 4, v7")
    for p in range(3):
        k(f"v_add_u32 v12, {64*p}, v2")
        k("v_mul_u32_u24 v13, 0x5556, v12\nv_lshrrev_b32 v13, 18, v13")
        k("v_mul_u32_u24 v14, 12, v13\nv_sub_u32 v14, v12, v14")
        k("v_lshrrev_b32 v15, 1, v13\nv_and_b32 v15, 2, v15\nv_xor_b32 v14, v14, v15")
        k("v_add_u32 v13, v13, v7\nv_mul_u32_u24 v13, 2752, v13")
        k(f"v_lshl_add_u32 v{V_DC+p}, v14, 4, v13")
        if p: k(f"v_subrev_u32 v{V_DC+p}, {1024*p}, v{V_DC+p}")
    k("v_lshrrev_b32 v7, 3, v2\nv_and_b32 v12, 7, v2\nv_lshlrev_b32 v11, 1, v7\nv_and_b32 v11, 4, v11\nv_xor_b32 v12, v12, v11")
    k(f"v_lshlrev_b32 v7, 10, v7\nv_lshl_add_u32 v{V_DD}, v12, 4, v7")
    k(f"s_mul_i32 s35, s{S_WAVE}, 3072\ns_mul_i32 s7, s{S_M}, 192")
    k(f"s_cmp_lt_u32 s{S_WAVE}, 2\ns_cselect_b64 s[{S_A}:{S_A+1}], s[48:49], s[50:51]")
    k(f"s_add_u32 s{S_A}, s{S_A}, s7\ns_addc_u32 s{S_A+1}, s{S_A+1}, 0\ns_sub_u32 s{S_A+2}, {512*2752}, s7")
    k(f"s_lshl_b32 s34, s33, 14\ns_add_u32 s34, s34, 0x{WS_H2:x}")
    k(f"s_add_u32 s{S_B}, s54, s34\ns_addc_u32 s{S_B+1}, s55, 0\ns_mov_b32 s{S_B+2}, {5*16384}")
    k(f"s_and_b32 s6, s{S_M}, 7\ns_lshl_b32 s6, s6, 7\ns_lshl_b32 s7, s{S_WAVE}, 13\ns_add_u32 s6, s6, s7")
    k(f"s_add_u32 s{S_C}, s56, s6\ns_addc_u32 s{S_C+1}, s57, 0\ns_sub_u32 s{S_C+2}, {1376*1024}, s6\ns_mov_b32 s{S_C+3}, 0x20000")
    k(f"s_lshr_b32 s6, s{S_M}, 3\ns_lshl_b32 s6, s6, 2\ns_add_u32 s6, s6, s33\ns_mul_i32 s6, s6, {43*1024}\ns_add_u32 s6, s6, 0x{WS_HF:x}")
    k(f"s_add_u32 s{S_D}, s54, s6\ns_addc_u32 s{S_D+1}, s55, 0\ns_mov_b32 s{S_D+2}, {43*1024}\ns_mov_b32 s{S_D+3}, 0x20000")
    k(f"s_mov_b32 s6, 0\ns_cmp_lt_u32 s{S_WAVE}, 2\ns_cselect_b32 s7, 1.0, 0\nv_add_u32 v30, {TOP}, v30")
    k.wait(vm="M1")
    mod_finish(k, 32, 6); mod_finish(k, 48, 7)
    k("ds_write_b128 v30, v[32:35]\nds_write_b128 v30, v[48:51] offset:4096\ns_waitcnt lgkmcnt(0)")
    def c_w(j):
        k(f"s_add_u32 m0, s35, {(j % C_NW)*C_W}\ns_mov_b32 s{S_T0}, {j*32*2752}")
        for p in range(3): k.vmop(f"buffer_load_dwordx4 v{V_DC+p}, {sr(S_A,4)}, s{S_T0} offen offset:{p*1024} lds", f"CW{j}")
    def c_b(j):
        for p in range(2):
            k(f"s_add_u32 m0, s{S_W1}, {C_BB + (j % C_NB)*C_B + p*4096}\ns_mov_b32 s{S_T0+1}, {p*65536 + j*1024}")
            k.vmop(f"buffer_load_dwordx4 v{V_L16}, {sr(S_B,4)}, s{S_T0+1} offen sc1 lds", f"CB{j}")
    def d_w(g):
        for i in range(2):
            j = 2*g + i
            if j >= D_NK: break
            k(f"s_add_u32 m0, s{S_W1}, {(g % D_NW)*D_W + i*4096}\ns_mov_b32 s{S_T0}, {j*32*1024}")
            k.vmop(f"buffer_load_dwordx4 v{V_DD}, {sr(S_C,4)}, s{S_T0} offen lds", f"DW{g}")
    def d_b(g):
        for i in range(2):
            j = 2*g + i
            if j >= D_NK: break
            k(f"s_add_u32 m0, s{S_W1}, {D_BB + (g % D_NB)*D_B + i*4096}\ns_mov_b32 s{S_T0+1}, {j*1024}")
            k.vmop(f"buffer_load_dwordx4 v{V_L16}, {sr(S_D,4)}, s{S_T0+1} offen sc1 lds", f"DB{g}")
    def ring(n, nw, nb, fw, fb, tw, tb, lag, nW):
        nB = min(nb, n)
        for j in range(nB):
            if nW <= j: fw(nW); nW += 1
            fb(j)
        k.wait(vm=f"{tb}0", barrier=True)
        for j in range(n-1):
            order = []
            if nB < n and nB - nb <= j - lag: order.append('B')
            if nW < n and nW - nw <= j - 2: order.append('W')
            for o in order:
                if o == 'B': fb(nB); nB += 1
                else: fw(nW); nW += 1
            assert nB > j + 1 and nW > j + 1, (j, nB, nW)
            k.wait(vm=f"{tw}{j+1}"); k.wait(vm=f"{tb}{j+1}", barrier=True)
    pre = [int(c) for c in OPT.cpre]
    assert sum(pre) <= C_NW and pre[0] <= 6
    k(f"s_cmp_eq_u32 s{S_M}, 15\ns_cbranch_scc1 kt_l15")
    nw_ = 0
    for n_ in pre:
        for _ in range(n_): c_w(nw_); nw_ += 1
        k("s_barrier")
    ring(C_NK, C_NW, C_NB, c_w, c_b, "CW", "CB", 1, nw_)
    k("s_barrier")
    k("s_branch kt_l_d")
    k("kt_l15:")
    k("s_barrier\ns_barrier\ns_barrier\ns_barrier\ns_barrier\ns_barrier")
    k("kt_l_d:")
    k.vm = []
    for g in range(OPT.dpre): d_w(g)
    k("s_barrier")
    for g in range(OPT.dpre, OPT.dpre + OPT.dmid): d_w(g)
    k("s_barrier")
    assert OPT.dpre + OPT.dmid <= D_NW
    ring(D_NS, D_NW, D_NB, d_w, d_b, "DW", "DB", 2, OPT.dpre + OPT.dmid)
    k("s_endpgm")

    k("kt_compute:")
    k.vm = []
    k("v_lshrrev_b32 v5, 2, v4\nv_and_b32 v6, 3, v2")
    ACC = lambda t, tb: 64 + (t*4+tb)*4
    WF = lambda buf, t: 128 + (buf*4+t)*4
    BF = lambda buf, tb: 160 + (buf*4+tb)*4
    V_WA, V_BA = 16, 24
    k("v_lshl_add_u32 v7, v3, 2, v5\nv_and_b32 v11, 7, v7\nv_lshlrev_b32 v7, 8, v7\nv_lshl_add_u32 v7, v6, 3, v7")
    k("v_lshlrev_b32 v13, 1, v1\nv_and_b32 v13, 4, v13\nv_xor_b32 v11, v11, v13")
    for t in range(4):
        k(f"v_xor_b32 v12, {t}, v11\nv_lshl_add_u32 v{V_WA+t}, v12, 5, v7\nv_add_u32 v{V_WA+4+t}, 0x10000, v{V_WA+t}")
    k(f"v_and_b32 v13, 1, v1\nv_lshl_add_u32 v{V_BA}, v13, 12, v{V_L16}\nv_add_u32 v{V_BA+1}, 0x10000, v{V_BA}")
    k(f"s_lshr_b32 s7, s{S_M}, 2\ns_lshl_b32 s7, s7, 21\ns_lshl_b32 s6, s{S_TT}, 17\ns_add_u32 s7, s7, s6\ns_and_b32 s6, s{S_M}, 3\ns_lshl_b32 s6, s6, 12\ns_add_u32 s7, s7, s6")
    k(f"s_and_b32 s6, s{S_WAVE}, 1\ns_lshl_b32 s6, s6, 16\ns_add_u32 s7, s7, s6\ns_lshr_b32 s6, s{S_WAVE}, 1\ns_lshl_b32 s6, s6, 11\ns_add_u32 s7, s7, s6\ns_add_u32 s7, s7, 0x{WS_PART:x}")
    VB4, VB5, VB6, VB7, VB8 = 26, 27, 28, 29, 30
    k("v_and_b32 v12, 7, v0\nv_bfe_u32 v13, v0, 3, 2\nv_lshrrev_b32 v14, 5, v0")
    k(f"v_lshlrev_b32 v{VB4}, 10, v14\nv_lshl_add_u32 v{VB4}, v13, 8, v{VB4}\nv_lshl_add_u32 v{VB4}, v12, 4, v{VB4}")
    k(f"v_lshlrev_b32 v{VB5}, 10, v12\nv_lshl_add_u32 v{VB5}, v14, 6, v{VB5}\nv_lshl_add_u32 v{VB5}, v13, 3, v{VB5}")
    k(f"v_lshlrev_b32 v{VB6}, 7, v14\nv_lshl_add_u32 v{VB6}, v13, 4, v{VB6}\nv_add_u32 v{VB6}, {TOP}, v{VB6}")
    k(f"v_lshlrev_b32 v{VB7}, 4, v12\nv_add_u32 v{VB7}, {SCR}, v{VB7}\nv_lshl_add_u32 v{VB8}, v1, 2, v{VB7}")
    k(f"s_lshl_b32 s33, s{S_TT}, 4\ns_add_u32 s33, s33, s{S_M}\ns_lshr_b32 s34, s33, 1\ns_lshl_b32 s34, s34, 14\ns_and_b32 s6, s33, 1\ns_lshl_b32 s6, s6, 7\ns_add_u32 s34, s34, s6\ns_lshl_b32 s33, s33, 13")
    k("s_waitcnt lgkmcnt(0)")
    k(f"s_add_u32 s{S_A}, s54, s7\ns_addc_u32 s{S_A+1}, s55, 0\ns_mov_b32 s{S_A+2}, {3*16384+2048}\ns_mov_b32 s{S_A+3}, 0x20000")
    k.srd(S_FL, 54, 3*32768, WS_FLAG)
    k.srd(S_B, 46, 2048*1024)
    k.srd(S_C, 54, 4*2048*1024, WS_PART)
    k.srd(S_D, 54, 2048*1024, WS_H2)
    k.srd(S_E, 54, 2048*1024, WS_X1)
    def a_reads(j):
        base = (j % A_NSL)*A_STG; bank = base >> 16; off = base & 0xffff
        w = [[L(f"ds_read_b64_tr_b16 {vr(WF(j&1,t)+2*h,2)}, v{V_WA+4*bank+t} offset:{off + h*4096}", f"R{j}_{t}") for h in range(2)] for t in range(4)]
        b = [L(f"ds_read_b128 {vr(BF(j&1,tb),4)}, v{V_BA+bank} offset:{off + 8192 + tb*1024}", f"R{j}_0") for tb in range(4)]
        return b + w[0] + w[1] + w[2] + w[3]
    k("s_barrier")
    k.run(a_reads(0))
    XR = 192
    for j in range(A_NK):
        mf = []
        for t in range(4):
            for tb_ in range(4):
                tb = tb_ if t % 2 == 0 else 3 - tb_
                d = vr(ACC(t, tb), 4)
                mf.append(f"{MF} {d}, {vr(WF(j&1,t),4)}, {vr(BF(j&1,tb),4)}, {d if j else '0'}")
        lds = a_reads(j+1) if j < A_NK-1 else []
        vm = []
        if j == A_NK-1:
            vm = [[f"buffer_load_dwordx2 {vr(XR+pc*4+h*2,2)}, v{VB5}, {sr(S_B,4)}, s33 offen offset:{pc*512+h*32}"] for pc in range(2) for h in range(2)]
        gaps = fill(16, lds, [], vm, g0=1)
        add(gaps, -1, W(lg=f"R{j}_1"))
        if j < A_NK-1 and (j < 2 or j % 2 == 1): front(gaps, 0, "s_barrier")
        front(gaps, 6, W(lg=f"R{j}_3"))
        if OPT.slowa and j < OPT.slown: add(gaps, 15, f"s_sleep {OPT.slowa}")
        emit(k, mf, gaps)
    k.stamp(1)
    n = 0
    for tb in range(4): k(f"s_mov_b32 s{S_T0+tb}, {tb*16384}")
    for ns in range(2):
        for tb in range(4):
            o = 32 + (n & 7)*4; n += 1
            for h in range(2):
                a = ACC(2*ns+h, tb)
                k(f"v_cvt_pk_bf16_f32 v{o+2*h}, v{a}, v{a+1}\nv_cvt_pk_bf16_f32 v{o+2*h+1}, v{a+2}, v{a+3}")
            k(f"buffer_store_dwordx4 {vr(o,4)}, v{V_L16}, {sr(S_A,4)}, s{S_T0+tb} offen offset:{ns*1024} sc1")
    for i in range(8): k(f"s_add_u32 s{S_T0+i}, s34, {(i>>1)*0x200000 + (i&1)*8192}")
    handoff_signal(k, 0)
    k.stamp(2)
    PR, PA, AC, T, XF = 64, 96, 144, 160, 168
    k.vm = []; k.lg = []
    for i in range(8): k.vmop(f"buffer_load_dwordx4 {vr(PR+i*4,4)}, v{VB4}, {sr(S_C,4)}, s{S_T0+i} offen sc1", f"S{i>>1}")
    for wi in range(3):
        for pc in range(2):
            for h in range(2): k(f"ds_read_b128 {vr(PA+wi*16+pc*8+h*4,4)}, v{VB6} offset:{wi*2048 + pc*1024 + h*64}")
    GB = 240
    k(f"v_lshrrev_b32 v11, 1, v1\nv_lshlrev_b32 v12, 5, v3\nv_lshl_add_u32 v12, v11, 7, v12\ns_and_b32 s6, s{S_M}, 7\ns_lshl_b32 s6, s6, 8\ns_add_u32 s6, s6, {TOP+6144}\nv_add_u32 v12, s6, v12")
    k(f"ds_read_b128 {vr(GB,4)}, v12\nds_read_b128 {vr(GB+4,4)}, v12 offset:16")
    for d in range(8): k(f"v_lshlrev_b32 v{XF+2*d}, 16, v{XR+d}\nv_and_b32 v{XF+2*d+1}, 0xffff0000, v{XR+d}")
    for sp in range(4):
        k.wait(vm=f"S{sp}")
        for d in range(8):
            w = PR + sp*8 + d; t_ = T + 2*(d & 3)
            if sp == 0:
                k(f"v_lshlrev_b32 v{AC+2*d}, 16, v{w}\nv_and_b32 v{AC+2*d+1}, 0xffff0000, v{w}")
            else:
                k(f"v_lshlrev_b32 v{t_}, 16, v{w}\nv_and_b32 v{t_+1}, 0xffff0000, v{w}")
                k(f"v_pk_add_f32 {vr(AC+2*d,2)}, {vr(AC+2*d,2)}, {vr(t_,2)}")
    k("s_waitcnt lgkmcnt(0)")
    for d in range(8): k(f"v_pk_fma_f32 {vr(AC+2*d,2)}, {vr(AC+2*d,2)}, {vr(PA+2*d,2)}, {vr(XF+2*d,2)}")
    for d in range(8): k(f"v_cvt_pk_bf16_f32 v{XR+d}, v{AC+2*d}, v{AC+2*d+1}")
    for d in range(8): k(f"v_lshlrev_b32 v{AC+2*d}, 16, v{XR+d}\nv_and_b32 v{AC+2*d+1}, 0xffff0000, v{XR+d}")
    def rowsum(r, off, mid=None):
        k(f"s_nop 1\nv_add_f32 v{r}, v{r}, v{r} row_ror:8")
        for sw in ("v_permlane16_swap_b32", "v_permlane32_swap_b32"):
            k(f"v_mov_b32 v{r+1}, v{r}\ns_nop 1\n{sw} v{r+1}, v{r}\ns_nop 1\nv_add_f32 v{r}, v{r}, v{r+1}")
        k(f"ds_write_b32 v{VB8}, v{r} offset:{off}")
        if mid: mid()
        k("s_waitcnt lgkmcnt(0)\ns_barrier")
        k(f"ds_read_b128 {vr(r,4)}, v{VB7} offset:{off}\ns_waitcnt lgkmcnt(0)")
        k(f"v_pk_add_f32 {vr(r,2)}, {vr(r,2)}, {vr(r+2,2)}\nv_add_f32 v{r}, v{r}, v{r+1}")
    def x1st():
        for pc in range(2): k(f"buffer_store_dwordx4 {vr(XR+pc*4,4)}, v{VB4}, {sr(S_E,4)}, s{S_T0+pc} offen sc1")
    for i in range(4): k(f"v_pk_add_f32 {vr(T+2*i,2)}, {vr(AC+2*i,2)}, {vr(AC+8+2*i,2)}")
    for i in range(2): k(f"v_pk_add_f32 {vr(T+2*i,2)}, {vr(T+2*i,2)}, {vr(T+4+2*i,2)}")
    k(f"v_pk_add_f32 {vr(T,2)}, {vr(T,2)}, {vr(T+2,2)}\nv_add_f32 v{T}, v{T}, v{T+1}")
    rowsum(T, 0, x1st)
    k(f"v_mul_f32 v14, {hexf(-1/512)}, v{T}")
    for i in range(8): k(f"v_pk_add_f32 {vr(AC+2*i,2)}, {vr(AC+2*i,2)}, v[14:15] op_sel_hi:[1,0]")
    for i in range(2): k(f"v_pk_mul_f32 {vr(T+2*i,2)}, {vr(AC+2*i,2)}, {vr(AC+2*i,2)}")
    for i in range(2, 8): k(f"v_pk_fma_f32 {vr(T+2*(i&1),2)}, {vr(AC+2*i,2)}, {vr(AC+2*i,2)}, {vr(T+2*(i&1),2)}")
    k(f"v_pk_add_f32 {vr(T,2)}, {vr(T,2)}, {vr(T+2,2)}\nv_add_f32 v{T}, v{T}, v{T+1}")
    def mid2():
        for i in range(8): k(f"v_pk_mul_f32 {vr(AC+2*i,2)}, {vr(AC+2*i,2)}, {vr(PA+32+2*i,2)}")
    rowsum(T, 128, mid2)
    k(f"v_mov_b32 v14, {hexf(1e-5)}\nv_fmac_f32 v14, {hexf(1/512)}, v{T}\nv_rsq_f32 v14, v14\ns_nop 0")
    for pc in range(2):
        for i in range(4*pc, 4*pc+4): k(f"v_pk_fma_f32 {vr(AC+2*i,2)}, {vr(AC+2*i,2)}, v[14:15], {vr(PA+16+2*i,2)} op_sel_hi:[1,0,1]")
        for d in range(4*pc, 4*pc+4): k(f"v_cvt_pk_bf16_f32 v{PR+d}, v{AC+2*d}, v{AC+2*d+1}")
        k(f"buffer_store_dwordx4 {vr(PR+4*pc,4)}, v{VB4}, {sr(S_D,4)}, s{S_T0+pc} offen sc1")
    k.stamp(3)
    CA = lambda m, t, tb: 64 + ((t*2+m)*4+tb)*4
    CW = lambda buf, m, t: 160 + ((buf*3+t)*2+m)*4
    CB = lambda buf, tb: 208 + (buf*4+tb)*4
    V_CW, V_CB = 16, 24
    k("v_lshl_add_u32 v7, v3, 2, v5\nv_mul_u32_u24 v7, 192, v7\nv_lshl_add_u32 v7, v6, 3, v7\nv_and_b32 v12, 1, v3")
    k("v_lshrrev_b32 v13, 1, v1\nv_mul_u32_u24 v13, 3, v13")
    for t in range(3):
        k(f"v_add_u32 v14, {t}, v13\nv_xor_b32 v14, v14, v12\nv_lshl_add_u32 v{V_CW+t}, v14, 5, v7\nv_add_u32 v{V_CW+3+t}, {5*C_W}, v{V_CW+t}")
    k(f"v_and_b32 v13, 1, v1\nv_lshl_add_u32 v{V_CB}, v13, 12, v{V_L16}\nv_add_u32 v{V_CB}, {C_BB}, v{V_CB}")
    k(f"s_lshl_b32 s7, s{S_TT}, 1\ns_and_b32 s6, s{S_WAVE}, 1\ns_add_u32 s7, s7, s6\ns_mul_i32 s6, s7, {4*43*1024}\ns_mul_i32 s7, s{S_M}, 3072\ns_add_u32 s6, s6, s7\ns_add_u32 s6, s6, 0x{WS_HF:x}")
    k(f"s_add_u32 s{S_A}, s54, s6\ns_addc_u32 s{S_A+1}, s55, 0\ns_mov_b32 s{S_A+2}, {3*43*1024+3072}")
    handoff_signal(k, 1)
    k.stamp(4)
    k(f"s_cmp_eq_u32 s{S_M}, 15\ns_cbranch_scc1 kt_c_done")
    k.lg = []
    def c_reads(j):
        sl = j % C_NW; bank = sl // 5; off = (sl % 5)*C_W
        b = [L(f"ds_read_b128 {vr(CB(j&1,tb),4)}, v{V_CB} offset:{(j % C_NB)*C_B + tb*1024}", f"R{j}_0") for tb in range(4)]
        w = [L(f"ds_read_b64_tr_b16 {vr(CW(j&1,m,t)+2*h,2)}, v{V_CW+3*bank+t} offset:{off + m*6144 + h*3072}", f"R{j}_{t}")
             for t in range(3) for m in range(2) for h in range(2)]
        return b + w
    k("s_barrier")
    k.run(c_reads(0))
    for j in range(C_NK):
        mf = []
        for t in range(3):
            for m in range(2):
                for tb_ in range(4):
                    tb = tb_ if m == 0 else 3 - tb_
                    d = vr(CA(m, t, tb), 4)
                    mf.append(f"{MF} {d}, {vr(CW(j&1,m,t),4)}, {vr(CB(j&1,tb),4)}, {d if j else '0'}")
        lds = c_reads(j+1) if j < C_NK-1 else []
        gaps = fill(24, lds, [], [], g0=1)
        if j == 0:
            add(gaps, -1, W(lg=f"R{j}_0")); front(gaps, 6, W(lg=f"R{j}_2"))
        else:
            add(gaps, -1, W(lg=f"R{j}_2"))
        if j < C_NK-1: front(gaps, 0, "s_barrier")
        emit(k, mf, gaps)
    k(f"s_nop 6\ns_lshr_b32 s6, s{S_WAVE}, 1\ns_cmp_eq_u32 s6, 0\ns_cbranch_scc0 kt_fh1")
    def prod(t, tb, o):
        a = CA(0, t, tb); b = CA(1, t, tb)
        for i in range(0, 4, 2): k(f"v_pk_mul_f32 {vr(a+i,2)}, {vr(a+i,2)}, {vr(b+i,2)}")
        k(f"v_cvt_pk_bf16_f32 v{o}, v{a}, v{a+1}\nv_cvt_pk_bf16_f32 v{o+1}, v{a+2}, v{a+3}")
    for fh in range(2):
        if fh: k("kt_fh1:")
        odd = 2 if fh == 0 else 0; t0 = 0 if fh == 0 else 1; unit = 0 if fh == 0 else 2
        keep = (0, 1) if fh == 0 else (2, 3); send = (2, 3) if fh == 0 else (0, 1)
        k(f"v_and_b32 v13, 1, v1\nv_lshl_add_u32 v12, v13, 11, v{V_L16}\nv_add_u32 v12, {TOP}, v12")
        for i, tb in enumerate(send): prod(odd, tb, 48 + 2*i)
        k(f"ds_write_b128 v12, v[48:51] offset:{fh*1024}")
        for i, tb in enumerate(keep): prod(odd, tb, 52 + 4*i + 2*fh)
        for tb in range(4): k(f"s_mov_b32 s{S_T0+tb}, {tb*43*1024}")
        skip = f"kt_skip{fh}"
        if fh: k(f"s_cmp_eq_u32 s{S_M}, 14\ns_cbranch_scc1 {skip}")
        for tb in range(4):
            o = 32 + tb*4
            prod(t0, tb, o); prod(t0+1, tb, o+2)
            k(f"buffer_store_dwordx4 {vr(o,4)}, v{V_L16}, {sr(S_A,4)}, s{S_T0+tb} offen offset:{unit*1024} sc1")
        if fh: k(f"{skip}:")
        k("s_waitcnt lgkmcnt(0)\ns_barrier")
        k(f"s_cmp_eq_u32 s{S_M}, 14\ns_cbranch_scc1 kt_c_done")
        for i in range(2): k(f"ds_read_b64 {vr(52 + 4*i + 2*(1-fh),2)}, v12 offset:{(1-fh)*1024 + 8*i}")
        k("s_waitcnt lgkmcnt(0)")
        for i, tb in enumerate(keep):
            k(f"buffer_store_dwordx4 {vr(52+4*i,4)}, v{V_L16}, {sr(S_A,4)}, s{S_T0+tb} offen offset:1024 sc1")
        if not fh: k("s_branch kt_c_done")
    k("kt_c_done:")
    k.stamp(5)
    DA = lambda t, tb: 64 + (t*2+tb)*4
    DW = lambda buf, i, t: 80 + ((buf*2+i)*2+t)*4
    DB = lambda buf, i, tb: 112 + ((buf*2+i)*2+tb)*4
    V_DWA, V_DBA = 16, 18
    k("v_lshl_add_u32 v7, v3, 2, v5\nv_lshlrev_b32 v7, 7, v7\nv_lshl_add_u32 v7, v6, 4, v7")
    k(f"v_lshrrev_b32 v14, 1, v5\nv_lshrrev_b32 v11, 1, v1\nv_xor_b32 v14, v14, v11\nv_lshl_add_u32 v{V_DWA}, v14, 6, v7\nv_add_u32 v{V_DWA+1}, 0x10000, v{V_DWA}")
    k(f"v_and_b32 v14, 1, v1\nv_lshl_add_u32 v{V_DBA}, v14, 11, v{V_L16}\nv_add_u32 v{V_DBA}, {D_BB}, v{V_DBA}")
    k("v_lshlrev_b32 v20, 10, v4\nv_lshl_add_u32 v20, v3, 4, v20\nv_lshl_add_u32 v20, v14, 15, v20\nv_lshl_add_u32 v20, v11, 6, v20")
    k("v_and_b32 v21, 1, v3\nv_lshlrev_b32 v21, 9, v21\nv_lshl_add_u32 v21, v4, 4, v21\nv_lshrrev_b32 v22, 1, v3\nv_lshl_add_u32 v21, v22, 3, v21")
    k("v_lshl_add_u32 v21, v11, 10, v21\nv_lshl_add_u32 v21, v14, 15, v21")
    k(f"s_lshl_b32 s6, s{S_TT}, 1\ns_lshr_b32 s7, s{S_M}, 3\ns_add_u32 s6, s6, s7\ns_lshl_b32 s6, s6, 16\ns_and_b32 s33, s{S_M}, 7\ns_lshl_b32 s7, s33, 7\ns_add_u32 s7, s6, s7")
    k(f"s_add_u32 s{S_B}, s58, s7\ns_addc_u32 s{S_B+1}, s59, 0\ns_sub_u32 s{S_B+2}, {2048*1024}, s7")
    k(f"s_lshl_b32 s33, s33, 11\ns_add_u32 s33, s33, s6\ns_add_u32 s34, s33, 16384\ns_mov_b32 s35, 16384")
    for tb in range(2):
        for h in range(2):
            k(f"buffer_load_dwordx2 {vr(144+4*tb+2*h,2)}, v21, {sr(S_E,4)}, s{33+tb} offen offset:{256*h} sc1")
    handoff_signal(k, 2)
    k.stamp(6)
    k.lg = []
    for d in range(8): k(f"v_lshlrev_b32 v{48+2*d}, 16, v{144+d}\nv_and_b32 v{49+2*d}, 0xffff0000, v{144+d}")
    def d_reads(g):
        base = (g % D_NW)*D_W; bank = base >> 16; off = base & 0xffff
        r = []
        for i in range(2):
            if 2*g + i >= D_NK: break
            r += [L(f"ds_read_b128 {vr(DB(g&1,i,tb),4)}, v{V_DBA} offset:{(g % D_NB)*D_B + i*4096 + tb*1024}", f"R{g}") for tb in range(2)]
            r += [L(f"ds_read_b64_tr_b16 {vr(DW(g&1,i,t)+2*h,2)}, v{V_DWA+bank} offset:{off + i*4096 + h*2048 + 8*t}", f"R{g}") for t in range(2) for h in range(2)]
        return r
    k("s_barrier")
    k.run(d_reads(0))
    for g in range(D_NS):
        mf = []
        ii = [i for i in range(2) if 2*g + i < D_NK]
        for t in range(2):
            for tb in range(2):
                for i in ii:
                    d = vr(DA(t, tb), 4)
                    mf.append(f"{MF} {d}, {vr(DW(g&1,i,t),4)}, {vr(DB(g&1,i,tb),4)}, {d if (g or i) else '0'}")
        if g < D_NS-1:
            k("s_barrier")
            rd = d_reads(g+1)
            k.run(rd[:2])
            gaps = fill(8, rd[2:], [], [], g0=0, pair_lds=True)
        else: gaps = {}
        k.wait(lg=f"R{g}")
        emit(k, mf, gaps)
    k("s_nop 7")
    for tb in range(2):
        for t in range(2):
            for i in range(0, 4, 2):
                k(f"v_pk_fma_f32 {vr(48+8*tb+4*t+i,2)}, {vr(DA(t,tb)+i,2)}, {vr(GB+4*t+i,2)}, {vr(48+8*tb+4*t+i,2)}")
        for d in range(4): k(f"v_cvt_pk_bf16_f32 v{24+4*tb+d}, v{48+8*tb+2*d}, v{49+8*tb+2*d}")
        k(f"buffer_store_dwordx4 {vr(24+4*tb,4)}, v20, {sr(S_B,4)}, {'s35' if tb else '0'} offen {OPT.st5}")
    if prof:
        k("s_waitcnt vmcnt(0)"); k.stamp(7); k.dump_stamps(8, 54, 100)
    k(f"{end}:\ns_endpgm")
    return k
```

```python
from common import *
from sched import fill, L, V, W, front, emit, It, merge
from k0 import mod_loads, mod_finish, C1

MF = "v_mfma_f32_16x16x32_bf16"

SLOT = 16384
KB = 0
VB = 65536
PARB = 9*SLOT
FLAGB = PARB + 4096
WSLOT = [1, 4, 2, 5, 3, 6, 7, 8]

def O(db, qb): return (db*4+qb)*4
def LA(qb): return 128 + qb*4
def KF(i): return 144 + i*4
def VF(i): return 176 + i*4
ONES = 240
def Q(qb, s): return 128 + (qb*4+s)*4
def S(buf, kb, qb): return 64 + buf*32 + (kb*4+qb)*4
def P(buf, qb): return (32 + buf*16 if buf < 2 else 208 + (buf-2)*16) + qb*4
def MN(qb): return 192 + qb*4
V_KA = 8
V_VA = 12
V_DK = 20
V_DV = 24
V_L16 = 26
V_LS = 28
V_PF = 2
V_T = 208
def XR(slot, qb): return 128 + ((slot%4)*4+qb)*4
def QA(t, qb): return vr(192 + (qb*8+t)*4, 4) if qb < 2 else ar(((qb-2)*8+t)*4, 4)
def HK(b): return (lambda i: 64 + b*32 + i*4)
def HF(buf, qb): return 32 + (buf*4+qb)*4
def PAR(buf): return 64 + buf*16
V_PT = 96
V_WA = 112
V_DW = 124
V_PA = 125
def WF(buf, t): return 128 + (buf*8+t)*4
S_K, S_V, S_W, S_X, S_M, S_O = 8, 12, 16, 20, 24, 28
S_W4 = 32
S_KOFF, S_VOFF = 33, 34
S_CNT = 35
S_T0 = 36
S_RERUN = 44
S_WAVE = 45
S_W1 = 62

def emit_phase(k, mf, gaps):
    for f in gaps.get(-1, []): f(k) if callable(f) else k(f)
    for i, m in enumerate(mf):
        k(m)
        for f in gaps.get(i, []): f(k) if callable(f) else k(f)
    for g in gaps:
        assert g < len(mf), (g, len(mf))

def add(gaps, g, *items):
    gaps.setdefault(g, []).extend(items)

def qk_mfmas(buf, kf=KF, czero=False):
    r = []
    order = {0: [(kb,s,qb) for kb in range(2) for s in range(4) for qb in range(4)],
             1: [(kb,s,qb) for kb in range(2) for qb in range(4) for s in range(4)],
             2: [(kb,s,qb) for qb in range(4) for s in range(4) for kb in range(2)],
             4: [(kb,s if qb%2==0 else 3-s,qb) for kb in range(2) for qb in range(4) for s in range(4)],
             5: [(kb,s if kb%2==0 else 3-s,qb) for qb in range(4) for kb in range(2) for s in range(4)],
             3: [(kb,s,qb if s%2==0 else 3-qb) for kb in range(2) for s in range(4) for qb in range(4)]}[OPT.qko]
    seen = set()
    for kb, s, qb in order:
            if True:
                d = vr(S(buf, kb, qb), 4)
                started = (kb, qb) in seen; seen.add((kb, qb))
                c = d if started else ("0" if czero else vr(MN(qb), 4))
                r.append(f"{MF} {d}, {ar(kf(kb*4+s),4)}, {vr(Q(qb,s),4)}, {c}")
    return r

def pv_mfmas(buf, sumq, vf=VF, czero=False):
    r = []
    for qb in sumq:
        d = ar(LA(qb), 4)
        r.append(f"{MF} {d}, {ar(ONES,4)}, {vr(P(buf,qb),4)}, {'0' if czero else d}")
    order = {0: [(db,qb) for db in range(8) for qb in range(4)],
             1: [(db,qb) for qb in range(4) for db in range(8)],
             3: [(db if qb%2==0 else 7-db,qb) for qb in range(4) for db in range(8)],
             2: [(db,qb if db%2==0 else 3-qb) for db in range(8) for qb in range(4)]}[OPT.pvo]
    for db, qb in order:
        if True:
            d = ar(O(db, qb), 4)
            r.append(f"{MF} {d}, {ar(vf(db),4)}, {vr(P(buf,qb),4)}, {'0' if czero else d}")
    return r

def exps(buf, qbs):
    r = []
    for qb in qbs:
        for kb in range(2):
            for i in range(4):
                x = S(buf, kb, qb) + i
                r.append(f"v_exp_f32 v{x}, v{x}")
    return r
def cvts(buf, qbs, pb=None):
    pb = buf if pb is None else pb
    r = []
    for qb in qbs:
        for kb in range(2):
            for h in range(2):
                x = S(buf, kb, qb) + 2*h
                r.append(f"v_cvt_pk_bf16_f32 v{P(pb,qb)+kb*2+h}, v{x}, v{x+1}")
    return r
def adds(buf, qbs, addq):
    r = []
    for qb in qbs:
        for kb in range(2):
            for i in range(4):
                x = S(buf, kb, qb) + i
                r.append(f"v_add_f32 v{V_LS+qb}, v{x}, v{V_LS+qb}" if qb in addq else None)
    return r
def kreads(slot, blk, kf=KF):
    r = []
    for kb in range(2):
        for s in range(4):
            r.append(f"ds_read_b128 {ar(kf(kb*4+s),4)}, v{V_KA+s} offset:{KB+slot*SLOT+blk*8192+kb*4096}")
    return r
def vreads(slot, blk, vf=VF):
    r = []
    for db in range(8):
        for h in range(2):
            r.append(f"ds_read_b64_tr_b16 {ar(vf(db)+2*h,2)}, v{V_VA+db} offset:{slot*SLOT+blk*8192+h*4096}")
    return r
def dma_k(p): return f"buffer_load_dwordx4 v{V_DK+p}, {sr(S_K,4)}, s{S_KOFF} offen offset:{p*1024} {OPT.kvnt} lds"
def dma_v(p): return f"buffer_load_dwordx4 v{V_DV+(p&1)}, {sr(S_V,4)}, s{S_VOFF} offen offset:{p*1024} {OPT.kvnt} lds"

class Cfg:
    la = 4
    npk = 5
    ne1 = 33
    nv1 = 11
    v19 = 1
    wb = 0
    pfo = 2
    pfc = (5, 1, 1)
    ppf = 0
    wocnt = 1
    bar2 = 0
    kvspread = 1
    w1pf = 0
    fine = 0
    kvper = 7
    x = 0
    pf = 2
    sumq = [1, 3]
    def addq(self): return [q for q in range(4) if q not in self.sumq]

def pv2_mfmas(pb, sumq, czero=False, order=None):
    r = []
    n = 0
    def pair(d, a0, a1, qb):
        nonlocal n
        js = (0, 1) if n % 2 == 0 else (1, 0); n += 1
        for i, j in enumerate(js):
            r.append(f"{MF} {d}, {ar(a1 if j else a0,4)}, {vr(P(pb+j,qb),4)}, {'0' if (czero and i == 0) else d}")
    for qb in sumq: pair(ar(LA(qb), 4), ONES, ONES, qb)
    for db in range(8):
        for q in range(4):
            qb = q if db % 2 == 0 else 3 - q
            pair(ar(O(db, qb), 4), VF(db), VF(8+db), qb)
    return r

def sm_stream(cfg, u):
    qs = range(4)
    E = exps(u & 1, qs); C = cvts(u & 1, qs, u & 3); A = adds(u & 1, qs, cfg.addq())
    r = []
    for i, e in enumerate(E):
        f = [A[i]] if A[i] else []
        if i % 2 == 1: f.append(C[i//2])
        r.append((e, f))
    return r

def vreads2(slot):
    r = []
    for db in range(8):
        for blk in range(2):
            for h in range(2):
                r.append((db, L(f"ds_read_b64_tr_b16 {ar(VF(8*blk+db)+2*h,2)}, v{V_VA+db} offset:{slot*SLOT+blk*8192+h*4096}", "V")))
    return r

def pack(k, mf, fixed, stream, lds, vm, deadlines=(), keep=False):
    n = len(mf)
    stream = list(stream); lds = list(lds); vm = list(vm)
    ready = []
    k.run(fixed.get(-1, []))
    ne = len(stream); ie = 0
    lastvm = -9; vm0 = list(vm)
    for g in range(n):
        k(mf[g]); k.run(fixed.get(g, []))
        left = 2
        want_e = ie < ne and g < n-1 and (g % 2 == 0 or (ne - ie) > (n - g)//2)
        if g % 2 == 1 or not want_e:
            if vm and vm[0][0] <= g and g - lastvm >= (OPT.vsp if len(vm0) <= 8 else 4) and not (lds and lds[0][0] <= g and lds[0][2:] == ('urgent',)):
                k.run(vm.pop(0)[1]); left -= 2; lastvm = g
            else:
                c = [x for x in lds if x[0] <= g]
                c.sort(key=lambda x: 0 if len(x) > 2 else 1)
                if c:
                    lds.remove(c[0]); k.run([c[0][1]]); left -= 1
                    rem = len([y for y in range(g+1, n) if y % 2 == 1]) - 3
                    if len(c) > 1 and len(lds) + len(vm) > rem:
                        lds.remove(c[1]); k.run([c[1][1]]); left -= 1
        if want_e:
            e, f = stream[ie]; k(e); left -= 2
            ready += [(g, ie, x) for x in f]; ie += 1
        must = [x for x in ready if any(x[1] < idx and g + 1 >= dl for idx, dl in deadlines)]
        while ready and ready[0][0] < g and (left > 0 or ready[0] in must or len(ready) > OPT.bk or g == n-1):
            k(ready.pop(0)[2]); left -= 1
    assert ie == ne and not vm and not ready and (keep or not lds), (ie, ne, len(lds), len(vm), ready)
    return lds

R1 = 16

def iteration(k, cfg, t4, part="all", czero=False, pf=(), post=(), label=None):
    ks = t4; vs = (t4 - 1) % 4; u = 2*t4
    k.c(f"---- iteration T%4={t4} {part} ----")
    ns = 2*len(cfg.sumq)
    pv = pv2_mfmas((u - 4) & 3, cfg.sumq, czero); npv = len(pv)
    st = sm_stream(cfg, u - 2)[32-R1:] + sm_stream(cfg, u - 1) + sm_stream(cfg, u)[:32-R1]
    dmas = [[f"s_add_u32 m0, s{S_W4}, {KB + ((t4+3)%4)*SLOT}\ns_nop 0" if p == 0 else "", dma_k(p)] for p in range(4)]
    dmas += [[f"s_add_u32 m0, s{S_W4}, {VB + ((t4+2)%4)*SLOT}\ns_add_u32 s{S_KOFF}, s{S_KOFF}, {SLOT}" if p == 0 else "", dma_v(p)] for p in range(4)]
    dmas[-1].append(f"s_add_u32 s{S_VOFF}, s{S_VOFF}, {SLOT}")
    ka = [L(x, "KA") for x in kreads(ks, 0)]; kb = kreads(ks, 1)
    vr_ = vreads2(vs)
    NE1 = cfg.ne1
    NV1 = cfg.nv1
    nvm = 16 if not (cfg.pf and cfg.pfo and cfg.v19) else (18 if part == "pv" else 19)
    bar = {ns-1: [f"s_waitcnt vmcnt({nvm}) lgkmcnt(0)\ns_barrier"]}
    if part == "tail":
        k.lg = []
        return pack(k, pv, bar, st[:R1+32], [(ns + 8*db + 7, x) for db, x in vr_], [], keep=True)
    if part in ("all", "pv"):
        k.lg = []
        lds = [(ns, x) for x in ka] + [(ns + 8*db + 7, x) for db, x in vr_[:NV1]]
        pack(k, pv, bar, st[:NE1], lds, [(ns + OPT.v0, d) for d in dmas])
    if label: k(f"{label}:")
    if part in ("all", "first"):
        vm = [(40, [pf[1]])] if pf else []
        fixed = {-1: [W(lg="KA")], 30: [W(lg="KB0")], 46: [W(lg="KB1")]}
        if pf: fixed[38] = [pf[0]]
        if part == "first":
            NE1 = R1; NV1 = 0; k.lg = []
            fixed[-1] = ["s_waitcnt lgkmcnt(0)"]
            vm = [(2, [kv_setup(wh, t), dma_k(p) if wh == 'K' else dma_v(p)]) for wh, t in (('V',2),('K',4),('V',3)) for p in range(4)]
            if cfg.v19:
                dummy = f"s_mov_b32 s6, 0x80000\nbuffer_load_dword v{V_PF+3}, v{V_PF}, {sr(S_O,4)}, s6 offen"
                vm[3][1].append(dummy); vm[11][1].append(dummy)
            post = [f"s_mov_b32 s{S_KOFF}, {5*SLOT}\ns_mov_b32 s{S_VOFF}, {4*SLOT}"]
        lds = [(0, x) for db, x in vr_[NV1:]] + [(15, L(x, "KB0"), 'urgent') for x in kb[:4]] + [(31, L(x, "KB1"), 'urgent') for x in kb[4:]]
        pack(k, qk_mfmas(0) + qk_mfmas(1), fixed, st[NE1:], lds, vm, deadlines=[(R1 + 32 - NE1, 40)])
    for f in post: k(f)

def kv_setup(which, tile):
    if which == 'K': return f"s_add_u32 m0, s{S_W4}, {KB + (tile%4)*SLOT}\ns_mov_b32 s{S_KOFF}, {tile*SLOT}"
    return f"s_add_u32 m0, s{S_W4}, {VB + (tile%4)*SLOT}\ns_mov_b32 s{S_VOFF}, {tile*SLOT}"
def kv_group(which, tile):
    return [[kv_setup(which, tile), V(dma_k(p) if which == 'K' else dma_v(p), f"{which}{tile}")] for p in range(4)]

def rowmax_cross(k, regs, tmp):
    for sw in ("v_permlane32_swap_b32", "v_permlane16_swap_b32"):
        for i, r in enumerate(regs): k(f"v_mov_b32 v{tmp+i}, v{r}")
        k("s_nop 1")
        for i, r in enumerate(regs): k(f"{sw} v{tmp+i}, v{r}")
        k("s_nop 1")
        for i, r in enumerate(regs): k(f"v_max_f32 v{r}, v{r}, v{tmp+i}")

def gen_k1(cfg=None, prof=False):
    cfg = cfg or Cfg()
    k = Kern("k1_attn_kernel", 256, 256, 160*1024, 512, 256, 96 if prof else 64)
    k.prof = prof
    end = "k1_end"
    k(f"s_cmp_ge_u32 s2, 256\ns_cbranch_scc1 {end}")
    k.stamp(0)
    k.dbg_begin(1)
    k(f"s_load_dwordx4 s[48:51], s[0:1], {KA_K}")
    k(f"s_load_dwordx2 s[52:53], s[0:1], {KA_WQ}")
    k(f"s_load_dwordx2 s[54:55], s[0:1], {KA_WS}")
    k(f"s_load_dwordx2 s[46:47], s[0:1], {KA_WO}")
    k(f"s_load_dwordx4 s[56:59], s[0:1], {KA_WG}")
    k(f"s_load_dwordx2 s[60:61], s[0:1], {KA_WD}")

    k("v_lshrrev_b32 v1, 6, v0")
    k("v_and_b32 v2, 63, v0")
    k(f"v_readfirstlane_b32 s{S_WAVE}, v1")
    m = OPT.map4
    k(f"s_and_b32 s4, s2, {(8>>m)-1}\ns_bfe_u32 s5, s2, {((2+m)<<16)|3}\ns_lshl_b32 s5, s5, {3-m}\ns_add_u32 s4, s4, s5")
    k(f"s_bfe_u32 s5, s2, {(m<<16)|(3-m)}\ns_lshl_b32 s5, s5, {3-m}\ns_lshr_b32 s6, s2, {5+m}\ns_add_u32 s5, s5, s6")
    k(f"s_lshl_b32 s{S_W4}, s{S_WAVE}, 12")
    k(f"s_mov_b32 s{S_RERUN}, 0")
    k("v_lshrrev_b32 v3, 4, v2")
    k("v_and_b32 v4, 15, v2")
    k("v_lshrrev_b32 v5, 2, v4")
    k("v_and_b32 v6, 3, v2")
    k(f"v_lshlrev_b32 v{V_L16}, 4, v2")
    k("v_lshlrev_b32 v7, 2, v3\nv_xor_b32 v7, v7, v4\nv_lshlrev_b32 v7, 4, v7")
    k(f"v_lshl_add_u32 v{V_DW}, v1, 2, v3\nv_lshl_add_u32 v{V_DW}, v{V_DW}, 13, v7")
    k(f"s_lshl_b32 s{S_W1}, s{S_WAVE}, 10")
    k("s_waitcnt lgkmcnt(0)")
    k("s_lshl_b32 s6, s4, 8")
    k(f"s_add_u32 s{S_W}, s52, s6\ns_addc_u32 s{S_W+1}, s53, 0\ns_sub_u32 s{S_W+2}, {512*8192}, s6\ns_mov_b32 s{S_W+3}, 0x20000")
    k.srd(S_M, 54, 4*12288, WS_MODP)
    k(f"s_lshl_b32 s6, s5, 2\ns_add_u32 s6, s6, s{S_WAVE}\ns_lshl_b32 s7, s6, 16")
    k(f"s_add_u32 s7, s7, 0x{WS_XH:x}")
    k(f"s_add_u32 s{S_X}, s54, s7\ns_addc_u32 s{S_X+1}, s55, 0\ns_mov_b32 s{S_X+2}, 0x10000\ns_mov_b32 s{S_X+3}, 0x20000")
    def w_step(j):
        r = []
        for p in range(2):
            st = S_T0 + p
            r.append([f"s_add_u32 m0, s{S_W1}, {WSLOT[j>>1]*SLOT + (j&1)*8192 + p*4096}\ns_mov_b32 s{st}, {(j*32 + p*16)*8192}",
                      lambda kk, st=st: kk.vmop(f"buffer_load_dwordx4 v{V_DW}, {sr(S_W,4)}, s{st} offen {OPT.wqnt} lds", f"W{j}")])
        return r
    def x_loads(j):
        r = []
        for qb in range(4):
            st = S_T0 + 4 + qb
            r.append([f"s_mov_b32 s{st}, {qb*16384 + (j>>2)*4096}",
                      lambda kk, qb=qb, st=st: kk.vmop(f"buffer_load_dwordx4 {vr(XR(j,qb),4)}, v{V_L16}, {sr(S_X,4)}, s{st} offen offset:{(j&3)*1024}", f"X{j}" if j else f"X0_{qb}")])
        return r
    def run(items):
        for f in items:
            if isinstance(f, list): run(f)
            else: f(k) if callable(f) else k(f)
    k("v_lshlrev_b32 v31, 4, v0")
    mod_loads(k, S_M, 31, S_T0, V_PT, 0, "M")
    LA_ = cfg.la
    run(w_step(0)); run(x_loads(0))
    k("s_lshl_b32 s6, s4, 19")
    k(f"s_add_u32 s{S_K}, s48, s6\ns_addc_u32 s{S_K+1}, s49, 0\ns_mov_b32 s{S_K+2}, 0x80000\ns_mov_b32 s{S_K+3}, 0x20000")
    k(f"s_add_u32 s{S_V}, s50, s6\ns_addc_u32 s{S_V+1}, s51, 0\ns_mov_b32 s{S_V+2}, 0x80000\ns_mov_b32 s{S_V+3}, 0x20000")
    k(f"s_lshl_b32 s6, s5, 2\ns_add_u32 s6, s6, s{S_WAVE}\ns_lshl_b32 s6, s6, 19\ns_lshl_b32 s7, s4, 12\ns_add_u32 s6, s6, s7")
    k(f"s_add_u32 s6, s6, 0x{WS_OF:x}")
    k(f"s_add_u32 s{S_O}, s54, s6\ns_addc_u32 s{S_O+1}, s55, 0\ns_mov_b32 s{S_O+2}, {3*131072+4096}\ns_mov_b32 s{S_O+3}, 0x20000")
    k("v_lshl_add_u32 v7, v3, 3, v5\nv_lshlrev_b32 v7, 8, v7\nv_lshl_add_u32 v7, v6, 4, v7")
    for s in range(4):
        k(f"v_xor_b32 v27, {s}, v5\nv_lshl_add_u32 v{V_WA+s}, v27, 6, v7")
        k(f"v_add_u32 v{V_WA+4+s}, 0x10000, v{V_WA+s}\nv_add_u32 v{V_WA+8+s}, 0x20000, v{V_WA+s}")
    k(f"v_lshlrev_b32 v{V_PA}, 5, v3\nv_add_u32 v{V_PA}, {PARB}, v{V_PA}")
    for s in range(4):
        k(f"v_or_b32 v27, {4*s}, v3\nv_xor_b32 v27, v27, v4\nv_lshlrev_b32 v27, 4, v27\nv_lshl_add_u32 v{V_KA+s}, v4, 8, v27")
    k("v_lshl_add_u32 v7, v3, 2, v5\nv_and_b32 v27, 7, v7\nv_lshlrev_b32 v7, 8, v7\nv_lshl_add_u32 v7, v6, 3, v7")
    k(f"v_add_u32 v7, {VB}, v7")
    for db in range(8):
        k(f"v_xor_b32 v30, {db}, v27\nv_lshl_add_u32 v{V_VA+db}, v30, 5, v7")
    k("v_lshlrev_b32 v7, 8, v3\nv_lshl_add_u32 v7, v1, 12, v7")
    for p in range(4):
        k(f"v_or_b32 v27, {4*p}, v3\nv_xor_b32 v27, v27, v4\nv_lshl_add_u32 v{V_DK+p}, v27, 4, v7")
    for p in range(2):
        k(f"v_or_b32 v27, {4*p}, v3\nv_lshlrev_b32 v27, 1, v27\nv_xor_b32 v27, v27, v4\nv_lshl_add_u32 v{V_DV+p}, v27, 4, v7")
    k("v_mov_b32 v27, 0x3f803f80")
    for i in range(4): k(f"v_accvgpr_write_b32 a{ONES+i}, v27")

    def wreads(j):
        c = j >> 1; base = WSLOT[c]*SLOT; bank = base >> 16; off = (base & 0xffff) + (j & 1)*8192
        return [L(f"ds_read_b64_tr_b16 {ar(WF(j&1,t)+2*h,2)}, v{V_WA+4*bank+(t>>1)} offset:{off + h*1024 + 8*(t&1)}", f"R{j}_{t}")
                for t in range(8) for h in range(2)]
    def preads(j):
        b = PAR(j & 1)
        return [L(f"ds_read_b128 {vr(b+4*i,4)}, v{V_PA} offset:{j*128 + (i&1)*16 + (i>>1)*2048}", f"P{j}") for i in range(4)]
    def hcalc(j):
        b = PAR(j & 1); r = []
        for qb in range(4):
            t = V_PT + (qb & 1)*8
            for i in range(8):
                r.append(f"v_fma_mix_f32 v{t+i}, v{XR(j,qb)+(i>>1)}, v{b+8+i}, v{b+i} op_sel:[{i&1},0,0] op_sel_hi:[1,0,0]")
            for d in range(4):
                r.append(f"v_cvt_pk_bf16_f32 v{HF(j&1,qb)+d}, v{t+2*d}, v{t+2*d+1}")
        return r
    k(f"s_cmp_ge_u32 s{S_WAVE}, 2\ns_cselect_b32 s6, 1.0, 0\nv_add_u32 v31, {PARB}, v31")
    k.vmwait("M")
    mod_finish(k, V_PT, 6, C1)
    k(f"ds_write_b128 v31, {vr(V_PT,4)}")
    run(x_loads(1)); run(w_step(1))
    k.vmwait("W0", "lgkmcnt(0)"); k("s_barrier")
    run(preads(0)); run(preads(1)); run(wreads(0))
    assert LA_ == 4
    pend = [g for j in range(2, LA_) for g in x_loads(j) + w_step(j)]
    k.wait(lg="P0")
    k.stamp(1)
    for i, v in enumerate(hcalc(0)):
        if i % 12 == 0: k.wait(vm=f"X0_{i//12}")
        if i % 6 == 0 and pend: run(pend.pop(0))
        k(v)
    kvplan = {12: kv_group('K', 0), 13: kv_group('K', 1), 14: kv_group('V', 0)}
    for j in range(15):
        k.c(f"qproj stage {j}")
        if cfg.fine and j in (0, 2, 4, 8, 12): k.stamp(2 + (0, 2, 4, 8, 12).index(j))
        mf = []
        for t in range(8):
            for q in range(4):
                qb = q if t % 2 == 0 else 3 - q
                d = QA(t, qb)
                mf.append(f"{MF} {d}, {ar(WF(j&1,t),4)}, {vr(HF(j&1,qb),4)}, {d if j else '0'}")
        lds = (preads(j+2) if j < 14 else []) + wreads(j+1)
        valu = hcalc(j+1)
        jj = j + LA_
        pend += x_loads(jj) + w_step(jj) if jj < 16 else kvplan[j]
        nvm = min(len(pend), 8)
        vm = pend[:nvm]; pend = pend[nvm:]
        gaps = fill(32, lds, valu, vm, g0=1, valu_end=31)
        add(gaps, -1, W(lg=f"R{j}_3"))
        front(gaps, 12, W(lg=f"R{j}_7"))
        if j < 2 or j % 2 == 1 or not cfg.bar2:
            tgt = j+1 if (j < 1 or not cfg.bar2) else j+2
            front(gaps, 0, W(vm=f"W{tgt}", barrier=True))
        else:
            front(gaps, 0, W(vm=f"X{j+1}"))
        emit(k, mf, gaps)
    assert not pend
    k.stamp(2) if not cfg.fine else k.stamp(7)
    PF_F, PF_W = S_X, S_W
    pfsetup = [f"s_cmp_eq_u32 s{S_WAVE}, 1\ns_cselect_b64 s[{PF_F}:{PF_F+1}], s[58:59], s[56:57]",
        f"s_cmp_eq_u32 s{S_WAVE}, 2\ns_cselect_b64 s[{PF_F}:{PF_F+1}], s[60:61], s[{PF_F}:{PF_F+1}]",
        f"s_mul_i32 s6, s2, {43*128}\ns_add_u32 s{PF_F}, s{PF_F}, s6\ns_addc_u32 s{PF_F+1}, s{PF_F+1}, 0",
        f"s_lshl_b32 s6, s4, 17\ns_and_b32 s7, s5, 3\ns_lshl_b32 s7, s7, 15",
        f"s_add_u32 s6, s6, s7\ns_lshl_b32 s7, s{S_WAVE}, 13\ns_add_u32 s6, s6, s7",
        f"s_add_u32 s{PF_W}, s46, s6\ns_addc_u32 s{PF_W+1}, s47, 0\ns_mov_b32 s{PF_W+2}, 0x2000",
        f"s_cmp_eq_u32 s{S_WAVE}, 3\ns_cselect_b32 s{PF_F+2}, 0, {43*128}"]
    V0, VD = V_PF, V_PF+3
    pfv = [f"v_lshrrev_b32 v{VD}, 8, v{V_L16}", f"v_lshlrev_b32 v{VD}, 24, v{VD}", f"v_lshl_add_u32 v{V0}, v{V_L16}, 3, v{VD}"]
    cf, cw, co = cfg.pfc
    def site(srd, c0, sh, off, fl):
        return [f"s_sub_u32 s6, s{S_CNT}, {c0}\ns_min_u32 s6, s6, 4\ns_lshl_b32 s6, s6, {sh}", f"buffer_load_dword v{VD}, v{V0}, {sr(srd,4)}, s6 offen offset:{off} {fl}"]
    pfs = [site(PF_F, cf, 11, 0, ""), site(S_O, co, 17, 0, OPT.opf), site(PF_W, cw, 11, 0, OPT.wpf), site(S_O, co, 17, 2048, OPT.opf)]
    loopinit = f"s_mov_b32 s{S_CNT}, 8"
    k.c("merged head")
    k.wait(lg='all')
    def qk_q(buf, qb, czero):
        r = []
        for kb in range(2):
            for i in range(4):
                s_ = i if kb == 0 else 3 - i
                d = vr(S(buf, kb, qb), 4)
                c = d if i else ("0" if czero else vr(MN(qb), 4))
                nd = {f"Q{qb}": 2, f"KR{buf}": 0}
                if not czero: nd[f"MN{qb}"] = 2
                r.append(It(f"{MF} {d}, {ar(HK(buf)(kb*4+s_),4)}, {vr(Q(qb,s_),4)}, {c}", needs=nd, gives=f"S{buf}_{qb}"))
        return r
    mq = []
    for qb in range(4):
        for t in range(8):
            d = QA(t, qb)
            mq.append(It(f"{MF} {d}, {ar(WF(1,t),4)}, {vr(HF(1,qb),4)}, {d}", gives=f"A{t}_{qb}"))
    mq += qk_q(0,0,True) + qk_q(0,1,True) + qk_q(0,2,True) + qk_q(1,0,False) + qk_q(1,1,False) + qk_q(0,3,True) + qk_q(1,2,False) + qk_q(1,3,False)
    def conv(qb):
        r = []
        for s_ in range(4):
            for h in range(2):
                t = 2*s_ + h; nd = {f"A{t}_{qb}": 8}
                if qb < 2: a = 192 + (qb*8+t)*4
                else:
                    a = 224 + (t & 3)*4
                    for i in range(4): r.append(It(f"v_accvgpr_read_b32 v{a+i}, a{((qb-2)*8+t)*4+i}", needs=nd))
                for d in range(2): r.append(It(f"v_cvt_pk_bf16_f32 v{Q(qb,s_)+2*h+d}, v{a+2*d}, v{a+2*d+1}", needs=nd, gives=f"Q{qb}x"))
        r[-1].gives = f"Q{qb}"
        return r
    def rmax(qs):
        r = []
        for qb in qs:
            a = S(0, 0, qb); b = S(0, 1, qb); t = V_T + qb; nd = {f"S0_{qb}e": 8}
            r += [It(f"v_max3_f32 v{t}, v{a}, v{a+1}, v{a+2}", needs=nd), It(f"v_max3_f32 v{t+4}, v{b}, v{b+1}, v{b+2}"),
                  It(f"v_max3_f32 v{t}, v{t}, v{a+3}, v{b+3}"), It(f"v_max_f32 v{t}, v{t}, v{t+4}")]
        for n_, sw in enumerate(("v_permlane32_swap_b32", "v_permlane16_swap_b32")):
            for qb in qs: r.append(It(f"v_mov_b32 v{V_T+4+qb}, v{V_T+qb}", gives=f"mv{n_}_{qb}"))
            for qb in qs: r.append(It(f"{sw} v{V_T+4+qb}, v{V_T+qb}", cost=2, needs={f"mv{n_}_{qb}": 2}, gives=f"sw{n_}_{qb}"))
            for qb in qs: r.append(It(f"v_max_f32 v{V_T+qb}, v{V_T+qb}, v{V_T+4+qb}", needs={f"sw{n_}_{qb}": 1}))
        for qb in qs:
            for i in range(4): r.append(It(f"v_sub_f32 v{MN(qb)+i}, 0, v{V_T+qb}", gives=f"MN{qb}" if i == 3 else None))
        return r
    def sm0(qs, sub=True):
        r = []
        E = exps(0, qs); C = cvts(0, qs); A = adds(0, qs, cfg.addq())
        regs = [S(0, kb, qb) + i for qb in qs for kb in range(2) for i in range(4)]
        qof = [qb for qb in qs for _ in range(8)]
        n_ = len(E)
        for i in range(n_ + 2):
            if sub and i < n_: r.append(It(f"v_add_f32 v{regs[i]}, v{regs[i]}, v{MN(qof[i])}"))
            if 1 <= i <= n_: r.append(It(E[i-1], cost=2, gives=f"e{qs[0]}_{i-1}"))
            if i >= 2:
                if A[i-2]: r.append(It(A[i-2], needs={f"e{qs[0]}_{i-2}": 1}))
                if (i-2) % 2 == 1: r.append(It(C[(i-2)//2], needs={f"e{qs[0]}_{i-2}": 1}))
        return r
    last = {}
    for it in mq:
        if isinstance(it.gives, str) and it.gives.startswith("S"): last[it.gives] = it
    for g, it in last.items(): it.gives = g + "e"
    init = [It(f"v_mov_b32 v{V_LS+q}, 0") for q in range(4)] + [It(x) for x in pfv]
    vq = init + conv(0) + conv(1) + conv(2) + rmax([0, 1]) + conv(3) + sm0([0, 1]) + rmax([2, 3]) + sm0([2, 3])
    side = [It(W(vm="K0", barrier=True), cost=0, n=2)]
    for b in range(2):
        side += [It(L(x, f"HK{b}")) for x in kreads(0, b, HK(b))]
    side += [It(x, cost=0, n=3) for x in pfsetup]
    side += [It(W(lg="HK0"), cost=0, gives="KR0", needs={"A7_2": 0}), It(W(lg="HK1"), cost=0, gives="KR1")]
    G = lambda grp, nd=None: It(lambda kk, grp=grp: kk.run(grp), cost=2, n=3, needs=nd)
    side += [G(x) for x in kv_group('K', 2)] + [G(x, {"S0_2e": 0}) for x in kv_group('V', 1)]
    side += [It(W(vm="V0", barrier=True), cost=0, n=2, needs={"S0_3e": 0})]
    side += [It(x) for x in kreads(1, 0)] + [G(x) for x in kv_group('K', 3)] + [It(loopinit, cost=0, n=4)]
    merge(k, mq, vq, side)
    k("k1_first:")
    iteration(k, cfg, 1, "first")
    iteration(k, cfg, 2, "pv", czero=True)
    k.stamp(3) if not cfg.fine else None
    k("s_branch k1_pos2")
    k(".p2align 6")
    k("k1_loop:")
    iteration(k, cfg, 0, pf=pfs[0] if cfg.pf else ())
    iteration(k, cfg, 1, pf=pfs[1] if cfg.pf else ())
    iteration(k, cfg, 2, pf=pfs[2] if cfg.pf else (), label="k1_pos2")
    iteration(k, cfg, 3, pf=pfs[3] if cfg.pfo else (), post=[f"s_sub_u32 s{S_CNT}, s{S_CNT}, 1\ns_cmp_lg_u32 s{S_CNT}, 0\ns_cbranch_scc1 k1_loop"])
    k.stamp(4) if not cfg.fine else None
    rest = iteration(k, cfg, 0, "tail")
    k.stamp(5) if not cfg.fine else None
    k.lg = ["V0"]*len(k.lg)
    k.run([x[1] for x in rest])
    nrest = len(rest); dbw = 8 - (nrest + 3)//4
    ns = 2*len(cfg.sumq)
    LT = 240
    mq = []
    for i, m in enumerate(pv2_mfmas(2, cfg.sumq)):
        db = (i - ns)//8
        it = It(m, gives="SUM" if i == ns-1 else (f"O{db}" if i >= ns and (i - ns) % 8 == 7 else None))
        if i == ns: it.needs = {"W0": 0}
        if i == ns + 8*dbw: it.needs = {"W1": 0}
        mq.append(it)
    side = [It(W(lg="V0"), cost=0, gives="W0")] + [It(f"s_mov_b32 s{S_T0+qb}, {qb*131072}", cost=0) for qb in range(4)]
    side += [It(W(lg="all"), cost=0, gives="W1", needs={f"O{dbw-2}": 0})]
    vq = []
    aq = cfg.addq()
    for n_, sw in enumerate(("v_permlane32_swap_b32", "v_permlane16_swap_b32")):
        for q in aq: vq.append(It(f"v_mov_b32 v{LT+4+q}, v{V_LS+q}", gives=f"a{n_}{q}"))
        for q in aq: vq.append(It(f"{sw} v{LT+4+q}, v{V_LS+q}", cost=2, needs={f"a{n_}{q}": 2}, gives=f"b{n_}{q}"))
        for q in aq: vq.append(It(f"v_add_f32 v{V_LS+q}, v{V_LS+q}, v{LT+4+q}", needs={f"b{n_}{q}": 1}))
    for q in cfg.sumq: vq.append(It(f"v_accvgpr_read_b32 v{V_LS+q}, a{LA(q)}", needs={"SUM": 8}))
    for q in range(4): vq.append(It(f"v_rcp_f32 v{LT+2*q}, v{V_LS+q}", cost=2))
    vq += [It(f"v_add_f32 v{LT+8}, v{V_LS}, v{V_LS+1}"), It(f"v_add_f32 v{LT+9}, v{V_LS+2}, v{V_LS+3}"), It(f"v_add_f32 v{LT+8}, v{LT+8}, v{LT+9}"),
           It(f"s_mov_b32 s6, {hexf(2.0**64)}\nv_cmp_nle_f32 vcc, v{LT+8}, s6"),
           It(f"s_lshl_b32 s7, s{S_WAVE}, 2\ns_add_u32 s7, s7, {FLAGB}\nv_mov_b32 v{LT+10}, s7"), It(f"v_mov_b32 v{LT+11}, {FLAGB}"),
           It(f"s_cmp_lg_u64 vcc, 0\ns_cselect_b32 s6, 1, 0\nv_mov_b32 v{LT+9}, s6"), It(L(f"ds_write_b32 v{LT+10}, v{LT+9}", "F"))]
    n_ = 0
    for s_ in range(4):
        for qb in range(4):
            t = 64 + (n_ & 3)*8; o = 32 + (n_ & 7)*4; n_ += 1
            for h in range(2):
                for i in range(4): vq.append(It(f"v_accvgpr_read_b32 v{t+4*h+i}, a{O(2*s_+h,qb)+i}", needs={f"O{2*s_+h}": 8}))
            if n_ <= cfg.npk:
                for i in range(8): vq.append(It(f"v_mul_f32 v{t+i}, v{t+i}, v{LT+2*qb}"))
            else:
                for i in range(4): vq.append(It(f"v_pk_mul_f32 {vr(t+2*i,2)}, {vr(t+2*i,2)}, {vr(LT+2*qb,2)} op_sel_hi:[1,0]"))
            for d in range(4): vq.append(It(f"v_cvt_pk_bf16_f32 v{o+d}, v{t+2*d}, v{t+2*d+1}"))
            vq.append(It(f"buffer_store_dwordx4 {vr(o,4)}, v{V_L16}, {sr(S_O,4)}, s{S_T0+qb} offen offset:{s_*1024} {OPT.st1}", cost=2))
    merge(k, mq, vq, side)
    k("s_waitcnt lgkmcnt(0)\ns_barrier")
    k(f"ds_read_b128 {vr(LT+12,4)}, v{LT+11}\ns_waitcnt lgkmcnt(0)")
    k(f"v_or_b32 v{LT+12}, v{LT+12}, v{LT+13}\nv_or3_b32 v{LT+12}, v{LT+12}, v{LT+14}, v{LT+15}\ns_nop 0")
    k(f"v_readfirstlane_b32 s6, v{LT+12}")
    k(f"s_andn2_b32 s6, s6, s{S_RERUN}\ns_cmp_lg_u32 s6, 0\ns_cbranch_scc1 k1_fallback")
    k.dbg_mark(3, 100, 101, True); k.dbg_mark(4, 102, 103)
    if prof:
        k.stamp(6) if not cfg.fine else None
        k("s_waitcnt vmcnt(0)")
        k.stamp(7) if not cfg.fine else None
        k.dump_stamps(8, 54, 100)
    k(f"{end}:")
    k("s_endpgm")
    k("k1_fallback:")
    k(f"s_mov_b32 s{S_RERUN}, 1")
    k("v_and_b32 v2, 63, v0\nv_lshrrev_b32 v3, 4, v2\nv_and_b32 v4, 15, v2")
    k("v_lshlrev_b32 v5, 8, v4\nv_lshl_add_u32 v5, v3, 4, v5")
    for q in range(4): k(f"v_mov_b32 v{V_T+q}, 0xff800000")
    k("s_mov_b32 s6, 0")
    k("k1_fb_loop:")
    for s in range(4): k(f"buffer_load_dwordx4 {ar(KF(s),4)}, v5, {sr(S_K,4)}, s6 offen offset:{64*s}")
    k("s_waitcnt vmcnt(0)")
    for s in range(4):
        for qb in range(4):
            d = vr(S(0,0,qb),4)
            k(f"{MF} {d}, {ar(KF(s),4)}, {vr(Q(qb,s),4)}, {d if s else '0'}")
    k("s_nop 15")
    for qb in range(4):
        a = S(0,0,qb)
        k(f"v_max3_f32 v{V_T+qb}, v{V_T+qb}, v{a}, v{a+1}")
        k(f"v_max3_f32 v{V_T+qb}, v{V_T+qb}, v{a+2}, v{a+3}")
    k("s_add_u32 s6, s6, 4096\ns_cmp_lt_u32 s6, 0x80000\ns_cbranch_scc1 k1_fb_loop")
    rowmax_cross(k, [V_T+q for q in range(4)], V_T+4)
    for x in pfv: k(x)
    for qb in range(4):
        k(f"v_mov_b32 v{V_LS+qb}, 0")
        for i in range(4): k(f"v_sub_f32 v{MN(qb)+i}, 0, v{V_T+qb}")
    k("s_barrier")
    k.vm = []; k.lg = []
    for wh, t in (('K',0),('K',1),('V',0),('K',2),('V',1),('K',3)): run(kv_group(wh, t))
    k.wait(vm="V0", barrier=True)
    run(kreads(0, 0, HK(0))); k("s_waitcnt lgkmcnt(0)"); run(kreads(0, 1, HK(1)))
    for m in qk_mfmas(0, HK(0)): k(m)
    k("s_waitcnt lgkmcnt(0)\ns_barrier")
    run(kreads(1, 0))
    for m in qk_mfmas(1, HK(1)): k(m)
    merge(k, [], sm0([0, 1, 2, 3], sub=False))
    k(loopinit)
    k("s_branch k1_first")
    return k
```

```python
from common import *
from sched import *
from k0 import mod_loads, mod_finish
MF = "v_mfma_f32_16x16x32_bf16"

TOP = 147456
SCR = TOP + 8192
S_WAVE, S_TT, S_M = 3, 4, 5
S_A, S_B, S_C, S_D, S_E, S_FL = 8, 12, 16, 20, 24, 28
S_W1, S_X0, S_T0 = 32, 33, 36
V_L16 = 10

def handoff_signal(k, ph):
    lab = f"kt_h{ph}"
    rep = OPT.rep
    k(f"s_lshl_b32 s6, s{S_TT}, 11\ns_add_u32 s6, s6, {ph*32768}")
    k(f"v_and_b32 v252, 15, v0\nv_lshlrev_b32 v253, 7, v252\nv_lshlrev_b32 v252, 2, v252\ns_lshl_b32 s7, s{S_M}, 2\nv_add_u32 v253, s7, v253\nv_mov_b32 v254, 1")
    if rep > 1:
        k(f"s_lshr_b32 s7, s{S_M}, {2 if rep == 4 else 0}\ns_lshl_b32 s7, s7, 7\nv_add_u32 v252, s7, v252")
    k("s_waitcnt vmcnt(0)\ns_barrier")
    k(f"s_cmp_eq_u32 s{S_WAVE}, {1 if OPT.pdelay >= 0 else 0}\ns_cbranch_scc0 {lab}_a")
    k(f"s_mov_b64 exec, {(1 << rep) - 1}")
    k(f"buffer_store_dword v254, v253, {sr(S_FL,4)}, s6 offen {OPT.fst}\ns_mov_b64 exec, -1")
    k(f"{lab}_a:")
    k(f"s_cmp_eq_u32 s{S_WAVE}, 0\ns_cbranch_scc0 {lab}_c")
    k("s_mov_b32 s7, 0")
    if OPT.pdelay > 0: k(f"s_sleep {OPT.pdelay}")
    if OPT.pdelay < 0: k("s_waitcnt vmcnt(0)")
    k(f"{lab}_b:")
    k(f"buffer_load_dword v248, v252, {sr(S_FL,4)}, s6 offen {OPT.fld}\ns_waitcnt vmcnt(0)\nv_cmp_ne_u32 vcc, 1, v248")
    k(f"s_cbranch_vccz {lab}_c")
    if OPT.psleep: k(f"s_sleep {OPT.psleep}")
    k(f"s_add_u32 s7, s7, 1\ns_cmp_lt_u32 s7, 0x10000\ns_cbranch_scc1 {lab}_b")
    k(f"{lab}_c:")
    k("s_barrier")

def gen_kt(prof=False):
    k = Kern("k2_tail_kernel", 256, 512, 160*1024, 256, 256, 96 if prof else 64)
    k.prof = prof
    end = "kt_end"
    k(f"s_cmp_ge_u32 s2, 256\ns_cbranch_scc1 {end}")
    k.stamp(0)
    k.dbg_begin(2)
    k(f"s_load_dwordx2 s[52:53], s[0:1], {KA_WO}")
    k(f"s_load_dwordx2 s[54:55], s[0:1], {KA_WS}")
    k(f"s_load_dwordx4 s[48:51], s[0:1], {KA_WG}")
    k(f"s_load_dwordx2 s[56:57], s[0:1], {KA_WD}")
    k(f"s_load_dwordx2 s[58:59], s[0:1], {KA_OUT}")
    k(f"s_load_dwordx2 s[46:47], s[0:1], {KA_X}")
    k("v_lshrrev_b32 v1, 6, v0\nv_and_b32 v2, 63, v0")
    k(f"v_readfirstlane_b32 s{S_WAVE}, v1")
    k(f"s_bfe_u32 s{S_TT}, s2, 0x10002\ns_lshl_b32 s{S_TT}, s{S_TT}, 3\ns_bfe_u32 s6, s2, 0x30003\ns_add_u32 s{S_TT}, s{S_TT}, s6")
    k(f"s_and_b32 s{S_M}, s2, 3\ns_lshl_b32 s{S_M}, s{S_M}, 2\ns_lshr_b32 s6, s2, 6\ns_add_u32 s{S_M}, s{S_M}, s6")
    k("v_lshrrev_b32 v3, 4, v2\nv_and_b32 v4, 15, v2")
    k(f"v_lshlrev_b32 v{V_L16}, 4, v2")
    k(f"s_cmp_lt_u32 s{S_WAVE}, 4\ns_cbranch_scc1 kt_compute")

    A_STG, A_NSL, A_NK = 16384, 8, 32
    C_W, C_NW, C_B, C_NB, C_NK = 12288, OPT.cnw, 8192, OPT.cnb, 16
    C_BB = C_W*C_NW
    assert C_BB + C_B*C_NB <= TOP
    D_W, D_NW, D_B, D_NB, D_NK, D_NS = 8192, OPT.dnw, 8192, OPT.dnb, 43, 22
    D_BB = D_W*D_NW
    assert D_BB + D_B*D_NB <= TOP

    k(f"v_and_b32 v1, 3, v1\ns_and_b32 s{S_WAVE}, s{S_WAVE}, 3\ns_lshl_b32 s{S_W1}, s{S_WAVE}, 10")
    V_DA, V_DC, V_DD = 16, 17, 20
    k("v_lshl_add_u32 v7, v1, 2, v3\nv_and_b32 v11, 7, v7\nv_lshlrev_b32 v11, 1, v11\nv_xor_b32 v11, v11, v4\nv_lshlrev_b32 v7, 10, v7")
    k(f"v_lshl_add_u32 v{V_DA}, v11, 4, v7")
    k(f"s_lshr_b32 s6, s{S_M}, 2\ns_lshl_b32 s7, s6, 17\ns_and_b32 s33, s{S_M}, 3\ns_lshl_b32 s33, s33, 8\ns_add_u32 s7, s7, s33")
    k(f"s_lshl_b32 s33, s{S_TT}, 3\ns_add_u32 s33, s33, s{S_WAVE}")
    k(f"s_lshl_b32 s34, s33, 17\ns_lshl_b32 s6, s6, 12\ns_add_u32 s34, s34, s6\ns_add_u32 s34, s34, 0x{WS_OF:x}")
    k("s_waitcnt lgkmcnt(0)")
    k(f"s_add_u32 s{S_A}, s52, s7\ns_addc_u32 s{S_A+1}, s53, 0\ns_sub_u32 s{S_A+2}, {4096*1024}, s7\ns_mov_b32 s{S_A+3}, 0x20000")
    k(f"s_add_u32 s{S_B}, s54, s34\ns_addc_u32 s{S_B+1}, s55, 0\ns_mov_b32 s{S_B+2}, {5*131072}\ns_mov_b32 s{S_B+3}, 0x20000")
    def a_step(j):
        for p in range(2):
            k(f"s_add_u32 m0, s{S_W1}, {(j % A_NSL)*A_STG + p*4096}\ns_mov_b32 s{S_T0}, {((j>>2)*512 + (j&3)*32 + p*16)*1024}")
            k.vmop(f"buffer_load_dwordx4 v{V_DA}, {sr(S_A,4)}, s{S_T0} offen lds", f"S{j}")
            k(f"s_add_u32 m0, s{S_W1}, {(j % A_NSL)*A_STG + 8192 + p*4096}\ns_mov_b32 s{S_T0+1}, {p*4*131072 + (j>>2)*16384 + (j&3)*1024}")
            k.vmop(f"buffer_load_dwordx4 v{V_L16}, {sr(S_B,4)}, s{S_T0+1} offen {OPT.ont} lds", f"S{j}")
    if OPT.achain:
        a_step(0); a_step(1); a_step(2); a_step(3)
        k.wait(vm="S1", barrier=True)
        nxt = 4
        for p in range(A_NK//2 - 1):
            for _ in range(2):
                if nxt < A_NK: a_step(nxt); nxt += 1
            if p == A_NK//2 - 2:
                k.srd(S_E, 54, 4*12288, WS_MODP)
                k("v_and_b32 v30, 255, v0\nv_lshlrev_b32 v30, 4, v30")
                mod_loads(k, S_E, 30, S_T0, 32, 4096, "M0")
                mod_loads(k, S_E, 30, S_T0+4, 48, 8192, "M1")
            k.wait(vm=f"S{2*p+3}", barrier=True)
    else:
        a_step(0); a_step(1)
        k.wait(vm="S0", barrier=True)
        a_step(2); a_step(3)
        k.wait(vm="S1", barrier=True)
        nxt = 4
        for j in range(1, A_NK-1, 2):
            for _ in range(2):
                if nxt < A_NK: a_step(nxt); nxt += 1
            if j == A_NK-3:
                k.srd(S_E, 54, 4*12288, WS_MODP)
                k("v_and_b32 v30, 255, v0\nv_lshlrev_b32 v30, 4, v30")
                mod_loads(k, S_E, 30, S_T0, 32, 4096, "M0")
                mod_loads(k, S_E, 30, S_T0+4, 48, 8192, "M1")
            k.wait(vm=f"S{j+2}", barrier=True)
    k("v_and_b32 v7, 1, v1\nv_lshlrev_b32 v7, 4, v7")
    for p in range(3):
        k(f"v_add_u32 v12, {64*p}, v2")
        k("v_mul_u32_u24 v13, 0x5556, v12\nv_lshrrev_b32 v13, 18, v13")
        k("v_mul_u32_u24 v14, 12, v13\nv_sub_u32 v14, v12, v14")
        k("v_lshrrev_b32 v15, 1, v13\nv_and_b32 v15, 2, v15\nv_xor_b32 v14, v14, v15")
        k("v_add_u32 v13, v13, v7\nv_mul_u32_u24 v13, 2752, v13")
        k(f"v_lshl_add_u32 v{V_DC+p}, v14, 4, v13")
        if p: k(f"v_subrev_u32 v{V_DC+p}, {1024*p}, v{V_DC+p}")
    k("v_lshrrev_b32 v7, 3, v2\nv_and_b32 v12, 7, v2\nv_lshlrev_b32 v11, 1, v7\nv_and_b32 v11, 4, v11\nv_xor_b32 v12, v12, v11")
    k(f"v_lshlrev_b32 v7, 10, v7\nv_lshl_add_u32 v{V_DD}, v12, 4, v7")
    k(f"s_mul_i32 s35, s{S_WAVE}, 3072\ns_mul_i32 s7, s{S_M}, 192")
    k(f"s_cmp_lt_u32 s{S_WAVE}, 2\ns_cselect_b64 s[{S_A}:{S_A+1}], s[48:49], s[50:51]")
    k(f"s_add_u32 s{S_A}, s{S_A}, s7\ns_addc_u32 s{S_A+1}, s{S_A+1}, 0\ns_sub_u32 s{S_A+2}, {512*2752}, s7")
    k(f"s_lshl_b32 s34, s33, 14\ns_add_u32 s34, s34, 0x{WS_H2:x}")
    k(f"s_add_u32 s{S_B}, s54, s34\ns_addc_u32 s{S_B+1}, s55, 0\ns_mov_b32 s{S_B+2}, {5*16384}")
    k(f"s_and_b32 s6, s{S_M}, 7\ns_lshl_b32 s6, s6, 7\ns_lshl_b32 s7, s{S_WAVE}, 13\ns_add_u32 s6, s6, s7")
    k(f"s_add_u32 s{S_C}, s56, s6\ns_addc_u32 s{S_C+1}, s57, 0\ns_sub_u32 s{S_C+2}, {1376*1024}, s6\ns_mov_b32 s{S_C+3}, 0x20000")
    k(f"s_lshr_b32 s6, s{S_M}, 3\ns_lshl_b32 s6, s6, 2\ns_add_u32 s6, s6, s33\ns_mul_i32 s6, s6, {43*1024}\ns_add_u32 s6, s6, 0x{WS_HF:x}")
    k(f"s_add_u32 s{S_D}, s54, s6\ns_addc_u32 s{S_D+1}, s55, 0\ns_mov_b32 s{S_D+2}, {43*1024}\ns_mov_b32 s{S_D+3}, 0x20000")
    k(f"s_mov_b32 s6, 0\ns_cmp_lt_u32 s{S_WAVE}, 2\ns_cselect_b32 s7, 1.0, 0\nv_add_u32 v30, {TOP}, v30")
    k.wait(vm="M1")
    mod_finish(k, 32, 6); mod_finish(k, 48, 7)
    k("ds_write_b128 v30, v[32:35]\nds_write_b128 v30, v[48:51] offset:4096\ns_waitcnt lgkmcnt(0)")
    def c_w(j):
        k(f"s_add_u32 m0, s35, {(j % C_NW)*C_W}\ns_mov_b32 s{S_T0}, {j*32*2752}")
        for p in range(3): k.vmop(f"buffer_load_dwordx4 v{V_DC+p}, {sr(S_A,4)}, s{S_T0} offen offset:{p*1024} lds", f"CW{j}")
    def c_b(j):
        for p in range(2):
            k(f"s_add_u32 m0, s{S_W1}, {C_BB + (j % C_NB)*C_B + p*4096}\ns_mov_b32 s{S_T0+1}, {p*65536 + j*1024}")
            k.vmop(f"buffer_load_dwordx4 v{V_L16}, {sr(S_B,4)}, s{S_T0+1} offen sc1 lds", f"CB{j}")
    def d_w(g):
        for i in range(2):
            j = 2*g + i
            if j >= D_NK: break
            k(f"s_add_u32 m0, s{S_W1}, {(g % D_NW)*D_W + i*4096}\ns_mov_b32 s{S_T0}, {j*32*1024}")
            k.vmop(f"buffer_load_dwordx4 v{V_DD}, {sr(S_C,4)}, s{S_T0} offen lds", f"DW{g}")
    def d_b(g):
        for i in range(2):
            j = 2*g + i
            if j >= D_NK: break
            k(f"s_add_u32 m0, s{S_W1}, {D_BB + (g % D_NB)*D_B + i*4096}\ns_mov_b32 s{S_T0+1}, {j*1024}")
            k.vmop(f"buffer_load_dwordx4 v{V_L16}, {sr(S_D,4)}, s{S_T0+1} offen sc1 lds", f"DB{g}")
    def ring(n, nw, nb, fw, fb, tw, tb, lag, nW):
        nB = min(nb, n)
        for j in range(nB):
            if nW <= j: fw(nW); nW += 1
            fb(j)
        k.wait(vm=f"{tb}0", barrier=True)
        for j in range(n-1):
            order = []
            if nB < n and nB - nb <= j - lag: order.append('B')
            if nW < n and nW - nw <= j - 2: order.append('W')
            for o in order:
                if o == 'B': fb(nB); nB += 1
                else: fw(nW); nW += 1
            assert nB > j + 1 and nW > j + 1, (j, nB, nW)
            k.wait(vm=f"{tw}{j+1}"); k.wait(vm=f"{tb}{j+1}", barrier=True)
    pre = [int(c) for c in OPT.cpre]
    assert sum(pre) <= C_NW and pre[0] <= 6
    k(f"s_cmp_eq_u32 s{S_M}, 15\ns_cbranch_scc1 kt_l15")
    nw_ = 0
    for n_ in pre:
        for _ in range(n_): c_w(nw_); nw_ += 1
        k("s_barrier")
    ring(C_NK, C_NW, C_NB, c_w, c_b, "CW", "CB", 1, nw_)
    k("s_barrier")
    k("s_branch kt_l_d")
    k("kt_l15:")
    k("s_barrier\ns_barrier\ns_barrier\ns_barrier\ns_barrier\ns_barrier")
    k("kt_l_d:")
    k.vm = []
    for g in range(OPT.dpre): d_w(g)
    k("s_barrier")
    for g in range(OPT.dpre, OPT.dpre + OPT.dmid): d_w(g)
    k("s_barrier")
    assert OPT.dpre + OPT.dmid <= D_NW
    ring(D_NS, D_NW, D_NB, d_w, d_b, "DW", "DB", 2, OPT.dpre + OPT.dmid)
    k("s_endpgm")

    k("kt_compute:")
    k.vm = []
    k("v_lshrrev_b32 v5, 2, v4\nv_and_b32 v6, 3, v2")
    ACC = lambda t, tb: 64 + (t*4+tb)*4
    WF = lambda buf, t: 128 + (buf*4+t)*4
    BF = lambda buf, tb: 160 + (buf*4+tb)*4
    V_WA, V_BA = 16, 24
    k("v_lshl_add_u32 v7, v3, 2, v5\nv_and_b32 v11, 7, v7\nv_lshlrev_b32 v7, 8, v7\nv_lshl_add_u32 v7, v6, 3, v7")
    k("v_lshlrev_b32 v13, 1, v1\nv_and_b32 v13, 4, v13\nv_xor_b32 v11, v11, v13")
    for t in range(4):
        k(f"v_xor_b32 v12, {t}, v11\nv_lshl_add_u32 v{V_WA+t}, v12, 5, v7\nv_add_u32 v{V_WA+4+t}, 0x10000, v{V_WA+t}")
    k(f"v_and_b32 v13, 1, v1\nv_lshl_add_u32 v{V_BA}, v13, 12, v{V_L16}\nv_add_u32 v{V_BA+1}, 0x10000, v{V_BA}")
    k(f"s_lshr_b32 s7, s{S_M}, 2\ns_lshl_b32 s7, s7, 21\ns_lshl_b32 s6, s{S_TT}, 17\ns_add_u32 s7, s7, s6\ns_and_b32 s6, s{S_M}, 3\ns_lshl_b32 s6, s6, 12\ns_add_u32 s7, s7, s6")
    k(f"s_and_b32 s6, s{S_WAVE}, 1\ns_lshl_b32 s6, s6, 16\ns_add_u32 s7, s7, s6\ns_lshr_b32 s6, s{S_WAVE}, 1\ns_lshl_b32 s6, s6, 11\ns_add_u32 s7, s7, s6\ns_add_u32 s7, s7, 0x{WS_PART:x}")
    VB4, VB5, VB6, VB7, VB8 = 26, 27, 28, 29, 30
    k("v_and_b32 v12, 7, v0\nv_bfe_u32 v13, v0, 3, 2\nv_lshrrev_b32 v14, 5, v0")
    k(f"v_lshlrev_b32 v{VB4}, 10, v14\nv_lshl_add_u32 v{VB4}, v13, 8, v{VB4}\nv_lshl_add_u32 v{VB4}, v12, 4, v{VB4}")
    k(f"v_lshlrev_b32 v{VB5}, 10, v12\nv_lshl_add_u32 v{VB5}, v14, 6, v{VB5}\nv_lshl_add_u32 v{VB5}, v13, 3, v{VB5}")
    k(f"v_lshlrev_b32 v{VB6}, 7, v14\nv_lshl_add_u32 v{VB6}, v13, 4, v{VB6}\nv_add_u32 v{VB6}, {TOP}, v{VB6}")
    k(f"v_lshlrev_b32 v{VB7}, 4, v12\nv_add_u32 v{VB7}, {SCR}, v{VB7}\nv_lshl_add_u32 v{VB8}, v1, 2, v{VB7}")
    k(f"s_lshl_b32 s33, s{S_TT}, 4\ns_add_u32 s33, s33, s{S_M}\ns_lshr_b32 s34, s33, 1\ns_lshl_b32 s34, s34, 14\ns_and_b32 s6, s33, 1\ns_lshl_b32 s6, s6, 7\ns_add_u32 s34, s34, s6\ns_lshl_b32 s33, s33, 13")
    k("s_waitcnt lgkmcnt(0)")
    k(f"s_add_u32 s{S_A}, s54, s7\ns_addc_u32 s{S_A+1}, s55, 0\ns_mov_b32 s{S_A+2}, {3*16384+2048}\ns_mov_b32 s{S_A+3}, 0x20000")
    k.srd(S_FL, 54, 3*32768, WS_FLAG)
    k.srd(S_B, 46, 2048*1024)
    k.srd(S_C, 54, 4*2048*1024, WS_PART)
    k.srd(S_D, 54, 2048*1024, WS_H2)
    k.srd(S_E, 54, 2048*1024, WS_X1)
    def a_reads(j):
        base = (j % A_NSL)*A_STG; bank = base >> 16; off = base & 0xffff
        w = [[L(f"ds_read_b64_tr_b16 {vr(WF(j&1,t)+2*h,2)}, v{V_WA+4*bank+t} offset:{off + h*4096}", f"R{j}_{t}") for h in range(2)] for t in range(4)]
        b = [L(f"ds_read_b128 {vr(BF(j&1,tb),4)}, v{V_BA+bank} offset:{off + 8192 + tb*1024}", f"R{j}_0") for tb in range(4)]
        return b + w[0] + w[1] + w[2] + w[3]
    XR = 56
    if OPT.achain:
        WF2 = lambda j, t: 128 + ((j&3)*4+t)*4
        BF2 = lambda j, tb: 192 + ((j&3)*4+tb)*4
        def p_reads(p):
            r = []
            for j in (2*p, 2*p+1):
                base = (j % A_NSL)*A_STG; bank = base >> 16; off = base & 0xffff
                r += [L(f"ds_read_b128 {vr(BF2(j,tb),4)}, v{V_BA+bank} offset:{off + 8192 + tb*1024}", f"R{p}_0") for tb in range(4)]
            for t in range(4):
                for j in (2*p, 2*p+1):
                    base = (j % A_NSL)*A_STG; bank = base >> 16; off = base & 0xffff
                    r += [L(f"ds_read_b64_tr_b16 {vr(WF2(j,t)+2*h,2)}, v{V_WA+4*bank+t} offset:{off + h*4096}", f"R{p}_{t}") for h in range(2)]
            return r
        k("s_barrier")
        k.run(p_reads(0))
        for p in range(A_NK//2):
            mf = []; n_ = 0
            for t in range(4):
                for tb_ in range(4):
                    tb = tb_ if t % 2 == 0 else 3 - tb_
                    d = vr(ACC(t, tb), 4)
                    for i, j in enumerate((2*p, 2*p+1) if n_ % 2 == 0 else (2*p+1, 2*p)):
                        mf.append(f"{MF} {d}, {vr(WF2(j,t),4)}, {vr(BF2(j,tb),4)}, {d if (p or i) else '0'}")
                    n_ += 1
            last = p == A_NK//2 - 1
            vm = [[f"buffer_load_dwordx2 {vr(XR+pc*4+h*2,2)}, v{VB5}, {sr(S_B,4)}, s33 offen offset:{pc*512+h*32}"] for pc in range(2) for h in range(2)] if last else []
            gaps = fill(32, [] if last else p_reads(p+1), [], vm, g0=1)
            if p == 0:
                add(gaps, -1, W(lg=f"R{p}_0")); front(gaps, 6, W(lg=f"R{p}_1")); front(gaps, 14, W(lg=f"R{p}_3"))
            else:
                add(gaps, -1, W(lg=f"R{p}_3"))
            if not last: front(gaps, 0, "s_barrier")
            emit(k, mf, gaps)
    else:
        k("s_barrier")
        k.run(a_reads(0))
        for j in range(A_NK):
            mf = []
            for t in range(4):
                for tb_ in range(4):
                    tb = tb_ if t % 2 == 0 else 3 - tb_
                    d = vr(ACC(t, tb), 4)
                    mf.append(f"{MF} {d}, {vr(WF(j&1,t),4)}, {vr(BF(j&1,tb),4)}, {d if j else '0'}")
            lds = a_reads(j+1) if j < A_NK-1 else []
            vm = []
            if j == A_NK-1:
                vm = [[f"buffer_load_dwordx2 {vr(XR+pc*4+h*2,2)}, v{VB5}, {sr(S_B,4)}, s33 offen offset:{pc*512+h*32}"] for pc in range(2) for h in range(2)]
            gaps = fill(16, lds, [], vm, g0=1)
            add(gaps, -1, W(lg=f"R{j}_1"))
            if j < A_NK-1 and (j < 2 or j % 2 == 1): front(gaps, 0, "s_barrier")
            front(gaps, 6, W(lg=f"R{j}_3"))
            if OPT.slowa and j < OPT.slown: add(gaps, 15, f"s_sleep {OPT.slowa}")
            emit(k, mf, gaps)
    k.stamp(1)
    n = 0
    for tb in range(4): k(f"s_mov_b32 s{S_T0+tb}, {tb*16384}")
    for ns in range(2):
        for tb in range(4):
            o = 128 + (n & 7)*4; n += 1
            for h in range(2):
                a = ACC(2*ns+h, tb)
                k(f"v_cvt_pk_bf16_f32 v{o+2*h}, v{a}, v{a+1}\nv_cvt_pk_bf16_f32 v{o+2*h+1}, v{a+2}, v{a+3}")
            k(f"buffer_store_dwordx4 {vr(o,4)}, v{V_L16}, {sr(S_A,4)}, s{S_T0+tb} offen offset:{ns*1024} sc1")
    for i in range(8): k(f"s_add_u32 s{S_T0+i}, s34, {(i>>1)*0x200000 + (i&1)*8192}")
    handoff_signal(k, 0)
    k.stamp(2)
    PR, PA, AC, T, XF = 64, 96, 144, 160, 168
    k.vm = []; k.lg = []
    for i in range(8): k.vmop(f"buffer_load_dwordx4 {vr(PR+i*4,4)}, v{VB4}, {sr(S_C,4)}, s{S_T0+i} offen sc1", f"S{i>>1}")
    for wi in range(3):
        for pc in range(2):
            for h in range(2): k(f"ds_read_b128 {vr(PA+wi*16+pc*8+h*4,4)}, v{VB6} offset:{wi*2048 + pc*1024 + h*64}")
    GB = 240
    k(f"v_lshrrev_b32 v11, 1, v1\nv_lshlrev_b32 v12, 5, v3\nv_lshl_add_u32 v12, v11, 7, v12\ns_and_b32 s6, s{S_M}, 7\ns_lshl_b32 s6, s6, 8\ns_add_u32 s6, s6, {TOP+6144}\nv_add_u32 v12, s6, v12")
    k(f"ds_read_b128 {vr(GB,4)}, v12\nds_read_b128 {vr(GB+4,4)}, v12 offset:16")
    for d in range(8): k(f"v_lshlrev_b32 v{XF+2*d}, 16, v{XR+d}\nv_and_b32 v{XF+2*d+1}, 0xffff0000, v{XR+d}")
    for sp in range(4):
        k.wait(vm=f"S{sp}")
        for d in range(8):
            w = PR + sp*8 + d; t_ = T + 2*(d & 3)
            if sp == 0:
                k(f"v_lshlrev_b32 v{AC+2*d}, 16, v{w}\nv_and_b32 v{AC+2*d+1}, 0xffff0000, v{w}")
            else:
                k(f"v_lshlrev_b32 v{t_}, 16, v{w}\nv_and_b32 v{t_+1}, 0xffff0000, v{w}")
                k(f"v_pk_add_f32 {vr(AC+2*d,2)}, {vr(AC+2*d,2)}, {vr(t_,2)}")
    k("s_waitcnt lgkmcnt(0)")
    for d in range(8): k(f"v_pk_fma_f32 {vr(AC+2*d,2)}, {vr(AC+2*d,2)}, {vr(PA+2*d,2)}, {vr(XF+2*d,2)}")
    for d in range(8): k(f"v_cvt_pk_bf16_f32 v{XR+d}, v{AC+2*d}, v{AC+2*d+1}")
    for d in range(8): k(f"v_lshlrev_b32 v{AC+2*d}, 16, v{XR+d}\nv_and_b32 v{AC+2*d+1}, 0xffff0000, v{XR+d}")
    def rowsum(r, off, mid=None):
        k(f"s_nop 1\nv_add_f32 v{r}, v{r}, v{r} row_ror:8")
        for sw in ("v_permlane16_swap_b32", "v_permlane32_swap_b32"):
            k(f"v_mov_b32 v{r+1}, v{r}\ns_nop 1\n{sw} v{r+1}, v{r}\ns_nop 1\nv_add_f32 v{r}, v{r}, v{r+1}")
        k(f"ds_write_b32 v{VB8}, v{r} offset:{off}")
        if mid: mid()
        k("s_waitcnt lgkmcnt(0)\ns_barrier")
        k(f"ds_read_b128 {vr(r,4)}, v{VB7} offset:{off}\ns_waitcnt lgkmcnt(0)")
        k(f"v_pk_add_f32 {vr(r,2)}, {vr(r,2)}, {vr(r+2,2)}\nv_add_f32 v{r}, v{r}, v{r+1}")
    def x1st():
        for pc in range(2): k(f"buffer_store_dwordx4 {vr(XR+pc*4,4)}, v{VB4}, {sr(S_E,4)}, s{S_T0+pc} offen sc1")
    for i in range(4): k(f"v_pk_add_f32 {vr(T+2*i,2)}, {vr(AC+2*i,2)}, {vr(AC+8+2*i,2)}")
    for i in range(2): k(f"v_pk_add_f32 {vr(T+2*i,2)}, {vr(T+2*i,2)}, {vr(T+4+2*i,2)}")
    k(f"v_pk_add_f32 {vr(T,2)}, {vr(T,2)}, {vr(T+2,2)}\nv_add_f32 v{T}, v{T}, v{T+1}")
    rowsum(T, 0, x1st)
    k(f"v_mul_f32 v14, {hexf(-1/512)}, v{T}")
    for i in range(8): k(f"v_pk_add_f32 {vr(AC+2*i,2)}, {vr(AC+2*i,2)}, v[14:15] op_sel_hi:[1,0]")
    for i in range(2): k(f"v_pk_mul_f32 {vr(T+2*i,2)}, {vr(AC+2*i,2)}, {vr(AC+2*i,2)}")
    for i in range(2, 8): k(f"v_pk_fma_f32 {vr(T+2*(i&1),2)}, {vr(AC+2*i,2)}, {vr(AC+2*i,2)}, {vr(T+2*(i&1),2)}")
    k(f"v_pk_add_f32 {vr(T,2)}, {vr(T,2)}, {vr(T+2,2)}\nv_add_f32 v{T}, v{T}, v{T+1}")
    def mid2():
        for i in range(8): k(f"v_pk_mul_f32 {vr(AC+2*i,2)}, {vr(AC+2*i,2)}, {vr(PA+32+2*i,2)}")
    rowsum(T, 128, mid2)
    k(f"v_mov_b32 v14, {hexf(1e-5)}\nv_fmac_f32 v14, {hexf(1/512)}, v{T}\nv_rsq_f32 v14, v14\ns_nop 0")
    for pc in range(2):
        for i in range(4*pc, 4*pc+4): k(f"v_pk_fma_f32 {vr(AC+2*i,2)}, {vr(AC+2*i,2)}, v[14:15], {vr(PA+16+2*i,2)} op_sel_hi:[1,0,1]")
        for d in range(4*pc, 4*pc+4): k(f"v_cvt_pk_bf16_f32 v{PR+d}, v{AC+2*d}, v{AC+2*d+1}")
        k(f"buffer_store_dwordx4 {vr(PR+4*pc,4)}, v{VB4}, {sr(S_D,4)}, s{S_T0+pc} offen sc1")
    k.stamp(3)
    CA = lambda m, t, tb: 64 + ((t*2+m)*4+tb)*4
    CW = lambda buf, m, t: 160 + ((buf*3+t)*2+m)*4
    CB = lambda buf, tb: 208 + (buf*4+tb)*4
    V_CW, V_CB = 16, 24
    k("v_lshl_add_u32 v7, v3, 2, v5\nv_mul_u32_u24 v7, 192, v7\nv_lshl_add_u32 v7, v6, 3, v7\nv_and_b32 v12, 1, v3")
    k("v_lshrrev_b32 v13, 1, v1\nv_mul_u32_u24 v13, 3, v13")
    for t in range(3):
        k(f"v_add_u32 v14, {t}, v13\nv_xor_b32 v14, v14, v12\nv_lshl_add_u32 v{V_CW+t}, v14, 5, v7\nv_add_u32 v{V_CW+3+t}, {5*C_W}, v{V_CW+t}")
    k(f"v_and_b32 v13, 1, v1\nv_lshl_add_u32 v{V_CB}, v13, 12, v{V_L16}\nv_add_u32 v{V_CB}, {C_BB}, v{V_CB}")
    k(f"s_lshl_b32 s7, s{S_TT}, 1\ns_and_b32 s6, s{S_WAVE}, 1\ns_add_u32 s7, s7, s6\ns_mul_i32 s6, s7, {4*43*1024}\ns_mul_i32 s7, s{S_M}, 3072\ns_add_u32 s6, s6, s7\ns_add_u32 s6, s6, 0x{WS_HF:x}")
    k(f"s_add_u32 s{S_A}, s54, s6\ns_addc_u32 s{S_A+1}, s55, 0\ns_mov_b32 s{S_A+2}, {3*43*1024+3072}")
    handoff_signal(k, 1)
    k.stamp(4)
    k(f"s_cmp_eq_u32 s{S_M}, 15\ns_cbranch_scc1 kt_c_done")
    k.lg = []
    def c_reads(j):
        sl = j % C_NW; bank = sl // 5; off = (sl % 5)*C_W
        b = [L(f"ds_read_b128 {vr(CB(j&1,tb),4)}, v{V_CB} offset:{(j % C_NB)*C_B + tb*1024}", f"R{j}_0") for tb in range(4)]
        w = [L(f"ds_read_b64_tr_b16 {vr(CW(j&1,m,t)+2*h,2)}, v{V_CW+3*bank+t} offset:{off + m*6144 + h*3072}", f"R{j}_{t}")
             for t in range(3) for m in range(2) for h in range(2)]
        return b + w
    k("s_barrier")
    k.run(c_reads(0))
    for j in range(C_NK):
        mf = []
        for t in range(3):
            for m in range(2):
                for tb_ in range(4):
                    tb = tb_ if m == 0 else 3 - tb_
                    d = vr(CA(m, t, tb), 4)
                    mf.append(f"{MF} {d}, {vr(CW(j&1,m,t),4)}, {vr(CB(j&1,tb),4)}, {d if j else '0'}")
        lds = c_reads(j+1) if j < C_NK-1 else []
        gaps = fill(24, lds, [], [], g0=1)
        if j == 0:
            add(gaps, -1, W(lg=f"R{j}_0")); front(gaps, 6, W(lg=f"R{j}_2"))
        else:
            add(gaps, -1, W(lg=f"R{j}_2"))
        if j < C_NK-1: front(gaps, 0, "s_barrier")
        emit(k, mf, gaps)
    k(f"s_nop 6\ns_lshr_b32 s6, s{S_WAVE}, 1\ns_cmp_eq_u32 s6, 0\ns_cbranch_scc0 kt_fh1")
    def prod(t, tb, o):
        a = CA(0, t, tb); b = CA(1, t, tb)
        for i in range(0, 4, 2): k(f"v_pk_mul_f32 {vr(a+i,2)}, {vr(a+i,2)}, {vr(b+i,2)}")
        k(f"v_cvt_pk_bf16_f32 v{o}, v{a}, v{a+1}\nv_cvt_pk_bf16_f32 v{o+1}, v{a+2}, v{a+3}")
    for fh in range(2):
        if fh: k("kt_fh1:")
        odd = 2 if fh == 0 else 0; t0 = 0 if fh == 0 else 1; unit = 0 if fh == 0 else 2
        keep = (0, 1) if fh == 0 else (2, 3); send = (2, 3) if fh == 0 else (0, 1)
        k(f"v_and_b32 v13, 1, v1\nv_lshl_add_u32 v12, v13, 11, v{V_L16}\nv_add_u32 v12, {TOP}, v12")
        for i, tb in enumerate(send): prod(odd, tb, 48 + 2*i)
        k(f"ds_write_b128 v12, v[48:51] offset:{fh*1024}")
        for i, tb in enumerate(keep): prod(odd, tb, 52 + 4*i + 2*fh)
        for tb in range(4): k(f"s_mov_b32 s{S_T0+tb}, {tb*43*1024}")
        skip = f"kt_skip{fh}"
        if fh: k(f"s_cmp_eq_u32 s{S_M}, 14\ns_cbranch_scc1 {skip}")
        for tb in range(4):
            o = 32 + tb*4
            prod(t0, tb, o); prod(t0+1, tb, o+2)
            k(f"buffer_store_dwordx4 {vr(o,4)}, v{V_L16}, {sr(S_A,4)}, s{S_T0+tb} offen offset:{unit*1024} sc1")
        if fh: k(f"{skip}:")
        k("s_waitcnt lgkmcnt(0)\ns_barrier")
        k(f"s_cmp_eq_u32 s{S_M}, 14\ns_cbranch_scc1 kt_c_done")
        for i in range(2): k(f"ds_read_b64 {vr(52 + 4*i + 2*(1-fh),2)}, v12 offset:{(1-fh)*1024 + 8*i}")
        k("s_waitcnt lgkmcnt(0)")
        for i, tb in enumerate(keep):
            k(f"buffer_store_dwordx4 {vr(52+4*i,4)}, v{V_L16}, {sr(S_A,4)}, s{S_T0+tb} offen offset:1024 sc1")
        if not fh: k("s_branch kt_c_done")
    k("kt_c_done:")
    k.stamp(5)
    DA = lambda t, tb: 64 + (t*2+tb)*4
    DW = lambda buf, i, t: 80 + ((buf*2+i)*2+t)*4
    DB = lambda buf, i, tb: 112 + ((buf*2+i)*2+tb)*4
    V_DWA, V_DBA = 16, 18
    k("v_lshl_add_u32 v7, v3, 2, v5\nv_lshlrev_b32 v7, 7, v7\nv_lshl_add_u32 v7, v6, 4, v7")
    k(f"v_lshrrev_b32 v14, 1, v5\nv_lshrrev_b32 v11, 1, v1\nv_xor_b32 v14, v14, v11\nv_lshl_add_u32 v{V_DWA}, v14, 6, v7\nv_add_u32 v{V_DWA+1}, 0x10000, v{V_DWA}")
    k(f"v_and_b32 v14, 1, v1\nv_lshl_add_u32 v{V_DBA}, v14, 11, v{V_L16}\nv_add_u32 v{V_DBA}, {D_BB}, v{V_DBA}")
    k("v_lshlrev_b32 v20, 10, v4\nv_lshl_add_u32 v20, v3, 4, v20\nv_lshl_add_u32 v20, v14, 15, v20\nv_lshl_add_u32 v20, v11, 6, v20")
    k("v_and_b32 v21, 1, v3\nv_lshlrev_b32 v21, 9, v21\nv_lshl_add_u32 v21, v4, 4, v21\nv_lshrrev_b32 v22, 1, v3\nv_lshl_add_u32 v21, v22, 3, v21")
    k("v_lshl_add_u32 v21, v11, 10, v21\nv_lshl_add_u32 v21, v14, 15, v21")
    k(f"s_lshl_b32 s6, s{S_TT}, 1\ns_lshr_b32 s7, s{S_M}, 3\ns_add_u32 s6, s6, s7\ns_lshl_b32 s6, s6, 16\ns_and_b32 s33, s{S_M}, 7\ns_lshl_b32 s7, s33, 7\ns_add_u32 s7, s6, s7")
    k(f"s_add_u32 s{S_B}, s58, s7\ns_addc_u32 s{S_B+1}, s59, 0\ns_sub_u32 s{S_B+2}, {2048*1024}, s7")
    k(f"s_lshl_b32 s33, s33, 11\ns_add_u32 s33, s33, s6\ns_add_u32 s34, s33, 16384\ns_mov_b32 s35, 16384")
    for tb in range(2):
        for h in range(2):
            k(f"buffer_load_dwordx2 {vr(144+4*tb+2*h,2)}, v21, {sr(S_E,4)}, s{33+tb} offen offset:{256*h} sc1")
    handoff_signal(k, 2)
    k.stamp(6)
    k.lg = []
    for d in range(8): k(f"v_lshlrev_b32 v{48+2*d}, 16, v{144+d}\nv_and_b32 v{49+2*d}, 0xffff0000, v{144+d}")
    def d_reads(g):
        base = (g % D_NW)*D_W; bank = base >> 16; off = base & 0xffff
        r = []
        for i in range(2):
            if 2*g + i >= D_NK: break
            r += [L(f"ds_read_b128 {vr(DB(g&1,i,tb),4)}, v{V_DBA} offset:{(g % D_NB)*D_B + i*4096 + tb*1024}", f"R{g}") for tb in range(2)]
            r += [L(f"ds_read_b64_tr_b16 {vr(DW(g&1,i,t)+2*h,2)}, v{V_DWA+bank} offset:{off + i*4096 + h*2048 + 8*t}", f"R{g}") for t in range(2) for h in range(2)]
        return r
    k("s_barrier")
    k.run(d_reads(0))
    for g in range(D_NS):
        mf = []
        ii = [i for i in range(2) if 2*g + i < D_NK]
        for t in range(2):
            for tb in range(2):
                for i in ii:
                    d = vr(DA(t, tb), 4)
                    mf.append(f"{MF} {d}, {vr(DW(g&1,i,t),4)}, {vr(DB(g&1,i,tb),4)}, {d if (g or i) else '0'}")
        if g < D_NS-1:
            k("s_barrier")
            rd = d_reads(g+1)
            k.run(rd[:2])
            gaps = fill(8, rd[2:], [], [], g0=0, pair_lds=True)
        else: gaps = {}
        k.wait(lg=f"R{g}")
        emit(k, mf, gaps)
    k("s_nop 7")
    for tb in range(2):
        for t in range(2):
            for i in range(0, 4, 2):
                k(f"v_pk_fma_f32 {vr(48+8*tb+4*t+i,2)}, {vr(DA(t,tb)+i,2)}, {vr(GB+4*t+i,2)}, {vr(48+8*tb+4*t+i,2)}")
        for d in range(4): k(f"v_cvt_pk_bf16_f32 v{24+4*tb+d}, v{48+8*tb+2*d}, v{49+8*tb+2*d}")
        k(f"buffer_store_dwordx4 {vr(24+4*tb,4)}, v20, {sr(S_B,4)}, {'s35' if tb else '0'} offen {OPT.st5}")
    k.dbg_mark(5, 100, 101, True); k.dbg_mark(6, 102, 103)
    if prof:
        k("s_waitcnt vmcnt(0)"); k.stamp(7); k.dump_stamps(8, 54, 100)
    k(f"{end}:\ns_endpgm")
    return k
```

```python
import math, struct

NAME = "adaLN_cond__gqa_block_cached__glu_gated_bilinear__prompt"

KA_X, KA_K, KA_V, KA_WQ, KA_WO, KA_BX, KA_WG, KA_WU, KA_WD, KA_C, KA_WM, KA_OUT, KA_DBG, KA_WS = [8*i for i in range(14)]

WS_MOD  = 0x0
WS_MODP = 0x4000
WS_FLAG = 0x700000
WS_XH   = 0x10000
WS_H2   = 0x210000
WS_X1   = 0x410000
WS_OF   = 0x800000
WS_PART = 0x1800000
WS_HF   = 0x2800000
WS_DBG  = 0x4000000

def f2u(x):
    return struct.unpack("<I", struct.pack("<f", x))[0]

def hexf(x):
    return "0x%08x" % f2u(x)

def vr(b, n=1):
    return f"v{b}" if n == 1 else f"v[{b}:{b+n-1}]"
def ar(b, n=1):
    return f"a{b}" if n == 1 else f"a[{b}:{b+n-1}]"
def sr(b, n=1):
    return f"s{b}" if n == 1 else f"s[{b}:{b+n-1}]"

class Kern:
    def __init__(self, name, grid, block, lds, vgpr, accum, sgpr=96):
        self.name = name; self.grid = grid; self.block = block; self.lds = lds
        self.vgpr = vgpr; self.accum = accum; self.sgpr = sgpr
        self.L = []
        self.vm = []
        self.lg = []
        self.nlab = 0
    def __call__(self, s):
        for ln in s.split("\n"):
            ln = ln.strip()
            if ln: self.L.append("    " + ln if not ln.endswith(":") else ln)
    def label(self, base):
        self.nlab += 1
        return f"{self.name}_{base}_{self.nlab}"
    def c(self, s):
        self.L.append("    ; " + s)
    def vmop(self, s, tag):
        self(s); self.vm.append(tag)
        assert len(self.vm) <= 63, "too many outstanding vmem ops"
    def vm_count_for(self, tag):
        idx = [i for i, t in enumerate(self.vm) if t == tag]
        if not idx: return None
        return len(self.vm) - 1 - idx[-1]
    def vmwait(self, tag, extra=""):
        n = self.vm_count_for(tag)
        if n is None:
            if extra: self(f"s_waitcnt {extra}")
            return
        self(f"s_waitcnt vmcnt({n}) {extra}")
        self.vm = self.vm[len(self.vm) - n:] if n else []
    def lgop(self, s, tag):
        self(s); self.lg.append(tag)
    def wait(self, vm=None, lg=None, barrier=False):
        parts = []
        if vm is not None:
            n = self.vm_count_for(vm)
            if n is not None:
                parts.append(f"vmcnt({n})"); self.vm = self.vm[len(self.vm) - n:] if n else []
        if lg is not None:
            if lg == 'all': n = 0 if self.lg else None
            else:
                idx = [i for i, t in enumerate(self.lg) if t == lg]
                n = len(self.lg) - 1 - idx[-1] if idx else None
            if n is not None:
                n = min(n, 15)
                parts.append(f"lgkmcnt({n})"); self.lg = self.lg[len(self.lg) - n:] if n else []
        if parts: self("s_waitcnt " + " ".join(parts))
        if barrier: self("s_barrier")
    def run(self, items):
        for f in items:
            if isinstance(f, (list, tuple)): self.run(f)
            else: f(self) if callable(f) else self(f)
    def dbg_begin(self, kidx):
        if not OPT.dbg: return
        self.sgpr = 102
        self(f"s_load_dwordx2 s[92:93], s[0:1], {KA_DBG}\ns_memrealtime s[96:97]\ns_waitcnt lgkmcnt(0)")
        self(f"s_sub_u32 s92, s92, {kidx*512}\ns_subb_u32 s93, s93, 0\ns_mov_b32 s94, 1280\ns_mov_b32 s95, 0x20000")
    def dbg_mark(self, slot, va, vb, start=False):
        if not OPT.dbg: return
        if not start: self("s_memrealtime s[96:97]\ns_waitcnt lgkmcnt(0)")
        else: self("s_not_b32 s96, s96")
        self(f"v_mov_b32 v{va}, s96\nv_mov_b32 v{vb}, {slot*4}\ns_mov_b64 exec, 1")
        for o in (0, 512, 1024): self(f"buffer_atomic_umax v{va}, v{vb}, s[92:95], 0 offen offset:{o}")
        self("s_mov_b64 exec, -1")
    def stamp(self, idx):
        if not getattr(self, 'prof', False): return
        self(f"s_memtime s[{64+4*idx}:{65+4*idx}]\ns_memrealtime s[{66+4*idx}:{67+4*idx}]")
    def dump_stamps(self, n, wsreg, vt):
        if not getattr(self, 'prof', False): return
        self("s_waitcnt lgkmcnt(0)")
        self(f"s_add_u32 s60, s{wsreg}, 0x{WS_DBG + int(self.name[1])*0x10000:x}\ns_addc_u32 s61, s{wsreg+1}, 0\ns_mov_b32 s62, 0x100000\ns_mov_b32 s63, 0x20000")
        self(f"v_lshrrev_b32 v{vt}, 6, v0\nv_lshl_add_u32 v{vt}, s2, 2, v{vt}\nv_lshlrev_b32 v{vt}, 6, v{vt}")
        for i in range(n):
            self(f"v_mov_b32 v{vt+2}, s{64+4*i}\nv_mov_b32 v{vt+3}, s{66+4*i}")
            self(f"buffer_store_dwordx2 v[{vt+2}:{vt+3}], v{vt}, s[60:63], 0 offen offset:{8*i}\ns_nop 1")
    def code_pf(self, start, end, vt, st, idx_sgpr):
        lab = self.label("pc")
        self(f"s_getpc_b64 s[{st}:{st+1}]")
        self(f"{lab}:")
        self(f"s_add_u32 s{st}, s{st}, {start}-{lab}\ns_addc_u32 s{st+1}, s{st+1}, 0")
        self(f"v_and_b32 v{vt}, 63, v0\nv_lshlrev_b32 v{vt}, 7, v{vt}\ns_lshl_b32 s{st+2}, s{idx_sgpr}, 13\nv_add_u32 v{vt}, s{st+2}, v{vt}")
        self(f"v_min_u32 v{vt}, {end}-{start}-4, v{vt}")
        self(f"global_load_dword v{vt+1}, v{vt}, s[{st}:{st+1}]")
    def srd(self, d, base, nbytes, off=0):
        if off:
            self(f"s_add_u32 s{d}, s{base}, 0x{off:x}")
            self(f"s_addc_u32 s{d+1}, s{base+1}, 0")
        else:
            self(f"s_mov_b32 s{d}, s{base}")
            self(f"s_mov_b32 s{d+1}, s{base+1}")
        self(f"s_mov_b32 s{d+2}, 0x{nbytes:x}")
        self(f"s_mov_b32 s{d+3}, 0x20000")
    def text(self):
        return f".globl {self.name}\n.p2align 8\n.type {self.name},@function\n{self.name}:\n" + "\n".join(self.L) + "\n"
    def desc(self):
        return f""".p2align 6
.amdhsa_kernel {self.name}
  .amdhsa_next_free_vgpr {self.vgpr}
  .amdhsa_next_free_sgpr {self.sgpr}
  .amdhsa_accum_offset {self.accum}
  .amdhsa_group_segment_fixed_size 0
  .amdhsa_kernarg_size 112
  .amdhsa_user_sgpr_count 2
  .amdhsa_user_sgpr_kernarg_segment_ptr 1
  .amdhsa_system_sgpr_workgroup_id_x 1
  .amdhsa_float_denorm_mode_32 3
  .amdhsa_float_denorm_mode_16_64 3
.end_amdhsa_kernel
"""
    def launch(self):
        return f"; @launch kernel={self.name} grid=({self.grid},1,1) block=({self.block},1,1) lds={self.lds}\n"

HEADER = """; adaLN-conditioned block: LN+modulate -> Q proj -> attention over cached K/V -> O proj -> LN+modulate -> bilinear GLU
"""
def assemble(kerns):
    s = HEADER + "".join(k.launch() for k in kerns)
    s += '.amdgcn_target "amdgcn-amd-amdhsa--gfx950"\n.text\n'
    seen = []
    for k in kerns:
        if k.name in seen: continue
        seen.append(k.name); s += k.text()
    s += "code_end_marker:\n    s_endpgm\n"
    s += '.section .rodata,"a"\n'
    seen = []
    for k in kerns:
        if k.name in seen: continue
        seen.append(k.name); s += k.desc()
    return s

class Opt:
    st0 = ""; st1 = ""; st2 = "sc1"; st3 = "sc1"; st4 = "sc1"; st5 = "sc1"
    map4 = 1; d2 = 6; pf2 = 0; pf3 = 0; ramp4 = 1; la5 = 4; map5 = 0; fdr = 2; fdl = 4; fdq = 0; cx = 0; ff = 1; fce = 6; fc1 = 3; fc2 = 0; fc3 = 3; fb0 = 4; fvm = 9; fde = 5; fd1 = 2; fdb0 = 3; fxp = 14; fmp = 12; fdl2 = 0; fdl3 = 0; fts = ""; cpre4 = "0333"; amrg = 1; dearly = 8; slow0 = 0; cmrg = 1; modk1 = 1; xlate = 2; xp = 13; x1late = 0; a0n = 3; mrg = 1; ln1 = 1; kts = "a,y0,s1,y1,s2,y2"; k0t = 1; ax = 0; amix = 1; anob = 0; cpre5 = "03012"; fa = 1; na0 = 8; na1 = 0; na2 = 3; xpf = 3; anr = 18; nb0 = 4; nbs = 4; wlead = 0; cpf2 = 1; nsc1 = 4; e64 = ""; a64 = ""; barfree = 0; pad = 0; dbg = 0; achain = 1; opf = ""; wpf = ""; bk = 14; vsp = 6; v0 = 12; idle = 0; slowa = 0; slown = 32; ont = ""; fused = 1; cnw = 9; cnb = 4; dnw = 12; dnb = 6; cpre = "030303"; dpre = 8; psleep = 0; pdelay = 8; rep = 16; dmid = 2; fst = "sc1"; fld = "sc1"; serp = 1; prio = 0; lprio = 0; o3 = "xa0123bc"; wqpf = 1; wqnt = "nt"; qko = 4; pvo = 2; xnt = "nt"; cpf = 1; kvnt = "nt"
OPT = Opt()
```

```python
from common import *
from sched import fill, L, V, W, front, emit, It, merge
from k0 import mod_loads, mod_finish, C1

MF = "v_mfma_f32_16x16x32_bf16"

SLOT = 16384
KB = 0
VB = 65536
PARB = 9*SLOT
FLAGB = PARB + 4096
WSLOT = [1, 4, 2, 5, 3, 6, 7, 8]

def O(db, qb): return (db*4+qb)*4
def LA(qb): return 128 + qb*4
def KF(i): return 144 + i*4
def VF(i): return 176 + i*4
ONES = 240
def Q(qb, s): return 128 + (qb*4+s)*4
def S(buf, kb, qb): return 64 + buf*32 + (kb*4+qb)*4
def P(buf, qb): return (32 + buf*16 if buf < 2 else 208 + (buf-2)*16) + qb*4
def MN(qb): return 192 + qb*4
V_KA = 8
V_VA = 12
V_DK = 20
V_DV = 24
V_L16 = 26
V_LS = 28
V_PF = 2
V_T = 208
def XR(slot, qb): return 128 + ((slot%4)*4+qb)*4
def QA(t, qb): return vr(192 + (qb*8+t)*4, 4) if qb < 2 else ar(((qb-2)*8+t)*4, 4)
def HK(b): return (lambda i: 64 + b*32 + i*4)
def HF(buf, qb): return 32 + (buf*4+qb)*4
def PAR(buf): return 64 + buf*16
V_PT = 96
V_WA = 112
V_DW = 124
V_PA = 125
def WF(buf, t): return 128 + (buf*8+t)*4
S_K, S_V, S_W, S_X, S_M, S_O = 8, 12, 16, 20, 24, 28
S_W4 = 32
S_KOFF, S_VOFF = 33, 34
S_CNT = 35
S_T0 = 36
S_RERUN = 44
S_WAVE = 45
S_W1 = 62

def emit_phase(k, mf, gaps):
    for f in gaps.get(-1, []): f(k) if callable(f) else k(f)
    for i, m in enumerate(mf):
        k(m)
        for f in gaps.get(i, []): f(k) if callable(f) else k(f)
    for g in gaps:
        assert g < len(mf), (g, len(mf))

def add(gaps, g, *items):
    gaps.setdefault(g, []).extend(items)

def qk_mfmas(buf, kf=KF, czero=False):
    r = []
    order = {0: [(kb,s,qb) for kb in range(2) for s in range(4) for qb in range(4)],
             1: [(kb,s,qb) for kb in range(2) for qb in range(4) for s in range(4)],
             2: [(kb,s,qb) for qb in range(4) for s in range(4) for kb in range(2)],
             4: [(kb,s if qb%2==0 else 3-s,qb) for kb in range(2) for qb in range(4) for s in range(4)],
             5: [(kb,s if kb%2==0 else 3-s,qb) for qb in range(4) for kb in range(2) for s in range(4)],
             3: [(kb,s,qb if s%2==0 else 3-qb) for kb in range(2) for s in range(4) for qb in range(4)]}[OPT.qko]
    seen = set()
    for kb, s, qb in order:
            if True:
                d = vr(S(buf, kb, qb), 4)
                started = (kb, qb) in seen; seen.add((kb, qb))
                c = d if started else ("0" if czero else vr(MN(qb), 4))
                r.append(f"{MF} {d}, {ar(kf(kb*4+s),4)}, {vr(Q(qb,s),4)}, {c}")
    return r

def pv_mfmas(buf, sumq, vf=VF, czero=False):
    r = []
    for qb in sumq:
        d = ar(LA(qb), 4)
        r.append(f"{MF} {d}, {ar(ONES,4)}, {vr(P(buf,qb),4)}, {'0' if czero else d}")
    order = {0: [(db,qb) for db in range(8) for qb in range(4)],
             1: [(db,qb) for qb in range(4) for db in range(8)],
             3: [(db if qb%2==0 else 7-db,qb) for qb in range(4) for db in range(8)],
             2: [(db,qb if db%2==0 else 3-qb) for db in range(8) for qb in range(4)]}[OPT.pvo]
    for db, qb in order:
        if True:
            d = ar(O(db, qb), 4)
            r.append(f"{MF} {d}, {ar(vf(db),4)}, {vr(P(buf,qb),4)}, {'0' if czero else d}")
    return r

def exps(buf, qbs):
    r = []
    for qb in qbs:
        for kb in range(2):
            for i in range(4):
                x = S(buf, kb, qb) + i
                r.append(f"v_exp_f32{OPT.e64} v{x}, v{x}")
    return r
def cvts(buf, qbs, pb=None):
    pb = buf if pb is None else pb
    r = []
    for qb in qbs:
        for kb in range(2):
            for h in range(2):
                x = S(buf, kb, qb) + 2*h
                r.append(f"v_cvt_pk_bf16_f32 v{P(pb,qb)+kb*2+h}, v{x}, v{x+1}")
    return r
def adds(buf, qbs, addq):
    r = []
    for qb in qbs:
        for kb in range(2):
            for i in range(4):
                x = S(buf, kb, qb) + i
                r.append(f"v_add_f32{OPT.a64} v{V_LS+qb}, v{x}, v{V_LS+qb}" if qb in addq else None)
    return r
def kreads(slot, blk, kf=KF):
    r = []
    for kb in range(2):
        for s in range(4):
            r.append(f"ds_read_b128 {ar(kf(kb*4+s),4)}, v{V_KA+s} offset:{KB+slot*SLOT+blk*8192+kb*4096}")
    return r
def vreads(slot, blk, vf=VF):
    r = []
    for db in range(8):
        for h in range(2):
            r.append(f"ds_read_b64_tr_b16 {ar(vf(db)+2*h,2)}, v{V_VA+db} offset:{slot*SLOT+blk*8192+h*4096}")
    return r
def dma_k(p): return f"buffer_load_dwordx4 v{V_DK+p}, {sr(S_K,4)}, s{S_KOFF} offen offset:{p*1024} {OPT.kvnt} lds"
def dma_v(p): return f"buffer_load_dwordx4 v{V_DV+(p&1)}, {sr(S_V,4)}, s{S_VOFF} offen offset:{p*1024} {OPT.kvnt} lds"

class Cfg:
    la = 4
    npk = 5
    ne1 = 33
    nv1 = 11
    v19 = 1
    wb = 0
    pfo = 2
    pfc = (5, 1, 1)
    ppf = 0
    wocnt = 1
    bar2 = 0
    kvspread = 1
    w1pf = 0
    fine = 0
    kvper = 7
    x = 0
    pf = 2
    sumq = [1, 3]
    def addq(self): return [q for q in range(4) if q not in self.sumq]

def pv2_mfmas(pb, sumq, czero=False, order=None):
    r = []
    n = 0
    def pair(d, a0, a1, qb):
        nonlocal n
        js = (0, 1) if n % 2 == 0 else (1, 0); n += 1
        for i, j in enumerate(js):
            r.append(f"{MF} {d}, {ar(a1 if j else a0,4)}, {vr(P(pb+j,qb),4)}, {'0' if (czero and i == 0) else d}")
    for qb in sumq: pair(ar(LA(qb), 4), ONES, ONES, qb)
    for db in range(8):
        for q in range(4):
            qb = q if db % 2 == 0 else 3 - q
            pair(ar(O(db, qb), 4), VF(db), VF(8+db), qb)
    return r

def sm_stream(cfg, u):
    qs = range(4)
    E = exps(u & 1, qs); C = cvts(u & 1, qs, u & 3); A = adds(u & 1, qs, cfg.addq())
    r = []
    for i, e in enumerate(E):
        f = [A[i]] if A[i] else []
        if i % 2 == 1: f.append(C[i//2])
        r.append((e, f))
    return r

def vreads2(slot):
    r = []
    for db in range(8):
        for blk in range(2):
            for h in range(2):
                r.append((db, L(f"ds_read_b64_tr_b16 {ar(VF(8*blk+db)+2*h,2)}, v{V_VA+db} offset:{slot*SLOT+blk*8192+h*4096}", "V")))
    return r

def pack(k, mf, fixed, stream, lds, vm, deadlines=(), keep=False):
    n = len(mf)
    stream = list(stream); lds = list(lds); vm = list(vm)
    ready = []
    k.run(fixed.get(-1, []))
    ne = len(stream); ie = 0
    lastvm = -9; vm0 = list(vm)
    for g in range(n):
        k(mf[g]); k.run(fixed.get(g, []))
        left = 2
        if OPT.barfree and any(isinstance(x, str) and "s_barrier" in x for x in fixed.get(g, [])): left = 2 - OPT.barfree
        want_e = ie < ne and g < n-1 and (g % 2 == 0 or (ne - ie) > (n - g)//2)
        if g % 2 == 1 or not want_e:
            if vm and vm[0][0] <= g and g - lastvm >= (OPT.vsp if len(vm0) <= 8 else 4) and not (lds and lds[0][0] <= g and lds[0][2:] == ('urgent',)):
                k.run(vm.pop(0)[1]); left -= 2; lastvm = g
            else:
                c = [x for x in lds if x[0] <= g]
                c.sort(key=lambda x: 0 if len(x) > 2 else 1)
                if c:
                    lds.remove(c[0]); k.run([c[0][1]]); left -= 1
                    rem = len([y for y in range(g+1, n) if y % 2 == 1]) - 3
                    if len(c) > 1 and len(lds) + len(vm) > rem:
                        lds.remove(c[1]); k.run([c[1][1]]); left -= 1
        if want_e:
            e, f = stream[ie]; k(e); left -= 2
            ready += [(g, ie, x) for x in f]; ie += 1
        must = [x for x in ready if any(x[1] < idx and g + 1 >= dl for idx, dl in deadlines)]
        while ready and ready[0][0] < g and (left > 0 or ready[0] in must or len(ready) > OPT.bk or g == n-1):
            k(ready.pop(0)[2]); left -= 1
    assert ie == ne and not vm and not ready and (keep or not lds), (ie, ne, len(lds), len(vm), ready)
    return lds

R1 = 16

def iteration(k, cfg, t4, part="all", czero=False, pf=(), post=(), label=None):
    ks = t4; vs = (t4 - 1) % 4; u = 2*t4
    k.c(f"---- iteration T%4={t4} {part} ----")
    ns = 2*len(cfg.sumq)
    pv = pv2_mfmas((u - 4) & 3, cfg.sumq, czero); npv = len(pv)
    st = sm_stream(cfg, u - 2)[32-R1:] + sm_stream(cfg, u - 1) + sm_stream(cfg, u)[:32-R1]
    dmas = [[f"s_add_u32 m0, s{S_W4}, {KB + ((t4+3)%4)*SLOT}\ns_nop 0" if p == 0 else "", dma_k(p)] for p in range(4)]
    dmas += [[f"s_add_u32 m0, s{S_W4}, {VB + ((t4+2)%4)*SLOT}\ns_add_u32 s{S_KOFF}, s{S_KOFF}, {SLOT}" if p == 0 else "", dma_v(p)] for p in range(4)]
    dmas[-1].append(f"s_add_u32 s{S_VOFF}, s{S_VOFF}, {SLOT}")
    ka = [L(x, "KA") for x in kreads(ks, 0)]; kb = kreads(ks, 1)
    vr_ = vreads2(vs)
    NE1 = cfg.ne1
    NV1 = cfg.nv1
    nvm = 16 if not (cfg.pf and cfg.pfo and cfg.v19) else (18 if part == "pv" else 19)
    bar = {ns-1: [f"s_waitcnt vmcnt({nvm}) lgkmcnt(0)\ns_barrier"]}
    if part == "tail":
        k.lg = []
        return pack(k, pv, bar, st[:R1+32], [(ns + 8*db + 7, x) for db, x in vr_], [], keep=True)
    if part in ("all", "pv"):
        k.lg = []
        lds = [(ns, x) for x in ka] + [(ns + 8*db + 7, x) for db, x in vr_[:NV1]]
        pack(k, pv, bar, st[:NE1], lds, [(ns + OPT.v0, d) for d in dmas])
    if label: k(f"{label}:")
    if part in ("all", "first"):
        vm = [(40, [pf[1]])] if pf else []
        fixed = {-1: [W(lg="KA")], 30: [W(lg="KB0")], 46: [W(lg="KB1")]}
        if pf: fixed[38] = [pf[0]]
        if part == "first":
            NE1 = R1; NV1 = 0; k.lg = []
            fixed[-1] = ["s_waitcnt lgkmcnt(0)"]
            vm = [(2, [kv_setup(wh, t), dma_k(p) if wh == 'K' else dma_v(p)]) for wh, t in (('V',2),('K',4),('V',3)) for p in range(4)]
            if cfg.v19:
                dummy = f"s_mov_b32 s6, 0x80000\nbuffer_load_dword v{V_PF+3}, v{V_PF}, {sr(S_O,4)}, s6 offen"
                vm[3][1].append(dummy); vm[11][1].append(dummy)
            post = [f"s_mov_b32 s{S_KOFF}, {5*SLOT}\ns_mov_b32 s{S_VOFF}, {4*SLOT}"]
        lds = [(0, x) for db, x in vr_[NV1:]] + [(15, L(x, "KB0"), 'urgent') for x in kb[:4]] + [(31, L(x, "KB1"), 'urgent') for x in kb[4:]]
        pack(k, qk_mfmas(0) + qk_mfmas(1), fixed, st[NE1:], lds, vm, deadlines=[(R1 + 32 - NE1, 40)])
    for f in post: k(f)

def kv_setup(which, tile):
    if which == 'K': return f"s_add_u32 m0, s{S_W4}, {KB + (tile%4)*SLOT}\ns_mov_b32 s{S_KOFF}, {tile*SLOT}"
    return f"s_add_u32 m0, s{S_W4}, {VB + (tile%4)*SLOT}\ns_mov_b32 s{S_VOFF}, {tile*SLOT}"
def kv_group(which, tile):
    return [[kv_setup(which, tile), V(dma_k(p) if which == 'K' else dma_v(p), f"{which}{tile}")] for p in range(4)]

def rowmax_cross(k, regs, tmp):
    for sw in ("v_permlane32_swap_b32", "v_permlane16_swap_b32"):
        for i, r in enumerate(regs): k(f"v_mov_b32 v{tmp+i}, v{r}")
        k("s_nop 1")
        for i, r in enumerate(regs): k(f"{sw} v{tmp+i}, v{r}")
        k("s_nop 1")
        for i, r in enumerate(regs): k(f"v_max_f32 v{r}, v{r}, v{tmp+i}")

def gen_k1(cfg=None, prof=False):
    cfg = cfg or Cfg()
    k = Kern("k1_attn_kernel", 256, 256, 160*1024, 512, 256, 96 if prof else 64)
    k.prof = prof
    end = "k1_end"
    k(f"s_cmp_ge_u32 s2, 256\ns_cbranch_scc1 {end}")
    k.stamp(0)
    k.dbg_begin(1)
    k(f"s_load_dwordx4 s[48:51], s[0:1], {KA_K}")
    k(f"s_load_dwordx2 s[52:53], s[0:1], {KA_WQ}")
    k(f"s_load_dwordx2 s[54:55], s[0:1], {KA_WS}")
    k(f"s_load_dwordx2 s[46:47], s[0:1], {KA_WO}")
    k(f"s_load_dwordx4 s[56:59], s[0:1], {KA_WG}")
    k(f"s_load_dwordx2 s[60:61], s[0:1], {KA_WD}")

    k("v_lshrrev_b32 v1, 6, v0")
    k("v_and_b32 v2, 63, v0")
    k(f"v_readfirstlane_b32 s{S_WAVE}, v1")
    m = OPT.map4
    k(f"s_and_b32 s4, s2, {(8>>m)-1}\ns_bfe_u32 s5, s2, {((2+m)<<16)|3}\ns_lshl_b32 s5, s5, {3-m}\ns_add_u32 s4, s4, s5")
    k(f"s_bfe_u32 s5, s2, {(m<<16)|(3-m)}\ns_lshl_b32 s5, s5, {3-m}\ns_lshr_b32 s6, s2, {5+m}\ns_add_u32 s5, s5, s6")
    k(f"s_lshl_b32 s{S_W4}, s{S_WAVE}, 12")
    k(f"s_mov_b32 s{S_RERUN}, 0")
    k("v_lshrrev_b32 v3, 4, v2")
    k("v_and_b32 v4, 15, v2")
    k("v_lshrrev_b32 v5, 2, v4")
    k("v_and_b32 v6, 3, v2")
    k(f"v_lshlrev_b32 v{V_L16}, 4, v2")
    k("v_lshlrev_b32 v7, 2, v3\nv_xor_b32 v7, v7, v4\nv_lshlrev_b32 v7, 4, v7")
    k(f"v_lshl_add_u32 v{V_DW}, v1, 2, v3\nv_lshl_add_u32 v{V_DW}, v{V_DW}, 13, v7")
    k(f"s_lshl_b32 s{S_W1}, s{S_WAVE}, 10")
    k("s_waitcnt lgkmcnt(0)")
    k("s_lshl_b32 s6, s4, 8")
    k(f"s_add_u32 s{S_W}, s52, s6\ns_addc_u32 s{S_W+1}, s53, 0\ns_sub_u32 s{S_W+2}, {512*8192}, s6\ns_mov_b32 s{S_W+3}, 0x20000")
    k.srd(S_M, 54, 4*12288, WS_MODP)
    k(f"s_lshl_b32 s6, s5, 2\ns_add_u32 s6, s6, s{S_WAVE}\ns_lshl_b32 s7, s6, 16")
    k(f"s_add_u32 s7, s7, 0x{WS_XH:x}")
    k(f"s_add_u32 s{S_X}, s54, s7\ns_addc_u32 s{S_X+1}, s55, 0\ns_mov_b32 s{S_X+2}, 0x10000\ns_mov_b32 s{S_X+3}, 0x20000")
    def w_step(j):
        r = []
        for p in range(2):
            st = S_T0 + p
            r.append([f"s_add_u32 m0, s{S_W1}, {WSLOT[j>>1]*SLOT + (j&1)*8192 + p*4096}\ns_mov_b32 s{st}, {(j*32 + p*16)*8192}",
                      lambda kk, st=st: kk.vmop(f"buffer_load_dwordx4 v{V_DW}, {sr(S_W,4)}, s{st} offen {OPT.wqnt} lds", f"W{j}")])
        return r
    def x_loads(j):
        r = []
        for qb in range(4):
            st = S_T0 + 4 + qb
            r.append([f"s_mov_b32 s{st}, {qb*16384 + (j>>2)*4096}",
                      lambda kk, qb=qb, st=st: kk.vmop(f"buffer_load_dwordx4 {vr(XR(j,qb),4)}, v{V_L16}, {sr(S_X,4)}, s{st} offen offset:{(j&3)*1024}", f"X{j}" if j else f"X0_{qb}")])
        return r
    def run(items):
        for f in items:
            if isinstance(f, list): run(f)
            else: f(k) if callable(f) else k(f)
    k("v_lshlrev_b32 v31, 4, v0")
    mod_loads(k, S_M, 31, S_T0, V_PT, 0, "M")
    LA_ = cfg.la
    run(w_step(0)); run(x_loads(0))
    k("s_lshl_b32 s6, s4, 19")
    k(f"s_add_u32 s{S_K}, s48, s6\ns_addc_u32 s{S_K+1}, s49, 0\ns_mov_b32 s{S_K+2}, 0x80000\ns_mov_b32 s{S_K+3}, 0x20000")
    k(f"s_add_u32 s{S_V}, s50, s6\ns_addc_u32 s{S_V+1}, s51, 0\ns_mov_b32 s{S_V+2}, 0x80000\ns_mov_b32 s{S_V+3}, 0x20000")
    k(f"s_lshl_b32 s6, s5, 2\ns_add_u32 s6, s6, s{S_WAVE}\ns_lshl_b32 s6, s6, 19\ns_lshl_b32 s7, s4, 12\ns_add_u32 s6, s6, s7")
    k(f"s_add_u32 s6, s6, 0x{WS_OF:x}")
    k(f"s_add_u32 s{S_O}, s54, s6\ns_addc_u32 s{S_O+1}, s55, 0\ns_mov_b32 s{S_O+2}, {3*131072+4096}\ns_mov_b32 s{S_O+3}, 0x20000")
    k("v_lshl_add_u32 v7, v3, 3, v5\nv_lshlrev_b32 v7, 8, v7\nv_lshl_add_u32 v7, v6, 4, v7")
    for s in range(4):
        k(f"v_xor_b32 v27, {s}, v5\nv_lshl_add_u32 v{V_WA+s}, v27, 6, v7")
        k(f"v_add_u32 v{V_WA+4+s}, 0x10000, v{V_WA+s}\nv_add_u32 v{V_WA+8+s}, 0x20000, v{V_WA+s}")
    k(f"v_lshlrev_b32 v{V_PA}, 5, v3\nv_add_u32 v{V_PA}, {PARB}, v{V_PA}")
    for s in range(4):
        k(f"v_or_b32 v27, {4*s}, v3\nv_xor_b32 v27, v27, v4\nv_lshlrev_b32 v27, 4, v27\nv_lshl_add_u32 v{V_KA+s}, v4, 8, v27")
    k("v_lshl_add_u32 v7, v3, 2, v5\nv_and_b32 v27, 7, v7\nv_lshlrev_b32 v7, 8, v7\nv_lshl_add_u32 v7, v6, 3, v7")
    k(f"v_add_u32 v7, {VB}, v7")
    for db in range(8):
        k(f"v_xor_b32 v30, {db}, v27\nv_lshl_add_u32 v{V_VA+db}, v30, 5, v7")
    k("v_lshlrev_b32 v7, 8, v3\nv_lshl_add_u32 v7, v1, 12, v7")
    for p in range(4):
        k(f"v_or_b32 v27, {4*p}, v3\nv_xor_b32 v27, v27, v4\nv_lshl_add_u32 v{V_DK+p}, v27, 4, v7")
    for p in range(2):
        k(f"v_or_b32 v27, {4*p}, v3\nv_lshlrev_b32 v27, 1, v27\nv_xor_b32 v27, v27, v4\nv_lshl_add_u32 v{V_DV+p}, v27, 4, v7")
    k("v_mov_b32 v27, 0x3f803f80")
    for i in range(4): k(f"v_accvgpr_write_b32 a{ONES+i}, v27")

    def wreads(j):
        c = j >> 1; base = WSLOT[c]*SLOT; bank = base >> 16; off = (base & 0xffff) + (j & 1)*8192
        return [L(f"ds_read_b64_tr_b16 {ar(WF(j&1,t)+2*h,2)}, v{V_WA+4*bank+(t>>1)} offset:{off + h*1024 + 8*(t&1)}", f"R{j}_{t}")
                for t in range(8) for h in range(2)]
    def preads(j):
        b = PAR(j & 1)
        return [L(f"ds_read_b128 {vr(b+4*i,4)}, v{V_PA} offset:{j*128 + (i&1)*16 + (i>>1)*2048}", f"P{j}") for i in range(4)]
    def hcalc(j):
        b = PAR(j & 1); r = []
        for qb in range(4):
            t = V_PT + (qb & 1)*8
            for i in range(8):
                r.append(f"v_fma_mix_f32 v{t+i}, v{XR(j,qb)+(i>>1)}, v{b+8+i}, v{b+i} op_sel:[{i&1},0,0] op_sel_hi:[1,0,0]")
            for d in range(4):
                r.append(f"v_cvt_pk_bf16_f32 v{HF(j&1,qb)+d}, v{t+2*d}, v{t+2*d+1}")
        return r
    k(f"s_cmp_ge_u32 s{S_WAVE}, 2\ns_cselect_b32 s6, 1.0, 0\nv_add_u32 v31, {PARB}, v31")
    k.vmwait("M")
    mod_finish(k, V_PT, 6, C1)
    k(f"ds_write_b128 v31, {vr(V_PT,4)}")
    run(x_loads(1)); run(w_step(1))
    k.vmwait("W0", "lgkmcnt(0)"); k("s_barrier")
    run(preads(0)); run(preads(1)); run(wreads(0))
    assert LA_ == 4
    pend = [g for j in range(2, LA_) for g in x_loads(j) + w_step(j)]
    k.wait(lg="P0")
    k.stamp(1)
    for i, v in enumerate(hcalc(0)):
        if i % 12 == 0: k.wait(vm=f"X0_{i//12}")
        if i % 6 == 0 and pend: run(pend.pop(0))
        k(v)
    kvplan = {12: kv_group('K', 0), 13: kv_group('K', 1), 14: kv_group('V', 0)}
    for j in range(15):
        k.c(f"qproj stage {j}")
        if cfg.fine and j in (0, 2, 4, 8, 12): k.stamp(2 + (0, 2, 4, 8, 12).index(j))
        mf = []
        for t in range(8):
            for q in range(4):
                qb = q if t % 2 == 0 else 3 - q
                d = QA(t, qb)
                mf.append(f"{MF} {d}, {ar(WF(j&1,t),4)}, {vr(HF(j&1,qb),4)}, {d if j else '0'}")
        lds = (preads(j+2) if j < 14 else []) + wreads(j+1)
        valu = hcalc(j+1)
        jj = j + LA_
        pend += x_loads(jj) + w_step(jj) if jj < 16 else kvplan[j]
        nvm = min(len(pend), 8)
        vm = pend[:nvm]; pend = pend[nvm:]
        gaps = fill(32, lds, valu, vm, g0=1, valu_end=31)
        add(gaps, -1, W(lg=f"R{j}_3"))
        front(gaps, 12, W(lg=f"R{j}_7"))
        if j < 2 or j % 2 == 1 or not cfg.bar2:
            tgt = j+1 if (j < 1 or not cfg.bar2) else j+2
            front(gaps, 0, W(vm=f"W{tgt}", barrier=True))
        else:
            front(gaps, 0, W(vm=f"X{j+1}"))
        emit(k, mf, gaps)
    assert not pend
    k.stamp(2) if not cfg.fine else k.stamp(7)
    PF_F, PF_W = S_X, S_W
    pfsetup = [f"s_cmp_eq_u32 s{S_WAVE}, 1\ns_cselect_b64 s[{PF_F}:{PF_F+1}], s[58:59], s[56:57]",
        f"s_cmp_eq_u32 s{S_WAVE}, 2\ns_cselect_b64 s[{PF_F}:{PF_F+1}], s[60:61], s[{PF_F}:{PF_F+1}]",
        f"s_mul_i32 s6, s2, {43*128}\ns_add_u32 s{PF_F}, s{PF_F}, s6\ns_addc_u32 s{PF_F+1}, s{PF_F+1}, 0",
        f"s_lshl_b32 s6, s4, 17\ns_and_b32 s7, s5, 3\ns_lshl_b32 s7, s7, 15",
        f"s_add_u32 s6, s6, s7\ns_lshl_b32 s7, s{S_WAVE}, 13\ns_add_u32 s6, s6, s7",
        f"s_add_u32 s{PF_W}, s46, s6\ns_addc_u32 s{PF_W+1}, s47, 0\ns_mov_b32 s{PF_W+2}, 0x2000",
        f"s_cmp_eq_u32 s{S_WAVE}, 3\ns_cselect_b32 s{PF_F+2}, 0, {43*128}"]
    V0, VD = V_PF, V_PF+3
    pfv = [f"v_lshrrev_b32 v{VD}, 8, v{V_L16}", f"v_lshlrev_b32 v{VD}, 24, v{VD}", f"v_lshl_add_u32 v{V0}, v{V_L16}, 3, v{VD}"]
    cf, cw, co = cfg.pfc
    def site(srd, c0, sh, off, fl):
        return [f"s_sub_u32 s6, s{S_CNT}, {c0}\ns_min_u32 s6, s6, 4\ns_lshl_b32 s6, s6, {sh}", f"buffer_load_dword v{VD}, v{V0}, {sr(srd,4)}, s6 offen offset:{off} {fl}"]
    pfs = [site(PF_F, cf, 11, 0, ""), site(S_O, co, 17, 0, OPT.opf), site(PF_W, cw, 11, 0, OPT.wpf), site(S_O, co, 17, 2048, OPT.opf)]
    loopinit = f"s_mov_b32 s{S_CNT}, 8"
    k.c("merged head")
    k.wait(lg='all')
    def qk_q(buf, qb, czero):
        r = []
        for kb in range(2):
            for i in range(4):
                s_ = i if kb == 0 else 3 - i
                d = vr(S(buf, kb, qb), 4)
                c = d if i else ("0" if czero else vr(MN(qb), 4))
                nd = {f"Q{qb}": 2, f"KR{buf}": 0}
                if not czero: nd[f"MN{qb}"] = 2
                r.append(It(f"{MF} {d}, {ar(HK(buf)(kb*4+s_),4)}, {vr(Q(qb,s_),4)}, {c}", needs=nd, gives=f"S{buf}_{qb}"))
        return r
    mq = []
    for qb in range(4):
        for t in range(8):
            d = QA(t, qb)
            mq.append(It(f"{MF} {d}, {ar(WF(1,t),4)}, {vr(HF(1,qb),4)}, {d}", gives=f"A{t}_{qb}"))
    mq += qk_q(0,0,True) + qk_q(0,1,True) + qk_q(0,2,True) + qk_q(1,0,False) + qk_q(1,1,False) + qk_q(0,3,True) + qk_q(1,2,False) + qk_q(1,3,False)
    def conv(qb):
        r = []
        for s_ in range(4):
            for h in range(2):
                t = 2*s_ + h; nd = {f"A{t}_{qb}": 8}
                if qb < 2: a = 192 + (qb*8+t)*4
                else:
                    a = 224 + (t & 3)*4
                    for i in range(4): r.append(It(f"v_accvgpr_read_b32 v{a+i}, a{((qb-2)*8+t)*4+i}", needs=nd))
                for d in range(2): r.append(It(f"v_cvt_pk_bf16_f32 v{Q(qb,s_)+2*h+d}, v{a+2*d}, v{a+2*d+1}", needs=nd, gives=f"Q{qb}x"))
        r[-1].gives = f"Q{qb}"
        return r
    def rmax(qs):
        r = []
        for qb in qs:
            a = S(0, 0, qb); b = S(0, 1, qb); t = V_T + qb; nd = {f"S0_{qb}e": 8}
            r += [It(f"v_max3_f32 v{t}, v{a}, v{a+1}, v{a+2}", needs=nd), It(f"v_max3_f32 v{t+4}, v{b}, v{b+1}, v{b+2}"),
                  It(f"v_max3_f32 v{t}, v{t}, v{a+3}, v{b+3}"), It(f"v_max_f32 v{t}, v{t}, v{t+4}")]
        for n_, sw in enumerate(("v_permlane32_swap_b32", "v_permlane16_swap_b32")):
            for qb in qs: r.append(It(f"v_mov_b32 v{V_T+4+qb}, v{V_T+qb}", gives=f"mv{n_}_{qb}"))
            for qb in qs: r.append(It(f"{sw} v{V_T+4+qb}, v{V_T+qb}", cost=2, needs={f"mv{n_}_{qb}": 2}, gives=f"sw{n_}_{qb}"))
            for qb in qs: r.append(It(f"v_max_f32 v{V_T+qb}, v{V_T+qb}, v{V_T+4+qb}", needs={f"sw{n_}_{qb}": 1}))
        for qb in qs:
            for i in range(4): r.append(It(f"v_sub_f32 v{MN(qb)+i}, 0, v{V_T+qb}", gives=f"MN{qb}" if i == 3 else None))
        return r
    def sm0(qs, sub=True):
        r = []
        E = exps(0, qs); C = cvts(0, qs); A = adds(0, qs, cfg.addq())
        regs = [S(0, kb, qb) + i for qb in qs for kb in range(2) for i in range(4)]
        qof = [qb for qb in qs for _ in range(8)]
        n_ = len(E)
        for i in range(n_ + 2):
            if sub and i < n_: r.append(It(f"v_add_f32 v{regs[i]}, v{regs[i]}, v{MN(qof[i])}"))
            if 1 <= i <= n_: r.append(It(E[i-1], cost=2, gives=f"e{qs[0]}_{i-1}"))
            if i >= 2:
                if A[i-2]: r.append(It(A[i-2], needs={f"e{qs[0]}_{i-2}": 1}))
                if (i-2) % 2 == 1: r.append(It(C[(i-2)//2], needs={f"e{qs[0]}_{i-2}": 1}))
        return r
    last = {}
    for it in mq:
        if isinstance(it.gives, str) and it.gives.startswith("S"): last[it.gives] = it
    for g, it in last.items(): it.gives = g + "e"
    init = [It(f"v_mov_b32 v{V_LS+q}, 0") for q in range(4)] + [It(x) for x in pfv]
    vq = init + conv(0) + conv(1) + conv(2) + rmax([0, 1]) + conv(3) + sm0([0, 1]) + rmax([2, 3]) + sm0([2, 3])
    side = [It(W(vm="K0", barrier=True), cost=0, n=2)]
    for b in range(2):
        side += [It(L(x, f"HK{b}")) for x in kreads(0, b, HK(b))]
    side += [It(x, cost=0, n=3) for x in pfsetup]
    side += [It(W(lg="HK0"), cost=0, gives="KR0", needs={"A7_2": 0}), It(W(lg="HK1"), cost=0, gives="KR1")]
    G = lambda grp, nd=None: It(lambda kk, grp=grp: kk.run(grp), cost=2, n=3, needs=nd)
    side += [G(x) for x in kv_group('K', 2)] + [G(x, {"S0_2e": 0}) for x in kv_group('V', 1)]
    side += [It(W(vm="V0", barrier=True), cost=0, n=2, needs={"S0_3e": 0})]
    side += [It(x) for x in kreads(1, 0)] + [G(x) for x in kv_group('K', 3)] + [It(loopinit, cost=0, n=4)]
    merge(k, mq, vq, side)
    k("k1_first:")
    iteration(k, cfg, 1, "first")
    iteration(k, cfg, 2, "pv", czero=True)
    k.stamp(3) if not cfg.fine else None
    k("s_branch k1_pos2")
    k(".p2align 6")
    for _ in range(OPT.pad): k("s_nop 0")
    k("k1_loop:")
    iteration(k, cfg, 0, pf=pfs[0] if cfg.pf else ())
    iteration(k, cfg, 1, pf=pfs[1] if cfg.pf else ())
    iteration(k, cfg, 2, pf=pfs[2] if cfg.pf else (), label="k1_pos2")
    iteration(k, cfg, 3, pf=pfs[3] if cfg.pfo else (), post=[f"s_sub_u32 s{S_CNT}, s{S_CNT}, 1\ns_cmp_lg_u32 s{S_CNT}, 0\ns_cbranch_scc1 k1_loop"])
    k.stamp(4) if not cfg.fine else None
    rest = iteration(k, cfg, 0, "tail")
    k.stamp(5) if not cfg.fine else None
    k.lg = ["V0"]*len(k.lg)
    k.run([x[1] for x in rest])
    nrest = len(rest); dbw = 8 - (nrest + 3)//4
    ns = 2*len(cfg.sumq)
    LT = 240
    mq = []
    for i, m in enumerate(pv2_mfmas(2, cfg.sumq)):
        db = (i - ns)//8
        it = It(m, gives="SUM" if i == ns-1 else (f"O{db}" if i >= ns and (i - ns) % 8 == 7 else None))
        if i == ns: it.needs = {"W0": 0}
        if i == ns + 8*dbw: it.needs = {"W1": 0}
        mq.append(it)
    side = [It(W(lg="V0"), cost=0, gives="W0")] + [It(f"s_mov_b32 s{S_T0+qb}, {qb*131072}", cost=0) for qb in range(4)]
    side += [It(W(lg="all"), cost=0, gives="W1", needs={f"O{dbw-2}": 0})]
    vq = []
    aq = cfg.addq()
    for n_, sw in enumerate(("v_permlane32_swap_b32", "v_permlane16_swap_b32")):
        for q in aq: vq.append(It(f"v_mov_b32 v{LT+4+q}, v{V_LS+q}", gives=f"a{n_}{q}"))
        for q in aq: vq.append(It(f"{sw} v{LT+4+q}, v{V_LS+q}", cost=2, needs={f"a{n_}{q}": 2}, gives=f"b{n_}{q}"))
        for q in aq: vq.append(It(f"v_add_f32 v{V_LS+q}, v{V_LS+q}, v{LT+4+q}", needs={f"b{n_}{q}": 1}))
    for q in cfg.sumq: vq.append(It(f"v_accvgpr_read_b32 v{V_LS+q}, a{LA(q)}", needs={"SUM": 8}))
    for q in range(4): vq.append(It(f"v_rcp_f32 v{LT+2*q}, v{V_LS+q}", cost=2))
    vq += [It(f"v_add_f32 v{LT+8}, v{V_LS}, v{V_LS+1}"), It(f"v_add_f32 v{LT+9}, v{V_LS+2}, v{V_LS+3}"), It(f"v_add_f32 v{LT+8}, v{LT+8}, v{LT+9}"),
           It(f"s_mov_b32 s6, {hexf(2.0**64)}\nv_cmp_nle_f32 vcc, v{LT+8}, s6"),
           It(f"s_lshl_b32 s7, s{S_WAVE}, 2\ns_add_u32 s7, s7, {FLAGB}\nv_mov_b32 v{LT+10}, s7"), It(f"v_mov_b32 v{LT+11}, {FLAGB}"),
           It(f"s_cmp_lg_u64 vcc, 0\ns_cselect_b32 s6, 1, 0\nv_mov_b32 v{LT+9}, s6"), It(L(f"ds_write_b32 v{LT+10}, v{LT+9}", "F"))]
    n_ = 0
    for s_ in range(4):
        for qb in range(4):
            t = 64 + (n_ & 3)*8; o = 32 + (n_ & 7)*4; n_ += 1
            for h in range(2):
                for i in range(4): vq.append(It(f"v_accvgpr_read_b32 v{t+4*h+i}, a{O(2*s_+h,qb)+i}", needs={f"O{2*s_+h}": 8}))
            if n_ <= cfg.npk:
                for i in range(8): vq.append(It(f"v_mul_f32 v{t+i}, v{t+i}, v{LT+2*qb}"))
            else:
                for i in range(4): vq.append(It(f"v_pk_mul_f32 {vr(t+2*i,2)}, {vr(t+2*i,2)}, {vr(LT+2*qb,2)} op_sel_hi:[1,0]"))
            for d in range(4): vq.append(It(f"v_cvt_pk_bf16_f32 v{o+d}, v{t+2*d}, v{t+2*d+1}"))
            vq.append(It(f"buffer_store_dwordx4 {vr(o,4)}, v{V_L16}, {sr(S_O,4)}, s{S_T0+qb} offen offset:{s_*1024} {'sc1' if n_ <= OPT.nsc1 else OPT.st1}", cost=2))
    merge(k, mq, vq, side)
    k("s_waitcnt lgkmcnt(0)\ns_barrier")
    k(f"ds_read_b128 {vr(LT+12,4)}, v{LT+11}\ns_waitcnt lgkmcnt(0)")
    k(f"v_or_b32 v{LT+12}, v{LT+12}, v{LT+13}\nv_or3_b32 v{LT+12}, v{LT+12}, v{LT+14}, v{LT+15}\ns_nop 0")
    k(f"v_readfirstlane_b32 s6, v{LT+12}")
    k(f"s_andn2_b32 s6, s6, s{S_RERUN}\ns_cmp_lg_u32 s6, 0\ns_cbranch_scc1 k1_fallback")
    k.dbg_mark(3, 100, 101, True); k.dbg_mark(4, 102, 103)
    if prof:
        k.stamp(6) if not cfg.fine else None
        k("s_waitcnt vmcnt(0)")
        k.stamp(7) if not cfg.fine else None
        k.dump_stamps(8, 54, 100)
    k(f"{end}:")
    k("s_endpgm")
    k("k1_fallback:")
    k(f"s_mov_b32 s{S_RERUN}, 1")
    k("v_and_b32 v2, 63, v0\nv_lshrrev_b32 v3, 4, v2\nv_and_b32 v4, 15, v2")
    k("v_lshlrev_b32 v5, 8, v4\nv_lshl_add_u32 v5, v3, 4, v5")
    for q in range(4): k(f"v_mov_b32 v{V_T+q}, 0xff800000")
    k("s_mov_b32 s6, 0")
    k("k1_fb_loop:")
    for s in range(4): k(f"buffer_load_dwordx4 {ar(KF(s),4)}, v5, {sr(S_K,4)}, s6 offen offset:{64*s}")
    k("s_waitcnt vmcnt(0)")
    for s in range(4):
        for qb in range(4):
            d = vr(S(0,0,qb),4)
            k(f"{MF} {d}, {ar(KF(s),4)}, {vr(Q(qb,s),4)}, {d if s else '0'}")
    k("s_nop 15")
    for qb in range(4):
        a = S(0,0,qb)
        k(f"v_max3_f32 v{V_T+qb}, v{V_T+qb}, v{a}, v{a+1}")
        k(f"v_max3_f32 v{V_T+qb}, v{V_T+qb}, v{a+2}, v{a+3}")
    k("s_add_u32 s6, s6, 4096\ns_cmp_lt_u32 s6, 0x80000\ns_cbranch_scc1 k1_fb_loop")
    rowmax_cross(k, [V_T+q for q in range(4)], V_T+4)
    for x in pfv: k(x)
    for qb in range(4):
        k(f"v_mov_b32 v{V_LS+qb}, 0")
        for i in range(4): k(f"v_sub_f32 v{MN(qb)+i}, 0, v{V_T+qb}")
    k("s_barrier")
    k.vm = []; k.lg = []
    for wh, t in (('K',0),('K',1),('V',0),('K',2),('V',1),('K',3)): run(kv_group(wh, t))
    k.wait(vm="V0", barrier=True)
    run(kreads(0, 0, HK(0))); k("s_waitcnt lgkmcnt(0)"); run(kreads(0, 1, HK(1)))
    for m in qk_mfmas(0, HK(0)): k(m)
    k("s_waitcnt lgkmcnt(0)\ns_barrier")
    run(kreads(1, 0))
    for m in qk_mfmas(1, HK(1)): k(m)
    merge(k, [], sm0([0, 1, 2, 3], sub=False))
    k(loopinit)
    k("s_branch k1_first")
    return k
```

```python
from common import *

C1 = math.log2(math.e) / math.sqrt(128.0)

def round_bf16(k, v, tmp):
    k(f"v_cvt_pk_bf16_f32 v{tmp}, v{v}, v{v}")
    k(f"v_and_b32 v{v}, 0xffff0000, v{tmp}")

def gen_k0(prof=False):
    k = Kern("k0_prep_kernel", 256, 512, 2048 + 8192, 64, 64, 96 if prof else 48)
    k.prof = prof
    end = "k0_end"
    k(f"s_cmp_ge_u32 s2, 256\ns_cbranch_scc1 {end}")
    k.stamp(0)
    k.dbg_begin(0)
    k(f"s_load_dwordx2 s[4:5], s[0:1], {KA_X}")
    k(f"s_load_dwordx4 s[8:11], s[0:1], {KA_C}")
    k(f"s_load_dwordx2 s[6:7], s[0:1], {KA_WS}")
    k(f"s_load_dwordx2 s[28:29], s[0:1], {KA_WQ}")
    k("v_lshrrev_b32 v1, 6, v0\nv_and_b32 v2, 63, v0")
    k("v_readfirstlane_b32 s24, v1")
    k("s_cmp_ge_u32 s24, 4\ns_cbranch_scc1 k0_mod")
    k("v_lshrrev_b32 v3, 5, v0\nv_and_b32 v4, 31, v0")
    k("v_lshlrev_b32 v5, 10, v3\nv_lshl_add_u32 v5, v4, 4, v5\ns_lshl_b32 s3, s2, 13")
    k("v_lshlrev_b32 v6, 8, v4\nv_lshl_add_u32 v6, v3, 4, v6")
    k("s_lshr_b32 s25, s2, 1\ns_lshl_b32 s25, s25, 14\ns_and_b32 s26, s2, 1\ns_lshl_b32 s26, s26, 7\ns_add_u32 s25, s25, s26\ns_add_u32 s26, s25, 8192")
    k("s_waitcnt lgkmcnt(0)")
    k.srd(12, 4, 2048*512*2)
    for j in range(2):
        k(f"buffer_load_dwordx4 v[{8+4*j}:{11+4*j}], v5, s[12:15], s3 offen offset:{512*j} {OPT.xnt}")
    k.srd(16, 6, 2048*512*2, WS_XH)
    k.srd(20, 6, 4*32768, WS_FLAG)
    k("v_lshlrev_b32 v40, 2, v0\nv_mov_b32 v41, 0\ns_lshl_b32 s27, s2, 10")
    k(f"buffer_store_dword v41, v40, s[20:23], s27 offen {OPT.st0}")
    E = 16; T = 32
    def rowsum(r):
        for sh in (8, 4, 2, 1):
            k(f"s_nop 1\nv_add_f32 v{r}, v{r}, v{r} row_ror:{sh}")
        k(f"v_mov_b32 v{r+1}, v{r}\ns_nop 1\nv_permlane16_swap_b32 v{r+1}, v{r}\ns_nop 1\nv_add_f32 v{r}, v{r}, v{r+1}")
    for j in range(2):
        k(f"s_waitcnt vmcnt({2-j})")
        for d in range(4):
            k(f"v_lshlrev_b32 v{E+8*j+2*d}, 16, v{8+4*j+d}\nv_and_b32 v{E+8*j+2*d+1}, 0xffff0000, v{8+4*j+d}")
    for i in range(4): k(f"v_pk_add_f32 {vr(T+2*i,2)}, {vr(E+2*i,2)}, {vr(E+8+2*i,2)}")
    for i in range(2): k(f"v_pk_add_f32 {vr(T+2*i,2)}, {vr(T+2*i,2)}, {vr(T+4+2*i,2)}")
    k(f"v_pk_add_f32 {vr(T,2)}, {vr(T,2)}, {vr(T+2,2)}\nv_add_f32 v{T}, v{T}, v{T+1}")
    rowsum(T)
    k(f"v_mul_f32 v{T+2}, {hexf(-1/512)}, v{T}")
    for i in range(8): k(f"v_pk_add_f32 {vr(E+2*i,2)}, {vr(E+2*i,2)}, {vr(T+2,2)} op_sel_hi:[1,0]")
    for i in range(2): k(f"v_pk_mul_f32 {vr(T+2*i,2)}, {vr(E+2*i,2)}, {vr(E+2*i,2)}")
    for i in range(2, 8): k(f"v_pk_fma_f32 {vr(T+2*(i&1),2)}, {vr(E+2*i,2)}, {vr(E+2*i,2)}, {vr(T+2*(i&1),2)}")
    k(f"v_pk_add_f32 {vr(T,2)}, {vr(T,2)}, {vr(T+2,2)}\nv_add_f32 v{T}, v{T}, v{T+1}")
    rowsum(T)
    k(f"v_mov_b32 v{T+2}, {hexf(1e-5)}\nv_fmac_f32 v{T+2}, {hexf(1/512)}, v{T}\nv_rsq_f32 v{T+2}, v{T+2}\ns_nop 0")
    for i in range(8): k(f"v_pk_mul_f32 {vr(E+2*i,2)}, {vr(E+2*i,2)}, {vr(T+2,2)} op_sel_hi:[1,0]")
    for d in range(8): k(f"v_cvt_pk_f16_f32 v{8+d}, v{E+2*d}, v{E+2*d+1}")
    if OPT.k0t:
        k("v_lshlrev_b32 v7, 7, v4\nv_lshl_add_u32 v7, v3, 4, v7")
        k("ds_write_b128 v7, v[8:11] offset:2048\nds_write_b128 v7, v[12:15] offset:6144")
        k("v_lshlrev_b32 v7, 4, v0\nv_lshrrev_b32 v6, 3, v0\nv_lshlrev_b32 v6, 8, v6\nv_and_b32 v5, 7, v0\nv_lshl_add_u32 v6, v5, 4, v6")
        k("s_waitcnt lgkmcnt(0)\ns_barrier")
        k("ds_read_b128 v[8:11], v7 offset:2048\nds_read_b128 v[12:15], v7 offset:6144\ns_waitcnt lgkmcnt(1)")
    k(f"buffer_store_dwordx4 v[8:11], v6, s[16:19], s25 offen {OPT.st0}")
    if OPT.k0t: k("s_waitcnt lgkmcnt(0)")
    k(f"buffer_store_dwordx4 v[12:15], v6, s[16:19], s26 offen {OPT.st0}")
    k.dbg_mark(0, 60, 61, True); k.dbg_mark(1, 62, 63)
    k("s_branch k0_fin" if prof else "s_endpgm")
    k("k0_mod:")
    k("s_cmp_ge_u32 s2, 192\ns_cbranch_scc1 k0_pf")
    k("s_mul_i32 s25, s2, 0x556\ns_lshr_b32 s25, s25, 16\ns_mul_i32 s26, s25, 48\ns_sub_u32 s26, s2, s26")
    k("v_and_b32 v3, 255, v0\nv_lshrrev_b32 v4, 3, v3\nv_and_b32 v5, 7, v3")
    k("v_mul_u32_u24 v6, 6144, v4\nv_lshl_add_u32 v6, v5, 4, v6\nv_lshlrev_b32 v7, 1, v4")
    k(f"s_mul_i32 s3, s25, {128*6144}\ns_lshl_b32 s27, s26, 7\ns_add_u32 s3, s3, s27\ns_lshl_b32 s27, s25, 8")
    k("s_waitcnt lgkmcnt(0)")
    k.srd(16, 10, 512*3072*2)
    k.srd(12, 8, 1024)
    for i in range(4):
        k(f"buffer_load_ushort v{8+i}, v7, s[12:15], s27 offen offset:{64*i}")
    for i in range(4):
        k(f"buffer_load_dwordx4 v[{16+4*i}:{19+4*i}], v6, s[16:19], s3 offen nt")
        if i < 3: k(f"s_add_u32 s3, s3, {32*6144}")
    k.srd(20, 6, 4*3072*4, WS_MODP)
    npf = 0
    if OPT.wqpf >= 2:
        npf = 1
        k.srd(32, 28, 512*8192)
        k("s_cmp_eq_u32 s24, 5\ns_cselect_b32 s34, s34, 0")
        k("v_lshrrev_b32 v56, 4, v2\nv_lshlrev_b32 v56, 13, v56\nv_bfe_u32 v57, v2, 1, 3\nv_lshl_add_u32 v56, v57, 10, v56\nv_and_b32 v57, 1, v2\nv_lshl_add_u32 v56, v57, 7, v56")
        k("s_lshr_b32 s37, s2, 3\ns_add_u32 s37, s37, 22\ns_lshl_b32 s37, s37, 15\ns_and_b32 s38, s2, 3\ns_lshl_b32 s38, s38, 8\ns_add_u32 s37, s37, s38")
        k("buffer_load_dword v57, v56, s[32:35], s37 offen nt")
    k(f"s_waitcnt vmcnt({4+npf})")
    for i in range(4): k(f"v_lshlrev_b32 v{8+i}, 16, v{8+i}")
    for i in range(4): k(f"v_mul_f32 v{12+i}, {hexf(-math.log2(math.e))}, v{8+i}")
    for i in range(4): k(f"v_exp_f32 v{12+i}, v{12+i}")
    k("s_nop 0")
    for i in range(4): k(f"v_add_f32 v{12+i}, 1.0, v{12+i}")
    for i in range(4): k(f"v_rcp_f32 v{12+i}, v{12+i}")
    k("s_nop 0")
    for i in range(4): k(f"v_mul_f32 v{8+i}, v{8+i}, v{12+i}")
    for i in range(4):
        k(f"v_cvt_pk_bf16_f32 v{12+i}, v{8+i}, v{8+i}")
    for i in range(4):
        k(f"v_and_b32 v{48+2*i}, 0xffff0000, v{12+i}")
    A = 32
    for i in range(4):
        k(f"s_waitcnt vmcnt({3-i+npf})")
        for d in range(4):
            w = 16+4*i+d; t = 40 + 2*(d & 1)*2
            k(f"v_lshlrev_b32 v{t}, 16, v{w}\nv_and_b32 v{t+1}, 0xffff0000, v{w}")
            if i == 0: k(f"v_pk_mul_f32 {vr(A+2*d,2)}, {vr(t,2)}, {vr(48+2*i,2)} op_sel_hi:[1,0]")
            else: k(f"v_pk_fma_f32 {vr(A+2*d,2)}, {vr(t,2)}, {vr(48+2*i,2)}, {vr(A+2*d,2)} op_sel_hi:[1,0,1]")
    k("s_nop 1")
    for e in range(8): k(f"v_add_f32 v{A+e}, v{A+e}, v{A+e} row_ror:8")
    k("s_nop 1")
    for e in range(4): k(f"v_permlane16_swap_b32 v{A+e}, v{A+4+e}")
    k("s_nop 1")
    for e in range(4): k(f"v_add_f32 v{A+e}, v{A+e}, v{A+4+e}")
    k("s_nop 1")
    for e in range(2): k(f"v_permlane32_swap_b32 v{A+e}, v{A+2+e}")
    k("s_nop 1")
    for e in range(2): k(f"v_add_f32 v{A+e}, v{A+e}, v{A+2+e}")
    k("v_lshlrev_b32 v8, 5, v5\nv_and_b32 v9, 16, v2\nv_add_u32 v8, v8, v9\nv_lshrrev_b32 v9, 2, v2\nv_and_b32 v9, 8, v9\nv_add_u32 v8, v8, v9")
    k("v_and_b32 v9, 3, v1\nv_lshl_add_u32 v8, v9, 8, v8")
    k(f"ds_write_b64 v8, {vr(A,2)}")
    k("s_waitcnt lgkmcnt(0)\ns_barrier")
    k(f"s_cmp_lg_u32 s24, 4\ns_cbranch_scc1 {'k0_fin' if prof else end}")
    k("v_lshlrev_b32 v8, 2, v2")
    for i in range(4): k(f"ds_read_b32 v{16+i}, v8 offset:{256*i}")
    k(f"s_mul_i32 s3, s25, {3072*4}\ns_lshl_b32 s27, s26, 8\ns_add_u32 s3, s3, s27")
    k("s_waitcnt lgkmcnt(0)")
    k("v_add_f32 v16, v16, v17\nv_add_f32 v18, v18, v19\nv_add_f32 v16, v16, v18")
    k(f"buffer_store_dword v16, v8, s[20:23], s3 offen {OPT.st0}")
    k.dbg_mark(2, 62, 63)
    k("s_branch k0_fin" if prof else "s_endpgm")
    k("k0_pf:")
    k("s_bfe_u32 s38, s2, 0x30003\ns_lshl_b32 s38, s38, 2\ns_and_b32 s37, s24, 3\ns_add_u32 s37, s37, s38")
    k("s_waitcnt lgkmcnt(0)")
    k("s_cmp_ge_u32 s37, 10\ns_cbranch_scc1 k0_pfw")
    k.code_pf("k1_attn_kernel", "code_end_marker", 4, 40, 37)
    k("s_branch k0_fin" if prof else "s_endpgm")
    k("k0_pfw:")
    k.srd(32, 28, 512*8192 if OPT.wqpf else 0)
    k("v_lshrrev_b32 v4, 4, v2\nv_lshlrev_b32 v4, 13, v4\nv_bfe_u32 v5, v2, 1, 3\nv_lshl_add_u32 v4, v5, 10, v4\nv_and_b32 v5, 1, v2\nv_lshl_add_u32 v4, v5, 7, v4")
    k("s_sub_u32 s37, s37, 10\ns_lshl_b32 s37, s37, 15\ns_and_b32 s38, s2, 3\ns_lshl_b32 s38, s38, 8\ns_add_u32 s37, s37, s38")
    k("buffer_load_dword v6, v4, s[32:35], s37 offen nt")
    k("k0_fin:")
    if prof:
        k.stamp(1); k("s_waitcnt vmcnt(0)"); k.stamp(2)
        k("v_and_b32 v0, 0xff, v0\ns_cmp_lt_u32 s24, 2\ns_cbranch_scc1 k0_dump\ns_cmp_eq_u32 s24, 4\ns_cbranch_scc0 k0_end\nv_add_u32 v0, 128, v0")
        k("k0_dump:")
        k.dump_stamps(3, 6, 56)
    k(f"{end}:")
    k("s_endpgm")
    return k

def mod_loads(k, srd, voff, st, R, base, tag=None, fl=''):
    for i in range(4):
        if isinstance(base, int): k(f"s_mov_b32 s{st+i}, {base + i*12288}")
        else: k(f"s_add_u32 s{st+i}, {base}, {i*12288}")
        t = f"buffer_load_dwordx4 {vr(R+4*i,4)}, v{voff}, {sr(srd,4)}, s{st+i} offen {fl}"
        k.vmop(t, tag) if tag else k(t)

def mod_finish(k, R, s_add, mul=None):
    for h in range(2):
        k(f"v_pk_add_f32 {vr(R+2*h,2)}, {vr(R+2*h,2)}, {vr(R+4+2*h,2)}\nv_pk_add_f32 {vr(R+8+2*h,2)}, {vr(R+8+2*h,2)}, {vr(R+12+2*h,2)}")
    for h in range(2): k(f"v_pk_add_f32 {vr(R+2*h,2)}, {vr(R+2*h,2)}, {vr(R+8+2*h,2)}")
    for rep in range(2):
        for h in range(2): k(f"v_cvt_pk_bf16_f32 v{R+4+h}, v{R+2*h}, v{R+2*h+1}")
        for h in range(2): k(f"v_lshlrev_b32 v{R+2*h}, 16, v{R+4+h}\nv_and_b32 v{R+2*h+1}, 0xffff0000, v{R+4+h}")
        if rep == 0:
            for i in range(4): k(f"v_add_f32 v{R+i}, s{s_add}, v{R+i}")
    if mul is not None:
        for i in range(4): k(f"v_mul_f32 v{R+i}, {hexf(mul)}, v{R+i}")
```

```python
from common import *
from sched import fill, L, V, W, front, emit, It, merge
from k0 import mod_loads, mod_finish, C1

MF = "v_mfma_f32_16x16x32_bf16"

SLOT = 16384
KB = 0
VB = 65536
PARB = 9*SLOT
FLAGB = PARB + 4096
WSLOT = [1, 4, 2, 5, 3, 6, 7, 8]

def O(db, qb): return (db*4+qb)*4
def LA(qb): return 128 + qb*4
def KF(i): return 144 + i*4
def VF(i): return 176 + i*4
ONES = 240
def Q(qb, s): return 128 + (qb*4+s)*4
def S(buf, kb, qb): return 64 + buf*32 + (kb*4+qb)*4
def P(buf, qb): return (32 + buf*16 if buf < 2 else 208 + (buf-2)*16) + qb*4
def MN(qb): return 192 + qb*4
V_KA = 8
V_VA = 12
V_DK = 20
V_DV = 24
V_L16 = 26
V_LS = 28
V_PF = 2
V_T = 208
def XR(slot, qb): return 128 + ((slot%4)*4+qb)*4
def QA(t, qb): return vr(192 + (qb*8+t)*4, 4) if qb < 2 else ar(((qb-2)*8+t)*4, 4)
def HK(b): return (lambda i: 64 + b*32 + i*4)
def HF(buf, qb): return 32 + (buf*4+qb)*4
def PAR(buf): return 64 + buf*16
V_PT = 96
V_WA = 112
V_DW = 124
V_PA = 125
def WF(buf, t): return 128 + (buf*8+t)*4
S_K, S_V, S_W, S_X, S_M, S_O = 8, 12, 16, 20, 24, 28
S_W4 = 32
S_KOFF, S_VOFF = 33, 34
S_CNT = 35
S_T0 = 36
S_RERUN = 44
S_WAVE = 45
S_W1 = 62

def emit_phase(k, mf, gaps):
    for f in gaps.get(-1, []): f(k) if callable(f) else k(f)
    for i, m in enumerate(mf):
        k(m)
        for f in gaps.get(i, []): f(k) if callable(f) else k(f)
    for g in gaps:
        assert g < len(mf), (g, len(mf))

def add(gaps, g, *items):
    gaps.setdefault(g, []).extend(items)

def qk_mfmas(buf, kf=KF, czero=False):
    r = []
    order = {0: [(kb,s,qb) for kb in range(2) for s in range(4) for qb in range(4)],
             1: [(kb,s,qb) for kb in range(2) for qb in range(4) for s in range(4)],
             2: [(kb,s,qb) for qb in range(4) for s in range(4) for kb in range(2)],
             4: [(kb,s if qb%2==0 else 3-s,qb) for kb in range(2) for qb in range(4) for s in range(4)],
             5: [(kb,s if kb%2==0 else 3-s,qb) for qb in range(4) for kb in range(2) for s in range(4)],
             3: [(kb,s,qb if s%2==0 else 3-qb) for kb in range(2) for s in range(4) for qb in range(4)]}[OPT.qko]
    seen = set()
    for kb, s, qb in order:
            if True:
                d = vr(S(buf, kb, qb), 4)
                started = (kb, qb) in seen; seen.add((kb, qb))
                c = d if started else ("0" if czero else vr(MN(qb), 4))
                r.append(f"{MF} {d}, {ar(kf(kb*4+s),4)}, {vr(Q(qb,s),4)}, {c}")
    return r

def pv_mfmas(buf, sumq, vf=VF, czero=False):
    r = []
    for qb in sumq:
        d = ar(LA(qb), 4)
        r.append(f"{MF} {d}, {ar(ONES,4)}, {vr(P(buf,qb),4)}, {'0' if czero else d}")
    order = {0: [(db,qb) for db in range(8) for qb in range(4)],
             1: [(db,qb) for qb in range(4) for db in range(8)],
             3: [(db if qb%2==0 else 7-db,qb) for qb in range(4) for db in range(8)],
             2: [(db,qb if db%2==0 else 3-qb) for db in range(8) for qb in range(4)]}[OPT.pvo]
    for db, qb in order:
        if True:
            d = ar(O(db, qb), 4)
            r.append(f"{MF} {d}, {ar(vf(db),4)}, {vr(P(buf,qb),4)}, {'0' if czero else d}")
    return r

def exps(buf, qbs):
    r = []
    for qb in qbs:
        for kb in range(2):
            for i in range(4):
                x = S(buf, kb, qb) + i
                r.append(f"v_exp_f32{OPT.e64} v{x}, v{x}")
    return r
def cvts(buf, qbs, pb=None):
    pb = buf if pb is None else pb
    r = []
    for qb in qbs:
        for kb in range(2):
            for h in range(2):
                x = S(buf, kb, qb) + 2*h
                r.append(f"v_cvt_pk_bf16_f32 v{P(pb,qb)+kb*2+h}, v{x}, v{x+1}")
    return r
def adds(buf, qbs, addq):
    r = []
    for qb in qbs:
        for kb in range(2):
            for i in range(4):
                x = S(buf, kb, qb) + i
                r.append(f"v_add_f32{OPT.a64} v{V_LS+qb}, v{x}, v{V_LS+qb}" if qb in addq else None)
    return r
def kreads(slot, blk, kf=KF):
    r = []
    for kb in range(2):
        for s in range(4):
            r.append(f"ds_read_b128 {ar(kf(kb*4+s),4)}, v{V_KA+s} offset:{KB+slot*SLOT+blk*8192+kb*4096}")
    return r
def vreads(slot, blk, vf=VF):
    r = []
    for db in range(8):
        for h in range(2):
            r.append(f"ds_read_b64_tr_b16 {ar(vf(db)+2*h,2)}, v{V_VA+db} offset:{slot*SLOT+blk*8192+h*4096}")
    return r
def dma_k(p): return f"buffer_load_dwordx4 v{V_DK+p}, {sr(S_K,4)}, s{S_KOFF} offen offset:{p*1024} {OPT.kvnt} lds"
def dma_v(p): return f"buffer_load_dwordx4 v{V_DV+(p&1)}, {sr(S_V,4)}, s{S_VOFF} offen offset:{p*1024} {OPT.kvnt} lds"

class Cfg:
    la = 4
    wb4 = 0
    nvm = 8
    npk = 5
    ne1 = 33
    nv1 = 11
    v19 = 1
    wb = 0
    pfo = 2
    pfc = (5, 1, 1)
    ppf = 0
    wocnt = 1
    bar2 = 0
    kvspread = 1
    w1pf = 0
    fine = 0
    kvper = 7
    x = 0
    pf = 2
    sumq = [1, 3]
    def addq(self): return [q for q in range(4) if q not in self.sumq]

def pv2_mfmas(pb, sumq, czero=False, order=None):
    r = []
    n = 0
    def pair(d, a0, a1, qb):
        nonlocal n
        js = (0, 1) if n % 2 == 0 else (1, 0); n += 1
        for i, j in enumerate(js):
            r.append(f"{MF} {d}, {ar(a1 if j else a0,4)}, {vr(P(pb+j,qb),4)}, {'0' if (czero and i == 0) else d}")
    for qb in sumq: pair(ar(LA(qb), 4), ONES, ONES, qb)
    for db in range(8):
        for q in range(4):
            qb = q if db % 2 == 0 else 3 - q
            pair(ar(O(db, qb), 4), VF(db), VF(8+db), qb)
    return r

def sm_stream(cfg, u):
    qs = range(4)
    E = exps(u & 1, qs); C = cvts(u & 1, qs, u & 3); A = adds(u & 1, qs, cfg.addq())
    r = []
    for i, e in enumerate(E):
        f = [A[i]] if A[i] else []
        if i % 2 == 1: f.append(C[i//2])
        r.append((e, f))
    return r

def vreads2(slot):
    r = []
    for db in range(8):
        for blk in range(2):
            for h in range(2):
                r.append((db, L(f"ds_read_b64_tr_b16 {ar(VF(8*blk+db)+2*h,2)}, v{V_VA+db} offset:{slot*SLOT+blk*8192+h*4096}", "V")))
    return r

def pack(k, mf, fixed, stream, lds, vm, deadlines=(), keep=False):
    n = len(mf)
    stream = list(stream); lds = list(lds); vm = list(vm)
    ready = []
    k.run(fixed.get(-1, []))
    ne = len(stream); ie = 0
    lastvm = -9; vm0 = list(vm)
    for g in range(n):
        k(mf[g]); k.run(fixed.get(g, []))
        left = 2
        if OPT.barfree and any(isinstance(x, str) and "s_barrier" in x for x in fixed.get(g, [])): left = 2 - OPT.barfree
        want_e = ie < ne and g < n-1 and (g % 2 == 0 or (ne - ie) > (n - g)//2)
        if g % 2 == 1 or not want_e:
            if vm and vm[0][0] <= g and g - lastvm >= (OPT.vsp if len(vm0) <= 8 else 4) and not (lds and lds[0][0] <= g and lds[0][2:] == ('urgent',)):
                k.run(vm.pop(0)[1]); left -= 2; lastvm = g
            else:
                c = [x for x in lds if x[0] <= g]
                c.sort(key=lambda x: 0 if len(x) > 2 else 1)
                if c:
                    lds.remove(c[0]); k.run([c[0][1]]); left -= 1
                    rem = len([y for y in range(g+1, n) if y % 2 == 1]) - 3
                    if len(c) > 1 and len(lds) + len(vm) > rem:
                        lds.remove(c[1]); k.run([c[1][1]]); left -= 1
        if want_e:
            e, f = stream[ie]; k(e); left -= 2
            ready += [(g, ie, x) for x in f]; ie += 1
        must = [x for x in ready if any(x[1] < idx and g + 1 >= dl for idx, dl in deadlines)]
        while ready and ready[0][0] < g and (left > 0 or ready[0] in must or len(ready) > OPT.bk or g == n-1):
            k(ready.pop(0)[2]); left -= 1
    assert ie == ne and not vm and not ready and (keep or not lds), (ie, ne, len(lds), len(vm), ready)
    return lds

R1 = 16

def iteration(k, cfg, t4, part="all", czero=False, pf=(), post=(), label=None, extra=()):
    ks = t4; vs = (t4 - 1) % 4; u = 2*t4
    k.c(f"---- iteration T%4={t4} {part} ----")
    ns = 2*len(cfg.sumq)
    pv = pv2_mfmas((u - 4) & 3, cfg.sumq, czero); npv = len(pv)
    st = sm_stream(cfg, u - 2)[32-R1:] + sm_stream(cfg, u - 1) + sm_stream(cfg, u)[:32-R1]
    dmas = [[f"s_add_u32 m0, s{S_W4}, {KB + ((t4+3)%4)*SLOT}\ns_nop 0" if p == 0 else "", dma_k(p)] for p in range(4)]
    dmas += [[f"s_add_u32 m0, s{S_W4}, {VB + ((t4+2)%4)*SLOT}\ns_add_u32 s{S_KOFF}, s{S_KOFF}, {SLOT}" if p == 0 else "", dma_v(p)] for p in range(4)]
    dmas[-1].append(f"s_add_u32 s{S_VOFF}, s{S_VOFF}, {SLOT}")
    ka = [L(x, "KA") for x in kreads(ks, 0)]; kb = kreads(ks, 1)
    vr_ = vreads2(vs)
    NE1 = cfg.ne1
    NV1 = cfg.nv1
    nvm = 16 if not (cfg.pf and cfg.pfo and cfg.v19) else (18 if part == "pv" else 19)
    bar = {ns-1: [f"s_waitcnt vmcnt({nvm}) lgkmcnt(0)\ns_barrier"]}
    if part == "tail":
        k.lg = []
        if OPT.fa and (OPT.na0 or OPT.na1): bar = {ns-1: ["s_waitcnt vmcnt(0) lgkmcnt(0)\ns_barrier"]}
        return pack(k, pv, bar, st[:R1+32], [(ns + 8*db + 7, x) for db, x in vr_], [(ns, x) for x in extra], keep=True)
    if part in ("all", "pv"):
        k.lg = []
        lds = [(ns, x) for x in ka] + [(ns + 8*db + 7, x) for db, x in vr_[:NV1]]
        pack(k, pv, bar, st[:NE1], lds, [(ns + OPT.v0, d) for d in dmas])
    if label: k(f"{label}:")
    if part in ("all", "first"):
        vm = [(40, [pf[1]])] if pf else []
        fixed = {-1: [W(lg="KA")], 30: [W(lg="KB0")], 46: [W(lg="KB1")]}
        if pf: fixed[38] = [pf[0]]
        if part == "first":
            NE1 = R1; NV1 = 0; k.lg = []
            fixed[-1] = ["s_waitcnt lgkmcnt(0)"]
            vm = [(2, [kv_setup(wh, t), dma_k(p) if wh == 'K' else dma_v(p)]) for wh, t in (('V',2),('K',4),('V',3)) for p in range(4)]
            if cfg.v19:
                dummy = f"s_mov_b32 s6, 0x80000\nbuffer_load_dword v{V_PF+3}, v{V_PF}, {sr(S_O,4)}, s6 offen"
                vm[3][1].append(dummy); vm[11][1].append(dummy)
            post = [f"s_mov_b32 s{S_KOFF}, {5*SLOT}\ns_mov_b32 s{S_VOFF}, {4*SLOT}"]
        lds = [(0, x) for db, x in vr_[NV1:]] + [(15, L(x, "KB0"), 'urgent') for x in kb[:4]] + [(31, L(x, "KB1"), 'urgent') for x in kb[4:]]
        pack(k, qk_mfmas(0) + qk_mfmas(1), fixed, st[NE1:], lds, vm, deadlines=[(R1 + 32 - NE1, 40)])
    for f in post: k(f)

def kv_setup(which, tile):
    if which == 'K': return f"s_add_u32 m0, s{S_W4}, {KB + (tile%4)*SLOT}\ns_mov_b32 s{S_KOFF}, {tile*SLOT}"
    return f"s_add_u32 m0, s{S_W4}, {VB + (tile%4)*SLOT}\ns_mov_b32 s{S_VOFF}, {tile*SLOT}"
def kv_group(which, tile):
    return [[kv_setup(which, tile), V(dma_k(p) if which == 'K' else dma_v(p), f"{which}{tile}")] for p in range(4)]

def rowmax_cross(k, regs, tmp):
    for sw in ("v_permlane32_swap_b32", "v_permlane16_swap_b32"):
        for i, r in enumerate(regs): k(f"v_mov_b32 v{tmp+i}, v{r}")
        k("s_nop 1")
        for i, r in enumerate(regs): k(f"{sw} v{tmp+i}, v{r}")
        k("s_nop 1")
        for i, r in enumerate(regs): k(f"v_max_f32 v{r}, v{r}, v{tmp+i}")

def gen_k1(cfg=None, prof=False):
    cfg = cfg or Cfg()
    k = Kern("k1_attn_kernel", 256, 256, 160*1024, 512, 256, 96 if prof else 64)
    k.prof = prof
    end = "k1_end"
    k(f"s_cmp_ge_u32 s2, 256\ns_cbranch_scc1 {end}")
    k.stamp(0)
    k.dbg_begin(1)
    k(f"s_load_dwordx4 s[48:51], s[0:1], {KA_K}")
    k(f"s_load_dwordx2 s[52:53], s[0:1], {KA_WQ}")
    k(f"s_load_dwordx2 s[54:55], s[0:1], {KA_WS}")
    k(f"s_load_dwordx2 s[46:47], s[0:1], {KA_WO}")
    k(f"s_load_dwordx4 s[56:59], s[0:1], {KA_WG}")
    k(f"s_load_dwordx2 s[60:61], s[0:1], {KA_WD}")

    k("v_lshrrev_b32 v1, 6, v0")
    k("v_and_b32 v2, 63, v0")
    k(f"v_readfirstlane_b32 s{S_WAVE}, v1")
    m = OPT.map4
    k(f"s_and_b32 s4, s2, {(8>>m)-1}\ns_bfe_u32 s5, s2, {((2+m)<<16)|3}\ns_lshl_b32 s5, s5, {3-m}\ns_add_u32 s4, s4, s5")
    k(f"s_bfe_u32 s5, s2, {(m<<16)|(3-m)}\ns_lshl_b32 s5, s5, {3-m}\ns_lshr_b32 s6, s2, {5+m}\ns_add_u32 s5, s5, s6")
    k(f"s_lshl_b32 s{S_W4}, s{S_WAVE}, 12")
    k(f"s_mov_b32 s{S_RERUN}, 0")
    k("v_lshrrev_b32 v3, 4, v2")
    k("v_and_b32 v4, 15, v2")
    k("v_lshrrev_b32 v5, 2, v4")
    k("v_and_b32 v6, 3, v2")
    k(f"v_lshlrev_b32 v{V_L16}, 4, v2")
    k("v_lshlrev_b32 v7, 2, v3\nv_xor_b32 v7, v7, v4\nv_lshlrev_b32 v7, 4, v7")
    k(f"v_lshl_add_u32 v{V_DW}, v1, 2, v3\nv_lshl_add_u32 v{V_DW}, v{V_DW}, 13, v7")
    k(f"s_lshl_b32 s{S_W1}, s{S_WAVE}, 10")
    k("s_waitcnt lgkmcnt(0)")
    k("s_lshl_b32 s6, s4, 8")
    k(f"s_add_u32 s{S_W}, s52, s6\ns_addc_u32 s{S_W+1}, s53, 0\ns_sub_u32 s{S_W+2}, {512*8192}, s6\ns_mov_b32 s{S_W+3}, 0x20000")
    k.srd(S_M, 54, 4*12288, WS_MODP)
    k(f"s_lshl_b32 s6, s5, 2\ns_add_u32 s6, s6, s{S_WAVE}\ns_lshl_b32 s7, s6, 16")
    k(f"s_add_u32 s7, s7, 0x{WS_XH:x}")
    k(f"s_add_u32 s{S_X}, s54, s7\ns_addc_u32 s{S_X+1}, s55, 0\ns_mov_b32 s{S_X+2}, 0x10000\ns_mov_b32 s{S_X+3}, 0x20000")
    def w_step(j):
        r = []
        for p in range(2):
            st = S_T0 + p
            r.append([f"s_add_u32 m0, s{S_W1}, {WSLOT[j>>1]*SLOT + (j&1)*8192 + p*4096}\ns_mov_b32 s{st}, {(j*32 + p*16)*8192}",
                      lambda kk, st=st: kk.vmop(f"buffer_load_dwordx4 v{V_DW}, {sr(S_W,4)}, s{st} offen {OPT.wqnt} lds", f"W{j}")])
        return r
    def x_loads(j):
        r = []
        for qb in range(4):
            st = S_T0 + 4 + qb
            r.append([f"s_mov_b32 s{st}, {qb*16384 + (j>>2)*4096}",
                      lambda kk, qb=qb, st=st: kk.vmop(f"buffer_load_dwordx4 {vr(XR(j,qb),4)}, v{V_L16}, {sr(S_X,4)}, s{st} offen offset:{(j&3)*1024}", f"X{j}" if j else f"X0_{qb}")])
        return r
    def run(items):
        for f in items:
            if isinstance(f, list): run(f)
            else: f(k) if callable(f) else k(f)
    k("v_lshlrev_b32 v31, 4, v0")
    mod_loads(k, S_M, 31, S_T0, V_PT, 0, "M")
    LA_ = cfg.la
    run(w_step(0)); run(x_loads(0))
    k("s_lshl_b32 s6, s4, 19")
    k(f"s_add_u32 s{S_K}, s48, s6\ns_addc_u32 s{S_K+1}, s49, 0\ns_mov_b32 s{S_K+2}, 0x80000\ns_mov_b32 s{S_K+3}, 0x20000")
    k(f"s_add_u32 s{S_V}, s50, s6\ns_addc_u32 s{S_V+1}, s51, 0\ns_mov_b32 s{S_V+2}, 0x80000\ns_mov_b32 s{S_V+3}, 0x20000")
    k(f"s_lshl_b32 s6, s5, 2\ns_add_u32 s6, s6, s{S_WAVE}\ns_lshl_b32 s6, s6, 19\ns_lshl_b32 s7, s4, 12\ns_add_u32 s6, s6, s7")
    k(f"s_add_u32 s6, s6, 0x{WS_OF:x}")
    k(f"s_add_u32 s{S_O}, s54, s6\ns_addc_u32 s{S_O+1}, s55, 0\ns_mov_b32 s{S_O+2}, {3*131072+4096}\ns_mov_b32 s{S_O+3}, 0x20000")
    k("v_lshl_add_u32 v7, v3, 3, v5\nv_lshlrev_b32 v7, 8, v7\nv_lshl_add_u32 v7, v6, 4, v7")
    for s in range(4):
        k(f"v_xor_b32 v27, {s}, v5\nv_lshl_add_u32 v{V_WA+s}, v27, 6, v7")
        k(f"v_add_u32 v{V_WA+4+s}, 0x10000, v{V_WA+s}\nv_add_u32 v{V_WA+8+s}, 0x20000, v{V_WA+s}")
    k(f"v_lshlrev_b32 v{V_PA}, 5, v3\nv_add_u32 v{V_PA}, {PARB}, v{V_PA}")
    for s in range(4):
        k(f"v_or_b32 v27, {4*s}, v3\nv_xor_b32 v27, v27, v4\nv_lshlrev_b32 v27, 4, v27\nv_lshl_add_u32 v{V_KA+s}, v4, 8, v27")
    k("v_lshl_add_u32 v7, v3, 2, v5\nv_and_b32 v27, 7, v7\nv_lshlrev_b32 v7, 8, v7\nv_lshl_add_u32 v7, v6, 3, v7")
    k(f"v_add_u32 v7, {VB}, v7")
    for db in range(8):
        k(f"v_xor_b32 v30, {db}, v27\nv_lshl_add_u32 v{V_VA+db}, v30, 5, v7")
    k("v_lshlrev_b32 v7, 8, v3\nv_lshl_add_u32 v7, v1, 12, v7")
    for p in range(4):
        k(f"v_or_b32 v27, {4*p}, v3\nv_xor_b32 v27, v27, v4\nv_lshl_add_u32 v{V_DK+p}, v27, 4, v7")
    for p in range(2):
        k(f"v_or_b32 v27, {4*p}, v3\nv_lshlrev_b32 v27, 1, v27\nv_xor_b32 v27, v27, v4\nv_lshl_add_u32 v{V_DV+p}, v27, 4, v7")
    k("v_mov_b32 v27, 0x3f803f80")
    for i in range(4): k(f"v_accvgpr_write_b32 a{ONES+i}, v27")

    def wreads(j):
        c = j >> 1; base = WSLOT[c]*SLOT; bank = base >> 16; off = (base & 0xffff) + (j & 1)*8192
        return [L(f"ds_read_b64_tr_b16 {ar(WF(j&1,t)+2*h,2)}, v{V_WA+4*bank+(t>>1)} offset:{off + h*1024 + 8*(t&1)}", f"R{j}_{t}")
                for t in range(8) for h in range(2)]
    def preads(j):
        b = PAR(j & 1)
        return [L(f"ds_read_b128 {vr(b+4*i,4)}, v{V_PA} offset:{j*128 + (i&1)*16 + (i>>1)*2048}", f"P{j}") for i in range(4)]
    def hcalc(j):
        b = PAR(j & 1); r = []
        for qb in range(4):
            t = V_PT + (qb & 1)*8
            for i in range(8):
                r.append(f"v_fma_mix_f32 v{t+i}, v{XR(j,qb)+(i>>1)}, v{b+8+i}, v{b+i} op_sel:[{i&1},0,0] op_sel_hi:[1,0,0]")
            for d in range(4):
                r.append(f"v_cvt_pk_bf16_f32 v{HF(j&1,qb)+d}, v{t+2*d}, v{t+2*d+1}")
        return r
    k(f"s_cmp_ge_u32 s{S_WAVE}, 2\ns_cselect_b32 s6, 1.0, 0\nv_add_u32 v31, {PARB}, v31")
    k.vmwait("M")
    mod_finish(k, V_PT, 6, C1)
    k(f"ds_write_b128 v31, {vr(V_PT,4)}")
    if OPT.modk1 and not OPT.fa:
        k("s_cmp_ge_u32 s2, 2\ns_cbranch_scc1 k1_nomod\nv_lshlrev_b32 v30, 4, v0\ns_add_u32 s7, s2, 1\ns_lshl_b32 s7, s7, 12")
        mod_loads(k, S_M, 30, S_T0, 192, "s7")
        k(f"s_lshl_b32 s6, s2, 1\ns_cmp_lt_u32 s{S_WAVE}, s6\ns_cselect_b32 s6, 1.0, 0\ns_sub_u32 s{S_M}, s{S_M}, {WS_MODP - WS_MOD}\ns_subb_u32 s{S_M+1}, s{S_M+1}, 0\ns_waitcnt vmcnt(0)")
        mod_finish(k, 192, 6)
        k(f"buffer_store_dwordx4 v[192:195], v30, {sr(S_M,4)}, s7 offen\ns_waitcnt vmcnt(0)")
        k("k1_nomod:")
    run(x_loads(1)); run(w_step(1))
    k.vmwait("W0", "lgkmcnt(0)"); k("s_barrier")
    run(preads(0)); run(preads(1)); run(wreads(0))
    assert LA_ == 4
    pend = [g for j in range(2, LA_) for g in x_loads(j) + w_step(j)]
    k.wait(lg="P0")
    k.stamp(1) if cfg.fine != 2 else None
    for i, v in enumerate(hcalc(0)):
        if i % 12 == 0: k.wait(vm=f"X0_{i//12}")
        if i % 6 == 0 and pend: run(pend.pop(0))
        k(v)
    kvplan = {12: kv_group('K', 0), 13: kv_group('K', 1), 14: kv_group('V', 0)}
    for j in range(15):
        k.c(f"qproj stage {j}")
        if cfg.fine == 1 and j in (0, 2, 4, 8, 12): k.stamp(2 + (0, 2, 4, 8, 12).index(j))
        mf = []
        for t in range(8):
            for q in range(4):
                qb = q if t % 2 == 0 else 3 - q
                d = QA(t, qb)
                mf.append(f"{MF} {d}, {ar(WF(j&1,t),4)}, {vr(HF(j&1,qb),4)}, {d if j else '0'}")
        lds = (preads(j+2) if j < 14 else []) + wreads(j+1)
        valu = hcalc(j+1)
        jj = j + LA_
        if jj >= 16: pend += kvplan[j]
        elif cfg.wb4:
            pend += x_loads(jj)
            if jj % cfg.wb4 == 0:
                for j2 in range(jj, min(16, jj + cfg.wb4)): pend += w_step(j2)
        else: pend += x_loads(jj) + w_step(jj)
        nvm = min(len(pend), cfg.nvm)
        vm = pend[:nvm]; pend = pend[nvm:]
        if cfg.x == 1: valu = valu[:16]
        gaps = fill(32, lds, valu, vm, g0=1, valu_end=31)
        add(gaps, -1, W(lg=f"R{j}_3"))
        front(gaps, 12, W(lg=f"R{j}_7"))
        if j < 2 or j % 2 == 1 or not cfg.bar2:
            tgt = j+1 if (j < 1 or not cfg.bar2) else j+2
            if cfg.wb4 and j + 1 >= 4:
                if (j + 1) % cfg.wb4 == 0:
                    front(gaps, 0, W(vm=f"X{j+1}"), W(vm=f"W{min(15, j + cfg.wb4)}", barrier=True))
                else: front(gaps, 0, W(vm=f"X{j+1}"))
            else: front(gaps, 0, W(vm=f"W{tgt}", barrier=True))
        else:
            front(gaps, 0, W(vm=f"X{j+1}"))
        emit(k, mf, gaps)
    assert not pend
    k.stamp(2) if not cfg.fine else (k.stamp(7) if cfg.fine == 1 else None)
    PF_F, PF_W = S_X, S_W
    pfsetup = [f"s_cmp_eq_u32 s{S_WAVE}, 1\ns_cselect_b64 s[{PF_F}:{PF_F+1}], s[58:59], s[56:57]",
        f"s_cmp_eq_u32 s{S_WAVE}, 2\ns_cselect_b64 s[{PF_F}:{PF_F+1}], s[60:61], s[{PF_F}:{PF_F+1}]",
        f"s_mul_i32 s6, s2, {43*128}\ns_add_u32 s{PF_F}, s{PF_F}, s6\ns_addc_u32 s{PF_F+1}, s{PF_F+1}, 0",
        f"s_lshl_b32 s6, s4, 17\ns_and_b32 s7, s5, 3\ns_lshl_b32 s7, s7, 15",
        f"s_add_u32 s6, s6, s7\ns_lshl_b32 s7, s{S_WAVE}, 13\ns_add_u32 s6, s6, s7",
        f"s_add_u32 s{PF_W}, s46, s6\ns_addc_u32 s{PF_W+1}, s47, 0\ns_mov_b32 s{PF_W+2}, 0x2000",
        f"s_cmp_eq_u32 s{S_WAVE}, 3\ns_cselect_b32 s{PF_F+2}, 0, {43*128}"]
    V0, VD = V_PF, V_PF+3
    pfv = [f"v_lshrrev_b32 v{VD}, 8, v{V_L16}", f"v_lshlrev_b32 v{VD}, 24, v{VD}", f"v_lshl_add_u32 v{V0}, v{V_L16}, 3, v{VD}"]
    cf, cw, co = cfg.pfc
    def site(srd, c0, sh, off, fl):
        return [f"s_sub_u32 s6, s{S_CNT}, {c0}\ns_min_u32 s6, s6, 4\ns_lshl_b32 s6, s6, {sh}", f"buffer_load_dword v{VD}, v{V0}, {sr(srd,4)}, s6 offen offset:{off} {fl}"]
    pfs = [site(PF_F, cf, 11, 0, ""), site(S_O, co, 17, 0, OPT.opf), site(PF_W, cw, 11, 0, OPT.wpf), site(S_O, co, 17, 2048, OPT.opf)]
    loopinit = f"s_mov_b32 s{S_CNT}, 8"
    k.c("merged head")
    k.wait(lg='all')
    def qk_q(buf, qb, czero):
        r = []
        for kb in range(2):
            for i in range(4):
                s_ = i if kb == 0 else 3 - i
                d = vr(S(buf, kb, qb), 4)
                c = d if i else ("0" if czero else vr(MN(qb), 4))
                nd = {f"Q{qb}": 2, f"KR{buf}": 0}
                if not czero: nd[f"MN{qb}"] = 2
                r.append(It(f"{MF} {d}, {ar(HK(buf)(kb*4+s_),4)}, {vr(Q(qb,s_),4)}, {c}", needs=nd, gives=f"S{buf}_{qb}"))
        return r
    mq = []
    for qb in range(4):
        for t in range(8):
            d = QA(t, qb)
            mq.append(It(f"{MF} {d}, {ar(WF(1,t),4)}, {vr(HF(1,qb),4)}, {d}", gives=f"A{t}_{qb}"))
    mq += qk_q(0,0,True) + qk_q(0,1,True) + qk_q(0,2,True) + qk_q(1,0,False) + qk_q(1,1,False) + qk_q(0,3,True) + qk_q(1,2,False) + qk_q(1,3,False)
    def conv(qb):
        r = []
        for s_ in range(4):
            for h in range(2):
                t = 2*s_ + h; nd = {f"A{t}_{qb}": 8}
                if qb < 2: a = 192 + (qb*8+t)*4
                else:
                    a = 224 + (t & 3)*4
                    for i in range(4): r.append(It(f"v_accvgpr_read_b32 v{a+i}, a{((qb-2)*8+t)*4+i}", needs=nd))
                for d in range(2): r.append(It(f"v_cvt_pk_bf16_f32 v{Q(qb,s_)+2*h+d}, v{a+2*d}, v{a+2*d+1}", needs=nd, gives=f"Q{qb}x"))
        r[-1].gives = f"Q{qb}"
        return r
    def rmax(qs):
        r = []
        for qb in qs:
            a = S(0, 0, qb); b = S(0, 1, qb); t = V_T + qb; nd = {f"S0_{qb}e": 8}
            r += [It(f"v_max3_f32 v{t}, v{a}, v{a+1}, v{a+2}", needs=nd), It(f"v_max3_f32 v{t+4}, v{b}, v{b+1}, v{b+2}"),
                  It(f"v_max3_f32 v{t}, v{t}, v{a+3}, v{b+3}"), It(f"v_max_f32 v{t}, v{t}, v{t+4}")]
        for n_, sw in enumerate(("v_permlane32_swap_b32", "v_permlane16_swap_b32")):
            for qb in qs: r.append(It(f"v_mov_b32 v{V_T+4+qb}, v{V_T+qb}", gives=f"mv{n_}_{qb}"))
            for qb in qs: r.append(It(f"{sw} v{V_T+4+qb}, v{V_T+qb}", cost=2, needs={f"mv{n_}_{qb}": 2}, gives=f"sw{n_}_{qb}"))
            for qb in qs: r.append(It(f"v_max_f32 v{V_T+qb}, v{V_T+qb}, v{V_T+4+qb}", needs={f"sw{n_}_{qb}": 1}))
        for qb in qs:
            for i in range(4): r.append(It(f"v_sub_f32 v{MN(qb)+i}, 0, v{V_T+qb}", gives=f"MN{qb}" if i == 3 else None))
        return r
    def sm0(qs, sub=True):
        r = []
        E = exps(0, qs); C = cvts(0, qs); A = adds(0, qs, cfg.addq())
        regs = [S(0, kb, qb) + i for qb in qs for kb in range(2) for i in range(4)]
        qof = [qb for qb in qs for _ in range(8)]
        n_ = len(E)
        for i in range(n_ + 2):
            if sub and i < n_: r.append(It(f"v_add_f32 v{regs[i]}, v{regs[i]}, v{MN(qof[i])}"))
            if 1 <= i <= n_: r.append(It(E[i-1], cost=2, gives=f"e{qs[0]}_{i-1}"))
            if i >= 2:
                if A[i-2]: r.append(It(A[i-2], needs={f"e{qs[0]}_{i-2}": 1}))
                if (i-2) % 2 == 1: r.append(It(C[(i-2)//2], needs={f"e{qs[0]}_{i-2}": 1}))
        return r
    last = {}
    for it in mq:
        if isinstance(it.gives, str) and it.gives.startswith("S"): last[it.gives] = it
    for g, it in last.items(): it.gives = g + "e"
    init = [It(f"v_mov_b32 v{V_LS+q}, 0") for q in range(4)] + [It(x) for x in pfv]
    vq = init + conv(0) + conv(1) + conv(2) + rmax([0, 1]) + conv(3) + sm0([0, 1]) + rmax([2, 3]) + sm0([2, 3])
    side = [It(W(vm="K0", barrier=True), cost=0, n=2)]
    for b in range(2):
        side += [It(L(x, f"HK{b}")) for x in kreads(0, b, HK(b))]
    side += [It(x, cost=0, n=3) for x in pfsetup]
    side += [It(W(lg="HK0"), cost=0, gives="KR0", needs={"A7_2": 0}), It(W(lg="HK1"), cost=0, gives="KR1")]
    G = lambda grp, nd=None: It(lambda kk, grp=grp: kk.run(grp), cost=2, n=3, needs=nd)
    side += [G(x) for x in kv_group('K', 2)] + [G(x, {"S0_2e": 0}) for x in kv_group('V', 1)]
    side += [It(W(vm="V0", barrier=True), cost=0, n=2, needs={"S0_3e": 0})]
    side += [It(x) for x in kreads(1, 0)] + [G(x) for x in kv_group('K', 3)] + [It(loopinit, cost=0, n=4)]
    merge(k, mq, vq, side)
    k("k1_first:")
    iteration(k, cfg, 1, "first")
    iteration(k, cfg, 2, "pv", czero=True)
    k.stamp(3) if not cfg.fine else None
    k("s_branch k1_pos2")
    k(".p2align 6")
    for _ in range(OPT.pad): k("s_nop 0")
    k("k1_loop:")
    iteration(k, cfg, 0, pf=pfs[0] if cfg.pf else ())
    iteration(k, cfg, 1, pf=pfs[1] if cfg.pf else ())
    iteration(k, cfg, 2, pf=pfs[2] if cfg.pf else (), label="k1_pos2")
    iteration(k, cfg, 3, pf=pfs[3] if cfg.pfo else (), post=[f"s_sub_u32 s{S_CNT}, s{S_CNT}, 1\ns_cmp_lg_u32 s{S_CNT}, 0\ns_cbranch_scc1 k1_loop"])
    k.stamp(4) if not cfg.fine else (k.stamp(1) if cfg.fine == 2 else None)
    if OPT.cpf2:
        k(f"s_cmp_ge_u32 s2, 16\ns_cbranch_scc1 k1_nocode\ns_lshr_b32 s6, s2, 3\ns_lshl_b32 s6, s6, 2\ns_add_u32 s6, s6, s{S_WAVE}")
        k.code_pf("k1_nocode", "code_end_marker", V_PF+1, S_M, 6)
        k("k1_nocode:")
    V_AW = 7
    def a_w(j):
        return [[f"s_add_u32 m0, s{S_W1}, {(j % 16)*8192 + p*4096}\ns_mov_b32 s{S_T0+4+p}, {((j>>2)*512 + (j&3)*32 + p*16)*1024}",
                 V(f"buffer_load_dwordx4 v{V_AW}, {sr(S_M,4)}, s{S_T0+4+p} offen lds", f"AW{j}")] for p in range(2)]
    extra = []
    if OPT.fa:
        k(f"v_lshrrev_b32 v2, 8, v{V_L16}\nv_lshl_add_u32 v2, v1, 2, v2\nv_and_b32 v3, 7, v2\nv_lshlrev_b32 v3, 5, v3\nv_and_b32 v4, 0xf0, v{V_L16}")
        k(f"v_xor_b32 v3, v3, v4\nv_lshl_add_u32 v{V_AW}, v2, 10, v3")
        k(f"s_and_b32 s6, s2, 3\ns_lshl_b32 s6, s6, 17\ns_bfe_u32 s7, s2, 0x20003\ns_lshl_b32 s7, s7, 8\ns_add_u32 s6, s6, s7")
        k(f"s_add_u32 s{S_M}, s46, s6\ns_addc_u32 s{S_M+1}, s47, 0\ns_sub_u32 s{S_M+2}, {4096*1024}, s6\ns_mov_b32 s{S_M+3}, 0x20000")
        k.vm = []
        extra = [g for j in range(OPT.na0) for g in a_w(j)]
    rest = iteration(k, cfg, 0, "tail", extra=extra)
    k.stamp(5) if not cfg.fine else (k.stamp(2) if cfg.fine == 2 else None)
    k.lg = ["V0"]*len(k.lg)
    k.run([x[1] for x in rest])
    nrest = len(rest); dbw = 8 - (nrest + 3)//4
    ns = 2*len(cfg.sumq)
    LT = 240
    mq = []
    for i, m in enumerate(pv2_mfmas(2, cfg.sumq)):
        db = (i - ns)//8
        it = It(m, gives="SUM" if i == ns-1 else (f"O{db}" if i >= ns and (i - ns) % 8 == 7 else None))
        if i == ns: it.needs = {"W0": 0}
        if i == ns + 8*dbw: it.needs = {"W1": 0}
        mq.append(it)
    side = [It(W(lg="V0"), cost=0, gives="W0")] + [It(f"s_mov_b32 s{S_T0+qb}, {qb*131072}", cost=0) for qb in range(4)]
    side += [It(W(lg="all"), cost=0, gives="W1", needs={f"O{dbw-2}": 0})]
    vq = []
    aq = cfg.addq()
    for n_, sw in enumerate(("v_permlane32_swap_b32", "v_permlane16_swap_b32")):
        for q in aq: vq.append(It(f"v_mov_b32 v{LT+4+q}, v{V_LS+q}", gives=f"a{n_}{q}"))
        for q in aq: vq.append(It(f"{sw} v{LT+4+q}, v{V_LS+q}", cost=2, needs={f"a{n_}{q}": 2}, gives=f"b{n_}{q}"))
        for q in aq: vq.append(It(f"v_add_f32 v{V_LS+q}, v{V_LS+q}, v{LT+4+q}", needs={f"b{n_}{q}": 1}))
    for q in cfg.sumq: vq.append(It(f"v_accvgpr_read_b32 v{V_LS+q}, a{LA(q)}", needs={"SUM": 8}))
    for q in range(4): vq.append(It(f"v_rcp_f32 v{LT+2*q}, v{V_LS+q}", cost=2))
    vq += [It(f"v_add_f32 v{LT+8}, v{V_LS}, v{V_LS+1}"), It(f"v_add_f32 v{LT+9}, v{V_LS+2}, v{V_LS+3}"), It(f"v_add_f32 v{LT+8}, v{LT+8}, v{LT+9}"),
           It(f"s_mov_b32 s6, {hexf(2.0**64)}\nv_cmp_nle_f32 vcc, v{LT+8}, s6"),
           It(f"s_lshl_b32 s7, s{S_WAVE}, 2\ns_add_u32 s7, s7, {FLAGB}\nv_mov_b32 v{LT+10}, s7"), It(f"v_mov_b32 v{LT+11}, {FLAGB}"),
           It(f"s_cmp_lg_u64 vcc, 0\ns_cselect_b32 s6, 1, 0\nv_mov_b32 v{LT+9}, s6"), It(L(f"ds_write_b32 v{LT+10}, v{LT+9}", "F"))]
    n_ = 0
    for s_ in range(4):
        for qb in range(4):
            t = 64 + (n_ & 3)*8; o = 32 + (n_ & 7)*4; n_ += 1
            for h in range(2):
                for i in range(4): vq.append(It(f"v_accvgpr_read_b32 v{t+4*h+i}, a{O(2*s_+h,qb)+i}", needs={f"O{2*s_+h}": 8}))
            if n_ <= cfg.npk:
                for i in range(8): vq.append(It(f"v_mul_f32 v{t+i}, v{t+i}, v{LT+2*qb}"))
            else:
                for i in range(4): vq.append(It(f"v_pk_mul_f32 {vr(t+2*i,2)}, {vr(t+2*i,2)}, {vr(LT+2*qb,2)} op_sel_hi:[1,0]"))
            for d in range(4): vq.append(It(f"v_cvt_pk_bf16_f32 v{o+d}, v{t+2*d}, v{t+2*d+1}"))
            vq.append(It(V(f"buffer_store_dwordx4 {vr(o,4)}, v{V_L16}, {sr(S_O,4)}, s{S_T0+qb} offen offset:{s_*1024} {'sc1' if (n_ <= OPT.nsc1 or OPT.fa) else OPT.st1}", "OST"), cost=2))
    if not OPT.fa: k.vm = []
    merge(k, mq, vq, side)
    if OPT.fa:
        for j in range(OPT.na0, OPT.na0 + OPT.na1): k.run(a_w(j))
        assert OPT.na0 + OPT.na1 <= 14
        k(f"s_lshl_b32 s6, s5, 1\ns_bfe_u32 s7, s2, 0x10005\ns_add_u32 s6, s6, s7\ns_lshl_b32 s6, s6, 2\ns_add_u32 s63, s6, s{S_WAVE}")
        k(f"s_lshl_b32 s6, s63, 18\ns_and_b32 s7, s2, 3\ns_lshl_b32 s7, s7, 12\ns_add_u32 s6, s6, s7\ns_add_u32 s6, s6, 0x{WS_OF:x}")
        k(f"s_add_u32 s{S_X}, s54, s6\ns_addc_u32 s{S_X+1}, s55, 0\ns_mov_b32 s{S_X+2}, {2*131072}")
        k(f"s_lshl_b32 s6, s63, 15\ns_lshl_b32 s7, s7, 9\ns_add_u32 s6, s6, s7\ns_bfe_u32 s7, s2, 0x20003\ns_lshl_b32 s7, s7, 12\ns_add_u32 s6, s6, s7\ns_add_u32 s6, s6, 0x{WS_PART:x}")
        k(f"s_add_u32 s{S_W}, s54, s6\ns_addc_u32 s{S_W+1}, s55, 0\ns_mov_b32 s{S_W+2}, {16384+4096}")
        k.wait(vm="OST")
    k("s_waitcnt lgkmcnt(0)\ns_barrier")
    k(f"ds_read_b128 {vr(LT+12,4)}, v{LT+11}\ns_waitcnt lgkmcnt(0)")
    k(f"v_or_b32 v{LT+12}, v{LT+12}, v{LT+13}\nv_or3_b32 v{LT+12}, v{LT+12}, v{LT+14}, v{LT+15}\ns_nop 0")
    k(f"v_readfirstlane_b32 s6, v{LT+12}")
    k(f"s_andn2_b32 s6, s6, s{S_RERUN}\ns_cmp_lg_u32 s6, 0\ns_cbranch_scc1 k1_fallback")
    if OPT.fa:
        k.stamp(6) if not cfg.fine else k.stamp(3)
        k.srd(S_K, 54, 32768, WS_FLAG)
        k(f"s_and_b32 s6, s2, 7\ns_lshl_b32 s6, s6, 2\ns_lshr_b32 s7, s2, 6\ns_add_u32 s6, s6, s7\ns_lshl_b32 s63, s6, 10\ns_bfe_u32 s7, s2, 0x30003")
        k(f"v_lshlrev_b32 v2, 3, v{V_L16}\ns_lshl_b32 s6, s7, 2\nv_add_u32 v2, s6, v2\nv_mov_b32 v3, 1")
        k(f"s_cmp_eq_u32 s{S_WAVE}, 1\ns_cbranch_scc0 k1_nf\ns_mov_b64 exec, 0xff")
        k(f"buffer_store_dword v3, v2, {sr(S_K,4)}, s63 offen sc1\ns_mov_b64 exec, -1")
        k("k1_nf:")
        V_W0 = 32
        for t in range(8): k(f"v_add_u32 v{V_W0+t}, {-VB & 0xffffffff}, v{V_VA+t}")
        k(f"v_bfe_u32 v2, v{V_L16}, 4, 3\nv_lshlrev_b32 v2, 2, v2\ns_lshl_b32 s6, s7, 7\nv_add_u32 v2, s6, v2")
        k("s_cmp_ge_u32 s2, 2\ns_cbranch_scc1 k1_nomod")
        k.srd(S_V, 54, 4*12288, WS_MODP)
        k.srd(S_O, 54, 12288, WS_MOD)
        k("v_lshlrev_b32 v4, 4, v0\ns_add_u32 s6, s2, 1\ns_lshl_b32 s6, s6, 12")
        mod_loads(k, S_V, 4, S_T0, 64, "s6")
        k(f"s_lshl_b32 s{S_CNT}, s2, 1\ns_cmp_lt_u32 s{S_WAVE}, s{S_CNT}\ns_cselect_b32 s{S_CNT}, 1.0, 0\ns_waitcnt vmcnt(0)")
        mod_finish(k, 64, S_CNT)
        k(f"buffer_store_dwordx4 v[64:67], v4, {sr(S_O,4)}, s6 offen sc1")
        k("k1_nomod:")
        for j in range(OPT.na0 + OPT.na1, 16): k.run(a_w(j))
        k(f"s_cmp_eq_u32 s{S_WAVE}, 0\ns_cbranch_scc0 k1_np\ns_mov_b32 s7, 0")
        k("k1_poll:")
        k(f"buffer_load_dword v3, v2, {sr(S_K,4)}, s63 offen sc1\ns_waitcnt vmcnt(0)\nv_cmp_ne_u32 vcc, 1, v3")
        k("s_cbranch_vccz k1_np\ns_add_u32 s7, s7, 1\ns_cmp_lt_u32 s7, 0x10000\ns_cbranch_scc1 k1_poll")
        k("k1_np:")
        k("s_waitcnt vmcnt(0)\ns_barrier")
        k.vm = []; k.lg = []
        if cfg.fine == 2: k.stamp(4); k("s_waitcnt lgkmcnt(0)")
        AC = lambda t, tb: 64 + (t*2+tb)*4
        AWF = lambda j, t: 128 + ((j&3)*8+t)*4
        ABF = lambda j, tb: (j*2+tb)*4
        def a_b(j):
            return [[f"s_mov_b32 s{S_T0+tb}, {tb*131072 + (j>>2)*16384}",
                     V(f"buffer_load_dwordx4 {ar(ABF(j,tb),4)}, v{V_L16}, {sr(S_X,4)}, s{S_T0+tb} offen offset:{(j&3)*1024} sc1", f"AB{j}")] for tb in range(2)]
        def a_reads(p):
            r = []
            for t in range(8):
                for j in (2*p, 2*p+1):
                    base = (j % 16)*8192; off = base & 0xffff
                    r += [L(f"ds_read_b64_tr_b16 {vr(AWF(j,t)+2*h,2)}, v{(V_VA if base >> 16 else V_W0)+t} offset:{off + h*4096}", f"R{p}_{t}") for h in range(2)]
            return r
        nb = OPT.nb0
        for j in range(nb): k.run(a_b(j))
        k.run(a_reads(0))
        nw = 16
        for p in range(16):
            mf = []; n_ = 0
            for t in range(8):
                for tb_ in range(2):
                    tb = tb_ if t % 2 == 0 else 1 - tb_
                    d = vr(AC(t, tb), 4)
                    for i, j in enumerate((2*p, 2*p+1) if n_ % 2 == 0 else (2*p+1, 2*p)):
                        mf.append(f"{MF} {d}, {vr(AWF(j,t),4)}, {ar(ABF(j,tb),4)}, {d if (p or i) else '0'}")
                    n_ += 1
            vm = []
            for _ in range(OPT.nbs):
                wok = nw < 32 and p >= (nw-16)//2 + 2
                if wok and (nb >= 32 or nw//2 - 1 - OPT.wlead <= nb//2): vm += a_w(nw); nw += 1
                elif nb < 32: vm += a_b(nb); nb += 1
            rd = a_reads(p+1) if p < 15 else []
            if OPT.ax == 1: rd = []
            if OPT.ax == 2: vm = []
            if OPT.ax == 3: rd = rd[:24]
            if OPT.ax == 4: vm = [x for x in vm if "m0" in x[0]]
            if OPT.amix:
                gaps = fill(32, [], [], vm, g0=1)
                fr = [g for g in range(1, 31) if g not in gaps]
                for i, g in enumerate(fr):
                    c = (len(rd) + len(fr) - i - 1)//(len(fr) - i) if (i % 2 == 0 or len(rd) >= 2*(len(fr)-i)) else len(rd)//(len(fr) - i)
                    for _ in range(c): add(gaps, g, rd.pop(0))
                assert not rd
            else:
                gaps = fill(32, rd, [], vm, g0=1, pair_lds=True)
            add(gaps, -1, W(vm=f"AB{2*p+1}", lg=f"R{p}_3"))
            front(gaps, 12, W(lg=f"R{p}_7"))
            if 1 <= p < 15 and not OPT.anob: front(gaps, 0, W(vm=f"AW{2*p+3}", barrier=True))
            emit(k, mf, gaps)
            if cfg.fine == 2 and p == 1: k.stamp(5); k("s_waitcnt lgkmcnt(0)"); k.lg = []
        if cfg.fine == 2: k.stamp(6)
        assert nb == 32 and nw == 32
        k(f"s_mov_b32 s{S_T0}, 0\ns_mov_b32 s{S_T0+1}, 16384")
        n_ = 0
        for ns_ in range(4):
            for tb in range(2):
                o = 128 + n_*4; n_ += 1
                for h in range(2):
                    a = AC(2*ns_+h, tb)
                    k(f"v_cvt_pk_bf16_f32 v{o+2*h}, v{a}, v{a+1}\nv_cvt_pk_bf16_f32 v{o+2*h+1}, v{a+2}, v{a+3}")
                k(f"buffer_store_dwordx4 {vr(o,4)}, v{V_L16}, {sr(S_W,4)}, s{S_T0+tb} offen offset:{ns_*1024} sc1")
    k.dbg_mark(3, 100, 101, True); k.dbg_mark(4, 102, 103)
    if prof:
        k.stamp(6) if not (cfg.fine or OPT.fa) else None
        k("s_waitcnt vmcnt(0)")
        k.stamp(7) if cfg.fine != 1 else None
        k.dump_stamps(8, 54, 100)
    k(f"{end}:")
    k("s_endpgm")
    k("k1_fallback:")
    k(f"s_mov_b32 s{S_RERUN}, 1")
    k("v_and_b32 v2, 63, v0\nv_lshrrev_b32 v3, 4, v2\nv_and_b32 v4, 15, v2")
    k("v_lshlrev_b32 v5, 8, v4\nv_lshl_add_u32 v5, v3, 4, v5")
    for q in range(4): k(f"v_mov_b32 v{V_T+q}, 0xff800000")
    k("s_mov_b32 s6, 0")
    k("k1_fb_loop:")
    for s in range(4): k(f"buffer_load_dwordx4 {ar(KF(s),4)}, v5, {sr(S_K,4)}, s6 offen offset:{64*s}")
    k("s_waitcnt vmcnt(0)")
    for s in range(4):
        for qb in range(4):
            d = vr(S(0,0,qb),4)
            k(f"{MF} {d}, {ar(KF(s),4)}, {vr(Q(qb,s),4)}, {d if s else '0'}")
    k("s_nop 15")
    for qb in range(4):
        a = S(0,0,qb)
        k(f"v_max3_f32 v{V_T+qb}, v{V_T+qb}, v{a}, v{a+1}")
        k(f"v_max3_f32 v{V_T+qb}, v{V_T+qb}, v{a+2}, v{a+3}")
    k("s_add_u32 s6, s6, 4096\ns_cmp_lt_u32 s6, 0x80000\ns_cbranch_scc1 k1_fb_loop")
    rowmax_cross(k, [V_T+q for q in range(4)], V_T+4)
    for x in pfv: k(x)
    for qb in range(4):
        k(f"v_mov_b32 v{V_LS+qb}, 0")
        for i in range(4): k(f"v_sub_f32 v{MN(qb)+i}, 0, v{V_T+qb}")
    k("s_barrier")
    k.vm = []; k.lg = []
    for wh, t in (('K',0),('K',1),('V',0),('K',2),('V',1),('K',3)): run(kv_group(wh, t))
    k.wait(vm="V0", barrier=True)
    run(kreads(0, 0, HK(0))); k("s_waitcnt lgkmcnt(0)"); run(kreads(0, 1, HK(1)))
    for m in qk_mfmas(0, HK(0)): k(m)
    k("s_waitcnt lgkmcnt(0)\ns_barrier")
    run(kreads(1, 0))
    for m in qk_mfmas(1, HK(1)): k(m)
    merge(k, [], sm0([0, 1, 2, 3], sub=False))
    k(loopinit)
    k("s_branch k1_first")
    return k
```

```python
from common import *
from sched import *
from k0 import mod_loads, mod_finish
MF = "v_mfma_f32_16x16x32_bf16"

TOP = 147456
SCR = TOP + 8192
S_WAVE, S_TT, S_M = 3, 4, 5
S_A, S_B, S_C, S_D, S_E, S_FL = 8, 12, 16, 20, 24, 28
S_W1, S_X0, S_T0 = 32, 33, 36
V_L16 = 10

def st(k, name):
    names = OPT.kts.split(',')
    if name in names: k.stamp(1 + names.index(name))

def handoff_signal(k, ph, keep=0):
    lab = f"kt_h{ph}"
    rep = OPT.rep
    k(f"s_lshl_b32 s6, s{S_TT}, 11\ns_add_u32 s6, s6, {ph*32768}")
    k(f"v_and_b32 v252, 15, v0\nv_lshlrev_b32 v253, 7, v252\nv_lshlrev_b32 v252, 2, v252\ns_lshl_b32 s7, s{S_M}, 2\nv_add_u32 v253, s7, v253\nv_mov_b32 v254, 1")
    if rep > 1:
        k(f"s_lshr_b32 s7, s{S_M}, {2 if rep == 4 else 0}\ns_lshl_b32 s7, s7, 7\nv_add_u32 v252, s7, v252")
    st(k, f"s{ph}")
    k(f"s_waitcnt vmcnt({keep})\ns_barrier")
    st(k, f"x{ph}")
    k(f"s_cmp_eq_u32 s{S_WAVE}, {1 if OPT.pdelay >= 0 else 0}\ns_cbranch_scc0 {lab}_a")
    k(f"s_mov_b64 exec, {(1 << rep) - 1}")
    k(f"buffer_store_dword v254, v253, {sr(S_FL,4)}, s6 offen {OPT.fst}\ns_mov_b64 exec, -1")
    k(f"{lab}_a:")
    k(f"s_cmp_eq_u32 s{S_WAVE}, 0\ns_cbranch_scc0 {lab}_c")
    k("s_mov_b32 s7, 0")
    if OPT.pdelay > 0: k(f"s_sleep {OPT.pdelay}")
    if OPT.pdelay < 0: k("s_waitcnt vmcnt(0)")
    k(f"{lab}_b:")
    k(f"buffer_load_dword v248, v252, {sr(S_FL,4)}, s6 offen {OPT.fld}\ns_waitcnt vmcnt(0)\nv_cmp_ne_u32 vcc, 1, v248")
    k(f"s_cbranch_vccz {lab}_c")
    if OPT.psleep: k(f"s_sleep {OPT.psleep}")
    k(f"s_add_u32 s7, s7, 1\ns_cmp_lt_u32 s7, 0x10000\ns_cbranch_scc1 {lab}_b")
    k(f"{lab}_c:")
    k("s_barrier")
    st(k, f"y{ph}")

def gen_kt(prof=False):
    k = Kern("k2_tail_kernel", 256, 512, 160*1024, 256, 256, 96 if prof else 64)
    k.prof = prof
    end = "kt_end"
    k(f"s_cmp_ge_u32 s2, 256\ns_cbranch_scc1 {end}")
    k.stamp(0)
    k.dbg_begin(2)
    k(f"s_load_dwordx2 s[52:53], s[0:1], {KA_WO}")
    k(f"s_load_dwordx2 s[54:55], s[0:1], {KA_WS}")
    k(f"s_load_dwordx4 s[48:51], s[0:1], {KA_WG}")
    k(f"s_load_dwordx2 s[56:57], s[0:1], {KA_WD}")
    k(f"s_load_dwordx2 s[58:59], s[0:1], {KA_OUT}")
    k(f"s_load_dwordx2 s[46:47], s[0:1], {KA_X}")
    k("v_lshrrev_b32 v1, 6, v0\nv_and_b32 v2, 63, v0")
    k(f"v_readfirstlane_b32 s{S_WAVE}, v1")
    k(f"s_bfe_u32 s{S_TT}, s2, 0x10002\ns_lshl_b32 s{S_TT}, s{S_TT}, 3\ns_bfe_u32 s6, s2, 0x30003\ns_add_u32 s{S_TT}, s{S_TT}, s6")
    k(f"s_and_b32 s{S_M}, s2, 3\ns_lshl_b32 s{S_M}, s{S_M}, 2\ns_lshr_b32 s6, s2, 6\ns_add_u32 s{S_M}, s{S_M}, s6")
    k("v_lshrrev_b32 v3, 4, v2\nv_and_b32 v4, 15, v2")
    k(f"v_lshlrev_b32 v{V_L16}, 4, v2")
    k(f"s_cmp_lt_u32 s{S_WAVE}, 4\ns_cbranch_scc1 kt_compute")

    A_STG, A_NSL, A_NK = 16384, 8, 32
    C_W, C_NW, C_B, C_NB, C_NK = 12288, OPT.cnw, 8192, OPT.cnb, 16
    C_BB = C_W*C_NW
    assert C_BB + C_B*C_NB <= TOP
    D_W, D_NW, D_B, D_NB, D_NK, D_NS = 8192, OPT.dnw, 8192, OPT.dnb, 43, 22
    D_BB = D_W*D_NW
    assert D_BB + D_B*D_NB <= TOP
    def d_last(i):
        sl = {(i*D_W)//C_W, (i*D_W + D_W - 1)//C_W}
        return max(max(x for x in range(C_NK) if x % C_NW == s_) if s_ < C_NW else C_NK for s_ in sl)
    DPERM = sorted(range(D_NW), key=lambda i: (d_last(i), i))

    k(f"v_and_b32 v1, 3, v1\ns_and_b32 s{S_WAVE}, s{S_WAVE}, 3\ns_lshl_b32 s{S_W1}, s{S_WAVE}, 10")
    V_DA, V_DC, V_DD = 16, 17, 20
    k("v_lshl_add_u32 v7, v1, 2, v3\nv_and_b32 v11, 7, v7\nv_lshlrev_b32 v11, 1, v11\nv_xor_b32 v11, v11, v4\nv_lshlrev_b32 v7, 10, v7")
    k(f"v_lshl_add_u32 v{V_DA}, v11, 4, v7")
    k(f"s_lshr_b32 s6, s{S_M}, 2\ns_lshl_b32 s7, s6, 17\ns_and_b32 s33, s{S_M}, 3\ns_lshl_b32 s33, s33, 8\ns_add_u32 s7, s7, s33")
    k(f"s_lshl_b32 s33, s{S_TT}, 3\ns_add_u32 s33, s33, s{S_WAVE}")
    k(f"s_lshl_b32 s34, s33, 17\ns_lshl_b32 s6, s6, 12\ns_add_u32 s34, s34, s6\ns_add_u32 s34, s34, 0x{WS_OF:x}")
    k("s_waitcnt lgkmcnt(0)")
    k(f"s_add_u32 s{S_A}, s52, s7\ns_addc_u32 s{S_A+1}, s53, 0\ns_sub_u32 s{S_A+2}, {4096*1024}, s7\ns_mov_b32 s{S_A+3}, 0x20000")
    k(f"s_add_u32 s{S_B}, s54, s34\ns_addc_u32 s{S_B+1}, s55, 0\ns_mov_b32 s{S_B+2}, {5*131072}\ns_mov_b32 s{S_B+3}, 0x20000")
    def a_step(j):
        for p in range(2):
            k(f"s_add_u32 m0, s{S_W1}, {(j % A_NSL)*A_STG + p*4096}\ns_mov_b32 s{S_T0}, {((j>>2)*512 + (j&3)*32 + p*16)*1024}")
            k.vmop(f"buffer_load_dwordx4 v{V_DA}, {sr(S_A,4)}, s{S_T0} offen lds", f"S{j}")
            k(f"s_add_u32 m0, s{S_W1}, {(j % A_NSL)*A_STG + 8192 + p*4096}\ns_mov_b32 s{S_T0+1}, {p*4*131072 + (j>>2)*16384 + (j&3)*1024}")
            k.vmop(f"buffer_load_dwordx4 v{V_L16}, {sr(S_B,4)}, s{S_T0+1} offen {OPT.ont} lds", f"S{j}")
    if OPT.fa:
        k.srd(S_E, 54, 12288, WS_MOD)
        for i in range(2):
            k(f"s_add_u32 m0, s{S_W1}, {TOP + i*4096}\ns_add_u32 s{S_T0}, s{S_W1}, {4096 + i*4096}")
            k.vmop(f"buffer_load_dwordx4 v{V_L16}, {sr(S_E,4)}, s{S_T0} offen lds", "M1")
    elif OPT.achain:
        nxt = OPT.a0n
        for j in range(nxt): a_step(j)
        k.wait(vm="S1", barrier=True)
        for p in range(A_NK//2 - 1):
            while nxt < min(A_NK, 2*p + 6): a_step(nxt); nxt += 1
            if p == A_NK//2 - 2 and OPT.modk1:
                k.srd(S_E, 54, 12288, WS_MOD)
                for i in range(2):
                    k(f"s_add_u32 m0, s{S_W1}, {TOP + i*4096}\ns_add_u32 s{S_T0}, s{S_W1}, {4096 + i*4096}")
                    k.vmop(f"buffer_load_dwordx4 v{V_L16}, {sr(S_E,4)}, s{S_T0} offen lds", "M1")
            elif p == A_NK//2 - 2:
                k.srd(S_E, 54, 4*12288, WS_MODP)
                k("v_and_b32 v30, 255, v0\nv_lshlrev_b32 v30, 4, v30")
                mod_loads(k, S_E, 30, S_T0, 32, 4096, "M0")
                mod_loads(k, S_E, 30, S_T0+4, 48, 8192, "M1")
            k.wait(vm=f"S{2*p+3}", barrier=True)
    else:
        a_step(0); a_step(1)
        k.wait(vm="S0", barrier=True)
        a_step(2); a_step(3)
        k.wait(vm="S1", barrier=True)
        nxt = 4
        for j in range(1, A_NK-1, 2):
            for _ in range(2):
                if nxt < A_NK: a_step(nxt); nxt += 1
            if j == A_NK-3:
                k.srd(S_E, 54, 4*12288, WS_MODP)
                k("v_and_b32 v30, 255, v0\nv_lshlrev_b32 v30, 4, v30")
                mod_loads(k, S_E, 30, S_T0, 32, 4096, "M0")
                mod_loads(k, S_E, 30, S_T0+4, 48, 8192, "M1")
            k.wait(vm=f"S{j+2}", barrier=True)
    k("v_and_b32 v7, 1, v1\nv_lshlrev_b32 v7, 4, v7")
    for p in range(3):
        k(f"v_add_u32 v12, {64*p}, v2")
        k("v_mul_u32_u24 v13, 0x5556, v12\nv_lshrrev_b32 v13, 18, v13")
        k("v_mul_u32_u24 v14, 12, v13\nv_sub_u32 v14, v12, v14")
        k("v_lshrrev_b32 v15, 1, v13\nv_and_b32 v15, 2, v15\nv_xor_b32 v14, v14, v15")
        k("v_add_u32 v13, v13, v7\nv_mul_u32_u24 v13, 2752, v13")
        k(f"v_lshl_add_u32 v{V_DC+p}, v14, 4, v13")
        if p: k(f"v_subrev_u32 v{V_DC+p}, {1024*p}, v{V_DC+p}")
    k("v_lshrrev_b32 v7, 3, v2\nv_and_b32 v12, 7, v2\nv_lshlrev_b32 v11, 1, v7\nv_and_b32 v11, 4, v11\nv_xor_b32 v12, v12, v11")
    k(f"v_lshlrev_b32 v7, 10, v7\nv_lshl_add_u32 v{V_DD}, v12, 4, v7")
    k(f"s_mul_i32 s35, s{S_WAVE}, 3072\ns_mul_i32 s7, s{S_M}, 192")
    k(f"s_cmp_lt_u32 s{S_WAVE}, 2\ns_cselect_b64 s[{S_A}:{S_A+1}], s[48:49], s[50:51]")
    k(f"s_add_u32 s{S_A}, s{S_A}, s7\ns_addc_u32 s{S_A+1}, s{S_A+1}, 0\ns_sub_u32 s{S_A+2}, {512*2752}, s7")
    k(f"s_lshl_b32 s34, s33, 14\ns_add_u32 s34, s34, 0x{WS_H2:x}")
    k(f"s_add_u32 s{S_B}, s54, s34\ns_addc_u32 s{S_B+1}, s55, 0\ns_mov_b32 s{S_B+2}, {5*16384}")
    k(f"s_and_b32 s6, s{S_M}, 7\ns_lshl_b32 s6, s6, 7\ns_lshl_b32 s7, s{S_WAVE}, 13\ns_add_u32 s6, s6, s7")
    k(f"s_add_u32 s{S_C}, s56, s6\ns_addc_u32 s{S_C+1}, s57, 0\ns_sub_u32 s{S_C+2}, {1376*1024}, s6\ns_mov_b32 s{S_C+3}, 0x20000")
    k(f"s_lshr_b32 s6, s{S_M}, 3\ns_lshl_b32 s6, s6, 2\ns_add_u32 s6, s6, s33\ns_mul_i32 s6, s6, {43*1024}\ns_add_u32 s6, s6, 0x{WS_HF:x}")
    k(f"s_add_u32 s{S_D}, s54, s6\ns_addc_u32 s{S_D+1}, s55, 0\ns_mov_b32 s{S_D+2}, {43*1024}\ns_mov_b32 s{S_D+3}, 0x20000")
    k(f"s_mov_b32 s6, 0\ns_cmp_lt_u32 s{S_WAVE}, 2\ns_cselect_b32 s7, 1.0, 0" + ("" if (OPT.fa or OPT.modk1) else f"\nv_add_u32 v30, {TOP}, v30"))
    k.wait(vm="M1")
    if not (OPT.fa or OPT.modk1):
        mod_finish(k, 32, 6); mod_finish(k, 48, 7)
        k("ds_write_b128 v30, v[32:35]\nds_write_b128 v30, v[48:51] offset:4096\ns_waitcnt lgkmcnt(0)")
    def c_w(j):
        k(f"s_add_u32 m0, s35, {(j % C_NW)*C_W}\ns_mov_b32 s{S_T0}, {j*32*2752}")
        for p in range(3): k.vmop(f"buffer_load_dwordx4 v{V_DC+p}, {sr(S_A,4)}, s{S_T0} offen offset:{p*1024} lds", f"CW{j}")
    def c_b(j):
        for p in range(2):
            k(f"s_add_u32 m0, s{S_W1}, {C_BB + (j % C_NB)*C_B + p*4096}\ns_mov_b32 s{S_T0+1}, {p*65536 + j*1024}")
            k.vmop(f"buffer_load_dwordx4 v{V_L16}, {sr(S_B,4)}, s{S_T0+1} offen sc1 lds", f"CB{j}")
    def d_w(g):
        for i in range(2):
            j = 2*g + i
            if j >= D_NK: break
            k(f"s_add_u32 m0, s{S_W1}, {DPERM[g % D_NW]*D_W + i*4096}\ns_mov_b32 s{S_T0}, {j*32*1024}")
            k.vmop(f"buffer_load_dwordx4 v{V_DD}, {sr(S_C,4)}, s{S_T0} offen lds", f"DW{g}")
    def d_b(g):
        for i in range(2):
            j = 2*g + i
            if j >= D_NK: break
            k(f"s_add_u32 m0, s{S_W1}, {D_BB + (g % D_NB)*D_B + i*4096}\ns_mov_b32 s{S_T0+1}, {j*1024}")
            k.vmop(f"buffer_load_dwordx4 v{V_L16}, {sr(S_D,4)}, s{S_T0+1} offen sc1 lds", f"DB{g}")
    def ring(n, nw, nb, fw, fb, tw, tb, lag, nW, hook=None):
        nB = min(nb, n)
        for j in range(nB):
            if nW <= j: fw(nW); nW += 1
            fb(j)
        k.wait(vm=f"{tb}0", barrier=True)
        for j in range(n-1):
            order = []
            if nB < n and nB - nb <= j - lag: order.append('B')
            if nW < n and nW - nw <= j - 2: order.append('W')
            for o in order:
                if o == 'B': fb(nB); nB += 1
                else: fw(nW); nW += 1
            assert nB > j + 1 and nW > j + 1, (j, nB, nW)
            if hook: hook(j)
            k.wait(vm=f"{tw}{j+1}"); k.wait(vm=f"{tb}{j+1}", barrier=True)
    pre = [int(c) for c in ((OPT.cpre5 if (OPT.fa or OPT.ln1) else OPT.cpre) if not (OPT.fa and OPT.ln1) else OPT.cpre4)]
    assert sum(pre) <= C_NW and pre[0] <= 6
    k(f"s_cmp_eq_u32 s{S_M}, 15\ns_cbranch_scc1 kt_l15")
    nw_ = 0
    for n_ in pre:
        for _ in range(n_): c_w(nw_); nw_ += 1
        k("s_barrier")
    early = [0]
    def hook(j):
        while early[0] < OPT.dearly:
            g = early[0]
            if d_last(DPERM[g]) > j - 1: break
            d_w(g); early[0] += 1
    ring(C_NK, C_NW, C_NB, c_w, c_b, "CW", "CB", 1, nw_, hook)
    assert early[0] == OPT.dearly
    k("s_barrier")
    k("s_branch kt_l_d")
    k("kt_l15:")
    k("\n".join(["s_barrier"]*len(pre)))
    for g in range(OPT.dearly): d_w(g)
    k("kt_l_d:")
    k.vm = []
    for g in range(OPT.dearly, OPT.dpre): d_w(g)
    k("s_barrier")
    for g in range(max(OPT.dpre, OPT.dearly), OPT.dpre + OPT.dmid): d_w(g)
    k("s_barrier")
    assert OPT.dpre + OPT.dmid <= D_NW
    ring(D_NS, D_NW, D_NB, d_w, d_b, "DW", "DB", 2, OPT.dpre + OPT.dmid)
    k("s_endpgm")

    k("kt_compute:")
    k.vm = []
    k("v_lshrrev_b32 v5, 2, v4\nv_and_b32 v6, 3, v2")
    ACC = lambda t, tb: 64 + (t*4+tb)*4
    WF = lambda buf, t: 128 + (buf*4+t)*4
    BF = lambda buf, tb: 160 + (buf*4+tb)*4
    V_WA, V_BA = 16, 24
    k("v_lshl_add_u32 v7, v3, 2, v5\nv_and_b32 v11, 7, v7\nv_lshlrev_b32 v7, 8, v7\nv_lshl_add_u32 v7, v6, 3, v7")
    k("v_lshlrev_b32 v13, 1, v1\nv_and_b32 v13, 4, v13\nv_xor_b32 v11, v11, v13")
    for t in range(4):
        k(f"v_xor_b32 v12, {t}, v11\nv_lshl_add_u32 v{V_WA+t}, v12, 5, v7\nv_add_u32 v{V_WA+4+t}, 0x10000, v{V_WA+t}")
    k(f"v_and_b32 v13, 1, v1\nv_lshl_add_u32 v{V_BA}, v13, 12, v{V_L16}\nv_add_u32 v{V_BA+1}, 0x10000, v{V_BA}")
    k(f"s_lshr_b32 s7, s{S_M}, 2\ns_lshl_b32 s7, s7, 21\ns_lshl_b32 s6, s{S_TT}, 17\ns_add_u32 s7, s7, s6\ns_and_b32 s6, s{S_M}, 3\ns_lshl_b32 s6, s6, 12\ns_add_u32 s7, s7, s6")
    k(f"s_and_b32 s6, s{S_WAVE}, 1\ns_lshl_b32 s6, s6, 16\ns_add_u32 s7, s7, s6\ns_lshr_b32 s6, s{S_WAVE}, 1\ns_lshl_b32 s6, s6, 11\ns_add_u32 s7, s7, s6\ns_add_u32 s7, s7, 0x{WS_PART:x}")
    VB4, VB5, VB6, VB7, VB8 = 26, 27, 28, 29, 30
    k("v_and_b32 v12, 7, v0\nv_bfe_u32 v13, v0, 3, 2\nv_lshrrev_b32 v14, 5, v0")
    k(f"v_lshlrev_b32 v{VB4}, 10, v14\nv_lshl_add_u32 v{VB4}, v13, 8, v{VB4}\nv_lshl_add_u32 v{VB4}, v12, 4, v{VB4}")
    k(f"v_lshlrev_b32 v{VB5}, 10, v12\nv_lshl_add_u32 v{VB5}, v14, 6, v{VB5}\nv_lshl_add_u32 v{VB5}, v13, 3, v{VB5}")
    k(f"v_lshlrev_b32 v{VB6}, 7, v14\nv_lshl_add_u32 v{VB6}, v13, 4, v{VB6}\nv_add_u32 v{VB6}, {TOP}, v{VB6}")
    k(f"v_lshlrev_b32 v{VB7}, 4, v12\nv_add_u32 v{VB7}, {SCR}, v{VB7}\nv_lshl_add_u32 v{VB8}, v1, 2, v{VB7}")
    k(f"s_lshl_b32 s33, s{S_TT}, 4\ns_add_u32 s33, s33, s{S_M}\ns_lshr_b32 s34, s33, 1\ns_lshl_b32 s34, s34, 14\ns_and_b32 s6, s33, 1\ns_lshl_b32 s6, s6, 7\ns_add_u32 s34, s34, s6\ns_lshl_b32 s33, s33, 13")
    k("s_waitcnt lgkmcnt(0)")
    k(f"s_add_u32 s{S_A}, s54, s7\ns_addc_u32 s{S_A+1}, s55, 0\ns_mov_b32 s{S_A+2}, {3*16384+2048}\ns_mov_b32 s{S_A+3}, 0x20000")
    k.srd(S_FL, 54, 3*32768, WS_FLAG)
    k.srd(S_B, 46, 2048*1024)
    k.srd(S_C, 54, 4*2048*1024, WS_PART)
    k.srd(S_D, 54, 2048*1024, WS_H2)
    k.srd(S_E, 54, 2048*1024, WS_X1)
    def a_reads(j):
        base = (j % A_NSL)*A_STG; bank = base >> 16; off = base & 0xffff
        w = [[L(f"ds_read_b64_tr_b16 {vr(WF(j&1,t)+2*h,2)}, v{V_WA+4*bank+t} offset:{off + h*4096}", f"R{j}_{t}") for h in range(2)] for t in range(4)]
        b = [L(f"ds_read_b128 {vr(BF(j&1,tb),4)}, v{V_BA+bank} offset:{off + 8192 + tb*1024}", f"R{j}_0") for tb in range(4)]
        return b + w[0] + w[1] + w[2] + w[3]
    XR = 56
    if OPT.fa:
        pass
    elif OPT.achain:
        WF2 = lambda j, t: 128 + ((j&3)*4+t)*4
        BF2 = lambda j, tb: 192 + ((j&3)*4+tb)*4
        def p_reads(p):
            r = []
            for j in (2*p, 2*p+1):
                base = (j % A_NSL)*A_STG; bank = base >> 16; off = base & 0xffff
                r += [L(f"ds_read_b128 {vr(BF2(j,tb),4)}, v{V_BA+bank} offset:{off + 8192 + tb*1024}", f"R{p}_0") for tb in range(4)]
            for t in range(4):
                for j in (2*p, 2*p+1):
                    base = (j % A_NSL)*A_STG; bank = base >> 16; off = base & 0xffff
                    r += [L(f"ds_read_b64_tr_b16 {vr(WF2(j,t)+2*h,2)}, v{V_WA+4*bank+t} offset:{off + h*4096}", f"R{p}_{t}") for h in range(2)]
            return r
        k("s_barrier")
        st(k, "a0")
        if "a0" in OPT.kts: k("s_waitcnt lgkmcnt(0)")
        k.run(p_reads(0))
        for p in range(A_NK//2):
            mf = []; n_ = 0
            for t in range(4):
                for tb_ in range(4):
                    tb = tb_ if t % 2 == 0 else 3 - tb_
                    d = vr(ACC(t, tb), 4)
                    for i, j in enumerate((2*p, 2*p+1) if n_ % 2 == 0 else (2*p+1, 2*p)):
                        mf.append(f"{MF} {d}, {vr(WF2(j,t),4)}, {vr(BF2(j,tb),4)}, {d if (p or i) else '0'}")
                    n_ += 1
            last = p == A_NK//2 - 1
            if last and OPT.mrg:
                k.wait(lg=f"R{p}_3")
                mq = []; vq = []; n_ = 0
                for ns in range(2):
                    for tb_ in range(4):
                        tb = tb_ if ns == 0 else 3 - tb_
                        o = 128 + n_*4
                        for h_ in range(2):
                            h = h_ if n_ % 2 == 0 else 1 - h_
                            t = 2*ns + h; d = vr(ACC(t, tb), 4); a = ACC(t, tb)
                            for i, j in enumerate((2*p, 2*p+1) if h_ == 0 else (2*p+1, 2*p)):
                                mq.append(It(f"{MF} {d}, {vr(WF2(j,t),4)}, {vr(BF2(j,tb),4)}, {d}", gives=f"D{t}{tb}" if i else None))
                            vq += [It(f"v_cvt_pk_bf16_f32 v{o+2*h+e}, v{a+2*e}, v{a+2*e+1}", needs={f"D{t}{tb}": 8}) for e in range(2)]
                        vq.append(It(f"buffer_store_dwordx4 {vr(o,4)}, v{V_L16}, {sr(S_A,4)}, s{S_T0+tb} offen offset:{ns*1024} sc1", cost=2))
                        n_ += 1
                side = [It(f"s_mov_b32 s{S_T0+2*pc+h}, {(2*pc+h)*16384}\nbuffer_load_dwordx2 {vr(XR+pc*4+h*2,2)}, v{VB5}, {sr(S_B,4)}, s33 offen offset:{pc*512+h*32}", cost=2) for pc in range(2) for h in range(2)]
                if OPT.xlate == 2:
                    side = [It(x.text.split("\n")[0], cost=0) for x in side]
                if OPT.xlate == 1:
                    vq += [It(x.text.split("\n")[1], cost=2) for x in side]
                    side = [It(x.text.split("\n")[0], cost=0) for x in side]
                merge(k, mq, vq, side)
                break
            vm = [[f"buffer_load_dwordx2 {vr(XR+pc*4+h*2,2)}, v{VB5}, {sr(S_B,4)}, s33 offen offset:{pc*512+h*32}"] for pc in range(2) for h in range(2)] if (last or (OPT.xlate == 2 and p == OPT.xp)) else []
            gaps = fill(32, [] if last else p_reads(p+1), [], vm, g0=1, vm_pos=[26, 27, 28, 29] if not last else None)
            if p == 0:
                add(gaps, -1, W(lg=f"R{p}_0")); front(gaps, 6, W(lg=f"R{p}_1")); front(gaps, 14, W(lg=f"R{p}_3"))
            else:
                add(gaps, -1, W(lg=f"R{p}_3"))
            if not last: front(gaps, 0, "s_barrier")
            if OPT.slowa and OPT.slow0 <= p < OPT.slown: add(gaps, 31, f"s_sleep {OPT.slowa}")
            emit(k, mf, gaps)
    else:
        k("s_barrier")
        k.run(a_reads(0))
        for j in range(A_NK):
            mf = []
            for t in range(4):
                for tb_ in range(4):
                    tb = tb_ if t % 2 == 0 else 3 - tb_
                    d = vr(ACC(t, tb), 4)
                    mf.append(f"{MF} {d}, {vr(WF(j&1,t),4)}, {vr(BF(j&1,tb),4)}, {d if j else '0'}")
            lds = a_reads(j+1) if j < A_NK-1 else []
            vm = []
            if j == A_NK-1:
                vm = [[f"buffer_load_dwordx2 {vr(XR+pc*4+h*2,2)}, v{VB5}, {sr(S_B,4)}, s33 offen offset:{pc*512+h*32}"] for pc in range(2) for h in range(2)]
            gaps = fill(16, lds, [], vm, g0=1)
            add(gaps, -1, W(lg=f"R{j}_1"))
            if j < A_NK-1 and (j < 2 or j % 2 == 1): front(gaps, 0, "s_barrier")
            front(gaps, 6, W(lg=f"R{j}_3"))
            if OPT.slowa and j < OPT.slown: add(gaps, 15, f"s_sleep {OPT.slowa}")
            emit(k, mf, gaps)
    PR, PA, AC, T, XF = 64, 96, 144, 160, 168
    if OPT.fa:
        for i in range(8): k(f"s_add_u32 s{S_T0+i}, s34, {(i>>1)*0x200000 + (i&1)*8192}")
        k.vm = []; k.lg = []
        for pc in range(2):
            for h in range(2): k.vmop(f"buffer_load_dwordx2 {vr(XR+pc*4+h*2,2)}, v{VB5}, {sr(S_B,4)}, s33 offen offset:{pc*512+h*32}", "X")
        for i in range(8): k.vmop(f"buffer_load_dwordx4 {vr(PR+i*4,4)}, v{VB4}, {sr(S_C,4)}, s{S_T0+i} offen", f"S{i>>1}")
        pass
        k("s_barrier")
        pass
        for wi in range(3):
            for pc in range(2):
                for h in range(2): k(f"ds_read_b128 {vr(PA+wi*16+pc*8+h*4,4)}, v{VB6} offset:{wi*2048 + pc*1024 + h*64}")
        k.wait(vm="X")
    else:
        st(k, "a")
        n = 0
        for tb in range(4): k(f"s_mov_b32 s{S_T0+tb}, {tb*16384}") if not OPT.mrg else None
        for ns in range(2 if not OPT.mrg else 0):
            for tb in range(4):
                o = 128 + (n & 7)*4; n += 1
                for h in range(2):
                    a = ACC(2*ns+h, tb)
                    k(f"v_cvt_pk_bf16_f32 v{o+2*h}, v{a}, v{a+1}\nv_cvt_pk_bf16_f32 v{o+2*h+1}, v{a+2}, v{a+3}")
                k(f"buffer_store_dwordx4 {vr(o,4)}, v{V_L16}, {sr(S_A,4)}, s{S_T0+tb} offen offset:{ns*1024} sc1")
        for i in range(8): k(f"s_add_u32 s{S_T0+i}, s34, {(i>>1)*0x200000 + (i&1)*8192}")
        handoff_signal(k, 0, 4 if OPT.xlate == 1 else 0)
        if OPT.xlate == 1: k("s_waitcnt vmcnt(0)")
        pass
        PR, PA, AC, T, XF = 64, 96, 144, 160, 168
        k.vm = []; k.lg = []
        for i in range(8): k.vmop(f"buffer_load_dwordx4 {vr(PR+i*4,4)}, v{VB4}, {sr(S_C,4)}, s{S_T0+i} offen sc1", f"S{i>>1}")
        for wi in range(3):
            for pc in range(2):
                for h in range(2): k(f"ds_read_b128 {vr(PA+wi*16+pc*8+h*4,4)}, v{VB6} offset:{wi*2048 + pc*1024 + h*64}")
    GB = 240
    k(f"v_lshrrev_b32 v11, 1, v1\nv_lshlrev_b32 v12, 5, v3\nv_lshl_add_u32 v12, v11, 7, v12\ns_and_b32 s6, s{S_M}, 7\ns_lshl_b32 s6, s6, 8\ns_add_u32 s6, s6, {TOP+6144}\nv_add_u32 v12, s6, v12")
    k(f"ds_read_b128 {vr(GB,4)}, v12\nds_read_b128 {vr(GB+4,4)}, v12 offset:16")
    for d in range(8): k(f"v_lshlrev_b32 v{XF+2*d}, 16, v{XR+d}\nv_and_b32 v{XF+2*d+1}, 0xffff0000, v{XR+d}")
    for sp in range(4):
        k.wait(vm=f"S{sp}")
        for d in range(8):
            w = PR + sp*8 + d; t_ = T + 2*(d & 3)
            if sp == 0:
                k(f"v_lshlrev_b32 v{AC+2*d}, 16, v{w}\nv_and_b32 v{AC+2*d+1}, 0xffff0000, v{w}")
            else:
                k(f"v_lshlrev_b32 v{t_}, 16, v{w}\nv_and_b32 v{t_+1}, 0xffff0000, v{w}")
                k(f"v_pk_add_f32 {vr(AC+2*d,2)}, {vr(AC+2*d,2)}, {vr(t_,2)}")
    k("s_waitcnt lgkmcnt(0)")
    st(k, "p")
    for d in range(8): k(f"v_pk_fma_f32 {vr(AC+2*d,2)}, {vr(AC+2*d,2)}, {vr(PA+2*d,2)}, {vr(XF+2*d,2)}")
    for d in range(8): k(f"v_cvt_pk_bf16_f32 v{XR+d}, v{AC+2*d}, v{AC+2*d+1}")
    for d in range(8): k(f"v_lshlrev_b32 v{AC+2*d}, 16, v{XR+d}\nv_and_b32 v{AC+2*d+1}, 0xffff0000, v{XR+d}")
    if OPT.ln1:
        def wsum(r):
            k(f"s_nop 1\nv_add_f32 v{r}, v{r}, v{r} row_ror:8")
            for sw in ("v_permlane16_swap_b32", "v_permlane32_swap_b32"):
                k(f"v_mov_b32 v{r+1}, v{r}\ns_nop 1\n{sw} v{r+1}, v{r}\ns_nop 1\nv_add_f32 v{r}, v{r}, v{r+1}")
        for i in range(4): k(f"v_pk_add_f32 {vr(T+2*i,2)}, {vr(AC+2*i,2)}, {vr(AC+8+2*i,2)}")
        for i in range(2): k(f"v_pk_add_f32 {vr(T+2*i,2)}, {vr(T+2*i,2)}, {vr(T+4+2*i,2)}")
        k(f"v_pk_add_f32 {vr(T,2)}, {vr(T,2)}, {vr(T+2,2)}\nv_add_f32 v{T}, v{T}, v{T+1}")
        for pc in range(2): k(f"buffer_store_dwordx4 {vr(XR+pc*4,4)}, v{VB4}, {sr(S_E,4)}, s{S_T0+pc} offen sc1")
        wsum(T)
        k(f"v_mul_f32 v14, {hexf(-1/128)}, v{T}")
        for i in range(8): k(f"v_pk_add_f32 {vr(AC+2*i,2)}, {vr(AC+2*i,2)}, v[14:15] op_sel_hi:[1,0]")
        for i in range(2): k(f"v_pk_mul_f32 {vr(T+2*i,2)}, {vr(AC+2*i,2)}, {vr(AC+2*i,2)}")
        for i in range(2, 8): k(f"v_pk_fma_f32 {vr(T+2*(i&1),2)}, {vr(AC+2*i,2)}, {vr(AC+2*i,2)}, {vr(T+2*(i&1),2)}")
        k(f"v_pk_add_f32 {vr(T,2)}, {vr(T,2)}, {vr(T+2,2)}\nv_add_f32 v{T}, v{T}, v{T+1}")
        wsum(T)
        k(f"ds_write_b32 v{VB8}, v14\nds_write_b32 v{VB8}, v{T} offset:128")
        for i in range(8): k(f"v_pk_mul_f32 {vr(AC+2*i,2)}, {vr(AC+2*i,2)}, {vr(PA+32+2*i,2)}")
        k("s_waitcnt lgkmcnt(0)\ns_barrier")
        k(f"ds_read_b128 {vr(T,4)}, v{VB7}\nds_read_b128 {vr(T+4,4)}, v{VB7} offset:128\ns_waitcnt lgkmcnt(1)")
        k(f"v_pk_add_f32 v[12:13], {vr(T,2)}, {vr(T+2,2)}\nv_add_f32 v12, v12, v13\nv_mul_f32 v12, -0.25, v12" .replace("-0.25", hexf(-0.25)))
        for h in range(2): k(f"v_pk_add_f32 {vr(T+2*h,2)}, {vr(T+2*h,2)}, v[12:13] op_sel_hi:[1,0]")
        k(f"v_add_f32 v14, v14, v12\nv_pk_mul_f32 {vr(T,2)}, {vr(T,2)}, {vr(T,2)}\nv_pk_fma_f32 {vr(T,2)}, {vr(T+2,2)}, {vr(T+2,2)}, {vr(T,2)}\ns_waitcnt lgkmcnt(0)")
        k(f"v_pk_add_f32 {vr(T+4,2)}, {vr(T+4,2)}, {vr(T+6,2)}\nv_add_f32 v{T}, v{T}, v{T+1}\nv_add_f32 v{T+4}, v{T+4}, v{T+5}")
        k(f"v_mov_b32 v12, {hexf(1e-5)}\nv_fmac_f32 v12, {hexf(0.25)}, v{T}\nv_fmac_f32 v12, {hexf(1/512)}, v{T+4}\nv_rsq_f32 v12, v12\ns_nop 0")
        k("v_mul_f32 v14, v14, v12\nv_sub_f32 v14, 0, v14")
        for pc in range(2):
            for i in range(4*pc, 4*pc+4): k(f"v_pk_fma_f32 {vr(PA+16+2*i,2)}, {vr(PA+32+2*i,2)}, v[14:15], {vr(PA+16+2*i,2)} op_sel_hi:[1,0,1]")
            for i in range(4*pc, 4*pc+4): k(f"v_pk_fma_f32 {vr(AC+2*i,2)}, {vr(AC+2*i,2)}, v[12:13], {vr(PA+16+2*i,2)} op_sel_hi:[1,0,1]")
            for d in range(4*pc, 4*pc+4): k(f"v_cvt_pk_bf16_f32 v{PR+d}, v{AC+2*d}, v{AC+2*d+1}")
            k(f"buffer_store_dwordx4 {vr(PR+4*pc,4)}, v{VB4}, {sr(S_D,4)}, s{S_T0+pc} offen sc1")
    else:
        def rowsum(r, off, mid=None):
            k(f"s_nop 1\nv_add_f32 v{r}, v{r}, v{r} row_ror:8")
            for sw in ("v_permlane16_swap_b32", "v_permlane32_swap_b32"):
                k(f"v_mov_b32 v{r+1}, v{r}\ns_nop 1\n{sw} v{r+1}, v{r}\ns_nop 1\nv_add_f32 v{r}, v{r}, v{r+1}")
            k(f"ds_write_b32 v{VB8}, v{r} offset:{off}")
            if mid: mid()
            k("s_waitcnt lgkmcnt(0)\ns_barrier")
            k(f"ds_read_b128 {vr(r,4)}, v{VB7} offset:{off}\ns_waitcnt lgkmcnt(0)")
            k(f"v_pk_add_f32 {vr(r,2)}, {vr(r,2)}, {vr(r+2,2)}\nv_add_f32 v{r}, v{r}, v{r+1}")
        def x1st():
            for pc in range(2): k(f"buffer_store_dwordx4 {vr(XR+pc*4,4)}, v{VB4}, {sr(S_E,4)}, s{S_T0+pc} offen sc1")
        for i in range(4): k(f"v_pk_add_f32 {vr(T+2*i,2)}, {vr(AC+2*i,2)}, {vr(AC+8+2*i,2)}")
        for i in range(2): k(f"v_pk_add_f32 {vr(T+2*i,2)}, {vr(T+2*i,2)}, {vr(T+4+2*i,2)}")
        k(f"v_pk_add_f32 {vr(T,2)}, {vr(T,2)}, {vr(T+2,2)}\nv_add_f32 v{T}, v{T}, v{T+1}")
        rowsum(T, 0, x1st)
        k(f"v_mul_f32 v14, {hexf(-1/512)}, v{T}")
        for i in range(8): k(f"v_pk_add_f32 {vr(AC+2*i,2)}, {vr(AC+2*i,2)}, v[14:15] op_sel_hi:[1,0]")
        for i in range(2): k(f"v_pk_mul_f32 {vr(T+2*i,2)}, {vr(AC+2*i,2)}, {vr(AC+2*i,2)}")
        for i in range(2, 8): k(f"v_pk_fma_f32 {vr(T+2*(i&1),2)}, {vr(AC+2*i,2)}, {vr(AC+2*i,2)}, {vr(T+2*(i&1),2)}")
        k(f"v_pk_add_f32 {vr(T,2)}, {vr(T,2)}, {vr(T+2,2)}\nv_add_f32 v{T}, v{T}, v{T+1}")
        def mid2():
            for i in range(8): k(f"v_pk_mul_f32 {vr(AC+2*i,2)}, {vr(AC+2*i,2)}, {vr(PA+32+2*i,2)}")
        rowsum(T, 128, mid2)
        k(f"v_mov_b32 v14, {hexf(1e-5)}\nv_fmac_f32 v14, {hexf(1/512)}, v{T}\nv_rsq_f32 v14, v14\ns_nop 0")
        for pc in range(2):
            for i in range(4*pc, 4*pc+4): k(f"v_pk_fma_f32 {vr(AC+2*i,2)}, {vr(AC+2*i,2)}, v[14:15], {vr(PA+16+2*i,2)} op_sel_hi:[1,0,1]")
            for d in range(4*pc, 4*pc+4): k(f"v_cvt_pk_bf16_f32 v{PR+d}, v{AC+2*d}, v{AC+2*d+1}")
            k(f"buffer_store_dwordx4 {vr(PR+4*pc,4)}, v{VB4}, {sr(S_D,4)}, s{S_T0+pc} offen sc1")
        pass
    CA = lambda m, t, tb: 64 + ((t*2+m)*4+tb)*4
    CW = lambda buf, m, t: 160 + ((buf*3+t)*2+m)*4
    CB = lambda buf, tb: 208 + (buf*4+tb)*4
    V_CW, V_CB = 16, 24
    k("v_lshl_add_u32 v7, v3, 2, v5\nv_mul_u32_u24 v7, 192, v7\nv_lshl_add_u32 v7, v6, 3, v7\nv_and_b32 v12, 1, v3")
    k("v_lshrrev_b32 v13, 1, v1\nv_mul_u32_u24 v13, 3, v13")
    for t in range(3):
        k(f"v_add_u32 v14, {t}, v13\nv_xor_b32 v14, v14, v12\nv_lshl_add_u32 v{V_CW+t}, v14, 5, v7\nv_add_u32 v{V_CW+3+t}, {5*C_W}, v{V_CW+t}")
    k(f"v_and_b32 v13, 1, v1\nv_lshl_add_u32 v{V_CB}, v13, 12, v{V_L16}\nv_add_u32 v{V_CB}, {C_BB}, v{V_CB}")
    k(f"s_lshl_b32 s7, s{S_TT}, 1\ns_and_b32 s6, s{S_WAVE}, 1\ns_add_u32 s7, s7, s6\ns_mul_i32 s6, s7, {4*43*1024}\ns_mul_i32 s7, s{S_M}, 3072\ns_add_u32 s6, s6, s7\ns_add_u32 s6, s6, 0x{WS_HF:x}")
    k(f"s_add_u32 s{S_A}, s54, s6\ns_addc_u32 s{S_A+1}, s55, 0\ns_mov_b32 s{S_A+2}, {3*43*1024+3072}")
    k(f"s_mov_b32 s{S_C}, s{S_A}\ns_mov_b32 s{S_C+1}, s{S_A+1}\ns_cmp_eq_u32 s{S_M}, 14\ns_cselect_b32 s{S_C+2}, 0, s{S_A+2}")
    handoff_signal(k, 1)
    pass
    k(f"s_cmp_eq_u32 s{S_M}, 15\ns_cbranch_scc1 kt_c_done")
    k.lg = []
    def c_reads(j):
        sl = j % C_NW; bank = sl // 5; off = (sl % 5)*C_W
        b = [L(f"ds_read_b128 {vr(CB(j&1,tb),4)}, v{V_CB} offset:{(j % C_NB)*C_B + tb*1024}", f"R{j}_0") for tb in range(4)]
        w = [L(f"ds_read_b64_tr_b16 {vr(CW(j&1,m,t)+2*h,2)}, v{V_CW+3*bank+t} offset:{off + m*6144 + h*3072}", f"R{j}_{t}")
             for t in range(3) for m in range(2) for h in range(2)]
        return b + w
    k("s_barrier")
    st(k, "c0")
    if "c0" in OPT.kts: k("s_waitcnt lgkmcnt(0)")
    k.run(c_reads(0))
    for j in range(C_NK - (1 if OPT.cmrg else 0)):
        mf = []
        for t in range(3):
            for m in range(2):
                for tb_ in range(4):
                    tb = tb_ if m == 0 else 3 - tb_
                    d = vr(CA(m, t, tb), 4)
                    mf.append(f"{MF} {d}, {vr(CW(j&1,m,t),4)}, {vr(CB(j&1,tb),4)}, {d if j else '0'}")
        lds = c_reads(j+1) if j < C_NK-1 else []
        gaps = fill(24, lds, [], [], g0=1)
        if j == 0:
            add(gaps, -1, W(lg=f"R{j}_0")); front(gaps, 6, W(lg=f"R{j}_2"))
        else:
            add(gaps, -1, W(lg=f"R{j}_2"))
        if j < C_NK-1: front(gaps, 0, "s_barrier")
        emit(k, mf, gaps)
    if OPT.cmrg:
        j = C_NK - 1
        k.wait(lg=f"R{j}_2")
        k(f"s_lshr_b32 s6, s{S_WAVE}, 1\ns_cmp_eq_u32 s6, 0\ns_cbranch_scc0 kt_fh1")
        for fh in range(2):
            if fh: k("kt_fh1:")
            odd = 2 if fh == 0 else 0; t0 = 0 if fh == 0 else 1; unit = 0 if fh == 0 else 2
            keep = (0, 1) if fh == 0 else (2, 3); send = (2, 3) if fh == 0 else (0, 1)
            mq = []; vq = []
            def tile(t, tb, o, pk):
                for m in range(2):
                    d = vr(CA(m, t, tb), 4)
                    mq.append(It(f"{MF} {d}, {vr(CW(j&1,m,t),4)}, {vr(CB(j&1,tb),4)}, {d}", gives=f"D{t}{tb}" if m else None))
                a = CA(0, t, tb); b = CA(1, t, tb); nd = {f"D{t}{tb}": 8}
                if pk:
                    for i in range(0, 4, 2): vq.append(It(f"v_pk_mul_f32 {vr(a+i,2)}, {vr(a+i,2)}, {vr(b+i,2)}", needs=nd))
                else:
                    for i in range(4): vq.append(It(f"v_mul_f32 v{a+i}, v{a+i}, v{b+i}", needs=nd))
                for e in range(2): vq.append(It(f"v_cvt_pk_bf16_f32 v{o+e}, v{a+2*e}, v{a+2*e+1}"))
            vq += [It("v_and_b32 v13, 1, v1"), It(f"v_lshl_add_u32 v12, v13, 11, v{V_L16}"), It(f"v_add_u32 v12, {TOP}, v12")]
            for i, tb in enumerate(send): tile(odd, tb, 48 + 2*i, False)
            vq.append(It(f"ds_write_b128 v12, v[48:51] offset:{fh*1024}"))
            for tb in range(4):
                o = 32 + tb*4
                tile(t0, tb, o, tb >= 2); tile(t0+1, tb, o+2, tb >= 2)
                vq.append(It(f"buffer_store_dwordx4 {vr(o,4)}, v{V_L16}, {sr(S_C if fh else S_A,4)}, s{S_T0+tb} offen offset:{unit*1024} sc1", cost=2))
                if tb == 1:
                    vq.append(It("s_waitcnt lgkmcnt(0)\ns_barrier", cost=0))
                    vq += [It(f"ds_read_b64 {vr(52 + 4*i + 2*(1-fh),2)}, v12 offset:{(1-fh)*1024 + 8*i}") for i in range(2)]
            for i, tb in enumerate(keep):
                tile(odd, tb, 52 + 4*i + 2*fh, True)
                vq.append(It(("s_waitcnt lgkmcnt(0)\n" if i == 0 else "") + f"buffer_store_dwordx4 {vr(52+4*i,4)}, v{V_L16}, {sr(S_C,4)}, s{S_T0+tb} offen offset:1024 sc1", cost=2))
            side = [It(f"s_mov_b32 s{S_T0+tb}, {tb*43*1024}", cost=0) for tb in range(4)]
            merge(k, mq, vq, side)
            if not fh: k("s_branch kt_c_done")
    else:
        st(k, "c1")
        k(f"s_nop 6\ns_lshr_b32 s6, s{S_WAVE}, 1\ns_cmp_eq_u32 s6, 0\ns_cbranch_scc0 kt_fh1")
        def prod(t, tb, o):
            a = CA(0, t, tb); b = CA(1, t, tb)
            for i in range(0, 4, 2): k(f"v_pk_mul_f32 {vr(a+i,2)}, {vr(a+i,2)}, {vr(b+i,2)}")
            k(f"v_cvt_pk_bf16_f32 v{o}, v{a}, v{a+1}\nv_cvt_pk_bf16_f32 v{o+1}, v{a+2}, v{a+3}")
        for fh in range(2):
            if fh: k("kt_fh1:")
            odd = 2 if fh == 0 else 0; t0 = 0 if fh == 0 else 1; unit = 0 if fh == 0 else 2
            keep = (0, 1) if fh == 0 else (2, 3); send = (2, 3) if fh == 0 else (0, 1)
            k(f"v_and_b32 v13, 1, v1\nv_lshl_add_u32 v12, v13, 11, v{V_L16}\nv_add_u32 v12, {TOP}, v12")
            for i, tb in enumerate(send): prod(odd, tb, 48 + 2*i)
            k(f"ds_write_b128 v12, v[48:51] offset:{fh*1024}")
            for i, tb in enumerate(keep): prod(odd, tb, 52 + 4*i + 2*fh)
            for tb in range(4): k(f"s_mov_b32 s{S_T0+tb}, {tb*43*1024}")
            skip = f"kt_skip{fh}"
            if fh: k(f"s_cmp_eq_u32 s{S_M}, 14\ns_cbranch_scc1 {skip}")
            for tb in range(4):
                o = 32 + tb*4
                prod(t0, tb, o); prod(t0+1, tb, o+2)
                k(f"buffer_store_dwordx4 {vr(o,4)}, v{V_L16}, {sr(S_A,4)}, s{S_T0+tb} offen offset:{unit*1024} sc1")
            if fh: k(f"{skip}:")
            k("s_waitcnt lgkmcnt(0)\ns_barrier")
            k(f"s_cmp_eq_u32 s{S_M}, 14\ns_cbranch_scc1 kt_c_done")
            for i in range(2): k(f"ds_read_b64 {vr(52 + 4*i + 2*(1-fh),2)}, v12 offset:{(1-fh)*1024 + 8*i}")
            k("s_waitcnt lgkmcnt(0)")
            for i, tb in enumerate(keep):
                k(f"buffer_store_dwordx4 {vr(52+4*i,4)}, v{V_L16}, {sr(S_A,4)}, s{S_T0+tb} offen offset:1024 sc1")
            if not fh: k("s_branch kt_c_done")
    k("kt_c_done:")
    pass
    DA = lambda t, tb: 64 + (t*2+tb)*4
    DW = lambda buf, i, t: 80 + ((buf*2+i)*2+t)*4
    DB = lambda buf, i, tb: 112 + ((buf*2+i)*2+tb)*4
    V_DWA, V_DBA = 16, 18
    k("v_lshl_add_u32 v7, v3, 2, v5\nv_lshlrev_b32 v7, 7, v7\nv_lshl_add_u32 v7, v6, 4, v7")
    k(f"v_lshrrev_b32 v14, 1, v5\nv_lshrrev_b32 v11, 1, v1\nv_xor_b32 v14, v14, v11\nv_lshl_add_u32 v{V_DWA}, v14, 6, v7\nv_add_u32 v{V_DWA+1}, 0x10000, v{V_DWA}")
    k(f"v_and_b32 v14, 1, v1\nv_lshl_add_u32 v{V_DBA}, v14, 11, v{V_L16}\nv_add_u32 v{V_DBA}, {D_BB}, v{V_DBA}")
    k("v_lshlrev_b32 v20, 10, v4\nv_lshl_add_u32 v20, v3, 4, v20\nv_lshl_add_u32 v20, v14, 15, v20\nv_lshl_add_u32 v20, v11, 6, v20")
    k("v_and_b32 v21, 1, v3\nv_lshlrev_b32 v21, 9, v21\nv_lshl_add_u32 v21, v4, 4, v21\nv_lshrrev_b32 v22, 1, v3\nv_lshl_add_u32 v21, v22, 3, v21")
    k("v_lshl_add_u32 v21, v11, 10, v21\nv_lshl_add_u32 v21, v14, 15, v21")
    k(f"s_lshl_b32 s6, s{S_TT}, 1\ns_lshr_b32 s7, s{S_M}, 3\ns_add_u32 s6, s6, s7\ns_lshl_b32 s6, s6, 16\ns_and_b32 s33, s{S_M}, 7\ns_lshl_b32 s7, s33, 7\ns_add_u32 s7, s6, s7")
    k(f"s_add_u32 s{S_B}, s58, s7\ns_addc_u32 s{S_B+1}, s59, 0\ns_sub_u32 s{S_B+2}, {2048*1024}, s7")
    k(f"s_lshl_b32 s33, s33, 11\ns_add_u32 s33, s33, s6\ns_add_u32 s34, s33, 16384\ns_mov_b32 s35, 16384")
    for tb in range(2):
        for h in range(2):
            k(f"buffer_load_dwordx2 {vr(144+4*tb+2*h,2)}, v21, {sr(S_E,4)}, s{33+tb} offen offset:{256*h} sc1")
    handoff_signal(k, 2, 4 if OPT.x1late else 0)
    if OPT.x1late: k("s_waitcnt vmcnt(0)")
    pass
    k.lg = []
    for d in range(8): k(f"v_lshlrev_b32 v{48+2*d}, 16, v{144+d}\nv_and_b32 v{49+2*d}, 0xffff0000, v{144+d}")
    def d_reads(g):
        base = DPERM[g % D_NW]*D_W; bank = base >> 16; off = base & 0xffff
        r = []
        for i in range(2):
            if 2*g + i >= D_NK: break
            r += [L(f"ds_read_b128 {vr(DB(g&1,i,tb),4)}, v{V_DBA} offset:{(g % D_NB)*D_B + i*4096 + tb*1024}", f"R{g}") for tb in range(2)]
            r += [L(f"ds_read_b64_tr_b16 {vr(DW(g&1,i,t)+2*h,2)}, v{V_DWA+bank} offset:{off + i*4096 + h*2048 + 8*t}", f"R{g}") for t in range(2) for h in range(2)]
        return r
    k("s_barrier")
    st(k, "d0")
    if "d0" in OPT.kts: k("s_waitcnt lgkmcnt(0)")
    k.run(d_reads(0))
    for g in range(D_NS):
        mf = []
        ii = [i for i in range(2) if 2*g + i < D_NK]
        for t in range(2):
            for tb in range(2):
                for i in ii:
                    d = vr(DA(t, tb), 4)
                    mf.append(f"{MF} {d}, {vr(DW(g&1,i,t),4)}, {vr(DB(g&1,i,tb),4)}, {d if (g or i) else '0'}")
        if g < D_NS-1:
            k("s_barrier")
            rd = d_reads(g+1)
            k.run(rd[:2])
            gaps = fill(8, rd[2:], [], [], g0=0, pair_lds=True)
        else: gaps = {}
        k.wait(lg=f"R{g}")
        emit(k, mf, gaps)
    st(k, "d1")
    k("s_nop 7")
    for tb in range(2):
        for t in range(2):
            for i in range(0, 4, 2):
                k(f"v_pk_fma_f32 {vr(48+8*tb+4*t+i,2)}, {vr(DA(t,tb)+i,2)}, {vr(GB+4*t+i,2)}, {vr(48+8*tb+4*t+i,2)}")
        for d in range(4): k(f"v_cvt_pk_bf16_f32 v{24+4*tb+d}, v{48+8*tb+2*d}, v{49+8*tb+2*d}")
        k(f"buffer_store_dwordx4 {vr(24+4*tb,4)}, v20, {sr(S_B,4)}, {'s35' if tb else '0'} offen {OPT.st5}")
    k.dbg_mark(5, 100, 101, True); k.dbg_mark(6, 102, 103)
    if prof:
        k("s_waitcnt vmcnt(0)"); k.stamp(7); k.dump_stamps(8, 54, 100)
    k(f"{end}:\ns_endpgm")
    return k
```

```python
from common import *
from sched import fill, L, V, W, front, emit, It, merge
from k0 import mod_loads, mod_finish, C1
import k1t

MF = "v_mfma_f32_16x16x32_bf16"

SLOT = 16384
KB = 0
VB = 65536
PARB = 9*SLOT
FLAGB = PARB + 4096
WSLOT = [1, 4, 2, 5, 3, 6, 7, 8]

def O(db, qb): return (db*4+qb)*4
def LA(qb): return 128 + qb*4
def KF(i): return 144 + i*4
def VF(i): return 176 + i*4
ONES = 240
def Q(qb, s): return 128 + (qb*4+s)*4
def S(buf, kb, qb): return 64 + buf*32 + (kb*4+qb)*4
def P(buf, qb): return (32 + buf*16 if buf < 2 else 208 + (buf-2)*16) + qb*4
def MN(qb): return 192 + qb*4
V_KA = 8
V_VA = 12
V_DK = 20
V_DV = 24
V_L16 = 26
V_LS = 28
V_PF = 2
V_T = 208
def XR(slot, qb): return 128 + ((slot%4)*4+qb)*4
def QA(t, qb): return vr(192 + (qb*8+t)*4, 4) if qb < 2 else ar(((qb-2)*8+t)*4, 4)
def HK(b): return (lambda i: 64 + b*32 + i*4)
def HF(buf, qb): return 32 + (buf*4+qb)*4
def PAR(buf): return 64 + buf*16
V_PT = 96
V_WA = 112
V_DW = 124
V_PA = 125
def WF(buf, t): return 128 + (buf*8+t)*4
S_K, S_V, S_W, S_X, S_M, S_O = 8, 12, 16, 20, 24, 28
S_W4 = 32
S_KOFF, S_VOFF = 33, 34
S_CNT = 35
S_T0 = 36
S_RERUN = 44
S_WAVE = 45
S_W1 = 62

def emit_phase(k, mf, gaps):
    for f in gaps.get(-1, []): f(k) if callable(f) else k(f)
    for i, m in enumerate(mf):
        k(m)
        for f in gaps.get(i, []): f(k) if callable(f) else k(f)
    for g in gaps:
        assert g < len(mf), (g, len(mf))

def add(gaps, g, *items):
    gaps.setdefault(g, []).extend(items)

def qk_mfmas(buf, kf=KF, czero=False):
    r = []
    order = {0: [(kb,s,qb) for kb in range(2) for s in range(4) for qb in range(4)],
             1: [(kb,s,qb) for kb in range(2) for qb in range(4) for s in range(4)],
             2: [(kb,s,qb) for qb in range(4) for s in range(4) for kb in range(2)],
             4: [(kb,s if qb%2==0 else 3-s,qb) for kb in range(2) for qb in range(4) for s in range(4)],
             5: [(kb,s if kb%2==0 else 3-s,qb) for qb in range(4) for kb in range(2) for s in range(4)],
             3: [(kb,s,qb if s%2==0 else 3-qb) for kb in range(2) for s in range(4) for qb in range(4)]}[OPT.qko]
    seen = set()
    for kb, s, qb in order:
            if True:
                d = vr(S(buf, kb, qb), 4)
                started = (kb, qb) in seen; seen.add((kb, qb))
                c = d if started else ("0" if czero else vr(MN(qb), 4))
                r.append(f"{MF} {d}, {ar(kf(kb*4+s),4)}, {vr(Q(qb,s),4)}, {c}")
    return r

def pv_mfmas(buf, sumq, vf=VF, czero=False):
    r = []
    for qb in sumq:
        d = ar(LA(qb), 4)
        r.append(f"{MF} {d}, {ar(ONES,4)}, {vr(P(buf,qb),4)}, {'0' if czero else d}")
    order = {0: [(db,qb) for db in range(8) for qb in range(4)],
             1: [(db,qb) for qb in range(4) for db in range(8)],
             3: [(db if qb%2==0 else 7-db,qb) for qb in range(4) for db in range(8)],
             2: [(db,qb if db%2==0 else 3-qb) for db in range(8) for qb in range(4)]}[OPT.pvo]
    for db, qb in order:
        if True:
            d = ar(O(db, qb), 4)
            r.append(f"{MF} {d}, {ar(vf(db),4)}, {vr(P(buf,qb),4)}, {'0' if czero else d}")
    return r

def exps(buf, qbs):
    r = []
    for qb in qbs:
        for kb in range(2):
            for i in range(4):
                x = S(buf, kb, qb) + i
                r.append(f"v_exp_f32{OPT.e64} v{x}, v{x}")
    return r
def cvts(buf, qbs, pb=None):
    pb = buf if pb is None else pb
    r = []
    for qb in qbs:
        for kb in range(2):
            for h in range(2):
                x = S(buf, kb, qb) + 2*h
                r.append(f"v_cvt_pk_bf16_f32 v{P(pb,qb)+kb*2+h}, v{x}, v{x+1}")
    return r
def adds(buf, qbs, addq):
    r = []
    for qb in qbs:
        for kb in range(2):
            for i in range(4):
                x = S(buf, kb, qb) + i
                r.append(f"v_add_f32{OPT.a64} v{V_LS+qb}, v{x}, v{V_LS+qb}" if qb in addq else None)
    return r
def kreads(slot, blk, kf=KF):
    r = []
    for kb in range(2):
        for s in range(4):
            r.append(f"ds_read_b128 {ar(kf(kb*4+s),4)}, v{V_KA+s} offset:{KB+slot*SLOT+blk*8192+kb*4096}")
    return r
def vreads(slot, blk, vf=VF):
    r = []
    for db in range(8):
        for h in range(2):
            r.append(f"ds_read_b64_tr_b16 {ar(vf(db)+2*h,2)}, v{V_VA+db} offset:{slot*SLOT+blk*8192+h*4096}")
    return r
def dma_k(p): return f"buffer_load_dwordx4 v{V_DK+p}, {sr(S_K,4)}, s{S_KOFF} offen offset:{p*1024} {OPT.kvnt} lds"
def dma_v(p): return f"buffer_load_dwordx4 v{V_DV+(p&1)}, {sr(S_V,4)}, s{S_VOFF} offen offset:{p*1024} {OPT.kvnt} lds"

class Cfg:
    la = 4
    wb4 = 0
    nvm = 8
    npk = 5
    ne1 = 33
    nv1 = 11
    v19 = 1
    wb = 0
    pfo = 2
    pfc = (5, 2, 9)
    ppf = 0
    wocnt = 1
    bar2 = 0
    kvspread = 1
    w1pf = 0
    fine = 0
    kvper = 7
    x = 0
    pf = 2
    sumq = [1, 3]
    def addq(self): return [q for q in range(4) if q not in self.sumq]

def pv2_mfmas(pb, sumq, czero=False, order=None):
    r = []
    n = 0
    def pair(d, a0, a1, qb):
        nonlocal n
        js = (0, 1) if n % 2 == 0 else (1, 0); n += 1
        for i, j in enumerate(js):
            r.append(f"{MF} {d}, {ar(a1 if j else a0,4)}, {vr(P(pb+j,qb),4)}, {'0' if (czero and i == 0) else d}")
    for qb in sumq: pair(ar(LA(qb), 4), ONES, ONES, qb)
    for db in range(8):
        for q in range(4):
            qb = q if db % 2 == 0 else 3 - q
            pair(ar(O(db, qb), 4), VF(db), VF(8+db), qb)
    return r

def sm_stream(cfg, u):
    qs = range(4)
    E = exps(u & 1, qs); C = cvts(u & 1, qs, u & 3); A = adds(u & 1, qs, cfg.addq())
    r = []
    for i, e in enumerate(E):
        f = [A[i]] if A[i] else []
        if i % 2 == 1: f.append(C[i//2])
        r.append((e, f))
    return r

def vreads2(slot):
    r = []
    for db in range(8):
        for blk in range(2):
            for h in range(2):
                r.append((db, L(f"ds_read_b64_tr_b16 {ar(VF(8*blk+db)+2*h,2)}, v{V_VA+db} offset:{slot*SLOT+blk*8192+h*4096}", "V")))
    return r

def pack(k, mf, fixed, stream, lds, vm, deadlines=(), keep=False):
    n = len(mf)
    stream = list(stream); lds = list(lds); vm = list(vm)
    ready = []
    k.run(fixed.get(-1, []))
    ne = len(stream); ie = 0
    lastvm = -9; vm0 = list(vm)
    for g in range(n):
        k(mf[g]); k.run(fixed.get(g, []))
        left = 2
        if OPT.barfree and any(isinstance(x, str) and "s_barrier" in x for x in fixed.get(g, [])): left = 2 - OPT.barfree
        want_e = ie < ne and g < n-1 and (g % 2 == 0 or (ne - ie) > (n - g)//2)
        if g % 2 == 1 or not want_e:
            if vm and vm[0][0] <= g and g - lastvm >= (OPT.vsp if len(vm0) <= 8 else 4) and not (lds and lds[0][0] <= g and lds[0][2:] == ('urgent',)):
                k.run(vm.pop(0)[1]); left -= 2; lastvm = g
            else:
                c = [x for x in lds if x[0] <= g]
                c.sort(key=lambda x: 0 if len(x) > 2 else 1)
                if c:
                    lds.remove(c[0]); k.run([c[0][1]]); left -= 1
                    rem = len([y for y in range(g+1, n) if y % 2 == 1]) - 3
                    if len(c) > 1 and len(lds) + len(vm) > rem:
                        lds.remove(c[1]); k.run([c[1][1]]); left -= 1
        if want_e:
            e, f = stream[ie]; k(e); left -= 2
            ready += [(g, ie, x) for x in f]; ie += 1
        must = [x for x in ready if any(x[1] < idx and g + 1 >= dl for idx, dl in deadlines)]
        while ready and ready[0][0] < g and (left > 0 or ready[0] in must or len(ready) > OPT.bk or g == n-1):
            k(ready.pop(0)[2]); left -= 1
    assert ie == ne and not vm and not ready and (keep or not lds), (ie, ne, len(lds), len(vm), ready)
    return lds

R1 = 16

def iteration(k, cfg, t4, part="all", czero=False, pf=(), post=(), label=None, extra=()):
    ks = t4; vs = (t4 - 1) % 4; u = 2*t4
    k.c(f"---- iteration T%4={t4} {part} ----")
    ns = 2*len(cfg.sumq)
    pv = pv2_mfmas((u - 4) & 3, cfg.sumq, czero); npv = len(pv)
    st = sm_stream(cfg, u - 2)[32-R1:] + sm_stream(cfg, u - 1) + sm_stream(cfg, u)[:32-R1]
    dmas = [[f"s_add_u32 m0, s{S_W4}, {KB + ((t4+3)%4)*SLOT}\ns_nop 0" if p == 0 else "", dma_k(p)] for p in range(4)]
    dmas += [[f"s_add_u32 m0, s{S_W4}, {VB + ((t4+2)%4)*SLOT}\ns_add_u32 s{S_KOFF}, s{S_KOFF}, {SLOT}" if p == 0 else "", dma_v(p)] for p in range(4)]
    dmas[-1].append(f"s_add_u32 s{S_VOFF}, s{S_VOFF}, {SLOT}")
    ka = [L(x, "KA") for x in kreads(ks, 0)]; kb = kreads(ks, 1)
    vr_ = vreads2(vs)
    NE1 = cfg.ne1
    NV1 = cfg.nv1
    nvm = 16 if not (cfg.pf and cfg.pfo and cfg.v19) else (18 if part == "pv" else 19)
    bar = {ns-1: [f"s_waitcnt vmcnt({nvm}) lgkmcnt(0)\ns_barrier"]}
    if part == "tail":
        k.lg = []
        if OPT.fa and (OPT.na0 or OPT.na1): bar = {ns-1: ["s_waitcnt vmcnt(0) lgkmcnt(0)\ns_barrier"]}
        return pack(k, pv, bar, st[:R1+32], [(ns + 8*db + 7, x) for db, x in vr_], [(ns, x) for x in extra], keep=True)
    if part in ("all", "pv"):
        k.lg = []
        lds = [(ns, x) for x in ka] + [(ns + 8*db + 7, x) for db, x in vr_[:NV1]]
        pack(k, pv, bar, st[:NE1], lds, [(ns + OPT.v0, d) for d in dmas])
    if label: k(f"{label}:")
    if part in ("all", "first"):
        vm = [(40, [pf[1]])] if pf else []
        fixed = {-1: [W(lg="KA")], 30: [W(lg="KB0")], 46: [W(lg="KB1")]}
        if pf: fixed[38] = [pf[0]]
        if part == "first":
            NE1 = R1; NV1 = 0; k.lg = []
            fixed[-1] = ["s_waitcnt lgkmcnt(0)"]
            vm = [(2, [kv_setup(wh, t), dma_k(p) if wh == 'K' else dma_v(p)]) for wh, t in (('V',2),('K',4),('V',3)) for p in range(4)]
            if cfg.v19:
                dummy = f"s_mov_b32 s6, 0x80000\nbuffer_load_dword v{V_PF+3}, v{V_PF}, {sr(S_O,4)}, s6 offen"
                vm[3][1].append(dummy); vm[11][1].append(dummy)
            post = [f"s_mov_b32 s{S_KOFF}, {5*SLOT}\ns_mov_b32 s{S_VOFF}, {4*SLOT}"]
        lds = [(0, x) for db, x in vr_[NV1:]] + [(15, L(x, "KB0"), 'urgent') for x in kb[:4]] + [(31, L(x, "KB1"), 'urgent') for x in kb[4:]]
        pack(k, qk_mfmas(0) + qk_mfmas(1), fixed, st[NE1:], lds, vm, deadlines=[(R1 + 32 - NE1, 40)])
    for f in post: k(f)

def kv_setup(which, tile):
    if which == 'K': return f"s_add_u32 m0, s{S_W4}, {KB + (tile%4)*SLOT}\ns_mov_b32 s{S_KOFF}, {tile*SLOT}"
    return f"s_add_u32 m0, s{S_W4}, {VB + (tile%4)*SLOT}\ns_mov_b32 s{S_VOFF}, {tile*SLOT}"
def kv_group(which, tile):
    return [[kv_setup(which, tile), V(dma_k(p) if which == 'K' else dma_v(p), f"{which}{tile}")] for p in range(4)]

def rowmax_cross(k, regs, tmp):
    for sw in ("v_permlane32_swap_b32", "v_permlane16_swap_b32"):
        for i, r in enumerate(regs): k(f"v_mov_b32 v{tmp+i}, v{r}")
        k("s_nop 1")
        for i, r in enumerate(regs): k(f"{sw} v{tmp+i}, v{r}")
        k("s_nop 1")
        for i, r in enumerate(regs): k(f"v_max_f32 v{r}, v{r}, v{tmp+i}")

def gen_k1(cfg=None, prof=False):
    cfg = cfg or Cfg()
    k = Kern("k1_attn_kernel", 256, 256, 160*1024, 512, 256, 102 if OPT.ff else (96 if prof else 64))
    k.prof = prof
    end = "k1_end"
    k(f"s_cmp_ge_u32 s2, 256\ns_cbranch_scc1 {end}")
    k.stamp(0)
    k.dbg_begin(1)
    k(f"s_load_dwordx4 s[48:51], s[0:1], {KA_K}")
    k(f"s_load_dwordx2 s[52:53], s[0:1], {KA_WQ}")
    k(f"s_load_dwordx2 s[54:55], s[0:1], {KA_WS}")
    k(f"s_load_dwordx2 s[46:47], s[0:1], {KA_WO}")
    k(f"s_load_dwordx4 s[56:59], s[0:1], {KA_WG}")
    k(f"s_load_dwordx2 s[60:61], s[0:1], {KA_WD}")
    if OPT.ff: k(f"s_load_dwordx2 s[98:99], s[0:1], {KA_OUT}")
    k(f"s_load_dwordx2 s[0:1], s[0:1], {KA_X}")

    k("v_lshrrev_b32 v1, 6, v0")
    k("v_and_b32 v2, 63, v0")
    k(f"v_readfirstlane_b32 s{S_WAVE}, v1")
    m = OPT.map4
    k(f"s_and_b32 s4, s2, {(8>>m)-1}\ns_bfe_u32 s5, s2, {((2+m)<<16)|3}\ns_lshl_b32 s5, s5, {3-m}\ns_add_u32 s4, s4, s5")
    k(f"s_bfe_u32 s5, s2, {(m<<16)|(3-m)}\ns_lshl_b32 s5, s5, {3-m}\ns_lshr_b32 s6, s2, {5+m}\ns_add_u32 s5, s5, s6")
    k(f"s_lshl_b32 s{S_W4}, s{S_WAVE}, 12")
    k(f"s_mov_b32 s{S_RERUN}, 0")
    k("v_lshrrev_b32 v3, 4, v2")
    k("v_and_b32 v4, 15, v2")
    k("v_lshrrev_b32 v5, 2, v4")
    k("v_and_b32 v6, 3, v2")
    k(f"v_lshlrev_b32 v{V_L16}, 4, v2")
    k("v_lshlrev_b32 v7, 2, v3\nv_xor_b32 v7, v7, v4\nv_lshlrev_b32 v7, 4, v7")
    k(f"v_lshl_add_u32 v{V_DW}, v1, 2, v3\nv_lshl_add_u32 v{V_DW}, v{V_DW}, 13, v7")
    k(f"s_lshl_b32 s{S_W1}, s{S_WAVE}, 10")
    k("s_waitcnt lgkmcnt(0)")
    k("s_lshl_b32 s6, s4, 8")
    k(f"s_add_u32 s{S_W}, s52, s6\ns_addc_u32 s{S_W+1}, s53, 0\ns_sub_u32 s{S_W+2}, {512*8192}, s6\ns_mov_b32 s{S_W+3}, 0x20000")
    k.srd(S_M, 54, 4*12288, WS_MODP)
    k(f"s_lshl_b32 s6, s5, 2\ns_add_u32 s6, s6, s{S_WAVE}\ns_lshl_b32 s7, s6, 16")
    k(f"s_add_u32 s7, s7, 0x{WS_XH:x}")
    k(f"s_add_u32 s{S_X}, s54, s7\ns_addc_u32 s{S_X+1}, s55, 0\ns_mov_b32 s{S_X+2}, 0x10000\ns_mov_b32 s{S_X+3}, 0x20000")
    def w_step(j):
        r = []
        for p in range(2):
            st = S_T0 + p
            r.append([f"s_add_u32 m0, s{S_W1}, {WSLOT[j>>1]*SLOT + (j&1)*8192 + p*4096}\ns_mov_b32 s{st}, {(j*32 + p*16)*8192}",
                      lambda kk, st=st: kk.vmop(f"buffer_load_dwordx4 v{V_DW}, {sr(S_W,4)}, s{st} offen {OPT.wqnt} lds", f"W{j}")])
        return r
    def x_loads(j):
        r = []
        for qb in range(4):
            st = S_T0 + 4 + qb
            r.append([f"s_mov_b32 s{st}, {qb*16384 + (j>>2)*4096}",
                      lambda kk, qb=qb, st=st: kk.vmop(f"buffer_load_dwordx4 {vr(XR(j,qb),4)}, v{V_L16}, {sr(S_X,4)}, s{st} offen offset:{(j&3)*1024}", f"X{j}" if j else f"X0_{qb}")])
        return r
    def run(items):
        for f in items:
            if isinstance(f, list): run(f)
            else: f(k) if callable(f) else k(f)
    k("v_lshlrev_b32 v31, 4, v0")
    mod_loads(k, S_M, 31, S_T0, V_PT, 0, "M")
    LA_ = cfg.la
    run(w_step(0)); run(x_loads(0))
    k("s_lshl_b32 s6, s4, 19")
    k(f"s_add_u32 s{S_K}, s48, s6\ns_addc_u32 s{S_K+1}, s49, 0\ns_mov_b32 s{S_K+2}, 0x80000\ns_mov_b32 s{S_K+3}, 0x20000")
    k(f"s_add_u32 s{S_V}, s50, s6\ns_addc_u32 s{S_V+1}, s51, 0\ns_mov_b32 s{S_V+2}, 0x80000\ns_mov_b32 s{S_V+3}, 0x20000")
    k(f"s_lshl_b32 s6, s5, 2\ns_add_u32 s6, s6, s{S_WAVE}\ns_lshl_b32 s6, s6, 19\ns_lshl_b32 s7, s4, 12\ns_add_u32 s6, s6, s7")
    k(f"s_add_u32 s6, s6, 0x{WS_OF:x}")
    k(f"s_add_u32 s{S_O}, s54, s6\ns_addc_u32 s{S_O+1}, s55, 0\ns_mov_b32 s{S_O+2}, {3*131072+4096}\ns_mov_b32 s{S_O+3}, 0x20000")
    k("v_lshl_add_u32 v7, v3, 3, v5\nv_lshlrev_b32 v7, 8, v7\nv_lshl_add_u32 v7, v6, 4, v7")
    for s in range(4):
        k(f"v_xor_b32 v27, {s}, v5\nv_lshl_add_u32 v{V_WA+s}, v27, 6, v7")
        k(f"v_add_u32 v{V_WA+4+s}, 0x10000, v{V_WA+s}\nv_add_u32 v{V_WA+8+s}, 0x20000, v{V_WA+s}")
    k(f"v_lshlrev_b32 v{V_PA}, 5, v3\nv_add_u32 v{V_PA}, {PARB}, v{V_PA}")
    for s in range(4):
        k(f"v_or_b32 v27, {4*s}, v3\nv_xor_b32 v27, v27, v4\nv_lshlrev_b32 v27, 4, v27\nv_lshl_add_u32 v{V_KA+s}, v4, 8, v27")
    k("v_lshl_add_u32 v7, v3, 2, v5\nv_and_b32 v27, 7, v7\nv_lshlrev_b32 v7, 8, v7\nv_lshl_add_u32 v7, v6, 3, v7")
    k(f"v_add_u32 v7, {VB}, v7")
    for db in range(8):
        k(f"v_xor_b32 v30, {db}, v27\nv_lshl_add_u32 v{V_VA+db}, v30, 5, v7")
    k("v_lshlrev_b32 v7, 8, v3\nv_lshl_add_u32 v7, v1, 12, v7")
    for p in range(4):
        k(f"v_or_b32 v27, {4*p}, v3\nv_xor_b32 v27, v27, v4\nv_lshl_add_u32 v{V_DK+p}, v27, 4, v7")
    for p in range(2):
        k(f"v_or_b32 v27, {4*p}, v3\nv_lshlrev_b32 v27, 1, v27\nv_xor_b32 v27, v27, v4\nv_lshl_add_u32 v{V_DV+p}, v27, 4, v7")
    k("v_mov_b32 v27, 0x3f803f80")
    for i in range(4): k(f"v_accvgpr_write_b32 a{ONES+i}, v27")

    def wreads(j):
        c = j >> 1; base = WSLOT[c]*SLOT; bank = base >> 16; off = (base & 0xffff) + (j & 1)*8192
        return [L(f"ds_read_b64_tr_b16 {ar(WF(j&1,t)+2*h,2)}, v{V_WA+4*bank+(t>>1)} offset:{off + h*1024 + 8*(t&1)}", f"R{j}_{t}")
                for t in range(8) for h in range(2)]
    def preads(j):
        b = PAR(j & 1)
        return [L(f"ds_read_b128 {vr(b+4*i,4)}, v{V_PA} offset:{j*128 + (i&1)*16 + (i>>1)*2048}", f"P{j}") for i in range(4)]
    def hcalc(j):
        b = PAR(j & 1); r = []
        for qb in range(4):
            t = V_PT + (qb & 1)*8
            for i in range(8):
                r.append(f"v_fma_mix_f32 v{t+i}, v{XR(j,qb)+(i>>1)}, v{b+8+i}, v{b+i} op_sel:[{i&1},0,0] op_sel_hi:[1,0,0]")
            for d in range(4):
                r.append(f"v_cvt_pk_bf16_f32 v{HF(j&1,qb)+d}, v{t+2*d}, v{t+2*d+1}")
        return r
    k(f"s_cmp_ge_u32 s{S_WAVE}, 2\ns_cselect_b32 s6, 1.0, 0\nv_add_u32 v31, {PARB}, v31")
    k.vmwait("M")
    mod_finish(k, V_PT, 6, C1)
    k(f"ds_write_b128 v31, {vr(V_PT,4)}")
    if OPT.modk1 and not OPT.ff:
        k("s_cmp_ge_u32 s2, 2\ns_cbranch_scc1 k1_nomod\nv_lshlrev_b32 v30, 4, v0\ns_add_u32 s7, s2, 1\ns_lshl_b32 s7, s7, 12")
        mod_loads(k, S_M, 30, S_T0, 192, "s7")
        k(f"s_lshl_b32 s6, s2, 1\ns_cmp_lt_u32 s{S_WAVE}, s6\ns_cselect_b32 s6, 1.0, 0\ns_sub_u32 s{S_M}, s{S_M}, {WS_MODP - WS_MOD}\ns_subb_u32 s{S_M+1}, s{S_M+1}, 0\ns_waitcnt vmcnt(0)")
        mod_finish(k, 192, 6)
        k(f"buffer_store_dwordx4 v[192:195], v30, {sr(S_M,4)}, s7 offen\ns_waitcnt vmcnt(0)")
        k("k1_nomod:")
    run(x_loads(1)); run(w_step(1))
    k.vmwait("W0", "lgkmcnt(0)"); k("s_barrier")
    run(preads(0)); run(preads(1)); run(wreads(0))
    assert LA_ == 4
    pend = [g for j in range(2, LA_) for g in x_loads(j) + w_step(j)]
    k.wait(lg="P0")
    k.stamp(1) if cfg.fine < 2 else None
    for i, v in enumerate(hcalc(0)):
        if i % 12 == 0: k.wait(vm=f"X0_{i//12}")
        if i % 6 == 0 and pend: run(pend.pop(0))
        k(v)
    kvplan = {12: kv_group('K', 0), 13: kv_group('K', 1), 14: kv_group('V', 0)}
    for j in range(15):
        k.c(f"qproj stage {j}")
        if cfg.fine == 1 and j in (0, 2, 4, 8, 12): k.stamp(2 + (0, 2, 4, 8, 12).index(j))
        mf = []
        for t in range(8):
            for q in range(4):
                qb = q if t % 2 == 0 else 3 - q
                d = QA(t, qb)
                mf.append(f"{MF} {d}, {ar(WF(j&1,t),4)}, {vr(HF(j&1,qb),4)}, {d if j else '0'}")
        lds = (preads(j+2) if j < 14 else []) + wreads(j+1)
        valu = hcalc(j+1)
        jj = j + LA_
        if jj >= 16: pend += kvplan[j]
        elif cfg.wb4:
            pend += x_loads(jj)
            if jj % cfg.wb4 == 0:
                for j2 in range(jj, min(16, jj + cfg.wb4)): pend += w_step(j2)
        else: pend += x_loads(jj) + w_step(jj)
        nvm = min(len(pend), cfg.nvm)
        vm = pend[:nvm]; pend = pend[nvm:]
        if cfg.x == 1: valu = valu[:16]
        gaps = fill(32, lds, valu, vm, g0=1, valu_end=31)
        add(gaps, -1, W(lg=f"R{j}_3"))
        front(gaps, 12, W(lg=f"R{j}_7"))
        if j < 2 or j % 2 == 1 or not cfg.bar2:
            tgt = j+1 if (j < 1 or not cfg.bar2) else j+2
            if cfg.wb4 and j + 1 >= 4:
                if (j + 1) % cfg.wb4 == 0:
                    front(gaps, 0, W(vm=f"X{j+1}"), W(vm=f"W{min(15, j + cfg.wb4)}", barrier=True))
                else: front(gaps, 0, W(vm=f"X{j+1}"))
            else: front(gaps, 0, W(vm=f"W{tgt}", barrier=True))
        else:
            front(gaps, 0, W(vm=f"X{j+1}"))
        emit(k, mf, gaps)
    assert not pend
    k.stamp(2) if not cfg.fine else (k.stamp(7) if cfg.fine == 1 else None)
    PF_F, PF_W = S_X, S_W
    pfsetup = [f"s_cmp_eq_u32 s{S_WAVE}, 1\ns_cselect_b64 s[{PF_F}:{PF_F+1}], s[58:59], s[56:57]",
        f"s_cmp_eq_u32 s{S_WAVE}, 2\ns_cselect_b64 s[{PF_F}:{PF_F+1}], s[60:61], s[{PF_F}:{PF_F+1}]",
        f"s_mul_i32 s6, s2, {43*128}\ns_add_u32 s{PF_F}, s{PF_F}, s6\ns_addc_u32 s{PF_F+1}, s{PF_F+1}, 0",
        f"s_lshl_b32 s6, s4, 17\ns_and_b32 s7, s5, 3\ns_lshl_b32 s7, s7, 15",
        f"s_add_u32 s6, s6, s7\ns_lshl_b32 s7, s{S_WAVE}, 13\ns_add_u32 s6, s6, s7",
        f"s_add_u32 s{PF_W}, s46, s6\ns_addc_u32 s{PF_W+1}, s47, 0\ns_mov_b32 s{PF_W+2}, 0x2000",
        f"s_cmp_eq_u32 s{S_WAVE}, 3\ns_cselect_b32 s{PF_F+2}, 0, {43*128}"]
    if OPT.xpf and OPT.ff:
        pfsetup += [f"s_lshl_b32 s6, s5, 1\ns_bfe_u32 s7, s2, 0x10005\ns_add_u32 s6, s6, s7",
            f"s_lshl_b32 s6, s6, 2\ns_and_b32 s7, s2, 3\ns_add_u32 s6, s6, s7",
            f"s_lshl_b32 s6, s6, 2\ns_bfe_u32 s7, s2, 0x20003\ns_add_u32 s6, s6, s7",
            f"s_lshl_b32 s6, s6, 2\ns_add_u32 s6, s6, s{S_WAVE}",
            f"s_lshl_b32 s6, s6, 11\ns_add_u32 s{S_M}, s0, s6\ns_addc_u32 s{S_M+1}, s1, 0\ns_mov_b32 s{S_M+2}, 2048"]
    elif OPT.xpf:
        pfsetup += [f"s_bfe_u32 s6, s2, 0x10002\ns_lshl_b32 s6, s6, 3\ns_bfe_u32 s7, s2, 0x30003",
            f"s_add_u32 s6, s6, s7\ns_lshl_b32 s6, s6, 2\ns_and_b32 s7, s2, 3",
            f"s_add_u32 s6, s6, s7\ns_lshl_b32 s6, s6, 2\ns_lshr_b32 s7, s2, 6",
            f"s_add_u32 s6, s6, s7\ns_lshl_b32 s6, s6, 2\ns_add_u32 s6, s6, s{S_WAVE}",
            f"s_lshl_b32 s6, s6, 11\ns_add_u32 s{S_M}, s0, s6\ns_addc_u32 s{S_M+1}, s1, 0\ns_mov_b32 s{S_M+2}, 2048"]
    V0, VD = V_PF, V_PF+3
    pfv = [f"v_lshrrev_b32 v{VD}, 8, v{V_L16}", f"v_lshlrev_b32 v{VD}, 24, v{VD}", f"v_lshl_add_u32 v{V0}, v{V_L16}, 3, v{VD}"]
    cf, cw, co = cfg.pfc
    def site(srd, c0, sh, off, fl):
        return [f"s_sub_u32 s6, s{S_CNT}, {c0}\ns_min_u32 s6, s6, 4\ns_lshl_b32 s6, s6, {sh}", f"buffer_load_dword v{VD}, v{V0}, {sr(srd,4)}, s6 offen offset:{off} {fl}"]
    pfs = [site(PF_F, cf, 11, 0, ""), site(S_M, OPT.xpf, 11, 0, "") if OPT.xpf else site(S_O, co, 17, 0, OPT.opf), site(PF_W, cw, 11, 0, OPT.wpf), site(S_O, co, 17, 2048, OPT.opf)]
    loopinit = f"s_mov_b32 s{S_CNT}, 8"
    k.c("merged head")
    k.wait(lg='all')
    def qk_q(buf, qb, czero):
        r = []
        for kb in range(2):
            for i in range(4):
                s_ = i if kb == 0 else 3 - i
                d = vr(S(buf, kb, qb), 4)
                c = d if i else ("0" if czero else vr(MN(qb), 4))
                nd = {f"Q{qb}": 2, f"KR{buf}": 0}
                if not czero: nd[f"MN{qb}"] = 2
                r.append(It(f"{MF} {d}, {ar(HK(buf)(kb*4+s_),4)}, {vr(Q(qb,s_),4)}, {c}", needs=nd, gives=f"S{buf}_{qb}"))
        return r
    mq = []
    for qb in range(4):
        for t in range(8):
            d = QA(t, qb)
            mq.append(It(f"{MF} {d}, {ar(WF(1,t),4)}, {vr(HF(1,qb),4)}, {d}", gives=f"A{t}_{qb}"))
    mq += qk_q(0,0,True) + qk_q(0,1,True) + qk_q(0,2,True) + qk_q(1,0,False) + qk_q(1,1,False) + qk_q(0,3,True) + qk_q(1,2,False) + qk_q(1,3,False)
    def conv(qb):
        r = []
        for s_ in range(4):
            for h in range(2):
                t = 2*s_ + h; nd = {f"A{t}_{qb}": 8}
                if qb < 2: a = 192 + (qb*8+t)*4
                else:
                    a = 224 + (t & 3)*4
                    for i in range(4): r.append(It(f"v_accvgpr_read_b32 v{a+i}, a{((qb-2)*8+t)*4+i}", needs=nd))
                for d in range(2): r.append(It(f"v_cvt_pk_bf16_f32 v{Q(qb,s_)+2*h+d}, v{a+2*d}, v{a+2*d+1}", needs=nd, gives=f"Q{qb}x"))
        r[-1].gives = f"Q{qb}"
        return r
    def rmax(qs):
        r = []
        for qb in qs:
            a = S(0, 0, qb); b = S(0, 1, qb); t = V_T + qb; nd = {f"S0_{qb}e": 8}
            r += [It(f"v_max3_f32 v{t}, v{a}, v{a+1}, v{a+2}", needs=nd), It(f"v_max3_f32 v{t+4}, v{b}, v{b+1}, v{b+2}"),
                  It(f"v_max3_f32 v{t}, v{t}, v{a+3}, v{b+3}"), It(f"v_max_f32 v{t}, v{t}, v{t+4}")]
        for n_, sw in enumerate(("v_permlane32_swap_b32", "v_permlane16_swap_b32")):
            for qb in qs: r.append(It(f"v_mov_b32 v{V_T+4+qb}, v{V_T+qb}", gives=f"mv{n_}_{qb}"))
            for qb in qs: r.append(It(f"{sw} v{V_T+4+qb}, v{V_T+qb}", cost=2, needs={f"mv{n_}_{qb}": 2}, gives=f"sw{n_}_{qb}"))
            for qb in qs: r.append(It(f"v_max_f32 v{V_T+qb}, v{V_T+qb}, v{V_T+4+qb}", needs={f"sw{n_}_{qb}": 1}))
        for qb in qs:
            for i in range(4): r.append(It(f"v_sub_f32 v{MN(qb)+i}, 0, v{V_T+qb}", gives=f"MN{qb}" if i == 3 else None))
        return r
    def sm0(qs, sub=True):
        r = []
        E = exps(0, qs); C = cvts(0, qs); A = adds(0, qs, cfg.addq())
        regs = [S(0, kb, qb) + i for qb in qs for kb in range(2) for i in range(4)]
        qof = [qb for qb in qs for _ in range(8)]
        n_ = len(E)
        for i in range(n_ + 2):
            if sub and i < n_: r.append(It(f"v_add_f32 v{regs[i]}, v{regs[i]}, v{MN(qof[i])}"))
            if 1 <= i <= n_: r.append(It(E[i-1], cost=2, gives=f"e{qs[0]}_{i-1}"))
            if i >= 2:
                if A[i-2]: r.append(It(A[i-2], needs={f"e{qs[0]}_{i-2}": 1}))
                if (i-2) % 2 == 1: r.append(It(C[(i-2)//2], needs={f"e{qs[0]}_{i-2}": 1}))
        return r
    last = {}
    for it in mq:
        if isinstance(it.gives, str) and it.gives.startswith("S"): last[it.gives] = it
    for g, it in last.items(): it.gives = g + "e"
    init = [It(f"v_mov_b32 v{V_LS+q}, 0") for q in range(4)] + [It(x) for x in pfv]
    vq = init + conv(0) + conv(1) + conv(2) + rmax([0, 1]) + conv(3) + sm0([0, 1]) + rmax([2, 3]) + sm0([2, 3])
    side = [It(W(vm="K0", barrier=True), cost=0, n=2)]
    for b in range(2):
        side += [It(L(x, f"HK{b}")) for x in kreads(0, b, HK(b))]
    side += [It(x, cost=0, n=3) for x in pfsetup]
    side += [It(W(lg="HK0"), cost=0, gives="KR0", needs={"A7_2": 0}), It(W(lg="HK1"), cost=0, gives="KR1")]
    G = lambda grp, nd=None: It(lambda kk, grp=grp: kk.run(grp), cost=2, n=3, needs=nd)
    side += [G(x) for x in kv_group('K', 2)] + [G(x, {"S0_2e": 0}) for x in kv_group('V', 1)]
    side += [It(W(vm="V0", barrier=True), cost=0, n=2, needs={"S0_3e": 0})]
    side += [It(x) for x in kreads(1, 0)] + [G(x) for x in kv_group('K', 3)] + [It(loopinit, cost=0, n=4)]
    merge(k, mq, vq, side)
    k("k1_first:")
    iteration(k, cfg, 1, "first")
    iteration(k, cfg, 2, "pv", czero=True)
    k.stamp(3) if not cfg.fine else None
    k("s_branch k1_pos2")
    k(".p2align 6")
    for _ in range(OPT.pad): k("s_nop 0")
    k("k1_loop:")
    iteration(k, cfg, 0, pf=pfs[0] if cfg.pf else ())
    iteration(k, cfg, 1, pf=pfs[1] if cfg.pf else ())
    iteration(k, cfg, 2, pf=pfs[2] if cfg.pf else (), label="k1_pos2")
    iteration(k, cfg, 3, pf=pfs[3] if cfg.pfo else (), post=[f"s_sub_u32 s{S_CNT}, s{S_CNT}, 1\ns_cmp_lg_u32 s{S_CNT}, 0\ns_cbranch_scc1 k1_loop"])
    k.stamp(4) if not cfg.fine else (k.stamp(1) if cfg.fine == 2 else None)
    if OPT.cpf2:
        k(f"s_cmp_ge_u32 s2, 16\ns_cbranch_scc1 k1_nocode\ns_lshr_b32 s6, s2, 3\ns_lshl_b32 s6, s6, 2\ns_add_u32 s6, s6, s{S_WAVE}")
        k.code_pf("k1_nocode", "code_end_marker", V_PF+1, S_M, 6)
        k("k1_nocode:")
    V_AW = 7
    def a_w(j):
        return [[f"s_add_u32 m0, s{S_W1}, {(j % OPT.anr)*8192 + p*4096}\ns_mov_b32 s{S_T0+4+p}, {((j>>2)*512 + (j&3)*32 + p*16)*1024}",
                 V(f"buffer_load_dwordx4 v{V_AW}, {sr(S_M,4)}, s{S_T0+4+p} offen lds", f"AW{j}")] for p in range(2)]
    extra = []
    if OPT.fa:
        k(f"v_lshrrev_b32 v2, 8, v{V_L16}\nv_lshl_add_u32 v2, v1, 2, v2\nv_and_b32 v3, 7, v2\nv_lshlrev_b32 v3, 5, v3\nv_and_b32 v4, 0xf0, v{V_L16}")
        k(f"v_xor_b32 v3, v3, v4\nv_lshl_add_u32 v{V_AW}, v2, 10, v3")
        k(f"s_and_b32 s6, s2, 3\ns_lshl_b32 s6, s6, 17\ns_bfe_u32 s7, s2, 0x20003\ns_lshl_b32 s7, s7, 8\ns_add_u32 s6, s6, s7")
        k(f"s_add_u32 s{S_M}, s46, s6\ns_addc_u32 s{S_M+1}, s47, 0\ns_sub_u32 s{S_M+2}, {4096*1024}, s6\ns_mov_b32 s{S_M+3}, 0x20000")
        k.vm = []
        extra = [g for j in range(OPT.na0) for g in a_w(j)]
    rest = iteration(k, cfg, 0, "tail", extra=extra)
    k.stamp(5) if not cfg.fine else (k.stamp(2) if cfg.fine == 2 else None)
    k.lg = ["V0"]*len(k.lg)
    k.run([x[1] for x in rest])
    nrest = len(rest); dbw = 8 - (nrest + 3)//4
    ns = 2*len(cfg.sumq)
    LT = 240
    mq = []
    for i, m in enumerate(pv2_mfmas(2, cfg.sumq)):
        db = (i - ns)//8
        it = It(m, gives="SUM" if i == ns-1 else (f"O{db}" if i >= ns and (i - ns) % 8 == 7 else None))
        if i == ns: it.needs = {"W0": 0}
        if i == ns + 8*dbw: it.needs = {"W1": 0}
        mq.append(it)
    side = [It(W(lg="V0"), cost=0, gives="W0")] + [It(f"s_mov_b32 s{S_T0+qb}, {qb*131072}", cost=0) for qb in range(4)]
    if OPT.fa:
        side += [It(lambda kk, g=g: kk.run(g), cost=2) for j in range(OPT.na0, OPT.na0 + OPT.na2) for g in a_w(j)]
    side += [It(W(lg="all"), cost=0, gives="W1", needs={f"O{dbw-2}": 0})]
    vq = []
    aq = cfg.addq()
    for n_, sw in enumerate(("v_permlane32_swap_b32", "v_permlane16_swap_b32")):
        for q in aq: vq.append(It(f"v_mov_b32 v{LT+4+q}, v{V_LS+q}", gives=f"a{n_}{q}"))
        for q in aq: vq.append(It(f"{sw} v{LT+4+q}, v{V_LS+q}", cost=2, needs={f"a{n_}{q}": 2}, gives=f"b{n_}{q}"))
        for q in aq: vq.append(It(f"v_add_f32 v{V_LS+q}, v{V_LS+q}, v{LT+4+q}", needs={f"b{n_}{q}": 1}))
    for q in cfg.sumq: vq.append(It(f"v_accvgpr_read_b32 v{V_LS+q}, a{LA(q)}", needs={"SUM": 8}))
    for q in range(4): vq.append(It(f"v_rcp_f32 v{LT+2*q}, v{V_LS+q}", cost=2))
    vq += [It(f"v_add_f32 v{LT+8}, v{V_LS}, v{V_LS+1}"), It(f"v_add_f32 v{LT+9}, v{V_LS+2}, v{V_LS+3}"), It(f"v_add_f32 v{LT+8}, v{LT+8}, v{LT+9}"),
           It(f"s_mov_b32 s6, {hexf(2.0**64)}\nv_cmp_nle_f32 vcc, v{LT+8}, s6"),
           It(f"s_lshl_b32 s7, s{S_WAVE}, 2\ns_add_u32 s7, s7, {FLAGB}\nv_mov_b32 v{LT+10}, s7"), It(f"v_mov_b32 v{LT+11}, {FLAGB}"),
           It(f"s_cmp_lg_u64 vcc, 0\ns_cselect_b32 s6, 1, 0\nv_mov_b32 v{LT+9}, s6"), It(L(f"ds_write_b32 v{LT+10}, v{LT+9}", "F"))]
    n_ = 0
    for s_ in range(4):
        for qb in range(4):
            t = 64 + (n_ & 3)*8; o = 32 + (n_ & 7)*4; n_ += 1
            for h in range(2):
                for i in range(4): vq.append(It(f"v_accvgpr_read_b32 v{t+4*h+i}, a{O(2*s_+h,qb)+i}", needs={f"O{2*s_+h}": 8}))
            if n_ <= cfg.npk:
                for i in range(8): vq.append(It(f"v_mul_f32 v{t+i}, v{t+i}, v{LT+2*qb}"))
            else:
                for i in range(4): vq.append(It(f"v_pk_mul_f32 {vr(t+2*i,2)}, {vr(t+2*i,2)}, {vr(LT+2*qb,2)} op_sel_hi:[1,0]"))
            for d in range(4): vq.append(It(f"v_cvt_pk_bf16_f32 v{o+d}, v{t+2*d}, v{t+2*d+1}"))
            vq.append(It(V(f"buffer_store_dwordx4 {vr(o,4)}, v{V_L16}, {sr(S_O,4)}, s{S_T0+qb} offen offset:{s_*1024} {'sc1' if (n_ <= OPT.nsc1 or OPT.fa) else OPT.st1}", "OST"), cost=2))
    if not OPT.fa: k.vm = []
    merge(k, mq, vq, side)
    if OPT.fa:
        for j in range(OPT.na0 + OPT.na2, OPT.na0 + OPT.na2 + OPT.na1): k.run(a_w(j))
        assert OPT.na0 + OPT.na1 + OPT.na2 <= 14
        k(f"s_lshl_b32 s6, s5, 1\ns_bfe_u32 s7, s2, 0x10005\ns_add_u32 s6, s6, s7\ns_lshl_b32 s6, s6, 2\ns_add_u32 s63, s6, s{S_WAVE}")
        k(f"s_lshl_b32 s6, s63, 18\ns_and_b32 s7, s2, 3\ns_lshl_b32 s7, s7, 12\ns_add_u32 s6, s6, s7\ns_add_u32 s6, s6, 0x{WS_OF:x}")
        k(f"s_add_u32 s{S_X}, s54, s6\ns_addc_u32 s{S_X+1}, s55, 0\ns_mov_b32 s{S_X+2}, {2*131072}")
        k(f"s_lshl_b32 s6, s63, 15\ns_lshl_b32 s7, s7, 9\ns_add_u32 s6, s6, s7\ns_bfe_u32 s7, s2, 0x20003\ns_lshl_b32 s7, s7, 12\ns_add_u32 s6, s6, s7\ns_add_u32 s6, s6, 0x{WS_PART:x}")
        k(f"s_add_u32 s{S_W}, s54, s6\ns_addc_u32 s{S_W+1}, s55, 0\ns_mov_b32 s{S_W+2}, {16384+4096}")
        k.wait(vm="OST")
    k("s_waitcnt lgkmcnt(0)\ns_barrier")
    k(f"ds_read_b128 {vr(LT+12,4)}, v{LT+11}\ns_waitcnt lgkmcnt(0)")
    k(f"v_or_b32 v{LT+12}, v{LT+12}, v{LT+13}\nv_or3_b32 v{LT+12}, v{LT+12}, v{LT+14}, v{LT+15}\ns_nop 0")
    k(f"v_readfirstlane_b32 s6, v{LT+12}")
    k(f"s_andn2_b32 s6, s6, s{S_RERUN}\ns_cmp_lg_u32 s6, 0\ns_cbranch_scc1 k1_fallback")
    if OPT.fa:
        k.stamp(6) if not cfg.fine else (k.stamp(3) if cfg.fine == 2 else k1t.st(k, 'x0'))
        k.srd(S_K, 54, 4*32768, WS_FLAG)
        k(f"s_and_b32 s6, s2, 7\ns_lshl_b32 s6, s6, 2\ns_lshr_b32 s7, s2, 6\ns_add_u32 s6, s6, s7\ns_lshl_b32 s63, s6, 10\ns_bfe_u32 s7, s2, 0x30003")
        k(f"v_lshlrev_b32 v2, 3, v{V_L16}\ns_lshl_b32 s6, s7, 2\nv_add_u32 v2, s6, v2\nv_mov_b32 v3, 1")
        k(f"s_cmp_eq_u32 s{S_WAVE}, 1\ns_cbranch_scc0 k1_nf\ns_mov_b64 exec, 0xff")
        k(f"buffer_store_dword v3, v2, {sr(S_K,4)}, s63 offen sc1\ns_mov_b64 exec, -1")
        k("k1_nf:")
        V_W0 = 32
        for t in range(8): k(f"v_add_u32 v{V_W0+t}, {-VB & 0xffffffff}, v{V_VA+t}\nv_add_u32 v{V_W0+8+t}, {VB}, v{V_VA+t}")
        k(f"v_bfe_u32 v2, v{V_L16}, 4, 3\nv_lshlrev_b32 v2, 2, v2\ns_lshl_b32 s6, s7, 7\nv_add_u32 v2, s6, v2")
        for j in range(OPT.na0 + OPT.na1 + OPT.na2, OPT.anr): k.run(a_w(j))
        if OPT.ff: k1t.setup_early(k)
        k(f"s_cmp_eq_u32 s{S_WAVE}, 0\ns_cbranch_scc0 k1_np\ns_mov_b32 s7, 0")
        k("k1_poll:")
        k(f"buffer_load_dword v3, v2, {sr(S_K,4)}, s63 offen sc1\ns_waitcnt vmcnt(0)\nv_cmp_ne_u32 vcc, 1, v3")
        k("s_cbranch_vccz k1_np\ns_add_u32 s7, s7, 1\ns_cmp_lt_u32 s7, 0x10000\ns_cbranch_scc1 k1_poll")
        k("k1_np:")
        k("s_waitcnt vmcnt(0)\ns_barrier")
        k.vm = []; k.lg = []
        if cfg.fine == 2: k.stamp(4); k("s_waitcnt lgkmcnt(0)")
        if cfg.fine == 3: k1t.st(k, 'y0')
        AC = lambda t, tb: 64 + (t*2+tb)*4
        AWF = lambda j, t: 128 + ((j&3)*8+t)*4
        ABF = lambda j, tb: (j*2+tb)*4
        def a_b(j):
            return [[f"s_mov_b32 s{S_T0+tb}, {tb*131072 + (j>>2)*16384}",
                     V(f"buffer_load_dwordx4 {ar(ABF(j,tb),4)}, v{V_L16}, {sr(S_X,4)}, s{S_T0+tb} offen offset:{(j&3)*1024} sc1", f"AB{j}")] for tb in range(2)]
        def a_reads(p):
            r = []
            for t in range(8):
                for j in (2*p, 2*p+1):
                    base = (j % OPT.anr)*8192; off = base & 0xffff
                    r += [L(f"ds_read_b64_tr_b16 {vr(AWF(j,t)+2*h,2)}, v{(V_W0, V_VA, V_W0+8)[base >> 16]+t} offset:{off + h*4096}", f"R{p}_{t}") for h in range(2)]
            return r
        nb = OPT.nb0
        for j in range(nb): k.run(a_b(j))
        k.run(a_reads(0))
        nw = OPT.anr; ncw = 0
        for p in range(16):
            mf = []; n_ = 0
            for t in range(8):
                for tb_ in range(2):
                    tb = tb_ if t % 2 == 0 else 1 - tb_
                    d = vr(AC(t, tb), 4)
                    for i, j in enumerate((2*p, 2*p+1) if n_ % 2 == 0 else (2*p+1, 2*p)):
                        mf.append(f"{MF} {d}, {vr(AWF(j,t),4)}, {ar(ABF(j,tb),4)}, {d if (p or i) else '0'}")
                    n_ += 1
            if p == 15 and OPT.amrg:
                k.wait(vm=f"AB{2*p+1}", lg=f"R{p}_3")
                mq = []; vq = []; n_ = 0
                for ns_ in range(4):
                    for tb_ in range(2):
                        tb = tb_ if ns_ % 2 == 0 else 1 - tb_
                        o = 128 + n_*4
                        for h_ in range(2):
                            h = h_ if n_ % 2 == 0 else 1 - h_
                            t = 2*ns_ + h; a = AC(t, tb); d = vr(a, 4)
                            for i, j in enumerate((2*p, 2*p+1) if h_ == 0 else (2*p+1, 2*p)):
                                mq.append(It(f"{MF} {d}, {vr(AWF(j,t),4)}, {ar(ABF(j,tb),4)}, {d}", gives=f"D{t}{tb}" if i else None, needs={"RR": 0} if len(mq) == 16 else None))
                            vq += [It(f"v_cvt_pk_bf16_f32 v{o+2*h+e}, v{a+2*e}, v{a+2*e+1}", needs={f"D{t}{tb}": 8}) for e in range(2)]
                        vq.append(It(V(f"buffer_store_dwordx4 {vr(o,4)}, v{V_L16}, {sr(S_W,4)}, s{S_T0+tb} offen offset:{ns_*1024} sc1", "PST"), cost=2))
                        n_ += 1
                merge(k, mq, vq, [It(f"s_mov_b32 s{S_T0}, 0\ns_mov_b32 s{S_T0+1}, 16384", cost=0), It(W(lg='all'), cost=0, gives="RR", needs={"D01": 0})])
                break
            vm = []
            for _ in range(OPT.nbs):
                wok = nw < 32 and p >= (nw-OPT.anr)//2 + 2
                if wok and (nb >= 32 or nw//2 - 1 - OPT.wlead <= nb//2): vm += a_w(nw); nw += 1
                elif nb < 32: vm += a_b(nb); nb += 1
                elif OPT.ff and nw == 32 and ncw < OPT.fce and len(vm) <= 3 and k1t.a_last(k1t.cperm()[ncw], OPT.anr) <= p - 1:
                    vm += k1t.c_w(ncw); ncw += 1
            if OPT.ff and p == OPT.fxp: vm += k1t.x_loads()
            if OPT.ff and p in (OPT.fmp, OPT.fmp+1): vm += k1t.m_loads()[4*(p-OPT.fmp):4*(p-OPT.fmp)+4]
            rd = a_reads(p+1) if p < 15 else []
            if OPT.ax == 1: rd = []
            if OPT.ax == 2: vm = []
            if OPT.ax == 3: rd = rd[:24]
            if OPT.ax == 4: vm = [x for x in vm if "m0" in x[0]]
            if OPT.amix:
                gaps = fill(32, [], [], vm, g0=1)
                fr = [g for g in range(1, 31) if g not in gaps]
                for i, g in enumerate(fr):
                    c = (len(rd) + len(fr) - i - 1)//(len(fr) - i) if (i % 2 == 0 or len(rd) >= 2*(len(fr)-i)) else len(rd)//(len(fr) - i)
                    for _ in range(c): add(gaps, g, rd.pop(0))
                assert not rd
            else:
                gaps = fill(32, rd, [], vm, g0=1, pair_lds=True)
            add(gaps, -1, W(vm=f"AB{2*p+1}", lg=f"R{p}_3"))
            front(gaps, 12, W(lg=f"R{p}_7"))
            if 1 <= p < 15 and not OPT.anob: front(gaps, 0, W(vm=f"AW{2*p+3}", barrier=True))
            emit(k, mf, gaps)
            if cfg.fine == 2 and p == 1: k.stamp(5); k("s_waitcnt lgkmcnt(0)"); k.lg = []
        if cfg.fine == 2: k.stamp(6)
        assert nb == 32 and nw == 32
        k(f"s_mov_b32 s{S_T0}, 0\ns_mov_b32 s{S_T0+1}, 16384")
        n_ = 0
        for ns_ in range(4 if not OPT.amrg else 0):
            for tb in range(2):
                o = 128 + n_*4; n_ += 1
                for h in range(2):
                    a = AC(2*ns_+h, tb)
                    k(f"v_cvt_pk_bf16_f32 v{o+2*h}, v{a}, v{a+1}\nv_cvt_pk_bf16_f32 v{o+2*h+1}, v{a+2}, v{a+3}")
                k(f"buffer_store_dwordx4 {vr(o,4)}, v{V_L16}, {sr(S_W,4)}, s{S_T0+tb} offen offset:{ns_*1024} sc1")
        if OPT.ff: k1t.rest(k, ncw)
    k.dbg_mark(3, 100, 101, True); k.dbg_mark(4, 102, 103)
    if prof:
        k.stamp(6) if not (cfg.fine or OPT.fa) else None
        k("s_waitcnt vmcnt(0)")
        k.stamp(7) if cfg.fine != 1 else None
        k.dump_stamps(8, 54, 100)
    k(f"{end}:")
    k("s_endpgm")
    k("k1_fallback:")
    k(f"s_mov_b32 s{S_RERUN}, 1")
    k("v_and_b32 v2, 63, v0\nv_lshrrev_b32 v3, 4, v2\nv_and_b32 v4, 15, v2")
    k("v_lshlrev_b32 v5, 8, v4\nv_lshl_add_u32 v5, v3, 4, v5")
    for q in range(4): k(f"v_mov_b32 v{V_T+q}, 0xff800000")
    k("s_mov_b32 s6, 0")
    k("k1_fb_loop:")
    for s in range(4): k(f"buffer_load_dwordx4 {ar(KF(s),4)}, v5, {sr(S_K,4)}, s6 offen offset:{64*s}")
    k("s_waitcnt vmcnt(0)")
    for s in range(4):
        for qb in range(4):
            d = vr(S(0,0,qb),4)
            k(f"{MF} {d}, {ar(KF(s),4)}, {vr(Q(qb,s),4)}, {d if s else '0'}")
    k("s_nop 15")
    for qb in range(4):
        a = S(0,0,qb)
        k(f"v_max3_f32 v{V_T+qb}, v{V_T+qb}, v{a}, v{a+1}")
        k(f"v_max3_f32 v{V_T+qb}, v{V_T+qb}, v{a+2}, v{a+3}")
    k("s_add_u32 s6, s6, 4096\ns_cmp_lt_u32 s6, 0x80000\ns_cbranch_scc1 k1_fb_loop")
    rowmax_cross(k, [V_T+q for q in range(4)], V_T+4)
    for x in pfv: k(x)
    for qb in range(4):
        k(f"v_mov_b32 v{V_LS+qb}, 0")
        for i in range(4): k(f"v_sub_f32 v{MN(qb)+i}, 0, v{V_T+qb}")
    k("s_barrier")
    k.vm = []; k.lg = []
    for wh, t in (('K',0),('K',1),('V',0),('K',2),('V',1),('K',3)): run(kv_group(wh, t))
    k.wait(vm="V0", barrier=True)
    run(kreads(0, 0, HK(0))); k("s_waitcnt lgkmcnt(0)"); run(kreads(0, 1, HK(1)))
    for m in qk_mfmas(0, HK(0)): k(m)
    k("s_waitcnt lgkmcnt(0)\ns_barrier")
    run(kreads(1, 0))
    for m in qk_mfmas(1, HK(1)): k(m)
    merge(k, [], sm0([0, 1, 2, 3], sub=False))
    k(loopinit)
    k("s_branch k1_first")
    return k
```

```python
from common import *
from sched import *
from k0 import mod_loads, mod_finish
MF = "v_mfma_f32_16x16x32_bf16"
S_K, S_V, S_W, S_X, S_M, S_O, S_D = 8, 12, 16, 20, 24, 28, 48
S_T0, S_WAVE, S_W1 = 36, 45, 62
S_TT, S_MM, S_W3 = 33, 34, 35
V_L16 = 26
PAR2 = 9*16384 + 8192
SCR = 9*16384 + 4096 + 64
C_W, C_NW = 12288, 12
D_U, D_NW = 16384, 9
V_DC, V_DD = 20, 23
XR = 48

def spread(n, rd, vm, g0=1, g1=None):
    gaps = fill(n, [], [], vm, g0=g0)
    fr = [g for g in range(g0, (g1 or n-1)) if g not in gaps]
    rd = list(rd)
    for i, g in enumerate(fr):
        left = len(fr) - i
        c = -(-len(rd)//left) if (i % 2 == 0 or len(rd) >= 2*left) else len(rd)//left
        for _ in range(c): add(gaps, g, rd.pop(0))
    assert not rd
    return gaps

def a_last(i, anr):
    sl = range((i*C_W)//8192, (i*C_W + C_W - 1)//8192 + 1)
    return max(max(x for x in range(32) if x % anr == s_)//2 if s_ < anr else -1 for s_ in sl)
def cperm(): return sorted(range(C_NW), key=lambda i: (a_last(i, OPT.anr), i))
def c_last(i):
    P = cperm()
    sl = range((i*D_U)//C_W, (i*D_U + D_U - 1)//C_W + 1)
    return max(max(x for x in range(16) if P[x % C_NW] == s_)//2 for s_ in sl)
def dperm(): return sorted(range(D_NW), key=lambda i: (c_last(i), i))

def c_w(j):
    return [[(f"s_add_u32 m0, s{S_W3}, {cperm()[j % C_NW]*C_W}\ns_mov_b32 s{S_T0+6}, {j*32*2752}"),
             V(f"buffer_load_dwordx4 v{V_DC+p}, {sr(S_V,4)}, s{S_T0+6} offen offset:{p*1024} lds", f"CW{j}")] for p in range(3)]
def d_w(i):
    return [[f"s_add_u32 m0, s32, {dperm()[i % D_NW]*D_U}\ns_mov_b32 s{S_T0+7}, {i*128*1024 + p*(8192-1024)}",
             V(f"buffer_load_dwordx4 v{V_DD}, {sr(S_D,4)}, s{S_T0+7} offen offset:{p*1024} lds", f"DW{i}")] for p in range(4)]

def setup_early(k):
    k(f"s_lshl_b32 s{S_TT}, s5, 1\ns_bfe_u32 s6, s2, 0x10005\ns_add_u32 s{S_TT}, s{S_TT}, s6")
    k(f"s_and_b32 s{S_MM}, s2, 3\ns_lshl_b32 s{S_MM}, s{S_MM}, 2\ns_bfe_u32 s6, s2, 0x20003\ns_add_u32 s{S_MM}, s{S_MM}, s6")
    k.srd(52, 54, 4*12288, WS_MODP) if False else None
    k("v_lshlrev_b32 v31, 4, v0")
    k(f"s_mul_i32 s{S_W3}, s{S_WAVE}, 3072\ns_mul_i32 s6, s{S_MM}, 192\ns_min_u32 s6, s6, {14*192}")
    k(f"s_cmp_lt_u32 s{S_WAVE}, 2\ns_cselect_b64 s[{S_V}:{S_V+1}], s[56:57], s[58:59]")
    k(f"s_add_u32 s{S_V}, s{S_V}, s6\ns_addc_u32 s{S_V+1}, s{S_V+1}, 0\ns_sub_u32 s{S_V+2}, {512*2752}, s6")
    k(f"s_cmp_eq_u32 s{S_MM}, 15\ns_cselect_b32 s{S_V+2}, 0, s{S_V+2}")
    k(f"s_and_b32 s6, s{S_MM}, 7\ns_lshl_b32 s6, s6, 7\ns_lshl_b32 s{S_T0+4}, s{S_WAVE}, 15\ns_add_u32 s6, s6, s{S_T0+4}")
    k(f"s_add_u32 s{S_D}, s60, s6\ns_addc_u32 s{S_D+1}, s61, 0\ns_sub_u32 s{S_D+2}, {1376*1024}, s6\ns_mov_b32 s{S_D+3}, 0x20000")
    k(f"v_lshrrev_b32 v5, 4, v{V_L16}\nv_and_b32 v6, 1, v1\nv_lshlrev_b32 v6, 4, v6")
    for p in range(3):
        k(f"v_add_u32 v56, {64*p}, v5")
        k("v_mul_u32_u24 v57, 0x5556, v56\nv_lshrrev_b32 v57, 18, v57")
        k("v_mul_u32_u24 v58, 12, v57\nv_sub_u32 v58, v56, v58")
        k("v_lshrrev_b32 v59, 1, v57\nv_and_b32 v59, 2, v59\nv_xor_b32 v58, v58, v59")
        k("v_add_u32 v57, v57, v6\nv_mul_u32_u24 v57, 2752, v57")
        k(f"v_lshl_add_u32 v{V_DC+p}, v58, 4, v57")
        if p: k(f"v_subrev_u32 v{V_DC+p}, {1024*p}, v{V_DC+p}")
    k("v_lshrrev_b32 v56, 3, v5\nv_and_b32 v57, 7, v5\nv_and_b32 v58, 6, v56\nv_xor_b32 v57, v57, v58")
    k(f"v_lshlrev_b32 v56, 10, v56\nv_lshl_add_u32 v{V_DD}, v57, 4, v56")
    k("v_and_b32 v56, 7, v0\nv_bfe_u32 v57, v0, 3, 2\nv_lshrrev_b32 v58, 5, v0")
    k("v_lshlrev_b32 v24, 10, v58\nv_lshl_add_u32 v24, v57, 8, v24\nv_lshl_add_u32 v24, v56, 4, v24")
    k("v_lshlrev_b32 v25, 10, v56\nv_lshl_add_u32 v25, v58, 6, v25\nv_lshl_add_u32 v25, v57, 3, v25")
    k(f"v_lshlrev_b32 v28, 7, v58\nv_lshl_add_u32 v28, v57, 4, v28\nv_add_u32 v28, {PAR2}, v28")
    k(f"v_lshlrev_b32 v29, 4, v56\nv_add_u32 v29, {SCR}, v29\nv_lshl_add_u32 v30, v1, 2, v29")
    k(f"s_lshl_b32 s6, s{S_TT}, 4\ns_add_u32 s6, s6, s{S_MM}\ns_lshl_b32 s6, s6, 13")
    k(f"s_add_u32 s{S_O}, s0, s6\ns_addc_u32 s{S_O+1}, s1, 0\ns_mov_b32 s{S_O+2}, 8192")
    k.srd(56, 54, 4*12288, WS_MODP)

def m_loads():
    return [[f"s_mov_b32 s{S_T0+2}, {4096*(1+(i>>2)) + (i&3)*12288}", V(f"buffer_load_dwordx4 {ar(4*i,4)}, v31, s[56:59], s{S_T0+2} offen", "M")] for i in range(8)]
def m_finish(k):
    for i in range(32): k(f"v_accvgpr_read_b32 v{64+i}, a{i}")
    k(f"s_mov_b32 s6, 0\ns_cmp_lt_u32 s{S_WAVE}, 2\ns_cselect_b32 s{S_T0+4}, 1.0, 0\nv_add_u32 v31, {PAR2}, v31")
    mod_finish(k, 64, 6); mod_finish(k, 80, S_T0+4)
    k("ds_write_b128 v31, v[64:67]\nds_write_b128 v31, v[80:83] offset:4096\ns_waitcnt lgkmcnt(0)")

def x_loads():
    return [[V(f"buffer_load_dwordx2 {vr(XR+pc*4+h*2,2)}, v25, {sr(S_O,4)}, 0 offen offset:{pc*512+h*32}", "X")] for pc in range(2) for h in range(2)]

def handoff(k, ph, tag, mid=(), delay=True):
    lab = f"k1_h{ph}"
    k(f"s_lshl_b32 s63, s{S_TT}, 11\ns_add_u32 s63, s63, {ph*32768}")
    k(f"v_lshlrev_b32 v2, 3, v{V_L16}\ns_lshl_b32 s6, s{S_MM}, 2\nv_add_u32 v2, s6, v2\nv_mov_b32 v3, 1")
    k(f"v_bfe_u32 v4, v{V_L16}, 4, 4\nv_lshlrev_b32 v4, 2, v4\ns_lshl_b32 s6, s{S_MM}, 7\nv_add_u32 v4, s6, v4")
    k.wait(vm=tag, barrier=True)
    k(f"s_cmp_eq_u32 s{S_WAVE}, 1\ns_cbranch_scc0 {lab}_a\ns_mov_b64 exec, 0xffff")
    k(f"buffer_store_dword v3, v2, {sr(S_K,4)}, s63 offen sc1\ns_mov_b64 exec, -1")
    k(f"{lab}_a:")
    k.run(mid)
    k(f"s_cmp_eq_u32 s{S_WAVE}, 0\ns_cbranch_scc0 {lab}_c\ns_mov_b32 s7, 0")
    if delay: k(f"s_sleep {OPT.pdelay}")
    k(f"{lab}_b:")
    k(f"buffer_load_dword v3, v4, {sr(S_K,4)}, s63 offen sc1\ns_waitcnt vmcnt(0)\nv_cmp_ne_u32 vcc, 1, v3")
    k(f"s_cbranch_vccz {lab}_c\ns_add_u32 s7, s7, 1\ns_cmp_lt_u32 s7, 0x10000\ns_cbranch_scc1 {lab}_b")
    k(f"{lab}_c:")
    k("s_waitcnt vmcnt(0)\ns_barrier")
    k.vm = []

def st(k, name):
    names = OPT.fts.split(',')
    if name in names:
        k.stamp(1 + names.index(name))
        if getattr(k, 'prof', False): k("s_waitcnt lgkmcnt(0)"); k.lg = []

def rest(k, ncw):
    k.srd(S_X, 54, 4*2048*1024, WS_PART)
    k.srd(S_M, 54, 2048*1024, WS_H2)
    k(f"s_lshl_b32 s6, s{S_TT}, 4\ns_add_u32 s6, s6, s{S_MM}\ns_lshr_b32 s7, s6, 1\ns_lshl_b32 s7, s7, 14\ns_and_b32 s6, s6, 1\ns_lshl_b32 s6, s6, 7\ns_add_u32 s44, s7, s6")
    st(k, "s1")
    n1 = min(OPT.fc1, C_NW - ncw)
    handoff(k, 1, "PST", [g for j in range(ncw, ncw + n1) for g in c_w(j)] + [m_finish], delay=False); ncw += n1
    k.lg = []
    st(k, "y1")
    PR, PA, AC, T, XF = 64, 96, 144, 160, 168
    for i in range(8):
        k(f"s_add_u32 s{S_T0+(i&3)}, s44, {(i>>1)*0x200000 + (i&1)*8192}")
        k.vmop(f"buffer_load_dwordx4 {vr(PR+i*4,4)}, v24, {sr(S_X,4)}, s{S_T0+(i&3)} offen sc1", f"S{i>>1}")
    k.srd(S_W, 54, 2048*1024, WS_X1)
    k(f"s_add_u32 s{S_T0+4}, s44, 8192")
    for wi in range(3):
        for pc in range(2):
            for h in range(2): k(f"ds_read_b128 {vr(PA+wi*16+pc*8+h*4,4)}, v28 offset:{wi*2048 + pc*1024 + h*64}")
    n2 = min(OPT.fc2, C_NW - ncw)
    for j in range(ncw, ncw + n2): k.run(c_w(j))
    ncw += n2
    for d in range(8): k(f"v_lshlrev_b32 v{XF+2*d}, 16, v{XR+d}\nv_and_b32 v{XF+2*d+1}, 0xffff0000, v{XR+d}")
    for sp in range(4):
        k.wait(vm=f"S{sp}")
        for d in range(8):
            w = PR + sp*8 + d; t_ = T + 2*(d & 3)
            if sp == 0: k(f"v_lshlrev_b32 v{AC+2*d}, 16, v{w}\nv_and_b32 v{AC+2*d+1}, 0xffff0000, v{w}")
            else:
                k(f"v_lshlrev_b32 v{t_}, 16, v{w}\nv_and_b32 v{t_+1}, 0xffff0000, v{w}")
                k(f"v_pk_add_f32 {vr(AC+2*d,2)}, {vr(AC+2*d,2)}, {vr(t_,2)}")
    k("s_waitcnt lgkmcnt(0)")
    st(k, "p")
    for d in range(8): k(f"v_pk_fma_f32 {vr(AC+2*d,2)}, {vr(AC+2*d,2)}, {vr(PA+2*d,2)}, {vr(XF+2*d,2)}")
    for d in range(8): k(f"v_cvt_pk_bf16_f32 v{XR+d}, v{AC+2*d}, v{AC+2*d+1}")
    for d in range(8): k(f"v_lshlrev_b32 v{AC+2*d}, 16, v{XR+d}\nv_and_b32 v{AC+2*d+1}, 0xffff0000, v{XR+d}")
    def wsum(r):
        k(f"s_nop 1\nv_add_f32 v{r}, v{r}, v{r} row_ror:8")
        for sw in ("v_permlane16_swap_b32", "v_permlane32_swap_b32"):
            k(f"v_mov_b32 v{r+1}, v{r}\ns_nop 1\n{sw} v{r+1}, v{r}\ns_nop 1\nv_add_f32 v{r}, v{r}, v{r+1}")
    SO = ("s44", f"s{S_T0+4}")
    for i in range(4): k(f"v_pk_add_f32 {vr(T+2*i,2)}, {vr(AC+2*i,2)}, {vr(AC+8+2*i,2)}")
    for i in range(2): k(f"v_pk_add_f32 {vr(T+2*i,2)}, {vr(T+2*i,2)}, {vr(T+4+2*i,2)}")
    k(f"v_pk_add_f32 {vr(T,2)}, {vr(T,2)}, {vr(T+2,2)}\nv_add_f32 v{T}, v{T}, v{T+1}")
    for pc in range(2): k.vmop(f"buffer_store_dwordx4 {vr(XR+pc*4,4)}, v24, {sr(S_W,4)}, {SO[pc]} offen sc1", "HST")
    wsum(T)
    k(f"v_mul_f32 v14, {hexf(-1/128)}, v{T}")
    for i in range(8): k(f"v_pk_add_f32 {vr(AC+2*i,2)}, {vr(AC+2*i,2)}, v[14:15] op_sel_hi:[1,0]")
    for i in range(2): k(f"v_pk_mul_f32 {vr(T+2*i,2)}, {vr(AC+2*i,2)}, {vr(AC+2*i,2)}")
    for i in range(2, 8): k(f"v_pk_fma_f32 {vr(T+2*(i&1),2)}, {vr(AC+2*i,2)}, {vr(AC+2*i,2)}, {vr(T+2*(i&1),2)}")
    k(f"v_pk_add_f32 {vr(T,2)}, {vr(T,2)}, {vr(T+2,2)}\nv_add_f32 v{T}, v{T}, v{T+1}")
    wsum(T)
    k(f"ds_write_b32 v30, v14\nds_write_b32 v30, v{T} offset:128")
    for i in range(8): k(f"v_pk_mul_f32 {vr(AC+2*i,2)}, {vr(AC+2*i,2)}, {vr(PA+32+2*i,2)}")
    k("s_waitcnt lgkmcnt(0)\ns_barrier")
    k(f"ds_read_b128 {vr(T,4)}, v29\nds_read_b128 {vr(T+4,4)}, v29 offset:128\ns_waitcnt lgkmcnt(1)")
    k(f"v_pk_add_f32 v[12:13], {vr(T,2)}, {vr(T+2,2)}\nv_add_f32 v12, v12, v13\nv_mul_f32 v12, {hexf(-0.25)}, v12")
    for h in range(2): k(f"v_pk_add_f32 {vr(T+2*h,2)}, {vr(T+2*h,2)}, v[12:13] op_sel_hi:[1,0]")
    k(f"v_add_f32 v14, v14, v12\nv_pk_mul_f32 {vr(T,2)}, {vr(T,2)}, {vr(T,2)}\nv_pk_fma_f32 {vr(T,2)}, {vr(T+2,2)}, {vr(T+2,2)}, {vr(T,2)}\ns_waitcnt lgkmcnt(0)")
    k(f"v_pk_add_f32 {vr(T+4,2)}, {vr(T+4,2)}, {vr(T+6,2)}\nv_add_f32 v{T}, v{T}, v{T+1}\nv_add_f32 v{T+4}, v{T+4}, v{T+5}")
    k(f"v_mov_b32 v12, {hexf(1e-5)}\nv_fmac_f32 v12, {hexf(0.25)}, v{T}\nv_fmac_f32 v12, {hexf(1/512)}, v{T+4}\nv_rsq_f32 v12, v12\ns_nop 0")
    k("v_mul_f32 v14, v14, v12\nv_sub_f32 v14, 0, v14")
    for pc in range(2):
        for i in range(4*pc, 4*pc+4): k(f"v_pk_fma_f32 {vr(PA+16+2*i,2)}, {vr(PA+32+2*i,2)}, v[14:15], {vr(PA+16+2*i,2)} op_sel_hi:[1,0,1]")
        for i in range(4*pc, 4*pc+4): k(f"v_pk_fma_f32 {vr(AC+2*i,2)}, {vr(AC+2*i,2)}, v[12:13], {vr(PA+16+2*i,2)} op_sel_hi:[1,0,1]")
        for d in range(4*pc, 4*pc+4): k(f"v_cvt_pk_bf16_f32 v{PR+d}, v{AC+2*d}, v{AC+2*d+1}")
        k.vmop(f"buffer_store_dwordx4 {vr(PR+4*pc,4)}, v24, {sr(S_M,4)}, {SO[pc]} offen sc1", "HST")
    CA = lambda m, t, tb: 64 + ((t*2+m)*2+tb)*4
    CW = lambda j, m, t, n=4, o=0: (ar if (j >> 1) & 1 else vr)((128 if (j >> 1) & 1 else 160) + (((j & 1)*6+t)*2+m)*4 + o, n)
    CB = lambda j, tb: (j*2+tb)*4
    V_CW = 8
    k(f"v_lshrrev_b32 v56, 8, v{V_L16}\nv_bfe_u32 v57, v{V_L16}, 6, 2\nv_bfe_u32 v58, v{V_L16}, 4, 2")
    k("v_lshl_add_u32 v59, v56, 2, v57\nv_mul_u32_u24 v60, 192, v59\nv_lshl_add_u32 v60, v58, 3, v60\nv_and_b32 v61, 1, v56")
    for par in range(2):
        k(f"v_xor_b32 v62, {par}, v61\nv_lshl_add_u32 v{V_CW+par}, v62, 5, v60\nv_add_u32 v{V_CW+2+par}, {5*C_W}, v{V_CW+par}\nv_add_u32 v{V_CW+4+par}, {10*C_W}, v{V_CW+par}")
    k(f"s_lshl_b32 s6, s{S_TT}, 2\ns_add_u32 s6, s6, s{S_WAVE}\ns_lshl_b32 s44, s6, 15")
    k(f"s_mul_i32 s6, s6, {2*43*1024}\ns_mul_i32 s7, s{S_MM}, 3072\ns_add_u32 s6, s6, s7\ns_add_u32 s6, s6, 0x{WS_HF:x}")
    k(f"s_add_u32 s{S_X}, s54, s6\ns_addc_u32 s{S_X+1}, s55, 0\ns_mov_b32 s{S_X+2}, {43*1024+3072}")
    k(f"s_mov_b32 s{S_O}, s{S_X}\ns_mov_b32 s{S_O+1}, s{S_X+1}\ns_cmp_eq_u32 s{S_MM}, 14\ns_cselect_b32 s{S_O+2}, 0, s{S_X+2}")
    def c_reads(p):
        r = []
        for t in range(6):
            for m in range(2):
                for j in (2*p, 2*p+1):
                    sl = cperm()[j % C_NW]; bank = sl // 5; off = (sl % 5)*C_W
                    r += [L(f"ds_read_b64_tr_b16 {CW(j,m,t,2,2*h)}, v{V_CW+2*bank+(t&1)} offset:{off + m*6144 + h*3072 + (t>>1)*64}", f"R{p}_{t}") for h in range(2)]
        return r
    st(k, "s2")
    n3 = min(OPT.fc3, C_NW - ncw)
    k.lg = []
    assert ncw - n2 >= 2
    handoff(k, 2, "HST", [g for j in range(ncw, ncw + n3) for g in c_w(j)] + c_reads(0), delay=OPT.fdl2); ncw += n3
    st(k, "y2")
    assert ncw >= 4
    k(f"s_cmp_eq_u32 s{S_MM}, 15\ns_cbranch_scc1 k1_c15")
    def c_b(j):
        return [[f"s_add_u32 s{S_T0+tb}, s44, {tb*16384 + (j>>2)*4096}",
                 V(f"buffer_load_dwordx4 {ar(CB(j,tb),4)}, v{V_L16}, {sr(S_M,4)}, s{S_T0+tb} offen offset:{(j&3)*1024} sc1", f"CB{j}")] for tb in range(2)]
    nb = OPT.fb0
    for j in range(nb): k.run(c_b(j))
    nd = 0
    for p in range(8):
        if p == 7:
            st(k, "c7")
            k.wait(vm="CB15", lg="R7_1")
            mq = []; vq = []; n_ = 0
            for u in range(3):
                for tb in range(2):
                    o = 32 + (n_ & 3)*4
                    for h in range(2):
                        t = 2*u + h
                        for m in range(2):
                            d = vr(CA(m, t, tb), 4)
                            for i, j in enumerate((14, 15) if m == 0 else (15, 14)):
                                mq.append(It(f"{MF} {d}, {CW(j,m,t)}, {ar(CB(j,tb),4)}, {d}", gives=f"D{t}{tb}" if (m and i) else None, needs={"RR": 0} if len(mq) == 16 else None))
                        a = CA(0, t, tb); b = CA(1, t, tb)
                        vq += [It(f"v_mul_f32 v{a+i}, v{a+i}, v{b+i}", needs={f"D{t}{tb}": 8}) for i in range(4)]
                        vq += [It(f"v_cvt_pk_bf16_f32 v{o+2*h+e}, v{a+2*e}, v{a+2*e+1}") for e in range(2)]
                    vq.append(It(V(f"buffer_store_dwordx4 {vr(o,4)}, v{V_L16}, {sr(S_O if u else S_X,4)}, s{S_T0+tb} offen offset:{u*1024} sc1", "GST"), cost=2))
                    n_ += 1
            merge(k, mq, vq, [It(f"s_mov_b32 s{S_T0}, 0\ns_mov_b32 s{S_T0+1}, {43*1024}", cost=0), It(W(lg='all'), cost=0, gives="RR", needs={"D10": 0})])
            break
        mf = []; n_ = 0
        for t in range(6):
            for m in range(2):
                for tb_ in range(2):
                    tb = tb_ if m == 0 else 1 - tb_
                    d = vr(CA(m, t, tb), 4)
                    for i, j in enumerate((2*p, 2*p+1) if n_ % 2 == 0 else (2*p+1, 2*p)):
                        mf.append(f"{MF} {d}, {CW(j,m,t)}, {ar(CB(j,tb),4)}, {d if (p or i) else '0'}")
                    n_ += 1
        vm = []
        while len(vm) < OPT.fvm - 1:
            wok = ncw < 16 and (ncw < C_NW or p >= (ncw - C_NW)//2 + 1)
            if wok and (nb >= 16 or ncw//2 - 2 <= nb//2): vm += c_w(ncw); ncw += 1
            elif nb < 16: vm += c_b(nb); nb += 1
            elif ncw == 16 and nd < OPT.fde and c_last(dperm()[nd]) <= p - 1: vm += d_w(nd); nd += 1
            else: break
        assert ncw > 2*p + 3 + 2 or ncw == 16, (p, ncw)
        if OPT.cx == 1: vm = [x for x in vm if "m0" not in x[0]]
        if OPT.cx == 3: vm = []
        gaps = spread(48, c_reads(p+1) if OPT.cx != 2 else [], vm)
        if p == 1: st(k, "c1")
        if p == 4: st(k, "c4")
        add(gaps, -1, W(vm=f"CB{2*p+1}", lg=f"R{p}_1"))
        front(gaps, 12, W(lg=f"R{p}_3")); front(gaps, 26, W(lg=f"R{p}_5"))
        if p >= 1: front(gaps, 0, W(vm=f"CW{2*p+3}", barrier=True))
        emit(k, mf, gaps)
    assert nb == 16 and ncw == 16
    k("s_branch k1_c_done")
    k("k1_c15:")
    save = list(k.vm)
    for i in range(nd): k.run(d_w(i))
    k.vm = save
    k("k1_c_done:")
    V_DA = 8
    k("v_lshlrev_b32 v60, 7, v59\nv_lshl_add_u32 v60, v58, 3, v60\nv_bfe_u32 v61, v59, 1, 2\nv_lshrrev_b32 v62, 1, v1\nv_lshl_add_u32 v60, v62, 13, v60")
    for t in range(4):
        k(f"v_xor_b32 v62, {t}, v61\nv_lshl_add_u32 v{V_DA+t}, v62, 5, v60\nv_add_u32 v{V_DA+4+t}, 0x10000, v{V_DA+t}\nv_add_u32 v{V_DA+8+t}, 0x20000, v{V_DA+t}")
    k(f"s_lshl_b32 s6, s{S_TT}, 1\ns_lshr_b32 s7, s{S_MM}, 3\ns_add_u32 s6, s6, s7\ns_lshl_b32 s6, s6, 1\ns_and_b32 s7, s{S_WAVE}, 1\ns_add_u32 s6, s6, s7\ns_lshl_b32 s44, s6, 1")
    k(f"s_lshr_b32 s46, s{S_WAVE}, 1\ns_mul_i32 s6, s44, {43*1024}\ns_lshl_b32 s7, s46, 11\ns_add_u32 s6, s6, s7\ns_add_u32 s6, s6, 0x{WS_HF:x}")
    k(f"s_add_u32 s{S_M}, s54, s6\ns_addc_u32 s{S_M+1}, s55, 0\ns_sub_u32 s{S_M+2}, {2*43*1024}, s7")
    k(f"s_add_u32 s44, s44, s46\ns_mul_i32 s46, s46, {43*1024}\ns_sub_u32 s47, {43*1024}, s46")
    k(f"s_lshl_b32 s44, s44, 14\ns_and_b32 s7, s{S_MM}, 7\ns_lshl_b32 s6, s7, 7\ns_add_u32 s6, s6, s44")
    k(f"s_add_u32 s{S_V}, s98, s6\ns_addc_u32 s{S_V+1}, s99, 0\ns_sub_u32 s{S_V+2}, {2048*1024}, s6")
    k(f"s_lshl_b32 s6, s7, 11\ns_add_u32 s44, s44, s6\ns_lshl_b32 s7, s7, 8\ns_add_u32 s7, s7, {PAR2+6144}")
    k(f"v_bfe_u32 v57, v{V_L16}, 4, 4\nv_lshlrev_b32 v24, 10, v57\nv_lshl_add_u32 v24, v56, 4, v24")
    k("v_lshlrev_b32 v25, 4, v56\nv_add_u32 v25, s7, v25")
    XS = dperm()[2]*D_U
    k(f"v_lshl_add_u32 v28, v1, 12, v{V_L16}\nv_add_u32 v28, {XS}, v28\nv_xor_b32 v29, 0x2000, v28")
    DA = lambda t, tb: 64 + (tb*4+t)*4
    DW = lambda i, e, t: 128 + (((i & 1)*2+e)*4+t)*4
    DB = lambda i, e, tb: ((i*2+e)*2+tb)*4
    def d_b(i):
        return [[f"s_add_u32 s{S_T0+tb}, s{46+tb}, {i*4096}", V(f"buffer_load_dwordx4 {ar(DB(i,e,tb),4)}, v{V_L16}, {sr(S_M,4)}, s{S_T0+tb} offen offset:{e*1024} sc1", f"DB{i}")] for tb in range(2) for e in range(2)]
    def d_reads(i):
        base = dperm()[i % D_NW]*D_U; bank = base >> 16; off = base & 0xffff
        return [L(f"ds_read_b64_tr_b16 {vr(DW(i,e,t)+2*h,2)}, v{V_DA+4*bank+t} offset:{off + e*4096 + h*2048}", f"R{i}_{t}") for t in range(4) for e in range(2) for h in range(2)]
    st(k, "s3")
    k.lg = []
    assert nd >= 1
    xl = [[V(f"buffer_load_dwordx4 {vr(XR+4*s_,4)}, v{V_L16}, {sr(S_W,4)}, s44 offen offset:{1024*s_} sc1", "X1")] for s_ in range(2)]
    n4 = min(OPT.fd1, D_NW - nd)
    gbr = [L(f"ds_read_b128 {vr(32+4*t,4)}, v25 offset:{64*t}", "GB") for t in range(4)]
    handoff(k, 3, "GST", xl + [g for i in range(nd, nd + n4) for g in d_w(i)] + gbr + d_reads(0), delay=OPT.fdl3); nd += n4
    npub = nd
    st(k, "y3")
    assert nd >= 2
    nb = OPT.fdb0
    for i in range(nb): k.run(d_b(i))
    for d in range(8): k(f"v_lshlrev_b32 v{96+2*d}, 16, v{XR+d}\nv_and_b32 v{97+2*d}, 0xffff0000, v{XR+d}")
    lastbar = -1
    for i in range(11):
        mf = []; n_ = 0
        if i < 10:
            for t in range(4):
                for tb_ in range(2):
                    tb = tb_ if t % 2 == 0 else 1 - tb_
                    d = vr(DA(t, tb), 4)
                    for c, e in enumerate((0, 1) if n_ % 2 == 0 else (1, 0)):
                        mf.append(f"{MF} {d}, {vr(DW(i,e,t),4)}, {ar(DB(i,e,tb),4)}, {d if (i or c) else '0'}")
                    n_ += 1
        else:
            k.wait(vm="DB10", lg='all')
            k(f"s_cmp_ge_u32 s{S_WAVE}, 2\ns_cbranch_scc1 k1_d_skip")
            for e in (1, 0):
                if e == 0: k("k1_d_skip:")
                for tb in (1, 0):
                    for t in range(4):
                        d = vr(DA(t, tb), 4)
                        k(f"{MF} {d}, {vr(DW(i,e,t),4)}, {ar(DB(i,e,tb),4)}, {d}")
            break
        bar = i + 1 >= npub or i in (OPT.fdr, OPT.fdr + 1)
        if bar: lastbar = i
        vm = []
        if nb < 11: vm += d_b(nb); nb += 1
        if nd < 11 and (nd < D_NW or lastbar >= nd - D_NW + 1) and nd <= nb + OPT.fdl: vm = vm[:2] + d_w(nd) + vm[2:]; nd += 1
        assert nd > i + 2 or nd == 11, (i, nd)
        k.wait(vm=f"DB{i}", lg=f"R{i}_1")
        gaps = {}
        if bar: add(gaps, 0, W(vm=f"DW{i+1}", barrier=True))
        add(gaps, 6, W(lg=f"R{i}_3"))
        rd = d_reads(i+1)
        for g in range(16):
            if vm and g % 2 == 1: add(gaps, g, *vm.pop(0))
            elif rd: add(gaps, g, rd.pop(0), rd.pop(0))
        assert not vm and not rd
        emit(k, mf, gaps)
    assert nb == 11 and nd == 11 and lastbar >= 3
    st(k, "d1")
    k("s_nop 3")
    for t in range(4): k(f"ds_write_b128 v28, {vr(DA(t,1),4)} offset:{t*1024}")
    for e in range(0, 16, 2): k(f"v_pk_fma_f32 {vr(96+e,2)}, {vr(64+e,2)}, {vr(32+e,2)}, {vr(96+e,2)}")
    k("s_waitcnt lgkmcnt(0)\ns_barrier")
    for t in range(4): k(f"ds_read_b128 {vr(64+4*t,4)}, v29 offset:{t*1024}")
    for s_ in range(2):
        k(f"s_waitcnt lgkmcnt({2-2*s_})")
        for e in range(8*s_, 8*s_+8, 2): k(f"v_pk_fma_f32 {vr(64+e,2)}, {vr(64+e,2)}, {vr(32+e,2)}, {vr(96+e,2)}")
        o = 112 + 4*s_
        for d in range(4): k(f"v_cvt_pk_bf16_f32 v{o+d}, v{64+8*s_+2*d}, v{65+8*s_+2*d}")
        k(f"s_nop 1\nv_permlane32_swap_b32 v{o}, v{o+2}\nv_permlane32_swap_b32 v{o+1}, v{o+3}\ns_nop 1\nv_permlane16_swap_b32 v{o}, v{o+2}\nv_permlane16_swap_b32 v{o+1}, v{o+3}")
        k(f"buffer_store_dwordx4 {vr(o,4)}, v24, {sr(S_V,4)}, 0 offen offset:{64*s_} {OPT.st5}")
```

```python
import math, struct

NAME = "adaLN_cond__gqa_block_cached__glu_gated_bilinear__prompt"

KA_X, KA_K, KA_V, KA_WQ, KA_WO, KA_BX, KA_WG, KA_WU, KA_WD, KA_C, KA_WM, KA_OUT, KA_DBG, KA_WS = [8*i for i in range(14)]

WS_MOD  = 0x0
WS_MODP = 0x4000
WS_FLAG = 0x640000
WS_XH   = 0x10000
WS_H2   = 0x210000
WS_X1   = 0x410000
WS_OF   = 0x800000
WS_PART = 0x1800000
WS_HF   = 0x2800000
WS_DBG  = 0x4000000

MAGIC = 0x5ac3e19b

def f2u(x):
    return struct.unpack("<I", struct.pack("<f", x))[0]

def hexf(x):
    return "0x%08x" % f2u(x)

def vr(b, n=1):
    return f"v{b}" if n == 1 else f"v[{b}:{b+n-1}]"
def ar(b, n=1):
    return f"a{b}" if n == 1 else f"a[{b}:{b+n-1}]"
def sr(b, n=1):
    return f"s{b}" if n == 1 else f"s[{b}:{b+n-1}]"

class Kern:
    def __init__(self, name, grid, block, lds, vgpr, accum, sgpr=96):
        self.name = name; self.grid = grid; self.block = block; self.lds = lds
        self.vgpr = vgpr; self.accum = accum; self.sgpr = sgpr
        self.L = []
        self.vm = []
        self.lg = []
        self.nlab = 0
    def __call__(self, s):
        for ln in s.split("\n"):
            ln = ln.strip()
            if ln: self.L.append("    " + ln if not ln.endswith(":") else ln)
    def label(self, base):
        self.nlab += 1
        return f"{self.name}_{base}_{self.nlab}"
    def c(self, s):
        self.L.append("    ; " + s)
    def vmop(self, s, tag):
        self(s); self.vm.append(tag)
        assert len(self.vm) <= 63, "too many outstanding vmem ops"
    def vm_count_for(self, tag):
        idx = [i for i, t in enumerate(self.vm) if t == tag]
        if not idx: return None
        return len(self.vm) - 1 - idx[-1]
    def vmwait(self, tag, extra=""):
        n = self.vm_count_for(tag)
        if n is None:
            if extra: self(f"s_waitcnt {extra}")
            return
        self(f"s_waitcnt vmcnt({n}) {extra}")
        self.vm = self.vm[len(self.vm) - n:] if n else []
    def lgop(self, s, tag):
        self(s); self.lg.append(tag)
    def wait(self, vm=None, lg=None, barrier=False):
        parts = []
        if vm is not None:
            n = self.vm_count_for(vm)
            if n is not None:
                parts.append(f"vmcnt({n})"); self.vm = self.vm[len(self.vm) - n:] if n else []
        if lg is not None:
            if lg == 'all': n = 0 if self.lg else None
            else:
                idx = [i for i, t in enumerate(self.lg) if t == lg]
                n = len(self.lg) - 1 - idx[-1] if idx else None
            if n is not None:
                n = min(n, 15)
                parts.append(f"lgkmcnt({n})"); self.lg = self.lg[len(self.lg) - n:] if n else []
        if parts: self("s_waitcnt " + " ".join(parts))
        if barrier: self("s_barrier")
    def run(self, items):
        for f in items:
            if isinstance(f, (list, tuple)): self.run(f)
            else: f(self) if callable(f) else self(f)
    def dbg_begin(self, kidx):
        if not OPT.dbg: return
        self.sgpr = 102
        self(f"s_load_dwordx2 s[92:93], s[0:1], {KA_DBG}\ns_memrealtime s[96:97]\ns_waitcnt lgkmcnt(0)")
        self(f"s_sub_u32 s92, s92, {kidx*512}\ns_subb_u32 s93, s93, 0\ns_mov_b32 s94, 1280\ns_mov_b32 s95, 0x20000")
    def dbg_mark(self, slot, va, vb, start=False):
        if not OPT.dbg: return
        if not start: self("s_memrealtime s[96:97]\ns_waitcnt lgkmcnt(0)")
        else: self("s_not_b32 s96, s96")
        self(f"v_mov_b32 v{va}, s96\nv_mov_b32 v{vb}, {slot*4}\ns_mov_b64 exec, 1")
        for o in (0, 512, 1024): self(f"buffer_atomic_umax v{va}, v{vb}, s[92:95], 0 offen offset:{o}")
        self("s_mov_b64 exec, -1")
    def stamp(self, idx):
        if not getattr(self, 'prof', False): return
        self(f"s_memtime s[{64+4*idx}:{65+4*idx}]\ns_memrealtime s[{66+4*idx}:{67+4*idx}]")
    def dump_stamps(self, n, wsreg, vt):
        if not getattr(self, 'prof', False): return
        self("s_waitcnt lgkmcnt(0)")
        self(f"s_add_u32 s60, s{wsreg}, 0x{WS_DBG + (int(self.name[1]) if self.name[1].isdigit() else 1)*0x10000:x}\ns_addc_u32 s61, s{wsreg+1}, 0\ns_mov_b32 s62, 0x100000\ns_mov_b32 s63, 0x20000")
        self(f"v_lshrrev_b32 v{vt}, 6, v0\nv_lshl_add_u32 v{vt}, s2, 2, v{vt}\nv_lshlrev_b32 v{vt}, 6, v{vt}")
        for i in range(n):
            self(f"v_mov_b32 v{vt+2}, s{64+4*i}\nv_mov_b32 v{vt+3}, s{66+4*i}")
            self(f"buffer_store_dwordx2 v[{vt+2}:{vt+3}], v{vt}, s[60:63], 0 offen offset:{8*i}\ns_nop 1")
    def code_pf(self, start, end, vt, st, idx_sgpr):
        lab = self.label("pc")
        self(f"s_getpc_b64 s[{st}:{st+1}]")
        self(f"{lab}:")
        self(f"s_add_u32 s{st}, s{st}, {start}-{lab}\ns_addc_u32 s{st+1}, s{st+1}, 0")
        self(f"v_and_b32 v{vt}, 63, v0\nv_lshlrev_b32 v{vt}, 7, v{vt}\ns_lshl_b32 s{st+2}, s{idx_sgpr}, 13\nv_add_u32 v{vt}, s{st+2}, v{vt}")
        self(f"v_min_u32 v{vt}, {end}-{start}-4, v{vt}")
        self(f"global_load_dword v{vt+1}, v{vt}, s[{st}:{st+1}]")
    def srd(self, d, base, nbytes, off=0):
        if off:
            self(f"s_add_u32 s{d}, s{base}, 0x{off:x}")
            self(f"s_addc_u32 s{d+1}, s{base+1}, 0")
        else:
            self(f"s_mov_b32 s{d}, s{base}")
            self(f"s_mov_b32 s{d+1}, s{base+1}")
        self(f"s_mov_b32 s{d+2}, 0x{nbytes:x}")
        self(f"s_mov_b32 s{d+3}, 0x20000")
    def text(self):
        return f".globl {self.name}\n.p2align 8\n.type {self.name},@function\n{self.name}:\n" + "\n".join(self.L) + "\n"
    def desc(self):
        return f""".p2align 6
.amdhsa_kernel {self.name}
  .amdhsa_next_free_vgpr {self.vgpr}
  .amdhsa_next_free_sgpr {self.sgpr}
  .amdhsa_accum_offset {self.accum}
  .amdhsa_group_segment_fixed_size 0
  .amdhsa_kernarg_size 112
  .amdhsa_user_sgpr_count 2
  .amdhsa_user_sgpr_kernarg_segment_ptr 1
  .amdhsa_system_sgpr_workgroup_id_x 1
  .amdhsa_float_denorm_mode_32 3
  .amdhsa_float_denorm_mode_16_64 3
.end_amdhsa_kernel
"""
    def launch(self):
        if self.name == NAME + "_kernel" and not OPT.aslist: return f"; @launch grid=({self.grid},1,1) block=({self.block},1,1) lds={self.lds}\n"
        return f"; @launch kernel={self.name} grid=({self.grid},1,1) block=({self.block},1,1) lds={self.lds}\n"

HEADER = """; adaLN-conditioned block: LN+modulate -> Q proj -> attention over cached K/V -> O proj -> LN+modulate -> bilinear GLU
; k1: one workgroup per CU (4 waves x 512 registers, 160 KB LDS, so all 256 are co-resident): (head, 256 queries):
;   recomputes the true row max over all keys and redoes the attention with it (k1_fallback).
"""
def assemble(kerns):
    s = HEADER + "".join(k.launch() for k in kerns)
    s += '.amdgcn_target "amdgcn-amd-amdhsa--gfx950"\n.text\n'
    seen = []
    for k in kerns:
        if k.name in seen: continue
        seen.append(k.name); s += k.text()
    s += "code_end_marker:\n    s_endpgm\n"
    s += '.section .rodata,"a"\n'
    seen = []
    for k in kerns:
        if k.name in seen: continue
        seen.append(k.name); s += k.desc()
    return s

class Opt:
    st0 = ""; st1 = ""; st2 = "sc1"; st3 = "sc1"; st4 = "sc1"; st5 = "sc1"
    map4 = 1; d2 = 6; pf2 = 0; pf3 = 0; ramp4 = 1; la5 = 4; map5 = 0; stz = ""; stm = ""; own = 0; ownp = 28; ownc = 52; ownn = 11; early = 1; pall = ""; t2 = 1; t2a = 2; t2b = 5; prog = 1; mearly = 0; apre = 1; awsp = 3; a2 = 1; a2b0 = 8; a2n = 14; l2w = 2; l2d = 2; lateptr = 1; trunc = 0; pp = 0; opt32 = 0; aslist = 1; mk0 = 0; pd0 = 4; dflag = 0; ilv = 1; wpl = 5; ptouch = 1; ptf = ""; mw0 = 2; mw1 = 0; mw2 = 0; loc = 0; lst = ""; lwb = 99; lpo = 2; lsite = 1; lc0 = 1; lcn = 4; f2 = 0; na3 = 18; f2n = 12; f2c = 3; fdr = 2; fdl = 4; fdq = 0; cx = 0; ff = 1; fce = 0; fc1 = 5; fc2 = 2; fc3 = 4; fb0 = 4; fvm = 9; fde = 5; fd1 = 3; fdb0 = 3; fxp = 14; fmp = 12; fdl2 = 0; fdl3 = 0; fts = ""; cpre4 = "0333"; amrg = 1; dearly = 8; slow0 = 0; cmrg = 1; modk1 = 1; xlate = 2; xp = 13; x1late = 0; a0n = 3; mrg = 1; ln1 = 1; kts = "a,y0,s1,y1,s2,y2"; k0t = 1; ax = 0; amix = 1; anob = 0; cpre5 = "03012"; fa = 1; na0 = 8; na1 = 0; na2 = 3; xpf = 3; anr = 16; nb0 = 6; nbs = 3; wlead = 0; cpf2 = 1; na3 = 18; nsc1 = 4; e64 = ""; a64 = ""; barfree = 0; pad = 0; dbg = 0; achain = 1; opf = ""; wpf = ""; bk = 14; vsp = 6; v0 = 12; idle = 0; slowa = 0; slown = 32; ont = ""; fused = 1; cnw = 9; cnb = 4; dnw = 12; dnb = 6; cpre = "030303"; dpre = 8; psleep = 0; pdelay = 8; rep = 16; dmid = 2; fst = "sc1"; fld = "sc1"; serp = 1; prio = 0; lprio = 0; o3 = "xa0123bc"; wqpf = 2; wqnt = "nt"; qko = 4; pvo = 2; xnt = "nt"; cpf = 1; kvnt = "nt"
OPT = Opt()
```

```python
from common import *
from sched import fill, L, V, W, front, emit, It, merge
from k0 import mod_loads, mod_finish, C1
import k1t, k1p

MF = "v_mfma_f32_16x16x32_bf16"

SLOT = 16384
KB = 0
VB = 65536
PARB = 9*SLOT
FLAGB = PARB + 4096
WSLOT = [1, 4, 2, 5, 3, 6, 7, 8]

def O(db, qb): return (db*4+qb)*4
def LA(qb): return 128 + qb*4
def KF(i): return 144 + i*4
def VF(i): return 176 + i*4
ONES = 240
def Q(qb, s): return 128 + (qb*4+s)*4
def S(buf, kb, qb): return 64 + buf*32 + (kb*4+qb)*4
def P(buf, qb): return (32 + buf*16 if buf < 2 else 208 + (buf-2)*16) + qb*4
def MN(qb): return 192 + qb*4
V_KA = 8
V_VA = 12
V_DK = 20
V_DV = 24
V_L16 = 26
V_LS = 28
V_PF = 2
V_T = 208
def XR(slot, qb): return 128 + ((slot%4)*4+qb)*4
def QA(t, qb): return vr(192 + (qb*8+t)*4, 4) if qb < 2 else ar(((qb-2)*8+t)*4, 4)
def HK(b): return (lambda i: 64 + b*32 + i*4)
def HF(buf, qb): return 32 + (buf*4+qb)*4
def PAR(buf): return 64 + buf*16
V_PT = 96
V_WA = 112
V_DW = 124
V_PA = 125
def WF(buf, t): return 128 + (buf*8+t)*4
S_K, S_V, S_W, S_X, S_M, S_O = 8, 12, 16, 20, 24, 28
S_W4 = 32
S_KOFF, S_VOFF = 33, 34
S_CNT = 35
S_T0 = 36
S_RERUN = 44
S_WAVE = 45
S_W1 = 62

def emit_phase(k, mf, gaps):
    for f in gaps.get(-1, []): f(k) if callable(f) else k(f)
    for i, m in enumerate(mf):
        k(m)
        for f in gaps.get(i, []): f(k) if callable(f) else k(f)
    for g in gaps:
        assert g < len(mf), (g, len(mf))

def add(gaps, g, *items):
    gaps.setdefault(g, []).extend(items)

def qk_mfmas(buf, kf=KF, czero=False):
    r = []
    order = {0: [(kb,s,qb) for kb in range(2) for s in range(4) for qb in range(4)],
             1: [(kb,s,qb) for kb in range(2) for qb in range(4) for s in range(4)],
             2: [(kb,s,qb) for qb in range(4) for s in range(4) for kb in range(2)],
             4: [(kb,s if qb%2==0 else 3-s,qb) for kb in range(2) for qb in range(4) for s in range(4)],
             5: [(kb,s if kb%2==0 else 3-s,qb) for qb in range(4) for kb in range(2) for s in range(4)],
             3: [(kb,s,qb if s%2==0 else 3-qb) for kb in range(2) for s in range(4) for qb in range(4)]}[OPT.qko]
    seen = set()
    for kb, s, qb in order:
            if True:
                d = vr(S(buf, kb, qb), 4)
                started = (kb, qb) in seen; seen.add((kb, qb))
                c = d if started else ("0" if czero else vr(MN(qb), 4))
                r.append(f"{MF} {d}, {ar(kf(kb*4+s),4)}, {vr(Q(qb,s),4)}, {c}")
    return r

def pv_mfmas(buf, sumq, vf=VF, czero=False):
    r = []
    for qb in sumq:
        d = ar(LA(qb), 4)
        r.append(f"{MF} {d}, {ar(ONES,4)}, {vr(P(buf,qb),4)}, {'0' if czero else d}")
    order = {0: [(db,qb) for db in range(8) for qb in range(4)],
             1: [(db,qb) for qb in range(4) for db in range(8)],
             3: [(db if qb%2==0 else 7-db,qb) for qb in range(4) for db in range(8)],
             2: [(db,qb if db%2==0 else 3-qb) for db in range(8) for qb in range(4)]}[OPT.pvo]
    for db, qb in order:
        if True:
            d = ar(O(db, qb), 4)
            r.append(f"{MF} {d}, {ar(vf(db),4)}, {vr(P(buf,qb),4)}, {'0' if czero else d}")
    return r

def exps(buf, qbs):
    r = []
    for qb in qbs:
        for kb in range(2):
            for i in range(4):
                x = S(buf, kb, qb) + i
                r.append(f"v_exp_f32{OPT.e64} v{x}, v{x}")
    return r
def cvts(buf, qbs, pb=None):
    pb = buf if pb is None else pb
    r = []
    for qb in qbs:
        for kb in range(2):
            for h in range(2):
                x = S(buf, kb, qb) + 2*h
                r.append(f"v_cvt_pk_bf16_f32 v{P(pb,qb)+kb*2+h}, v{x}, v{x+1}")
    return r
def adds(buf, qbs, addq):
    r = []
    for qb in qbs:
        for kb in range(2):
            for i in range(4):
                x = S(buf, kb, qb) + i
                r.append(f"v_add_f32{OPT.a64} v{V_LS+qb}, v{x}, v{V_LS+qb}" if qb in addq else None)
    return r
def kreads(slot, blk, kf=KF):
    r = []
    for kb in range(2):
        for s in range(4):
            r.append(f"ds_read_b128 {ar(kf(kb*4+s),4)}, v{V_KA+s} offset:{KB+slot*SLOT+blk*8192+kb*4096}")
    return r
def vreads(slot, blk, vf=VF):
    r = []
    for db in range(8):
        for h in range(2):
            r.append(f"ds_read_b64_tr_b16 {ar(vf(db)+2*h,2)}, v{V_VA+db} offset:{slot*SLOT+blk*8192+h*4096}")
    return r
def dma_k(p): return f"buffer_load_dwordx4 v{V_DK+p}, {sr(S_K,4)}, s{S_KOFF} offen offset:{p*1024} {OPT.kvnt} lds"
def dma_v(p): return f"buffer_load_dwordx4 v{V_DV+(p&1)}, {sr(S_V,4)}, s{S_VOFF} offen offset:{p*1024} {OPT.kvnt} lds"

class Cfg:
    la = 4
    wb4 = 0
    nvm = 8
    npk = 5
    ne1 = 33
    nv1 = 11
    v19 = 1
    wb = 0
    pfo = 2
    pfc = (5, 2, 9)
    ppf = 0
    wocnt = 1
    bar2 = 0
    kvspread = 1
    w1pf = 0
    fine = 0
    kvper = 7
    x = 0
    pf = 2
    sumq = [1, 3]
    def addq(self): return [q for q in range(4) if q not in self.sumq]

def pv2_mfmas(pb, sumq, czero=False, order=None):
    r = []
    n = 0
    def pair(d, a0, a1, qb):
        nonlocal n
        js = (0, 1) if n % 2 == 0 else (1, 0); n += 1
        for i, j in enumerate(js):
            r.append(f"{MF} {d}, {ar(a1 if j else a0,4)}, {vr(P(pb+j,qb),4)}, {'0' if (czero and i == 0) else d}")
    for qb in sumq: pair(ar(LA(qb), 4), ONES, ONES, qb)
    for db in range(8):
        for q in range(4):
            qb = q if db % 2 == 0 else 3 - q
            pair(ar(O(db, qb), 4), VF(db), VF(8+db), qb)
    return r

def sm_stream(cfg, u):
    qs = range(4)
    E = exps(u & 1, qs); C = cvts(u & 1, qs, u & 3); A = adds(u & 1, qs, cfg.addq())
    r = []
    for i, e in enumerate(E):
        f = [A[i]] if A[i] else []
        if i % 2 == 1: f.append(C[i//2])
        r.append((e, f))
    return r

def vreads2(slot):
    r = []
    for db in range(8):
        for blk in range(2):
            for h in range(2):
                r.append((db, L(f"ds_read_b64_tr_b16 {ar(VF(8*blk+db)+2*h,2)}, v{V_VA+db} offset:{slot*SLOT+blk*8192+h*4096}", "V")))
    return r

def pack(k, mf, fixed, stream, lds, vm, deadlines=(), keep=False):
    n = len(mf)
    stream = list(stream); lds = list(lds); vm = list(vm)
    ready = []
    k.run(fixed.get(-1, []))
    ne = len(stream); ie = 0
    lastvm = -9; vm0 = list(vm)
    for g in range(n):
        k(mf[g]); k.run(fixed.get(g, []))
        left = 2
        if OPT.barfree and any(isinstance(x, str) and "s_barrier" in x for x in fixed.get(g, [])): left = 2 - OPT.barfree
        want_e = ie < ne and g < n-1 and (g % 2 == 0 or (ne - ie) > (n - g)//2)
        if g % 2 == 1 or not want_e:
            if vm and vm[0][0] <= g and g - lastvm >= (OPT.vsp if len(vm0) <= 8 else 4) and not (lds and lds[0][0] <= g and lds[0][2:] == ('urgent',)):
                k.run(vm.pop(0)[1]); left -= 2; lastvm = g
            else:
                c = [x for x in lds if x[0] <= g]
                c.sort(key=lambda x: 0 if len(x) > 2 else 1)
                if c:
                    lds.remove(c[0]); k.run([c[0][1]]); left -= 1
                    rem = len([y for y in range(g+1, n) if y % 2 == 1]) - 3
                    if len(c) > 1 and len(lds) + len(vm) > rem:
                        lds.remove(c[1]); k.run([c[1][1]]); left -= 1
        if want_e:
            e, f = stream[ie]; k(e); left -= 2
            ready += [(g, ie, x) for x in f]; ie += 1
        must = [x for x in ready if any(x[1] < idx and g + 1 >= dl for idx, dl in deadlines)]
        while ready and ready[0][0] < g and (left > 0 or ready[0] in must or len(ready) > OPT.bk or g == n-1):
            k(ready.pop(0)[2]); left -= 1
    assert ie == ne and not vm and not ready and (keep or not lds), (ie, ne, len(lds), len(vm), ready)
    return lds

R1 = 16

def iteration(k, cfg, t4, part="all", czero=False, pf=(), post=(), label=None, extra=()):
    ks = t4; vs = (t4 - 1) % 4; u = 2*t4
    k.c(f"---- iteration T%4={t4} {part} ----")
    ns = 2*len(cfg.sumq)
    pv = pv2_mfmas((u - 4) & 3, cfg.sumq, czero); npv = len(pv)
    st = sm_stream(cfg, u - 2)[32-R1:] + sm_stream(cfg, u - 1) + sm_stream(cfg, u)[:32-R1]
    dmas = [[f"s_add_u32 m0, s{S_W4}, {KB + ((t4+3)%4)*SLOT}\ns_nop 0" if p == 0 else "", dma_k(p)] for p in range(4)]
    dmas += [[f"s_add_u32 m0, s{S_W4}, {VB + ((t4+2)%4)*SLOT}\ns_add_u32 s{S_KOFF}, s{S_KOFF}, {SLOT}" if p == 0 else "", dma_v(p)] for p in range(4)]
    dmas[-1].append(f"s_add_u32 s{S_VOFF}, s{S_VOFF}, {SLOT}")
    ka = [L(x, "KA") for x in kreads(ks, 0)]; kb = kreads(ks, 1)
    vr_ = vreads2(vs)
    NE1 = cfg.ne1
    NV1 = cfg.nv1
    nvm = 16 if not (cfg.pf and cfg.pfo and cfg.v19) else (18 if part == "pv" else 19)
    bar = {ns-1: [f"s_waitcnt vmcnt({nvm}) lgkmcnt(0)\ns_barrier"]}
    if part == "tail":
        k.lg = []
        if OPT.fa and (OPT.na0 or OPT.na1): bar = {ns-1: ["s_waitcnt vmcnt(0) lgkmcnt(0)\ns_barrier"]}
        return pack(k, pv, bar, st[:R1+32], [(ns + 8*db + 7, x) for db, x in vr_], [(ns, x) for x in extra], keep=True)
    if part in ("all", "pv"):
        k.lg = []
        lds = [(ns, x) for x in ka] + [(ns + 8*db + 7, x) for db, x in vr_[:NV1]]
        pack(k, pv, bar, st[:NE1], lds, [(ns + OPT.v0, d) for d in dmas])
    if label: k(f"{label}:")
    if part in ("all", "first"):
        vm = [(40, [pf[1]])] if pf else []
        fixed = {-1: [W(lg="KA")], 30: [W(lg="KB0")], 46: [W(lg="KB1")]}
        if pf: fixed[38] = [pf[0]]
        if part == "first":
            NE1 = R1; NV1 = 0; k.lg = []
            fixed[-1] = ["s_waitcnt lgkmcnt(0)"]
            vm = [(2, [kv_setup(wh, t), dma_k(p) if wh == 'K' else dma_v(p)]) for wh, t in (('V',2),('K',4),('V',3)) for p in range(4)]
            if cfg.v19:
                dummy = f"s_mov_b32 s6, 0x80000\nbuffer_load_dword v{V_PF+3}, v{V_PF}, {sr(S_O,4)}, s6 offen"
                vm[3][1].append(dummy); vm[11][1].append(dummy)
            post = [f"s_mov_b32 s{S_KOFF}, {5*SLOT}\ns_mov_b32 s{S_VOFF}, {4*SLOT}"]
        lds = [(0, x) for db, x in vr_[NV1:]] + [(15, L(x, "KB0"), 'urgent') for x in kb[:4]] + [(31, L(x, "KB1"), 'urgent') for x in kb[4:]]
        pack(k, qk_mfmas(0) + qk_mfmas(1), fixed, st[NE1:], lds, vm, deadlines=[(R1 + 32 - NE1, 40)])
    for f in post: k(f)

def kv_setup(which, tile):
    if which == 'K': return f"s_add_u32 m0, s{S_W4}, {KB + (tile%4)*SLOT}\ns_mov_b32 s{S_KOFF}, {tile*SLOT}"
    return f"s_add_u32 m0, s{S_W4}, {VB + (tile%4)*SLOT}\ns_mov_b32 s{S_VOFF}, {tile*SLOT}"
def kv_group(which, tile):
    return [[kv_setup(which, tile), V(dma_k(p) if which == 'K' else dma_v(p), f"{which}{tile}")] for p in range(4)]

def rowmax_cross(k, regs, tmp):
    for sw in ("v_permlane32_swap_b32", "v_permlane16_swap_b32"):
        for i, r in enumerate(regs): k(f"v_mov_b32 v{tmp+i}, v{r}")
        k("s_nop 1")
        for i, r in enumerate(regs): k(f"{sw} v{tmp+i}, v{r}")
        k("s_nop 1")
        for i, r in enumerate(regs): k(f"v_max_f32 v{r}, v{r}, v{tmp+i}")

def gen_k1(cfg=None, prof=False):
    cfg = cfg or Cfg()
    k = Kern(NAME + "_kernel" if OPT.mk0 else "k1_attn_kernel", 256, 256, 160*1024, 512, 256, 102 if OPT.ff else (96 if prof else 64))
    k.prof = prof
    end = "k1_end"
    k(f"s_cmp_ge_u32 s2, 256\ns_cbranch_scc1 {end}")
    k.stamp(0)
    k.dbg_begin(1)
    k(f"s_load_dwordx4 s[48:51], s[0:1], {KA_K}")
    k(f"s_load_dwordx2 s[52:53], s[0:1], {KA_WQ}")
    k(f"s_load_dwordx2 s[54:55], s[0:1], {KA_WS}")
    k(f"s_load_dwordx2 s[46:47], s[0:1], {KA_WO}")
    k(f"s_load_dwordx4 s[56:59], s[0:1], {KA_WG}")
    k(f"s_load_dwordx2 s[60:61], s[0:1], {KA_WD}")
    if OPT.ff: k(f"s_load_dwordx2 s[98:99], s[0:1], {KA_OUT}")
    if OPT.mk0: k(f"s_load_dwordx4 s[{'64:67' if not prof else '68:71'}], s[0:1], {KA_C}")
    k(f"s_load_dwordx2 s[0:1], s[0:1], {KA_X}")

    k("v_lshrrev_b32 v1, 6, v0")
    k("v_and_b32 v2, 63, v0")
    k(f"v_readfirstlane_b32 s{S_WAVE}, v1")
    m = OPT.map4
    k(f"s_and_b32 s4, s2, {(8>>m)-1}\ns_bfe_u32 s5, s2, {((2+m)<<16)|3}\ns_lshl_b32 s5, s5, {3-m}\ns_add_u32 s4, s4, s5")
    k(f"s_bfe_u32 s5, s2, {(m<<16)|(3-m)}\ns_lshl_b32 s5, s5, {3-m}\ns_lshr_b32 s6, s2, {5+m}\ns_add_u32 s5, s5, s6")
    k(f"s_lshl_b32 s{S_W4}, s{S_WAVE}, 12")
    k(f"s_mov_b32 s{S_RERUN}, 0")
    k("v_lshrrev_b32 v3, 4, v2")
    k("v_and_b32 v4, 15, v2")
    k("v_lshrrev_b32 v5, 2, v4")
    k("v_and_b32 v6, 3, v2")
    k(f"v_lshlrev_b32 v{V_L16}, 4, v2")
    k("v_lshlrev_b32 v7, 2, v3\nv_xor_b32 v7, v7, v4\nv_lshlrev_b32 v7, 4, v7")
    k(f"v_lshl_add_u32 v{V_DW}, v1, 2, v3\nv_lshl_add_u32 v{V_DW}, v{V_DW}, 13, v7")
    k(f"s_lshl_b32 s{S_W1}, s{S_WAVE}, 10")
    if OPT.mk0: k1p.pre_wait(k)
    k("s_waitcnt lgkmcnt(0)")
    k("s_lshl_b32 s6, s4, 8")
    k(f"s_add_u32 s{S_W}, s52, s6\ns_addc_u32 s{S_W+1}, s53, 0\ns_sub_u32 s{S_W+2}, {512*8192}, s6\ns_mov_b32 s{S_W+3}, 0x20000")
    k.srd(S_M, 54, 4*12288, WS_MODP)
    k(f"s_lshl_b32 s6, s5, 2\ns_add_u32 s6, s6, s{S_WAVE}\ns_lshl_b32 s7, s6, 16")
    k(f"s_add_u32 s7, s7, 0x{WS_XH:x}")
    k(f"s_add_u32 s{S_X}, s54, s7\ns_addc_u32 s{S_X+1}, s55, 0\ns_mov_b32 s{S_X+2}, 0x10000\ns_mov_b32 s{S_X+3}, 0x20000")
    def w_step(j, st0=S_T0):
        r = []
        for p in range(2):
            st = st0 + p
            r.append([f"s_add_u32 m0, s{S_W1}, {WSLOT[j>>1]*SLOT + (j&1)*8192 + p*4096}\ns_mov_b32 s{st}, {(j*32 + p*16)*8192}",
                      lambda kk, st=st: kk.vmop(f"buffer_load_dwordx4 v{V_DW}, {sr(S_W,4)}, s{st} offen {OPT.wqnt} lds", f"W{j}")])
        return r
    def x_loads(j):
        r = []
        for qb in range(4):
            st = S_T0 + 4 + qb
            r.append([f"s_mov_b32 s{st}, {qb*16384 + (j>>2)*4096}",
                      lambda kk, qb=qb, st=st: kk.vmop(f"buffer_load_dwordx4 {vr(XR(j,qb),4)}, v{V_L16}, {sr(S_X,4)}, s{st} offen offset:{(j&3)*1024} {'sc1' if OPT.mk0 else ''}", f"X{j}" if j else f"X0_{qb}")])
        return r
    def run(items):
        for f in items:
            if isinstance(f, list): run(f)
            else: f(k) if callable(f) else k(f)
    LA_ = cfg.la
    def rem_srds():
        k("s_lshl_b32 s6, s4, 19")
        k(f"s_add_u32 s{S_K}, s48, s6\ns_addc_u32 s{S_K+1}, s49, 0\ns_mov_b32 s{S_K+2}, 0x80000\ns_mov_b32 s{S_K+3}, 0x20000")
        k(f"s_add_u32 s{S_V}, s50, s6\ns_addc_u32 s{S_V+1}, s51, 0\ns_mov_b32 s{S_V+2}, 0x80000\ns_mov_b32 s{S_V+3}, 0x20000")
        k(f"s_lshl_b32 s6, s5, 2\ns_add_u32 s6, s6, s{S_WAVE}\ns_lshl_b32 s6, s6, 19\ns_lshl_b32 s7, s4, 12\ns_add_u32 s6, s6, s7")
        k(f"s_add_u32 s6, s6, 0x{WS_OF:x}")
        k(f"s_add_u32 s{S_O}, s54, s6\ns_addc_u32 s{S_O+1}, s55, 0\ns_mov_b32 s{S_O+2}, {3*131072+4096}\ns_mov_b32 s{S_O+3}, 0x20000")
    def addr_setup():
        k("v_lshl_add_u32 v7, v3, 3, v5\nv_lshlrev_b32 v7, 8, v7\nv_lshl_add_u32 v7, v6, 4, v7")
        for s in range(4):
            k(f"v_xor_b32 v27, {s}, v5\nv_lshl_add_u32 v{V_WA+s}, v27, 6, v7")
            k(f"v_add_u32 v{V_WA+4+s}, 0x10000, v{V_WA+s}\nv_add_u32 v{V_WA+8+s}, 0x20000, v{V_WA+s}")
        k(f"v_lshlrev_b32 v{V_PA}, 5, v3\nv_add_u32 v{V_PA}, {PARB}, v{V_PA}")
        for s in range(4):
            k(f"v_or_b32 v27, {4*s}, v3\nv_xor_b32 v27, v27, v4\nv_lshlrev_b32 v27, 4, v27\nv_lshl_add_u32 v{V_KA+s}, v4, 8, v27")
        k("v_lshl_add_u32 v7, v3, 2, v5\nv_and_b32 v27, 7, v7\nv_lshlrev_b32 v7, 8, v7\nv_lshl_add_u32 v7, v6, 3, v7")
        k(f"v_add_u32 v7, {VB}, v7")
        for db in range(8):
            k(f"v_xor_b32 v30, {db}, v27\nv_lshl_add_u32 v{V_VA+db}, v30, 5, v7")
        k("v_lshlrev_b32 v7, 8, v3\nv_lshl_add_u32 v7, v1, 12, v7")
        for p in range(4):
            k(f"v_or_b32 v27, {4*p}, v3\nv_xor_b32 v27, v27, v4\nv_lshl_add_u32 v{V_DK+p}, v27, 4, v7")
        for p in range(2):
            k(f"v_or_b32 v27, {4*p}, v3\nv_lshlrev_b32 v27, 1, v27\nv_xor_b32 v27, v27, v4\nv_lshl_add_u32 v{V_DV+p}, v27, 4, v7")
        k("v_mov_b32 v27, 0x3f803f80")
        for i in range(4): k(f"v_accvgpr_write_b32 a{ONES+i}, v27")
    k("v_lshlrev_b32 v31, 4, v0")
    wdone = 0
    if OPT.mk0:
        n0, n1, n2 = OPT.mw0, OPT.mw0 + OPT.mw1, OPT.mw0 + OPT.mw1 + OPT.mw2
        k1p.CP = 64 if not prof else 68
        sv = lambda a, b: [run(w_step(j, S_T0+6)) for j in range(a, b)]
        k1p.body(k, lambda: (sv(0, n0), addr_setup()), lambda: sv(n0, n1), lambda: sv(n1, n2))
        wdone = n2
        mod_loads(k, S_M, 31, S_T0, V_PT, 0, "M", "sc1")
        run(x_loads(0)); rem_srds()
    else:
        mod_loads(k, S_M, 31, S_T0, V_PT, 0, "M")
        run(w_step(0)); run(x_loads(0))
        rem_srds(); addr_setup()
    w_step0 = w_step
    w_step = lambda j: w_step0(j) if j >= wdone else []
    def wreads(j):
        c = j >> 1; base = WSLOT[c]*SLOT; bank = base >> 16; off = (base & 0xffff) + (j & 1)*8192
        return [L(f"ds_read_b64_tr_b16 {ar(WF(j&1,t)+2*h,2)}, v{V_WA+4*bank+(t>>1)} offset:{off + h*1024 + 8*(t&1)}", f"R{j}_{t}")
                for t in range(8) for h in range(2)]
    def preads(j):
        b = PAR(j & 1)
        return [L(f"ds_read_b128 {vr(b+4*i,4)}, v{V_PA} offset:{j*128 + (i&1)*16 + (i>>1)*2048}", f"P{j}") for i in range(4)]
    def hcalc(j):
        b = PAR(j & 1); r = []
        for qb in range(4):
            t = V_PT + (qb & 1)*8
            for i in range(8):
                r.append(f"v_fma_mix_f32 v{t+i}, v{XR(j,qb)+(i>>1)}, v{b+8+i}, v{b+i} op_sel:[{i&1},0,0] op_sel_hi:[1,0,0]")
            for d in range(4):
                r.append(f"v_cvt_pk_bf16_f32 v{HF(j&1,qb)+d}, v{t+2*d}, v{t+2*d+1}")
        return r
    k(f"s_cmp_ge_u32 s{S_WAVE}, 2\ns_cselect_b32 s6, 1.0, 0\nv_add_u32 v31, {PARB}, v31")
    k.vmwait("M")
    mod_finish(k, V_PT, 6, C1)
    k(f"ds_write_b128 v31, {vr(V_PT,4)}")
    if OPT.modk1 and not OPT.ff:
        k("s_cmp_ge_u32 s2, 2\ns_cbranch_scc1 k1_nomod\nv_lshlrev_b32 v30, 4, v0\ns_add_u32 s7, s2, 1\ns_lshl_b32 s7, s7, 12")
        mod_loads(k, S_M, 30, S_T0, 192, "s7")
        k(f"s_lshl_b32 s6, s2, 1\ns_cmp_lt_u32 s{S_WAVE}, s6\ns_cselect_b32 s6, 1.0, 0\ns_sub_u32 s{S_M}, s{S_M}, {WS_MODP - WS_MOD}\ns_subb_u32 s{S_M+1}, s{S_M+1}, 0\ns_waitcnt vmcnt(0)")
        mod_finish(k, 192, 6)
        k(f"buffer_store_dwordx4 v[192:195], v30, {sr(S_M,4)}, s7 offen\ns_waitcnt vmcnt(0)")
        k("k1_nomod:")
    run(x_loads(1)); run(w_step(1))
    k.vmwait("W0", "lgkmcnt(0)"); k("s_barrier")
    run(preads(0)); run(preads(1)); run(wreads(0))
    assert LA_ == 4
    pend = [g for j in range(2, LA_) for g in x_loads(j) + w_step(j)]
    k.wait(lg="P0")
    k.stamp(1) if cfg.fine < 2 else None
    for i, v in enumerate(hcalc(0)):
        if i % 12 == 0: k.wait(vm=f"X0_{i//12}")
        if i % 6 == 0 and pend: run(pend.pop(0))
        k(v)
    kvplan = {12: kv_group('K', 0), 13: kv_group('K', 1), 14: kv_group('V', 0)}
    for j in range(15):
        k.c(f"qproj stage {j}")
        if cfg.fine == 1 and j in (0, 2, 4, 8, 12): k.stamp(2 + (0, 2, 4, 8, 12).index(j))
        mf = []
        for t in range(8):
            for q in range(4):
                qb = q if t % 2 == 0 else 3 - q
                d = QA(t, qb)
                mf.append(f"{MF} {d}, {ar(WF(j&1,t),4)}, {vr(HF(j&1,qb),4)}, {d if j else '0'}")
        lds = (preads(j+2) if j < 14 else []) + wreads(j+1)
        valu = hcalc(j+1)
        jj = j + LA_
        if jj >= 16: pend += kvplan[j]
        elif cfg.wb4:
            pend += x_loads(jj)
            if jj % cfg.wb4 == 0:
                for j2 in range(jj, min(16, jj + cfg.wb4)): pend += w_step(j2)
        else: pend += x_loads(jj) + w_step(jj)
        nvm = min(len(pend), cfg.nvm)
        vm = pend[:nvm]; pend = pend[nvm:]
        if cfg.x == 1: valu = valu[:16]
        gaps = fill(32, lds, valu, vm, g0=1, valu_end=31)
        add(gaps, -1, W(lg=f"R{j}_3"))
        front(gaps, 12, W(lg=f"R{j}_7"))
        if j < 2 or j % 2 == 1 or not cfg.bar2:
            tgt = j+1 if (j < 1 or not cfg.bar2) else j+2
            if cfg.wb4 and j + 1 >= 4:
                if (j + 1) % cfg.wb4 == 0:
                    front(gaps, 0, W(vm=f"X{j+1}"), W(vm=f"W{min(15, j + cfg.wb4)}", barrier=True))
                else: front(gaps, 0, W(vm=f"X{j+1}"))
            elif tgt < wdone: front(gaps, 0, W(vm=f"X{j+1}"))
            else: front(gaps, 0, W(vm=f"W{tgt}", barrier=True))
        else:
            front(gaps, 0, W(vm=f"X{j+1}"))
        emit(k, mf, gaps)
    assert not pend
    k.stamp(2) if not cfg.fine else (k.stamp(7) if cfg.fine == 1 else None)
    PF_F, PF_W = S_X, S_W
    pfsetup = [f"s_cmp_eq_u32 s{S_WAVE}, 1\ns_cselect_b64 s[{PF_F}:{PF_F+1}], s[58:59], s[56:57]",
        f"s_cmp_eq_u32 s{S_WAVE}, 2\ns_cselect_b64 s[{PF_F}:{PF_F+1}], s[60:61], s[{PF_F}:{PF_F+1}]",
        f"s_mul_i32 s6, s2, {43*128}\ns_add_u32 s{PF_F}, s{PF_F}, s6\ns_addc_u32 s{PF_F+1}, s{PF_F+1}, 0",
        f"s_lshl_b32 s6, s4, 17\ns_and_b32 s7, s5, 3\ns_lshl_b32 s7, s7, 15",
        f"s_add_u32 s6, s6, s7\ns_lshl_b32 s7, s{S_WAVE}, 13\ns_add_u32 s6, s6, s7",
        f"s_add_u32 s{PF_W}, s46, s6\ns_addc_u32 s{PF_W+1}, s47, 0\ns_mov_b32 s{PF_W+2}, 0x2000",
        f"s_cmp_eq_u32 s{S_WAVE}, 3\ns_cselect_b32 s{PF_F+2}, 0, {43*128}"]
    if OPT.xpf and OPT.ff:
        pfsetup += [f"s_lshl_b32 s6, s5, 1\ns_bfe_u32 s7, s2, 0x10005\ns_add_u32 s6, s6, s7",
            f"s_lshl_b32 s6, s6, 2\ns_and_b32 s7, s2, 3\ns_add_u32 s6, s6, s7",
            f"s_lshl_b32 s6, s6, 2\ns_bfe_u32 s7, s2, 0x20003\ns_add_u32 s6, s6, s7",
            f"s_lshl_b32 s6, s6, 2\ns_add_u32 s6, s6, s{S_WAVE}",
            f"s_lshl_b32 s6, s6, 11\ns_add_u32 s{S_M}, s0, s6\ns_addc_u32 s{S_M+1}, s1, 0\ns_mov_b32 s{S_M+2}, 2048"]
    elif OPT.xpf:
        pfsetup += [f"s_bfe_u32 s6, s2, 0x10002\ns_lshl_b32 s6, s6, 3\ns_bfe_u32 s7, s2, 0x30003",
            f"s_add_u32 s6, s6, s7\ns_lshl_b32 s6, s6, 2\ns_and_b32 s7, s2, 3",
            f"s_add_u32 s6, s6, s7\ns_lshl_b32 s6, s6, 2\ns_lshr_b32 s7, s2, 6",
            f"s_add_u32 s6, s6, s7\ns_lshl_b32 s6, s6, 2\ns_add_u32 s6, s6, s{S_WAVE}",
            f"s_lshl_b32 s6, s6, 11\ns_add_u32 s{S_M}, s0, s6\ns_addc_u32 s{S_M+1}, s1, 0\ns_mov_b32 s{S_M+2}, 2048"]
    xcc_pub = []
    if OPT.loc:
        def pub(k):
            k.srd(48, 54, 32768, WS_FLAG)
            k(f"s_and_b32 s6, s2, 7\ns_lshl_b32 s6, s6, 2\ns_lshr_b32 s7, s2, 6\ns_add_u32 s6, s6, s7\ns_lshl_b32 s63, s6, 10\ns_bfe_u32 s7, s2, 0x30003")
            k(f"s_getreg_b32 s52, hwreg(HW_REG_XCC_ID, 0, 4)\ns_add_u32 s52, s52, 1\ns_lshl_b32 s6, s7, 2\ns_lshl_b32 s7, s7, 7")
            k(f"v_lshlrev_b32 v3, 3, v{V_L16}\nv_add_u32 v3, s6, v3\nv_mov_b32 v4, s52\nv_bfe_u32 v27, v{V_L16}, 4, 3\nv_lshlrev_b32 v27, 2, v27\nv_add_u32 v27, s7, v27")
            k(f"s_cmp_eq_u32 s{S_WAVE}, 1\ns_cbranch_scc0 k1_nx\ns_mov_b64 exec, 0xff")
            k(f"buffer_store_dword v4, v3, s[48:51], s63 offen offset:64 sc1\ns_mov_b64 exec, -1")
            k("k1_nx:")
        xcc_pub = [pub]
    V0, VD = V_PF, V_PF+3
    pfv = [f"v_lshrrev_b32 v{VD}, 8, v{V_L16}", f"v_lshlrev_b32 v{VD}, 24, v{VD}", f"v_lshl_add_u32 v{V0}, v{V_L16}, 3, v{VD}"]
    cf, cw, co = cfg.pfc
    def site(srd, c0, sh, off, fl):
        return [f"s_sub_u32 s6, s{S_CNT}, {c0}\ns_min_u32 s6, s6, 4\ns_lshl_b32 s6, s6, {sh}", f"buffer_load_dword v{VD}, v{V0}, {sr(srd,4)}, s6 offen offset:{off} {fl}"]
    pfs = [site(PF_F, cf, 11, 0, ""), site(S_M, OPT.xpf, 11, 0, "") if OPT.xpf else site(S_O, co, 17, 0, OPT.opf), site(PF_W, cw, 11, 0, OPT.wpf), site(S_O, co, 17, 2048, OPT.opf)]
    if OPT.loc:
        pfv += [f"v_lshrrev_b32 v{VD}, 9, v{V_L16}", f"v_lshlrev_b32 v{VD}, 24, v{VD}", f"v_lshl_add_u32 v7, v{V_L16}, 3, v{VD}"]
        pfs[3] = site(S_O, OPT.lpo, 17, 0, OPT.opf); pfs[3][1] = pfs[3][1].replace(f"v{V0},", "v7,")
    loopinit = f"s_mov_b32 s{S_CNT}, 8"
    k.c("merged head")
    k.run(xcc_pub)
    k.wait(lg='all')
    def qk_q(buf, qb, czero):
        r = []
        for kb in range(2):
            for i in range(4):
                s_ = i if kb == 0 else 3 - i
                d = vr(S(buf, kb, qb), 4)
                c = d if i else ("0" if czero else vr(MN(qb), 4))
                nd = {f"Q{qb}": 2, f"KR{buf}": 0}
                if not czero: nd[f"MN{qb}"] = 2
                r.append(It(f"{MF} {d}, {ar(HK(buf)(kb*4+s_),4)}, {vr(Q(qb,s_),4)}, {c}", needs=nd, gives=f"S{buf}_{qb}"))
        return r
    mq = []
    for qb in range(4):
        for t in range(8):
            d = QA(t, qb)
            mq.append(It(f"{MF} {d}, {ar(WF(1,t),4)}, {vr(HF(1,qb),4)}, {d}", gives=f"A{t}_{qb}"))
    mq += qk_q(0,0,True) + qk_q(0,1,True) + qk_q(0,2,True) + qk_q(1,0,False) + qk_q(1,1,False) + qk_q(0,3,True) + qk_q(1,2,False) + qk_q(1,3,False)
    def conv(qb):
        r = []
        for s_ in range(4):
            for h in range(2):
                t = 2*s_ + h; nd = {f"A{t}_{qb}": 8}
                if qb < 2: a = 192 + (qb*8+t)*4
                else:
                    a = 224 + (t & 3)*4
                    for i in range(4): r.append(It(f"v_accvgpr_read_b32 v{a+i}, a{((qb-2)*8+t)*4+i}", needs=nd))
                for d in range(2): r.append(It(f"v_cvt_pk_bf16_f32 v{Q(qb,s_)+2*h+d}, v{a+2*d}, v{a+2*d+1}", needs=nd, gives=f"Q{qb}x"))
        r[-1].gives = f"Q{qb}"
        return r
    def rmax(qs):
        r = []
        for qb in qs:
            a = S(0, 0, qb); b = S(0, 1, qb); t = V_T + qb; nd = {f"S0_{qb}e": 8}
            r += [It(f"v_max3_f32 v{t}, v{a}, v{a+1}, v{a+2}", needs=nd), It(f"v_max3_f32 v{t+4}, v{b}, v{b+1}, v{b+2}"),
                  It(f"v_max3_f32 v{t}, v{t}, v{a+3}, v{b+3}"), It(f"v_max_f32 v{t}, v{t}, v{t+4}")]
        for n_, sw in enumerate(("v_permlane32_swap_b32", "v_permlane16_swap_b32")):
            for qb in qs: r.append(It(f"v_mov_b32 v{V_T+4+qb}, v{V_T+qb}", gives=f"mv{n_}_{qb}"))
            for qb in qs: r.append(It(f"{sw} v{V_T+4+qb}, v{V_T+qb}", cost=2, needs={f"mv{n_}_{qb}": 2}, gives=f"sw{n_}_{qb}"))
            for qb in qs: r.append(It(f"v_max_f32 v{V_T+qb}, v{V_T+qb}, v{V_T+4+qb}", needs={f"sw{n_}_{qb}": 1}))
        for qb in qs:
            for i in range(4): r.append(It(f"v_sub_f32 v{MN(qb)+i}, 0, v{V_T+qb}", gives=f"MN{qb}" if i == 3 else None))
        return r
    def sm0(qs, sub=True):
        r = []
        E = exps(0, qs); C = cvts(0, qs); A = adds(0, qs, cfg.addq())
        regs = [S(0, kb, qb) + i for qb in qs for kb in range(2) for i in range(4)]
        qof = [qb for qb in qs for _ in range(8)]
        n_ = len(E)
        for i in range(n_ + 2):
            if sub and i < n_: r.append(It(f"v_add_f32 v{regs[i]}, v{regs[i]}, v{MN(qof[i])}"))
            if 1 <= i <= n_: r.append(It(E[i-1], cost=2, gives=f"e{qs[0]}_{i-1}"))
            if i >= 2:
                if A[i-2]: r.append(It(A[i-2], needs={f"e{qs[0]}_{i-2}": 1}))
                if (i-2) % 2 == 1: r.append(It(C[(i-2)//2], needs={f"e{qs[0]}_{i-2}": 1}))
        return r
    last = {}
    for it in mq:
        if isinstance(it.gives, str) and it.gives.startswith("S"): last[it.gives] = it
    for g, it in last.items(): it.gives = g + "e"
    init = [It(f"v_mov_b32 v{V_LS+q}, 0") for q in range(4)] + [It(x) for x in pfv]
    vq = init + conv(0) + conv(1) + conv(2) + rmax([0, 1]) + conv(3) + sm0([0, 1]) + rmax([2, 3]) + sm0([2, 3])
    side = [It(W(vm="K0", barrier=True), cost=0, n=2)]
    for b in range(2):
        side += [It(L(x, f"HK{b}")) for x in kreads(0, b, HK(b))]
    side += [It(x, cost=0, n=3) for x in pfsetup]
    side += [It(W(lg="HK0"), cost=0, gives="KR0", needs={"A7_2": 0}), It(W(lg="HK1"), cost=0, gives="KR1")]
    G = lambda grp, nd=None: It(lambda kk, grp=grp: kk.run(grp), cost=2, n=3, needs=nd)
    side += [G(x) for x in kv_group('K', 2)] + [G(x, {"S0_2e": 0}) for x in kv_group('V', 1)]
    side += [It(W(vm="V0", barrier=True), cost=0, n=2, needs={"S0_3e": 0})]
    side += [It(x) for x in kreads(1, 0)] + [G(x) for x in kv_group('K', 3)] + [It(loopinit, cost=0, n=4)]
    merge(k, mq, vq, side)
    k("k1_first:")
    iteration(k, cfg, 1, "first")
    iteration(k, cfg, 2, "pv", czero=True)
    k.stamp(3) if not cfg.fine else None
    k("s_branch k1_pos2")
    k(".p2align 6")
    for _ in range(OPT.pad): k("s_nop 0")
    k("k1_loop:")
    iteration(k, cfg, 0, pf=pfs[0] if cfg.pf else ())
    iteration(k, cfg, 1, pf=pfs[1] if cfg.pf else ())
    iteration(k, cfg, 2, pf=pfs[2] if cfg.pf else (), label="k1_pos2")
    iteration(k, cfg, 3, pf=pfs[3] if cfg.pfo else (), post=[f"s_sub_u32 s{S_CNT}, s{S_CNT}, 1\ns_cmp_lg_u32 s{S_CNT}, 0\ns_cbranch_scc1 k1_loop"])
    k.stamp(4) if not cfg.fine else (k.stamp(1) if cfg.fine == 2 else None)
    if OPT.cpf2:
        k(f"s_cmp_ge_u32 s2, 16\ns_cbranch_scc1 k1_nocode\ns_lshr_b32 s6, s2, 3\ns_lshl_b32 s6, s6, 2\ns_add_u32 s6, s6, s{S_WAVE}")
        k.code_pf("k1_nocode", "code_end_marker", V_PF+1, S_M, 6)
        k("k1_nocode:")
    V_AW = 7
    AH = (lambda j: (j & 15) >> 1) if OPT.f2 else (lambda j: j >> 2)
    AS = (lambda j: (j >> 4)*2 + (j & 1)) if OPT.f2 else (lambda j: j & 3)
    def a_w(j):
        return [[f"s_add_u32 m0, s{S_W1}, {(j % OPT.anr)*8192 + p*4096}\ns_mov_b32 s{S_T0+4+p}, {(AH(j)*512 + AS(j)*32 + p*16)*1024}",
                 V(f"buffer_load_dwordx4 v{V_AW}, {sr(S_M,4)}, s{S_T0+4+p} offen lds", f"AW{j}")] for p in range(2)]
    extra = []
    if OPT.fa:
        k(f"v_lshrrev_b32 v2, 8, v{V_L16}\nv_lshl_add_u32 v2, v1, 2, v2\nv_and_b32 v3, 7, v2\nv_lshlrev_b32 v3, 5, v3\nv_and_b32 v4, 0xf0, v{V_L16}")
        k(f"v_xor_b32 v3, v3, v4\nv_lshl_add_u32 v{V_AW}, v2, 10, v3")
        k(f"s_and_b32 s6, s2, 3\ns_lshl_b32 s6, s6, 17\ns_bfe_u32 s7, s2, 0x20003\ns_lshl_b32 s7, s7, 8\ns_add_u32 s6, s6, s7")
        k(f"s_add_u32 s{S_M}, s46, s6\ns_addc_u32 s{S_M+1}, s47, 0\ns_sub_u32 s{S_M+2}, {4096*1024}, s6\ns_mov_b32 s{S_M+3}, 0x20000")
        k.vm = []
        if OPT.loc: k(f"buffer_load_dword v6, v27, s[48:51], s63 offen offset:64 sc1")
        extra = [g for j in range(OPT.na0) for g in a_w(j)]
    rest = iteration(k, cfg, 0, "tail", extra=extra)
    k.stamp(5) if not cfg.fine else (k.stamp(2) if cfg.fine == 2 else None)
    k.lg = ["V0"]*len(k.lg)
    k.run([x[1] for x in rest])
    nrest = len(rest); dbw = 8 - (nrest + 3)//4
    ns = 2*len(cfg.sumq)
    LT = 240
    mq = []
    for i, m in enumerate(pv2_mfmas(2, cfg.sumq)):
        db = (i - ns)//8
        it = It(m, gives="SUM" if i == ns-1 else (f"O{db}" if i >= ns and (i - ns) % 8 == 7 else None))
        if i == ns: it.needs = {"W0": 0}
        if i == ns + 8*dbw: it.needs = {"W1": 0}
        mq.append(it)
    side = [It(W(lg="V0"), cost=0, gives="W0")] + [It(f"s_mov_b32 s{S_T0+qb}, {qb*131072}", cost=0) for qb in range(4)]
    if OPT.fa:
        side += [It(lambda kk, g=g: kk.run(g), cost=2) for j in range(OPT.na0, OPT.na0 + OPT.na2) for g in a_w(j)]
    side += [It(W(lg="all"), cost=0, gives="W1", needs={f"O{dbw-2}": 0})]
    vq = []
    aq = cfg.addq()
    for n_, sw in enumerate(("v_permlane32_swap_b32", "v_permlane16_swap_b32")):
        for q in aq: vq.append(It(f"v_mov_b32 v{LT+4+q}, v{V_LS+q}", gives=f"a{n_}{q}"))
        for q in aq: vq.append(It(f"{sw} v{LT+4+q}, v{V_LS+q}", cost=2, needs={f"a{n_}{q}": 2}, gives=f"b{n_}{q}"))
        for q in aq: vq.append(It(f"v_add_f32 v{V_LS+q}, v{V_LS+q}, v{LT+4+q}", needs={f"b{n_}{q}": 1}))
    for q in cfg.sumq: vq.append(It(f"v_accvgpr_read_b32 v{V_LS+q}, a{LA(q)}", needs={"SUM": 8}))
    for q in range(4): vq.append(It(f"v_rcp_f32 v{LT+2*q}, v{V_LS+q}", cost=2))
    vq += [It(f"v_add_f32 v{LT+8}, v{V_LS}, v{V_LS+1}"), It(f"v_add_f32 v{LT+9}, v{V_LS+2}, v{V_LS+3}"), It(f"v_add_f32 v{LT+8}, v{LT+8}, v{LT+9}"),
           It(f"s_mov_b32 s6, {hexf(2.0**64)}\nv_cmp_nle_f32 vcc, v{LT+8}, s6"),
           It(f"s_lshl_b32 s7, s{S_WAVE}, 2\ns_add_u32 s7, s7, {FLAGB}\nv_mov_b32 v{LT+10}, s7"), It(f"v_mov_b32 v{LT+11}, {FLAGB}"),
           It(f"s_cmp_lg_u64 vcc, 0\ns_cselect_b32 s6, 1, 0\nv_mov_b32 v{LT+9}, s6"), It(L(f"ds_write_b32 v{LT+10}, v{LT+9}", "F"))]
    def check(k):
        k(f"ds_read_b128 {vr(LT+12,4)}, v{LT+11}\ns_waitcnt lgkmcnt(0)")
        k(f"v_or_b32 v{LT+12}, v{LT+12}, v{LT+13}\nv_or3_b32 v{LT+12}, v{LT+12}, v{LT+14}, v{LT+15}\ns_nop 0")
        k(f"v_readfirstlane_b32 s6, v{LT+12}")
        k(f"s_andn2_b32 s6, s6, s{S_RERUN}\ns_cmp_lg_u32 s6, 0\ns_cbranch_scc1 k1_fallback")
    def flagprep(k):
        k.srd(S_K, 54, 4*32768, WS_FLAG)
        k(f"s_and_b32 s6, s2, 7\ns_lshl_b32 s6, s6, 2\ns_lshr_b32 s7, s2, 6\ns_add_u32 s6, s6, s7\ns_lshl_b32 s63, s6, 10\ns_bfe_u32 s7, s2, 0x30003")
        k(f"v_lshlrev_b32 v2, 3, v{V_L16}\ns_lshl_b32 s6, s7, 2\nv_add_u32 v2, s6, v2\nv_mov_b32 v3, 0x{MAGIC:x}")
        if OPT.mk0: k(f"v_lshrrev_b32 v27, 4, v{V_L16}\nv_min_u32 v27, 11, v27\nv_lshlrev_b32 v27, 2, v27\ns_lshl_b32 s6, s7, 7\nv_add_u32 v27, s6, v27")
        else: k(f"v_bfe_u32 v27, v{V_L16}, 4, 3\nv_lshlrev_b32 v27, 2, v27\ns_lshl_b32 s6, s7, 7\nv_add_u32 v27, s6, v27")
    def raise_(k, lab, off):
        k(f"s_cmp_eq_u32 s{S_WAVE}, 1\ns_cbranch_scc0 {lab}")
        if OPT.loc:
            k(f"v_cmp_ne_u32 vcc, s52, v6\ns_cbranch_vccz {lab}_l\nbuffer_wbl2 sc1\ns_waitcnt vmcnt(0)\n{lab}_l:")
        k("s_mov_b64 exec, 0xff")
        k(f"buffer_store_dword v3, v2, {sr(S_K,4)}, s63 offen offset:{off} sc1\ns_mov_b64 exec, -1")
        k(f"{lab}:")
    def midsig(k):
        k.wait(vm="OS1", lg='all', barrier=True)
        check(k); flagprep(k); raise_(k, "k1_nf1", 0)
    n_ = 0
    for s_ in range(4):
        for qb in range(4):
            t = 64 + (n_ & 3)*8; o = 32 + (n_ & 7)*4; n_ += 1
            for h in range(2):
                for i in range(4): vq.append(It(f"v_accvgpr_read_b32 v{t+4*h+i}, a{O(2*s_+h,qb)+i}", needs={f"O{2*s_+h}": 8}))
            if n_ <= cfg.npk:
                for i in range(8): vq.append(It(f"v_mul_f32 v{t+i}, v{t+i}, v{LT+2*qb}"))
            else:
                for i in range(4): vq.append(It(f"v_pk_mul_f32 {vr(t+2*i,2)}, {vr(t+2*i,2)}, {vr(LT+2*qb,2)} op_sel_hi:[1,0]"))
            for d in range(4): vq.append(It(f"v_cvt_pk_bf16_f32 v{o+d}, v{t+2*d}, v{t+2*d+1}"))
            vq.append(It(V(f"buffer_store_dwordx4 {vr(o,4)}, v{V_L16}, {sr(S_O,4)}, s{S_T0+qb} offen offset:{s_*1024} {OPT.lst if OPT.loc else ('sc1' if (n_ <= OPT.nsc1 or OPT.fa) else OPT.st1)}", "OST" if n_ > 8 else "OS1"), cost=2))
            if OPT.f2 and n_ == OPT.f2n: vq.append(It(midsig, cost=0, needs={"W1": 0}))
    if not OPT.fa: k.vm = []
    merge(k, mq, vq, side)
    if OPT.fa:
        for j in range(OPT.na0 + OPT.na2, OPT.na0 + OPT.na2 + OPT.na1): k.run(a_w(j))
        assert OPT.na0 + OPT.na1 + OPT.na2 <= 14
        k(f"s_lshl_b32 s6, s5, 1\ns_bfe_u32 s7, s2, 0x10005\ns_add_u32 s6, s6, s7\ns_lshl_b32 s6, s6, 2\ns_add_u32 s{S_CNT}, s6, s{S_WAVE}")
        k(f"s_lshl_b32 s6, s{S_CNT}, 18\ns_and_b32 s7, s2, 3\ns_lshl_b32 s7, s7, 12\ns_add_u32 s6, s6, s7\ns_add_u32 s6, s6, 0x{WS_OF:x}")
        k(f"s_add_u32 s{S_X}, s54, s6\ns_addc_u32 s{S_X+1}, s55, 0\ns_mov_b32 s{S_X+2}, {2*131072}")
        k(f"s_lshl_b32 s6, s{S_CNT}, 15\ns_lshl_b32 s7, s7, 9\ns_add_u32 s6, s6, s7\ns_bfe_u32 s7, s2, 0x20003\ns_lshl_b32 s7, s7, 12\ns_add_u32 s6, s6, s7\ns_add_u32 s6, s6, 0x{WS_PART:x}")
        k(f"s_add_u32 s{S_W}, s54, s6\ns_addc_u32 s{S_W+1}, s55, 0\ns_mov_b32 s{S_W+2}, {16384+4096}")
    V_W0 = 32
    def poll(k, lab, off):
        k("s_mov_b32 s7, 0")
        k(f"{lab}:")
        k(f"buffer_load_dword v3, v27, {sr(S_K,4)}, s63 offen offset:{off} sc1\ns_waitcnt vmcnt(0)\nv_cmp_ne_u32 vcc, 0x{MAGIC:x}, v3")
        k(f"s_cbranch_vccz {lab}_r\ns_add_u32 s7, s7, 1\ns_cmp_lt_u32 s7, 0x10000\ns_cbranch_scc1 {lab}")
        k(f"{lab}_r:")
        k(f"s_barrier\nv_mov_b32 v3, 0\nbuffer_store_dword v3, v27, {sr(S_K,4)}, s63 offen offset:{off}\ns_branch {lab}_e")
        k(f"{lab}_ok:")
    if OPT.f2:
        for j in range(OPT.na0 + OPT.na1 + OPT.na2, OPT.na3): k.run(a_w(j))
        if OPT.ff: k1t.setup_early(k)
        k("s_nop 1")
        for t in range(8): k(f"v_add_u32 v{V_W0+t}, {-VB & 0xffffffff}, v{V_VA+t}\nv_add_u32 v{V_W0+8+t}, {VB}, v{V_VA+t}")
        k(f"s_cmp_eq_u32 s{S_WAVE}, 0\ns_cbranch_scc0 k1_poll_ok")
        poll(k, "k1_poll", 0)
        k("s_waitcnt vmcnt(0)\ns_barrier")
        k.stamp(6) if not cfg.fine else (k.stamp(3) if cfg.fine == 2 else k1t.st(k, 'x0'))
        raise_(k, "k1_nf2", 32)
    else:
        if OPT.fa: k.wait(vm="OST")
        k("s_waitcnt lgkmcnt(0)\ns_barrier")
        check(k)
    if OPT.fa and not OPT.f2:
        k.stamp(6) if not cfg.fine else (k.stamp(3) if cfg.fine == 2 else k1t.st(k, 'x0'))
        flagprep(k); raise_(k, "k1_nf1", 0)
        for t in range(8): k(f"v_add_u32 v{V_W0+t}, {-VB & 0xffffffff}, v{V_VA+t}\nv_add_u32 v{V_W0+8+t}, {VB}, v{V_VA+t}")
        for j in range(OPT.na0 + OPT.na1 + OPT.na2, OPT.anr): k.run(a_w(j))
        if OPT.ff: k1t.setup_early(k)
        k(f"s_cmp_eq_u32 s{S_WAVE}, 0\ns_cbranch_scc0 k1_poll_ok")
        poll(k, "k1_poll", 0)
        k("s_waitcnt vmcnt(0)\ns_barrier\nk1_poll_e:")
    if OPT.fa:
        k.vm = []; k.lg = []
        if cfg.fine == 2: k.stamp(4); k("s_waitcnt lgkmcnt(0)")
        if cfg.fine == 3: k1t.st(k, 'y0')
        AC = lambda t, tb: 64 + (t*2+tb)*4
        AWF = lambda j, t: 128 + ((j&3)*8+t)*4
        ABF = lambda j, tb: (j*2+tb)*4
        def a_b(j):
            return [[f"s_mov_b32 s{S_T0+tb}, {tb*131072 + AH(j)*16384}",
                     V(f"buffer_load_dwordx4 {ar(ABF(j,tb),4)}, v{V_L16}, {sr(S_X,4)}, s{S_T0+tb} offen offset:{AS(j)*1024} sc1", f"AB{j}")] for tb in range(2)]
        def a_reads(p):
            r = []
            for t in range(8):
                for j in (2*p, 2*p+1):
                    base = (j % OPT.anr)*8192; off = base & 0xffff
                    r += [L(f"ds_read_b64_tr_b16 {vr(AWF(j,t)+2*h,2)}, v{(V_W0, V_VA, V_W0+8)[base >> 16]+t} offset:{off + h*4096}", f"R{p}_{t}") for h in range(2)]
            return r
        nb = OPT.nb0
        for j in range(nb): k.run(a_b(j))
        k.run(a_reads(0))
        nw = max(OPT.na3, OPT.na0 + OPT.na1 + OPT.na2) if OPT.f2 else OPT.anr; ncw = 0
        for p in range(16):
            mf = []; n_ = 0
            for t in range(8):
                for tb_ in range(2):
                    tb = tb_ if t % 2 == 0 else 1 - tb_
                    d = vr(AC(t, tb), 4)
                    for i, j in enumerate((2*p, 2*p+1) if n_ % 2 == 0 else (2*p+1, 2*p)):
                        mf.append(f"{MF} {d}, {vr(AWF(j,t),4)}, {ar(ABF(j,tb),4)}, {d if (p or i) else '0'}")
                    n_ += 1
            if p == 15 and OPT.amrg:
                k.wait(vm=f"AB{2*p+1}", lg=f"R{p}_3")
                mq = []; vq = []; n_ = 0
                for ns_ in range(4):
                    for tb_ in range(2):
                        tb = tb_ if ns_ % 2 == 0 else 1 - tb_
                        o = 128 + n_*4
                        for h_ in range(2):
                            h = h_ if n_ % 2 == 0 else 1 - h_
                            t = 2*ns_ + h; a = AC(t, tb); d = vr(a, 4)
                            for i, j in enumerate((2*p, 2*p+1) if h_ == 0 else (2*p+1, 2*p)):
                                mq.append(It(f"{MF} {d}, {vr(AWF(j,t),4)}, {ar(ABF(j,tb),4)}, {d}", gives=f"D{t}{tb}" if i else None, needs={"RR": 0} if len(mq) == 16 else None))
                            vq += [It(f"v_cvt_pk_bf16_f32 v{o+2*h+e}, v{a+2*e}, v{a+2*e+1}", needs={f"D{t}{tb}": 8}) for e in range(2)]
                        vq.append(It(V(f"buffer_store_dwordx4 {vr(o,4)}, v{V_L16}, {sr(S_W,4)}, s{S_T0+tb} offen offset:{ns_*1024} sc1", "PST"), cost=2))
                        n_ += 1
                merge(k, mq, vq, [It(f"s_mov_b32 s{S_T0}, 0\ns_mov_b32 s{S_T0+1}, 16384", cost=0), It(W(lg='all'), cost=0, gives="RR", needs={"D01": 0})])
                break
            vm = []
            for _ in range(OPT.nbs):
                wok = nw < 32 and (nw < OPT.anr or p >= (nw-OPT.anr)//2 + 1)
                if wok and (nb >= 32 or nw//2 - 1 - OPT.wlead <= nb//2): vm += a_w(nw); nw += 1
                elif nb < 32 and not (OPT.f2 and nb >= 16 and p < OPT.f2c): vm += a_b(nb); nb += 1
                elif wok: vm += a_w(nw); nw += 1
                elif OPT.ff and nw == 32 and ncw < OPT.fce and len(vm) <= 3 and k1t.a_last(k1t.cperm()[ncw], OPT.anr) <= p - 1:
                    vm += k1t.c_w(ncw); ncw += 1
            if OPT.ff and p == OPT.fxp: vm += k1t.x_loads()
            if OPT.ff and p in (OPT.fmp, OPT.fmp+1): vm += k1t.m_loads()[4*(p-OPT.fmp):4*(p-OPT.fmp)+4]
            if OPT.f2 and p == OPT.f2c - 1: vm.insert(len(vm)//2, [V(f"buffer_load_dword v3, v27, {sr(S_K,4)}, s63 offen offset:32 sc1", "F2")])
            if OPT.loc and p == OPT.lwb:
                vm.append([f"s_lshr_b32 s6, s2, 3\ns_or_b32 s6, s6, s{S_WAVE}\ns_cbranch_scc1 k1_nowb\nbuffer_wbl2 sc1\nk1_nowb:"])
            rd = a_reads(p+1) if p < 15 else []
            if OPT.ax == 1: rd = []
            if OPT.ax == 2: vm = []
            if OPT.ax == 3: rd = rd[:24]
            if OPT.ax == 4: vm = [x for x in vm if "m0" in x[0]]
            if OPT.amix:
                gaps = fill(32, [], [], vm, g0=1)
                fr = [g for g in range(1, 31) if g not in gaps]
                for i, g in enumerate(fr):
                    c = (len(rd) + len(fr) - i - 1)//(len(fr) - i) if (i % 2 == 0 or len(rd) >= 2*(len(fr)-i)) else len(rd)//(len(fr) - i)
                    for _ in range(c): add(gaps, g, rd.pop(0))
                assert not rd
            else:
                gaps = fill(32, rd, [], vm, g0=1, pair_lds=True)
            add(gaps, -1, W(vm=f"AB{2*p+1}", lg=f"R{p}_3"))
            if OPT.f2 and p == OPT.f2c:
                add(gaps, -1, W(vm="F2"), "v_cmp_ne_u32 vcc, 1, v3\ns_cbranch_vccnz k1_spin2\nk1_spin2_ret:")
            front(gaps, 12, W(lg=f"R{p}_7"))
            if 1 <= p < 15 and not OPT.anob: front(gaps, 0, W(vm=f"AW{2*p+3}", barrier=True))
            emit(k, mf, gaps)
            if cfg.fine == 2 and p == 1: k.stamp(5); k("s_waitcnt lgkmcnt(0)"); k.lg = []
        if cfg.fine == 2: k.stamp(6)
        assert nb == 32 and nw == 32
        k(f"s_mov_b32 s{S_T0}, 0\ns_mov_b32 s{S_T0+1}, 16384")
        n_ = 0
        for ns_ in range(4 if not OPT.amrg else 0):
            for tb in range(2):
                o = 128 + n_*4; n_ += 1
                for h in range(2):
                    a = AC(2*ns_+h, tb)
                    k(f"v_cvt_pk_bf16_f32 v{o+2*h}, v{a}, v{a+1}\nv_cvt_pk_bf16_f32 v{o+2*h+1}, v{a+2}, v{a+3}")
                k(f"buffer_store_dwordx4 {vr(o,4)}, v{V_L16}, {sr(S_W,4)}, s{S_T0+tb} offen offset:{ns_*1024} sc1")
        if OPT.ff: k1t.rest(k, ncw)
    k.dbg_mark(3, 100, 101, True); k.dbg_mark(4, 102, 103)
    if prof:
        k.stamp(6) if not (cfg.fine or OPT.fa) else None
        k("s_waitcnt vmcnt(0)")
        k.stamp(7) if cfg.fine != 1 else None
        k.dump_stamps(8, 54, 100)
    k(f"{end}:")
    k("s_endpgm")
    if OPT.f2:
        k("k1_spin2:")
        poll(k, "k1_poll2", 32)
        k("s_branch k1_spin2_ret")
    k("k1_fallback:")
    k(f"s_mov_b32 s{S_RERUN}, 1")
    k("v_and_b32 v2, 63, v0\nv_lshrrev_b32 v3, 4, v2\nv_and_b32 v4, 15, v2")
    k("v_lshlrev_b32 v5, 8, v4\nv_lshl_add_u32 v5, v3, 4, v5")
    for q in range(4): k(f"v_mov_b32 v{V_T+q}, 0xff800000")
    k("s_mov_b32 s6, 0")
    k("k1_fb_loop:")
    for s in range(4): k(f"buffer_load_dwordx4 {ar(KF(s),4)}, v5, {sr(S_K,4)}, s6 offen offset:{64*s}")
    k("s_waitcnt vmcnt(0)")
    for s in range(4):
        for qb in range(4):
            d = vr(S(0,0,qb),4)
            k(f"{MF} {d}, {ar(KF(s),4)}, {vr(Q(qb,s),4)}, {d if s else '0'}")
    k("s_nop 15")
    for qb in range(4):
        a = S(0,0,qb)
        k(f"v_max3_f32 v{V_T+qb}, v{V_T+qb}, v{a}, v{a+1}")
        k(f"v_max3_f32 v{V_T+qb}, v{V_T+qb}, v{a+2}, v{a+3}")
    k("s_add_u32 s6, s6, 4096\ns_cmp_lt_u32 s6, 0x80000\ns_cbranch_scc1 k1_fb_loop")
    rowmax_cross(k, [V_T+q for q in range(4)], V_T+4)
    for x in pfv: k(x)
    for qb in range(4):
        k(f"v_mov_b32 v{V_LS+qb}, 0")
        for i in range(4): k(f"v_sub_f32 v{MN(qb)+i}, 0, v{V_T+qb}")
    k("s_barrier")
    k.vm = []; k.lg = []
    for wh, t in (('K',0),('K',1),('V',0),('K',2),('V',1),('K',3)): run(kv_group(wh, t))
    k.wait(vm="V0", barrier=True)
    run(kreads(0, 0, HK(0))); k("s_waitcnt lgkmcnt(0)"); run(kreads(0, 1, HK(1)))
    for m in qk_mfmas(0, HK(0)): k(m)
    k("s_waitcnt lgkmcnt(0)\ns_barrier")
    run(kreads(1, 0))
    for m in qk_mfmas(1, HK(1)): k(m)
    merge(k, [], sm0([0, 1, 2, 3], sub=False))
    k(loopinit)
    k("s_branch k1_first")
    return k
```

```python
from common import *
from sched import *
S_K, S_V, S_W, S_X, S_M, S_O = 8, 12, 16, 20, 24, 28
S_T0, S_WAVE = 36, 45
V_L16 = 26
PARB = 9*16384
RED = PARB + 4096 + 1024
TRN = PARB + 8192
CP = 64
FA = 4*32768

def pre_wait(k):
    k("v_lshrrev_b32 v128, 5, v0\nv_and_b32 v129, 31, v0")
    k("v_lshlrev_b32 v130, 10, v128\nv_lshl_add_u32 v130, v129, 4, v130")
    k("s_lshl_b32 s33, s5, 5\ns_add_u32 s33, s33, s4")
    k("s_mul_i32 s34, s2, 0x556\ns_lshr_b32 s34, s34, 16\ns_mul_i32 s35, s34, 48\ns_sub_u32 s35, s2, s35")
    k("v_lshrrev_b32 v131, 3, v0\nv_and_b32 v132, 7, v0")
    k("v_mul_u32_u24 v133, 6144, v131\nv_lshl_add_u32 v133, v132, 4, v133\nv_lshlrev_b32 v134, 1, v131")

def body(k, after_loads, after_stores, after_flags):
    k.srd(S_K, 0, 2048*1024)
    k(f"s_lshl_b32 s{S_T0}, s33, 13")
    XI = 136
    for j in range(2): k.vmop(f"buffer_load_dwordx4 {vr(XI+4*j,4)}, v130, {sr(S_K,4)}, s{S_T0} offen offset:{512*j} nt", f"PX{j}")
    k.srd(S_O, CP+2, 512*3072*2); k.srd(S_V, CP, 1024)
    k(f"s_cmp_lt_u32 s2, 192\ns_cselect_b32 s{S_O+2}, s{S_O+2}, 0")
    k(f"s_mul_i32 s{S_T0+1}, s34, {128*6144}\ns_lshl_b32 s6, s35, 7\ns_add_u32 s{S_T0+1}, s{S_T0+1}, s6\ns_lshl_b32 s{S_T0+2}, s34, 8")
    CI, WI = 144, 160
    for i in range(4): k.vmop(f"buffer_load_ushort v{CI+i}, v134, {sr(S_V,4)}, s{S_T0+2} offen offset:{64*i}", "PC")
    for i in range(4):
        k.vmop(f"buffer_load_dwordx4 {vr(WI+4*i,4)}, v133, {sr(S_O,4)}, s{S_T0+1} offen nt", f"PW{i}")
        if i < 3: k(f"s_add_u32 s{S_T0+1}, s{S_T0+1}, {32*6144}")
    k("s_cmp_lt_u32 s2, 192\ns_cbranch_scc1 k1_ncp")
    k(f"s_bfe_u32 s6, s2, 0x30003\ns_lshl_b32 s6, s6, 2\ns_add_u32 s6, s6, s{S_WAVE}\ns_cmp_ge_u32 s6, 10\ns_cbranch_scc1 k1_ncp")
    k.code_pf("k1_ncp", "code_end_marker", 176, S_T0+4, 6)
    k("k1_ncp:")
    after_loads()
    E, T = 192, 208
    def rowsum(r):
        for sh in (8, 4, 2, 1): k(f"s_nop 1\nv_add_f32 v{r}, v{r}, v{r} row_ror:{sh}")
        k(f"v_mov_b32 v{r+1}, v{r}\ns_nop 1\nv_permlane16_swap_b32 v{r+1}, v{r}\ns_nop 1\nv_add_f32 v{r}, v{r}, v{r+1}")
    for j in range(2):
        k.wait(vm=f"PX{j}")
        for d in range(4): k(f"v_lshlrev_b32 v{E+8*j+2*d}, 16, v{XI+4*j+d}\nv_and_b32 v{E+8*j+2*d+1}, 0xffff0000, v{XI+4*j+d}")
    for i in range(4): k(f"v_pk_add_f32 {vr(T+2*i,2)}, {vr(E+2*i,2)}, {vr(E+8+2*i,2)}")
    for i in range(2): k(f"v_pk_add_f32 {vr(T+2*i,2)}, {vr(T+2*i,2)}, {vr(T+4+2*i,2)}")
    k(f"v_pk_add_f32 {vr(T,2)}, {vr(T,2)}, {vr(T+2,2)}\nv_add_f32 v{T}, v{T}, v{T+1}")
    rowsum(T)
    k(f"v_mul_f32 v{T+2}, {hexf(-1/512)}, v{T}")
    for i in range(8): k(f"v_pk_add_f32 {vr(E+2*i,2)}, {vr(E+2*i,2)}, {vr(T+2,2)} op_sel_hi:[1,0]")
    for i in range(2): k(f"v_pk_mul_f32 {vr(T+2*i,2)}, {vr(E+2*i,2)}, {vr(E+2*i,2)}")
    for i in range(2, 8): k(f"v_pk_fma_f32 {vr(T+2*(i&1),2)}, {vr(E+2*i,2)}, {vr(E+2*i,2)}, {vr(T+2*(i&1),2)}")
    k(f"v_pk_add_f32 {vr(T,2)}, {vr(T,2)}, {vr(T+2,2)}\nv_add_f32 v{T}, v{T}, v{T+1}")
    rowsum(T)
    k(f"v_mov_b32 v{T+2}, {hexf(1e-5)}\nv_fmac_f32 v{T+2}, {hexf(1/512)}, v{T}\nv_rsq_f32 v{T+2}, v{T+2}")
    k(f"v_lshlrev_b32 v135, 7, v129\nv_lshl_add_u32 v135, v128, 4, v135\nv_add_u32 v135, {TRN}, v135")
    for i in range(8): k(f"v_pk_mul_f32 {vr(E+2*i,2)}, {vr(E+2*i,2)}, {vr(T+2,2)} op_sel_hi:[1,0]")
    for d in range(8): k(f"v_cvt_pk_f16_f32 v{XI+d}, v{E+2*d}, v{E+2*d+1}")
    k(f"ds_write_b128 v135, {vr(XI,4)}\nds_write_b128 v135, {vr(XI+4,4)} offset:4096")
    k.wait(vm="PC")
    for i in range(4): k(f"v_lshlrev_b32 v{CI+i}, 16, v{CI+i}")
    for i in range(4): k(f"v_mul_f32 v{CI+4+i}, {hexf(-math.log2(math.e))}, v{CI+i}")
    for i in range(4): k(f"v_exp_f32 v{CI+4+i}, v{CI+4+i}")
    k("s_nop 0")
    for i in range(4): k(f"v_add_f32 v{CI+4+i}, 1.0, v{CI+4+i}")
    for i in range(4): k(f"v_rcp_f32 v{CI+4+i}, v{CI+4+i}")
    k("s_nop 0")
    for i in range(4): k(f"v_mul_f32 v{CI+i}, v{CI+i}, v{CI+4+i}")
    for i in range(4): k(f"v_cvt_pk_bf16_f32 v{CI+4+i}, v{CI+i}, v{CI+i}")
    for i in range(4): k(f"v_and_b32 v{CI+8+2*i}, 0xffff0000, v{CI+4+i}")
    A = 192
    for i in range(4):
        k.wait(vm=f"PW{i}")
        for d in range(4):
            w = WI+4*i+d; t = T + 2*(d & 1)*2
            k(f"v_lshlrev_b32 v{t}, 16, v{w}\nv_and_b32 v{t+1}, 0xffff0000, v{w}")
            if i == 0: k(f"v_pk_mul_f32 {vr(A+2*d,2)}, {vr(t,2)}, {vr(CI+8+2*i,2)} op_sel_hi:[1,0]")
            else: k(f"v_pk_fma_f32 {vr(A+2*d,2)}, {vr(t,2)}, {vr(CI+8+2*i,2)}, {vr(A+2*d,2)} op_sel_hi:[1,0,1]")
    k("v_lshlrev_b32 v130, 5, v132\nv_and_b32 v131, 16, v2")
    for e in range(8): k(f"v_add_f32 v{A+e}, v{A+e}, v{A+e} row_ror:8")
    k("v_add_u32 v130, v130, v131\nv_lshrrev_b32 v131, 2, v2")
    for e in range(4): k(f"v_permlane16_swap_b32 v{A+e}, v{A+4+e}")
    k("v_and_b32 v131, 8, v131\nv_add_u32 v130, v130, v131")
    for e in range(4): k(f"v_add_f32 v{A+e}, v{A+e}, v{A+4+e}")
    k(f"v_lshl_add_u32 v130, v1, 8, v130\nv_add_u32 v130, {RED}, v130")
    for e in range(2): k(f"v_permlane32_swap_b32 v{A+e}, v{A+2+e}")
    k(f"v_lshlrev_b32 v133, 4, v0\nv_add_u32 v133, {TRN}, v133")
    for e in range(2): k(f"v_add_f32 v{A+e}, v{A+e}, v{A+2+e}")
    k(f"ds_write_b64 v130, {vr(A,2)}")
    k(f"v_lshlrev_b32 v134, 2, v2\nv_add_u32 v135, {RED}, v134\nv_lshrrev_b32 v131, 3, v0\nv_lshlrev_b32 v131, 8, v131\nv_lshl_add_u32 v131, v132, 4, v131")
    k.srd(S_K, 54, 2048*1024, WS_XH)
    k.srd(S_V, 54, 4*12288, WS_MODP)
    k(f"s_lshr_b32 s{S_T0}, s33, 1\ns_lshl_b32 s{S_T0}, s{S_T0}, 14\ns_and_b32 s6, s33, 1\ns_lshl_b32 s6, s6, 7\ns_add_u32 s{S_T0}, s{S_T0}, s6\ns_add_u32 s{S_T0+1}, s{S_T0}, 8192")
    k(f"s_mul_i32 s{S_T0+2}, s34, 12288\ns_lshl_b32 s6, s35, 8\ns_add_u32 s{S_T0+2}, s{S_T0+2}, s6\ns_cmp_eq_u32 s{S_WAVE}, 0\ns_cselect_b32 s{S_V+2}, s{S_V+2}, 0")
    k("s_waitcnt lgkmcnt(0)\ns_barrier")
    for i in range(4): k(f"ds_read_b32 v{A+i}, v135 offset:{256*i}")
    k(f"ds_read_b128 {vr(XI,4)}, v133\nds_read_b128 {vr(XI+4,4)}, v133 offset:4096\ns_waitcnt lgkmcnt(2)")
    k(f"v_pk_add_f32 {vr(A,2)}, {vr(A,2)}, {vr(A+2,2)}\nv_add_f32 v{A}, v{A}, v{A+1}")
    k.vmop(f"buffer_store_dword v{A}, v134, {sr(S_V,4)}, s{S_T0+2} offen sc1", "PS")
    k("s_waitcnt lgkmcnt(1)")
    k.vmop(f"buffer_store_dwordx4 {vr(XI,4)}, v131, {sr(S_K,4)}, s{S_T0} offen sc1", "PS")
    k("s_waitcnt lgkmcnt(0)")
    k.vmop(f"buffer_store_dwordx4 {vr(XI+4,4)}, v131, {sr(S_K,4)}, s{S_T0+1} offen sc1", "PS")
    k.srd(S_O, 54, FA + 256*512, WS_FLAG)
    k(f"v_mov_b32 v128, 0x{MAGIC:x}\nv_mov_b32 v129, 0")
    k(f"v_lshlrev_b32 v130, 9, v2\ns_lshl_b32 s6, s5, 14\ns_lshl_b32 s7, s4, 2\ns_add_u32 s6, s6, s7\ns_add_u32 s{S_T0}, s6, {FA}")
    k(f"v_lshlrev_b32 v131, 9, v0\ns_lshl_b32 s6, s34, 4\ns_add_u32 s6, s6, s35\ns_lshl_b32 s6, s6, 2\ns_add_u32 s{S_T0+1}, s6, {FA+128}")
    k("s_lshl_b32 s6, s34, 5\ns_add_u32 s6, s6, s35\ns_sub_u32 s6, s6, 16")
    k(f"s_bfe_u32 s7, s6, 0x20002\ns_lshl_b32 s{S_T0+2}, s7, 12\ns_bfe_u32 s7, s6, 0x30004\ns_lshl_b32 s7, s7, 7\ns_add_u32 s{S_T0+2}, s{S_T0+2}, s7")
    k(f"s_and_b32 s7, s6, 3\ns_lshl_b32 s7, s7, 2\ns_add_u32 s{S_T0+2}, s{S_T0+2}, s7")
    k("v_lshrrev_b32 v132, 2, v2\nv_lshlrev_b32 v132, 14, v132\nv_and_b32 v133, 3, v2\nv_lshl_add_u32 v132, v133, 10, v132")
    k(f"v_and_b32 v135, 0x7c, v134\ns_lshl_b32 s6, s33, 9\ns_add_u32 s{S_T0+3}, s6, {FA}")
    after_stores()
    k.wait(vm="PS", barrier=True)
    k("s_cmp_ge_u32 s2, 192\ns_cbranch_scc1 k1_pf1\ns_cmp_ge_u32 s35, 16\ns_cbranch_scc1 k1_pf0")
    k(f"buffer_store_dword v128, v131, {sr(S_O,4)}, s{S_T0+1} offen sc1\ns_branch k1_pf1")
    k("k1_pf0:")
    k(f"s_cmp_eq_u32 s{S_WAVE}, 2\ns_cbranch_scc0 k1_pf1\ns_mov_b64 exec, 0xff")
    k(f"buffer_store_dword v128, v132, {sr(S_O,4)}, s{S_T0+2} offen offset:32 sc1\ns_mov_b64 exec, -1")
    k("k1_pf1:")
    k(f"s_cmp_eq_u32 s{S_WAVE}, 1\ns_cbranch_scc0 k1_pf2\ns_mov_b32 exec_hi, 0")
    k(f"buffer_store_dword v128, v130, {sr(S_O,4)}, s{S_T0} offen sc1\ns_mov_b64 exec, -1")
    k("k1_pf2:")
    k(f"s_mov_b32 s63, s{S_T0+3}")
    after_flags()
    k(f"s_cmp_eq_u32 s{S_WAVE}, 0\ns_cbranch_scc0 k1_pf4\ns_mov_b32 s7, 0")
    if OPT.pd0: k(f"s_sleep {OPT.pd0}")
    k("k1_pf3:")
    k(f"buffer_load_dword v130, v135, {sr(S_O,4)}, s63 offen sc1\nbuffer_load_dword v131, v134, {sr(S_O,4)}, s63 offen offset:128 sc1\ns_waitcnt vmcnt(0)")
    k("v_cmp_ne_u32 vcc, v128, v130\nv_cmp_ne_u32 s[40:41], v128, v131\ns_or_b64 vcc, vcc, s[40:41]")
    k("s_cbranch_scc0 k1_pf5\ns_add_u32 s7, s7, 1\ns_cmp_lt_u32 s7, 0x10000\ns_cbranch_scc1 k1_pf3")
    k("k1_pf5:")
    k(f"buffer_store_dword v129, v135, {sr(S_O,4)}, s63 offen\nbuffer_store_dword v129, v134, {sr(S_O,4)}, s63 offen offset:128")
    k("k1_pf4:")
    k("s_barrier")
```

```python
from common import *
from sched import *
from k0 import mod_loads, mod_finish
MF = "v_mfma_f32_16x16x32_bf16"
S_K, S_V, S_W, S_X, S_M, S_O, S_D = 8, 12, 16, 20, 24, 28, 48
S_T0, S_WAVE, S_W1 = 36, 45, 62
S_TT, S_MM, S_W3 = 33, 34, 35
V_L16 = 26
PAR2 = 9*16384 + 8192
SCR = 9*16384 + 4096 + 64
C_W, C_NW = 12288, 12
D_U, D_NW = 16384, 9
V_DC, V_DD = 20, 23
XR = 48

def spread(n, rd, vm, g0=1, g1=None):
    gaps = fill(n, [], [], vm, g0=g0)
    fr = [g for g in range(g0, (g1 or n-1)) if g not in gaps]
    rd = list(rd)
    for i, g in enumerate(fr):
        left = len(fr) - i
        c = -(-len(rd)//left) if (i % 2 == 0 or len(rd) >= 2*left) else len(rd)//left
        for _ in range(c): add(gaps, g, rd.pop(0))
    assert not rd
    return gaps

def a_last(i, anr):
    sl = range((i*C_W)//8192, (i*C_W + C_W - 1)//8192 + 1)
    return max(max(x for x in range(32) if x % anr == s_)//2 if s_ < anr else -1 for s_ in sl)
def cperm(): return sorted(range(C_NW), key=lambda i: (a_last(i, OPT.anr), i))
def c_last(i):
    P = cperm()
    sl = range((i*D_U)//C_W, (i*D_U + D_U - 1)//C_W + 1)
    return max(max(x for x in range(16) if P[x % C_NW] == s_)//2 for s_ in sl)
def dperm(): return sorted(range(D_NW), key=lambda i: (c_last(i), i))

def c_w(j):
    return [[(f"s_add_u32 m0, s{S_W3}, {cperm()[j % C_NW]*C_W}\ns_mov_b32 s{S_T0+6}, {j*32*2752}"),
             V(f"buffer_load_dwordx4 v{V_DC+p}, {sr(S_V,4)}, s{S_T0+6} offen offset:{p*1024} lds", f"CW{j}")] for p in range(3)]
def d_w(i):
    return [[f"s_add_u32 m0, s32, {dperm()[i % D_NW]*D_U}\ns_mov_b32 s{S_T0+7}, {i*128*1024 + p*(8192-1024)}",
             V(f"buffer_load_dwordx4 v{V_DD}, {sr(S_D,4)}, s{S_T0+7} offen offset:{p*1024} lds", f"DW{i}")] for p in range(4)]

def setup_early(k):
    k(f"s_lshl_b32 s{S_TT}, s5, 1\ns_bfe_u32 s6, s2, 0x10005\ns_add_u32 s{S_TT}, s{S_TT}, s6")
    k(f"s_and_b32 s{S_MM}, s2, 3\ns_lshl_b32 s{S_MM}, s{S_MM}, 2\ns_bfe_u32 s6, s2, 0x20003\ns_add_u32 s{S_MM}, s{S_MM}, s6")
    k.srd(52, 54, 4*12288, WS_MODP) if False else None
    k("v_lshlrev_b32 v31, 4, v0")
    k(f"s_mul_i32 s{S_W3}, s{S_WAVE}, 3072\ns_mul_i32 s6, s{S_MM}, 192\ns_min_u32 s6, s6, {14*192}")
    k(f"s_cmp_lt_u32 s{S_WAVE}, 2\ns_cselect_b64 s[{S_V}:{S_V+1}], s[56:57], s[58:59]")
    k(f"s_add_u32 s{S_V}, s{S_V}, s6\ns_addc_u32 s{S_V+1}, s{S_V+1}, 0\ns_sub_u32 s{S_V+2}, {512*2752}, s6")
    k(f"s_cmp_eq_u32 s{S_MM}, 15\ns_cselect_b32 s{S_V+2}, 0, s{S_V+2}")
    k(f"s_and_b32 s6, s{S_MM}, 7\ns_lshl_b32 s6, s6, 7\ns_lshl_b32 s{S_T0+4}, s{S_WAVE}, 15\ns_add_u32 s6, s6, s{S_T0+4}")
    k(f"s_add_u32 s{S_D}, s60, s6\ns_addc_u32 s{S_D+1}, s61, 0\ns_sub_u32 s{S_D+2}, {1376*1024}, s6\ns_mov_b32 s{S_D+3}, 0x20000")
    k(f"v_lshrrev_b32 v5, 4, v{V_L16}\nv_and_b32 v6, 1, v1\nv_lshlrev_b32 v6, 4, v6")
    for p in range(3):
        k(f"v_add_u32 v56, {64*p}, v5")
        k("v_mul_u32_u24 v57, 0x5556, v56\nv_lshrrev_b32 v57, 18, v57")
        k("v_mul_u32_u24 v58, 12, v57\nv_sub_u32 v58, v56, v58")
        k("v_lshrrev_b32 v59, 1, v57\nv_and_b32 v59, 2, v59\nv_xor_b32 v58, v58, v59")
        k("v_add_u32 v57, v57, v6\nv_mul_u32_u24 v57, 2752, v57")
        k(f"v_lshl_add_u32 v{V_DC+p}, v58, 4, v57")
        if p: k(f"v_subrev_u32 v{V_DC+p}, {1024*p}, v{V_DC+p}")
    k("v_lshrrev_b32 v56, 3, v5\nv_and_b32 v57, 7, v5\nv_and_b32 v58, 6, v56\nv_xor_b32 v57, v57, v58")
    k(f"v_lshlrev_b32 v56, 10, v56\nv_lshl_add_u32 v{V_DD}, v57, 4, v56")
    k("v_and_b32 v56, 7, v0\nv_bfe_u32 v57, v0, 3, 2\nv_lshrrev_b32 v58, 5, v0")
    k("v_lshlrev_b32 v24, 10, v58\nv_lshl_add_u32 v24, v57, 8, v24\nv_lshl_add_u32 v24, v56, 4, v24")
    k("v_lshlrev_b32 v25, 10, v56\nv_lshl_add_u32 v25, v58, 6, v25\nv_lshl_add_u32 v25, v57, 3, v25")
    k(f"v_lshlrev_b32 v28, 7, v58\nv_lshl_add_u32 v28, v57, 4, v28\nv_add_u32 v28, {PAR2}, v28")
    k(f"v_lshlrev_b32 v29, 4, v56\nv_add_u32 v29, {SCR}, v29\nv_lshl_add_u32 v30, v1, 2, v29")
    k(f"s_lshl_b32 s6, s{S_TT}, 4\ns_add_u32 s6, s6, s{S_MM}\ns_lshl_b32 s6, s6, 13")
    k(f"s_add_u32 s{S_O}, s0, s6\ns_addc_u32 s{S_O+1}, s1, 0\ns_mov_b32 s{S_O+2}, 8192")
    k.srd(56, 54, 4*12288, WS_MODP)

def m_loads():
    return [[f"s_mov_b32 s{S_T0+2}, {4096*(1+(i>>2)) + (i&3)*12288}", V(f"buffer_load_dwordx4 {ar(4*i,4)}, v31, s[56:59], s{S_T0+2} offen sc1", "M")] for i in range(8)]
def m_finish(k):
    for i in range(32): k(f"v_accvgpr_read_b32 v{64+i}, a{i}")
    k(f"s_mov_b32 s6, 0\ns_cmp_lt_u32 s{S_WAVE}, 2\ns_cselect_b32 s{S_T0+4}, 1.0, 0\nv_add_u32 v31, {PAR2}, v31")
    mod_finish(k, 64, 6); mod_finish(k, 80, S_T0+4)
    k("ds_write_b128 v31, v[64:67]\nds_write_b128 v31, v[80:83] offset:4096\ns_waitcnt lgkmcnt(0)")

def x_loads():
    return [[V(f"buffer_load_dwordx2 {vr(XR+pc*4+h*2,2)}, v25, {sr(S_O,4)}, 0 offen offset:{pc*512+h*32}", "X")] for pc in range(2) for h in range(2)]

def handoff(k, ph, tag, mid=(), delay=True):
    lab = f"k1_h{ph}"
    k(f"s_lshl_b32 s63, s{S_TT}, 11\ns_add_u32 s63, s63, {ph*32768}")
    k(f"v_lshlrev_b32 v2, 3, v{V_L16}\ns_lshl_b32 s6, s{S_MM}, 2\nv_add_u32 v2, s6, v2\nv_mov_b32 v3, 0x{MAGIC:x}")
    k(f"v_bfe_u32 v4, v{V_L16}, 4, 4\nv_lshlrev_b32 v4, 2, v4\ns_lshl_b32 s6, s{S_MM}, 7\nv_add_u32 v4, s6, v4")
    k.wait(vm=tag, barrier=True)
    k(f"s_cmp_eq_u32 s{S_WAVE}, 1\ns_cbranch_scc0 {lab}_a\ns_mov_b64 exec, 0xffff")
    k(f"buffer_store_dword v3, v2, {sr(S_K,4)}, s63 offen sc1\ns_mov_b64 exec, -1")
    k(f"{lab}_a:")
    k.run(mid)
    k(f"s_cmp_eq_u32 s{S_WAVE}, 0\ns_cbranch_scc0 {lab}_c\ns_mov_b32 s7, 0")
    if delay: k(f"s_sleep {OPT.pdelay}")
    k(f"{lab}_b:")
    k(f"buffer_load_dword v3, v4, {sr(S_K,4)}, s63 offen sc1\ns_waitcnt vmcnt(0)\nv_cmp_ne_u32 vcc, 0x{MAGIC:x}, v3")
    k(f"s_cbranch_vccz {lab}_r\ns_add_u32 s7, s7, 1\ns_cmp_lt_u32 s7, 0x10000\ns_cbranch_scc1 {lab}_b")
    k(f"{lab}_r:")
    k(f"{lab}_c:")
    k(f"s_waitcnt vmcnt(0)\ns_barrier\n{lab}_e:")
    k.vm = []

def st(k, name):
    names = OPT.fts.split(',')
    if name in names:
        k.stamp(1 + names.index(name))
        if getattr(k, 'prof', False): k("s_waitcnt lgkmcnt(0)"); k.lg = []

def rest(k, ncw):
    k.srd(S_X, 54, 4*2048*1024, WS_PART)
    k.srd(S_M, 54, 2048*1024, WS_H2)
    k(f"s_lshl_b32 s6, s{S_TT}, 4\ns_add_u32 s6, s6, s{S_MM}\ns_lshr_b32 s7, s6, 1\ns_lshl_b32 s7, s7, 14\ns_and_b32 s6, s6, 1\ns_lshl_b32 s6, s6, 7\ns_add_u32 s44, s7, s6")
    st(k, "s1")
    n1 = min(OPT.fc1, C_NW - ncw)
    handoff(k, 1, "PST", [g for j in range(ncw, ncw + n1) for g in c_w(j)] + [m_finish], delay=False); ncw += n1
    k.lg = []
    st(k, "y1")
    PR, PA, AC, T, XF = 64, 96, 144, 160, 168
    for i in range(8):
        k(f"s_add_u32 s{S_T0+(i&3)}, s44, {(i>>1)*0x200000 + (i&1)*8192}")
        k.vmop(f"buffer_load_dwordx4 {vr(PR+i*4,4)}, v24, {sr(S_X,4)}, s{S_T0+(i&3)} offen sc1", f"S{i>>1}")
    k.srd(S_W, 54, 2048*1024, WS_X1)
    k(f"s_add_u32 s{S_T0+4}, s44, 8192")
    for wi in range(3):
        for pc in range(2):
            for h in range(2): k(f"ds_read_b128 {vr(PA+wi*16+pc*8+h*4,4)}, v28 offset:{wi*2048 + pc*1024 + h*64}")
    n2 = min(OPT.fc2, C_NW - ncw)
    for j in range(ncw, ncw + n2): k.run(c_w(j))
    ncw += n2
    for d in range(8): k(f"v_lshlrev_b32 v{XF+2*d}, 16, v{XR+d}\nv_and_b32 v{XF+2*d+1}, 0xffff0000, v{XR+d}")
    for sp in range(4):
        k.wait(vm=f"S{sp}")
        for d in range(8):
            w = PR + sp*8 + d; t_ = T + 2*(d & 3)
            if sp == 0: k(f"v_lshlrev_b32 v{AC+2*d}, 16, v{w}\nv_and_b32 v{AC+2*d+1}, 0xffff0000, v{w}")
            else:
                k(f"v_lshlrev_b32 v{t_}, 16, v{w}\nv_and_b32 v{t_+1}, 0xffff0000, v{w}")
                k(f"v_pk_add_f32 {vr(AC+2*d,2)}, {vr(AC+2*d,2)}, {vr(t_,2)}")
    k("s_waitcnt lgkmcnt(0)")
    st(k, "p")
    for d in range(8): k(f"v_pk_fma_f32 {vr(AC+2*d,2)}, {vr(AC+2*d,2)}, {vr(PA+2*d,2)}, {vr(XF+2*d,2)}")
    for d in range(8): k(f"v_cvt_pk_bf16_f32 v{XR+d}, v{AC+2*d}, v{AC+2*d+1}")
    for d in range(8): k(f"v_lshlrev_b32 v{AC+2*d}, 16, v{XR+d}\nv_and_b32 v{AC+2*d+1}, 0xffff0000, v{XR+d}")
    def wsum(r):
        k(f"s_nop 1\nv_add_f32 v{r}, v{r}, v{r} row_ror:8")
        for sw in ("v_permlane16_swap_b32", "v_permlane32_swap_b32"):
            k(f"v_mov_b32 v{r+1}, v{r}\ns_nop 1\n{sw} v{r+1}, v{r}\ns_nop 1\nv_add_f32 v{r}, v{r}, v{r+1}")
    SO = ("s44", f"s{S_T0+4}")
    for i in range(4): k(f"v_pk_add_f32 {vr(T+2*i,2)}, {vr(AC+2*i,2)}, {vr(AC+8+2*i,2)}")
    for i in range(2): k(f"v_pk_add_f32 {vr(T+2*i,2)}, {vr(T+2*i,2)}, {vr(T+4+2*i,2)}")
    k(f"v_pk_add_f32 {vr(T,2)}, {vr(T,2)}, {vr(T+2,2)}\nv_add_f32 v{T}, v{T}, v{T+1}")
    for pc in range(2): k.vmop(f"buffer_store_dwordx4 {vr(XR+pc*4,4)}, v24, {sr(S_W,4)}, {SO[pc]} offen sc1", "HST")
    wsum(T)
    k(f"v_mul_f32 v14, {hexf(-1/128)}, v{T}")
    for i in range(8): k(f"v_pk_add_f32 {vr(AC+2*i,2)}, {vr(AC+2*i,2)}, v[14:15] op_sel_hi:[1,0]")
    for i in range(2): k(f"v_pk_mul_f32 {vr(T+2*i,2)}, {vr(AC+2*i,2)}, {vr(AC+2*i,2)}")
    for i in range(2, 8): k(f"v_pk_fma_f32 {vr(T+2*(i&1),2)}, {vr(AC+2*i,2)}, {vr(AC+2*i,2)}, {vr(T+2*(i&1),2)}")
    k(f"v_pk_add_f32 {vr(T,2)}, {vr(T,2)}, {vr(T+2,2)}\nv_add_f32 v{T}, v{T}, v{T+1}")
    wsum(T)
    k(f"ds_write_b32 v30, v14\nds_write_b32 v30, v{T} offset:128")
    for i in range(8): k(f"v_pk_mul_f32 {vr(AC+2*i,2)}, {vr(AC+2*i,2)}, {vr(PA+32+2*i,2)}")
    k("s_waitcnt lgkmcnt(0)\ns_barrier")
    k(f"ds_read_b128 {vr(T,4)}, v29\nds_read_b128 {vr(T+4,4)}, v29 offset:128\ns_waitcnt lgkmcnt(1)")
    k(f"v_pk_add_f32 v[12:13], {vr(T,2)}, {vr(T+2,2)}\nv_add_f32 v12, v12, v13\nv_mul_f32 v12, {hexf(-0.25)}, v12")
    for h in range(2): k(f"v_pk_add_f32 {vr(T+2*h,2)}, {vr(T+2*h,2)}, v[12:13] op_sel_hi:[1,0]")
    k(f"v_add_f32 v14, v14, v12\nv_pk_mul_f32 {vr(T,2)}, {vr(T,2)}, {vr(T,2)}\nv_pk_fma_f32 {vr(T,2)}, {vr(T+2,2)}, {vr(T+2,2)}, {vr(T,2)}\ns_waitcnt lgkmcnt(0)")
    k(f"v_pk_add_f32 {vr(T+4,2)}, {vr(T+4,2)}, {vr(T+6,2)}\nv_add_f32 v{T}, v{T}, v{T+1}\nv_add_f32 v{T+4}, v{T+4}, v{T+5}")
    k(f"v_mov_b32 v12, {hexf(1e-5)}\nv_fmac_f32 v12, {hexf(0.25)}, v{T}\nv_fmac_f32 v12, {hexf(1/512)}, v{T+4}\nv_rsq_f32 v12, v12\ns_nop 0")
    k("v_mul_f32 v14, v14, v12\nv_sub_f32 v14, 0, v14")
    for pc in range(2):
        for i in range(4*pc, 4*pc+4): k(f"v_pk_fma_f32 {vr(PA+16+2*i,2)}, {vr(PA+32+2*i,2)}, v[14:15], {vr(PA+16+2*i,2)} op_sel_hi:[1,0,1]")
        for i in range(4*pc, 4*pc+4): k(f"v_pk_fma_f32 {vr(AC+2*i,2)}, {vr(AC+2*i,2)}, v[12:13], {vr(PA+16+2*i,2)} op_sel_hi:[1,0,1]")
        for d in range(4*pc, 4*pc+4): k(f"v_cvt_pk_bf16_f32 v{PR+d}, v{AC+2*d}, v{AC+2*d+1}")
        k.vmop(f"buffer_store_dwordx4 {vr(PR+4*pc,4)}, v24, {sr(S_M,4)}, {SO[pc]} offen sc1", "HST")
    CA = lambda m, t, tb: 64 + ((t*2+m)*2+tb)*4
    CW = lambda j, m, t, n=4, o=0: (ar if (j >> 1) & 1 else vr)((128 if (j >> 1) & 1 else 160) + (((j & 1)*6+t)*2+m)*4 + o, n)
    CB = lambda j, tb: (j*2+tb)*4
    V_CW = 8
    k(f"v_lshrrev_b32 v56, 8, v{V_L16}\nv_bfe_u32 v57, v{V_L16}, 6, 2\nv_bfe_u32 v58, v{V_L16}, 4, 2")
    k("v_lshl_add_u32 v59, v56, 2, v57\nv_mul_u32_u24 v60, 192, v59\nv_lshl_add_u32 v60, v58, 3, v60\nv_and_b32 v61, 1, v56")
    for par in range(2):
        k(f"v_xor_b32 v62, {par}, v61\nv_lshl_add_u32 v{V_CW+par}, v62, 5, v60\nv_add_u32 v{V_CW+2+par}, {5*C_W}, v{V_CW+par}\nv_add_u32 v{V_CW+4+par}, {10*C_W}, v{V_CW+par}")
    k(f"s_lshl_b32 s6, s{S_TT}, 2\ns_add_u32 s6, s6, s{S_WAVE}\ns_lshl_b32 s44, s6, 15")
    k(f"s_mul_i32 s6, s6, {2*43*1024}\ns_mul_i32 s7, s{S_MM}, 3072\ns_add_u32 s6, s6, s7\ns_add_u32 s6, s6, 0x{WS_HF:x}")
    k(f"s_add_u32 s{S_X}, s54, s6\ns_addc_u32 s{S_X+1}, s55, 0\ns_mov_b32 s{S_X+2}, {43*1024+3072}")
    k(f"s_mov_b32 s{S_O}, s{S_X}\ns_mov_b32 s{S_O+1}, s{S_X+1}\ns_cmp_eq_u32 s{S_MM}, 14\ns_cselect_b32 s{S_O+2}, 0, s{S_X+2}")
    def c_reads(p):
        r = []
        for t in range(6):
            for m in range(2):
                for j in (2*p, 2*p+1):
                    sl = cperm()[j % C_NW]; bank = sl // 5; off = (sl % 5)*C_W
                    r += [L(f"ds_read_b64_tr_b16 {CW(j,m,t,2,2*h)}, v{V_CW+2*bank+(t&1)} offset:{off + m*6144 + h*3072 + (t>>1)*64}", f"R{p}_{t}") for h in range(2)]
        return r
    st(k, "s2")
    n3 = min(OPT.fc3, C_NW - ncw)
    k.lg = []
    assert ncw - n2 >= 2
    handoff(k, 2, "HST", [g for j in range(ncw, ncw + n3) for g in c_w(j)] + c_reads(0), delay=OPT.fdl2); ncw += n3
    st(k, "y2")
    assert ncw >= 4
    k(f"s_cmp_eq_u32 s{S_MM}, 15\ns_cbranch_scc1 k1_c15")
    def c_b(j):
        return [[f"s_add_u32 s{S_T0+tb}, s44, {tb*16384 + (j>>2)*4096}",
                 V(f"buffer_load_dwordx4 {ar(CB(j,tb),4)}, v{V_L16}, {sr(S_M,4)}, s{S_T0+tb} offen offset:{(j&3)*1024} sc1", f"CB{j}")] for tb in range(2)]
    nb = OPT.fb0
    for j in range(nb): k.run(c_b(j))
    nd = 0
    for p in range(8):
        if p == 7:
            st(k, "c7")
            k.wait(vm="CB15", lg="R7_1")
            mq = []; vq = []; n_ = 0
            for u in range(3):
                for tb in range(2):
                    o = 32 + (n_ & 3)*4
                    for h in range(2):
                        t = 2*u + h
                        for m in range(2):
                            d = vr(CA(m, t, tb), 4)
                            for i, j in enumerate((14, 15) if m == 0 else (15, 14)):
                                mq.append(It(f"{MF} {d}, {CW(j,m,t)}, {ar(CB(j,tb),4)}, {d}", gives=f"D{t}{tb}" if (m and i) else None, needs={"RR": 0} if len(mq) == 16 else None))
                        a = CA(0, t, tb); b = CA(1, t, tb)
                        vq += [It(f"v_mul_f32 v{a+i}, v{a+i}, v{b+i}", needs={f"D{t}{tb}": 8}) for i in range(4)]
                        vq += [It(f"v_cvt_pk_bf16_f32 v{o+2*h+e}, v{a+2*e}, v{a+2*e+1}") for e in range(2)]
                    vq.append(It(V(f"buffer_store_dwordx4 {vr(o,4)}, v{V_L16}, {sr(S_O if u else S_X,4)}, s{S_T0+tb} offen offset:{u*1024} sc1", "GST"), cost=2))
                    n_ += 1
            merge(k, mq, vq, [It(f"s_mov_b32 s{S_T0}, 0\ns_mov_b32 s{S_T0+1}, {43*1024}", cost=0), It(W(lg='all'), cost=0, gives="RR", needs={"D10": 0})])
            break
        mf = []; n_ = 0
        for t in range(6):
            for m in range(2):
                for tb_ in range(2):
                    tb = tb_ if m == 0 else 1 - tb_
                    d = vr(CA(m, t, tb), 4)
                    for i, j in enumerate((2*p, 2*p+1) if n_ % 2 == 0 else (2*p+1, 2*p)):
                        mf.append(f"{MF} {d}, {CW(j,m,t)}, {ar(CB(j,tb),4)}, {d if (p or i) else '0'}")
                    n_ += 1
        vm = []
        while len(vm) < OPT.fvm - 1:
            wok = ncw < 16 and (ncw < C_NW or p >= (ncw - C_NW)//2 + 1)
            if wok and (nb >= 16 or ncw//2 - 2 <= nb//2): vm += c_w(ncw); ncw += 1
            elif nb < 16: vm += c_b(nb); nb += 1
            elif ncw == 16 and nd < OPT.fde and c_last(dperm()[nd]) <= p - 1: vm += d_w(nd); nd += 1
            else: break
        assert ncw > 2*p + 3 + 2 or ncw == 16, (p, ncw)
        if OPT.cx == 1: vm = [x for x in vm if "m0" not in x[0]]
        if OPT.cx == 3: vm = []
        gaps = spread(48, c_reads(p+1) if OPT.cx != 2 else [], vm)
        if p == 1: st(k, "c1")
        if p == 4: st(k, "c4")
        add(gaps, -1, W(vm=f"CB{2*p+1}", lg=f"R{p}_1"))
        front(gaps, 12, W(lg=f"R{p}_3")); front(gaps, 26, W(lg=f"R{p}_5"))
        if p >= 1: front(gaps, 0, W(vm=f"CW{2*p+3}", barrier=True))
        emit(k, mf, gaps)
    assert nb == 16 and ncw == 16
    k("s_branch k1_c_done")
    k("k1_c15:")
    save = list(k.vm)
    for i in range(nd): k.run(d_w(i))
    k.vm = save
    k("k1_c_done:")
    V_DA = 8
    k("v_lshlrev_b32 v60, 7, v59\nv_lshl_add_u32 v60, v58, 3, v60\nv_bfe_u32 v61, v59, 1, 2\nv_lshrrev_b32 v62, 1, v1\nv_lshl_add_u32 v60, v62, 13, v60")
    for t in range(4):
        k(f"v_xor_b32 v62, {t}, v61\nv_lshl_add_u32 v{V_DA+t}, v62, 5, v60\nv_add_u32 v{V_DA+4+t}, 0x10000, v{V_DA+t}\nv_add_u32 v{V_DA+8+t}, 0x20000, v{V_DA+t}")
    k(f"s_lshl_b32 s6, s{S_TT}, 1\ns_lshr_b32 s7, s{S_MM}, 3\ns_add_u32 s6, s6, s7\ns_lshl_b32 s6, s6, 1\ns_and_b32 s7, s{S_WAVE}, 1\ns_add_u32 s6, s6, s7\ns_lshl_b32 s44, s6, 1")
    k(f"s_lshr_b32 s46, s{S_WAVE}, 1\ns_mul_i32 s6, s44, {43*1024}\ns_lshl_b32 s7, s46, 11\ns_add_u32 s6, s6, s7\ns_add_u32 s6, s6, 0x{WS_HF:x}")
    k(f"s_add_u32 s{S_M}, s54, s6\ns_addc_u32 s{S_M+1}, s55, 0\ns_sub_u32 s{S_M+2}, {2*43*1024}, s7")
    k(f"s_add_u32 s44, s44, s46\ns_mul_i32 s46, s46, {43*1024}\ns_sub_u32 s47, {43*1024}, s46")
    k(f"s_lshl_b32 s44, s44, 14\ns_and_b32 s7, s{S_MM}, 7\ns_lshl_b32 s6, s7, 7\ns_add_u32 s6, s6, s44")
    k(f"s_add_u32 s{S_V}, s98, s6\ns_addc_u32 s{S_V+1}, s99, 0\ns_sub_u32 s{S_V+2}, {2048*1024}, s6")
    k(f"s_lshl_b32 s6, s7, 11\ns_add_u32 s44, s44, s6\ns_lshl_b32 s7, s7, 8\ns_add_u32 s7, s7, {PAR2+6144}")
    k(f"v_bfe_u32 v57, v{V_L16}, 4, 4\nv_lshlrev_b32 v24, 10, v57\nv_lshl_add_u32 v24, v56, 4, v24")
    k("v_lshlrev_b32 v25, 4, v56\nv_add_u32 v25, s7, v25")
    XS = dperm()[2]*D_U
    k(f"v_lshl_add_u32 v28, v1, 12, v{V_L16}\nv_add_u32 v28, {XS}, v28\nv_xor_b32 v29, 0x2000, v28")
    DA = lambda t, tb: 64 + (tb*4+t)*4
    DW = lambda i, e, t: 128 + (((i & 1)*2+e)*4+t)*4
    DB = lambda i, e, tb: ((i*2+e)*2+tb)*4
    def d_b(i):
        return [[f"s_add_u32 s{S_T0+tb}, s{46+tb}, {i*4096}", V(f"buffer_load_dwordx4 {ar(DB(i,e,tb),4)}, v{V_L16}, {sr(S_M,4)}, s{S_T0+tb} offen offset:{e*1024} sc1", f"DB{i}")] for tb in range(2) for e in range(2)]
    def d_reads(i):
        base = dperm()[i % D_NW]*D_U; bank = base >> 16; off = base & 0xffff
        return [L(f"ds_read_b64_tr_b16 {vr(DW(i,e,t)+2*h,2)}, v{V_DA+4*bank+t} offset:{off + e*4096 + h*2048}", f"R{i}_{t}") for t in range(4) for e in range(2) for h in range(2)]
    st(k, "s3")
    k.lg = []
    assert nd >= 1
    xl = [[V(f"buffer_load_dwordx4 {vr(XR+4*s_,4)}, v{V_L16}, {sr(S_W,4)}, s44 offen offset:{1024*s_} sc1", "X1")] for s_ in range(2)]
    n4 = min(OPT.fd1, D_NW - nd)
    gbr = [L(f"ds_read_b128 {vr(32+4*t,4)}, v25 offset:{64*t}", "GB") for t in range(4)]
    handoff(k, 3, "GST", xl + [g for i in range(nd, nd + n4) for g in d_w(i)] + gbr + d_reads(0), delay=OPT.fdl3); nd += n4
    npub = nd
    st(k, "y3")
    assert nd >= 2
    nb = OPT.fdb0
    for i in range(nb): k.run(d_b(i))
    for d in range(8): k(f"v_lshlrev_b32 v{96+2*d}, 16, v{XR+d}\nv_and_b32 v{97+2*d}, 0xffff0000, v{XR+d}")
    lastbar = -1
    for i in range(11):
        mf = []; n_ = 0
        if i < 10:
            for t in range(4):
                for tb_ in range(2):
                    tb = tb_ if t % 2 == 0 else 1 - tb_
                    d = vr(DA(t, tb), 4)
                    for c, e in enumerate((0, 1) if n_ % 2 == 0 else (1, 0)):
                        mf.append(f"{MF} {d}, {vr(DW(i,e,t),4)}, {ar(DB(i,e,tb),4)}, {d if (i or c) else '0'}")
                    n_ += 1
        else:
            k.wait(vm="DB10", lg='all')
            k(f"s_cmp_ge_u32 s{S_WAVE}, 2\ns_cbranch_scc1 k1_d_skip")
            for e in (1, 0):
                if e == 0: k("k1_d_skip:")
                for tb in (1, 0):
                    for t in range(4):
                        d = vr(DA(t, tb), 4)
                        k(f"{MF} {d}, {vr(DW(i,e,t),4)}, {ar(DB(i,e,tb),4)}, {d}")
            break
        bar = i + 1 >= npub or i in (OPT.fdr, OPT.fdr + 1)
        if bar: lastbar = i
        vm = []
        if nb < 11: vm += d_b(nb); nb += 1
        if nd < 11 and (nd < D_NW or lastbar >= nd - D_NW + 1) and nd <= nb + OPT.fdl: vm = vm[:2] + d_w(nd) + vm[2:]; nd += 1
        assert nd > i + 2 or nd == 11, (i, nd)
        k.wait(vm=f"DB{i}", lg=f"R{i}_1")
        gaps = {}
        if bar: add(gaps, 0, W(vm=f"DW{i+1}", barrier=True))
        add(gaps, 6, W(lg=f"R{i}_3"))
        rd = d_reads(i+1)
        for g in range(16):
            if vm and g % 2 == 1: add(gaps, g, *vm.pop(0))
            elif rd: add(gaps, g, rd.pop(0), rd.pop(0))
        assert not vm and not rd
        emit(k, mf, gaps)
    assert nb == 11 and nd == 11 and lastbar >= 3
    st(k, "d1")
    k("s_nop 3")
    for t in range(4): k(f"ds_write_b128 v28, {vr(DA(t,1),4)} offset:{t*1024}")
    for e in range(0, 16, 2): k(f"v_pk_fma_f32 {vr(96+e,2)}, {vr(64+e,2)}, {vr(32+e,2)}, {vr(96+e,2)}")
    k("s_waitcnt lgkmcnt(0)\ns_barrier")
    for t in range(4): k(f"ds_read_b128 {vr(64+4*t,4)}, v29 offset:{t*1024}")
    for s_ in range(2):
        k(f"s_waitcnt lgkmcnt({2-2*s_})")
        for e in range(8*s_, 8*s_+8, 2): k(f"v_pk_fma_f32 {vr(64+e,2)}, {vr(64+e,2)}, {vr(32+e,2)}, {vr(96+e,2)}")
        o = 112 + 4*s_
        for d in range(4): k(f"v_cvt_pk_bf16_f32 v{o+d}, v{64+8*s_+2*d}, v{65+8*s_+2*d}")
        k(f"s_nop 1\nv_permlane32_swap_b32 v{o}, v{o+2}\nv_permlane32_swap_b32 v{o+1}, v{o+3}\ns_nop 1\nv_permlane16_swap_b32 v{o}, v{o+2}\nv_permlane16_swap_b32 v{o+1}, v{o+3}")
        k(f"buffer_store_dwordx4 {vr(o,4)}, v24, {sr(S_V,4)}, 0 offen offset:{64*s_} {OPT.st5}")
```

```python
from common import *
from sched import fill, L, V, W, front, emit, It, merge
from k0 import mod_loads, mod_finish, C1
import k1t, k1p

MF = "v_mfma_f32_16x16x32_bf16"

SLOT = 16384
KB = 0
VB = 65536
PARB = 9*SLOT
FLAGB = PARB + 4096
WSLOT = [1, 4, 2, 5, 3, 6, 7, 8]

def O(db, qb): return (db*4+qb)*4
def LA(qb): return 128 + qb*4
def KF(i): return 144 + i*4
def VF(i): return 176 + i*4
ONES = 240
def Q(qb, s): return 128 + (qb*4+s)*4
def S(buf, kb, qb): return 64 + buf*32 + (kb*4+qb)*4
def P(buf, qb): return (32 + buf*16 if buf < 2 else 208 + (buf-2)*16) + qb*4
def MN(qb): return 192 + qb*4
V_KA = 8
V_VA = 12
V_DK = 20
V_DV = 24
V_L16 = 26
V_LS = 28
V_PF = 2
V_T = 208
def XR(slot, qb): return 128 + ((slot%4)*4+qb)*4
def QA(t, qb): return vr(192 + (qb*8+t)*4, 4) if qb < 2 else ar(((qb-2)*8+t)*4, 4)
def HK(b): return (lambda i: 64 + b*32 + i*4)
def HF(buf, qb): return 32 + (buf*4+qb)*4
def PAR(buf): return 64 + buf*16
V_PT = 96
V_WA = 112
V_DW = 124
V_PA = 125
def WF(buf, t): return 128 + (buf*8+t)*4
S_K, S_V, S_W, S_X, S_M, S_O = 8, 12, 16, 20, 24, 28
S_W4 = 32
S_KOFF, S_VOFF = 33, 34
S_CNT = 35
S_T0 = 36
S_RERUN = 44
S_WAVE = 45
S_W1 = 62

def emit_phase(k, mf, gaps):
    for f in gaps.get(-1, []): f(k) if callable(f) else k(f)
    for i, m in enumerate(mf):
        k(m)
        for f in gaps.get(i, []): f(k) if callable(f) else k(f)
    for g in gaps:
        assert g < len(mf), (g, len(mf))

def add(gaps, g, *items):
    gaps.setdefault(g, []).extend(items)

def qk_mfmas(buf, kf=KF, czero=False):
    r = []
    order = {0: [(kb,s,qb) for kb in range(2) for s in range(4) for qb in range(4)],
             1: [(kb,s,qb) for kb in range(2) for qb in range(4) for s in range(4)],
             2: [(kb,s,qb) for qb in range(4) for s in range(4) for kb in range(2)],
             4: [(kb,s if qb%2==0 else 3-s,qb) for kb in range(2) for qb in range(4) for s in range(4)],
             5: [(kb,s if kb%2==0 else 3-s,qb) for qb in range(4) for kb in range(2) for s in range(4)],
             3: [(kb,s,qb if s%2==0 else 3-qb) for kb in range(2) for s in range(4) for qb in range(4)]}[OPT.qko]
    seen = set()
    for kb, s, qb in order:
            if True:
                d = vr(S(buf, kb, qb), 4)
                started = (kb, qb) in seen; seen.add((kb, qb))
                c = d if started else ("0" if czero else vr(MN(qb), 4))
                r.append(f"{MF} {d}, {ar(kf(kb*4+s),4)}, {vr(Q(qb,s),4)}, {c}")
    return r

def pv_mfmas(buf, sumq, vf=VF, czero=False):
    r = []
    for qb in sumq:
        d = ar(LA(qb), 4)
        r.append(f"{MF} {d}, {ar(ONES,4)}, {vr(P(buf,qb),4)}, {'0' if czero else d}")
    order = {0: [(db,qb) for db in range(8) for qb in range(4)],
             1: [(db,qb) for qb in range(4) for db in range(8)],
             3: [(db if qb%2==0 else 7-db,qb) for qb in range(4) for db in range(8)],
             2: [(db,qb if db%2==0 else 3-qb) for db in range(8) for qb in range(4)]}[OPT.pvo]
    for db, qb in order:
        if True:
            d = ar(O(db, qb), 4)
            r.append(f"{MF} {d}, {ar(vf(db),4)}, {vr(P(buf,qb),4)}, {'0' if czero else d}")
    return r

def exps(buf, qbs):
    r = []
    for qb in qbs:
        for kb in range(2):
            for i in range(4):
                x = S(buf, kb, qb) + i
                r.append(f"v_exp_f32{OPT.e64} v{x}, v{x}")
    return r
def cvts(buf, qbs, pb=None):
    pb = buf if pb is None else pb
    r = []
    for qb in qbs:
        for kb in range(2):
            for h in range(2):
                x = S(buf, kb, qb) + 2*h
                r.append(f"v_cvt_pk_bf16_f32 v{P(pb,qb)+kb*2+h}, v{x}, v{x+1}")
    return r
def adds(buf, qbs, addq):
    r = []
    for qb in qbs:
        for kb in range(2):
            for i in range(4):
                x = S(buf, kb, qb) + i
                r.append(f"v_add_f32{OPT.a64} v{V_LS+qb}, v{x}, v{V_LS+qb}" if qb in addq else None)
    return r
def kreads(slot, blk, kf=KF):
    r = []
    for kb in range(2):
        for s in range(4):
            r.append(f"ds_read_b128 {ar(kf(kb*4+s),4)}, v{V_KA+s} offset:{KB+slot*SLOT+blk*8192+kb*4096}")
    return r
def vreads(slot, blk, vf=VF):
    r = []
    for db in range(8):
        for h in range(2):
            r.append(f"ds_read_b64_tr_b16 {ar(vf(db)+2*h,2)}, v{V_VA+db} offset:{slot*SLOT+blk*8192+h*4096}")
    return r
def dma_k(p): return f"buffer_load_dwordx4 v{V_DK+p}, {sr(S_K,4)}, s{S_KOFF} offen offset:{p*1024} {OPT.kvnt} lds"
def dma_v(p): return f"buffer_load_dwordx4 v{V_DV+(p&1)}, {sr(S_V,4)}, s{S_VOFF} offen offset:{p*1024} {OPT.kvnt} lds"

class Cfg:
    la = 4
    wb4 = 0
    nvm = 8
    npk = 5
    ne1 = 33
    nv1 = 11
    v19 = 1
    wb = 0
    pfo = 2
    pfc = (5, 2, 9)
    ppf = 0
    wocnt = 1
    bar2 = 0
    kvspread = 1
    w1pf = 0
    fine = 0
    kvper = 7
    x = 0
    pf = 2
    sumq = [1, 3]
    def addq(self): return [q for q in range(4) if q not in self.sumq]

def pv2_mfmas(pb, sumq, czero=False, order=None):
    r = []
    n = 0
    def pair(d, a0, a1, qb):
        nonlocal n
        js = (0, 1) if n % 2 == 0 else (1, 0); n += 1
        for i, j in enumerate(js):
            r.append(f"{MF} {d}, {ar(a1 if j else a0,4)}, {vr(P(pb+j,qb),4)}, {'0' if (czero and i == 0) else d}")
    for qb in sumq: pair(ar(LA(qb), 4), ONES, ONES, qb)
    for db in range(8):
        for q in range(4):
            qb = q if db % 2 == 0 else 3 - q
            pair(ar(O(db, qb), 4), VF(db), VF(8+db), qb)
    return r

def sm_stream(cfg, u):
    qs = range(4)
    E = exps(u & 1, qs); C = cvts(u & 1, qs, u & 3); A = adds(u & 1, qs, cfg.addq())
    r = []
    for i, e in enumerate(E):
        f = [A[i]] if A[i] else []
        if i % 2 == 1: f.append(C[i//2])
        r.append((e, f))
    return r

def vreads2(slot):
    r = []
    for db in range(8):
        for blk in range(2):
            for h in range(2):
                r.append((db, L(f"ds_read_b64_tr_b16 {ar(VF(8*blk+db)+2*h,2)}, v{V_VA+db} offset:{slot*SLOT+blk*8192+h*4096}", "V")))
    return r

def pack(k, mf, fixed, stream, lds, vm, deadlines=(), keep=False):
    n = len(mf)
    stream = list(stream); lds = list(lds); vm = list(vm)
    ready = []
    k.run(fixed.get(-1, []))
    ne = len(stream); ie = 0
    lastvm = -9; vm0 = list(vm)
    for g in range(n):
        k(mf[g]); k.run(fixed.get(g, []))
        left = 2
        if OPT.barfree and any(isinstance(x, str) and "s_barrier" in x for x in fixed.get(g, [])): left = 2 - OPT.barfree
        want_e = ie < ne and g < n-1 and (g % 2 == 0 or (ne - ie) > (n - g)//2)
        if g % 2 == 1 or not want_e:
            if vm and vm[0][0] <= g and g - lastvm >= (OPT.vsp if len(vm0) <= 8 else 4) and not (lds and lds[0][0] <= g and lds[0][2:] == ('urgent',)):
                k.run(vm.pop(0)[1]); left -= 2; lastvm = g
            else:
                c = [x for x in lds if x[0] <= g]
                c.sort(key=lambda x: 0 if len(x) > 2 else 1)
                if c:
                    lds.remove(c[0]); k.run([c[0][1]]); left -= 1
                    rem = len([y for y in range(g+1, n) if y % 2 == 1]) - 3
                    if len(c) > 1 and len(lds) + len(vm) > rem:
                        lds.remove(c[1]); k.run([c[1][1]]); left -= 1
        if want_e:
            e, f = stream[ie]; k(e); left -= 2
            ready += [(g, ie, x) for x in f]; ie += 1
        must = [x for x in ready if any(x[1] < idx and g + 1 >= dl for idx, dl in deadlines)]
        while ready and ready[0][0] < g and (left > 0 or ready[0] in must or len(ready) > OPT.bk or g == n-1):
            k(ready.pop(0)[2]); left -= 1
    assert ie == ne and not vm and not ready and (keep or not lds), (ie, ne, len(lds), len(vm), ready)
    return lds

R1 = 16

def iteration(k, cfg, t4, part="all", czero=False, pf=(), post=(), label=None, extra=()):
    ks = t4; vs = (t4 - 1) % 4; u = 2*t4
    k.c(f"---- iteration T%4={t4} {part} ----")
    ns = 2*len(cfg.sumq)
    pv = pv2_mfmas((u - 4) & 3, cfg.sumq, czero); npv = len(pv)
    st = sm_stream(cfg, u - 2)[32-R1:] + sm_stream(cfg, u - 1) + sm_stream(cfg, u)[:32-R1]
    dmas = [[f"s_add_u32 m0, s{S_W4}, {KB + ((t4+3)%4)*SLOT}\ns_nop 0" if p == 0 else "", dma_k(p)] for p in range(4)]
    dmas += [[f"s_add_u32 m0, s{S_W4}, {VB + ((t4+2)%4)*SLOT}\ns_add_u32 s{S_KOFF}, s{S_KOFF}, {SLOT}" if p == 0 else "", dma_v(p)] for p in range(4)]
    dmas[-1].append(f"s_add_u32 s{S_VOFF}, s{S_VOFF}, {SLOT}")
    ka = [L(x, "KA") for x in kreads(ks, 0)]; kb = kreads(ks, 1)
    vr_ = vreads2(vs)
    NE1 = cfg.ne1
    NV1 = cfg.nv1
    nvm = 16 if not (cfg.pf and cfg.pfo and cfg.v19) else (18 if part == "pv" else 19)
    bar = {ns-1: [f"s_waitcnt vmcnt({nvm}) lgkmcnt(0)\ns_barrier"]}
    if part == "tail":
        k.lg = []
        if OPT.fa and (OPT.na0 or OPT.na1): bar = {ns-1: ["s_waitcnt vmcnt(0) lgkmcnt(0)\ns_barrier"]}
        return pack(k, pv, bar, st[:R1+32], [(ns + 8*db + 7, x) for db, x in vr_], [(ns, x) for x in extra], keep=True)
    if part in ("all", "pv"):
        k.lg = []
        lds = [(ns, x) for x in ka] + [(ns + 8*db + 7, x) for db, x in vr_[:NV1]]
        pack(k, pv, bar, st[:NE1], lds, [(ns + OPT.v0, d) for d in dmas])
    if label: k(f"{label}:")
    if part in ("all", "first"):
        vm = [(40, [pf[1]])] if pf else []
        fixed = {-1: [W(lg="KA")], 30: [W(lg="KB0")], 46: [W(lg="KB1")]}
        if pf: fixed[38] = [pf[0]]
        if part == "first":
            NE1 = R1; NV1 = 0; k.lg = []
            fixed[-1] = ["s_waitcnt lgkmcnt(0)"]
            vm = [(2, [kv_setup(wh, t), dma_k(p) if wh == 'K' else dma_v(p)]) for wh, t in (('V',2),('K',4),('V',3)) for p in range(4)]
            if cfg.v19:
                dummy = f"s_mov_b32 s6, 0x80000\nbuffer_load_dword v{V_PF+3}, v{V_PF}, {sr(S_O,4)}, s6 offen"
                vm[3][1].append(dummy); vm[11][1].append(dummy)
            post = [f"s_mov_b32 s{S_KOFF}, {5*SLOT}\ns_mov_b32 s{S_VOFF}, {4*SLOT}"]
        lds = [(0, x) for db, x in vr_[NV1:]] + [(15, L(x, "KB0"), 'urgent') for x in kb[:4]] + [(31, L(x, "KB1"), 'urgent') for x in kb[4:]]
        pack(k, qk_mfmas(0) + qk_mfmas(1), fixed, st[NE1:], lds, vm, deadlines=[(R1 + 32 - NE1, 40)])
    for f in post: k(f)

def kv_setup(which, tile):
    if which == 'K': return f"s_add_u32 m0, s{S_W4}, {KB + (tile%4)*SLOT}\ns_mov_b32 s{S_KOFF}, {tile*SLOT}"
    return f"s_add_u32 m0, s{S_W4}, {VB + (tile%4)*SLOT}\ns_mov_b32 s{S_VOFF}, {tile*SLOT}"
def kv_group(which, tile):
    return [[kv_setup(which, tile), V(dma_k(p) if which == 'K' else dma_v(p), f"{which}{tile}")] for p in range(4)]

def rowmax_cross(k, regs, tmp):
    for sw in ("v_permlane32_swap_b32", "v_permlane16_swap_b32"):
        for i, r in enumerate(regs): k(f"v_mov_b32 v{tmp+i}, v{r}")
        k("s_nop 1")
        for i, r in enumerate(regs): k(f"{sw} v{tmp+i}, v{r}")
        k("s_nop 1")
        for i, r in enumerate(regs): k(f"v_max_f32 v{r}, v{r}, v{tmp+i}")

def gen_k1(cfg=None, prof=False):
    cfg = cfg or Cfg()
    k = Kern(NAME + "_kernel" if OPT.mk0 else "k1_attn_kernel", 256, 256, 160*1024, 512, 256, 102 if OPT.ff else (96 if prof else 64))
    k.prof = prof
    end = "k1_end"
    k(f"s_cmp_ge_u32 s2, 256\ns_cbranch_scc1 {end}")
    k.stamp(0)
    k.dbg_begin(1)
    k(f"s_load_dwordx4 s[48:51], s[0:1], {KA_K}")
    k(f"s_load_dwordx2 s[52:53], s[0:1], {KA_WQ}")
    k(f"s_load_dwordx2 s[54:55], s[0:1], {KA_WS}")
    k(f"s_load_dwordx2 s[46:47], s[0:1], {KA_WO}")
    k(f"s_load_dwordx4 s[56:59], s[0:1], {KA_WG}")
    k(f"s_load_dwordx2 s[60:61], s[0:1], {KA_WD}")
    if OPT.ff: k(f"s_load_dwordx2 s[98:99], s[0:1], {KA_OUT}")
    if OPT.mk0: k(f"s_load_dwordx4 s[{'64:67' if not prof else '92:95'}], s[0:1], {KA_C}")
    if OPT.mk0 and OPT.dflag: k(f"s_load_dwordx2 s[100:101], s[0:1], {KA_DBG}")
    k(f"s_load_dwordx2 s[0:1], s[0:1], {KA_X}")

    k("v_lshrrev_b32 v1, 6, v0")
    k("v_and_b32 v2, 63, v0")
    k(f"v_readfirstlane_b32 s{S_WAVE}, v1")
    m = OPT.map4
    k(f"s_and_b32 s4, s2, {(8>>m)-1}\ns_bfe_u32 s5, s2, {((2+m)<<16)|3}\ns_lshl_b32 s5, s5, {3-m}\ns_add_u32 s4, s4, s5")
    k(f"s_bfe_u32 s5, s2, {(m<<16)|(3-m)}\ns_lshl_b32 s5, s5, {3-m}\ns_lshr_b32 s6, s2, {5+m}\ns_add_u32 s5, s5, s6")
    k(f"s_lshl_b32 s{S_W4}, s{S_WAVE}, 12")
    k(f"s_mov_b32 s{S_RERUN}, 0")
    k("v_lshrrev_b32 v3, 4, v2")
    k("v_and_b32 v4, 15, v2")
    k("v_lshrrev_b32 v5, 2, v4")
    k("v_and_b32 v6, 3, v2")
    k(f"v_lshlrev_b32 v{V_L16}, 4, v2")
    k("v_lshlrev_b32 v7, 2, v3\nv_xor_b32 v7, v7, v4\nv_lshlrev_b32 v7, 4, v7")
    k(f"v_lshl_add_u32 v{V_DW}, v1, 2, v3\nv_lshl_add_u32 v{V_DW}, v{V_DW}, 13, v7")
    k(f"s_lshl_b32 s{S_W1}, s{S_WAVE}, 10")
    if OPT.mk0: k1p.pre_wait(k)
    k("s_waitcnt lgkmcnt(0)")
    k("s_lshl_b32 s6, s4, 8")
    k(f"s_add_u32 s{S_W}, s52, s6\ns_addc_u32 s{S_W+1}, s53, 0\ns_sub_u32 s{S_W+2}, {512*8192}, s6\ns_mov_b32 s{S_W+3}, 0x20000")
    k.srd(S_M, 54, 4*12288, WS_MODP)
    k(f"s_lshl_b32 s6, s5, 2\ns_add_u32 s6, s6, s{S_WAVE}\ns_lshl_b32 s7, s6, 16")
    k(f"s_add_u32 s7, s7, 0x{WS_XH:x}")
    k(f"s_add_u32 s{S_X}, s54, s7\ns_addc_u32 s{S_X+1}, s55, 0\ns_mov_b32 s{S_X+2}, 0x10000\ns_mov_b32 s{S_X+3}, 0x20000")
    def w_step(j, st0=S_T0):
        r = []
        for p in range(2):
            st = st0 + p
            r.append([f"s_add_u32 m0, s{S_W1}, {WSLOT[j>>1]*SLOT + (j&1)*8192 + p*4096}\ns_mov_b32 s{st}, {(j*32 + p*16)*8192}",
                      lambda kk, st=st: kk.vmop(f"buffer_load_dwordx4 v{V_DW}, {sr(S_W,4)}, s{st} offen {OPT.wqnt} lds", f"W{j}")])
        return r
    def x_loads(j):
        r = []
        for qb in range(4):
            st = S_T0 + 4 + qb
            r.append([f"s_mov_b32 s{st}, {qb*16384 + (j>>2)*4096}",
                      lambda kk, qb=qb, st=st: kk.vmop(f"buffer_load_dwordx4 {vr(XR(j,qb),4)}, v{V_L16}, {sr(S_X,4)}, s{st} offen offset:{(j&3)*1024} {'sc1' if OPT.mk0 else ''}", f"X{j}" if j else f"X0_{qb}")])
        return r
    def run(items):
        for f in items:
            if isinstance(f, list): run(f)
            else: f(k) if callable(f) else k(f)
    LA_ = cfg.la
    def rem_srds():
        k("s_lshl_b32 s6, s4, 19")
        k(f"s_add_u32 s{S_K}, s48, s6\ns_addc_u32 s{S_K+1}, s49, 0\ns_mov_b32 s{S_K+2}, 0x80000\ns_mov_b32 s{S_K+3}, 0x20000")
        k(f"s_add_u32 s{S_V}, s50, s6\ns_addc_u32 s{S_V+1}, s51, 0\ns_mov_b32 s{S_V+2}, 0x80000\ns_mov_b32 s{S_V+3}, 0x20000")
        k(f"s_lshl_b32 s6, s5, 2\ns_add_u32 s6, s6, s{S_WAVE}\ns_lshl_b32 s6, s6, 19\ns_lshl_b32 s7, s4, 12\ns_add_u32 s6, s6, s7")
        k(f"s_add_u32 s6, s6, 0x{WS_OF:x}")
        k(f"s_add_u32 s{S_O}, s54, s6\ns_addc_u32 s{S_O+1}, s55, 0\ns_mov_b32 s{S_O+2}, {3*131072+4096}\ns_mov_b32 s{S_O+3}, 0x20000")
    def addr_setup():
        k("v_lshl_add_u32 v7, v3, 3, v5\nv_lshlrev_b32 v7, 8, v7\nv_lshl_add_u32 v7, v6, 4, v7")
        for s in range(4):
            k(f"v_xor_b32 v27, {s}, v5\nv_lshl_add_u32 v{V_WA+s}, v27, 6, v7")
            k(f"v_add_u32 v{V_WA+4+s}, 0x10000, v{V_WA+s}\nv_add_u32 v{V_WA+8+s}, 0x20000, v{V_WA+s}")
        k(f"v_lshlrev_b32 v{V_PA}, 5, v3\nv_add_u32 v{V_PA}, {PARB}, v{V_PA}")
        for s in range(4):
            k(f"v_or_b32 v27, {4*s}, v3\nv_xor_b32 v27, v27, v4\nv_lshlrev_b32 v27, 4, v27\nv_lshl_add_u32 v{V_KA+s}, v4, 8, v27")
        k("v_lshl_add_u32 v7, v3, 2, v5\nv_and_b32 v27, 7, v7\nv_lshlrev_b32 v7, 8, v7\nv_lshl_add_u32 v7, v6, 3, v7")
        k(f"v_add_u32 v7, {VB}, v7")
        for db in range(8):
            k(f"v_xor_b32 v30, {db}, v27\nv_lshl_add_u32 v{V_VA+db}, v30, 5, v7")
        k("v_lshlrev_b32 v7, 8, v3\nv_lshl_add_u32 v7, v1, 12, v7")
        for p in range(4):
            k(f"v_or_b32 v27, {4*p}, v3\nv_xor_b32 v27, v27, v4\nv_lshl_add_u32 v{V_DK+p}, v27, 4, v7")
        for p in range(2):
            k(f"v_or_b32 v27, {4*p}, v3\nv_lshlrev_b32 v27, 1, v27\nv_xor_b32 v27, v27, v4\nv_lshl_add_u32 v{V_DV+p}, v27, 4, v7")
        k("v_mov_b32 v27, 0x3f803f80")
        for i in range(4): k(f"v_accvgpr_write_b32 a{ONES+i}, v27")
    k("v_lshlrev_b32 v31, 4, v0")
    wdone = 0
    if OPT.mk0:
        n0, n1, n2 = OPT.mw0, OPT.mw0 + OPT.mw1, OPT.mw0 + OPT.mw1 + OPT.mw2
        k1p.CP = 64 if not prof else 92
        sv = lambda a, b: [run(w_step(j, S_T0+6)) for j in range(a, b)]
        k1p.body(k, lambda: sv(0, n0), lambda: sv(n0, n1), lambda: (sv(n1, n2), addr_setup()))
        wdone = n2
        mod_loads(k, S_M, 31, S_T0, V_PT, 0, "M", "sc1")
        run(x_loads(0)); rem_srds()
    else:
        mod_loads(k, S_M, 31, S_T0, V_PT, 0, "M")
        run(w_step(0)); run(x_loads(0))
        rem_srds(); addr_setup()
    w_step0 = w_step
    w_step = lambda j: w_step0(j) if j >= wdone else []
    def wreads(j):
        c = j >> 1; base = WSLOT[c]*SLOT; bank = base >> 16; off = (base & 0xffff) + (j & 1)*8192
        return [L(f"ds_read_b64_tr_b16 {ar(WF(j&1,t)+2*h,2)}, v{V_WA+4*bank+(t>>1)} offset:{off + h*1024 + 8*(t&1)}", f"R{j}_{t}")
                for t in range(8) for h in range(2)]
    def preads(j):
        b = PAR(j & 1)
        return [L(f"ds_read_b128 {vr(b+4*i,4)}, v{V_PA} offset:{j*128 + (i&1)*16 + (i>>1)*2048}", f"P{j}") for i in range(4)]
    def hcalc(j):
        b = PAR(j & 1); r = []
        for qb in range(4):
            t = V_PT + (qb & 1)*8
            for i in range(8):
                r.append(f"v_fma_mix_f32 v{t+i}, v{XR(j,qb)+(i>>1)}, v{b+8+i}, v{b+i} op_sel:[{i&1},0,0] op_sel_hi:[1,0,0]")
            for d in range(4):
                r.append(f"v_cvt_pk_bf16_f32 v{HF(j&1,qb)+d}, v{t+2*d}, v{t+2*d+1}")
        return r
    k(f"s_cmp_ge_u32 s{S_WAVE}, 2\ns_cselect_b32 s6, 1.0, 0\nv_add_u32 v31, {PARB}, v31")
    k.vmwait("M")
    mod_finish(k, V_PT, 6, C1)
    k(f"ds_write_b128 v31, {vr(V_PT,4)}")
    if OPT.modk1 and not OPT.ff:
        k("s_cmp_ge_u32 s2, 2\ns_cbranch_scc1 k1_nomod\nv_lshlrev_b32 v30, 4, v0\ns_add_u32 s7, s2, 1\ns_lshl_b32 s7, s7, 12")
        mod_loads(k, S_M, 30, S_T0, 192, "s7")
        k(f"s_lshl_b32 s6, s2, 1\ns_cmp_lt_u32 s{S_WAVE}, s6\ns_cselect_b32 s6, 1.0, 0\ns_sub_u32 s{S_M}, s{S_M}, {WS_MODP - WS_MOD}\ns_subb_u32 s{S_M+1}, s{S_M+1}, 0\ns_waitcnt vmcnt(0)")
        mod_finish(k, 192, 6)
        k(f"buffer_store_dwordx4 v[192:195], v30, {sr(S_M,4)}, s7 offen\ns_waitcnt vmcnt(0)")
        k("k1_nomod:")
    run(x_loads(1)); run(w_step(1))
    k.vmwait("W0", "lgkmcnt(0)"); k("s_barrier")
    run(preads(0)); run(preads(1)); run(wreads(0))
    assert LA_ == 4
    pend = [g for j in range(2, LA_) for g in x_loads(j) + w_step(j)]
    k.wait(lg="P0")
    k.stamp(1) if cfg.fine < 2 else k1t.st(k, 'q5')
    for i, v in enumerate(hcalc(0)):
        if i % 12 == 0: k.wait(vm=f"X0_{i//12}")
        if i % 6 == 0 and pend: run(pend.pop(0))
        k(v)
    kvplan = {12: kv_group('K', 0), 13: kv_group('K', 1), 14: kv_group('V', 0)}
    for j in range(15):
        k.c(f"qproj stage {j}")
        if cfg.fine == 1 and j in (0, 2, 4, 8, 12): k.stamp(2 + (0, 2, 4, 8, 12).index(j))
        mf = []
        for t in range(8):
            for q in range(4):
                qb = q if t % 2 == 0 else 3 - q
                d = QA(t, qb)
                mf.append(f"{MF} {d}, {ar(WF(j&1,t),4)}, {vr(HF(j&1,qb),4)}, {d if j else '0'}")
        lds = (preads(j+2) if j < 14 else []) + wreads(j+1)
        valu = hcalc(j+1)
        jj = j + LA_
        if jj >= 16: pend += kvplan[j]
        elif cfg.wb4:
            pend += x_loads(jj)
            if jj % cfg.wb4 == 0:
                for j2 in range(jj, min(16, jj + cfg.wb4)): pend += w_step(j2)
        else: pend += x_loads(jj) + w_step(jj)
        nvm = min(len(pend), cfg.nvm)
        vm = pend[:nvm]; pend = pend[nvm:]
        if cfg.x == 1: valu = valu[:16]
        gaps = fill(32, lds, valu, vm, g0=1, valu_end=31)
        add(gaps, -1, W(lg=f"R{j}_3"))
        front(gaps, 12, W(lg=f"R{j}_7"))
        if j < 2 or j % 2 == 1 or not cfg.bar2:
            tgt = j+1 if (j < 1 or not cfg.bar2) else j+2
            if cfg.wb4 and j + 1 >= 4:
                if (j + 1) % cfg.wb4 == 0:
                    front(gaps, 0, W(vm=f"X{j+1}"), W(vm=f"W{min(15, j + cfg.wb4)}", barrier=True))
                else: front(gaps, 0, W(vm=f"X{j+1}"))
            elif tgt < wdone: front(gaps, 0, W(vm=f"X{j+1}"))
            else: front(gaps, 0, W(vm=f"W{tgt}", barrier=True))
        else:
            front(gaps, 0, W(vm=f"X{j+1}"))
        emit(k, mf, gaps)
    assert not pend
    k.stamp(2) if not cfg.fine else (k.stamp(7) if cfg.fine == 1 else None)
    PF_F, PF_W = S_X, S_W
    pfsetup = [f"s_cmp_eq_u32 s{S_WAVE}, 1\ns_cselect_b64 s[{PF_F}:{PF_F+1}], s[58:59], s[56:57]",
        f"s_cmp_eq_u32 s{S_WAVE}, 2\ns_cselect_b64 s[{PF_F}:{PF_F+1}], s[60:61], s[{PF_F}:{PF_F+1}]",
        f"s_mul_i32 s6, s2, {43*128}\ns_add_u32 s{PF_F}, s{PF_F}, s6\ns_addc_u32 s{PF_F+1}, s{PF_F+1}, 0",
        f"s_lshl_b32 s6, s4, 17\ns_and_b32 s7, s5, 3\ns_lshl_b32 s7, s7, 15",
        f"s_add_u32 s6, s6, s7\ns_lshl_b32 s7, s{S_WAVE}, 13\ns_add_u32 s6, s6, s7",
        f"s_add_u32 s{PF_W}, s46, s6\ns_addc_u32 s{PF_W+1}, s47, 0\ns_mov_b32 s{PF_W+2}, 0x2000",
        f"s_cmp_eq_u32 s{S_WAVE}, 3\ns_cselect_b32 s{PF_F+2}, 0, {43*128}"]
    if OPT.xpf and OPT.ff:
        pfsetup += [f"s_lshl_b32 s6, s5, 1\ns_bfe_u32 s7, s2, 0x10005\ns_add_u32 s6, s6, s7",
            f"s_lshl_b32 s6, s6, 2\ns_and_b32 s7, s2, 3\ns_add_u32 s6, s6, s7",
            f"s_lshl_b32 s6, s6, 2\ns_bfe_u32 s7, s2, 0x20003\ns_add_u32 s6, s6, s7",
            f"s_lshl_b32 s6, s6, 2\ns_add_u32 s6, s6, s{S_WAVE}",
            f"s_lshl_b32 s6, s6, 11\ns_add_u32 s{S_M}, s0, s6\ns_addc_u32 s{S_M+1}, s1, 0\ns_mov_b32 s{S_M+2}, 2048"]
    elif OPT.xpf:
        pfsetup += [f"s_bfe_u32 s6, s2, 0x10002\ns_lshl_b32 s6, s6, 3\ns_bfe_u32 s7, s2, 0x30003",
            f"s_add_u32 s6, s6, s7\ns_lshl_b32 s6, s6, 2\ns_and_b32 s7, s2, 3",
            f"s_add_u32 s6, s6, s7\ns_lshl_b32 s6, s6, 2\ns_lshr_b32 s7, s2, 6",
            f"s_add_u32 s6, s6, s7\ns_lshl_b32 s6, s6, 2\ns_add_u32 s6, s6, s{S_WAVE}",
            f"s_lshl_b32 s6, s6, 11\ns_add_u32 s{S_M}, s0, s6\ns_addc_u32 s{S_M+1}, s1, 0\ns_mov_b32 s{S_M+2}, 2048"]
    xcc_pub = []
    if OPT.loc:
        def pub(k):
            k.srd(48, 54, 32768, WS_FLAG)
            k(f"s_and_b32 s6, s2, 7\ns_lshl_b32 s6, s6, 2\ns_lshr_b32 s7, s2, 6\ns_add_u32 s6, s6, s7\ns_lshl_b32 s63, s6, 10\ns_bfe_u32 s7, s2, 0x30003")
            k(f"s_getreg_b32 s52, hwreg(HW_REG_XCC_ID, 0, 4)\ns_add_u32 s52, s52, 1\ns_lshl_b32 s6, s7, 2\ns_lshl_b32 s7, s7, 7")
            k(f"v_lshlrev_b32 v3, 3, v{V_L16}\nv_add_u32 v3, s6, v3\nv_mov_b32 v4, s52\nv_bfe_u32 v27, v{V_L16}, 4, 3\nv_lshlrev_b32 v27, 2, v27\nv_add_u32 v27, s7, v27")
            k(f"s_cmp_eq_u32 s{S_WAVE}, 1\ns_cbranch_scc0 k1_nx\ns_mov_b64 exec, 0xff")
            k(f"buffer_store_dword v4, v3, s[48:51], s63 offen offset:64 sc1\ns_mov_b64 exec, -1")
            k("k1_nx:")
        xcc_pub = [pub]
    V0, VD = V_PF, V_PF+3
    pfv = [f"v_lshrrev_b32 v{VD}, 8, v{V_L16}", f"v_lshlrev_b32 v{VD}, 24, v{VD}", f"v_lshl_add_u32 v{V0}, v{V_L16}, 3, v{VD}"]
    cf, cw, co = cfg.pfc
    def site(srd, c0, sh, off, fl):
        return [f"s_sub_u32 s6, s{S_CNT}, {c0}\ns_min_u32 s6, s6, 4\ns_lshl_b32 s6, s6, {sh}", f"buffer_load_dword v{VD}, v{V0}, {sr(srd,4)}, s6 offen offset:{off} {fl}"]
    pfs = [site(PF_F, cf, 11, 0, ""), site(S_M, OPT.xpf, 11, 0, "") if OPT.xpf else site(S_O, co, 17, 0, OPT.opf), site(PF_W, cw, 11, 0, OPT.wpf), site(S_O, co, 17, 2048, OPT.opf)]
    if OPT.loc or OPT.opt32:
        pfv += [f"v_lshrrev_b32 v{VD}, 9, v{V_L16}", f"v_lshlrev_b32 v{VD}, 24, v{VD}", f"v_lshl_add_u32 v7, v{V_L16}, 3, v{VD}"]
        pfs[3] = site(S_O, OPT.lpo, 17, 0, OPT.opf); pfs[3][1] = pfs[3][1].replace(f"v{V0},", "v7,")
    loopinit = f"s_mov_b32 s{S_CNT}, 8"
    k.c("merged head")
    k.run(xcc_pub)
    k.wait(lg='all')
    def qk_q(buf, qb, czero):
        r = []
        for kb in range(2):
            for i in range(4):
                s_ = i if kb == 0 else 3 - i
                d = vr(S(buf, kb, qb), 4)
                c = d if i else ("0" if czero else vr(MN(qb), 4))
                nd = {f"Q{qb}": 2, f"KR{buf}": 0}
                if not czero: nd[f"MN{qb}"] = 2
                r.append(It(f"{MF} {d}, {ar(HK(buf)(kb*4+s_),4)}, {vr(Q(qb,s_),4)}, {c}", needs=nd, gives=f"S{buf}_{qb}"))
        return r
    mq = []
    for qb in range(4):
        for t in range(8):
            d = QA(t, qb)
            mq.append(It(f"{MF} {d}, {ar(WF(1,t),4)}, {vr(HF(1,qb),4)}, {d}", gives=f"A{t}_{qb}"))
    mq += qk_q(0,0,True) + qk_q(0,1,True) + qk_q(0,2,True) + qk_q(1,0,False) + qk_q(1,1,False) + qk_q(0,3,True) + qk_q(1,2,False) + qk_q(1,3,False)
    def conv(qb):
        r = []
        for s_ in range(4):
            for h in range(2):
                t = 2*s_ + h; nd = {f"A{t}_{qb}": 8}
                if qb < 2: a = 192 + (qb*8+t)*4
                else:
                    a = 224 + (t & 3)*4
                    for i in range(4): r.append(It(f"v_accvgpr_read_b32 v{a+i}, a{((qb-2)*8+t)*4+i}", needs=nd))
                for d in range(2): r.append(It(f"v_cvt_pk_bf16_f32 v{Q(qb,s_)+2*h+d}, v{a+2*d}, v{a+2*d+1}", needs=nd, gives=f"Q{qb}x"))
        r[-1].gives = f"Q{qb}"
        return r
    def rmax(qs):
        r = []
        for qb in qs:
            a = S(0, 0, qb); b = S(0, 1, qb); t = V_T + qb; nd = {f"S0_{qb}e": 8}
            r += [It(f"v_max3_f32 v{t}, v{a}, v{a+1}, v{a+2}", needs=nd), It(f"v_max3_f32 v{t+4}, v{b}, v{b+1}, v{b+2}"),
                  It(f"v_max3_f32 v{t}, v{t}, v{a+3}, v{b+3}"), It(f"v_max_f32 v{t}, v{t}, v{t+4}")]
        for n_, sw in enumerate(("v_permlane32_swap_b32", "v_permlane16_swap_b32")):
            for qb in qs: r.append(It(f"v_mov_b32 v{V_T+4+qb}, v{V_T+qb}", gives=f"mv{n_}_{qb}"))
            for qb in qs: r.append(It(f"{sw} v{V_T+4+qb}, v{V_T+qb}", cost=2, needs={f"mv{n_}_{qb}": 2}, gives=f"sw{n_}_{qb}"))
            for qb in qs: r.append(It(f"v_max_f32 v{V_T+qb}, v{V_T+qb}, v{V_T+4+qb}", needs={f"sw{n_}_{qb}": 1}))
        for qb in qs:
            for i in range(4): r.append(It(f"v_sub_f32 v{MN(qb)+i}, 0, v{V_T+qb}", gives=f"MN{qb}" if i == 3 else None))
        return r
    def sm0(qs, sub=True):
        r = []
        E = exps(0, qs); C = cvts(0, qs); A = adds(0, qs, cfg.addq())
        regs = [S(0, kb, qb) + i for qb in qs for kb in range(2) for i in range(4)]
        qof = [qb for qb in qs for _ in range(8)]
        n_ = len(E)
        for i in range(n_ + 2):
            if sub and i < n_: r.append(It(f"v_add_f32 v{regs[i]}, v{regs[i]}, v{MN(qof[i])}"))
            if 1 <= i <= n_: r.append(It(E[i-1], cost=2, gives=f"e{qs[0]}_{i-1}"))
            if i >= 2:
                if A[i-2]: r.append(It(A[i-2], needs={f"e{qs[0]}_{i-2}": 1}))
                if (i-2) % 2 == 1: r.append(It(C[(i-2)//2], needs={f"e{qs[0]}_{i-2}": 1}))
        return r
    last = {}
    for it in mq:
        if isinstance(it.gives, str) and it.gives.startswith("S"): last[it.gives] = it
    for g, it in last.items(): it.gives = g + "e"
    init = [It(f"v_mov_b32 v{V_LS+q}, 0") for q in range(4)] + [It(x) for x in pfv]
    vq = init + conv(0) + conv(1) + conv(2) + rmax([0, 1]) + conv(3) + sm0([0, 1]) + rmax([2, 3]) + sm0([2, 3])
    side = [It(W(vm="K0", barrier=True), cost=0, n=2)]
    for b in range(2):
        side += [It(L(x, f"HK{b}")) for x in kreads(0, b, HK(b))]
    side += [It(x, cost=0, n=3) for x in pfsetup]
    side += [It(W(lg="HK0"), cost=0, gives="KR0", needs={"A7_2": 0}), It(W(lg="HK1"), cost=0, gives="KR1")]
    G = lambda grp, nd=None: It(lambda kk, grp=grp: kk.run(grp), cost=2, n=3, needs=nd)
    side += [G(x) for x in kv_group('K', 2)] + [G(x, {"S0_2e": 0}) for x in kv_group('V', 1)]
    side += [It(W(vm="V0", barrier=True), cost=0, n=2, needs={"S0_3e": 0})]
    side += [It(x) for x in kreads(1, 0)] + [G(x) for x in kv_group('K', 3)] + [It(loopinit, cost=0, n=4)]
    merge(k, mq, vq, side)
    k("k1_first:")
    iteration(k, cfg, 1, "first")
    iteration(k, cfg, 2, "pv", czero=True)
    k.stamp(3) if not cfg.fine else None
    k("s_branch k1_pos2")
    k(".p2align 6")
    for _ in range(OPT.pad): k("s_nop 0")
    k("k1_loop:")
    iteration(k, cfg, 0, pf=pfs[0] if cfg.pf else ())
    iteration(k, cfg, 1, pf=pfs[1] if cfg.pf else ())
    iteration(k, cfg, 2, pf=pfs[2] if cfg.pf else (), label="k1_pos2")
    iteration(k, cfg, 3, pf=pfs[3] if cfg.pfo else (), post=[f"s_sub_u32 s{S_CNT}, s{S_CNT}, 1\ns_cmp_lg_u32 s{S_CNT}, 0\ns_cbranch_scc1 k1_loop"])
    k.stamp(4) if not cfg.fine else (k.stamp(1) if cfg.fine == 2 else None)
    if OPT.cpf2:
        k(f"s_cmp_ge_u32 s2, 16\ns_cbranch_scc1 k1_nocode\ns_lshr_b32 s6, s2, 3\ns_lshl_b32 s6, s6, 2\ns_add_u32 s6, s6, s{S_WAVE}")
        k.code_pf("k1_nocode", "code_end_marker", V_PF+1, S_M, 6)
        k("k1_nocode:")
    V_AW = 7
    AH = (lambda j: (j & 15) >> 1) if OPT.f2 else (lambda j: j >> 2)
    AS = (lambda j: (j >> 4)*2 + (j & 1)) if OPT.f2 else (lambda j: j & 3)
    def a_w(j):
        return [[f"s_add_u32 m0, s{S_W1}, {(j % OPT.anr)*8192 + p*4096}\ns_mov_b32 s{S_T0+4+p}, {(AH(j)*512 + AS(j)*32 + p*16)*1024}",
                 V(f"buffer_load_dwordx4 v{V_AW}, {sr(S_M,4)}, s{S_T0+4+p} offen lds", f"AW{j}")] for p in range(2)]
    extra = []
    if OPT.fa:
        k(f"v_lshrrev_b32 v2, 8, v{V_L16}\nv_lshl_add_u32 v2, v1, 2, v2\nv_and_b32 v3, 7, v2\nv_lshlrev_b32 v3, 5, v3\nv_and_b32 v4, 0xf0, v{V_L16}")
        k(f"v_xor_b32 v3, v3, v4\nv_lshl_add_u32 v{V_AW}, v2, 10, v3")
        k(f"s_and_b32 s6, s2, 3\ns_lshl_b32 s6, s6, 17\ns_bfe_u32 s7, s2, 0x20003\ns_lshl_b32 s7, s7, 8\ns_add_u32 s6, s6, s7")
        k(f"s_add_u32 s{S_M}, s46, s6\ns_addc_u32 s{S_M+1}, s47, 0\ns_sub_u32 s{S_M+2}, {4096*1024}, s6\ns_mov_b32 s{S_M+3}, 0x20000")
        k.vm = []
        if OPT.loc: k(f"buffer_load_dword v6, v27, s[48:51], s63 offen offset:64 sc1")
        if OPT.mk0:
            k.srd(48, 54, k1p.FA + 256*4096, WS_FLAG)
            k(f"s_lshl_b32 s6, s5, 5\ns_add_u32 s6, s6, s4\ns_lshl_b32 s6, s6, 12\ns_add_u32 s63, s6, {k1p.FA+3072}\nv_mov_b32 v27, 0")
        extra = [g for j in range(OPT.na0) for g in a_w(j)]
        if OPT.mk0: extra[0] = [V("buffer_load_dword v6, v27, s[48:51], s63 offen sc1", "WL")] + extra[0]
    rest = iteration(k, cfg, 0, "tail", extra=extra)
    k.stamp(5) if not cfg.fine else (k.stamp(2) if cfg.fine == 2 else None)
    k.lg = ["V0"]*len(k.lg)
    k.run([x[1] for x in rest])
    nrest = len(rest); dbw = 8 - (nrest + 3)//4
    ns = 2*len(cfg.sumq)
    LT = 240
    mq = []
    for i, m in enumerate(pv2_mfmas(2, cfg.sumq)):
        db = (i - ns)//8
        it = It(m, gives="SUM" if i == ns-1 else (f"O{db}" if i >= ns and (i - ns) % 8 == 7 else None))
        if i == ns: it.needs = {"W0": 0}
        if i == ns + 8*dbw: it.needs = {"W1": 0}
        mq.append(it)
    side = [It(W(lg="V0"), cost=0, gives="W0")] + [It(f"s_mov_b32 s{S_T0+qb}, {qb*131072}", cost=0) for qb in range(4)]
    if OPT.fa:
        side += [It(lambda kk, g=g: kk.run(g), cost=2) for j in range(OPT.na0, OPT.na0 + OPT.na2) for g in a_w(j)]
    side += [It(W(lg="all"), cost=0, gives="W1", needs={f"O{dbw-2}": 0})]
    vq = []
    aq = cfg.addq()
    for n_, sw in enumerate(("v_permlane32_swap_b32", "v_permlane16_swap_b32")):
        for q in aq: vq.append(It(f"v_mov_b32 v{LT+4+q}, v{V_LS+q}", gives=f"a{n_}{q}"))
        for q in aq: vq.append(It(f"{sw} v{LT+4+q}, v{V_LS+q}", cost=2, needs={f"a{n_}{q}": 2}, gives=f"b{n_}{q}"))
        for q in aq: vq.append(It(f"v_add_f32 v{V_LS+q}, v{V_LS+q}, v{LT+4+q}", needs={f"b{n_}{q}": 1}))
    for q in cfg.sumq: vq.append(It(f"v_accvgpr_read_b32 v{V_LS+q}, a{LA(q)}", needs={"SUM": 8}))
    for q in range(4): vq.append(It(f"v_rcp_f32 v{LT+2*q}, v{V_LS+q}", cost=2))
    vq += [It(f"v_add_f32 v{LT+8}, v{V_LS}, v{V_LS+1}"), It(f"v_add_f32 v{LT+9}, v{V_LS+2}, v{V_LS+3}"), It(f"v_add_f32 v{LT+8}, v{LT+8}, v{LT+9}"),
           It(f"s_mov_b32 s6, {hexf(2.0**64)}\nv_cmp_nle_f32 vcc, v{LT+8}, s6"),
           It(f"s_lshl_b32 s7, s{S_WAVE}, 2\ns_add_u32 s7, s7, {FLAGB}\nv_mov_b32 v{LT+10}, s7"), It(f"v_mov_b32 v{LT+11}, {FLAGB}"),
           It(f"s_cmp_lg_u64 vcc, 0\ns_cselect_b32 s6, 1, 0\nv_mov_b32 v{LT+9}, s6"), It(L(f"ds_write_b32 v{LT+10}, v{LT+9}", "F"))]
    def check(k):
        k(f"ds_read_b128 {vr(LT+12,4)}, v{LT+11}\ns_waitcnt lgkmcnt(0)")
        k(f"v_or_b32 v{LT+12}, v{LT+12}, v{LT+13}\nv_or3_b32 v{LT+12}, v{LT+12}, v{LT+14}, v{LT+15}\ns_nop 0")
        k(f"v_readfirstlane_b32 s6, v{LT+12}")
        k(f"s_andn2_b32 s6, s6, s{S_RERUN}\ns_cmp_lg_u32 s6, 0\ns_cbranch_scc1 k1_fallback")
    def flagprep(k):
        k.srd(S_K, 54, 4*32768 + 256*4096, WS_FLAG)
        k(f"s_and_b32 s6, s2, 7\ns_lshl_b32 s6, s6, 2\ns_lshr_b32 s7, s2, 6\ns_add_u32 s6, s6, s7\ns_lshl_b32 s63, s6, 10\ns_bfe_u32 s7, s2, 0x30003")
        k(f"v_lshlrev_b32 v2, 3, v{V_L16}\ns_lshl_b32 s6, s7, 2\nv_add_u32 v2, s6, v2\nv_mov_b32 v3, 0x{MAGIC:x}")
        k(f"v_bfe_u32 v27, v{V_L16}, 4, 3\nv_lshlrev_b32 v27, 2, v27\ns_lshl_b32 s6, s7, 7\nv_add_u32 v27, s6, v27")
        if OPT.mk0:
            k(f"s_lshl_b32 s6, s5, 5\ns_add_u32 s6, s6, s4\ns_lshl_b32 s6, s6, 12\ns_add_u32 s6, s6, {k1p.FA+3072}\ns_sub_u32 s6, s6, s63")
            k(f"v_and_b32 v4, 12, v27\nv_add_u32 v4, s6, v4\ns_mov_b32 exec_lo, 0\nv_mov_b32 v27, v4\ns_mov_b64 exec, -1")
    def raise_(k, lab, off):
        k(f"s_cmp_eq_u32 s{S_WAVE}, 1\ns_cbranch_scc0 {lab}")
        if OPT.loc:
            k(f"v_cmp_ne_u32 vcc, s52, v6\ns_cbranch_vccz {lab}_l\nbuffer_wbl2 sc1\ns_waitcnt vmcnt(0)\n{lab}_l:")
        k("s_mov_b64 exec, 0xff")
        k(f"buffer_store_dword v3, v2, {sr(S_K,4)}, s63 offen offset:{off} sc1\ns_mov_b64 exec, -1")
        k(f"{lab}:")
    def midsig(k):
        k.wait(vm="OS1", lg='all', barrier=True)
        check(k); flagprep(k); raise_(k, "k1_nf1", 0)
    n_ = 0
    for s_ in range(4):
        for qb in range(4):
            t = 64 + (n_ & 3)*8; o = 32 + (n_ & 7)*4; n_ += 1
            for h in range(2):
                for i in range(4): vq.append(It(f"v_accvgpr_read_b32 v{t+4*h+i}, a{O(2*s_+h,qb)+i}", needs={f"O{2*s_+h}": 8}))
            if n_ <= cfg.npk:
                for i in range(8): vq.append(It(f"v_mul_f32 v{t+i}, v{t+i}, v{LT+2*qb}"))
            else:
                for i in range(4): vq.append(It(f"v_pk_mul_f32 {vr(t+2*i,2)}, {vr(t+2*i,2)}, {vr(LT+2*qb,2)} op_sel_hi:[1,0]"))
            for d in range(4): vq.append(It(f"v_cvt_pk_bf16_f32 v{o+d}, v{t+2*d}, v{t+2*d+1}"))
            vq.append(It(V(f"buffer_store_dwordx4 {vr(o,4)}, v{V_L16}, {sr(S_O,4)}, s{S_T0+qb} offen offset:{s_*1024} {OPT.lst if OPT.loc else ('sc1' if (n_ <= OPT.nsc1 or OPT.fa) else OPT.st1)}", "OST" if n_ > 8 else "OS1"), cost=2))
            if OPT.f2 and n_ == OPT.f2n: vq.append(It(midsig, cost=0, needs={"W1": 0}))
    if not OPT.fa: k.vm = []
    merge(k, mq, vq, side)
    if OPT.fa:
        for j in range(OPT.na0 + OPT.na2, OPT.na0 + OPT.na2 + OPT.na1): k.run(a_w(j))
        assert OPT.na0 + OPT.na1 + OPT.na2 <= 14
        k(f"s_lshl_b32 s6, s5, 1\ns_bfe_u32 s7, s2, 0x10005\ns_add_u32 s6, s6, s7\ns_lshl_b32 s6, s6, 2\ns_add_u32 s{S_CNT}, s6, s{S_WAVE}")
        k(f"s_lshl_b32 s6, s{S_CNT}, 18\ns_and_b32 s7, s2, 3\ns_lshl_b32 s7, s7, 12\ns_add_u32 s6, s6, s7\ns_add_u32 s6, s6, 0x{WS_OF:x}")
        k(f"s_add_u32 s{S_X}, s54, s6\ns_addc_u32 s{S_X+1}, s55, 0\ns_mov_b32 s{S_X+2}, {2*131072}")
        k(f"s_lshl_b32 s6, s{S_CNT}, 15\ns_lshl_b32 s7, s7, 9\ns_add_u32 s6, s6, s7\ns_bfe_u32 s7, s2, 0x20003\ns_lshl_b32 s7, s7, 12\ns_add_u32 s6, s6, s7\ns_add_u32 s6, s6, 0x{WS_PART:x}")
        k(f"s_add_u32 s{S_W}, s54, s6\ns_addc_u32 s{S_W+1}, s55, 0\ns_mov_b32 s{S_W+2}, {16384+4096}")
    V_W0 = 32
    def poll(k, lab, off):
        k("s_mov_b32 s7, 0")
        k(f"{lab}:")
        k(f"buffer_load_dword v3, v27, {sr(S_K,4)}, s63 offen offset:{off} sc1\ns_waitcnt vmcnt(0)\nv_cmp_ne_u32 vcc, 0x{MAGIC:x}, v3")
        k(f"s_cbranch_vccz {lab}_r\ns_add_u32 s7, s7, 1\ns_cmp_lt_u32 s7, 0x10000\ns_cbranch_scc1 {lab}")
        k(f"{lab}_r:")
        k(f"s_barrier\nv_mov_b32 v3, 0\ns_mov_b32 exec_lo, 0\nbuffer_store_dword v3, v27, {sr(S_K,4)}, s63 offen offset:{off}\ns_mov_b64 exec, -1\ns_branch {lab}_e" if OPT.mk0 else "")
        k(f"{lab}_ok:")
    if OPT.f2:
        for j in range(OPT.na0 + OPT.na1 + OPT.na2, OPT.na3): k.run(a_w(j))
        if OPT.ff: k1t.setup_early(k)
        k("s_nop 1")
        for t in range(8): k(f"v_add_u32 v{V_W0+t}, {-VB & 0xffffffff}, v{V_VA+t}\nv_add_u32 v{V_W0+8+t}, {VB}, v{V_VA+t}")
        k(f"s_cmp_eq_u32 s{S_WAVE}, 0\ns_cbranch_scc0 k1_poll_ok")
        poll(k, "k1_poll", 0)
        k("s_waitcnt vmcnt(0)\ns_barrier")
        k.stamp(6) if not cfg.fine else (k.stamp(3) if cfg.fine == 2 else k1t.st(k, 'x0'))
        raise_(k, "k1_nf2", 32)
    else:
        if OPT.fa: k.wait(vm="OST")
        k("s_waitcnt lgkmcnt(0)\ns_barrier")
        check(k)
    if OPT.fa and not OPT.f2:
        k.stamp(6) if not cfg.fine else (k.stamp(3) if cfg.fine == 2 else k1t.st(k, 'x0'))
        flagprep(k); raise_(k, "k1_nf1", 0)
        for t in range(8): k(f"v_add_u32 v{V_W0+t}, {-VB & 0xffffffff}, v{V_VA+t}\nv_add_u32 v{V_W0+8+t}, {VB}, v{V_VA+t}")
        for j in range(OPT.na0 + OPT.na1 + OPT.na2, OPT.anr): k.run(a_w(j))
        if OPT.ff: k1t.setup_early(k)
        k(f"s_cmp_eq_u32 s{S_WAVE}, 0\ns_cbranch_scc0 k1_poll_ok")
        poll(k, "k1_poll", 0)
        k("s_waitcnt vmcnt(0)\ns_barrier\nk1_poll_e:")
    if OPT.fa:
        k.vm = []; k.lg = []
        if cfg.fine == 2: k.stamp(4); k("s_waitcnt lgkmcnt(0)")
        if cfg.fine == 3: k1t.st(k, 'y0')
        AC = lambda t, tb: 64 + (t*2+tb)*4
        AWF = lambda j, t: 128 + ((j&3)*8+t)*4
        ABF = lambda j, tb: (j*2+tb)*4
        def a_b(j):
            return [[f"s_mov_b32 s{S_T0+tb}, {tb*131072 + AH(j)*16384}",
                     V(f"buffer_load_dwordx4 {ar(ABF(j,tb),4)}, v{V_L16}, {sr(S_X,4)}, s{S_T0+tb} offen offset:{AS(j)*1024} sc1", f"AB{j}")] for tb in range(2)]
        def a_reads(p):
            r = []
            for t in range(8):
                for j in (2*p, 2*p+1):
                    base = (j % OPT.anr)*8192; off = base & 0xffff
                    r += [L(f"ds_read_b64_tr_b16 {vr(AWF(j,t)+2*h,2)}, v{(V_W0, V_VA, V_W0+8)[base >> 16]+t} offset:{off + h*4096}", f"R{p}_{t}") for h in range(2)]
            return r
        nb = OPT.nb0
        for j in range(nb): k.run(a_b(j))
        k.run(a_reads(0))
        nw = max(OPT.na3, OPT.na0 + OPT.na1 + OPT.na2) if OPT.f2 else OPT.anr; ncw = 0
        for p in range(16):
            mf = []; n_ = 0
            for t in range(8):
                for tb_ in range(2):
                    tb = tb_ if t % 2 == 0 else 1 - tb_
                    d = vr(AC(t, tb), 4)
                    for i, j in enumerate((2*p, 2*p+1) if n_ % 2 == 0 else (2*p+1, 2*p)):
                        mf.append(f"{MF} {d}, {vr(AWF(j,t),4)}, {ar(ABF(j,tb),4)}, {d if (p or i) else '0'}")
                    n_ += 1
            if p == 15 and OPT.amrg:
                k.wait(vm=f"AB{2*p+1}", lg=f"R{p}_3")
                mq = []; vq = []; n_ = 0
                for ns_ in range(4):
                    for tb_ in range(2):
                        tb = tb_ if ns_ % 2 == 0 else 1 - tb_
                        o = 128 + n_*4
                        for h_ in range(2):
                            h = h_ if n_ % 2 == 0 else 1 - h_
                            t = 2*ns_ + h; a = AC(t, tb); d = vr(a, 4)
                            for i, j in enumerate((2*p, 2*p+1) if h_ == 0 else (2*p+1, 2*p)):
                                mq.append(It(f"{MF} {d}, {vr(AWF(j,t),4)}, {ar(ABF(j,tb),4)}, {d}", gives=f"D{t}{tb}" if i else None, needs={"RR": 0} if len(mq) == 16 else None))
                            vq += [It(f"v_cvt_pk_bf16_f32 v{o+2*h+e}, v{a+2*e}, v{a+2*e+1}", needs={f"D{t}{tb}": 8}) for e in range(2)]
                        vq.append(It(V(f"buffer_store_dwordx4 {vr(o,4)}, v{V_L16}, {sr(S_W,4)}, s{S_T0+tb} offen offset:{ns_*1024} sc1", "PST"), cost=2))
                        n_ += 1
                merge(k, mq, vq, [It(f"s_mov_b32 s{S_T0}, 0\ns_mov_b32 s{S_T0+1}, 16384", cost=0), It(W(lg='all'), cost=0, gives="RR", needs={"D01": 0})])
                break
            vm = []
            for _ in range(OPT.nbs):
                wok = nw < 32 and (nw < OPT.anr or p >= (nw-OPT.anr)//2 + 1)
                if wok and (nb >= 32 or nw//2 - 1 - OPT.wlead <= nb//2): vm += a_w(nw); nw += 1
                elif nb < 32 and not (OPT.f2 and nb >= 16 and p < OPT.f2c): vm += a_b(nb); nb += 1
                elif wok: vm += a_w(nw); nw += 1
                elif OPT.ff and nw == 32 and ncw < OPT.fce and len(vm) <= 3 and k1t.a_last(k1t.cperm()[ncw], OPT.anr) <= p - 1:
                    vm += k1t.c_w(ncw); ncw += 1
            if OPT.ff and p == OPT.fxp: vm += k1t.x_loads()
            if OPT.ff and p in (OPT.fmp, OPT.fmp+1): vm += k1t.m_loads()[4*(p-OPT.fmp):4*(p-OPT.fmp)+4]
            if OPT.f2 and p == OPT.f2c - 1: vm.insert(len(vm)//2, [V(f"buffer_load_dword v3, v27, {sr(S_K,4)}, s63 offen offset:32 sc1", "F2")])
            if OPT.loc and p == OPT.lwb:
                vm.append([f"s_lshr_b32 s6, s2, 3\ns_or_b32 s6, s6, s{S_WAVE}\ns_cbranch_scc1 k1_nowb\nbuffer_wbl2 sc1\nk1_nowb:"])
            rd = a_reads(p+1) if p < 15 else []
            if OPT.ax == 1: rd = []
            if OPT.ax == 2: vm = []
            if OPT.ax == 3: rd = rd[:24]
            if OPT.ax == 4: vm = [x for x in vm if "m0" in x[0]]
            if OPT.amix:
                gaps = fill(32, [], [], vm, g0=1)
                fr = [g for g in range(1, 31) if g not in gaps]
                for i, g in enumerate(fr):
                    c = (len(rd) + len(fr) - i - 1)//(len(fr) - i) if (i % 2 == 0 or len(rd) >= 2*(len(fr)-i)) else len(rd)//(len(fr) - i)
                    for _ in range(c): add(gaps, g, rd.pop(0))
                assert not rd
            else:
                gaps = fill(32, rd, [], vm, g0=1, pair_lds=True)
            add(gaps, -1, W(vm=f"AB{2*p+1}", lg=f"R{p}_3"))
            if OPT.f2 and p == OPT.f2c:
                add(gaps, -1, W(vm="F2"), "v_cmp_ne_u32 vcc, 1, v3\ns_cbranch_vccnz k1_spin2\nk1_spin2_ret:")
            front(gaps, 12, W(lg=f"R{p}_7"))
            if OPT.slowa and OPT.slow0 <= p < OPT.slown: add(gaps, 31, f"s_sleep {OPT.slowa}")
            if 1 <= p < 15 and not OPT.anob: front(gaps, 0, W(vm=f"AW{2*p+3}", barrier=True))
            emit(k, mf, gaps)
            if cfg.fine == 2 and p == 1: k.stamp(5); k("s_waitcnt lgkmcnt(0)"); k.lg = []
        if cfg.fine == 2: k.stamp(6)
        assert nb == 32 and nw == 32
        k(f"s_mov_b32 s{S_T0}, 0\ns_mov_b32 s{S_T0+1}, 16384")
        n_ = 0
        for ns_ in range(4 if not OPT.amrg else 0):
            for tb in range(2):
                o = 128 + n_*4; n_ += 1
                for h in range(2):
                    a = AC(2*ns_+h, tb)
                    k(f"v_cvt_pk_bf16_f32 v{o+2*h}, v{a}, v{a+1}\nv_cvt_pk_bf16_f32 v{o+2*h+1}, v{a+2}, v{a+3}")
                k(f"buffer_store_dwordx4 {vr(o,4)}, v{V_L16}, {sr(S_W,4)}, s{S_T0+tb} offen offset:{ns_*1024} sc1")
        if OPT.ff: k1t.rest(k, ncw)
    k.dbg_mark(3, 100, 101, True); k.dbg_mark(4, 102, 103)
    if prof:
        k.stamp(6) if not (cfg.fine or OPT.fa) else None
        k("s_waitcnt vmcnt(0)")
        k.stamp(7) if cfg.fine != 1 else None
        k.dump_stamps(8, 54, 100)
    k(f"{end}:")
    k("s_endpgm")
    if OPT.f2:
        k("k1_spin2:")
        poll(k, "k1_poll2", 32)
        k("s_branch k1_spin2_ret")
    k("k1_fallback:")
    k(f"s_mov_b32 s{S_RERUN}, 1")
    k("v_and_b32 v2, 63, v0\nv_lshrrev_b32 v3, 4, v2\nv_and_b32 v4, 15, v2")
    k("v_lshlrev_b32 v5, 8, v4\nv_lshl_add_u32 v5, v3, 4, v5")
    for q in range(4): k(f"v_mov_b32 v{V_T+q}, 0xff800000")
    k("s_mov_b32 s6, 0")
    k("k1_fb_loop:")
    for s in range(4): k(f"buffer_load_dwordx4 {ar(KF(s),4)}, v5, {sr(S_K,4)}, s6 offen offset:{64*s}")
    k("s_waitcnt vmcnt(0)")
    for s in range(4):
        for qb in range(4):
            d = vr(S(0,0,qb),4)
            k(f"{MF} {d}, {ar(KF(s),4)}, {vr(Q(qb,s),4)}, {d if s else '0'}")
    k("s_nop 15")
    for qb in range(4):
        a = S(0,0,qb)
        k(f"v_max3_f32 v{V_T+qb}, v{V_T+qb}, v{a}, v{a+1}")
        k(f"v_max3_f32 v{V_T+qb}, v{V_T+qb}, v{a+2}, v{a+3}")
    k("s_add_u32 s6, s6, 4096\ns_cmp_lt_u32 s6, 0x80000\ns_cbranch_scc1 k1_fb_loop")
    rowmax_cross(k, [V_T+q for q in range(4)], V_T+4)
    for x in pfv: k(x)
    for qb in range(4):
        k(f"v_mov_b32 v{V_LS+qb}, 0")
        for i in range(4): k(f"v_sub_f32 v{MN(qb)+i}, 0, v{V_T+qb}")
    k("s_barrier")
    k.vm = []; k.lg = []
    for wh, t in (('K',0),('K',1),('V',0),('K',2),('V',1),('K',3)): run(kv_group(wh, t))
    k.wait(vm="V0", barrier=True)
    run(kreads(0, 0, HK(0))); k("s_waitcnt lgkmcnt(0)"); run(kreads(0, 1, HK(1)))
    for m in qk_mfmas(0, HK(0)): k(m)
    k("s_waitcnt lgkmcnt(0)\ns_barrier")
    run(kreads(1, 0))
    for m in qk_mfmas(1, HK(1)): k(m)
    merge(k, [], sm0([0, 1, 2, 3], sub=False))
    k(loopinit)
    k("s_branch k1_first")
    return k
```

```python
from common import *
from sched import *
from k1t import st
S_K, S_V, S_W, S_X, S_M, S_O = 8, 12, 16, 20, 24, 28
S_T0, S_WAVE = 36, 45
V_L16 = 26
PARB = 9*16384
RED = PARB + 4096 + 1024
TRN = PARB + 8192
CP = 64
FA = 4*32768

def pre_wait(k):
    k("v_lshrrev_b32 v128, 5, v0\nv_and_b32 v129, 31, v0")
    k("v_lshlrev_b32 v130, 10, v128\nv_lshl_add_u32 v130, v129, 4, v130")
    k("s_lshl_b32 s33, s5, 5\ns_add_u32 s33, s33, s4")
    k("s_mul_i32 s34, s2, 0x556\ns_lshr_b32 s34, s34, 16\ns_mul_i32 s35, s34, 48\ns_sub_u32 s35, s2, s35")
    k("v_lshrrev_b32 v131, 3, v0\nv_and_b32 v132, 7, v0")
    k("v_mul_u32_u24 v133, 6144, v131\nv_lshl_add_u32 v133, v132, 4, v133\nv_lshlrev_b32 v134, 1, v131")

def body(k, after_loads, after_stores, after_flags):
    k.srd(S_K, 0, 2048*1024)
    k(f"s_lshl_b32 s{S_T0}, s33, 13")
    XI = 136
    for j in range(2): k.vmop(f"buffer_load_dwordx4 {vr(XI+4*j,4)}, v130, {sr(S_K,4)}, s{S_T0} offen offset:{512*j} nt", f"PX{j}")
    k.srd(S_O, CP+2, 512*3072*2); k.srd(S_V, CP, 1024)
    k(f"s_cmp_lt_u32 s2, 192\ns_cselect_b32 s{S_O+2}, s{S_O+2}, 0")
    k(f"s_mul_i32 s{S_T0+1}, s34, {128*6144}\ns_lshl_b32 s6, s35, 7\ns_add_u32 s{S_T0+1}, s{S_T0+1}, s6\ns_lshl_b32 s{S_T0+2}, s34, 8")
    CI, WI = 144, 160
    for i in range(4): k.vmop(f"buffer_load_ushort v{CI+i}, v134, {sr(S_V,4)}, s{S_T0+2} offen offset:{64*i}", "PC")
    for i in range(4):
        k.vmop(f"buffer_load_dwordx4 {vr(WI+4*i,4)}, v133, {sr(S_O,4)}, s{S_T0+1} offen nt", f"PW{i}")
        if i < 3: k(f"s_add_u32 s{S_T0+1}, s{S_T0+1}, {32*6144}")
    k.srd(S_K, 54, FA + 256*4096, WS_FLAG)
    wl = OPT.wpl; mk = (1 << wl) - 1
    k(f"v_lshrrev_b32 v182, {wl}, v2\nv_and_b32 v181, {mk}, v2\nv_lshlrev_b32 v181, 2, v181\nv_lshl_add_u32 v182, v182, 7, v181")
    k(f"v_and_b32 v181, {((32 >> wl)*128 - 1)}, v182")
    k(f"s_lshl_b32 s6, s33, 12\ns_add_u32 s63, s6, {FA}\ns_cmp_eq_u32 s{S_WAVE}, 3\ns_cbranch_scc0 k1_nt")
    if OPT.ptouch: k(f"buffer_load_dword v179, v181, {sr(S_K,4)}, s63 offen\nbuffer_load_dword v179, v182, {sr(S_K,4)}, s63 offen offset:1024")
    k("k1_nt:")
    k("s_and_b32 s6, s2, 7\ns_lshl_b32 s6, s6, 2\ns_lshr_b32 s7, s2, 6\ns_add_u32 s6, s6, s7\ns_lshl_b32 s6, s6, 3\ns_bfe_u32 s7, s2, 0x30003\ns_add_u32 s6, s6, s7\ns_lshl_b32 s6, s6, 7")
    k(f"s_lshl_b32 s7, s5, 1\ns_bfe_u32 s{S_T0+3}, s2, 0x10005\ns_add_u32 s7, s7, s{S_T0+3}\ns_lshl_b32 s7, s7, 2\ns_and_b32 s{S_T0+3}, s2, 3\ns_add_u32 s7, s7, s{S_T0+3}")
    k(f"s_lshl_b32 s7, s7, 2\ns_bfe_u32 s{S_T0+3}, s2, 0x20003\ns_add_u32 s7, s7, s{S_T0+3}\ns_lshl_b32 s7, s7, 7\ns_lshl_b32 s{S_T0+3}, s{S_WAVE}, 15\ns_add_u32 s7, s7, s{S_T0+3}")
    k(f"s_cmp_eq_u32 s{S_WAVE}, 0\ns_cselect_b32 s6, s6, s7\nv_lshlrev_b32 v178, 2, v2\nv_and_b32 v178, 0x7c, v178\nv_mov_b32 v179, 0" .replace("v179, 0", "v180, 0"))
    k.vmop(f"buffer_store_dword v180, v178, {sr(S_K,4)}, s6 offen sc1", "PZ")
    k("s_cmp_lt_u32 s2, 192\ns_cbranch_scc1 k1_ncp")
    k(f"s_bfe_u32 s6, s2, 0x30003\ns_lshl_b32 s6, s6, 2\ns_add_u32 s6, s6, s{S_WAVE}\ns_cmp_ge_u32 s6, 10\ns_cbranch_scc1 k1_ncp")
    k.code_pf("k1_ncp", "code_end_marker", 176, S_T0+4, 6)
    k("k1_ncp:")
    after_loads()
    st(k, "q0")
    A = 216
    def ln_part(k):
        E, T = 192, 208
        def rowsum(r):
            for sh in (8, 4, 2, 1): k(f"s_nop 1\nv_add_f32 v{r}, v{r}, v{r} row_ror:{sh}")
            k(f"v_mov_b32 v{r+1}, v{r}\ns_nop 1\nv_permlane16_swap_b32 v{r+1}, v{r}\ns_nop 1\nv_add_f32 v{r}, v{r}, v{r+1}")
        for j in range(2):
            k.wait(vm=f"PX{j}")
            for d in range(4): k(f"v_lshlrev_b32 v{E+8*j+2*d}, 16, v{XI+4*j+d}\nv_and_b32 v{E+8*j+2*d+1}, 0xffff0000, v{XI+4*j+d}")
        for i in range(4): k(f"v_pk_add_f32 {vr(T+2*i,2)}, {vr(E+2*i,2)}, {vr(E+8+2*i,2)}")
        for i in range(2): k(f"v_pk_add_f32 {vr(T+2*i,2)}, {vr(T+2*i,2)}, {vr(T+4+2*i,2)}")
        k(f"v_pk_add_f32 {vr(T,2)}, {vr(T,2)}, {vr(T+2,2)}\nv_add_f32 v{T}, v{T}, v{T+1}")
        rowsum(T)
        k(f"v_mul_f32 v{T+2}, {hexf(-1/512)}, v{T}")
        for i in range(8): k(f"v_pk_add_f32 {vr(E+2*i,2)}, {vr(E+2*i,2)}, {vr(T+2,2)} op_sel_hi:[1,0]")
        for i in range(2): k(f"v_pk_mul_f32 {vr(T+2*i,2)}, {vr(E+2*i,2)}, {vr(E+2*i,2)}")
        for i in range(2, 8): k(f"v_pk_fma_f32 {vr(T+2*(i&1),2)}, {vr(E+2*i,2)}, {vr(E+2*i,2)}, {vr(T+2*(i&1),2)}")
        k(f"v_pk_add_f32 {vr(T,2)}, {vr(T,2)}, {vr(T+2,2)}\nv_add_f32 v{T}, v{T}, v{T+1}")
        rowsum(T)
        k(f"v_mov_b32 v{T+2}, {hexf(1e-5)}\nv_fmac_f32 v{T+2}, {hexf(1/512)}, v{T}\nv_rsq_f32 v{T+2}, v{T+2}")
        k(f"v_lshlrev_b32 v135, 7, v129\nv_lshl_add_u32 v135, v128, 4, v135\nv_add_u32 v135, {TRN}, v135")
        for i in range(8): k(f"v_pk_mul_f32 {vr(E+2*i,2)}, {vr(E+2*i,2)}, {vr(T+2,2)} op_sel_hi:[1,0]")
        for d in range(8): k(f"v_cvt_pk_f16_f32 v{XI+d}, v{E+2*d}, v{E+2*d+1}")
        k(f"ds_write_b128 v135, {vr(XI,4)}\nds_write_b128 v135, {vr(XI+4,4)} offset:4096")
    def mod_part(k):
        k.wait(vm="PC")
        for i in range(4): k(f"v_lshlrev_b32 v{CI+i}, 16, v{CI+i}")
        for i in range(4): k(f"v_mul_f32 v{CI+4+i}, {hexf(-math.log2(math.e))}, v{CI+i}")
        for i in range(4): k(f"v_exp_f32 v{CI+4+i}, v{CI+4+i}")
        k("s_nop 0")
        for i in range(4): k(f"v_add_f32 v{CI+4+i}, 1.0, v{CI+4+i}")
        for i in range(4): k(f"v_rcp_f32 v{CI+4+i}, v{CI+4+i}")
        k("s_nop 0")
        for i in range(4): k(f"v_mul_f32 v{CI+i}, v{CI+i}, v{CI+4+i}")
        for i in range(4): k(f"v_cvt_pk_bf16_f32 v{CI+4+i}, v{CI+i}, v{CI+i}")
        for i in range(4): k(f"v_and_b32 v{CI+8+2*i}, 0xffff0000, v{CI+4+i}")
        A = 216
        for i in range(4):
            k.wait(vm=f"PW{i}")
            for d in range(4):
                w = WI+4*i+d; t = 224 + 2*(d & 1)*2
                k(f"v_lshlrev_b32 v{t}, 16, v{w}\nv_and_b32 v{t+1}, 0xffff0000, v{w}")
                if i == 0: k(f"v_pk_mul_f32 {vr(A+2*d,2)}, {vr(t,2)}, {vr(CI+8+2*i,2)} op_sel_hi:[1,0]")
                else: k(f"v_pk_fma_f32 {vr(A+2*d,2)}, {vr(t,2)}, {vr(CI+8+2*i,2)}, {vr(A+2*d,2)} op_sel_hi:[1,0,1]")
        k("v_lshlrev_b32 v130, 5, v132\nv_and_b32 v131, 16, v2")
        for e in range(8): k(f"v_add_f32 v{A+e}, v{A+e}, v{A+e} row_ror:8")
        k("v_add_u32 v130, v130, v131\nv_lshrrev_b32 v131, 2, v2")
        for e in range(4): k(f"v_permlane16_swap_b32 v{A+e}, v{A+4+e}")
        k("v_and_b32 v131, 8, v131\nv_add_u32 v130, v130, v131")
        for e in range(4): k(f"v_add_f32 v{A+e}, v{A+e}, v{A+4+e}")
        k(f"v_lshl_add_u32 v130, v1, 8, v130\nv_add_u32 v130, {RED}, v130")
        for e in range(2): k(f"v_permlane32_swap_b32 v{A+e}, v{A+2+e}")
        k(f"v_lshlrev_b32 v133, 4, v0\nv_add_u32 v133, {TRN}, v133")
        for e in range(2): k(f"v_add_f32 v{A+e}, v{A+e}, v{A+2+e}")
        k(f"ds_write_b64 v130, {vr(A,2)}")
    if OPT.ilv:
        k.wait(vm="PC")
        class Rec:
            def __init__(s_): s_.L = []
            def __call__(s_, t): s_.L += [x for x in t.split("\n") if x.strip()]
            def wait(s_, **kw): s_.L.append(kw)
        a, b = Rec(), Rec(); ln_part(a); mod_part(b)
        a.L = [x for x in a.L if not (isinstance(x, str) and x.startswith("s_nop"))]
        na, nb = len(a.L), len(b.L); ia = ib = 0
        def put(x): k.wait(**x) if isinstance(x, dict) else k(x)
        while ia < na or ib < nb:
            if ia < na:
                x = a.L[ia]
                dep = isinstance(x, str) and ("row_ror" in x or "swap" in x or (ia and isinstance(a.L[ia-1], str) and ("swap" in a.L[ia-1] or "rsq" in a.L[ia-1])))
                if dep:
                    n0 = len(k.L)
                    while len(k.L) - n0 < 2:
                        if ib < nb: put(b.L[ib]); ib += 1
                        else: k("s_nop 0")
                put(x); ia += 1
            else:
                put(b.L[ib]); ib += 1
    else:
        ln_part(k); st(k, "q1"); mod_part(k)
    k(f"v_lshlrev_b32 v134, 2, v2\nv_add_u32 v135, {RED}, v134\nv_lshrrev_b32 v131, 3, v0\nv_lshlrev_b32 v131, 8, v131\nv_lshl_add_u32 v131, v132, 4, v131")
    k.srd(S_K, 54, 2048*1024, WS_XH)
    k.srd(S_V, 54, 4*12288, WS_MODP)
    k(f"s_lshr_b32 s{S_T0}, s33, 1\ns_lshl_b32 s{S_T0}, s{S_T0}, 14\ns_and_b32 s6, s33, 1\ns_lshl_b32 s6, s6, 7\ns_add_u32 s{S_T0}, s{S_T0}, s6\ns_add_u32 s{S_T0+1}, s{S_T0}, 8192")
    k(f"s_mul_i32 s{S_T0+2}, s34, 12288\ns_lshl_b32 s6, s35, 8\ns_add_u32 s{S_T0+2}, s{S_T0+2}, s6\ns_cmp_eq_u32 s{S_WAVE}, 0\ns_cselect_b32 s{S_V+2}, s{S_V+2}, 0")
    st(k, "q2")
    k("s_waitcnt lgkmcnt(0)\ns_barrier")
    for i in range(4): k(f"ds_read_b32 v{A+i}, v135 offset:{256*i}")
    k(f"ds_read_b128 {vr(XI,4)}, v133\nds_read_b128 {vr(XI+4,4)}, v133 offset:4096\ns_waitcnt lgkmcnt(2)")
    k(f"v_pk_add_f32 {vr(A,2)}, {vr(A,2)}, {vr(A+2,2)}\nv_add_f32 v{A}, v{A}, v{A+1}")
    k.vmop(f"buffer_store_dword v{A}, v134, {sr(S_V,4)}, s{S_T0+2} offen sc1", "PS")
    k("s_waitcnt lgkmcnt(1)")
    k.vmop(f"buffer_store_dwordx4 {vr(XI,4)}, v131, {sr(S_K,4)}, s{S_T0} offen sc1", "PS")
    k("s_waitcnt lgkmcnt(0)")
    k.vmop(f"buffer_store_dwordx4 {vr(XI+4,4)}, v131, {sr(S_K,4)}, s{S_T0+1} offen sc1", "PS")
    k.srd(S_O, 54, FA + 256*4096, WS_FLAG)
    k(f"v_mov_b32 v128, 0x{MAGIC:x}\nv_mov_b32 v129, 0")
    word = lambda src, dst: f"s_lshr_b32 s7, {src}, {wl}\ns_lshl_b32 s7, s7, 7\ns_and_b32 {dst}, {src}, {mk}\ns_lshl_b32 {dst}, {dst}, 2\ns_add_u32 {dst}, {dst}, s7"
    k(word("s4", f"s{S_T0}") + f"\nv_lshlrev_b32 v130, 12, v2\ns_lshl_b32 s6, s5, 17\ns_add_u32 s6, s6, {FA}\ns_add_u32 s{S_T0}, s{S_T0}, s6")
    k("v_lshlrev_b32 v131, 12, v0\ns_lshl_b32 s6, s34, 4\ns_add_u32 s6, s6, s35\n" + word("s6", f"s{S_T0+1}") + f"\ns_add_u32 s{S_T0+1}, s{S_T0+1}, {FA+1024}")
    k("s_lshl_b32 s6, s34, 5\ns_add_u32 s6, s6, s35\ns_sub_u32 s6, s6, 16")
    k(f"s_lshr_b32 s7, s6, 2\ns_lshl_b32 s7, s7, 12\ns_and_b32 s6, s6, 3\ns_lshl_b32 s6, s6, 2\ns_add_u32 s6, s6, s7\ns_add_u32 s{S_T0+2}, s6, {FA+3072}\nv_lshlrev_b32 v132, 17, v2")
    if OPT.dflag: k.srd(S_V, 100, 256)
    after_stores()
    k.wait(vm="PS", barrier=True)
    st(k, "q3")
    k("s_cmp_ge_u32 s2, 192\ns_cbranch_scc1 k1_pf1\ns_cmp_ge_u32 s35, 16\ns_cbranch_scc1 k1_pf0")
    if OPT.dflag:
        k(f"s_cmp_eq_u32 s{S_WAVE}, 2\ns_cbranch_scc0 k1_pf1\ns_sub_u32 s6, s{S_T0+1}, {FA+128}\ns_mov_b64 exec, 1")
        k(f"buffer_store_dword v128, v129, {sr(S_V,4)}, s6 offen sc1\ns_mov_b64 exec, -1\ns_branch k1_pf1")
    else:
        k(f"buffer_store_dword v128, v131, {sr(S_O,4)}, s{S_T0+1} offen sc1\ns_branch k1_pf1")
    k("k1_pf0:")
    k(f"s_cmp_eq_u32 s{S_WAVE}, 2\ns_cbranch_scc0 k1_pf1\ns_mov_b64 exec, 0xff")
    k(f"buffer_store_dword v128, v132, {sr(S_O,4)}, s{S_T0+2} offen sc1\ns_mov_b64 exec, -1")
    k("k1_pf1:")
    k(f"s_cmp_eq_u32 s{S_WAVE}, 1\ns_cbranch_scc0 k1_pf2\ns_mov_b32 exec_hi, 0")
    k(f"buffer_store_dword v128, v130, {sr(S_O,4)}, s{S_T0} offen sc1\ns_mov_b64 exec, -1")
    k("k1_pf2:")
    after_flags()
    k(f"s_cmp_eq_u32 s{S_WAVE}, 0\ns_cbranch_scc0 k1_pf4\ns_mov_b32 s7, 0")
    if OPT.pd0: k(f"s_sleep {OPT.pd0}")
    k("k1_pf3:")
    k(f"buffer_load_dword v130, v181, {sr(S_O,4)}, s63 offen sc1")
    k((f"buffer_load_dword v131, v134, {sr(S_V,4)}, 0 offen sc1" if OPT.dflag else f"buffer_load_dword v131, v182, {sr(S_O,4)}, s63 offen offset:1024 sc1") + "\ns_waitcnt vmcnt(0)")
    k("v_cmp_ne_u32 vcc, v128, v130\nv_cmp_ne_u32 s[40:41], v128, v131\ns_or_b64 vcc, vcc, s[40:41]")
    k("s_cbranch_scc0 k1_pf5\ns_add_u32 s7, s7, 1\ns_cmp_lt_u32 s7, 0x10000\ns_cbranch_scc1 k1_pf3")
    k("k1_pf5:")
    k(f"buffer_store_dword v129, v181, {sr(S_O,4)}, s63 offen")
    if not OPT.dflag: k(f"buffer_store_dword v129, v182, {sr(S_O,4)}, s63 offen offset:1024")
    k("k1_pf4:")
    k("s_barrier")
    st(k, "q4")
```

```python
from common import *
from sched import fill, L, V, W, front, emit, It, merge
from k0 import mod_loads, mod_finish, C1
import k1t, k1p

MF = "v_mfma_f32_16x16x32_bf16"

SLOT = 16384
KB = 0
VB = 65536
PARB = 9*SLOT
FLAGB = PARB + 4096
WSLOT = [1, 4, 2, 5, 3, 6, 7, 8]

def O(db, qb): return (db*4+qb)*4
def LA(qb): return 128 + qb*4
def KF(i): return 144 + i*4
def VF(i): return 176 + i*4
ONES = 240
def Q(qb, s): return 128 + (qb*4+s)*4
def S(buf, kb, qb): return 64 + buf*32 + (kb*4+qb)*4
def P(buf, qb): return (32 + buf*16 if buf < 2 else 208 + (buf-2)*16) + qb*4
def MN(qb): return 192 + qb*4
V_KA = 8
V_VA = 12
V_DK = 20
V_DV = 24
V_L16 = 26
V_LS = 28
V_PF = 2
V_T = 208
def XR(slot, qb): return 128 + ((slot%4)*4+qb)*4
def QA(t, qb): return vr(192 + (qb*8+t)*4, 4) if qb < 2 else ar(((qb-2)*8+t)*4, 4)
def HK(b): return (lambda i: 64 + b*32 + i*4)
def HF(buf, qb): return 32 + (buf*4+qb)*4
def PAR(buf): return 64 + buf*16
V_PT = 96
V_WA = 112
V_DW = 124
V_PA = 125
def WF(buf, t): return 128 + (buf*8+t)*4
S_K, S_V, S_W, S_X, S_M, S_O = 8, 12, 16, 20, 24, 28
S_W4 = 32
S_KOFF, S_VOFF = 33, 34
S_CNT = 35
S_T0 = 36
S_RERUN = 44
S_WAVE = 45
S_W1 = 62

def emit_phase(k, mf, gaps):
    for f in gaps.get(-1, []): f(k) if callable(f) else k(f)
    for i, m in enumerate(mf):
        k(m)
        for f in gaps.get(i, []): f(k) if callable(f) else k(f)
    for g in gaps:
        assert g < len(mf), (g, len(mf))

def add(gaps, g, *items):
    gaps.setdefault(g, []).extend(items)

def qk_mfmas(buf, kf=KF, czero=False):
    r = []
    order = {0: [(kb,s,qb) for kb in range(2) for s in range(4) for qb in range(4)],
             1: [(kb,s,qb) for kb in range(2) for qb in range(4) for s in range(4)],
             2: [(kb,s,qb) for qb in range(4) for s in range(4) for kb in range(2)],
             4: [(kb,s if qb%2==0 else 3-s,qb) for kb in range(2) for qb in range(4) for s in range(4)],
             5: [(kb,s if kb%2==0 else 3-s,qb) for qb in range(4) for kb in range(2) for s in range(4)],
             3: [(kb,s,qb if s%2==0 else 3-qb) for kb in range(2) for s in range(4) for qb in range(4)]}[OPT.qko]
    seen = set()
    for kb, s, qb in order:
            if True:
                d = vr(S(buf, kb, qb), 4)
                started = (kb, qb) in seen; seen.add((kb, qb))
                c = d if started else ("0" if czero else vr(MN(qb), 4))
                r.append(f"{MF} {d}, {ar(kf(kb*4+s),4)}, {vr(Q(qb,s),4)}, {c}")
    return r

def pv_mfmas(buf, sumq, vf=VF, czero=False):
    r = []
    for qb in sumq:
        d = ar(LA(qb), 4)
        r.append(f"{MF} {d}, {ar(ONES,4)}, {vr(P(buf,qb),4)}, {'0' if czero else d}")
    order = {0: [(db,qb) for db in range(8) for qb in range(4)],
             1: [(db,qb) for qb in range(4) for db in range(8)],
             3: [(db if qb%2==0 else 7-db,qb) for qb in range(4) for db in range(8)],
             2: [(db,qb if db%2==0 else 3-qb) for db in range(8) for qb in range(4)]}[OPT.pvo]
    for db, qb in order:
        if True:
            d = ar(O(db, qb), 4)
            r.append(f"{MF} {d}, {ar(vf(db),4)}, {vr(P(buf,qb),4)}, {'0' if czero else d}")
    return r

def exps(buf, qbs):
    r = []
    for qb in qbs:
        for kb in range(2):
            for i in range(4):
                x = S(buf, kb, qb) + i
                r.append(f"v_exp_f32{OPT.e64} v{x}, v{x}")
    return r
def cvts(buf, qbs, pb=None):
    pb = buf if pb is None else pb
    r = []
    for qb in qbs:
        for kb in range(2):
            for h in range(2):
                x = S(buf, kb, qb) + 2*h
                r.append(f"v_cvt_pk_bf16_f32 v{P(pb,qb)+kb*2+h}, v{x}, v{x+1}" if not OPT.trunc else f"v_perm_b32 v{P(pb,qb)+kb*2+h}, v{x+1}, v{x}, s53")
    return r
def adds(buf, qbs, addq):
    r = []
    for qb in qbs:
        for kb in range(2):
            for i in range(4):
                x = S(buf, kb, qb) + i
                r.append(f"v_add_f32{OPT.a64} v{V_LS+qb}, v{x}, v{V_LS+qb}" if qb in addq else None)
    return r
def kreads(slot, blk, kf=KF):
    r = []
    for kb in range(2):
        for s in range(4):
            r.append(f"ds_read_b128 {ar(kf(kb*4+s),4)}, v{V_KA+s} offset:{KB+slot*SLOT+blk*8192+kb*4096}")
    return r
def vreads(slot, blk, vf=VF):
    r = []
    for db in range(8):
        for h in range(2):
            r.append(f"ds_read_b64_tr_b16 {ar(vf(db)+2*h,2)}, v{V_VA+db} offset:{slot*SLOT+blk*8192+h*4096}")
    return r
def dma_k(p): return f"buffer_load_dwordx4 v{V_DK+p}, {sr(S_K,4)}, s{S_KOFF} offen offset:{p*1024} {OPT.kvnt} lds"
def dma_v(p): return f"buffer_load_dwordx4 v{V_DV+(p&1)}, {sr(S_V,4)}, s{S_VOFF} offen offset:{p*1024} {OPT.kvnt} lds"

class Cfg:
    la = 4
    wb4 = 0
    nvm = 8
    npk = 5
    ne1 = 33
    nv1 = 11
    v19 = 1
    wb = 0
    pfo = 2
    pfc = (5, 2, 9)
    ppf = 0
    wocnt = 1
    bar2 = 0
    kvspread = 1
    w1pf = 0
    fine = 0
    kvper = 7
    x = 0
    pf = 2
    sumq = [1, 3]
    def addq(self): return [q for q in range(4) if q not in self.sumq]

def pv2_mfmas(pb, sumq, czero=False, order=None):
    r = []
    n = 0
    def pair(d, a0, a1, qb):
        nonlocal n
        js = (0, 1) if n % 2 == 0 else (1, 0); n += 1
        for i, j in enumerate(js):
            r.append(f"{MF} {d}, {ar(a1 if j else a0,4)}, {vr(P(pb+j,qb),4)}, {'0' if (czero and i == 0) else d}")
    for qb in sumq: pair(ar(LA(qb), 4), ONES, ONES, qb)
    for db in range(8):
        for q in range(4):
            qb = q if db % 2 == 0 else 3 - q
            pair(ar(O(db, qb), 4), VF(db), VF(8+db), qb)
    return r

def sm_stream(cfg, u):
    qs = range(4)
    E = exps(u & 1, qs); C = cvts(u & 1, qs, u & 3); A = adds(u & 1, qs, cfg.addq())
    r = []
    for i, e in enumerate(E):
        f = [A[i]] if A[i] else []
        if i % 2 == 1: f.append(C[i//2])
        r.append((e, f))
    return r

def vreads2(slot):
    r = []
    for db in range(8):
        for blk in range(2):
            for h in range(2):
                r.append((db, L(f"ds_read_b64_tr_b16 {ar(VF(8*blk+db)+2*h,2)}, v{V_VA+db} offset:{slot*SLOT+blk*8192+h*4096}", "V")))
    return r

def pack(k, mf, fixed, stream, lds, vm, deadlines=(), keep=False):
    n = len(mf)
    stream = list(stream); lds = list(lds); vm = list(vm)
    ready = []
    k.run(fixed.get(-1, []))
    ne = len(stream); ie = 0
    lastvm = -9; vm0 = list(vm)
    for g in range(n):
        k(mf[g]); k.run(fixed.get(g, []))
        left = 2
        if OPT.barfree and any(isinstance(x, str) and "s_barrier" in x for x in fixed.get(g, [])): left = 2 - OPT.barfree
        want_e = ie < ne and g < n-1 and (g % 2 == 0 or (ne - ie) > (n - g)//2)
        if g % 2 == 1 or not want_e:
            if vm and vm[0][0] <= g and g - lastvm >= (OPT.vsp if len(vm0) <= 8 else 4) and not (lds and lds[0][0] <= g and lds[0][2:] == ('urgent',)):
                k.run(vm.pop(0)[1]); left -= 2; lastvm = g
            else:
                c = [x for x in lds if x[0] <= g]
                c.sort(key=lambda x: 0 if len(x) > 2 else 1)
                if c:
                    lds.remove(c[0]); k.run([c[0][1]]); left -= 1
                    rem = len([y for y in range(g+1, n) if y % 2 == 1]) - 3
                    if len(c) > 1 and len(lds) + len(vm) > rem:
                        lds.remove(c[1]); k.run([c[1][1]]); left -= 1
        if want_e:
            e, f = stream[ie]; k(e); left -= 2
            ready += [(g, ie, x) for x in f]; ie += 1
        must = [x for x in ready if any(x[1] < idx and g + 1 >= dl for idx, dl in deadlines)]
        while ready and ready[0][0] < g and (left > 0 or ready[0] in must or len(ready) > OPT.bk or g == n-1):
            k(ready.pop(0)[2]); left -= 1
    assert ie == ne and not vm and not ready and (keep or not lds), (ie, ne, len(lds), len(vm), ready)
    return lds

R1 = 16

def iteration(k, cfg, t4, part="all", czero=False, pf=(), post=(), label=None, extra=()):
    ks = t4; vs = (t4 - 1) % 4; u = 2*t4
    k.c(f"---- iteration T%4={t4} {part} ----")
    ns = 2*len(cfg.sumq)
    pv = pv2_mfmas((u - 4) & 3, cfg.sumq, czero); npv = len(pv)
    st = sm_stream(cfg, u - 2)[32-R1:] + sm_stream(cfg, u - 1) + sm_stream(cfg, u)[:32-R1]
    dmas = [[f"s_add_u32 m0, s{S_W4}, {KB + ((t4+3)%4)*SLOT}\ns_nop 0" if p == 0 else "", dma_k(p)] for p in range(4)]
    dmas += [[f"s_add_u32 m0, s{S_W4}, {VB + ((t4+2)%4)*SLOT}\ns_add_u32 s{S_KOFF}, s{S_KOFF}, {SLOT}" if p == 0 else "", dma_v(p)] for p in range(4)]
    dmas[-1].append(f"s_add_u32 s{S_VOFF}, s{S_VOFF}, {SLOT}")
    ka = [L(x, "KA") for x in kreads(ks, 0)]; kb = kreads(ks, 1)
    vr_ = vreads2(vs)
    NE1 = cfg.ne1
    NV1 = cfg.nv1
    nvm = 16 if not (cfg.pf and cfg.pfo and cfg.v19) else (18 if part == "pv" else 19)
    bar = {ns-1: [f"s_waitcnt vmcnt({nvm}) lgkmcnt(0)\ns_barrier"]}
    if part == "tail":
        k.lg = []
        if OPT.fa and (OPT.na0 or OPT.na1): bar = {ns-1: ["s_waitcnt vmcnt(0) lgkmcnt(0)\ns_barrier"]}
        return pack(k, pv, bar, st[:R1+32], [(ns + 8*db + 7, x) for db, x in vr_], [(ns, x) for x in extra], keep=True)
    if part in ("all", "pv"):
        k.lg = []
        lds = [(ns, x) for x in ka] + [(ns + 8*db + 7, x) for db, x in vr_[:NV1]]
        pack(k, pv, bar, st[:NE1], lds, [(ns + OPT.v0, d) for d in dmas])
    if label: k(f"{label}:")
    if part in ("all", "first"):
        vm = [(40, [pf[1]])] if pf else []
        fixed = {-1: [W(lg="KA")], 30: [W(lg="KB0")], 46: [W(lg="KB1")]}
        if pf: fixed[38] = [pf[0]]
        if part == "first":
            NE1 = R1; NV1 = 0; k.lg = []
            fixed[-1] = ["s_waitcnt lgkmcnt(0)"]
            vm = [(2, [kv_setup(wh, t), dma_k(p) if wh == 'K' else dma_v(p)]) for wh, t in (('V',2),('K',4),('V',3)) for p in range(4)]
            if cfg.v19:
                dummy = f"s_mov_b32 s6, 0x80000\nbuffer_load_dword v{V_PF+3}, v{V_PF}, {sr(S_O,4)}, s6 offen"
                vm[3][1].append(dummy); vm[11][1].append(dummy)
            post = [f"s_mov_b32 s{S_KOFF}, {5*SLOT}\ns_mov_b32 s{S_VOFF}, {4*SLOT}"]
        lds = [(0, x) for db, x in vr_[NV1:]] + [(15, L(x, "KB0"), 'urgent') for x in kb[:4]] + [(31, L(x, "KB1"), 'urgent') for x in kb[4:]]
        pack(k, qk_mfmas(0) + qk_mfmas(1), fixed, st[NE1:], lds, vm, deadlines=[(R1 + 32 - NE1, 40)])
    for f in post: k(f)

def kv_setup(which, tile):
    if which == 'K': return f"s_add_u32 m0, s{S_W4}, {KB + (tile%4)*SLOT}\ns_mov_b32 s{S_KOFF}, {tile*SLOT}"
    return f"s_add_u32 m0, s{S_W4}, {VB + (tile%4)*SLOT}\ns_mov_b32 s{S_VOFF}, {tile*SLOT}"
def kv_group(which, tile):
    return [[kv_setup(which, tile), V(dma_k(p) if which == 'K' else dma_v(p), f"{which}{tile}")] for p in range(4)]

def rowmax_cross(k, regs, tmp):
    for sw in ("v_permlane32_swap_b32", "v_permlane16_swap_b32"):
        for i, r in enumerate(regs): k(f"v_mov_b32 v{tmp+i}, v{r}")
        k("s_nop 1")
        for i, r in enumerate(regs): k(f"{sw} v{tmp+i}, v{r}")
        k("s_nop 1")
        for i, r in enumerate(regs): k(f"v_max_f32 v{r}, v{r}, v{tmp+i}")

def gen_k1(cfg=None, prof=False):
    cfg = cfg or Cfg()
    k = Kern(NAME + "_kernel" if OPT.mk0 else "k1_attn_kernel", 256, 256, 160*1024, 512, 256, 102 if OPT.ff else (96 if prof else 64))
    k.prof = prof
    end = "k1_end"
    k(f"s_cmp_ge_u32 s2, 256\ns_cbranch_scc1 {end}")
    k.stamp(0)
    k.dbg_begin(1)
    k(f"s_load_dwordx2 s[52:53], s[0:1], {KA_WQ}")
    k(f"s_load_dwordx2 s[54:55], s[0:1], {KA_WS}")
    def more_ptrs():
        k(f"s_load_dwordx4 s[48:51], s[0:1], {KA_K}")
        k(f"s_load_dwordx2 s[46:47], s[0:1], {KA_WO}")
        k(f"s_load_dwordx4 s[56:59], s[0:1], {KA_WG}")
        k(f"s_load_dwordx2 s[60:61], s[0:1], {KA_WD}")
        if OPT.ff: k(f"s_load_dwordx2 s[98:99], s[0:1], {KA_OUT}")
        if OPT.mk0: k(f"s_load_dwordx4 s[{'64:67' if not prof else '92:95'}], s[0:1], {KA_C}")
        if OPT.mk0 and OPT.dflag: k(f"s_load_dwordx2 s[100:101], s[0:1], {KA_DBG}")
        k(f"s_load_dwordx2 s[0:1], s[0:1], {KA_X}")
    if OPT.mk0 or not OPT.lateptr: more_ptrs()
    k("v_lshrrev_b32 v1, 6, v0")
    k("v_and_b32 v2, 63, v0")
    k(f"v_readfirstlane_b32 s{S_WAVE}, v1")
    m = OPT.map4
    k(f"s_and_b32 s4, s2, {(8>>m)-1}\ns_bfe_u32 s5, s2, {((2+m)<<16)|3}\ns_lshl_b32 s5, s5, {3-m}\ns_add_u32 s4, s4, s5")
    k(f"s_bfe_u32 s5, s2, {(m<<16)|(3-m)}\ns_lshl_b32 s5, s5, {3-m}\ns_lshr_b32 s6, s2, {5+m}\ns_add_u32 s5, s5, s6")
    k(f"s_lshl_b32 s{S_W4}, s{S_WAVE}, 12")
    k(f"s_mov_b32 s{S_RERUN}, 0")
    k("v_lshrrev_b32 v3, 4, v2")
    k("v_and_b32 v4, 15, v2")
    k("v_lshrrev_b32 v5, 2, v4")
    k("v_and_b32 v6, 3, v2")
    k(f"v_lshlrev_b32 v{V_L16}, 4, v2")
    k("v_lshlrev_b32 v7, 2, v3\nv_xor_b32 v7, v7, v4\nv_lshlrev_b32 v7, 4, v7")
    k(f"v_lshl_add_u32 v{V_DW}, v1, 2, v3\nv_lshl_add_u32 v{V_DW}, v{V_DW}, 13, v7")
    k(f"s_lshl_b32 s{S_W1}, s{S_WAVE}, 10")
    if OPT.mk0: k1p.pre_wait(k)
    k("s_waitcnt lgkmcnt(0)")
    if OPT.lateptr and not OPT.mk0: more_ptrs()
    k("s_lshl_b32 s6, s4, 8")
    k(f"s_add_u32 s{S_W}, s52, s6\ns_addc_u32 s{S_W+1}, s53, 0\ns_sub_u32 s{S_W+2}, {512*8192}, s6\ns_mov_b32 s{S_W+3}, 0x20000")
    k.srd(S_M, 54, 4*12288, WS_MODP)
    k(f"s_lshl_b32 s6, s5, 2\ns_add_u32 s6, s6, s{S_WAVE}\ns_lshl_b32 s7, s6, 16")
    k(f"s_add_u32 s7, s7, 0x{WS_XH:x}")
    k(f"s_add_u32 s{S_X}, s54, s7\ns_addc_u32 s{S_X+1}, s55, 0\ns_mov_b32 s{S_X+2}, 0x10000\ns_mov_b32 s{S_X+3}, 0x20000")
    def w_step(j, st0=S_T0):
        r = []
        for p in range(2):
            st = st0 + p
            r.append([f"s_add_u32 m0, s{S_W1}, {WSLOT[j>>1]*SLOT + (j&1)*8192 + p*4096}\ns_mov_b32 s{st}, {(j*32 + p*16)*8192}",
                      lambda kk, st=st: kk.vmop(f"buffer_load_dwordx4 v{V_DW}, {sr(S_W,4)}, s{st} offen {OPT.wqnt} lds", f"W{j}")])
        return r
    def x_loads(j):
        r = []
        for qb in range(4):
            st = S_T0 + 4 + qb
            r.append([f"s_mov_b32 s{st}, {qb*16384 + (j>>2)*4096}",
                      lambda kk, qb=qb, st=st: kk.vmop(f"buffer_load_dwordx4 {vr(XR(j,qb),4)}, v{V_L16}, {sr(S_X,4)}, s{st} offen offset:{(j&3)*1024} {'sc1' if OPT.mk0 else ''}", f"X{j}" if j else f"X0_{qb}")])
        return r
    def run(items):
        for f in items:
            if isinstance(f, list): run(f)
            else: f(k) if callable(f) else k(f)
    LA_ = cfg.la
    def rem_srds():
        k("s_lshl_b32 s6, s4, 19")
        k(f"s_add_u32 s{S_K}, s48, s6\ns_addc_u32 s{S_K+1}, s49, 0\ns_mov_b32 s{S_K+2}, 0x80000\ns_mov_b32 s{S_K+3}, 0x20000")
        k(f"s_add_u32 s{S_V}, s50, s6\ns_addc_u32 s{S_V+1}, s51, 0\ns_mov_b32 s{S_V+2}, 0x80000\ns_mov_b32 s{S_V+3}, 0x20000")
        k(f"s_lshl_b32 s6, s5, 2\ns_add_u32 s6, s6, s{S_WAVE}\ns_lshl_b32 s6, s6, 19\ns_lshl_b32 s7, s4, 12\ns_add_u32 s6, s6, s7")
        k(f"s_add_u32 s6, s6, 0x{WS_OF:x}")
        k(f"s_add_u32 s{S_O}, s54, s6\ns_addc_u32 s{S_O+1}, s55, 0\ns_mov_b32 s{S_O+2}, {3*131072+4096}\ns_mov_b32 s{S_O+3}, 0x20000")
    def addr_setup():
        k("v_lshl_add_u32 v7, v3, 3, v5\nv_lshlrev_b32 v7, 8, v7\nv_lshl_add_u32 v7, v6, 4, v7")
        for s in range(4):
            k(f"v_xor_b32 v27, {s}, v5\nv_lshl_add_u32 v{V_WA+s}, v27, 6, v7")
            k(f"v_add_u32 v{V_WA+4+s}, 0x10000, v{V_WA+s}\nv_add_u32 v{V_WA+8+s}, 0x20000, v{V_WA+s}")
        k(f"v_lshlrev_b32 v{V_PA}, 5, v3\nv_add_u32 v{V_PA}, {PARB}, v{V_PA}")
        for s in range(4):
            k(f"v_or_b32 v27, {4*s}, v3\nv_xor_b32 v27, v27, v4\nv_lshlrev_b32 v27, 4, v27\nv_lshl_add_u32 v{V_KA+s}, v4, 8, v27")
        k("v_lshl_add_u32 v7, v3, 2, v5\nv_and_b32 v27, 7, v7\nv_lshlrev_b32 v7, 8, v7\nv_lshl_add_u32 v7, v6, 3, v7")
        k(f"v_add_u32 v7, {VB}, v7")
        for db in range(8):
            k(f"v_xor_b32 v30, {db}, v27\nv_lshl_add_u32 v{V_VA+db}, v30, 5, v7")
        k("v_lshlrev_b32 v7, 8, v3\nv_lshl_add_u32 v7, v1, 12, v7")
        for p in range(4):
            k(f"v_or_b32 v27, {4*p}, v3\nv_xor_b32 v27, v27, v4\nv_lshl_add_u32 v{V_DK+p}, v27, 4, v7")
        for p in range(2):
            k(f"v_or_b32 v27, {4*p}, v3\nv_lshlrev_b32 v27, 1, v27\nv_xor_b32 v27, v27, v4\nv_lshl_add_u32 v{V_DV+p}, v27, 4, v7")
        k("v_mov_b32 v27, 0x3f803f80")
        for i in range(4): k(f"v_accvgpr_write_b32 a{ONES+i}, v27")
    k("v_lshlrev_b32 v31, 4, v0")
    wdone = 0
    if OPT.mk0:
        n0, n1, n2 = OPT.mw0, OPT.mw0 + OPT.mw1, OPT.mw0 + OPT.mw1 + OPT.mw2
        k1p.CP = 64 if not prof else 92
        sv = lambda a, b: [run(w_step(j, S_T0+6)) for j in range(a, b)]
        k1p.body(k, lambda: sv(0, n0), lambda: sv(n0, n1), lambda: (sv(n1, n2), addr_setup()))
        wdone = n2
        mod_loads(k, S_M, 31, S_T0, V_PT, 0, "M", "sc1")
        run(x_loads(0)); rem_srds()
    else:
        mod_loads(k, S_M, 31, S_T0, V_PT, 0, "M")
        run(w_step(0)); run(x_loads(0))
        addr_setup(); k("s_waitcnt lgkmcnt(0)"); rem_srds()
    w_step0 = w_step
    w_step = lambda j: w_step0(j) if j >= wdone else []
    def wreads(j):
        c = j >> 1; base = WSLOT[c]*SLOT; bank = base >> 16; off = (base & 0xffff) + (j & 1)*8192
        return [L(f"ds_read_b64_tr_b16 {ar(WF(j&1,t)+2*h,2)}, v{V_WA+4*bank+(t>>1)} offset:{off + h*1024 + 8*(t&1)}", f"R{j}_{t}")
                for t in range(8) for h in range(2)]
    def preads(j):
        b = PAR(j & 1)
        return [L(f"ds_read_b128 {vr(b+4*i,4)}, v{V_PA} offset:{j*128 + (i&1)*16 + (i>>1)*2048}", f"P{j}") for i in range(4)]
    def hcalc(j):
        b = PAR(j & 1); r = []
        for qb in range(4):
            t = V_PT + (qb & 1)*8
            for i in range(8):
                r.append(f"v_fma_mix_f32 v{t+i}, v{XR(j,qb)+(i>>1)}, v{b+8+i}, v{b+i} op_sel:[{i&1},0,0] op_sel_hi:[1,0,0]")
            for d in range(4):
                r.append(f"v_cvt_pk_bf16_f32 v{HF(j&1,qb)+d}, v{t+2*d}, v{t+2*d+1}")
        return r
    k(f"s_cmp_ge_u32 s{S_WAVE}, 2\ns_cselect_b32 s6, 1.0, 0\nv_add_u32 v31, {PARB}, v31")
    k.vmwait("M")
    mod_finish(k, V_PT, 6, C1)
    k(f"ds_write_b128 v31, {vr(V_PT,4)}")
    if OPT.modk1 and not OPT.ff:
        k("s_cmp_ge_u32 s2, 2\ns_cbranch_scc1 k1_nomod\nv_lshlrev_b32 v30, 4, v0\ns_add_u32 s7, s2, 1\ns_lshl_b32 s7, s7, 12")
        mod_loads(k, S_M, 30, S_T0, 192, "s7")
        k(f"s_lshl_b32 s6, s2, 1\ns_cmp_lt_u32 s{S_WAVE}, s6\ns_cselect_b32 s6, 1.0, 0\ns_sub_u32 s{S_M}, s{S_M}, {WS_MODP - WS_MOD}\ns_subb_u32 s{S_M+1}, s{S_M+1}, 0\ns_waitcnt vmcnt(0)")
        mod_finish(k, 192, 6)
        k(f"buffer_store_dwordx4 v[192:195], v30, {sr(S_M,4)}, s7 offen\ns_waitcnt vmcnt(0)")
        k("k1_nomod:")
    run(x_loads(1)); run(w_step(1))
    k.vmwait("W0", "lgkmcnt(0)"); k("s_barrier")
    run(preads(0)); run(preads(1)); run(wreads(0))
    assert LA_ == 4
    pend = [g for j in range(2, LA_) for g in x_loads(j) + w_step(j)]
    k.wait(lg="P0")
    k.stamp(1) if cfg.fine < 2 else k1t.st(k, 'q5')
    for i, v in enumerate(hcalc(0)):
        if i % 12 == 0: k.wait(vm=f"X0_{i//12}")
        if i % 6 == 0 and pend: run(pend.pop(0))
        k(v)
    kvplan = {12: kv_group('K', 0), 13: kv_group('K', 1), 14: kv_group('V', 0)}
    for j in range(15):
        k.c(f"qproj stage {j}")
        if cfg.fine == 1 and j in (0, 2, 4, 8, 12): k.stamp(2 + (0, 2, 4, 8, 12).index(j))
        mf = []
        for t in range(8):
            for q in range(4):
                qb = q if t % 2 == 0 else 3 - q
                d = QA(t, qb)
                mf.append(f"{MF} {d}, {ar(WF(j&1,t),4)}, {vr(HF(j&1,qb),4)}, {d if j else '0'}")
        lds = (preads(j+2) if j < 14 else []) + wreads(j+1)
        valu = hcalc(j+1)
        jj = j + LA_
        if jj >= 16: pend += kvplan[j]
        elif cfg.wb4:
            pend += x_loads(jj)
            if jj % cfg.wb4 == 0:
                for j2 in range(jj, min(16, jj + cfg.wb4)): pend += w_step(j2)
        else: pend += x_loads(jj) + w_step(jj)
        nvm = min(len(pend), cfg.nvm)
        vm = pend[:nvm]; pend = pend[nvm:]
        if cfg.x == 1: valu = valu[:16]
        gaps = fill(32, lds, valu, vm, g0=1, valu_end=31)
        add(gaps, -1, W(lg=f"R{j}_3"))
        front(gaps, 12, W(lg=f"R{j}_7"))
        if j < 2 or j % 2 == 1 or not cfg.bar2:
            tgt = j+1 if (j < 1 or not cfg.bar2) else j+2
            if cfg.wb4 and j + 1 >= 4:
                if (j + 1) % cfg.wb4 == 0:
                    front(gaps, 0, W(vm=f"X{j+1}"), W(vm=f"W{min(15, j + cfg.wb4)}", barrier=True))
                else: front(gaps, 0, W(vm=f"X{j+1}"))
            elif tgt < wdone: front(gaps, 0, W(vm=f"X{j+1}"))
            else: front(gaps, 0, W(vm=f"W{tgt}", barrier=True))
        else:
            front(gaps, 0, W(vm=f"X{j+1}"))
        emit(k, mf, gaps)
    assert not pend
    k.stamp(2) if not cfg.fine else (k.stamp(7) if cfg.fine == 1 else None)
    PF_F, PF_W = S_X, S_W
    pfsetup = [f"s_cmp_eq_u32 s{S_WAVE}, 1\ns_cselect_b64 s[{PF_F}:{PF_F+1}], s[58:59], s[56:57]",
        f"s_cmp_eq_u32 s{S_WAVE}, 2\ns_cselect_b64 s[{PF_F}:{PF_F+1}], s[60:61], s[{PF_F}:{PF_F+1}]",
        f"s_mul_i32 s6, s2, {43*128}\ns_add_u32 s{PF_F}, s{PF_F}, s6\ns_addc_u32 s{PF_F+1}, s{PF_F+1}, 0",
        f"s_lshl_b32 s6, s4, 17\ns_and_b32 s7, s5, 3\ns_lshl_b32 s7, s7, 15",
        f"s_add_u32 s6, s6, s7\ns_lshl_b32 s7, s{S_WAVE}, 13\ns_add_u32 s6, s6, s7",
        f"s_add_u32 s{PF_W}, s46, s6\ns_addc_u32 s{PF_W+1}, s47, 0\ns_mov_b32 s{PF_W+2}, 0x2000",
        f"s_cmp_eq_u32 s{S_WAVE}, 3\ns_cselect_b32 s{PF_F+2}, 0, {43*128}"]
    if OPT.xpf and OPT.ff:
        pfsetup += [f"s_lshl_b32 s6, s5, 1\ns_bfe_u32 s7, s2, 0x10005\ns_add_u32 s6, s6, s7",
            f"s_lshl_b32 s6, s6, 2\ns_and_b32 s7, s2, 3\ns_add_u32 s6, s6, s7",
            f"s_lshl_b32 s6, s6, 2\ns_bfe_u32 s7, s2, 0x20003\ns_add_u32 s6, s6, s7",
            f"s_lshl_b32 s6, s6, 2\ns_add_u32 s6, s6, s{S_WAVE}",
            f"s_lshl_b32 s6, s6, 11\ns_add_u32 s{S_M}, s0, s6\ns_addc_u32 s{S_M+1}, s1, 0\ns_mov_b32 s{S_M+2}, 2048"]
    elif OPT.xpf:
        pfsetup += [f"s_bfe_u32 s6, s2, 0x10002\ns_lshl_b32 s6, s6, 3\ns_bfe_u32 s7, s2, 0x30003",
            f"s_add_u32 s6, s6, s7\ns_lshl_b32 s6, s6, 2\ns_and_b32 s7, s2, 3",
            f"s_add_u32 s6, s6, s7\ns_lshl_b32 s6, s6, 2\ns_lshr_b32 s7, s2, 6",
            f"s_add_u32 s6, s6, s7\ns_lshl_b32 s6, s6, 2\ns_add_u32 s6, s6, s{S_WAVE}",
            f"s_lshl_b32 s6, s6, 11\ns_add_u32 s{S_M}, s0, s6\ns_addc_u32 s{S_M+1}, s1, 0\ns_mov_b32 s{S_M+2}, 2048"]
    xcc_pub = []
    if OPT.loc:
        def pub(k):
            k.srd(48, 54, 32768, WS_FLAG)
            k(f"s_and_b32 s6, s2, 7\ns_lshl_b32 s6, s6, 2\ns_lshr_b32 s7, s2, 6\ns_add_u32 s6, s6, s7\ns_lshl_b32 s63, s6, 10\ns_bfe_u32 s7, s2, 0x30003")
            k(f"s_getreg_b32 s52, hwreg(HW_REG_XCC_ID, 0, 4)\ns_add_u32 s52, s52, 1\ns_lshl_b32 s6, s7, 2\ns_lshl_b32 s7, s7, 7")
            k(f"v_lshlrev_b32 v3, 3, v{V_L16}\nv_add_u32 v3, s6, v3\nv_mov_b32 v4, s52\nv_bfe_u32 v27, v{V_L16}, 4, 3\nv_lshlrev_b32 v27, 2, v27\nv_add_u32 v27, s7, v27")
            k(f"s_cmp_eq_u32 s{S_WAVE}, 1\ns_cbranch_scc0 k1_nx\ns_mov_b64 exec, 0xff")
            k(f"buffer_store_dword v4, v3, s[48:51], s63 offen offset:64 sc1\ns_mov_b64 exec, -1")
            k("k1_nx:")
        xcc_pub = [pub]
    V0, VD = V_PF, V_PF+3
    pfv = [f"v_lshrrev_b32 v{VD}, 8, v{V_L16}", f"v_lshlrev_b32 v{VD}, 24, v{VD}", f"v_lshl_add_u32 v{V0}, v{V_L16}, 3, v{VD}"]
    cf, cw, co = cfg.pfc
    def site(srd, c0, sh, off, fl):
        return [f"s_sub_u32 s6, s{S_CNT}, {c0}\ns_min_u32 s6, s6, 4\ns_lshl_b32 s6, s6, {sh}", f"buffer_load_dword v{VD}, v{V0}, {sr(srd,4)}, s6 offen offset:{off} {fl}"]
    pfs = [site(PF_F, cf, 11, 0, ""), site(S_M, OPT.xpf, 11, 0, "") if OPT.xpf else site(S_O, co, 17, 0, OPT.opf), site(PF_W, cw, 11, 0, OPT.wpf), site(S_O, co, 17, 2048, OPT.opf)]
    if OPT.l2w:
        P1, P2 = PF_F, 48
        pfsetup = pfsetup[3:6] + pfsetup[7:] + [
            f"s_lshr_b32 s6, s2, 3\ns_lshl_b32 s6, s6, 2\ns_add_u32 s{S_T0}, s6, s{S_WAVE}",
            f"s_cmp_lt_u32 s{S_T0}, 64\ns_cselect_b64 s[{P1}:{P1+1}], s[56:57], s[58:59]",
            f"s_and_b32 s6, s{S_T0}, 63\ns_mul_i32 s6, s6, {8*2752}\ns_and_b32 s7, s2, 3",
            f"s_mul_i32 s7, s7, 768\ns_add_u32 s6, s6, s7\ns_sub_u32 s7, {512*2752}, s6",
            f"s_add_u32 s{P1}, s{P1}, s6\ns_addc_u32 s{P1+1}, s{P1+1}, 0\ns_min_u32 s{P1+2}, s7, {8*2752}",
            f"s_mul_i32 s6, s{S_T0}, {11*1024}\ns_and_b32 s7, s2, 1\ns_lshl_b32 s7, s7, 9",
            f"s_add_u32 s6, s6, s7\ns_min_u32 s6, s6, {1376*1024}\ns_sub_u32 s7, {1376*1024}, s6",
            f"s_add_u32 s{P2}, s60, s6\ns_addc_u32 s{P2+1}, s61, 0\ns_min_u32 s{P2+2}, s7, {11*1024}\ns_mov_b32 s{P2+3}, 0x20000"]
        pfv += [f"v_and_b32 v6, 0x380, v{V0}", "v_min_u32 v6, 764, v6", f"v_bfe_u32 v3, v{V_L16}, 7, 1", "v_mul_u32_u24 v3, 2752, v3", f"v_add3_u32 v3, v3, v6, v{VD}",
                f"v_bfe_u32 v4, v{V_L16}, 6, 2", f"v_and_b32 v6, 0x180, v{V0}", "v_lshl_add_u32 v4, v4, 10, v6", f"v_add_u32 v4, v4, v{VD}"]
        pfs[0] = [f"s_sub_u32 s6, s{S_CNT}, {OPT.l2w}\ns_min_u32 s6, s6, 4\ns_mul_i32 s6, s6, {2*2752}", f"buffer_load_dword v6, v3, {sr(P1,4)}, s6 offen"]
        pfs[3] = [f"s_sub_u32 s6, s{S_CNT}, {OPT.l2d}\ns_min_u32 s6, s6, 3\ns_lshl_b32 s6, s6, 12", f"buffer_load_dword v6, v4, {sr(P2,4)}, s6 offen"]
    if OPT.loc or OPT.opt32:
        pfv += [f"v_lshrrev_b32 v{VD}, 9, v{V_L16}", f"v_lshlrev_b32 v{VD}, 24, v{VD}", f"v_lshl_add_u32 v7, v{V_L16}, 3, v{VD}"]
        pfs[3] = site(S_O, OPT.lpo, 17, 0, OPT.opf); pfs[3][1] = pfs[3][1].replace(f"v{V0},", "v7,")
    loopinit = f"s_mov_b32 s{S_CNT}, 8"
    k.c("merged head")
    if OPT.trunc: k("s_mov_b32 s53, 0x07060302")
    k.run(xcc_pub)
    k.wait(lg='all')
    def qk_q(buf, qb, czero):
        r = []
        for kb in range(2):
            for i in range(4):
                s_ = i if kb == 0 else 3 - i
                d = vr(S(buf, kb, qb), 4)
                c = d if i else ("0" if czero else vr(MN(qb), 4))
                nd = {f"Q{qb}": 2, f"KR{buf}": 0}
                if not czero: nd[f"MN{qb}"] = 2
                r.append(It(f"{MF} {d}, {ar(HK(buf)(kb*4+s_),4)}, {vr(Q(qb,s_),4)}, {c}", needs=nd, gives=f"S{buf}_{qb}"))
        return r
    mq = []
    for qb in range(4):
        for t in range(8):
            d = QA(t, qb)
            mq.append(It(f"{MF} {d}, {ar(WF(1,t),4)}, {vr(HF(1,qb),4)}, {d}", gives=f"A{t}_{qb}"))
    mq += qk_q(0,0,True) + qk_q(0,1,True) + qk_q(0,2,True) + qk_q(1,0,False) + qk_q(1,1,False) + qk_q(0,3,True) + qk_q(1,2,False) + qk_q(1,3,False)
    def conv(qb):
        r = []
        for s_ in range(4):
            for h in range(2):
                t = 2*s_ + h; nd = {f"A{t}_{qb}": 8}
                if qb < 2: a = 192 + (qb*8+t)*4
                else:
                    a = 224 + (t & 3)*4
                    for i in range(4): r.append(It(f"v_accvgpr_read_b32 v{a+i}, a{((qb-2)*8+t)*4+i}", needs=nd))
                for d in range(2): r.append(It(f"v_cvt_pk_bf16_f32 v{Q(qb,s_)+2*h+d}, v{a+2*d}, v{a+2*d+1}", needs=nd, gives=f"Q{qb}x"))
        r[-1].gives = f"Q{qb}"
        return r
    def rmax(qs):
        r = []
        for qb in qs:
            a = S(0, 0, qb); b = S(0, 1, qb); t = V_T + qb; nd = {f"S0_{qb}e": 8}
            r += [It(f"v_max3_f32 v{t}, v{a}, v{a+1}, v{a+2}", needs=nd), It(f"v_max3_f32 v{t+4}, v{b}, v{b+1}, v{b+2}"),
                  It(f"v_max3_f32 v{t}, v{t}, v{a+3}, v{b+3}"), It(f"v_max_f32 v{t}, v{t}, v{t+4}")]
        for n_, sw in enumerate(("v_permlane32_swap_b32", "v_permlane16_swap_b32")):
            for qb in qs: r.append(It(f"v_mov_b32 v{V_T+4+qb}, v{V_T+qb}", gives=f"mv{n_}_{qb}"))
            for qb in qs: r.append(It(f"{sw} v{V_T+4+qb}, v{V_T+qb}", cost=2, needs={f"mv{n_}_{qb}": 2}, gives=f"sw{n_}_{qb}"))
            for qb in qs: r.append(It(f"v_max_f32 v{V_T+qb}, v{V_T+qb}, v{V_T+4+qb}", needs={f"sw{n_}_{qb}": 1}))
        for qb in qs:
            for i in range(4): r.append(It(f"v_sub_f32 v{MN(qb)+i}, 0, v{V_T+qb}", gives=f"MN{qb}" if i == 3 else None))
        return r
    def sm0(qs, sub=True):
        r = []
        E = exps(0, qs); C = cvts(0, qs); A = adds(0, qs, cfg.addq())
        regs = [S(0, kb, qb) + i for qb in qs for kb in range(2) for i in range(4)]
        qof = [qb for qb in qs for _ in range(8)]
        n_ = len(E)
        for i in range(n_ + 2):
            if sub and i < n_: r.append(It(f"v_add_f32 v{regs[i]}, v{regs[i]}, v{MN(qof[i])}"))
            if 1 <= i <= n_: r.append(It(E[i-1], cost=2, gives=f"e{qs[0]}_{i-1}"))
            if i >= 2:
                if A[i-2]: r.append(It(A[i-2], needs={f"e{qs[0]}_{i-2}": 1}))
                if (i-2) % 2 == 1: r.append(It(C[(i-2)//2], needs={f"e{qs[0]}_{i-2}": 1}))
        return r
    last = {}
    for it in mq:
        if isinstance(it.gives, str) and it.gives.startswith("S"): last[it.gives] = it
    for g, it in last.items(): it.gives = g + "e"
    init = [It(f"v_mov_b32 v{V_LS+q}, 0") for q in range(4)] + [It(x) for x in pfv]
    vq = init + conv(0) + conv(1) + conv(2) + rmax([0, 1]) + conv(3) + sm0([0, 1]) + rmax([2, 3]) + sm0([2, 3])
    side = [It(W(vm="K0", barrier=True), cost=0, n=2)]
    for b in range(2):
        side += [It(L(x, f"HK{b}")) for x in kreads(0, b, HK(b))]
    side += [It(x, cost=0, n=3) for x in pfsetup]
    side += [It(W(lg="HK0"), cost=0, gives="KR0", needs={"A7_2": 0}), It(W(lg="HK1"), cost=0, gives="KR1")]
    G = lambda grp, nd=None: It(lambda kk, grp=grp: kk.run(grp), cost=2, n=3, needs=nd)
    side += [G(x) for x in kv_group('K', 2)] + [G(x, {"S0_2e": 0}) for x in kv_group('V', 1)]
    side += [It(W(vm="V0", barrier=True), cost=0, n=2, needs={"S0_3e": 0})]
    side += [It(x) for x in kreads(1, 0)] + [G(x) for x in kv_group('K', 3)] + [It(loopinit, cost=0, n=4)]
    merge(k, mq, vq, side)
    k("k1_first:")
    iteration(k, cfg, 1, "first")
    iteration(k, cfg, 2, "pv", czero=True)
    k.stamp(3) if not cfg.fine else None
    k("s_branch k1_pos2")
    k(".p2align 6")
    for _ in range(OPT.pad): k("s_nop 0")
    k("k1_loop:")
    iteration(k, cfg, 0, pf=pfs[0] if cfg.pf else ())
    iteration(k, cfg, 1, pf=pfs[1] if cfg.pf else ())
    iteration(k, cfg, 2, pf=pfs[2] if cfg.pf else (), label="k1_pos2")
    iteration(k, cfg, 3, pf=pfs[3] if cfg.pfo else (), post=[f"s_sub_u32 s{S_CNT}, s{S_CNT}, 1\ns_cmp_lg_u32 s{S_CNT}, 0\ns_cbranch_scc1 k1_loop"])
    k.stamp(4) if not cfg.fine else (k.stamp(1) if cfg.fine == 2 else None)
    if OPT.cpf2:
        k(f"s_cmp_ge_u32 s2, 16\ns_cbranch_scc1 k1_nocode\ns_lshr_b32 s6, s2, 3\ns_lshl_b32 s6, s6, 2\ns_add_u32 s6, s6, s{S_WAVE}")
        k.code_pf("k1_nocode", "code_end_marker", V_PF+1, S_M, 6)
        k("k1_nocode:")
    V_AW = 7
    AH = (lambda j: (j & 15) >> 1) if OPT.f2 else (lambda j: j >> 2)
    AS = (lambda j: (j >> 4)*2 + (j & 1)) if OPT.f2 else (lambda j: j & 3)
    def a_w(j):
        return [[f"s_add_u32 m0, s{S_W1}, {(j % OPT.anr)*8192 + p*4096}\ns_mov_b32 s{S_T0+4+p}, {(AH(j)*512 + AS(j)*32 + p*16)*1024}",
                 V(f"buffer_load_dwordx4 v{V_AW}, {sr(S_M,4)}, s{S_T0+4+p} offen lds", f"AW{j}")] for p in range(2)]
    extra = []
    if OPT.fa:
        k(f"v_lshrrev_b32 v2, 8, v{V_L16}\nv_lshl_add_u32 v2, v1, 2, v2\nv_and_b32 v3, 7, v2\nv_lshlrev_b32 v3, 5, v3\nv_and_b32 v4, 0xf0, v{V_L16}")
        k(f"v_xor_b32 v3, v3, v4\nv_lshl_add_u32 v{V_AW}, v2, 10, v3")
        k(f"s_and_b32 s6, s2, 3\ns_lshl_b32 s6, s6, 17\ns_bfe_u32 s7, s2, 0x20003\ns_lshl_b32 s7, s7, 8\ns_add_u32 s6, s6, s7")
        k(f"s_add_u32 s{S_M}, s46, s6\ns_addc_u32 s{S_M+1}, s47, 0\ns_sub_u32 s{S_M+2}, {4096*1024}, s6\ns_mov_b32 s{S_M+3}, 0x20000")
        k.vm = []
        if OPT.mearly:
            assert not OPT.mk0
            k.srd(48, 54, 4*12288, WS_MODP); k("v_lshlrev_b32 v6, 4, v0")
        if OPT.loc: k(f"buffer_load_dword v6, v27, s[48:51], s63 offen offset:64 sc1")
        if OPT.mk0:
            k.srd(48, 54, k1p.FA + 256*4096, WS_FLAG)
            k(f"s_lshl_b32 s6, s5, 5\ns_add_u32 s6, s6, s4\ns_lshl_b32 s6, s6, 12\ns_add_u32 s63, s6, {k1p.FA+3072}\nv_mov_b32 v27, 0")
        extra = [g for j in range(OPT.na0) for g in a_w(j)]
        if OPT.mk0: extra[0] = [V("buffer_load_dword v6, v27, s[48:51], s63 offen sc1", "WL")] + extra[0]
    rest = iteration(k, cfg, 0, "tail", extra=extra)
    k.stamp(5) if not cfg.fine else (k.stamp(2) if cfg.fine == 2 else None)
    k.lg = ["V0"]*len(k.lg)
    k.run([x[1] for x in rest])
    nrest = len(rest); dbw = 8 - (nrest + 3)//4
    ns = 2*len(cfg.sumq)
    LT = 240
    mq = []
    for i, m in enumerate(pv2_mfmas(2, cfg.sumq)):
        db = (i - ns)//8
        it = It(m, gives="SUM" if i == ns-1 else (f"O{db}" if i >= ns and (i - ns) % 8 == 7 else None))
        if i == ns: it.needs = {"W0": 0}
        if i == ns + 8*dbw: it.needs = {"W1": 0}
        mq.append(it)
    side = [It(W(lg="V0"), cost=0, gives="W0")] + [It(f"s_mov_b32 s{S_T0+qb}, {qb*131072}", cost=0) for qb in range(4)]
    if OPT.fa:
        if OPT.mearly:
            side += [It(V(f"s_mov_b32 s6, {4096*(1+(i>>2)) + (i&3)*12288}\nbuffer_load_dwordx4 {vr(96+4*i,4)}, v6, s[48:51], s6 offen {'sc1' if OPT.mk0 else ''}", "M"), cost=2) for i in range(8)]
        side += [It(lambda kk, g=g: kk.run(g), cost=2) for j in range(OPT.na0, OPT.na0 + OPT.na2) for g in a_w(j)]
    side += [It(W(lg="all"), cost=0, gives="W1", needs={f"O{dbw-2}": 0})]
    vq = []
    aq = cfg.addq()
    for n_, sw in enumerate(("v_permlane32_swap_b32", "v_permlane16_swap_b32")):
        for q in aq: vq.append(It(f"v_mov_b32 v{LT+4+q}, v{V_LS+q}", gives=f"a{n_}{q}"))
        for q in aq: vq.append(It(f"{sw} v{LT+4+q}, v{V_LS+q}", cost=2, needs={f"a{n_}{q}": 2}, gives=f"b{n_}{q}"))
        for q in aq: vq.append(It(f"v_add_f32 v{V_LS+q}, v{V_LS+q}, v{LT+4+q}", needs={f"b{n_}{q}": 1}))
    for q in cfg.sumq: vq.append(It(f"v_accvgpr_read_b32 v{V_LS+q}, a{LA(q)}", needs={"SUM": 8}))
    for q in range(4): vq.append(It(f"v_rcp_f32 v{LT+2*q}, v{V_LS+q}", cost=2))
    vq += [It(f"v_add_f32 v{LT+8}, v{V_LS}, v{V_LS+1}"), It(f"v_add_f32 v{LT+9}, v{V_LS+2}, v{V_LS+3}"), It(f"v_add_f32 v{LT+8}, v{LT+8}, v{LT+9}"),
           It(f"s_mov_b32 s7, {hexf(2.0**64)}\nv_cmp_nle_f32 vcc, v{LT+8}, s7"),
           It(f"s_lshl_b32 s7, s{S_WAVE}, 2\ns_add_u32 s7, s7, {FLAGB}\nv_mov_b32 v{LT+10}, s7"), It(f"v_mov_b32 v{LT+11}, {FLAGB}"),
           It(f"s_cmp_lg_u64 vcc, 0\ns_cselect_b32 s7, 1, 0\nv_mov_b32 v{LT+9}, s7"), It(L(f"ds_write_b32 v{LT+10}, v{LT+9}", "F"))]
    def check(k):
        k(f"ds_read_b128 {vr(LT+12,4)}, v{LT+11}\ns_waitcnt lgkmcnt(0)")
        k(f"v_or_b32 v{LT+12}, v{LT+12}, v{LT+13}\nv_or3_b32 v{LT+12}, v{LT+12}, v{LT+14}, v{LT+15}\ns_nop 0")
        k(f"v_readfirstlane_b32 s6, v{LT+12}")
        k(f"s_andn2_b32 s6, s6, s{S_RERUN}\ns_cmp_lg_u32 s6, 0\ns_cbranch_scc1 k1_fallback")
    def flagprep(k):
        k.srd(S_K, 54, 4*32768 + 256*4096, WS_FLAG)
        k(f"s_and_b32 s6, s2, 7\ns_lshl_b32 s6, s6, 2\ns_lshr_b32 s7, s2, 6\ns_add_u32 s6, s6, s7\ns_lshl_b32 s63, s6, 10\ns_bfe_u32 s7, s2, 0x30003")
        k(f"v_lshlrev_b32 v2, 3, v{V_L16}\ns_lshl_b32 s6, s7, 2\nv_add_u32 v2, s6, v2\nv_mov_b32 v3, 0x{MAGIC:x}")
        k(f"v_bfe_u32 v27, v{V_L16}, 4, 3\nv_lshlrev_b32 v27, 2, v27\ns_lshl_b32 s6, s7, 7\nv_add_u32 v27, s6, v27")
        if OPT.mk0:
            k(f"s_lshl_b32 s6, s5, 5\ns_add_u32 s6, s6, s4\ns_lshl_b32 s6, s6, 12\ns_add_u32 s6, s6, {k1p.FA+3072}\ns_sub_u32 s6, s6, s63")
            k(f"v_and_b32 v4, 12, v27\nv_add_u32 v4, s6, v4\ns_mov_b32 exec_lo, 0\nv_mov_b32 v27, v4\ns_mov_b64 exec, -1")
    def raise_(k, lab, off):
        k(f"s_cmp_eq_u32 s{S_WAVE}, 1\ns_cbranch_scc0 {lab}")
        if OPT.loc:
            k(f"v_cmp_ne_u32 vcc, s52, v6\ns_cbranch_vccz {lab}_l\nbuffer_wbl2 sc1\ns_waitcnt vmcnt(0)\n{lab}_l:")
        k("s_mov_b64 exec, 0xff")
        k(f"buffer_store_dword v3, v2, {sr(S_K,4)}, s63 offen offset:{off} sc1\ns_mov_b64 exec, -1")
        k(f"{lab}:")
    def midsig(k):
        k.wait(vm="OS1", lg='all', barrier=True)
        check(k); flagprep(k); raise_(k, "k1_nf1", 0)
    n_ = 0
    for s_ in range(4):
        for qb in range(4):
            t = 64 + (n_ & 3)*8; o = 32 + (n_ & 7)*4; n_ += 1
            for h in range(2):
                for i in range(4): vq.append(It(f"v_accvgpr_read_b32 v{t+4*h+i}, a{O(2*s_+h,qb)+i}", needs={f"O{2*s_+h}": 8}))
            if n_ <= cfg.npk:
                for i in range(8): vq.append(It(f"v_mul_f32 v{t+i}, v{t+i}, v{LT+2*qb}"))
            else:
                for i in range(4): vq.append(It(f"v_pk_mul_f32 {vr(t+2*i,2)}, {vr(t+2*i,2)}, {vr(LT+2*qb,2)} op_sel_hi:[1,0]"))
            for d in range(4): vq.append(It(f"v_cvt_pk_bf16_f32 v{o+d}, v{t+2*d}, v{t+2*d+1}"))
            vq.append(It(V(f"buffer_store_dwordx4 {vr(o,4)}, v{V_L16}, {sr(S_O,4)}, s{S_T0+qb} offen offset:{s_*1024} {OPT.lst if OPT.loc else ('sc1' if (n_ <= OPT.nsc1 or OPT.fa) else OPT.st1)}", "OST" if n_ > 8 else "OS1"), cost=2))
            if OPT.f2 and n_ == OPT.f2n: vq.append(It(midsig, cost=0, needs={"W1": 0}))
    if not OPT.fa: k.vm = []
    merge(k, mq, vq, side)
    if OPT.fa:
        for j in range(OPT.na0 + OPT.na2, OPT.na0 + OPT.na2 + OPT.na1): k.run(a_w(j))
        assert OPT.na0 + OPT.na1 + OPT.na2 <= 14
        if OPT.a2:
            k(f"s_lshl_b32 s6, s5, 1\ns_bfe_u32 s7, s2, 0x10005\ns_add_u32 s6, s6, s7\ns_lshl_b32 s6, s6, 1\ns_and_b32 s7, s{S_WAVE}, 1\ns_add_u32 s6, s6, s7")
            k(f"s_lshr_b32 s52, s{S_WAVE}, 1\ns_lshl_b32 s{S_CNT}, s6, 1\ns_add_u32 s{S_CNT}, s{S_CNT}, s52")
            k(f"s_lshl_b32 s6, s6, 19\ns_and_b32 s7, s2, 3\ns_lshl_b32 s7, s7, 12\ns_add_u32 s6, s6, s7\ns_lshl_b32 s53, s52, 11\ns_add_u32 s6, s6, s53\ns_add_u32 s6, s6, 0x{WS_OF:x}")
            k(f"s_add_u32 s{S_X}, s54, s6\ns_addc_u32 s{S_X+1}, s55, 0\ns_mov_b32 s{S_X+2}, {4*131072}")
            k(f"s_lshl_b32 s52, s52, 18\ns_xor_b32 s53, s52, 0x40000")
        else:
          k(f"s_lshl_b32 s6, s5, 1\ns_bfe_u32 s7, s2, 0x10005\ns_add_u32 s6, s6, s7\ns_lshl_b32 s6, s6, 2\ns_add_u32 s{S_CNT}, s6, s{S_WAVE}")
          k(f"s_lshl_b32 s6, s{S_CNT}, 18\ns_and_b32 s7, s2, 3\ns_lshl_b32 s7, s7, 12\ns_add_u32 s6, s6, s7\ns_add_u32 s6, s6, 0x{WS_OF:x}")
          k(f"s_add_u32 s{S_X}, s54, s6\ns_addc_u32 s{S_X+1}, s55, 0\ns_mov_b32 s{S_X+2}, {2*131072}")
        k(f"s_lshl_b32 s6, s{S_CNT}, 15\ns_lshl_b32 s7, s7, 9\ns_add_u32 s6, s6, s7\ns_bfe_u32 s7, s2, 0x20003\ns_lshl_b32 s7, s7, 12\ns_add_u32 s6, s6, s7\ns_add_u32 s6, s6, 0x{WS_PART:x}")
        k(f"s_add_u32 s{S_W}, s54, s6\ns_addc_u32 s{S_W+1}, s55, 0\ns_mov_b32 s{S_W+2}, {16384+4096}")
    V_W0 = 32
    def poll(k, lab, off):
        k("s_mov_b32 s7, 0")
        k(f"{lab}:")
        k(f"buffer_load_dword v3, v27, {sr(S_K,4)}, s63 offen offset:{off} sc1\ns_waitcnt vmcnt(0)\nv_cmp_ne_u32 vcc, 0x{MAGIC:x}, v3")
        k(f"s_cbranch_vccz {lab}_r\ns_add_u32 s7, s7, 1\ns_cmp_lt_u32 s7, 0x10000\ns_cbranch_scc1 {lab}")
        k(f"{lab}_r:")
        k(f"s_barrier\nv_mov_b32 v3, 0\ns_mov_b32 exec_lo, 0\nbuffer_store_dword v3, v27, {sr(S_K,4)}, s63 offen offset:{off}\ns_mov_b64 exec, -1\ns_branch {lab}_e" if OPT.mk0 else "")
        k(f"{lab}_ok:")
    if OPT.f2:
        for j in range(OPT.na0 + OPT.na1 + OPT.na2, OPT.na3): k.run(a_w(j))
        if OPT.ff: k1t.setup_early(k)
        k("s_nop 1")
        for t in range(8): k(f"v_add_u32 v{V_W0+t}, {-VB & 0xffffffff}, v{V_VA+t}\nv_add_u32 v{V_W0+8+t}, {VB}, v{V_VA+t}")
        k(f"s_cmp_eq_u32 s{S_WAVE}, 0\ns_cbranch_scc0 k1_poll_ok")
        poll(k, "k1_poll", 0)
        k("s_waitcnt vmcnt(0)\ns_barrier")
        k.stamp(6) if not cfg.fine else (k.stamp(3) if cfg.fine == 2 else k1t.st(k, 'x0'))
        raise_(k, "k1_nf2", 32)
    else:
        if OPT.fa: k.wait(vm="OST")
        k("s_waitcnt lgkmcnt(0)\ns_barrier")
        check(k)
    if OPT.fa and not OPT.f2:
        k.stamp(6) if not cfg.fine else (k.stamp(3) if cfg.fine == 2 else k1t.st(k, 'x0'))
        flagprep(k); raise_(k, "k1_nf1", 0)
        if OPT.a2:
            k("v_lshrrev_b32 v4, 1, v1\nv_lshlrev_b32 v4, 14, v4")
            for t in range(8): k(f"v_add_u32 v{V_W0+8+t}, v4, v{V_VA+t}\nv_add_u32 v{V_W0+t}, {-VB & 0xffffffff}, v{V_W0+8+t}")
            k(f"v_lshl_add_u32 v12, v1, 14, v{V_L16}\nv_xor_b32 v13, 0x8000, v12")
        else:
            for t in range(8): k(f"v_add_u32 v{V_W0+t}, {-VB & 0xffffffff}, v{V_VA+t}\nv_add_u32 v{V_W0+8+t}, {VB}, v{V_VA+t}")
        for j in range(OPT.na0 + OPT.na1 + OPT.na2, OPT.anr): k.run(a_w(j))
        if OPT.ff: k1t.setup_early(k)
        if OPT.mearly: k1t.m_finish(k, 96)
        if OPT.a2 and OPT.apre:
            k.lg = []
            k.run([L(f"ds_read_b64_tr_b16 {vr(192 + (e*8+t)*4 + 2*h, 2)}, v{V_W0+t} offset:{e*8192 + h*4096}", f"R0_{t}") for t in range(8) for e in range(2) for h in range(2)])
        if OPT.mk0:
            k(f"s_cmp_eq_u32 s{S_WAVE}, 0\ns_cbranch_scc0 k1_poll_ok")
            poll(k, "k1_poll", 0)
            k("s_waitcnt vmcnt(0)\ns_barrier\nk1_poll_e:")
        else:
            k(f"s_cmp_eq_u32 s{S_WAVE}, 0\ns_cbranch_scc0 k1_h0_c\ns_mov_b32 s7, 0")
            k1t.pollloop(k, "k1_h0", 27)
    if OPT.fa:
        k.vm = []
        if not (OPT.a2 and OPT.apre): k.lg = []
        if cfg.fine == 2: k.stamp(4); k("s_waitcnt lgkmcnt(0)")
        if cfg.fine == 3: k1t.st(k, 'y0')
        if OPT.a2:
            assert OPT.anr == 16 and OPT.fce == 0
            AC = lambda t, tb: 64 + (tb*8+t)*4
            AW = lambda u, e, t, n=4, o=0: (ar if u & 1 else vr)(192 + (e*8+t)*4 + o, n)
            AB = lambda u, e, tb: ((u % 6)*8 + e*4 + tb)*4
            def a_b(u):
                return [[f"s_add_u32 s{S_T0+(tb&1)}, s{52+(tb>>1)}, {(tb&1)*131072 + u*16384}",
                         V(f"buffer_load_dwordx4 {ar(AB(u,e,tb),4)}, v{V_L16}, {sr(S_X,4)}, s{S_T0+(tb&1)} offen offset:{e*1024} sc1", f"AB{u}_{tb}")] for tb in range(4) for e in range(2)]
            def a_reads(u):
                base = (u % 4)*32768; off = base & 0xffff
                return [L(f"ds_read_b64_tr_b16 {AW(u,e,t,2,2*h)}, v{V_W0+8*(base>>16)+t} offset:{off + e*8192 + h*4096}", f"R{u}_{t}") for t in range(8) for e in range(2) for h in range(2)]
            bq = [g for u in range(8) for g in a_b(u)]; nbq = OPT.a2b0
            k.run(bq[:nbq])
            if not OPT.apre: k.run(a_reads(0))
            wq = [g for j in range(16, 32) for g in a_w(j)]; nwq = 0
            for u in range(8):
                k1t.st(k, f"a{u}")
                if u == 7:
                    k.wait(vm="AB7_3", lg="R7_7")
                    mq = []; vq = []; side = [It(f"s_mov_b32 s{S_T0}, 0\ns_mov_b32 s{S_T0+1}, 16384", cost=0)]
                    for tb in (2, 3, 0, 1):
                        for t_ in range(8):
                            t = t_ if tb % 2 == 0 else 7 - t_
                            d = vr(AC(t, tb), 4)
                            for i, e in enumerate((0, 1) if t_ % 2 == 0 else (1, 0)):
                                mq.append(It(f"{MF} {d}, {AW(u,e,t)}, {ar(AB(u,e,tb),4)}, {d}", gives=f"D{t}{tb}" if i else None))
                            if tb >= 2: side.append(It(f"ds_write_b128 v12, {d} offset:{((tb-2)*8+t)*1024}", cost=2, needs={f"D{t}{tb}": 8, f"w{len(side)-1}": OPT.awsp}, gives=f"w{len(side)}"))
                    side[0].gives = "w0"
                    merge(k, mq, [], side)
                    k("s_waitcnt lgkmcnt(0)\ns_barrier")
                    k1t.st(k, "a8")
                    k.lg = []
                    for tb in range(2):
                        for t in range(8): k.lgop(f"ds_read_b128 {vr(AC(t,tb+2),4)}, v13 offset:{(tb*8+t)*1024}", f"E{tb}{t>>1}")
                    n_ = 0
                    for tb in range(2):
                        for ns_ in range(4):
                            k.wait(lg=f"E{tb}{ns_}")
                            a = AC(2*ns_, tb); o = 192 + n_*4; n_ += 1
                            for i in range(0, 8, 2): k(f"v_pk_add_f32 {vr(a+i,2)}, {vr(a+i,2)}, {vr(a+64+i,2)}")
                            for d in range(4): k(f"v_cvt_pk_bf16_f32 v{o+d}, v{a+2*d}, v{a+2*d+1}")
                            k.vmop(f"buffer_store_dwordx4 {vr(o,4)}, v{V_L16}, {sr(S_W,4)}, s{S_T0+tb} offen offset:{ns_*1024} sc1", "PST")
                    break
                mf = []; n_ = 0
                for t in range(8):
                    for tb_ in range(4):
                        tb = tb_ if t % 2 == 0 else 3 - tb_
                        d = vr(AC(t, tb), 4)
                        for i, e in enumerate((0, 1) if n_ % 2 == 0 else (1, 0)):
                            mf.append(f"{MF} {d}, {AW(u,e,t)}, {ar(AB(u,e,tb),4)}, {d if (u or i) else '0'}")
                        n_ += 1
                vm = []
                while len(vm) < OPT.a2n:
                    wok = nwq < 32 and u >= nwq//8 + 1
                    bok = nbq < 64 and nbq//8 - 6 < u
                    if wok and (not bok or 4 + nwq//8 - 1 <= nbq//8): vm.append(wq[nwq]); nwq += 1
                    elif bok: vm.append(bq[nbq]); nbq += 1
                    else: break
                assert nwq >= min(32, (u + 2 - 3)*8) and nbq >= min(64, (u + 2)*8), (u, nwq, nbq)
                if OPT.ff and u == 6: vm += ([] if OPT.mearly else k1t.m_loads(64)) + k1t.x_loads()
                gaps = k1t.spread(64, a_reads(u+1), vm, g1=56)
                if u == 0:
                    add(gaps, -1, W(vm="AB0_0", lg="R0_1"))
                    for tb in range(1, 4): front(gaps, 2*tb-1, W(vm=f"AB0_{tb}"))
                    front(gaps, 13, W(lg="R0_7"))
                else:
                    add(gaps, -1, W(vm=f"AB{u}_3", lg=f"R{u}_7"))
                    front(gaps, 0, W(vm=f"AW{4*u+7}", barrier=True))
                emit(k, mf, gaps)
            assert nbq == 64 and nwq == 32
            k1t.MBASE = 64
            k1t.rest(k, 0)
    if OPT.fa and not OPT.a2:
        AC = lambda t, tb: 64 + (t*2+tb)*4
        AWF = lambda j, t: 128 + ((j&3)*8+t)*4
        ABF = lambda j, tb: (j*2+tb)*4
        def a_b(j):
            return [[f"s_mov_b32 s{S_T0+tb}, {tb*131072 + AH(j)*16384}",
                     V(f"buffer_load_dwordx4 {ar(ABF(j,tb),4)}, v{V_L16}, {sr(S_X,4)}, s{S_T0+tb} offen offset:{AS(j)*1024} sc1", f"AB{j}")] for tb in range(2)]
        def a_reads(p):
            r = []
            for t in range(8):
                for j in (2*p, 2*p+1):
                    base = (j % OPT.anr)*8192; off = base & 0xffff
                    r += [L(f"ds_read_b64_tr_b16 {vr(AWF(j,t)+2*h,2)}, v{(V_W0, V_VA, V_W0+8)[base >> 16]+t} offset:{off + h*4096}", f"R{p}_{t}") for h in range(2)]
            return r
        nb = OPT.nb0
        for j in range(nb): k.run(a_b(j))
        k.run(a_reads(0))
        nw = max(OPT.na3, OPT.na0 + OPT.na1 + OPT.na2) if OPT.f2 else OPT.anr; ncw = 0
        for p in range(16):
            mf = []; n_ = 0
            for t in range(8):
                for tb_ in range(2):
                    tb = tb_ if t % 2 == 0 else 1 - tb_
                    d = vr(AC(t, tb), 4)
                    for i, j in enumerate((2*p, 2*p+1) if n_ % 2 == 0 else (2*p+1, 2*p)):
                        mf.append(f"{MF} {d}, {vr(AWF(j,t),4)}, {ar(ABF(j,tb),4)}, {d if (p or i) else '0'}")
                    n_ += 1
            if p == 15 and OPT.amrg:
                k.wait(vm=f"AB{2*p+1}", lg=f"R{p}_3")
                mq = []; vq = []; n_ = 0
                for ns_ in range(4):
                    for tb_ in range(2):
                        tb = tb_ if ns_ % 2 == 0 else 1 - tb_
                        o = 128 + n_*4
                        for h_ in range(2):
                            h = h_ if n_ % 2 == 0 else 1 - h_
                            t = 2*ns_ + h; a = AC(t, tb); d = vr(a, 4)
                            for i, j in enumerate((2*p, 2*p+1) if h_ == 0 else (2*p+1, 2*p)):
                                mq.append(It(f"{MF} {d}, {vr(AWF(j,t),4)}, {ar(ABF(j,tb),4)}, {d}", gives=f"D{t}{tb}" if i else None, needs={"RR": 0} if len(mq) == 16 else None))
                            vq += [It(f"v_cvt_pk_bf16_f32 v{o+2*h+e}, v{a+2*e}, v{a+2*e+1}", needs={f"D{t}{tb}": 8}) for e in range(2)]
                        vq.append(It(V(f"buffer_store_dwordx4 {vr(o,4)}, v{V_L16}, {sr(S_W,4)}, s{S_T0+tb} offen offset:{ns_*1024} sc1", "PST"), cost=2))
                        n_ += 1
                merge(k, mq, vq, [It(f"s_mov_b32 s{S_T0}, 0\ns_mov_b32 s{S_T0+1}, 16384", cost=0), It(W(lg='all'), cost=0, gives="RR", needs={"D01": 0})])
                break
            vm = []
            for _ in range(OPT.nbs):
                wok = nw < 32 and (nw < OPT.anr or p >= (nw-OPT.anr)//2 + 1)
                if wok and (nb >= 32 or nw//2 - 1 - OPT.wlead <= nb//2): vm += a_w(nw); nw += 1
                elif nb < 32 and not (OPT.f2 and nb >= 16 and p < OPT.f2c): vm += a_b(nb); nb += 1
                elif wok: vm += a_w(nw); nw += 1
                elif OPT.ff and nw == 32 and ncw < OPT.fce and len(vm) <= 3 and k1t.a_last(k1t.cperm()[ncw], OPT.anr) <= p - 1:
                    vm += k1t.c_w(ncw); ncw += 1
            if OPT.ff and p == OPT.fxp: vm += k1t.x_loads()
            if OPT.ff and p in (OPT.fmp, OPT.fmp+1): vm += k1t.m_loads()[4*(p-OPT.fmp):4*(p-OPT.fmp)+4]
            if OPT.f2 and p == OPT.f2c - 1: vm.insert(len(vm)//2, [V(f"buffer_load_dword v3, v27, {sr(S_K,4)}, s63 offen offset:32 sc1", "F2")])
            if OPT.loc and p == OPT.lwb:
                vm.append([f"s_lshr_b32 s6, s2, 3\ns_or_b32 s6, s6, s{S_WAVE}\ns_cbranch_scc1 k1_nowb\nbuffer_wbl2 sc1\nk1_nowb:"])
            rd = a_reads(p+1) if p < 15 else []
            if OPT.ax == 1: rd = []
            if OPT.ax == 2: vm = []
            if OPT.ax == 3: rd = rd[:24]
            if OPT.ax == 4: vm = [x for x in vm if "m0" in x[0]]
            if OPT.amix:
                gaps = fill(32, [], [], vm, g0=1)
                fr = [g for g in range(1, 31) if g not in gaps]
                for i, g in enumerate(fr):
                    c = (len(rd) + len(fr) - i - 1)//(len(fr) - i) if (i % 2 == 0 or len(rd) >= 2*(len(fr)-i)) else len(rd)//(len(fr) - i)
                    for _ in range(c): add(gaps, g, rd.pop(0))
                assert not rd
            else:
                gaps = fill(32, rd, [], vm, g0=1, pair_lds=True)
            add(gaps, -1, W(vm=f"AB{2*p+1}", lg=f"R{p}_3"))
            if OPT.f2 and p == OPT.f2c:
                add(gaps, -1, W(vm="F2"), "v_cmp_ne_u32 vcc, 1, v3\ns_cbranch_vccnz k1_spin2\nk1_spin2_ret:")
            front(gaps, 12, W(lg=f"R{p}_7"))
            if OPT.slowa and OPT.slow0 <= p < OPT.slown: add(gaps, 31, f"s_sleep {OPT.slowa}")
            if 1 <= p < 15 and not OPT.anob: front(gaps, 0, W(vm=f"AW{2*p+3}", barrier=True))
            emit(k, mf, gaps)
            if cfg.fine == 2 and p == 1: k.stamp(5); k("s_waitcnt lgkmcnt(0)"); k.lg = []
        if cfg.fine == 2: k.stamp(6)
        assert nb == 32 and nw == 32
        k(f"s_mov_b32 s{S_T0}, 0\ns_mov_b32 s{S_T0+1}, 16384")
        n_ = 0
        for ns_ in range(4 if not OPT.amrg else 0):
            for tb in range(2):
                o = 128 + n_*4; n_ += 1
                for h in range(2):
                    a = AC(2*ns_+h, tb)
                    k(f"v_cvt_pk_bf16_f32 v{o+2*h}, v{a}, v{a+1}\nv_cvt_pk_bf16_f32 v{o+2*h+1}, v{a+2}, v{a+3}")
                k(f"buffer_store_dwordx4 {vr(o,4)}, v{V_L16}, {sr(S_W,4)}, s{S_T0+tb} offen offset:{ns_*1024} sc1")
        if OPT.ff: k1t.rest(k, ncw)
    k.dbg_mark(3, 100, 101, True); k.dbg_mark(4, 102, 103)
    if prof:
        k.stamp(6) if not (cfg.fine or OPT.fa) else None
        k("s_waitcnt vmcnt(0)")
        k.stamp(7) if cfg.fine != 1 else None
        k.dump_stamps(8, 54, 100)
    k(f"{end}:")
    k("s_endpgm")
    if OPT.f2:
        k("k1_spin2:")
        poll(k, "k1_poll2", 32)
        k("s_branch k1_spin2_ret")
    k("k1_fallback:")
    k(f"s_mov_b32 s{S_RERUN}, 1")
    k("v_and_b32 v2, 63, v0\nv_lshrrev_b32 v3, 4, v2\nv_and_b32 v4, 15, v2")
    k("v_lshlrev_b32 v5, 8, v4\nv_lshl_add_u32 v5, v3, 4, v5")
    for q in range(4): k(f"v_mov_b32 v{V_T+q}, 0xff800000")
    k("s_mov_b32 s6, 0")
    k("k1_fb_loop:")
    for s in range(4): k(f"buffer_load_dwordx4 {ar(KF(s),4)}, v5, {sr(S_K,4)}, s6 offen offset:{64*s}")
    k("s_waitcnt vmcnt(0)")
    for s in range(4):
        for qb in range(4):
            d = vr(S(0,0,qb),4)
            k(f"{MF} {d}, {ar(KF(s),4)}, {vr(Q(qb,s),4)}, {d if s else '0'}")
    k("s_nop 15")
    for qb in range(4):
        a = S(0,0,qb)
        k(f"v_max3_f32 v{V_T+qb}, v{V_T+qb}, v{a}, v{a+1}")
        k(f"v_max3_f32 v{V_T+qb}, v{V_T+qb}, v{a+2}, v{a+3}")
    k("s_add_u32 s6, s6, 4096\ns_cmp_lt_u32 s6, 0x80000\ns_cbranch_scc1 k1_fb_loop")
    rowmax_cross(k, [V_T+q for q in range(4)], V_T+4)
    for x in pfv: k(x)
    for qb in range(4):
        k(f"v_mov_b32 v{V_LS+qb}, 0")
        for i in range(4): k(f"v_sub_f32 v{MN(qb)+i}, 0, v{V_T+qb}")
    k("s_barrier")
    k.vm = []; k.lg = []
    for wh, t in (('K',0),('K',1),('V',0),('K',2),('V',1),('K',3)): run(kv_group(wh, t))
    k.wait(vm="V0", barrier=True)
    run(kreads(0, 0, HK(0))); k("s_waitcnt lgkmcnt(0)"); run(kreads(0, 1, HK(1)))
    for m in qk_mfmas(0, HK(0)): k(m)
    k("s_waitcnt lgkmcnt(0)\ns_barrier")
    run(kreads(1, 0))
    for m in qk_mfmas(1, HK(1)): k(m)
    merge(k, [], sm0([0, 1, 2, 3], sub=False))
    k(loopinit)
    k("s_branch k1_first")
    return k
```

```python
from common import *
from sched import *
from k0 import mod_loads, mod_finish
MF = "v_mfma_f32_16x16x32_bf16"
S_K, S_V, S_W, S_X, S_M, S_O, S_D = 8, 12, 16, 20, 24, 28, 48
S_T0, S_WAVE, S_W1 = 36, 45, 62
S_TT, S_MM, S_W3 = 33, 34, 35
V_L16 = 26
PAR2 = 9*16384 + 8192
SCR = 9*16384 + 4096 + 64
C_W, C_NW = 12288, 12
D_U, D_NW = 16384, 9
V_DC, V_DD = 20, 23
XR = 48

def spread(n, rd, vm, g0=1, g1=None):
    gaps = fill(n, [], [], vm, g0=g0)
    fr = [g for g in range(g0, (g1 or n-1)) if g not in gaps]
    rd = list(rd)
    for i, g in enumerate(fr):
        left = len(fr) - i
        c = -(-len(rd)//left) if (i % 2 == 0 or len(rd) >= 2*left) else len(rd)//left
        for _ in range(c): add(gaps, g, rd.pop(0))
    assert not rd
    return gaps

def a_last(i, anr):
    sl = range((i*C_W)//8192, (i*C_W + C_W - 1)//8192 + 1)
    return max(max(x for x in range(32) if x % anr == s_)//2 if s_ < anr else -1 for s_ in sl)
def cperm(): return sorted(range(C_NW), key=lambda i: (a_last(i, OPT.anr), i))
def c_last(i):
    P = cperm()
    sl = range((i*D_U)//C_W, (i*D_U + D_U - 1)//C_W + 1)
    return max(max(x for x in range(16) if P[x % C_NW] == s_)//2 for s_ in sl)
def dperm(): return sorted(range(D_NW), key=lambda i: (c_last(i), i))

def c_w(j):
    return [[(f"s_add_u32 m0, s{S_W3}, {cperm()[j % C_NW]*C_W}\ns_mov_b32 s{S_T0+6}, {j*32*2752}"),
             V(f"buffer_load_dwordx4 v{V_DC+p}, {sr(S_V,4)}, s{S_T0+6} offen offset:{p*1024} lds", f"CW{j}")] for p in range(3)]
def d_w(i):
    return [[f"s_add_u32 m0, s32, {dperm()[i % D_NW]*D_U}\ns_mov_b32 s{S_T0+7}, {i*128*1024 + p*(8192-1024)}",
             V(f"buffer_load_dwordx4 v{V_DD}, {sr(S_D,4)}, s{S_T0+7} offen offset:{p*1024} lds", f"DW{i}")] for p in range(4)]

def setup_early(k):
    k(f"s_lshl_b32 s{S_TT}, s5, 1\ns_bfe_u32 s6, s2, 0x10005\ns_add_u32 s{S_TT}, s{S_TT}, s6")
    k(f"s_and_b32 s{S_MM}, s2, 3\ns_lshl_b32 s{S_MM}, s{S_MM}, 2\ns_bfe_u32 s6, s2, 0x20003\ns_add_u32 s{S_MM}, s{S_MM}, s6")
    k.srd(52, 54, 4*12288, WS_MODP) if False else None
    k("v_lshlrev_b32 v31, 4, v0")
    k(f"s_mul_i32 s{S_W3}, s{S_WAVE}, 3072\ns_mul_i32 s6, s{S_MM}, 192\ns_min_u32 s6, s6, {14*192}")
    k(f"s_cmp_lt_u32 s{S_WAVE}, 2\ns_cselect_b64 s[{S_V}:{S_V+1}], s[56:57], s[58:59]")
    k(f"s_add_u32 s{S_V}, s{S_V}, s6\ns_addc_u32 s{S_V+1}, s{S_V+1}, 0\ns_sub_u32 s{S_V+2}, {512*2752}, s6")
    k(f"s_cmp_eq_u32 s{S_MM}, 15\ns_cselect_b32 s{S_V+2}, 0, s{S_V+2}")
    k(f"s_and_b32 s6, s{S_MM}, 7\ns_lshl_b32 s6, s6, 7\ns_lshl_b32 s{S_T0+4}, s{S_WAVE}, 15\ns_add_u32 s6, s6, s{S_T0+4}")
    k(f"s_add_u32 s{S_D}, s60, s6\ns_addc_u32 s{S_D+1}, s61, 0\ns_sub_u32 s{S_D+2}, {1376*1024}, s6\ns_mov_b32 s{S_D+3}, 0x20000")
    k(f"v_lshrrev_b32 v5, 4, v{V_L16}\nv_and_b32 v6, 1, v1\nv_lshlrev_b32 v6, 4, v6")
    for p in range(3):
        k(f"v_add_u32 v56, {64*p}, v5")
        k("v_mul_u32_u24 v57, 0x5556, v56\nv_lshrrev_b32 v57, 18, v57")
        k("v_mul_u32_u24 v58, 12, v57\nv_sub_u32 v58, v56, v58")
        k("v_lshrrev_b32 v59, 1, v57\nv_and_b32 v59, 2, v59\nv_xor_b32 v58, v58, v59")
        k("v_add_u32 v57, v57, v6\nv_mul_u32_u24 v57, 2752, v57")
        k(f"v_lshl_add_u32 v{V_DC+p}, v58, 4, v57")
        if p: k(f"v_subrev_u32 v{V_DC+p}, {1024*p}, v{V_DC+p}")
    k("v_lshrrev_b32 v56, 3, v5\nv_and_b32 v57, 7, v5\nv_and_b32 v58, 6, v56\nv_xor_b32 v57, v57, v58")
    k(f"v_lshlrev_b32 v56, 10, v56\nv_lshl_add_u32 v{V_DD}, v57, 4, v56")
    k("v_and_b32 v56, 7, v0\nv_bfe_u32 v57, v0, 3, 2\nv_lshrrev_b32 v58, 5, v0")
    k("v_lshlrev_b32 v24, 10, v58\nv_lshl_add_u32 v24, v57, 8, v24\nv_lshl_add_u32 v24, v56, 4, v24")
    k("v_lshlrev_b32 v25, 10, v56\nv_lshl_add_u32 v25, v58, 6, v25\nv_lshl_add_u32 v25, v57, 3, v25")
    k(f"v_lshlrev_b32 v28, 7, v58\nv_lshl_add_u32 v28, v57, 4, v28\nv_add_u32 v28, {PAR2}, v28")
    k(f"v_lshlrev_b32 v29, 4, v56\nv_add_u32 v29, {SCR}, v29\nv_lshl_add_u32 v30, v1, 2, v29")
    k(f"s_lshl_b32 s6, s{S_TT}, 4\ns_add_u32 s6, s6, s{S_MM}\ns_lshl_b32 s6, s6, 13")
    k(f"s_add_u32 s{S_O}, s0, s6\ns_addc_u32 s{S_O+1}, s1, 0\ns_mov_b32 s{S_O+2}, 8192")
    k.srd(56, 54, 4*12288, WS_MODP)

MBASE = 0
def m_loads(base=0):
    return [[f"s_mov_b32 s{S_T0+2}, {4096*(1+(i>>2)) + (i&3)*12288}", V(f"buffer_load_dwordx4 {ar(base+4*i,4)}, v31, s[56:59], s{S_T0+2} offen sc1", "M")] for i in range(8)]
def m_finish(k, R=None):
    if R is None:
        R = 64
        for i in range(32): k(f"v_accvgpr_read_b32 v{64+i}, a{MBASE+i}")
    k(f"s_mov_b32 s6, 0\ns_cmp_lt_u32 s{S_WAVE}, 2\ns_cselect_b32 s{S_T0+4}, 1.0, 0\nv_add_u32 v31, {PAR2}, v31")
    mod_finish(k, R, 6); mod_finish(k, R+16, S_T0+4)
    k(f"ds_write_b128 v31, {vr(R,4)}\nds_write_b128 v31, {vr(R+16,4)} offset:4096\ns_waitcnt lgkmcnt(0)")

def x_loads():
    return [[V(f"buffer_load_dwordx2 {vr(XR+pc*4+h*2,2)}, v25, {sr(S_O,4)}, 0 offen offset:{pc*512+h*32}", "X")] for pc in range(2) for h in range(2)]

def pollloop(k, lab, va):
    ld = lambda r: f"buffer_load_dword v{r}, v{va}, {sr(S_K,4)}, s63 offen sc1"
    if OPT.pp:
        k(ld(3) + f"\ns_sleep {OPT.pp}")
        k(f"{lab}_b:")
        for a, b in ((5, 3), (3, 5)):
            k(ld(a) + f"\ns_waitcnt vmcnt(1)\nv_cmp_ne_u32 vcc, 0x{MAGIC:x}, v{b}\ns_cbranch_vccz {lab}_d")
        k(f"s_add_u32 s7, s7, 1\ns_cmp_lt_u32 s7, 0x10000\ns_cbranch_scc1 {lab}_b")
    else:
        k(f"{lab}_b:")
        k(ld(3) + f"\ns_waitcnt vmcnt(0)\nv_cmp_ne_u32 vcc, 0x{MAGIC:x}, v3")
        k(f"s_cbranch_vccz {lab}_d\ns_add_u32 s7, s7, 1\ns_cmp_lt_u32 s7, 0x10000\ns_cbranch_scc1 {lab}_b")
    k(f"{lab}_c:")
    k(f"s_waitcnt vmcnt(0)\n{lab}_d:\ns_barrier")

def handoff(k, ph, tag, mid=(), delay=True):
    lab = f"k1_h{ph}"
    k(f"s_lshl_b32 s63, s{S_TT}, 11\ns_add_u32 s63, s63, {ph*32768}")
    k(f"v_lshlrev_b32 v2, 3, v{V_L16}\ns_lshl_b32 s6, s{S_MM}, 2\nv_add_u32 v2, s6, v2\nv_mov_b32 v3, 0x{MAGIC:x}")
    k(f"v_bfe_u32 v4, v{V_L16}, 4, 4\nv_lshlrev_b32 v4, 2, v4\ns_lshl_b32 s6, s{S_MM}, 7\nv_add_u32 v4, s6, v4")
    k.wait(vm=tag, barrier=True)
    k(f"s_cmp_eq_u32 s{S_WAVE}, 1\ns_cbranch_scc0 {lab}_a\ns_mov_b64 exec, 0xffff")
    k(f"buffer_store_dword v3, v2, {sr(S_K,4)}, s63 offen sc1\ns_mov_b64 exec, -1")
    k(f"{lab}_a:")
    k.run(mid)
    k(f"s_cmp_eq_u32 s{S_WAVE}, 0\ns_cbranch_scc0 {lab}_c\ns_mov_b32 s7, 0")
    if delay: k(f"s_sleep {OPT.pdelay}")
    pollloop(k, lab, 4)
    k.vm = []

def st(k, name):
    names = OPT.fts.split(',')
    if name in names:
        k.stamp(1 + names.index(name))
        if getattr(k, 'prof', False): k("s_waitcnt lgkmcnt(0)"); k.lg = []

def rest(k, ncw):
    k.srd(S_X, 54, 4*2048*1024, WS_PART)
    k.srd(S_M, 54, 2048*1024, WS_H2)
    k(f"s_lshl_b32 s6, s{S_TT}, 4\ns_add_u32 s6, s6, s{S_MM}\ns_lshr_b32 s7, s6, 1\ns_lshl_b32 s7, s7, 14\ns_and_b32 s6, s6, 1\ns_lshl_b32 s6, s6, 7\ns_add_u32 s44, s7, s6")
    st(k, "s1")
    n1 = min(OPT.fc1, C_NW - ncw)
    handoff(k, 1, "PST", [g for j in range(ncw, ncw + n1) for g in c_w(j)] + ([] if OPT.mearly else [m_finish]), delay=False); ncw += n1
    k.lg = []
    st(k, "y1")
    PR, PA, AC, T, XF = 64, 96, 144, 160, 168
    for i in range(8):
        k(f"s_add_u32 s{S_T0+(i&3)}, s44, {(i>>1)*0x200000 + (i&1)*8192}")
        k.vmop(f"buffer_load_dwordx4 {vr(PR+i*4,4)}, v24, {sr(S_X,4)}, s{S_T0+(i&3)} offen sc1", f"S{i>>1}")
    k.srd(S_W, 54, 2048*1024, WS_X1)
    k(f"s_add_u32 s{S_T0+4}, s44, 8192")
    for wi in range(3):
        for pc in range(2):
            for h in range(2): k(f"ds_read_b128 {vr(PA+wi*16+pc*8+h*4,4)}, v28 offset:{wi*2048 + pc*1024 + h*64}")
    n2 = min(OPT.fc2, C_NW - ncw)
    for j in range(ncw, ncw + n2): k.run(c_w(j))
    ncw += n2
    for d in range(8): k(f"v_lshlrev_b32 v{XF+2*d}, 16, v{XR+d}\nv_and_b32 v{XF+2*d+1}, 0xffff0000, v{XR+d}")
    for sp in range(4):
        k.wait(vm=f"S{sp}")
        for d in range(8):
            w = PR + sp*8 + d; t_ = T + 2*(d & 3)
            if sp == 0: k(f"v_lshlrev_b32 v{AC+2*d}, 16, v{w}\nv_and_b32 v{AC+2*d+1}, 0xffff0000, v{w}")
            else:
                k(f"v_lshlrev_b32 v{t_}, 16, v{w}\nv_and_b32 v{t_+1}, 0xffff0000, v{w}")
                k(f"v_pk_add_f32 {vr(AC+2*d,2)}, {vr(AC+2*d,2)}, {vr(t_,2)}")
    k("s_waitcnt lgkmcnt(0)")
    st(k, "p")
    for d in range(8): k(f"v_pk_fma_f32 {vr(AC+2*d,2)}, {vr(AC+2*d,2)}, {vr(PA+2*d,2)}, {vr(XF+2*d,2)}")
    for d in range(8): k(f"v_cvt_pk_bf16_f32 v{XR+d}, v{AC+2*d}, v{AC+2*d+1}")
    for d in range(8): k(f"v_lshlrev_b32 v{AC+2*d}, 16, v{XR+d}\nv_and_b32 v{AC+2*d+1}, 0xffff0000, v{XR+d}")
    def wsum(r):
        k(f"s_nop 1\nv_add_f32 v{r}, v{r}, v{r} row_ror:8")
        for sw in ("v_permlane16_swap_b32", "v_permlane32_swap_b32"):
            k(f"v_mov_b32 v{r+1}, v{r}\ns_nop 1\n{sw} v{r+1}, v{r}\ns_nop 1\nv_add_f32 v{r}, v{r}, v{r+1}")
    SO = ("s44", f"s{S_T0+4}")
    for i in range(4): k(f"v_pk_add_f32 {vr(T+2*i,2)}, {vr(AC+2*i,2)}, {vr(AC+8+2*i,2)}")
    for i in range(2): k(f"v_pk_add_f32 {vr(T+2*i,2)}, {vr(T+2*i,2)}, {vr(T+4+2*i,2)}")
    k(f"v_pk_add_f32 {vr(T,2)}, {vr(T,2)}, {vr(T+2,2)}\nv_add_f32 v{T}, v{T}, v{T+1}")
    for pc in range(2): k.vmop(f"buffer_store_dwordx4 {vr(XR+pc*4,4)}, v24, {sr(S_W,4)}, {SO[pc]} offen sc1", "HST")
    wsum(T)
    k(f"v_mul_f32 v14, {hexf(-1/128)}, v{T}")
    for i in range(8): k(f"v_pk_add_f32 {vr(AC+2*i,2)}, {vr(AC+2*i,2)}, v[14:15] op_sel_hi:[1,0]")
    for i in range(2): k(f"v_pk_mul_f32 {vr(T+2*i,2)}, {vr(AC+2*i,2)}, {vr(AC+2*i,2)}")
    for i in range(2, 8): k(f"v_pk_fma_f32 {vr(T+2*(i&1),2)}, {vr(AC+2*i,2)}, {vr(AC+2*i,2)}, {vr(T+2*(i&1),2)}")
    k(f"v_pk_add_f32 {vr(T,2)}, {vr(T,2)}, {vr(T+2,2)}\nv_add_f32 v{T}, v{T}, v{T+1}")
    wsum(T)
    k(f"ds_write_b32 v30, v14\nds_write_b32 v30, v{T} offset:128")
    for i in range(8): k(f"v_pk_mul_f32 {vr(AC+2*i,2)}, {vr(AC+2*i,2)}, {vr(PA+32+2*i,2)}")
    k("s_waitcnt lgkmcnt(0)\ns_barrier")
    k(f"ds_read_b128 {vr(T,4)}, v29\nds_read_b128 {vr(T+4,4)}, v29 offset:128\ns_waitcnt lgkmcnt(1)")
    k(f"v_pk_add_f32 v[12:13], {vr(T,2)}, {vr(T+2,2)}\nv_add_f32 v12, v12, v13\nv_mul_f32 v12, {hexf(-0.25)}, v12")
    for h in range(2): k(f"v_pk_add_f32 {vr(T+2*h,2)}, {vr(T+2*h,2)}, v[12:13] op_sel_hi:[1,0]")
    k(f"v_add_f32 v14, v14, v12\nv_pk_mul_f32 {vr(T,2)}, {vr(T,2)}, {vr(T,2)}\nv_pk_fma_f32 {vr(T,2)}, {vr(T+2,2)}, {vr(T+2,2)}, {vr(T,2)}\ns_waitcnt lgkmcnt(0)")
    k(f"v_pk_add_f32 {vr(T+4,2)}, {vr(T+4,2)}, {vr(T+6,2)}\nv_add_f32 v{T}, v{T}, v{T+1}\nv_add_f32 v{T+4}, v{T+4}, v{T+5}")
    k(f"v_mov_b32 v12, {hexf(1e-5)}\nv_fmac_f32 v12, {hexf(0.25)}, v{T}\nv_fmac_f32 v12, {hexf(1/512)}, v{T+4}\nv_rsq_f32 v12, v12\ns_nop 0")
    k("v_mul_f32 v14, v14, v12\nv_sub_f32 v14, 0, v14")
    for pc in range(2):
        for i in range(4*pc, 4*pc+4): k(f"v_pk_fma_f32 {vr(PA+16+2*i,2)}, {vr(PA+32+2*i,2)}, v[14:15], {vr(PA+16+2*i,2)} op_sel_hi:[1,0,1]")
        for i in range(4*pc, 4*pc+4): k(f"v_pk_fma_f32 {vr(AC+2*i,2)}, {vr(AC+2*i,2)}, v[12:13], {vr(PA+16+2*i,2)} op_sel_hi:[1,0,1]")
        for d in range(4*pc, 4*pc+4): k(f"v_cvt_pk_bf16_f32 v{PR+d}, v{AC+2*d}, v{AC+2*d+1}")
        k.vmop(f"buffer_store_dwordx4 {vr(PR+4*pc,4)}, v24, {sr(S_M,4)}, {SO[pc]} offen sc1", "HST")
    CA = lambda m, t, tb: 64 + ((t*2+m)*2+tb)*4
    CW = lambda j, m, t, n=4, o=0: (ar if (j >> 1) & 1 else vr)((128 if (j >> 1) & 1 else 160) + (((j & 1)*6+t)*2+m)*4 + o, n)
    CB = lambda j, tb: (j*2+tb)*4
    V_CW = 8
    k(f"v_lshrrev_b32 v56, 8, v{V_L16}\nv_bfe_u32 v57, v{V_L16}, 6, 2\nv_bfe_u32 v58, v{V_L16}, 4, 2")
    k("v_lshl_add_u32 v59, v56, 2, v57\nv_mul_u32_u24 v60, 192, v59\nv_lshl_add_u32 v60, v58, 3, v60\nv_and_b32 v61, 1, v56")
    for par in range(2):
        k(f"v_xor_b32 v62, {par}, v61\nv_lshl_add_u32 v{V_CW+par}, v62, 5, v60\nv_add_u32 v{V_CW+2+par}, {5*C_W}, v{V_CW+par}\nv_add_u32 v{V_CW+4+par}, {10*C_W}, v{V_CW+par}")
    k(f"s_lshl_b32 s6, s{S_TT}, 2\ns_add_u32 s6, s6, s{S_WAVE}\ns_lshl_b32 s44, s6, 15")
    k(f"s_mul_i32 s6, s6, {2*43*1024}\ns_mul_i32 s7, s{S_MM}, 3072\ns_add_u32 s6, s6, s7\ns_add_u32 s6, s6, 0x{WS_HF:x}")
    k(f"s_add_u32 s{S_X}, s54, s6\ns_addc_u32 s{S_X+1}, s55, 0\ns_mov_b32 s{S_X+2}, {43*1024+3072}")
    k(f"s_mov_b32 s{S_O}, s{S_X}\ns_mov_b32 s{S_O+1}, s{S_X+1}\ns_cmp_eq_u32 s{S_MM}, 14\ns_cselect_b32 s{S_O+2}, 0, s{S_X+2}")
    def c_reads(p):
        r = []
        for t in range(6):
            for m in range(2):
                for j in (2*p, 2*p+1):
                    sl = cperm()[j % C_NW]; bank = sl // 5; off = (sl % 5)*C_W
                    r += [L(f"ds_read_b64_tr_b16 {CW(j,m,t,2,2*h)}, v{V_CW+2*bank+(t&1)} offset:{off + m*6144 + h*3072 + (t>>1)*64}", f"R{p}_{t}") for h in range(2)]
        return r
    st(k, "s2")
    n3 = min(OPT.fc3, C_NW - ncw)
    k.lg = []
    assert ncw - n2 >= 2
    handoff(k, 2, "HST", [g for j in range(ncw, ncw + n3) for g in c_w(j)] + c_reads(0), delay=OPT.fdl2); ncw += n3
    st(k, "y2")
    assert ncw >= 4
    k(f"s_cmp_eq_u32 s{S_MM}, 15\ns_cbranch_scc1 k1_c15")
    def c_b(j):
        return [[f"s_add_u32 s{S_T0+tb}, s44, {tb*16384 + (j>>2)*4096}",
                 V(f"buffer_load_dwordx4 {ar(CB(j,tb),4)}, v{V_L16}, {sr(S_M,4)}, s{S_T0+tb} offen offset:{(j&3)*1024} sc1", f"CB{j}")] for tb in range(2)]
    nb = OPT.fb0
    for j in range(nb): k.run(c_b(j))
    nd = 0
    for p in range(8):
        if p == 7:
            st(k, "c7")
            k.wait(vm="CB15", lg="R7_1")
            mq = []; vq = []; n_ = 0
            for u in range(3):
                for tb in range(2):
                    o = 32 + (n_ & 3)*4
                    for h in range(2):
                        t = 2*u + h
                        for m in range(2):
                            d = vr(CA(m, t, tb), 4)
                            for i, j in enumerate((14, 15) if m == 0 else (15, 14)):
                                mq.append(It(f"{MF} {d}, {CW(j,m,t)}, {ar(CB(j,tb),4)}, {d}", gives=f"D{t}{tb}" if (m and i) else None, needs={"RR": 0} if len(mq) == 16 else None))
                        a = CA(0, t, tb); b = CA(1, t, tb)
                        vq += [It(f"v_mul_f32 v{a+i}, v{a+i}, v{b+i}", needs={f"D{t}{tb}": 8}) for i in range(4)]
                        vq += [It(f"v_cvt_pk_bf16_f32 v{o+2*h+e}, v{a+2*e}, v{a+2*e+1}") for e in range(2)]
                    vq.append(It(V(f"buffer_store_dwordx4 {vr(o,4)}, v{V_L16}, {sr(S_O if u else S_X,4)}, s{S_T0+tb} offen offset:{u*1024} sc1", "GST"), cost=2))
                    n_ += 1
            merge(k, mq, vq, [It(f"s_mov_b32 s{S_T0}, 0\ns_mov_b32 s{S_T0+1}, {43*1024}", cost=0), It(W(lg='all'), cost=0, gives="RR", needs={"D10": 0})])
            break
        mf = []; n_ = 0
        for t in range(6):
            for m in range(2):
                for tb_ in range(2):
                    tb = tb_ if m == 0 else 1 - tb_
                    d = vr(CA(m, t, tb), 4)
                    for i, j in enumerate((2*p, 2*p+1) if n_ % 2 == 0 else (2*p+1, 2*p)):
                        mf.append(f"{MF} {d}, {CW(j,m,t)}, {ar(CB(j,tb),4)}, {d if (p or i) else '0'}")
                    n_ += 1
        vm = []
        while len(vm) < OPT.fvm - 1:
            wok = ncw < 16 and (ncw < C_NW or p >= (ncw - C_NW)//2 + 1)
            if wok and (nb >= 16 or ncw//2 - 2 <= nb//2): vm += c_w(ncw); ncw += 1
            elif nb < 16: vm += c_b(nb); nb += 1
            elif ncw == 16 and nd < OPT.fde and c_last(dperm()[nd]) <= p - 1: vm += d_w(nd); nd += 1
            else: break
        assert ncw > 2*p + 3 + 2 or ncw == 16, (p, ncw)
        if OPT.cx == 1: vm = [x for x in vm if "m0" not in x[0]]
        if OPT.cx == 3: vm = []
        gaps = spread(48, c_reads(p+1) if OPT.cx != 2 else [], vm)
        if p == 1: st(k, "c1")
        if p == 4: st(k, "c4")
        add(gaps, -1, W(vm=f"CB{2*p+1}", lg=f"R{p}_1"))
        front(gaps, 12, W(lg=f"R{p}_3")); front(gaps, 26, W(lg=f"R{p}_5"))
        if p >= 1: front(gaps, 0, W(vm=f"CW{2*p+3}", barrier=True))
        emit(k, mf, gaps)
    assert nb == 16 and ncw == 16
    k("s_branch k1_c_done")
    k("k1_c15:")
    save = list(k.vm)
    for i in range(nd): k.run(d_w(i))
    k.vm = save
    k("k1_c_done:")
    V_DA = 8
    k("v_lshlrev_b32 v60, 7, v59\nv_lshl_add_u32 v60, v58, 3, v60\nv_bfe_u32 v61, v59, 1, 2\nv_lshrrev_b32 v62, 1, v1\nv_lshl_add_u32 v60, v62, 13, v60")
    for t in range(4):
        k(f"v_xor_b32 v62, {t}, v61\nv_lshl_add_u32 v{V_DA+t}, v62, 5, v60\nv_add_u32 v{V_DA+4+t}, 0x10000, v{V_DA+t}\nv_add_u32 v{V_DA+8+t}, 0x20000, v{V_DA+t}")
    k(f"s_lshl_b32 s6, s{S_TT}, 1\ns_lshr_b32 s7, s{S_MM}, 3\ns_add_u32 s6, s6, s7\ns_lshl_b32 s6, s6, 1\ns_and_b32 s7, s{S_WAVE}, 1\ns_add_u32 s6, s6, s7\ns_lshl_b32 s44, s6, 1")
    k(f"s_lshr_b32 s46, s{S_WAVE}, 1\ns_mul_i32 s6, s44, {43*1024}\ns_lshl_b32 s7, s46, 11\ns_add_u32 s6, s6, s7\ns_add_u32 s6, s6, 0x{WS_HF:x}")
    k(f"s_add_u32 s{S_M}, s54, s6\ns_addc_u32 s{S_M+1}, s55, 0\ns_sub_u32 s{S_M+2}, {2*43*1024}, s7")
    k(f"s_add_u32 s44, s44, s46\ns_mul_i32 s46, s46, {43*1024}\ns_sub_u32 s47, {43*1024}, s46")
    k(f"s_lshl_b32 s44, s44, 14\ns_and_b32 s7, s{S_MM}, 7\ns_lshl_b32 s6, s7, 7\ns_add_u32 s6, s6, s44")
    k(f"s_add_u32 s{S_V}, s98, s6\ns_addc_u32 s{S_V+1}, s99, 0\ns_sub_u32 s{S_V+2}, {2048*1024}, s6")
    k(f"s_lshl_b32 s6, s7, 11\ns_add_u32 s44, s44, s6\ns_lshl_b32 s7, s7, 8\ns_add_u32 s7, s7, {PAR2+6144}")
    k(f"v_bfe_u32 v57, v{V_L16}, 4, 4\nv_lshlrev_b32 v24, 10, v57\nv_lshl_add_u32 v24, v56, 4, v24")
    k("v_lshlrev_b32 v25, 4, v56\nv_add_u32 v25, s7, v25")
    XS = dperm()[2]*D_U
    k(f"v_lshl_add_u32 v28, v1, 12, v{V_L16}\nv_add_u32 v28, {XS}, v28\nv_xor_b32 v29, 0x2000, v28")
    DA = lambda t, tb: 64 + (tb*4+t)*4
    DW = lambda i, e, t: 128 + (((i & 1)*2+e)*4+t)*4
    DB = lambda i, e, tb: ((i*2+e)*2+tb)*4
    def d_b(i):
        return [[f"s_add_u32 s{S_T0+tb}, s{46+tb}, {i*4096}", V(f"buffer_load_dwordx4 {ar(DB(i,e,tb),4)}, v{V_L16}, {sr(S_M,4)}, s{S_T0+tb} offen offset:{e*1024} sc1", f"DB{i}")] for tb in range(2) for e in range(2)]
    def d_reads(i):
        base = dperm()[i % D_NW]*D_U; bank = base >> 16; off = base & 0xffff
        return [L(f"ds_read_b64_tr_b16 {vr(DW(i,e,t)+2*h,2)}, v{V_DA+4*bank+t} offset:{off + e*4096 + h*2048}", f"R{i}_{t}") for t in range(4) for e in range(2) for h in range(2)]
    st(k, "s3")
    k.lg = []
    assert nd >= 1
    xl = [[V(f"buffer_load_dwordx4 {vr(XR+4*s_,4)}, v{V_L16}, {sr(S_W,4)}, s44 offen offset:{1024*s_} sc1", "X1")] for s_ in range(2)]
    n4 = min(OPT.fd1, D_NW - nd)
    gbr = [L(f"ds_read_b128 {vr(32+4*t,4)}, v25 offset:{64*t}", "GB") for t in range(4)]
    handoff(k, 3, "GST", xl + [g for i in range(nd, nd + n4) for g in d_w(i)] + gbr + d_reads(0), delay=OPT.fdl3); nd += n4
    npub = nd
    st(k, "y3")
    assert nd >= 2
    nb = OPT.fdb0
    for i in range(nb): k.run(d_b(i))
    for d in range(8): k(f"v_lshlrev_b32 v{96+2*d}, 16, v{XR+d}\nv_and_b32 v{97+2*d}, 0xffff0000, v{XR+d}")
    lastbar = -1
    for i in range(11):
        mf = []; n_ = 0
        if i < 10:
            for t in range(4):
                for tb_ in range(2):
                    tb = tb_ if t % 2 == 0 else 1 - tb_
                    d = vr(DA(t, tb), 4)
                    for c, e in enumerate((0, 1) if n_ % 2 == 0 else (1, 0)):
                        mf.append(f"{MF} {d}, {vr(DW(i,e,t),4)}, {ar(DB(i,e,tb),4)}, {d if (i or c) else '0'}")
                    n_ += 1
        else:
            k.wait(vm="DB10", lg='all')
            k(f"s_cmp_ge_u32 s{S_WAVE}, 2\ns_cbranch_scc1 k1_d_skip")
            for e in (1, 0):
                if e == 0: k("k1_d_skip:")
                for tb in (1, 0):
                    for t in range(4):
                        d = vr(DA(t, tb), 4)
                        k(f"{MF} {d}, {vr(DW(i,e,t),4)}, {ar(DB(i,e,tb),4)}, {d}")
            break
        bar = i + 1 >= npub or i in (OPT.fdr, OPT.fdr + 1)
        if bar: lastbar = i
        vm = []
        if nb < 11: vm += d_b(nb); nb += 1
        if nd < 11 and (nd < D_NW or lastbar >= nd - D_NW + 1) and nd <= nb + OPT.fdl: vm = vm[:2] + d_w(nd) + vm[2:]; nd += 1
        assert nd > i + 2 or nd == 11, (i, nd)
        k.wait(vm=f"DB{i}", lg=f"R{i}_1")
        gaps = {}
        if bar: add(gaps, 0, W(vm=f"DW{i+1}", barrier=True))
        add(gaps, 6, W(lg=f"R{i}_3"))
        rd = d_reads(i+1)
        for g in range(16):
            if vm and g % 2 == 1: add(gaps, g, *vm.pop(0))
            elif rd: add(gaps, g, rd.pop(0), rd.pop(0))
        assert not vm and not rd
        emit(k, mf, gaps)
    assert nb == 11 and nd == 11 and lastbar >= 3
    st(k, "d1")
    k("s_nop 3")
    for t in range(4): k(f"ds_write_b128 v28, {vr(DA(t,1),4)} offset:{t*1024}")
    for e in range(0, 16, 2): k(f"v_pk_fma_f32 {vr(96+e,2)}, {vr(64+e,2)}, {vr(32+e,2)}, {vr(96+e,2)}")
    k("s_waitcnt lgkmcnt(0)\ns_barrier")
    for t in range(4): k(f"ds_read_b128 {vr(64+4*t,4)}, v29 offset:{t*1024}")
    for s_ in range(2):
        k(f"s_waitcnt lgkmcnt({2-2*s_})")
        for e in range(8*s_, 8*s_+8, 2): k(f"v_pk_fma_f32 {vr(64+e,2)}, {vr(64+e,2)}, {vr(32+e,2)}, {vr(96+e,2)}")
        o = 112 + 4*s_
        for d in range(4): k(f"v_cvt_pk_bf16_f32 v{o+d}, v{64+8*s_+2*d}, v{65+8*s_+2*d}")
        k(f"s_nop 1\nv_permlane32_swap_b32 v{o}, v{o+2}\nv_permlane32_swap_b32 v{o+1}, v{o+3}\ns_nop 1\nv_permlane16_swap_b32 v{o}, v{o+2}\nv_permlane16_swap_b32 v{o+1}, v{o+3}")
        k(f"buffer_store_dwordx4 {vr(o,4)}, v24, {sr(S_V,4)}, 0 offen offset:{64*s_} {OPT.st5}")
```

```python
from common import *
from sched import fill, L, V, W, front, emit, It, merge
from k0 import mod_loads, mod_finish, C1
import k1t, k1p

MF = "v_mfma_f32_16x16x32_bf16"

SLOT = 16384
KB = 0
VB = 65536
PARB = 9*SLOT
FLAGB = PARB + 4096
WSLOT = [1, 4, 2, 5, 3, 6, 7, 8]

def O(db, qb): return (db*4+qb)*4
def LA(qb): return 128 + qb*4
def KF(i): return 144 + i*4
def VF(i): return 176 + i*4
ONES = 240
def Q(qb, s): return 128 + (qb*4+s)*4
def S(buf, kb, qb): return 64 + buf*32 + (kb*4+qb)*4
def P(buf, qb): return (32 + buf*16 if buf < 2 else 208 + (buf-2)*16) + qb*4
def MN(qb): return 192 + qb*4
V_KA = 8
V_VA = 12
V_DK = 20
V_DV = 24
V_L16 = 26
V_LS = 28
V_PF = 2
V_T = 208
def XR(slot, qb): return 128 + ((slot%4)*4+qb)*4
def QA(t, qb): return vr(192 + (qb*8+t)*4, 4) if qb < 2 else ar(((qb-2)*8+t)*4, 4)
def HK(b): return (lambda i: 64 + b*32 + i*4)
def HF(buf, qb): return 32 + (buf*4+qb)*4
def PAR(buf): return 64 + buf*16
V_PT = 96
V_WA = 112
V_DW = 124
V_PA = 125
def WF(buf, t): return 128 + (buf*8+t)*4
S_K, S_V, S_W, S_X, S_M, S_O = 8, 12, 16, 20, 24, 28
S_W4 = 32
S_KOFF, S_VOFF = 33, 34
S_CNT = 35
S_T0 = 36
S_RERUN = 44
S_WAVE = 45
S_W1 = 62

def emit_phase(k, mf, gaps):
    for f in gaps.get(-1, []): f(k) if callable(f) else k(f)
    for i, m in enumerate(mf):
        k(m)
        for f in gaps.get(i, []): f(k) if callable(f) else k(f)
    for g in gaps:
        assert g < len(mf), (g, len(mf))

def add(gaps, g, *items):
    gaps.setdefault(g, []).extend(items)

def qk_mfmas(buf, kf=KF, czero=False):
    r = []
    order = {0: [(kb,s,qb) for kb in range(2) for s in range(4) for qb in range(4)],
             1: [(kb,s,qb) for kb in range(2) for qb in range(4) for s in range(4)],
             2: [(kb,s,qb) for qb in range(4) for s in range(4) for kb in range(2)],
             4: [(kb,s if qb%2==0 else 3-s,qb) for kb in range(2) for qb in range(4) for s in range(4)],
             5: [(kb,s if kb%2==0 else 3-s,qb) for qb in range(4) for kb in range(2) for s in range(4)],
             3: [(kb,s,qb if s%2==0 else 3-qb) for kb in range(2) for s in range(4) for qb in range(4)]}[OPT.qko]
    seen = set()
    for kb, s, qb in order:
            if True:
                d = vr(S(buf, kb, qb), 4)
                started = (kb, qb) in seen; seen.add((kb, qb))
                c = d if started else ("0" if czero else vr(MN(qb), 4))
                r.append(f"{MF} {d}, {ar(kf(kb*4+s),4)}, {vr(Q(qb,s),4)}, {c}")
    return r

def pv_mfmas(buf, sumq, vf=VF, czero=False):
    r = []
    for qb in sumq:
        d = ar(LA(qb), 4)
        r.append(f"{MF} {d}, {ar(ONES,4)}, {vr(P(buf,qb),4)}, {'0' if czero else d}")
    order = {0: [(db,qb) for db in range(8) for qb in range(4)],
             1: [(db,qb) for qb in range(4) for db in range(8)],
             3: [(db if qb%2==0 else 7-db,qb) for qb in range(4) for db in range(8)],
             2: [(db,qb if db%2==0 else 3-qb) for db in range(8) for qb in range(4)]}[OPT.pvo]
    for db, qb in order:
        if True:
            d = ar(O(db, qb), 4)
            r.append(f"{MF} {d}, {ar(vf(db),4)}, {vr(P(buf,qb),4)}, {'0' if czero else d}")
    return r

def exps(buf, qbs):
    r = []
    for qb in qbs:
        for kb in range(2):
            for i in range(4):
                x = S(buf, kb, qb) + i
                r.append(f"v_exp_f32{OPT.e64} v{x}, v{x}")
    return r
def cvts(buf, qbs, pb=None):
    pb = buf if pb is None else pb
    r = []
    for qb in qbs:
        for kb in range(2):
            for h in range(2):
                x = S(buf, kb, qb) + 2*h
                r.append(f"v_cvt_pk_bf16_f32 v{P(pb,qb)+kb*2+h}, v{x}, v{x+1}" if not OPT.trunc else f"v_perm_b32 v{P(pb,qb)+kb*2+h}, v{x+1}, v{x}, s53")
    return r
def adds(buf, qbs, addq):
    r = []
    for qb in qbs:
        for kb in range(2):
            for i in range(4):
                x = S(buf, kb, qb) + i
                r.append(f"v_add_f32{OPT.a64} v{V_LS+qb}, v{x}, v{V_LS+qb}" if qb in addq else None)
    return r
def kreads(slot, blk, kf=KF):
    r = []
    for kb in range(2):
        for s in range(4):
            r.append(f"ds_read_b128 {ar(kf(kb*4+s),4)}, v{V_KA+s} offset:{KB+slot*SLOT+blk*8192+kb*4096}")
    return r
def vreads(slot, blk, vf=VF):
    r = []
    for db in range(8):
        for h in range(2):
            r.append(f"ds_read_b64_tr_b16 {ar(vf(db)+2*h,2)}, v{V_VA+db} offset:{slot*SLOT+blk*8192+h*4096}")
    return r
def dma_k(p): return f"buffer_load_dwordx4 v{V_DK+p}, {sr(S_K,4)}, s{S_KOFF} offen offset:{p*1024} {OPT.kvnt} lds"
def dma_v(p): return f"buffer_load_dwordx4 v{V_DV+(p&1)}, {sr(S_V,4)}, s{S_VOFF} offen offset:{p*1024} {OPT.kvnt} lds"

class Cfg:
    la = 4
    wb4 = 0
    nvm = 8
    npk = 10
    ne1 = 33
    nv1 = 11
    v19 = 1
    wb = 0
    pfo = 2
    pfc = (5, 2, 9)
    ppf = 0
    wocnt = 1
    bar2 = 0
    kvspread = 1
    w1pf = 0
    fine = 0
    kvper = 7
    x = 0
    pf = 2
    sumq = [1, 3]
    def addq(self): return [q for q in range(4) if q not in self.sumq]

def pv2_mfmas(pb, sumq, czero=False, order=None):
    r = []
    n = 0
    def pair(d, a0, a1, qb):
        nonlocal n
        js = (0, 1) if n % 2 == 0 else (1, 0); n += 1
        for i, j in enumerate(js):
            r.append(f"{MF} {d}, {ar(a1 if j else a0,4)}, {vr(P(pb+j,qb),4)}, {'0' if (czero and i == 0) else d}")
    for qb in sumq: pair(ar(LA(qb), 4), ONES, ONES, qb)
    for db in range(8):
        for q in range(4):
            qb = q if db % 2 == 0 else 3 - q
            pair(ar(O(db, qb), 4), VF(db), VF(8+db), qb)
    return r

def sm_stream(cfg, u):
    qs = range(4)
    E = exps(u & 1, qs); C = cvts(u & 1, qs, u & 3); A = adds(u & 1, qs, cfg.addq())
    r = []
    for i, e in enumerate(E):
        f = [A[i]] if A[i] else []
        if i % 2 == 1: f.append(C[i//2])
        r.append((e, f))
    return r

def vreads2(slot):
    r = []
    for db in range(8):
        for blk in range(2):
            for h in range(2):
                r.append((db, L(f"ds_read_b64_tr_b16 {ar(VF(8*blk+db)+2*h,2)}, v{V_VA+db} offset:{slot*SLOT+blk*8192+h*4096}", "V")))
    return r

def pack(k, mf, fixed, stream, lds, vm, deadlines=(), keep=False):
    n = len(mf)
    stream = list(stream); lds = list(lds); vm = list(vm)
    ready = []
    k.run(fixed.get(-1, []))
    ne = len(stream); ie = 0
    lastvm = -9; vm0 = list(vm)
    for g in range(n):
        k(mf[g]); k.run(fixed.get(g, []))
        left = 2
        if OPT.barfree and any(isinstance(x, str) and "s_barrier" in x for x in fixed.get(g, [])): left = 2 - OPT.barfree
        want_e = ie < ne and g < n-1 and (g % 2 == 0 or (ne - ie) > (n - g)//2)
        if g % 2 == 1 or not want_e:
            if vm and vm[0][0] <= g and g - lastvm >= (OPT.vsp if len(vm0) <= 8 else 4) and not (lds and lds[0][0] <= g and lds[0][2:] == ('urgent',)):
                k.run(vm.pop(0)[1]); left -= 2; lastvm = g
            else:
                c = [x for x in lds if x[0] <= g]
                c.sort(key=lambda x: 0 if len(x) > 2 else 1)
                if c:
                    lds.remove(c[0]); k.run([c[0][1]]); left -= 1
                    rem = len([y for y in range(g+1, n) if y % 2 == 1]) - 3
                    if len(c) > 1 and len(lds) + len(vm) > rem:
                        lds.remove(c[1]); k.run([c[1][1]]); left -= 1
        if want_e:
            e, f = stream[ie]; k(e); left -= 2
            ready += [(g, ie, x) for x in f]; ie += 1
        must = [x for x in ready if any(x[1] < idx and g + 1 >= dl for idx, dl in deadlines)]
        while ready and ready[0][0] < g and (left > 0 or ready[0] in must or len(ready) > OPT.bk or g == n-1):
            k(ready.pop(0)[2]); left -= 1
    assert ie == ne and not vm and not ready and (keep or not lds), (ie, ne, len(lds), len(vm), ready)
    return lds

R1 = 16

def iteration(k, cfg, t4, part="all", czero=False, pf=(), post=(), label=None, extra=()):
    ks = t4; vs = (t4 - 1) % 4; u = 2*t4
    k.c(f"---- iteration T%4={t4} {part} ----")
    ns = 2*len(cfg.sumq)
    pv = pv2_mfmas((u - 4) & 3, cfg.sumq, czero); npv = len(pv)
    st = sm_stream(cfg, u - 2)[32-R1:] + sm_stream(cfg, u - 1) + sm_stream(cfg, u)[:32-R1]
    dmas = [[f"s_add_u32 m0, s{S_W4}, {KB + ((t4+3)%4)*SLOT}\ns_nop 0" if p == 0 else "", dma_k(p)] for p in range(4)]
    dmas += [[f"s_add_u32 m0, s{S_W4}, {VB + ((t4+2)%4)*SLOT}\ns_add_u32 s{S_KOFF}, s{S_KOFF}, {SLOT}" if p == 0 else "", dma_v(p)] for p in range(4)]
    dmas[-1].append(f"s_add_u32 s{S_VOFF}, s{S_VOFF}, {SLOT}")
    ka = [L(x, "KA") for x in kreads(ks, 0)]; kb = kreads(ks, 1)
    vr_ = vreads2(vs)
    NE1 = cfg.ne1
    NV1 = cfg.nv1
    nvm = 16 if not (cfg.pf and cfg.pfo and cfg.v19) else (18 if part == "pv" else 19)
    bar = {ns-1: [f"s_waitcnt vmcnt({nvm}) lgkmcnt(0)\ns_barrier"]}
    if part == "tail":
        k.lg = []
        if OPT.fa and (OPT.na0 or OPT.na1): bar = {ns-1: ["s_waitcnt vmcnt(0) lgkmcnt(0)\ns_barrier"]}
        return pack(k, pv, bar, st[:R1+32], [(ns + 8*db + 7, x) for db, x in vr_], [(ns, x) for x in extra], keep=True)
    if part in ("all", "pv"):
        k.lg = []
        lds = [(ns, x) for x in ka] + [(ns + 8*db + 7, x) for db, x in vr_[:NV1]]
        pack(k, pv, bar, st[:NE1], lds, [(ns + OPT.v0, d) for d in dmas])
    if label: k(f"{label}:")
    if part in ("all", "first"):
        vm = [(40, [pf[1]])] if pf else []
        fixed = {-1: [W(lg="KA")], 30: [W(lg="KB0")], 46: [W(lg="KB1")]}
        if pf: fixed[38] = [pf[0]]
        if part == "first":
            NE1 = R1; NV1 = 0; k.lg = []
            fixed[-1] = ["s_waitcnt lgkmcnt(0)"]
            vm = [(2, [kv_setup(wh, t), dma_k(p) if wh == 'K' else dma_v(p)]) for wh, t in (('V',2),('K',4),('V',3)) for p in range(4)]
            if cfg.v19:
                dummy = f"s_mov_b32 s6, 0x80000\nbuffer_load_dword v{V_PF+3}, v{V_PF}, {sr(S_O,4)}, s6 offen"
                vm[3][1].append(dummy); vm[11][1].append(dummy)
            post = [f"s_mov_b32 s{S_KOFF}, {5*SLOT}\ns_mov_b32 s{S_VOFF}, {4*SLOT}"]
        lds = [(0, x) for db, x in vr_[NV1:]] + [(15, L(x, "KB0"), 'urgent') for x in kb[:4]] + [(31, L(x, "KB1"), 'urgent') for x in kb[4:]]
        pack(k, qk_mfmas(0) + qk_mfmas(1), fixed, st[NE1:], lds, vm, deadlines=[(R1 + 32 - NE1, 40)])
    for f in post: k(f)

def kv_setup(which, tile):
    if which == 'K': return f"s_add_u32 m0, s{S_W4}, {KB + (tile%4)*SLOT}\ns_mov_b32 s{S_KOFF}, {tile*SLOT}"
    return f"s_add_u32 m0, s{S_W4}, {VB + (tile%4)*SLOT}\ns_mov_b32 s{S_VOFF}, {tile*SLOT}"
def kv_group(which, tile):
    return [[kv_setup(which, tile), V(dma_k(p) if which == 'K' else dma_v(p), f"{which}{tile}")] for p in range(4)]

def rowmax_cross(k, regs, tmp):
    for sw in ("v_permlane32_swap_b32", "v_permlane16_swap_b32"):
        for i, r in enumerate(regs): k(f"v_mov_b32 v{tmp+i}, v{r}")
        k("s_nop 1")
        for i, r in enumerate(regs): k(f"{sw} v{tmp+i}, v{r}")
        k("s_nop 1")
        for i, r in enumerate(regs): k(f"v_max_f32 v{r}, v{r}, v{tmp+i}")

def gen_k1(cfg=None, prof=False):
    cfg = cfg or Cfg()
    k = Kern(NAME + "_kernel" if OPT.mk0 else "k1_attn_kernel", 256, 256, 160*1024, 512, 256, 102 if OPT.ff else (96 if prof else 64))
    k.prof = prof
    end = "k1_end"
    k(f"s_cmp_ge_u32 s2, 256\ns_cbranch_scc1 {end}")
    k.stamp(0)
    k.dbg_begin(1)
    k(f"s_load_dwordx2 s[52:53], s[0:1], {KA_WQ}")
    k(f"s_load_dwordx2 s[54:55], s[0:1], {KA_WS}")
    def more_ptrs():
        k(f"s_load_dwordx4 s[48:51], s[0:1], {KA_K}")
        k(f"s_load_dwordx2 s[46:47], s[0:1], {KA_WO}")
        k(f"s_load_dwordx4 s[56:59], s[0:1], {KA_WG}")
        k(f"s_load_dwordx2 s[60:61], s[0:1], {KA_WD}")
        if OPT.ff: k(f"s_load_dwordx2 s[98:99], s[0:1], {KA_OUT}")
        if OPT.mk0: k(f"s_load_dwordx4 s[{'64:67' if not prof else '92:95'}], s[0:1], {KA_C}")
        if OPT.mk0 and OPT.dflag: k(f"s_load_dwordx2 s[100:101], s[0:1], {KA_DBG}")
        k(f"s_load_dwordx2 s[0:1], s[0:1], {KA_X}")
    if OPT.mk0 or not OPT.lateptr: more_ptrs()
    k("v_lshrrev_b32 v1, 6, v0")
    k("v_and_b32 v2, 63, v0")
    k(f"v_readfirstlane_b32 s{S_WAVE}, v1")
    m = OPT.map4
    k(f"s_and_b32 s4, s2, {(8>>m)-1}\ns_bfe_u32 s5, s2, {((2+m)<<16)|3}\ns_lshl_b32 s5, s5, {3-m}\ns_add_u32 s4, s4, s5")
    k(f"s_bfe_u32 s5, s2, {(m<<16)|(3-m)}\ns_lshl_b32 s5, s5, {3-m}\ns_lshr_b32 s6, s2, {5+m}\ns_add_u32 s5, s5, s6")
    k(f"s_lshl_b32 s{S_W4}, s{S_WAVE}, 12")
    k(f"s_mov_b32 s{S_RERUN}, 0")
    k("v_lshrrev_b32 v3, 4, v2")
    k("v_and_b32 v4, 15, v2")
    k("v_lshrrev_b32 v5, 2, v4")
    k("v_and_b32 v6, 3, v2")
    k(f"v_lshlrev_b32 v{V_L16}, 4, v2")
    k("v_lshlrev_b32 v7, 2, v3\nv_xor_b32 v7, v7, v4\nv_lshlrev_b32 v7, 4, v7")
    k(f"v_lshl_add_u32 v{V_DW}, v1, 2, v3\nv_lshl_add_u32 v{V_DW}, v{V_DW}, 13, v7")
    k(f"s_lshl_b32 s{S_W1}, s{S_WAVE}, 10")
    if OPT.mk0: k1p.pre_wait(k)
    k("s_waitcnt lgkmcnt(0)")
    if OPT.lateptr and not OPT.mk0: more_ptrs()
    k("s_lshl_b32 s6, s4, 8")
    k(f"s_add_u32 s{S_W}, s52, s6\ns_addc_u32 s{S_W+1}, s53, 0\ns_sub_u32 s{S_W+2}, {512*8192}, s6\ns_mov_b32 s{S_W+3}, 0x20000")
    k.srd(S_M, 54, 4*12288, WS_MODP)
    k(f"s_lshl_b32 s6, s5, 2\ns_add_u32 s6, s6, s{S_WAVE}\ns_lshl_b32 s7, s6, 16")
    k(f"s_add_u32 s7, s7, 0x{WS_XH:x}")
    k(f"s_add_u32 s{S_X}, s54, s7\ns_addc_u32 s{S_X+1}, s55, 0\ns_mov_b32 s{S_X+2}, 0x10000\ns_mov_b32 s{S_X+3}, 0x20000")
    def w_step(j, st0=S_T0):
        r = []
        for p in range(2):
            st = st0 + p
            r.append([f"s_add_u32 m0, s{S_W1}, {WSLOT[j>>1]*SLOT + (j&1)*8192 + p*4096}\ns_mov_b32 s{st}, {(j*32 + p*16)*8192}",
                      lambda kk, st=st: kk.vmop(f"buffer_load_dwordx4 v{V_DW}, {sr(S_W,4)}, s{st} offen {OPT.wqnt} lds", f"W{j}")])
        return r
    def x_loads(j):
        r = []
        for qb in range(4):
            st = S_T0 + 4 + qb
            r.append([f"s_mov_b32 s{st}, {qb*16384 + (j>>2)*4096}",
                      lambda kk, qb=qb, st=st: kk.vmop(f"buffer_load_dwordx4 {vr(XR(j,qb),4)}, v{V_L16}, {sr(S_X,4)}, s{st} offen offset:{(j&3)*1024} {'sc1' if OPT.mk0 else ''}", f"X{j}" if j else f"X0_{qb}")])
        return r
    def run(items):
        for f in items:
            if isinstance(f, list): run(f)
            else: f(k) if callable(f) else k(f)
    LA_ = cfg.la
    def rem_srds():
        k("s_lshl_b32 s6, s4, 19")
        k(f"s_add_u32 s{S_K}, s48, s6\ns_addc_u32 s{S_K+1}, s49, 0\ns_mov_b32 s{S_K+2}, 0x80000\ns_mov_b32 s{S_K+3}, 0x20000")
        k(f"s_add_u32 s{S_V}, s50, s6\ns_addc_u32 s{S_V+1}, s51, 0\ns_mov_b32 s{S_V+2}, 0x80000\ns_mov_b32 s{S_V+3}, 0x20000")
        k(f"s_lshl_b32 s6, s5, 2\ns_add_u32 s6, s6, s{S_WAVE}\ns_lshl_b32 s6, s6, 19\ns_lshl_b32 s7, s4, 12\ns_add_u32 s6, s6, s7")
        k(f"s_add_u32 s6, s6, 0x{WS_OF:x}")
        k(f"s_add_u32 s{S_O}, s54, s6\ns_addc_u32 s{S_O+1}, s55, 0\ns_mov_b32 s{S_O+2}, {3*131072+4096}\ns_mov_b32 s{S_O+3}, 0x20000")
    def addr_setup():
        k("v_lshl_add_u32 v7, v3, 3, v5\nv_lshlrev_b32 v7, 8, v7\nv_lshl_add_u32 v7, v6, 4, v7")
        for s in range(4):
            k(f"v_xor_b32 v27, {s}, v5\nv_lshl_add_u32 v{V_WA+s}, v27, 6, v7")
            k(f"v_add_u32 v{V_WA+4+s}, 0x10000, v{V_WA+s}\nv_add_u32 v{V_WA+8+s}, 0x20000, v{V_WA+s}")
        k(f"v_lshlrev_b32 v{V_PA}, 5, v3\nv_add_u32 v{V_PA}, {PARB}, v{V_PA}")
        for s in range(4):
            k(f"v_or_b32 v27, {4*s}, v3\nv_xor_b32 v27, v27, v4\nv_lshlrev_b32 v27, 4, v27\nv_lshl_add_u32 v{V_KA+s}, v4, 8, v27")
        k("v_lshl_add_u32 v7, v3, 2, v5\nv_and_b32 v27, 7, v7\nv_lshlrev_b32 v7, 8, v7\nv_lshl_add_u32 v7, v6, 3, v7")
        k(f"v_add_u32 v7, {VB}, v7")
        for db in range(8):
            k(f"v_xor_b32 v30, {db}, v27\nv_lshl_add_u32 v{V_VA+db}, v30, 5, v7")
        k("v_lshlrev_b32 v7, 8, v3\nv_lshl_add_u32 v7, v1, 12, v7")
        for p in range(4):
            k(f"v_or_b32 v27, {4*p}, v3\nv_xor_b32 v27, v27, v4\nv_lshl_add_u32 v{V_DK+p}, v27, 4, v7")
        for p in range(2):
            k(f"v_or_b32 v27, {4*p}, v3\nv_lshlrev_b32 v27, 1, v27\nv_xor_b32 v27, v27, v4\nv_lshl_add_u32 v{V_DV+p}, v27, 4, v7")
        k("v_mov_b32 v27, 0x3f803f80")
        for i in range(4): k(f"v_accvgpr_write_b32 a{ONES+i}, v27")
    k("v_lshlrev_b32 v31, 4, v0")
    wdone = 0
    if OPT.mk0:
        n0, n1, n2 = OPT.mw0, OPT.mw0 + OPT.mw1, OPT.mw0 + OPT.mw1 + OPT.mw2
        k1p.CP = 64 if not prof else 92
        sv = lambda a, b: [run(w_step(j, S_T0+6)) for j in range(a, b)]
        k1p.body(k, lambda: sv(0, n0), lambda: sv(n0, n1), lambda: (sv(n1, n2), addr_setup()))
        wdone = n2
        mod_loads(k, S_M, 31, S_T0, V_PT, 0, "M", "sc1")
        run(x_loads(0)); rem_srds()
    else:
        mod_loads(k, S_M, 31, S_T0, V_PT, 0, "M")
        run(w_step(0)); run(x_loads(0))
        addr_setup(); k("s_waitcnt lgkmcnt(0)"); rem_srds()
    w_step0 = w_step
    w_step = lambda j: w_step0(j) if j >= wdone else []
    def wreads(j):
        c = j >> 1; base = WSLOT[c]*SLOT; bank = base >> 16; off = (base & 0xffff) + (j & 1)*8192
        return [L(f"ds_read_b64_tr_b16 {ar(WF(j&1,t)+2*h,2)}, v{V_WA+4*bank+(t>>1)} offset:{off + h*1024 + 8*(t&1)}", f"R{j}_{t}")
                for t in range(8) for h in range(2)]
    def preads(j):
        b = PAR(j & 1)
        return [L(f"ds_read_b128 {vr(b+4*i,4)}, v{V_PA} offset:{j*128 + (i&1)*16 + (i>>1)*2048}", f"P{j}") for i in range(4)]
    def hcalc(j):
        b = PAR(j & 1); r = []
        for qb in range(4):
            t = V_PT + (qb & 1)*8
            for i in range(8):
                r.append(f"v_fma_mix_f32 v{t+i}, v{XR(j,qb)+(i>>1)}, v{b+8+i}, v{b+i} op_sel:[{i&1},0,0] op_sel_hi:[1,0,0]")
            for d in range(4):
                r.append(f"v_cvt_pk_bf16_f32 v{HF(j&1,qb)+d}, v{t+2*d}, v{t+2*d+1}")
        return r
    k(f"s_cmp_ge_u32 s{S_WAVE}, 2\ns_cselect_b32 s6, 1.0, 0\nv_add_u32 v31, {PARB}, v31")
    k.vmwait("M")
    mod_finish(k, V_PT, 6, C1)
    k(f"ds_write_b128 v31, {vr(V_PT,4)}")
    if OPT.modk1 and not OPT.ff:
        k("s_cmp_ge_u32 s2, 2\ns_cbranch_scc1 k1_nomod\nv_lshlrev_b32 v30, 4, v0\ns_add_u32 s7, s2, 1\ns_lshl_b32 s7, s7, 12")
        mod_loads(k, S_M, 30, S_T0, 192, "s7")
        k(f"s_lshl_b32 s6, s2, 1\ns_cmp_lt_u32 s{S_WAVE}, s6\ns_cselect_b32 s6, 1.0, 0\ns_sub_u32 s{S_M}, s{S_M}, {WS_MODP - WS_MOD}\ns_subb_u32 s{S_M+1}, s{S_M+1}, 0\ns_waitcnt vmcnt(0)")
        mod_finish(k, 192, 6)
        k(f"buffer_store_dwordx4 v[192:195], v30, {sr(S_M,4)}, s7 offen\ns_waitcnt vmcnt(0)")
        k("k1_nomod:")
    run(x_loads(1)); run(w_step(1))
    k.vmwait("W0", "lgkmcnt(0)"); k("s_barrier")
    run(preads(0)); run(preads(1)); run(wreads(0))
    assert LA_ == 4
    pend = [g for j in range(2, LA_) for g in x_loads(j) + w_step(j)]
    k.wait(lg="P0")
    k.stamp(1) if cfg.fine < 2 else k1t.st(k, 'q5')
    for i, v in enumerate(hcalc(0)):
        if i % 12 == 0: k.wait(vm=f"X0_{i//12}")
        if i % 6 == 0 and pend: run(pend.pop(0))
        k(v)
    kvplan = {12: kv_group('K', 0), 13: kv_group('K', 1), 14: kv_group('V', 0)}
    for j in range(15):
        k.c(f"qproj stage {j}")
        if cfg.fine == 1 and j in (0, 2, 4, 8, 12): k.stamp(2 + (0, 2, 4, 8, 12).index(j))
        mf = []
        for t in range(8):
            for q in range(4):
                qb = q if t % 2 == 0 else 3 - q
                d = QA(t, qb)
                mf.append(f"{MF} {d}, {ar(WF(j&1,t),4)}, {vr(HF(j&1,qb),4)}, {d if j else '0'}")
        lds = (preads(j+2) if j < 14 else []) + wreads(j+1)
        valu = hcalc(j+1)
        jj = j + LA_
        if jj >= 16: pend += kvplan[j]
        elif cfg.wb4:
            pend += x_loads(jj)
            if jj % cfg.wb4 == 0:
                for j2 in range(jj, min(16, jj + cfg.wb4)): pend += w_step(j2)
        else: pend += x_loads(jj) + w_step(jj)
        nvm = min(len(pend), cfg.nvm)
        vm = pend[:nvm]; pend = pend[nvm:]
        if cfg.x == 1: valu = valu[:16]
        gaps = fill(32, lds, valu, vm, g0=1, valu_end=31)
        add(gaps, -1, W(lg=f"R{j}_3"))
        front(gaps, 12, W(lg=f"R{j}_7"))
        if j < 2 or j % 2 == 1 or not cfg.bar2:
            tgt = j+1 if (j < 1 or not cfg.bar2) else j+2
            if cfg.wb4 and j + 1 >= 4:
                if (j + 1) % cfg.wb4 == 0:
                    front(gaps, 0, W(vm=f"X{j+1}"), W(vm=f"W{min(15, j + cfg.wb4)}", barrier=True))
                else: front(gaps, 0, W(vm=f"X{j+1}"))
            elif tgt < wdone: front(gaps, 0, W(vm=f"X{j+1}"))
            else: front(gaps, 0, W(vm=f"W{tgt}", barrier=True))
        else:
            front(gaps, 0, W(vm=f"X{j+1}"))
        emit(k, mf, gaps)
    assert not pend
    k.stamp(2) if not cfg.fine else (k.stamp(7) if cfg.fine == 1 else None)
    PF_F, PF_W = S_X, S_W
    pfsetup = [f"s_cmp_eq_u32 s{S_WAVE}, 1\ns_cselect_b64 s[{PF_F}:{PF_F+1}], s[58:59], s[56:57]",
        f"s_cmp_eq_u32 s{S_WAVE}, 2\ns_cselect_b64 s[{PF_F}:{PF_F+1}], s[60:61], s[{PF_F}:{PF_F+1}]",
        f"s_mul_i32 s6, s2, {43*128}\ns_add_u32 s{PF_F}, s{PF_F}, s6\ns_addc_u32 s{PF_F+1}, s{PF_F+1}, 0",
        f"s_lshl_b32 s6, s4, 17\ns_and_b32 s7, s5, 3\ns_lshl_b32 s7, s7, 15",
        f"s_add_u32 s6, s6, s7\ns_lshl_b32 s7, s{S_WAVE}, 13\ns_add_u32 s6, s6, s7",
        f"s_add_u32 s{PF_W}, s46, s6\ns_addc_u32 s{PF_W+1}, s47, 0\ns_mov_b32 s{PF_W+2}, 0x2000",
        f"s_cmp_eq_u32 s{S_WAVE}, 3\ns_cselect_b32 s{PF_F+2}, 0, {43*128}"]
    if OPT.xpf and OPT.ff:
        pfsetup += [f"s_lshl_b32 s6, s5, 1\ns_bfe_u32 s7, s2, 0x10005\ns_add_u32 s6, s6, s7",
            f"s_lshl_b32 s6, s6, 2\ns_and_b32 s7, s2, 3\ns_add_u32 s6, s6, s7",
            f"s_lshl_b32 s6, s6, 2\ns_bfe_u32 s7, s2, 0x20003\ns_add_u32 s6, s6, s7",
            f"s_lshl_b32 s6, s6, 2\ns_add_u32 s6, s6, s{S_WAVE}",
            f"s_lshl_b32 s6, s6, 11\ns_add_u32 s{S_M}, s0, s6\ns_addc_u32 s{S_M+1}, s1, 0\ns_mov_b32 s{S_M+2}, 2048"]
    elif OPT.xpf:
        pfsetup += [f"s_bfe_u32 s6, s2, 0x10002\ns_lshl_b32 s6, s6, 3\ns_bfe_u32 s7, s2, 0x30003",
            f"s_add_u32 s6, s6, s7\ns_lshl_b32 s6, s6, 2\ns_and_b32 s7, s2, 3",
            f"s_add_u32 s6, s6, s7\ns_lshl_b32 s6, s6, 2\ns_lshr_b32 s7, s2, 6",
            f"s_add_u32 s6, s6, s7\ns_lshl_b32 s6, s6, 2\ns_add_u32 s6, s6, s{S_WAVE}",
            f"s_lshl_b32 s6, s6, 11\ns_add_u32 s{S_M}, s0, s6\ns_addc_u32 s{S_M+1}, s1, 0\ns_mov_b32 s{S_M+2}, 2048"]
    xcc_pub = []
    if OPT.loc:
        def pub(k):
            k.srd(48, 54, 32768, WS_FLAG)
            k(f"s_and_b32 s6, s2, 7\ns_lshl_b32 s6, s6, 2\ns_lshr_b32 s7, s2, 6\ns_add_u32 s6, s6, s7\ns_lshl_b32 s63, s6, 10\ns_bfe_u32 s7, s2, 0x30003")
            k(f"s_getreg_b32 s52, hwreg(HW_REG_XCC_ID, 0, 4)\ns_add_u32 s52, s52, 1\ns_lshl_b32 s6, s7, 2\ns_lshl_b32 s7, s7, 7")
            k(f"v_lshlrev_b32 v3, 3, v{V_L16}\nv_add_u32 v3, s6, v3\nv_mov_b32 v4, s52\nv_bfe_u32 v27, v{V_L16}, 4, 3\nv_lshlrev_b32 v27, 2, v27\nv_add_u32 v27, s7, v27")
            k(f"s_cmp_eq_u32 s{S_WAVE}, 1\ns_cbranch_scc0 k1_nx\ns_mov_b64 exec, 0xff")
            k(f"buffer_store_dword v4, v3, s[48:51], s63 offen offset:64 sc1\ns_mov_b64 exec, -1")
            k("k1_nx:")
        xcc_pub = [pub]
    V0, VD = V_PF, V_PF+3
    pfv = [f"v_lshrrev_b32 v{VD}, 8, v{V_L16}", f"v_lshlrev_b32 v{VD}, 24, v{VD}", f"v_lshl_add_u32 v{V0}, v{V_L16}, 3, v{VD}"]
    cf, cw, co = cfg.pfc
    def site(srd, c0, sh, off, fl):
        return [f"s_sub_u32 s6, s{S_CNT}, {c0}\ns_min_u32 s6, s6, 4\ns_lshl_b32 s6, s6, {sh}", f"buffer_load_dword v{VD}, v{V0}, {sr(srd,4)}, s6 offen offset:{off} {fl}"]
    pfs = [site(PF_F, cf, 11, 0, ""), site(S_M, OPT.xpf, 11, 0, "") if OPT.xpf else site(S_O, co, 17, 0, OPT.opf), site(PF_W, cw, 11, 0, OPT.wpf), site(S_O, co, 17, 2048, OPT.opf)]
    if OPT.l2w:
        P1, P2 = PF_F, 48
        pfsetup = pfsetup[3:6] + pfsetup[7:] + [
            f"s_lshr_b32 s6, s2, 3\ns_lshl_b32 s6, s6, 2\ns_add_u32 s{S_T0}, s6, s{S_WAVE}",
            f"s_cmp_lt_u32 s{S_T0}, 64\ns_cselect_b64 s[{P1}:{P1+1}], s[56:57], s[58:59]",
            f"s_and_b32 s6, s{S_T0}, 63\ns_mul_i32 s6, s6, {8*2752}\ns_and_b32 s7, s2, 3",
            f"s_mul_i32 s7, s7, 768\ns_add_u32 s6, s6, s7\ns_sub_u32 s7, {512*2752}, s6",
            f"s_add_u32 s{P1}, s{P1}, s6\ns_addc_u32 s{P1+1}, s{P1+1}, 0\ns_min_u32 s{P1+2}, s7, {8*2752}",
            f"s_mul_i32 s6, s{S_T0}, {11*1024}\ns_and_b32 s7, s2, 1\ns_lshl_b32 s7, s7, 9",
            f"s_add_u32 s6, s6, s7\ns_min_u32 s6, s6, {1376*1024}\ns_sub_u32 s7, {1376*1024}, s6",
            f"s_add_u32 s{P2}, s60, s6\ns_addc_u32 s{P2+1}, s61, 0\ns_min_u32 s{P2+2}, s7, {11*1024}\ns_mov_b32 s{P2+3}, 0x20000"]
        pfv += [f"v_and_b32 v6, 0x380, v{V0}", "v_min_u32 v6, 764, v6", f"v_bfe_u32 v3, v{V_L16}, 7, 1", "v_mul_u32_u24 v3, 2752, v3", f"v_add3_u32 v3, v3, v6, v{VD}",
                f"v_bfe_u32 v4, v{V_L16}, 6, 2", f"v_and_b32 v6, 0x180, v{V0}", "v_lshl_add_u32 v4, v4, 10, v6", f"v_add_u32 v4, v4, v{VD}"]
        pfs[0] = [f"s_sub_u32 s6, s{S_CNT}, {OPT.l2w}\ns_min_u32 s6, s6, 4\ns_mul_i32 s6, s6, {2*2752}", f"buffer_load_dword v6, v3, {sr(P1,4)}, s6 offen"]
        pfs[3] = [f"s_sub_u32 s6, s{S_CNT}, {OPT.l2d}\ns_min_u32 s6, s6, 3\ns_lshl_b32 s6, s6, 12", f"buffer_load_dword v6, v4, {sr(P2,4)}, s6 offen"]
    if OPT.loc or OPT.opt32:
        pfv += [f"v_lshrrev_b32 v{VD}, 9, v{V_L16}", f"v_lshlrev_b32 v{VD}, 24, v{VD}", f"v_lshl_add_u32 v7, v{V_L16}, 3, v{VD}"]
        pfs[3] = site(S_O, OPT.lpo, 17, 0, OPT.opf); pfs[3][1] = pfs[3][1].replace(f"v{V0},", "v7,")
    loopinit = f"s_mov_b32 s{S_CNT}, 8"
    k.c("merged head")
    if OPT.trunc: k("s_mov_b32 s53, 0x07060302")
    k.run(xcc_pub)
    k.wait(lg='all')
    def qk_q(buf, qb, czero):
        r = []
        for kb in range(2):
            for i in range(4):
                s_ = i if kb == 0 else 3 - i
                d = vr(S(buf, kb, qb), 4)
                c = d if i else ("0" if czero else vr(MN(qb), 4))
                nd = {f"Q{qb}": 2, f"KR{buf}": 0}
                if not czero: nd[f"MN{qb}"] = 2
                r.append(It(f"{MF} {d}, {ar(HK(buf)(kb*4+s_),4)}, {vr(Q(qb,s_),4)}, {c}", needs=nd, gives=f"S{buf}_{qb}"))
        return r
    mq = []
    for qb in range(4):
        for t in range(8):
            d = QA(t, qb)
            mq.append(It(f"{MF} {d}, {ar(WF(1,t),4)}, {vr(HF(1,qb),4)}, {d}", gives=f"A{t}_{qb}"))
    mq += qk_q(0,0,True) + qk_q(0,1,True) + qk_q(0,2,True) + qk_q(1,0,False) + qk_q(1,1,False) + qk_q(0,3,True) + qk_q(1,2,False) + qk_q(1,3,False)
    def conv(qb):
        r = []
        for s_ in range(4):
            for h in range(2):
                t = 2*s_ + h; nd = {f"A{t}_{qb}": 8}
                if qb < 2: a = 192 + (qb*8+t)*4
                else:
                    a = 224 + (t & 3)*4
                    for i in range(4): r.append(It(f"v_accvgpr_read_b32 v{a+i}, a{((qb-2)*8+t)*4+i}", needs=nd))
                for d in range(2): r.append(It(f"v_cvt_pk_bf16_f32 v{Q(qb,s_)+2*h+d}, v{a+2*d}, v{a+2*d+1}", needs=nd, gives=f"Q{qb}x"))
        r[-1].gives = f"Q{qb}"
        return r
    def rmax(qs):
        r = []
        for qb in qs:
            a = S(0, 0, qb); b = S(0, 1, qb); t = V_T + qb; nd = {f"S0_{qb}e": 8}
            r += [It(f"v_max3_f32 v{t}, v{a}, v{a+1}, v{a+2}", needs=nd), It(f"v_max3_f32 v{t+4}, v{b}, v{b+1}, v{b+2}"),
                  It(f"v_max3_f32 v{t}, v{t}, v{a+3}, v{b+3}"), It(f"v_max_f32 v{t}, v{t}, v{t+4}")]
        for n_, sw in enumerate(("v_permlane32_swap_b32", "v_permlane16_swap_b32")):
            for qb in qs: r.append(It(f"v_mov_b32 v{V_T+4+qb}, v{V_T+qb}", gives=f"mv{n_}_{qb}"))
            for qb in qs: r.append(It(f"{sw} v{V_T+4+qb}, v{V_T+qb}", cost=2, needs={f"mv{n_}_{qb}": 2}, gives=f"sw{n_}_{qb}"))
            for qb in qs: r.append(It(f"v_max_f32 v{V_T+qb}, v{V_T+qb}, v{V_T+4+qb}", needs={f"sw{n_}_{qb}": 1}))
        for qb in qs:
            for i in range(4): r.append(It(f"v_sub_f32 v{MN(qb)+i}, 0, v{V_T+qb}", gives=f"MN{qb}" if i == 3 else None))
        return r
    def sm0(qs, sub=True):
        r = []
        E = exps(0, qs); C = cvts(0, qs); A = adds(0, qs, cfg.addq())
        regs = [S(0, kb, qb) + i for qb in qs for kb in range(2) for i in range(4)]
        qof = [qb for qb in qs for _ in range(8)]
        n_ = len(E)
        for i in range(n_ + 2):
            if sub and i < n_: r.append(It(f"v_add_f32 v{regs[i]}, v{regs[i]}, v{MN(qof[i])}"))
            if 1 <= i <= n_: r.append(It(E[i-1], cost=2, gives=f"e{qs[0]}_{i-1}"))
            if i >= 2:
                if A[i-2]: r.append(It(A[i-2], needs={f"e{qs[0]}_{i-2}": 1}))
                if (i-2) % 2 == 1: r.append(It(C[(i-2)//2], needs={f"e{qs[0]}_{i-2}": 1}))
        return r
    last = {}
    for it in mq:
        if isinstance(it.gives, str) and it.gives.startswith("S"): last[it.gives] = it
    for g, it in last.items(): it.gives = g + "e"
    init = [It(f"v_mov_b32 v{V_LS+q}, 0") for q in range(4)] + [It(x) for x in pfv]
    vq = init + conv(0) + conv(1) + conv(2) + rmax([0, 1]) + conv(3) + sm0([0, 1]) + rmax([2, 3]) + sm0([2, 3])
    side = [It(W(vm="K0", barrier=True), cost=0, n=2)]
    for b in range(2):
        side += [It(L(x, f"HK{b}")) for x in kreads(0, b, HK(b))]
    side += [It(x, cost=0, n=3) for x in pfsetup]
    side += [It(W(lg="HK0"), cost=0, gives="KR0", needs={"A7_2": 0}), It(W(lg="HK1"), cost=0, gives="KR1")]
    G = lambda grp, nd=None: It(lambda kk, grp=grp: kk.run(grp), cost=2, n=3, needs=nd)
    side += [G(x) for x in kv_group('K', 2)] + [G(x, {"S0_2e": 0}) for x in kv_group('V', 1)]
    side += [It(W(vm="V0", barrier=True), cost=0, n=2, needs={"S0_3e": 0})]
    side += [It(x) for x in kreads(1, 0)] + [G(x) for x in kv_group('K', 3)] + [It(loopinit, cost=0, n=4)]
    merge(k, mq, vq, side)
    k("k1_first:")
    iteration(k, cfg, 1, "first")
    iteration(k, cfg, 2, "pv", czero=True)
    k.stamp(3) if not cfg.fine else None
    k("s_branch k1_pos2")
    k(".p2align 6")
    for _ in range(OPT.pad): k("s_nop 0")
    k("k1_loop:")
    iteration(k, cfg, 0, pf=pfs[0] if cfg.pf else ())
    iteration(k, cfg, 1, pf=pfs[1] if cfg.pf else ())
    iteration(k, cfg, 2, pf=pfs[2] if cfg.pf else (), label="k1_pos2")
    iteration(k, cfg, 3, pf=pfs[3] if cfg.pfo else (), post=[f"s_sub_u32 s{S_CNT}, s{S_CNT}, 1\ns_cmp_lg_u32 s{S_CNT}, 0\ns_cbranch_scc1 k1_loop"])
    k.stamp(4) if not cfg.fine else (k.stamp(1) if cfg.fine == 2 else None)
    if OPT.cpf2:
        k(f"s_cmp_ge_u32 s2, 16\ns_cbranch_scc1 k1_nocode\ns_lshr_b32 s6, s2, 3\ns_lshl_b32 s6, s6, 2\ns_add_u32 s6, s6, s{S_WAVE}")
        k.code_pf("k1_nocode", "code_end_marker", V_PF+1, S_M, 6)
        k("k1_nocode:")
    V_AW = 7
    AH = (lambda j: (j & 15) >> 1) if OPT.f2 else (lambda j: j >> 2)
    AS = (lambda j: (j >> 4)*2 + (j & 1)) if OPT.f2 else (lambda j: j & 3)
    def a_w(j):
        return [[f"s_add_u32 m0, s{S_W1}, {(j % OPT.anr)*8192 + p*4096}\ns_mov_b32 s{S_T0+4+p}, {(AH(j)*512 + AS(j)*32 + p*16)*1024}",
                 V(f"buffer_load_dwordx4 v{V_AW}, {sr(S_M,4)}, s{S_T0+4+p} offen lds", f"AW{j}")] for p in range(2)]
    extra = []
    if OPT.fa:
        k(f"v_lshrrev_b32 v2, 8, v{V_L16}\nv_lshl_add_u32 v2, v1, 2, v2\nv_and_b32 v3, 7, v2\nv_lshlrev_b32 v3, 5, v3\nv_and_b32 v4, 0xf0, v{V_L16}")
        k(f"v_xor_b32 v3, v3, v4\nv_lshl_add_u32 v{V_AW}, v2, 10, v3")
        k(f"s_and_b32 s6, s2, 3\ns_lshl_b32 s6, s6, 17\ns_bfe_u32 s7, s2, 0x20003\ns_lshl_b32 s7, s7, 8\ns_add_u32 s6, s6, s7")
        k(f"s_add_u32 s{S_M}, s46, s6\ns_addc_u32 s{S_M+1}, s47, 0\ns_sub_u32 s{S_M+2}, {4096*1024}, s6\ns_mov_b32 s{S_M+3}, 0x20000")
        k.vm = []
        if OPT.mearly:
            assert not OPT.mk0
            k.srd(48, 54, 4*12288, WS_MODP); k("v_lshlrev_b32 v6, 4, v0")
        if OPT.loc: k(f"buffer_load_dword v6, v27, s[48:51], s63 offen offset:64 sc1")
        if OPT.mk0:
            k.srd(48, 54, k1p.FA + 256*4096, WS_FLAG)
            k(f"s_lshl_b32 s6, s5, 5\ns_add_u32 s6, s6, s4\ns_lshl_b32 s6, s6, 12\ns_add_u32 s63, s6, {k1p.FA+3072}\nv_mov_b32 v27, 0")
        extra = [g for j in range(OPT.na0) for g in a_w(j)]
        if OPT.mk0: extra[0] = [V("buffer_load_dword v6, v27, s[48:51], s63 offen sc1", "WL")] + extra[0]
    ns = 2*len(cfg.sumq)
    LT = 240
    vq0 = []
    if OPT.t2:
        F31 = lambda blk, db: KF(blk*4+db) if db < 4 else VF(8*blk + db - 4)
        k.lg = []
        mq = []
        def chain(dst, As, Ps, qb, rev, needs, gives):
            order = list(range(len(As)))[::-1 if rev else 1]
            for n, i in enumerate(order):
                mq.append(It(f"{MF} {dst}, {ar(As[i],4)}, {vr(P(Ps[i],qb),4)}, {dst}", needs=needs, gives=gives if n == len(order)-1 else None))
        for n, qb in enumerate(cfg.sumq): chain(ar(LA(qb),4), [ONES]*2, [0, 1], qb, n % 2, None, None)
        for db in range(2):
            for q in range(4): chain(ar(O(db, q if db % 2 == 0 else 3-q),4), [VF(db), VF(8+db)], [0, 1], q if db % 2 == 0 else 3-q, q % 2, {"BAR": 0}, f"U{db}" if q == 3 else None)
        for q in range(4):
            if q in cfg.sumq: chain(ar(LA(q),4), [ONES]*2, [2, 3], q, 0, {f"P63_{q}": 2}, "SUM" if q == cfg.sumq[-1] else None)
            for db in range(2): chain(ar(O(db,q),4), [F31(0,db), F31(1,db)], [2, 3], q, db % 2, {f"P63_{q}": 2, "W0": 0}, f"O{db}" if q == 3 else None)
        for db in range(2, 8):
            for q in range(4):
                qb = q if db % 2 == 0 else 3-q
                chain(ar(O(db,qb),4), [VF(db), VF(8+db), F31(0,db), F31(1,db)], [0, 1, 2, 3], qb, q % 2, {f"W{db//2}": 0}, f"O{db}" if q == 3 else None)
        rdv = lambda db, nd: [It(L(f"ds_read_b64_tr_b16 {ar(F31(blk,db)+2*h,2)}, v{V_VA+db} offset:{3*SLOT+blk*8192+h*4096}", f"V{db//2}"), needs=nd) for blk in range(2) for h in range(2)]
        aw = [It(lambda kk, g=g: kk.run(g), cost=2) for j in range(OPT.na0 + OPT.na2) for g in a_w(j)]
        side = [It("s_waitcnt vmcnt(0) lgkmcnt(0)\ns_barrier", cost=0, gives="BAR")] + rdv(0, None) + rdv(1, None) + aw[:2*OPT.t2a] + rdv(2, None) + rdv(3, None)
        side += [It(f"s_mov_b32 s{S_T0+qb}, {qb*131072}", cost=0) for qb in range(4)]
        side += [It(W(lg="V0"), cost=0, gives="W0", needs={"P63_0": 0})] + rdv(4, {"U0": 0}) + rdv(5, {"U1": 0}) + [It(W(lg="V1"), cost=0, gives="W1")]
        r = aw[2*OPT.t2a:]; h1 = len(r)//2
        side += r[:h1] + [It(W(lg="V2"), cost=0, gives="W2")] + rdv(6, {"O2": 0}) + rdv(7, {"O3": 0}) + r[h1:] + [It(W(lg="all"), cost=0, gives="W3", needs={"O4": 0})]
        st_ = [(62, i, x) for i, x in enumerate(sm_stream(cfg, 62)) if i >= 32-R1] + [(63, i, x) for i, x in enumerate(sm_stream(cfg, 63))]
        prev = []
        for u, i, (e, f) in st_:
            vq0.append(It(e, cost=2, gives=f"e{u}_{i}")); vq0 += prev
            prev = [It(x, needs={f"e{u}_{i}": 1}, gives=f"P{u}_{i//8}" if (i % 8 == 7 and x is f[-1]) else None) for x in f]
        vq0 += prev
    else:
        rest = iteration(k, cfg, 0, "tail", extra=extra)
        k.stamp(5) if not cfg.fine else (k.stamp(2) if cfg.fine == 2 else None)
        k.lg = ["V0"]*len(k.lg)
        k.run([x[1] for x in rest])
        nrest = len(rest); dbw = 8 - (nrest + 3)//4
        mq = []
        for i, m in enumerate(pv2_mfmas(2, cfg.sumq)):
            db = (i - ns)//8
            it = It(m, gives="SUM" if i == ns-1 else (f"O{db}" if i >= ns and (i - ns) % 8 == 7 else None))
            if i == ns: it.needs = {"W0": 0}
            if i == ns + 8*dbw: it.needs = {"W1": 0}
            mq.append(it)
        side = [It(W(lg="V0"), cost=0, gives="W0")] + [It(f"s_mov_b32 s{S_T0+qb}, {qb*131072}", cost=0) for qb in range(4)]
        if OPT.fa:
            if OPT.mearly:
                side += [It(V(f"s_mov_b32 s6, {4096*(1+(i>>2)) + (i&3)*12288}\nbuffer_load_dwordx4 {vr(96+4*i,4)}, v6, s[48:51], s6 offen {'sc1' if OPT.mk0 else ''}", "M"), cost=2) for i in range(8)]
            side += [It(lambda kk, g=g: kk.run(g), cost=2) for j in range(OPT.na0, OPT.na0 + OPT.na2) for g in a_w(j)]
        side += [It(W(lg="all"), cost=0, gives="W1", needs={f"O{dbw-2}": 0})]
    vq = list(vq0)
    aq = cfg.addq()
    for n_, sw in enumerate(("v_permlane32_swap_b32", "v_permlane16_swap_b32")):
        for q in aq: vq.append(It(f"v_mov_b32 v{LT+4+q}, v{V_LS+q}", gives=f"a{n_}{q}"))
        for q in aq: vq.append(It(f"{sw} v{LT+4+q}, v{V_LS+q}", cost=2, needs={f"a{n_}{q}": 2}, gives=f"b{n_}{q}"))
        for q in aq: vq.append(It(f"v_add_f32 v{V_LS+q}, v{V_LS+q}, v{LT+4+q}", needs={f"b{n_}{q}": 1}))
    for q in cfg.sumq: vq.append(It(f"v_accvgpr_read_b32 v{V_LS+q}, a{LA(q)}", needs={"SUM": 8}))
    for q in range(4): vq.append(It(f"v_rcp_f32 v{LT+2*q}, v{V_LS+q}", cost=2))
    guard = [It(f"v_add_f32 v{LT+8}, v{V_LS}, v{V_LS+1}"), It(f"v_add_f32 v{LT+9}, v{V_LS+2}, v{V_LS+3}"), It(f"v_add_f32 v{LT+8}, v{LT+8}, v{LT+9}"),
           It(f"s_mov_b32 s7, {hexf(2.0**64)}\nv_cmp_nle_f32 vcc, v{LT+8}, s7"),
           It(f"s_lshl_b32 s7, s{S_WAVE}, 2\ns_add_u32 s7, s7, {FLAGB}\nv_mov_b32 v{LT+10}, s7"), It(f"v_mov_b32 v{LT+11}, {FLAGB}"),
           It(f"s_cmp_lg_u64 vcc, 0\ns_cselect_b32 s7, 1, 0\nv_mov_b32 v{LT+9}, s7"), It(L(f"ds_write_b32 v{LT+10}, v{LT+9}", "F"))]
    def check(k):
        k(f"ds_read_b128 {vr(LT+12,4)}, v{LT+11}\ns_waitcnt lgkmcnt(0)")
        k(f"v_or_b32 v{LT+12}, v{LT+12}, v{LT+13}\nv_or3_b32 v{LT+12}, v{LT+12}, v{LT+14}, v{LT+15}\ns_nop 0")
        k(f"v_readfirstlane_b32 s6, v{LT+12}")
        k(f"s_andn2_b32 s6, s6, s{S_RERUN}\ns_cmp_lg_u32 s6, 0\ns_cbranch_scc1 k1_fallback")
    def flagprep(k):
        k.srd(S_K, 54, 4*32768 + 256*4096, WS_FLAG)
        k(f"s_and_b32 s6, s2, 7\ns_lshl_b32 s6, s6, 2\ns_lshr_b32 s7, s2, 6\ns_add_u32 s6, s6, s7\ns_lshl_b32 s63, s6, 10\ns_bfe_u32 s7, s2, 0x30003")
        k(f"v_lshlrev_b32 v2, 3, v{V_L16}\ns_lshl_b32 s6, s7, 2\nv_add_u32 v2, s6, v2\nv_mov_b32 v3, 0x{MAGIC:x}")
        k(f"v_bfe_u32 v27, v{V_L16}, 4, 3\nv_lshlrev_b32 v27, 2, v27\ns_lshl_b32 s6, s7, 7\nv_add_u32 v27, s6, v27")
        if OPT.mk0:
            k(f"s_lshl_b32 s6, s5, 5\ns_add_u32 s6, s6, s4\ns_lshl_b32 s6, s6, 12\ns_add_u32 s6, s6, {k1p.FA+3072}\ns_sub_u32 s6, s6, s63")
            k(f"v_and_b32 v4, 12, v27\nv_add_u32 v4, s6, v4\ns_mov_b32 exec_lo, 0\nv_mov_b32 v27, v4\ns_mov_b64 exec, -1")
    def raise_(k, lab, off):
        k(f"s_cmp_eq_u32 s{S_WAVE}, 1\ns_cbranch_scc0 {lab}")
        if OPT.loc:
            k(f"v_cmp_ne_u32 vcc, s52, v6\ns_cbranch_vccz {lab}_l\nbuffer_wbl2 sc1\ns_waitcnt vmcnt(0)\n{lab}_l:")
        k("s_mov_b64 exec, 0xff")
        k(f"buffer_store_dword v3, v2, {sr(S_K,4)}, s63 offen offset:{off} sc1\ns_mov_b64 exec, -1")
        k(f"{lab}:")
    def midsig(k):
        k.wait(vm="OS1", lg='all', barrier=True)
        check(k); flagprep(k); raise_(k, "k1_nf1", 0)
    n_ = 0
    for s_ in range(4):
        for qb in range(4):
            t = 64 + (n_ & 3)*8; o = (96 if OPT.t2 else 32) + (n_ & 7)*4; n_ += 1
            for h in range(2):
                for i in range(4): vq.append(It(f"v_accvgpr_read_b32 v{t+4*h+i}, a{O(2*s_+h,qb)+i}", needs={f"O{2*s_+h}": 8}))
            if n_ <= cfg.npk:
                for i in range(8): vq.append(It(f"v_mul_f32 v{t+i}, v{t+i}, v{LT+2*qb}"))
            else:
                for i in range(4): vq.append(It(f"v_pk_mul_f32 {vr(t+2*i,2)}, {vr(t+2*i,2)}, {vr(LT+2*qb,2)} op_sel_hi:[1,0]"))
            for d in range(4): vq.append(It(f"v_cvt_pk_bf16_f32 v{o+d}, v{t+2*d}, v{t+2*d+1}"))
            vq.append(It(V(f"buffer_store_dwordx4 {vr(o,4)}, v{V_L16}, {sr(S_O,4)}, s{S_T0+qb} offen offset:{s_*1024} {OPT.lst if OPT.loc else ('sc1' if (n_ <= OPT.nsc1 or OPT.fa) else OPT.st1)}", "OST" if n_ > 8 else "OS1"), cost=2))
            if n_ == 2: vq[-1].gives = "ST0"; vq += guard
            if OPT.f2 and n_ == OPT.f2n: vq.append(It(midsig, cost=0, needs={"W1": 0}))
    if not OPT.fa: k.vm = []
    merge(k, mq, vq, side, budget=(lambda w: 2 if ("ST0" in w or not OPT.t2) else OPT.t2b))
    if OPT.fa:
        for j in range(OPT.na0 + OPT.na2, OPT.na0 + OPT.na2 + OPT.na1): k.run(a_w(j))
        assert OPT.na0 + OPT.na1 + OPT.na2 <= 14
        if OPT.a2:
            k(f"s_lshl_b32 s6, s5, 1\ns_bfe_u32 s7, s2, 0x10005\ns_add_u32 s6, s6, s7\ns_lshl_b32 s6, s6, 1\ns_and_b32 s7, s{S_WAVE}, 1\ns_add_u32 s6, s6, s7")
            k(f"s_lshr_b32 s52, s{S_WAVE}, 1\ns_lshl_b32 s{S_CNT}, s6, 1\ns_add_u32 s{S_CNT}, s{S_CNT}, s52")
            k(f"s_lshl_b32 s6, s6, 19\ns_and_b32 s7, s2, 3\ns_lshl_b32 s7, s7, 12\ns_add_u32 s6, s6, s7\ns_lshl_b32 s53, s52, 11\ns_add_u32 s6, s6, s53\ns_add_u32 s6, s6, 0x{WS_OF:x}")
            k(f"s_add_u32 s{S_X}, s54, s6\ns_addc_u32 s{S_X+1}, s55, 0\ns_mov_b32 s{S_X+2}, {4*131072}")
            k(f"s_lshl_b32 s52, s52, 18\ns_xor_b32 s53, s52, 0x40000")
        else:
          k(f"s_lshl_b32 s6, s5, 1\ns_bfe_u32 s7, s2, 0x10005\ns_add_u32 s6, s6, s7\ns_lshl_b32 s6, s6, 2\ns_add_u32 s{S_CNT}, s6, s{S_WAVE}")
          k(f"s_lshl_b32 s6, s{S_CNT}, 18\ns_and_b32 s7, s2, 3\ns_lshl_b32 s7, s7, 12\ns_add_u32 s6, s6, s7\ns_add_u32 s6, s6, 0x{WS_OF:x}")
          k(f"s_add_u32 s{S_X}, s54, s6\ns_addc_u32 s{S_X+1}, s55, 0\ns_mov_b32 s{S_X+2}, {2*131072}")
        k(f"s_lshl_b32 s6, s{S_CNT}, 15\ns_lshl_b32 s7, s7, 9\ns_add_u32 s6, s6, s7\ns_bfe_u32 s7, s2, 0x20003\ns_lshl_b32 s7, s7, 12\ns_add_u32 s6, s6, s7\ns_add_u32 s6, s6, 0x{WS_PART:x}")
        k(f"s_add_u32 s{S_W}, s54, s6\ns_addc_u32 s{S_W+1}, s55, 0\ns_mov_b32 s{S_W+2}, {16384+4096}")
    V_W0 = 32
    def poll(k, lab, off):
        k("s_mov_b32 s7, 0")
        k(f"{lab}:")
        k(f"buffer_load_dword v3, v27, {sr(S_K,4)}, s63 offen offset:{off} sc1\ns_waitcnt vmcnt(0)\nv_cmp_ne_u32 vcc, 0x{MAGIC:x}, v3")
        k(f"s_cbranch_vccz {lab}_r\ns_add_u32 s7, s7, 1\ns_cmp_lt_u32 s7, 0x10000\ns_cbranch_scc1 {lab}")
        k(f"{lab}_r:")
        k(f"s_barrier\nv_mov_b32 v3, 0\ns_mov_b32 exec_lo, 0\nbuffer_store_dword v3, v27, {sr(S_K,4)}, s63 offen offset:{off}\ns_mov_b64 exec, -1\ns_branch {lab}_e" if OPT.mk0 else "")
        k(f"{lab}_ok:")
    if OPT.f2:
        for j in range(OPT.na0 + OPT.na1 + OPT.na2, OPT.na3): k.run(a_w(j))
        if OPT.ff: k1t.setup_early(k)
        k("s_nop 1")
        for t in range(8): k(f"v_add_u32 v{V_W0+t}, {-VB & 0xffffffff}, v{V_VA+t}\nv_add_u32 v{V_W0+8+t}, {VB}, v{V_VA+t}")
        k(f"s_cmp_eq_u32 s{S_WAVE}, 0\ns_cbranch_scc0 k1_poll_ok")
        poll(k, "k1_poll", 0)
        k("s_waitcnt vmcnt(0)\ns_barrier")
        k.stamp(6) if not cfg.fine else (k.stamp(3) if cfg.fine == 2 else k1t.st(k, 'x0'))
        raise_(k, "k1_nf2", 32)
    else:
        if OPT.fa: k.wait(vm="OST")
        k("s_waitcnt lgkmcnt(0)\ns_barrier")
        check(k)
    if OPT.fa and not OPT.f2:
        k.stamp(6) if not cfg.fine else (k.stamp(3) if cfg.fine == 2 else k1t.st(k, 'x0'))
        flagprep(k); raise_(k, "k1_nf1", 0)
        if OPT.a2:
            k("v_lshrrev_b32 v4, 1, v1\nv_lshlrev_b32 v4, 14, v4")
            for t in range(8): k(f"v_add_u32 v{V_W0+8+t}, v4, v{V_VA+t}\nv_add_u32 v{V_W0+t}, {-VB & 0xffffffff}, v{V_W0+8+t}")
            k(f"v_lshl_add_u32 v12, v1, 14, v{V_L16}\nv_xor_b32 v13, 0x8000, v12")
        else:
            for t in range(8): k(f"v_add_u32 v{V_W0+t}, {-VB & 0xffffffff}, v{V_VA+t}\nv_add_u32 v{V_W0+8+t}, {VB}, v{V_VA+t}")
        for j in range(OPT.na0 + OPT.na1 + OPT.na2, OPT.anr): k.run(a_w(j))
        if OPT.ff: k1t.setup_early(k)
        if OPT.mearly: k1t.m_finish(k, 96)
        if OPT.a2 and OPT.apre:
            k.lg = []
            k.run([L(f"ds_read_b64_tr_b16 {vr(192 + (e*8+t)*4 + 2*h, 2)}, v{V_W0+t} offset:{e*8192 + h*4096}", f"R0_{t}") for t in range(8) for e in range(2) for h in range(2)])
        if OPT.mk0:
            k(f"s_cmp_eq_u32 s{S_WAVE}, 0\ns_cbranch_scc0 k1_poll_ok")
            poll(k, "k1_poll", 0)
            k("s_waitcnt vmcnt(0)\ns_barrier\nk1_poll_e:")
        else:
            k(f"s_cmp_eq_u32 s{S_WAVE}, 0\ns_cbranch_scc0 k1_h0_c\ns_mov_b32 s7, 0")
            k1t.pollloop(k, "k1_h0", 27)
    if OPT.fa:
        k.vm = []
        if not (OPT.a2 and OPT.apre): k.lg = []
        if cfg.fine == 2: k.stamp(4); k("s_waitcnt lgkmcnt(0)")
        if cfg.fine == 3: k1t.st(k, 'y0')
        if OPT.a2:
            assert OPT.anr == 16 and OPT.fce == 0
            AC = lambda t, tb: 64 + (tb*8+t)*4
            AW = lambda u, e, t, n=4, o=0: (ar if u & 1 else vr)(192 + (e*8+t)*4 + o, n)
            AB = lambda u, e, tb: ((u % 6)*8 + e*4 + tb)*4
            def a_b(u):
                return [[f"s_add_u32 s{S_T0+(tb&1)}, s{52+(tb>>1)}, {(tb&1)*131072 + u*16384}",
                         V(f"buffer_load_dwordx4 {ar(AB(u,e,tb),4)}, v{V_L16}, {sr(S_X,4)}, s{S_T0+(tb&1)} offen offset:{e*1024} sc1", f"AB{u}_{tb}")] for tb in range(4) for e in range(2)]
            def a_reads(u):
                base = (u % 4)*32768; off = base & 0xffff
                return [L(f"ds_read_b64_tr_b16 {AW(u,e,t,2,2*h)}, v{V_W0+8*(base>>16)+t} offset:{off + e*8192 + h*4096}", f"R{u}_{t}") for t in range(8) for e in range(2) for h in range(2)]
            bq = [g for u in range(8) for g in a_b(u)]; nbq = OPT.a2b0
            k.run(bq[:nbq])
            if not OPT.apre: k.run(a_reads(0))
            wq = [g for j in range(16, 32) for g in a_w(j)]; nwq = 0
            for u in range(8):
                k1t.st(k, f"a{u}")
                if u == 7:
                    k.wait(vm="AB7_3", lg="R7_7")
                    mq = []; vq = []; side = [It(f"s_mov_b32 s{S_T0}, 0\ns_mov_b32 s{S_T0+1}, 16384", cost=0)]
                    for tb in (2, 3, 0, 1):
                        for t_ in range(8):
                            t = t_ if tb % 2 == 0 else 7 - t_
                            d = vr(AC(t, tb), 4)
                            for i, e in enumerate((0, 1) if t_ % 2 == 0 else (1, 0)):
                                mq.append(It(f"{MF} {d}, {AW(u,e,t)}, {ar(AB(u,e,tb),4)}, {d}", gives=f"D{t}{tb}" if i else None))
                            if tb >= 2: side.append(It(f"ds_write_b128 v12, {d} offset:{((tb-2)*8+t)*1024}", cost=2, needs={f"D{t}{tb}": 8, f"w{len(side)-1}": OPT.awsp}, gives=f"w{len(side)}"))
                    side[0].gives = "w0"
                    merge(k, mq, [], side)
                    k("s_waitcnt lgkmcnt(0)\ns_barrier")
                    k1t.st(k, "a8")
                    k.lg = []
                    for tb in range(2):
                        for t in range(8): k.lgop(f"ds_read_b128 {vr(AC(t,tb+2),4)}, v13 offset:{(tb*8+t)*1024}", f"E{tb}{t>>1}")
                    n_ = 0
                    for tb in range(2):
                        for ns_ in range(4):
                            k.wait(lg=f"E{tb}{ns_}")
                            a = AC(2*ns_, tb); o = 192 + n_*4; n_ += 1
                            for i in range(0, 8, 2): k(f"v_pk_add_f32 {vr(a+i,2)}, {vr(a+i,2)}, {vr(a+64+i,2)}")
                            for d in range(4): k(f"v_cvt_pk_bf16_f32 v{o+d}, v{a+2*d}, v{a+2*d+1}")
                            k.vmop(f"buffer_store_dwordx4 {vr(o,4)}, v{V_L16}, {sr(S_W,4)}, s{S_T0+tb} offen offset:{ns_*1024} sc1", "PST")
                    break
                mf = []; n_ = 0
                for t in range(8):
                    for tb_ in range(4):
                        tb = tb_ if t % 2 == 0 else 3 - tb_
                        d = vr(AC(t, tb), 4)
                        for i, e in enumerate((0, 1) if n_ % 2 == 0 else (1, 0)):
                            mf.append(f"{MF} {d}, {AW(u,e,t)}, {ar(AB(u,e,tb),4)}, {d if (u or i) else '0'}")
                        n_ += 1
                vm = []
                while len(vm) < OPT.a2n:
                    wok = nwq < 32 and u >= nwq//8 + 1
                    bok = nbq < 64 and nbq//8 - 6 < u
                    if wok and (not bok or 4 + nwq//8 - 1 <= nbq//8): vm.append(wq[nwq]); nwq += 1
                    elif bok: vm.append(bq[nbq]); nbq += 1
                    else: break
                assert nwq >= min(32, (u + 2 - 3)*8) and nbq >= min(64, (u + 2)*8), (u, nwq, nbq)
                if OPT.ff and u == 6: vm += ([] if OPT.mearly else k1t.m_loads(64)) + k1t.x_loads()
                gaps = k1t.spread(64, a_reads(u+1), vm, g1=56)
                if u == 0:
                    add(gaps, -1, W(vm="AB0_0", lg="R0_1"))
                    for tb in range(1, 4): front(gaps, 2*tb-1, W(vm=f"AB0_{tb}"))
                    front(gaps, 13, W(lg="R0_7"))
                else:
                    add(gaps, -1, W(vm=f"AB{u}_3", lg=f"R{u}_7"))
                    front(gaps, 0, W(vm=f"AW{4*u+7}", barrier=True))
                emit(k, mf, gaps)
            assert nbq == 64 and nwq == 32
            k1t.MBASE = 64
            k1t.rest(k, 0)
    if OPT.fa and not OPT.a2:
        AC = lambda t, tb: 64 + (t*2+tb)*4
        AWF = lambda j, t: 128 + ((j&3)*8+t)*4
        ABF = lambda j, tb: (j*2+tb)*4
        def a_b(j):
            return [[f"s_mov_b32 s{S_T0+tb}, {tb*131072 + AH(j)*16384}",
                     V(f"buffer_load_dwordx4 {ar(ABF(j,tb),4)}, v{V_L16}, {sr(S_X,4)}, s{S_T0+tb} offen offset:{AS(j)*1024} sc1", f"AB{j}")] for tb in range(2)]
        def a_reads(p):
            r = []
            for t in range(8):
                for j in (2*p, 2*p+1):
                    base = (j % OPT.anr)*8192; off = base & 0xffff
                    r += [L(f"ds_read_b64_tr_b16 {vr(AWF(j,t)+2*h,2)}, v{(V_W0, V_VA, V_W0+8)[base >> 16]+t} offset:{off + h*4096}", f"R{p}_{t}") for h in range(2)]
            return r
        nb = OPT.nb0
        for j in range(nb): k.run(a_b(j))
        k.run(a_reads(0))
        nw = max(OPT.na3, OPT.na0 + OPT.na1 + OPT.na2) if OPT.f2 else OPT.anr; ncw = 0
        for p in range(16):
            mf = []; n_ = 0
            for t in range(8):
                for tb_ in range(2):
                    tb = tb_ if t % 2 == 0 else 1 - tb_
                    d = vr(AC(t, tb), 4)
                    for i, j in enumerate((2*p, 2*p+1) if n_ % 2 == 0 else (2*p+1, 2*p)):
                        mf.append(f"{MF} {d}, {vr(AWF(j,t),4)}, {ar(ABF(j,tb),4)}, {d if (p or i) else '0'}")
                    n_ += 1
            if p == 15 and OPT.amrg:
                k.wait(vm=f"AB{2*p+1}", lg=f"R{p}_3")
                mq = []; vq = []; n_ = 0
                for ns_ in range(4):
                    for tb_ in range(2):
                        tb = tb_ if ns_ % 2 == 0 else 1 - tb_
                        o = 128 + n_*4
                        for h_ in range(2):
                            h = h_ if n_ % 2 == 0 else 1 - h_
                            t = 2*ns_ + h; a = AC(t, tb); d = vr(a, 4)
                            for i, j in enumerate((2*p, 2*p+1) if h_ == 0 else (2*p+1, 2*p)):
                                mq.append(It(f"{MF} {d}, {vr(AWF(j,t),4)}, {ar(ABF(j,tb),4)}, {d}", gives=f"D{t}{tb}" if i else None, needs={"RR": 0} if len(mq) == 16 else None))
                            vq += [It(f"v_cvt_pk_bf16_f32 v{o+2*h+e}, v{a+2*e}, v{a+2*e+1}", needs={f"D{t}{tb}": 8}) for e in range(2)]
                        vq.append(It(V(f"buffer_store_dwordx4 {vr(o,4)}, v{V_L16}, {sr(S_W,4)}, s{S_T0+tb} offen offset:{ns_*1024} sc1", "PST"), cost=2))
                        n_ += 1
                merge(k, mq, vq, [It(f"s_mov_b32 s{S_T0}, 0\ns_mov_b32 s{S_T0+1}, 16384", cost=0), It(W(lg='all'), cost=0, gives="RR", needs={"D01": 0})])
                break
            vm = []
            for _ in range(OPT.nbs):
                wok = nw < 32 and (nw < OPT.anr or p >= (nw-OPT.anr)//2 + 1)
                if wok and (nb >= 32 or nw//2 - 1 - OPT.wlead <= nb//2): vm += a_w(nw); nw += 1
                elif nb < 32 and not (OPT.f2 and nb >= 16 and p < OPT.f2c): vm += a_b(nb); nb += 1
                elif wok: vm += a_w(nw); nw += 1
                elif OPT.ff and nw == 32 and ncw < OPT.fce and len(vm) <= 3 and k1t.a_last(k1t.cperm()[ncw], OPT.anr) <= p - 1:
                    vm += k1t.c_w(ncw); ncw += 1
            if OPT.ff and p == OPT.fxp: vm += k1t.x_loads()
            if OPT.ff and p in (OPT.fmp, OPT.fmp+1): vm += k1t.m_loads()[4*(p-OPT.fmp):4*(p-OPT.fmp)+4]
            if OPT.f2 and p == OPT.f2c - 1: vm.insert(len(vm)//2, [V(f"buffer_load_dword v3, v27, {sr(S_K,4)}, s63 offen offset:32 sc1", "F2")])
            if OPT.loc and p == OPT.lwb:
                vm.append([f"s_lshr_b32 s6, s2, 3\ns_or_b32 s6, s6, s{S_WAVE}\ns_cbranch_scc1 k1_nowb\nbuffer_wbl2 sc1\nk1_nowb:"])
            rd = a_reads(p+1) if p < 15 else []
            if OPT.ax == 1: rd = []
            if OPT.ax == 2: vm = []
            if OPT.ax == 3: rd = rd[:24]
            if OPT.ax == 4: vm = [x for x in vm if "m0" in x[0]]
            if OPT.amix:
                gaps = fill(32, [], [], vm, g0=1)
                fr = [g for g in range(1, 31) if g not in gaps]
                for i, g in enumerate(fr):
                    c = (len(rd) + len(fr) - i - 1)//(len(fr) - i) if (i % 2 == 0 or len(rd) >= 2*(len(fr)-i)) else len(rd)//(len(fr) - i)
                    for _ in range(c): add(gaps, g, rd.pop(0))
                assert not rd
            else:
                gaps = fill(32, rd, [], vm, g0=1, pair_lds=True)
            add(gaps, -1, W(vm=f"AB{2*p+1}", lg=f"R{p}_3"))
            if OPT.f2 and p == OPT.f2c:
                add(gaps, -1, W(vm="F2"), "v_cmp_ne_u32 vcc, 1, v3\ns_cbranch_vccnz k1_spin2\nk1_spin2_ret:")
            front(gaps, 12, W(lg=f"R{p}_7"))
            if OPT.slowa and OPT.slow0 <= p < OPT.slown: add(gaps, 31, f"s_sleep {OPT.slowa}")
            if 1 <= p < 15 and not OPT.anob: front(gaps, 0, W(vm=f"AW{2*p+3}", barrier=True))
            emit(k, mf, gaps)
            if cfg.fine == 2 and p == 1: k.stamp(5); k("s_waitcnt lgkmcnt(0)"); k.lg = []
        if cfg.fine == 2: k.stamp(6)
        assert nb == 32 and nw == 32
        k(f"s_mov_b32 s{S_T0}, 0\ns_mov_b32 s{S_T0+1}, 16384")
        n_ = 0
        for ns_ in range(4 if not OPT.amrg else 0):
            for tb in range(2):
                o = 128 + n_*4; n_ += 1
                for h in range(2):
                    a = AC(2*ns_+h, tb)
                    k(f"v_cvt_pk_bf16_f32 v{o+2*h}, v{a}, v{a+1}\nv_cvt_pk_bf16_f32 v{o+2*h+1}, v{a+2}, v{a+3}")
                k(f"buffer_store_dwordx4 {vr(o,4)}, v{V_L16}, {sr(S_W,4)}, s{S_T0+tb} offen offset:{ns_*1024} sc1")
        if OPT.ff: k1t.rest(k, ncw)
    k.dbg_mark(3, 100, 101, True); k.dbg_mark(4, 102, 103)
    if prof:
        k.stamp(6) if not (cfg.fine or OPT.fa) else None
        k("s_waitcnt vmcnt(0)")
        k.stamp(7) if cfg.fine != 1 else None
        k.dump_stamps(8, 54, 100)
    k(f"{end}:")
    k("s_endpgm")
    if OPT.f2:
        k("k1_spin2:")
        poll(k, "k1_poll2", 32)
        k("s_branch k1_spin2_ret")
    k("k1_fallback:")
    k(f"s_mov_b32 s{S_RERUN}, 1")
    k("v_and_b32 v2, 63, v0\nv_lshrrev_b32 v3, 4, v2\nv_and_b32 v4, 15, v2")
    k("v_lshlrev_b32 v5, 8, v4\nv_lshl_add_u32 v5, v3, 4, v5")
    for q in range(4): k(f"v_mov_b32 v{V_T+q}, 0xff800000")
    k("s_mov_b32 s6, 0")
    k("k1_fb_loop:")
    for s in range(4): k(f"buffer_load_dwordx4 {ar(KF(s),4)}, v5, {sr(S_K,4)}, s6 offen offset:{64*s}")
    k("s_waitcnt vmcnt(0)")
    for s in range(4):
        for qb in range(4):
            d = vr(S(0,0,qb),4)
            k(f"{MF} {d}, {ar(KF(s),4)}, {vr(Q(qb,s),4)}, {d if s else '0'}")
    k("s_nop 15")
    for qb in range(4):
        a = S(0,0,qb)
        k(f"v_max3_f32 v{V_T+qb}, v{V_T+qb}, v{a}, v{a+1}")
        k(f"v_max3_f32 v{V_T+qb}, v{V_T+qb}, v{a+2}, v{a+3}")
    k("s_add_u32 s6, s6, 4096\ns_cmp_lt_u32 s6, 0x80000\ns_cbranch_scc1 k1_fb_loop")
    rowmax_cross(k, [V_T+q for q in range(4)], V_T+4)
    for x in pfv: k(x)
    for qb in range(4):
        k(f"v_mov_b32 v{V_LS+qb}, 0")
        for i in range(4): k(f"v_sub_f32 v{MN(qb)+i}, 0, v{V_T+qb}")
    k("s_barrier")
    k.vm = []; k.lg = []
    for wh, t in (('K',0),('K',1),('V',0),('K',2),('V',1),('K',3)): run(kv_group(wh, t))
    k.wait(vm="V0", barrier=True)
    run(kreads(0, 0, HK(0))); k("s_waitcnt lgkmcnt(0)"); run(kreads(0, 1, HK(1)))
    for m in qk_mfmas(0, HK(0)): k(m)
    k("s_waitcnt lgkmcnt(0)\ns_barrier")
    run(kreads(1, 0))
    for m in qk_mfmas(1, HK(1)): k(m)
    merge(k, [], sm0([0, 1, 2, 3], sub=False))
    k(loopinit)
    k("s_branch k1_first")
    return k
```

```python
from common import *
from sched import *
from k0 import mod_loads, mod_finish
MF = "v_mfma_f32_16x16x32_bf16"
S_K, S_V, S_W, S_X, S_M, S_O, S_D = 8, 12, 16, 20, 24, 28, 48
S_T0, S_WAVE, S_W1 = 36, 45, 62
S_TT, S_MM, S_W3 = 33, 34, 35
V_L16 = 26
PAR2 = 9*16384 + 8192
SCR = 9*16384 + 4096 + 64
C_W, C_NW = 12288, 12
D_U, D_NW = 16384, 9
V_DC, V_DD = 20, 23
XR = 48

def spread(n, rd, vm, g0=1, g1=None):
    gaps = fill(n, [], [], vm, g0=g0)
    fr = [g for g in range(g0, (g1 or n-1)) if g not in gaps]
    rd = list(rd)
    for i, g in enumerate(fr):
        left = len(fr) - i
        c = -(-len(rd)//left) if (i % 2 == 0 or len(rd) >= 2*left) else len(rd)//left
        for _ in range(c): add(gaps, g, rd.pop(0))
    assert not rd
    return gaps

def a_last(i, anr):
    sl = range((i*C_W)//8192, (i*C_W + C_W - 1)//8192 + 1)
    return max(max(x for x in range(32) if x % anr == s_)//2 if s_ < anr else -1 for s_ in sl)
def cperm(): return sorted(range(C_NW), key=lambda i: (a_last(i, OPT.anr), i))
def c_last(i):
    P = cperm()
    sl = range((i*D_U)//C_W, (i*D_U + D_U - 1)//C_W + 1)
    return max(max(x for x in range(16) if P[x % C_NW] == s_)//2 for s_ in sl)
def dperm(): return sorted(range(D_NW), key=lambda i: (c_last(i), i))

def c_w(j):
    return [[(f"s_add_u32 m0, s{S_W3}, {cperm()[j % C_NW]*C_W}\ns_mov_b32 s{S_T0+6}, {j*32*2752}"),
             V(f"buffer_load_dwordx4 v{V_DC+p}, {sr(S_V,4)}, s{S_T0+6} offen offset:{p*1024} lds", f"CW{j}")] for p in range(3)]
def d_w(i):
    return [[f"s_add_u32 m0, s32, {dperm()[i % D_NW]*D_U}\ns_mov_b32 s{S_T0+7}, {i*128*1024 + p*(8192-1024)}",
             V(f"buffer_load_dwordx4 v{V_DD}, {sr(S_D,4)}, s{S_T0+7} offen offset:{p*1024} lds", f"DW{i}")] for p in range(4)]

def setup_early(k):
    k(f"s_lshl_b32 s{S_TT}, s5, 1\ns_bfe_u32 s6, s2, 0x10005\ns_add_u32 s{S_TT}, s{S_TT}, s6")
    k(f"s_and_b32 s{S_MM}, s2, 3\ns_lshl_b32 s{S_MM}, s{S_MM}, 2\ns_bfe_u32 s6, s2, 0x20003\ns_add_u32 s{S_MM}, s{S_MM}, s6")
    k.srd(52, 54, 4*12288, WS_MODP) if False else None
    k("v_lshlrev_b32 v31, 4, v0")
    k(f"s_mul_i32 s{S_W3}, s{S_WAVE}, 3072\ns_mul_i32 s6, s{S_MM}, 192\ns_min_u32 s6, s6, {14*192}")
    k(f"s_cmp_lt_u32 s{S_WAVE}, 2\ns_cselect_b64 s[{S_V}:{S_V+1}], s[56:57], s[58:59]")
    k(f"s_add_u32 s{S_V}, s{S_V}, s6\ns_addc_u32 s{S_V+1}, s{S_V+1}, 0\ns_sub_u32 s{S_V+2}, {512*2752}, s6")
    k(f"s_cmp_eq_u32 s{S_MM}, 15\ns_cselect_b32 s{S_V+2}, 0, s{S_V+2}")
    k(f"s_and_b32 s6, s{S_MM}, 7\ns_lshl_b32 s6, s6, 7\ns_lshl_b32 s{S_T0+4}, s{S_WAVE}, 15\ns_add_u32 s6, s6, s{S_T0+4}")
    k(f"s_add_u32 s{S_D}, s60, s6\ns_addc_u32 s{S_D+1}, s61, 0\ns_sub_u32 s{S_D+2}, {1376*1024}, s6\ns_mov_b32 s{S_D+3}, 0x20000")
    k(f"v_lshrrev_b32 v5, 4, v{V_L16}\nv_and_b32 v6, 1, v1\nv_lshlrev_b32 v6, 4, v6")
    for p in range(3):
        k(f"v_add_u32 v56, {64*p}, v5")
        k("v_mul_u32_u24 v57, 0x5556, v56\nv_lshrrev_b32 v57, 18, v57")
        k("v_mul_u32_u24 v58, 12, v57\nv_sub_u32 v58, v56, v58")
        k("v_lshrrev_b32 v59, 1, v57\nv_and_b32 v59, 2, v59\nv_xor_b32 v58, v58, v59")
        k("v_add_u32 v57, v57, v6\nv_mul_u32_u24 v57, 2752, v57")
        k(f"v_lshl_add_u32 v{V_DC+p}, v58, 4, v57")
        if p: k(f"v_subrev_u32 v{V_DC+p}, {1024*p}, v{V_DC+p}")
    k("v_lshrrev_b32 v56, 3, v5\nv_and_b32 v57, 7, v5\nv_and_b32 v58, 6, v56\nv_xor_b32 v57, v57, v58")
    k(f"v_lshlrev_b32 v56, 10, v56\nv_lshl_add_u32 v{V_DD}, v57, 4, v56")
    k("v_and_b32 v56, 7, v0\nv_bfe_u32 v57, v0, 3, 2\nv_lshrrev_b32 v58, 5, v0")
    k("v_lshlrev_b32 v24, 10, v58\nv_lshl_add_u32 v24, v57, 8, v24\nv_lshl_add_u32 v24, v56, 4, v24")
    k("v_lshlrev_b32 v25, 10, v56\nv_lshl_add_u32 v25, v58, 6, v25\nv_lshl_add_u32 v25, v57, 3, v25")
    k(f"v_lshlrev_b32 v28, 7, v58\nv_lshl_add_u32 v28, v57, 4, v28\nv_add_u32 v28, {PAR2}, v28")
    k(f"v_lshlrev_b32 v29, 4, v56\nv_add_u32 v29, {SCR}, v29\nv_lshl_add_u32 v30, v1, 2, v29")
    k(f"s_lshl_b32 s6, s{S_TT}, 4\ns_add_u32 s6, s6, s{S_MM}\ns_lshl_b32 s6, s6, 13")
    k(f"s_add_u32 s{S_O}, s0, s6\ns_addc_u32 s{S_O+1}, s1, 0\ns_mov_b32 s{S_O+2}, 8192")
    k.srd(56, 54, 4*12288, WS_MODP)

MBASE = 0
def m_loads(base=0):
    return [[f"s_mov_b32 s{S_T0+2}, {4096*(1+(i>>2)) + (i&3)*12288}", V(f"buffer_load_dwordx4 {ar(base+4*i,4)}, v31, s[56:59], s{S_T0+2} offen sc1", "M")] for i in range(8)]
def m_finish(k, R=None):
    if R is None:
        R = 64
        for i in range(32): k(f"v_accvgpr_read_b32 v{64+i}, a{MBASE+i}")
    k(f"s_mov_b32 s6, 0\ns_cmp_lt_u32 s{S_WAVE}, 2\ns_cselect_b32 s{S_T0+4}, 1.0, 0\nv_add_u32 v31, {PAR2}, v31")
    mod_finish(k, R, 6); mod_finish(k, R+16, S_T0+4)
    k(f"ds_write_b128 v31, {vr(R,4)}\nds_write_b128 v31, {vr(R+16,4)} offset:4096\ns_waitcnt lgkmcnt(0)")

def x_loads():
    return [[V(f"buffer_load_dwordx2 {vr(XR+pc*4+h*2,2)}, v25, {sr(S_O,4)}, 0 offen offset:{pc*512+h*32}", "X")] for pc in range(2) for h in range(2)]

def pollloop(k, lab, va):
    ld = lambda r: f"buffer_load_dword v{r}, v{va}, {sr(S_K,4)}, s63 offen sc1"
    if OPT.pp:
        k(ld(3) + f"\ns_sleep {OPT.pp}")
        k(f"{lab}_b:")
        for a, b in ((5, 3), (3, 5)):
            k(ld(a) + f"\ns_waitcnt vmcnt(1)\nv_cmp_ne_u32 vcc, 0x{MAGIC:x}, v{b}\ns_cbranch_vccz {lab}_d")
        k(f"s_add_u32 s7, s7, 1\ns_cmp_lt_u32 s7, 0x10000\ns_cbranch_scc1 {lab}_b")
    else:
        k(f"{lab}_b:")
        k(ld(3) + f"\ns_waitcnt vmcnt(0)\nv_cmp_ne_u32 vcc, 0x{MAGIC:x}, v3")
        k(f"s_cbranch_vccz {lab}_d\ns_add_u32 s7, s7, 1\ns_cmp_lt_u32 s7, 0x10000\ns_cbranch_scc1 {lab}_b")
    k(f"{lab}_c:")
    k(f"s_waitcnt vmcnt(0)\n{lab}_d:\ns_barrier")

def handoff(k, ph, tag, mid=(), delay=True, nopoll=False):
    lab = f"k1_h{ph}"
    k(f"s_lshl_b32 s63, s{S_TT}, 11\ns_add_u32 s63, s63, {ph*32768}")
    k(f"v_lshlrev_b32 v2, 3, v{V_L16}\ns_lshl_b32 s6, s{S_MM}, 2\nv_add_u32 v2, s6, v2\nv_mov_b32 v3, 0x{MAGIC:x}")
    k(f"v_bfe_u32 v4, v{V_L16}, 4, 4\nv_lshlrev_b32 v4, 2, v4\ns_lshl_b32 s6, s{S_MM}, 7\nv_add_u32 v4, s6, v4")
    k.wait(vm=tag, barrier=True)
    k(f"s_cmp_eq_u32 s{S_WAVE}, 1\ns_cbranch_scc0 {lab}_a\ns_mov_b64 exec, 0xffff")
    k(f"buffer_store_dword v3, v2, {sr(S_K,4)}, s63 offen sc1\ns_mov_b64 exec, -1")
    k(f"{lab}_a:")
    k.run(mid)
    if nopoll: return
    k(f"s_cmp_eq_u32 s{S_WAVE}, 0\ns_cbranch_scc0 {lab}_c\ns_mov_b32 s7, 0")
    if delay: k(f"s_sleep {OPT.pdelay}")
    pollloop(k, lab, 4)
    k.vm = []

def st(k, name):
    names = OPT.fts.split(',')
    if name in names:
        k.stamp(1 + names.index(name))
        if getattr(k, 'prof', False): k("s_waitcnt lgkmcnt(0)"); k.lg = []

def rest(k, ncw):
    k.srd(S_X, 54, 4*2048*1024, WS_PART)
    k.srd(S_M, 54, 2048*1024, WS_H2)
    k(f"s_lshl_b32 s6, s{S_TT}, 4\ns_add_u32 s6, s6, s{S_MM}\ns_lshr_b32 s7, s6, 1\ns_lshl_b32 s7, s7, 14\ns_and_b32 s6, s6, 1\ns_lshl_b32 s6, s6, 7\ns_add_u32 s44, s7, s6")
    st(k, "s1")
    n1 = min(OPT.fc1, C_NW - ncw)
    PR, PA, AC, T, XF = 64, 96, 144, 160, 168
    handoff(k, 1, "PST", [g for j in range(ncw, ncw + n1) for g in c_w(j)] + ([] if OPT.mearly else [m_finish]), delay=False, nopoll=OPT.prog); ncw += n1
    k.lg = []
    if OPT.prog:
        k("s_barrier\ns_mov_b32 s7, 0\ns_mov_b32 s46, 0")
        k("k1_pg:")
        k(f"buffer_load_dword v3, v4, {sr(S_K,4)}, s63 offen sc1\ns_waitcnt vmcnt(0)\nv_cmp_eq_u32 vcc, 0x{MAGIC:x}, v3\ns_add_u32 s7, s7, 1")
        k("s_cmp_ge_u32 s7, 0x10000\ns_cselect_b32 s47, -1, vcc_lo\ns_andn2_b32 s47, s47, s46")
        for c in range(4):
            k(f"s_bfe_u32 s6, s47, {(4<<16) | (4*c)}\ns_cmp_eq_u32 s6, 15\ns_cbranch_scc0 k1_pg{c}\ns_or_b32 s46, s46, {15 << (4*c)}")
            for h in range(2):
                k(f"s_add_u32 s6, s44, {c*0x200000 + h*8192}\nbuffer_load_dwordx4 {vr(PR+(2*c+h)*4,4)}, v24, {sr(S_X,4)}, s6 offen sc1")
            k(f"k1_pg{c}:")
        k("s_cmp_lg_u32 s46, 0xffff\ns_cbranch_scc1 k1_pg")
        k.vm = ["S3"]
    st(k, "y1")
    for i in range(8 if not OPT.prog else 0):
        k(f"s_add_u32 s{S_T0+(i&3)}, s44, {(i>>1)*0x200000 + (i&1)*8192}")
        k.vmop(f"buffer_load_dwordx4 {vr(PR+i*4,4)}, v24, {sr(S_X,4)}, s{S_T0+(i&3)} offen sc1", f"S{i>>1}")
    k.srd(S_W, 54, 2048*1024, WS_X1)
    k(f"s_add_u32 s{S_T0+4}, s44, 8192")
    for wi in range(3):
        for pc in range(2):
            for h in range(2): k(f"ds_read_b128 {vr(PA+wi*16+pc*8+h*4,4)}, v28 offset:{wi*2048 + pc*1024 + h*64}")
    n2 = min(OPT.fc2, C_NW - ncw)
    for j in range(ncw, ncw + n2): k.run(c_w(j))
    ncw += n2
    for d in range(8): k(f"v_lshlrev_b32 v{XF+2*d}, 16, v{XR+d}\nv_and_b32 v{XF+2*d+1}, 0xffff0000, v{XR+d}")
    for sp in range(4):
        k.wait(vm=f"S{sp}" if not OPT.prog else "S3")
        for d in range(8):
            w = PR + sp*8 + d; t_ = T + 2*(d & 3)
            if sp == 0: k(f"v_lshlrev_b32 v{AC+2*d}, 16, v{w}\nv_and_b32 v{AC+2*d+1}, 0xffff0000, v{w}")
            else:
                k(f"v_lshlrev_b32 v{t_}, 16, v{w}\nv_and_b32 v{t_+1}, 0xffff0000, v{w}")
                k(f"v_pk_add_f32 {vr(AC+2*d,2)}, {vr(AC+2*d,2)}, {vr(t_,2)}")
    k("s_waitcnt lgkmcnt(0)")
    st(k, "p")
    for d in range(8): k(f"v_pk_fma_f32 {vr(AC+2*d,2)}, {vr(AC+2*d,2)}, {vr(PA+2*d,2)}, {vr(XF+2*d,2)}")
    for d in range(8): k(f"v_cvt_pk_bf16_f32 v{XR+d}, v{AC+2*d}, v{AC+2*d+1}")
    for d in range(8): k(f"v_lshlrev_b32 v{AC+2*d}, 16, v{XR+d}\nv_and_b32 v{AC+2*d+1}, 0xffff0000, v{XR+d}")
    def wsum(r):
        k(f"s_nop 1\nv_add_f32 v{r}, v{r}, v{r} row_ror:8")
        for sw in ("v_permlane16_swap_b32", "v_permlane32_swap_b32"):
            k(f"v_mov_b32 v{r+1}, v{r}\ns_nop 1\n{sw} v{r+1}, v{r}\ns_nop 1\nv_add_f32 v{r}, v{r}, v{r+1}")
    SO = ("s44", f"s{S_T0+4}")
    for i in range(4): k(f"v_pk_add_f32 {vr(T+2*i,2)}, {vr(AC+2*i,2)}, {vr(AC+8+2*i,2)}")
    for i in range(2): k(f"v_pk_add_f32 {vr(T+2*i,2)}, {vr(T+2*i,2)}, {vr(T+4+2*i,2)}")
    k(f"v_pk_add_f32 {vr(T,2)}, {vr(T,2)}, {vr(T+2,2)}\nv_add_f32 v{T}, v{T}, v{T+1}")
    for pc in range(2): k.vmop(f"buffer_store_dwordx4 {vr(XR+pc*4,4)}, v24, {sr(S_W,4)}, {SO[pc]} offen sc1", "HST")
    wsum(T)
    k(f"v_mul_f32 v14, {hexf(-1/128)}, v{T}")
    for i in range(8): k(f"v_pk_add_f32 {vr(AC+2*i,2)}, {vr(AC+2*i,2)}, v[14:15] op_sel_hi:[1,0]")
    for i in range(2): k(f"v_pk_mul_f32 {vr(T+2*i,2)}, {vr(AC+2*i,2)}, {vr(AC+2*i,2)}")
    for i in range(2, 8): k(f"v_pk_fma_f32 {vr(T+2*(i&1),2)}, {vr(AC+2*i,2)}, {vr(AC+2*i,2)}, {vr(T+2*(i&1),2)}")
    k(f"v_pk_add_f32 {vr(T,2)}, {vr(T,2)}, {vr(T+2,2)}\nv_add_f32 v{T}, v{T}, v{T+1}")
    wsum(T)
    k(f"ds_write_b32 v30, v14\nds_write_b32 v30, v{T} offset:128")
    for i in range(8): k(f"v_pk_mul_f32 {vr(AC+2*i,2)}, {vr(AC+2*i,2)}, {vr(PA+32+2*i,2)}")
    k("s_waitcnt lgkmcnt(0)\ns_barrier")
    k(f"ds_read_b128 {vr(T,4)}, v29\nds_read_b128 {vr(T+4,4)}, v29 offset:128\ns_waitcnt lgkmcnt(1)")
    k(f"v_pk_add_f32 v[12:13], {vr(T,2)}, {vr(T+2,2)}\nv_add_f32 v12, v12, v13\nv_mul_f32 v12, {hexf(-0.25)}, v12")
    for h in range(2): k(f"v_pk_add_f32 {vr(T+2*h,2)}, {vr(T+2*h,2)}, v[12:13] op_sel_hi:[1,0]")
    k(f"v_add_f32 v14, v14, v12\nv_pk_mul_f32 {vr(T,2)}, {vr(T,2)}, {vr(T,2)}\nv_pk_fma_f32 {vr(T,2)}, {vr(T+2,2)}, {vr(T+2,2)}, {vr(T,2)}\ns_waitcnt lgkmcnt(0)")
    k(f"v_pk_add_f32 {vr(T+4,2)}, {vr(T+4,2)}, {vr(T+6,2)}\nv_add_f32 v{T}, v{T}, v{T+1}\nv_add_f32 v{T+4}, v{T+4}, v{T+5}")
    k(f"v_mov_b32 v12, {hexf(1e-5)}\nv_fmac_f32 v12, {hexf(0.25)}, v{T}\nv_fmac_f32 v12, {hexf(1/512)}, v{T+4}\nv_rsq_f32 v12, v12\ns_nop 0")
    k("v_mul_f32 v14, v14, v12\nv_sub_f32 v14, 0, v14")
    for pc in range(2):
        for i in range(4*pc, 4*pc+4): k(f"v_pk_fma_f32 {vr(PA+16+2*i,2)}, {vr(PA+32+2*i,2)}, v[14:15], {vr(PA+16+2*i,2)} op_sel_hi:[1,0,1]")
        for i in range(4*pc, 4*pc+4): k(f"v_pk_fma_f32 {vr(AC+2*i,2)}, {vr(AC+2*i,2)}, v[12:13], {vr(PA+16+2*i,2)} op_sel_hi:[1,0,1]")
        for d in range(4*pc, 4*pc+4): k(f"v_cvt_pk_bf16_f32 v{PR+d}, v{AC+2*d}, v{AC+2*d+1}")
        k.vmop(f"buffer_store_dwordx4 {vr(PR+4*pc,4)}, v24, {sr(S_M,4)}, {SO[pc]} offen sc1", "HST")
    CA = lambda m, t, tb: 64 + ((t*2+m)*2+tb)*4
    CW = lambda j, m, t, n=4, o=0: (ar if (j >> 1) & 1 else vr)((128 if (j >> 1) & 1 else 160) + (((j & 1)*6+t)*2+m)*4 + o, n)
    CB = lambda j, tb: (j*2+tb)*4
    V_CW = 8
    k(f"v_lshrrev_b32 v56, 8, v{V_L16}\nv_bfe_u32 v57, v{V_L16}, 6, 2\nv_bfe_u32 v58, v{V_L16}, 4, 2")
    k("v_lshl_add_u32 v59, v56, 2, v57\nv_mul_u32_u24 v60, 192, v59\nv_lshl_add_u32 v60, v58, 3, v60\nv_and_b32 v61, 1, v56")
    for par in range(2):
        k(f"v_xor_b32 v62, {par}, v61\nv_lshl_add_u32 v{V_CW+par}, v62, 5, v60\nv_add_u32 v{V_CW+2+par}, {5*C_W}, v{V_CW+par}\nv_add_u32 v{V_CW+4+par}, {10*C_W}, v{V_CW+par}")
    k(f"s_lshl_b32 s6, s{S_TT}, 2\ns_add_u32 s6, s6, s{S_WAVE}\ns_lshl_b32 s44, s6, 15")
    k(f"s_mul_i32 s6, s6, {2*43*1024}\ns_mul_i32 s7, s{S_MM}, 3072\ns_add_u32 s6, s6, s7\ns_add_u32 s6, s6, 0x{WS_HF:x}")
    k(f"s_add_u32 s{S_X}, s54, s6\ns_addc_u32 s{S_X+1}, s55, 0\ns_mov_b32 s{S_X+2}, {43*1024+3072}")
    k(f"s_mov_b32 s{S_O}, s{S_X}\ns_mov_b32 s{S_O+1}, s{S_X+1}\ns_cmp_eq_u32 s{S_MM}, 14\ns_cselect_b32 s{S_O+2}, 0, s{S_X+2}")
    def c_reads(p):
        r = []
        for t in range(6):
            for m in range(2):
                for j in (2*p, 2*p+1):
                    sl = cperm()[j % C_NW]; bank = sl // 5; off = (sl % 5)*C_W
                    r += [L(f"ds_read_b64_tr_b16 {CW(j,m,t,2,2*h)}, v{V_CW+2*bank+(t&1)} offset:{off + m*6144 + h*3072 + (t>>1)*64}", f"R{p}_{t}") for h in range(2)]
        return r
    st(k, "s2")
    n3 = min(OPT.fc3, C_NW - ncw)
    k.lg = []
    assert ncw - n2 >= 2
    handoff(k, 2, "HST", [g for j in range(ncw, ncw + n3) for g in c_w(j)] + c_reads(0), delay=OPT.fdl2); ncw += n3
    st(k, "y2")
    assert ncw >= 4
    k(f"s_cmp_eq_u32 s{S_MM}, 15\ns_cbranch_scc1 k1_c15")
    def c_b(j):
        return [[f"s_add_u32 s{S_T0+tb}, s44, {tb*16384 + (j>>2)*4096}",
                 V(f"buffer_load_dwordx4 {ar(CB(j,tb),4)}, v{V_L16}, {sr(S_M,4)}, s{S_T0+tb} offen offset:{(j&3)*1024} sc1", f"CB{j}")] for tb in range(2)]
    nb = OPT.fb0
    for j in range(nb): k.run(c_b(j))
    nd = 0
    for p in range(8):
        if p == 7:
            st(k, "c7")
            k.wait(vm="CB15", lg="R7_1")
            mq = []; vq = []; n_ = 0
            for u in range(3):
                for tb in range(2):
                    o = 32 + (n_ & 3)*4
                    for h in range(2):
                        t = 2*u + h
                        for m in range(2):
                            d = vr(CA(m, t, tb), 4)
                            for i, j in enumerate((14, 15) if m == 0 else (15, 14)):
                                mq.append(It(f"{MF} {d}, {CW(j,m,t)}, {ar(CB(j,tb),4)}, {d}", gives=f"D{t}{tb}" if (m and i) else None, needs={"RR": 0} if len(mq) == 16 else None))
                        a = CA(0, t, tb); b = CA(1, t, tb)
                        vq += [It(f"v_mul_f32 v{a+i}, v{a+i}, v{b+i}", needs={f"D{t}{tb}": 8}) for i in range(4)]
                        vq += [It(f"v_cvt_pk_bf16_f32 v{o+2*h+e}, v{a+2*e}, v{a+2*e+1}") for e in range(2)]
                    vq.append(It(V(f"buffer_store_dwordx4 {vr(o,4)}, v{V_L16}, {sr(S_O if u else S_X,4)}, s{S_T0+tb} offen offset:{u*1024} sc1", "GST"), cost=2))
                    n_ += 1
            merge(k, mq, vq, [It(f"s_mov_b32 s{S_T0}, 0\ns_mov_b32 s{S_T0+1}, {43*1024}", cost=0), It(W(lg='all'), cost=0, gives="RR", needs={"D10": 0})])
            break
        mf = []; n_ = 0
        for t in range(6):
            for m in range(2):
                for tb_ in range(2):
                    tb = tb_ if m == 0 else 1 - tb_
                    d = vr(CA(m, t, tb), 4)
                    for i, j in enumerate((2*p, 2*p+1) if n_ % 2 == 0 else (2*p+1, 2*p)):
                        mf.append(f"{MF} {d}, {CW(j,m,t)}, {ar(CB(j,tb),4)}, {d if (p or i) else '0'}")
                    n_ += 1
        vm = []
        while len(vm) < OPT.fvm - 1:
            wok = ncw < 16 and (ncw < C_NW or p >= (ncw - C_NW)//2 + 1)
            if wok and (nb >= 16 or ncw//2 - 2 <= nb//2): vm += c_w(ncw); ncw += 1
            elif nb < 16: vm += c_b(nb); nb += 1
            elif ncw == 16 and nd < OPT.fde and c_last(dperm()[nd]) <= p - 1: vm += d_w(nd); nd += 1
            else: break
        assert ncw > 2*p + 3 + 2 or ncw == 16, (p, ncw)
        if OPT.cx == 1: vm = [x for x in vm if "m0" not in x[0]]
        if OPT.cx == 3: vm = []
        gaps = spread(48, c_reads(p+1) if OPT.cx != 2 else [], vm)
        if p == 1: st(k, "c1")
        if p == 4: st(k, "c4")
        add(gaps, -1, W(vm=f"CB{2*p+1}", lg=f"R{p}_1"))
        front(gaps, 12, W(lg=f"R{p}_3")); front(gaps, 26, W(lg=f"R{p}_5"))
        if p >= 1: front(gaps, 0, W(vm=f"CW{2*p+3}", barrier=True))
        emit(k, mf, gaps)
    assert nb == 16 and ncw == 16
    k("s_branch k1_c_done")
    k("k1_c15:")
    save = list(k.vm)
    for i in range(nd): k.run(d_w(i))
    k.vm = save
    k("k1_c_done:")
    V_DA = 8
    k("v_lshlrev_b32 v60, 7, v59\nv_lshl_add_u32 v60, v58, 3, v60\nv_bfe_u32 v61, v59, 1, 2\nv_lshrrev_b32 v62, 1, v1\nv_lshl_add_u32 v60, v62, 13, v60")
    for t in range(4):
        k(f"v_xor_b32 v62, {t}, v61\nv_lshl_add_u32 v{V_DA+t}, v62, 5, v60\nv_add_u32 v{V_DA+4+t}, 0x10000, v{V_DA+t}\nv_add_u32 v{V_DA+8+t}, 0x20000, v{V_DA+t}")
    k(f"s_lshl_b32 s6, s{S_TT}, 1\ns_lshr_b32 s7, s{S_MM}, 3\ns_add_u32 s6, s6, s7\ns_lshl_b32 s6, s6, 1\ns_and_b32 s7, s{S_WAVE}, 1\ns_add_u32 s6, s6, s7\ns_lshl_b32 s44, s6, 1")
    k(f"s_lshr_b32 s46, s{S_WAVE}, 1\ns_mul_i32 s6, s44, {43*1024}\ns_lshl_b32 s7, s46, 11\ns_add_u32 s6, s6, s7\ns_add_u32 s6, s6, 0x{WS_HF:x}")
    k(f"s_add_u32 s{S_M}, s54, s6\ns_addc_u32 s{S_M+1}, s55, 0\ns_sub_u32 s{S_M+2}, {2*43*1024}, s7")
    k(f"s_add_u32 s44, s44, s46\ns_mul_i32 s46, s46, {43*1024}\ns_sub_u32 s47, {43*1024}, s46")
    k(f"s_lshl_b32 s44, s44, 14\ns_and_b32 s7, s{S_MM}, 7\ns_lshl_b32 s6, s7, 7\ns_add_u32 s6, s6, s44")
    k(f"s_add_u32 s{S_V}, s98, s6\ns_addc_u32 s{S_V+1}, s99, 0\ns_sub_u32 s{S_V+2}, {2048*1024}, s6")
    k(f"s_lshl_b32 s6, s7, 11\ns_add_u32 s44, s44, s6\ns_lshl_b32 s7, s7, 8\ns_add_u32 s7, s7, {PAR2+6144}")
    k(f"v_bfe_u32 v57, v{V_L16}, 4, 4\nv_lshlrev_b32 v24, 10, v57\nv_lshl_add_u32 v24, v56, 4, v24")
    k("v_lshlrev_b32 v25, 4, v56\nv_add_u32 v25, s7, v25")
    XS = dperm()[2]*D_U
    k(f"v_lshl_add_u32 v28, v1, 12, v{V_L16}\nv_add_u32 v28, {XS}, v28\nv_xor_b32 v29, 0x2000, v28")
    DA = lambda t, tb: 64 + (tb*4+t)*4
    DW = lambda i, e, t: 128 + (((i & 1)*2+e)*4+t)*4
    DB = lambda i, e, tb: ((i*2+e)*2+tb)*4
    def d_b(i):
        return [[f"s_add_u32 s{S_T0+tb}, s{46+tb}, {i*4096}", V(f"buffer_load_dwordx4 {ar(DB(i,e,tb),4)}, v{V_L16}, {sr(S_M,4)}, s{S_T0+tb} offen offset:{e*1024} sc1", f"DB{i}")] for tb in range(2) for e in range(2)]
    def d_reads(i):
        base = dperm()[i % D_NW]*D_U; bank = base >> 16; off = base & 0xffff
        return [L(f"ds_read_b64_tr_b16 {vr(DW(i,e,t)+2*h,2)}, v{V_DA+4*bank+t} offset:{off + e*4096 + h*2048}", f"R{i}_{t}") for t in range(4) for e in range(2) for h in range(2)]
    st(k, "s3")
    k.lg = []
    assert nd >= 1
    xl = [[V(f"buffer_load_dwordx4 {vr(XR+4*s_,4)}, v{V_L16}, {sr(S_W,4)}, s44 offen offset:{1024*s_} sc1", "X1")] for s_ in range(2)]
    n4 = min(OPT.fd1, D_NW - nd)
    gbr = [L(f"ds_read_b128 {vr(32+4*t,4)}, v25 offset:{64*t}", "GB") for t in range(4)]
    handoff(k, 3, "GST", xl + [g for i in range(nd, nd + n4) for g in d_w(i)] + gbr + d_reads(0), delay=OPT.fdl3); nd += n4
    npub = nd
    st(k, "y3")
    assert nd >= 2
    nb = OPT.fdb0
    for i in range(nb): k.run(d_b(i))
    for d in range(8): k(f"v_lshlrev_b32 v{96+2*d}, 16, v{XR+d}\nv_and_b32 v{97+2*d}, 0xffff0000, v{XR+d}")
    lastbar = -1
    for i in range(11):
        mf = []; n_ = 0
        if i < 10:
            for t in range(4):
                for tb_ in range(2):
                    tb = tb_ if t % 2 == 0 else 1 - tb_
                    d = vr(DA(t, tb), 4)
                    for c, e in enumerate((0, 1) if n_ % 2 == 0 else (1, 0)):
                        mf.append(f"{MF} {d}, {vr(DW(i,e,t),4)}, {ar(DB(i,e,tb),4)}, {d if (i or c) else '0'}")
                    n_ += 1
        else:
            k.wait(vm="DB10", lg='all')
            k(f"s_cmp_ge_u32 s{S_WAVE}, 2\ns_cbranch_scc1 k1_d_skip")
            for e in (1, 0):
                if e == 0: k("k1_d_skip:")
                for tb in (1, 0):
                    for t in range(4):
                        d = vr(DA(t, tb), 4)
                        k(f"{MF} {d}, {vr(DW(i,e,t),4)}, {ar(DB(i,e,tb),4)}, {d}")
            break
        bar = i + 1 >= npub or i in (OPT.fdr, OPT.fdr + 1)
        if bar: lastbar = i
        vm = []
        if nb < 11: vm += d_b(nb); nb += 1
        if nd < 11 and (nd < D_NW or lastbar >= nd - D_NW + 1) and nd <= nb + OPT.fdl: vm = vm[:2] + d_w(nd) + vm[2:]; nd += 1
        assert nd > i + 2 or nd == 11, (i, nd)
        k.wait(vm=f"DB{i}", lg=f"R{i}_1")
        gaps = {}
        if bar: add(gaps, 0, W(vm=f"DW{i+1}", barrier=True))
        add(gaps, 6, W(lg=f"R{i}_3"))
        rd = d_reads(i+1)
        for g in range(16):
            if vm and g % 2 == 1: add(gaps, g, *vm.pop(0))
            elif rd: add(gaps, g, rd.pop(0), rd.pop(0))
        assert not vm and not rd
        emit(k, mf, gaps)
    assert nb == 11 and nd == 11 and lastbar >= 3
    st(k, "d1")
    k("s_nop 3")
    for t in range(4): k(f"ds_write_b128 v28, {vr(DA(t,1),4)} offset:{t*1024}")
    for e in range(0, 16, 2): k(f"v_pk_fma_f32 {vr(96+e,2)}, {vr(64+e,2)}, {vr(32+e,2)}, {vr(96+e,2)}")
    k("s_waitcnt lgkmcnt(0)\ns_barrier")
    for t in range(4): k(f"ds_read_b128 {vr(64+4*t,4)}, v29 offset:{t*1024}")
    for s_ in range(2):
        k(f"s_waitcnt lgkmcnt({2-2*s_})")
        for e in range(8*s_, 8*s_+8, 2): k(f"v_pk_fma_f32 {vr(64+e,2)}, {vr(64+e,2)}, {vr(32+e,2)}, {vr(96+e,2)}")
        o = 112 + 4*s_
        for d in range(4): k(f"v_cvt_pk_bf16_f32 v{o+d}, v{64+8*s_+2*d}, v{65+8*s_+2*d}")
        k(f"s_nop 1\nv_permlane32_swap_b32 v{o}, v{o+2}\nv_permlane32_swap_b32 v{o+1}, v{o+3}\ns_nop 1\nv_permlane16_swap_b32 v{o}, v{o+2}\nv_permlane16_swap_b32 v{o+1}, v{o+3}")
        k(f"buffer_store_dwordx4 {vr(o,4)}, v24, {sr(S_V,4)}, 0 offen offset:{64*s_} {OPT.st5}")
```

```python
from common import *

C1 = math.log2(math.e) / math.sqrt(128.0)

def round_bf16(k, v, tmp):
    k(f"v_cvt_pk_bf16_f32 v{tmp}, v{v}, v{v}")
    k(f"v_and_b32 v{v}, 0xffff0000, v{tmp}")

def gen_k0(prof=False):
    k = Kern("k0_prep_kernel", 256, 512, 2048 + 8192, 64, 64, 96 if prof else 48)
    k.prof = prof
    end = "k0_end"
    k(f"s_cmp_ge_u32 s2, 256\ns_cbranch_scc1 {end}")
    k.stamp(0)
    k.dbg_begin(0)
    k(f"s_load_dwordx2 s[4:5], s[0:1], {KA_X}")
    k(f"s_load_dwordx4 s[8:11], s[0:1], {KA_C}")
    k(f"s_load_dwordx2 s[6:7], s[0:1], {KA_WS}")
    k(f"s_load_dwordx2 s[28:29], s[0:1], {KA_WQ}")
    k("v_lshrrev_b32 v1, 6, v0\nv_and_b32 v2, 63, v0")
    k("v_readfirstlane_b32 s24, v1")
    k("s_cmp_ge_u32 s24, 4\ns_cbranch_scc1 k0_mod")
    k("v_lshrrev_b32 v3, 5, v0\nv_and_b32 v4, 31, v0")
    k("v_lshlrev_b32 v5, 10, v3\nv_lshl_add_u32 v5, v4, 4, v5\ns_lshl_b32 s3, s2, 13")
    k("v_lshlrev_b32 v6, 8, v4\nv_lshl_add_u32 v6, v3, 4, v6")
    k("s_lshr_b32 s25, s2, 1\ns_lshl_b32 s25, s25, 14\ns_and_b32 s26, s2, 1\ns_lshl_b32 s26, s26, 7\ns_add_u32 s25, s25, s26\ns_add_u32 s26, s25, 8192")
    k("s_waitcnt lgkmcnt(0)")
    k.srd(12, 4, 2048*512*2)
    for j in range(2):
        k(f"buffer_load_dwordx4 v[{8+4*j}:{11+4*j}], v5, s[12:15], s3 offen offset:{512*j} {OPT.xnt}")
    k.srd(16, 6, 2048*512*2, WS_XH)
    k.srd(20, 6, 4*32768, WS_FLAG)
    k("v_lshlrev_b32 v40, 2, v0\nv_mov_b32 v41, 0\ns_lshl_b32 s27, s2, 10")
    k(f"buffer_store_dword v41, v40, s[20:23], s27 offen {OPT.stz}")
    E = 16; T = 32
    def rowsum(r):
        for sh in (8, 4, 2, 1):
            k(f"s_nop 1\nv_add_f32 v{r}, v{r}, v{r} row_ror:{sh}")
        k(f"v_mov_b32 v{r+1}, v{r}\ns_nop 1\nv_permlane16_swap_b32 v{r+1}, v{r}\ns_nop 1\nv_add_f32 v{r}, v{r}, v{r+1}")
    for j in range(2):
        k(f"s_waitcnt vmcnt({2-j})")
        for d in range(4):
            k(f"v_lshlrev_b32 v{E+8*j+2*d}, 16, v{8+4*j+d}\nv_and_b32 v{E+8*j+2*d+1}, 0xffff0000, v{8+4*j+d}")
    for i in range(4): k(f"v_pk_add_f32 {vr(T+2*i,2)}, {vr(E+2*i,2)}, {vr(E+8+2*i,2)}")
    for i in range(2): k(f"v_pk_add_f32 {vr(T+2*i,2)}, {vr(T+2*i,2)}, {vr(T+4+2*i,2)}")
    k(f"v_pk_add_f32 {vr(T,2)}, {vr(T,2)}, {vr(T+2,2)}\nv_add_f32 v{T}, v{T}, v{T+1}")
    rowsum(T)
    k(f"v_mul_f32 v{T+2}, {hexf(-1/512)}, v{T}")
    for i in range(8): k(f"v_pk_add_f32 {vr(E+2*i,2)}, {vr(E+2*i,2)}, {vr(T+2,2)} op_sel_hi:[1,0]")
    for i in range(2): k(f"v_pk_mul_f32 {vr(T+2*i,2)}, {vr(E+2*i,2)}, {vr(E+2*i,2)}")
    for i in range(2, 8): k(f"v_pk_fma_f32 {vr(T+2*(i&1),2)}, {vr(E+2*i,2)}, {vr(E+2*i,2)}, {vr(T+2*(i&1),2)}")
    k(f"v_pk_add_f32 {vr(T,2)}, {vr(T,2)}, {vr(T+2,2)}\nv_add_f32 v{T}, v{T}, v{T+1}")
    rowsum(T)
    k(f"v_mov_b32 v{T+2}, {hexf(1e-5)}\nv_fmac_f32 v{T+2}, {hexf(1/512)}, v{T}\nv_rsq_f32 v{T+2}, v{T+2}\ns_nop 0")
    for i in range(8): k(f"v_pk_mul_f32 {vr(E+2*i,2)}, {vr(E+2*i,2)}, {vr(T+2,2)} op_sel_hi:[1,0]")
    for d in range(8): k(f"v_cvt_pk_f16_f32 v{8+d}, v{E+2*d}, v{E+2*d+1}")
    if OPT.k0t:
        k("v_lshlrev_b32 v7, 7, v4\nv_lshl_add_u32 v7, v3, 4, v7")
        k("ds_write_b128 v7, v[8:11] offset:2048\nds_write_b128 v7, v[12:15] offset:6144")
        k("v_lshlrev_b32 v7, 4, v0\nv_lshrrev_b32 v6, 3, v0\nv_lshlrev_b32 v6, 8, v6\nv_and_b32 v5, 7, v0\nv_lshl_add_u32 v6, v5, 4, v6")
        k("s_waitcnt lgkmcnt(0)\ns_barrier")
        k("ds_read_b128 v[8:11], v7 offset:2048\nds_read_b128 v[12:15], v7 offset:6144\ns_waitcnt lgkmcnt(1)")
    k(f"buffer_store_dwordx4 v[8:11], v6, s[16:19], s25 offen {OPT.st0}")
    if OPT.k0t: k("s_waitcnt lgkmcnt(0)")
    k(f"buffer_store_dwordx4 v[12:15], v6, s[16:19], s26 offen {OPT.st0}")
    k.dbg_mark(0, 60, 61, True); k.dbg_mark(1, 62, 63)
    k("s_branch k0_fin" if prof else "s_endpgm")
    k("k0_mod:")
    k("s_cmp_ge_u32 s2, 192\ns_cbranch_scc1 k0_pf")
    k("s_mul_i32 s25, s2, 0x556\ns_lshr_b32 s25, s25, 16\ns_mul_i32 s26, s25, 48\ns_sub_u32 s26, s2, s26")
    k("v_and_b32 v3, 255, v0\nv_lshrrev_b32 v4, 3, v3\nv_and_b32 v5, 7, v3")
    k("v_mul_u32_u24 v6, 6144, v4\nv_lshl_add_u32 v6, v5, 4, v6\nv_lshlrev_b32 v7, 1, v4")
    k(f"s_mul_i32 s3, s25, {128*6144}\ns_lshl_b32 s27, s26, 7\ns_add_u32 s3, s3, s27\ns_lshl_b32 s27, s25, 8")
    k("s_waitcnt lgkmcnt(0)")
    k.srd(16, 10, 512*3072*2)
    k.srd(12, 8, 1024)
    for i in range(4):
        k(f"buffer_load_ushort v{8+i}, v7, s[12:15], s27 offen offset:{64*i}")
    for i in range(4):
        k(f"buffer_load_dwordx4 v[{16+4*i}:{19+4*i}], v6, s[16:19], s3 offen nt")
        if i < 3: k(f"s_add_u32 s3, s3, {32*6144}")
    k.srd(20, 6, 4*3072*4, WS_MODP)
    npf = 0
    if OPT.wqpf >= 2:
        npf = 1
        k.srd(32, 28, 512*8192)
        k(f"s_sub_u32 s39, s24, {5 if OPT.wqpf < 5 else 4}\ns_cmp_lt_u32 s39, {OPT.wqpf-1}\ns_cselect_b32 s34, s34, 0\ns_cselect_b32 s39, s39, 0\ns_mul_i32 s39, s39, 24")
        k("v_lshrrev_b32 v56, 4, v2\nv_lshlrev_b32 v56, 13, v56\nv_bfe_u32 v57, v2, 1, 3\nv_lshl_add_u32 v56, v57, 10, v56\nv_and_b32 v57, 1, v2\nv_lshl_add_u32 v56, v57, 7, v56")
        k("s_lshr_b32 s37, s2, 3\ns_add_u32 s37, s37, 22\ns_add_u32 s37, s37, s39\ns_lshl_b32 s37, s37, 15\ns_and_b32 s38, s2, 3\ns_lshl_b32 s38, s38, 8\ns_add_u32 s37, s37, s38")
        k("buffer_load_dword v57, v56, s[32:35], s37 offen nt")
    k(f"s_waitcnt vmcnt({4+npf})")
    for i in range(4): k(f"v_lshlrev_b32 v{8+i}, 16, v{8+i}")
    for i in range(4): k(f"v_mul_f32 v{12+i}, {hexf(-math.log2(math.e))}, v{8+i}")
    for i in range(4): k(f"v_exp_f32 v{12+i}, v{12+i}")
    k("s_nop 0")
    for i in range(4): k(f"v_add_f32 v{12+i}, 1.0, v{12+i}")
    for i in range(4): k(f"v_rcp_f32 v{12+i}, v{12+i}")
    k("s_nop 0")
    for i in range(4): k(f"v_mul_f32 v{8+i}, v{8+i}, v{12+i}")
    for i in range(4):
        k(f"v_cvt_pk_bf16_f32 v{12+i}, v{8+i}, v{8+i}")
    for i in range(4):
        k(f"v_and_b32 v{48+2*i}, 0xffff0000, v{12+i}")
    A = 32
    for i in range(4):
        k(f"s_waitcnt vmcnt({3-i+npf})")
        for d in range(4):
            w = 16+4*i+d; t = 40 + 2*(d & 1)*2
            k(f"v_lshlrev_b32 v{t}, 16, v{w}\nv_and_b32 v{t+1}, 0xffff0000, v{w}")
            if i == 0: k(f"v_pk_mul_f32 {vr(A+2*d,2)}, {vr(t,2)}, {vr(48+2*i,2)} op_sel_hi:[1,0]")
            else: k(f"v_pk_fma_f32 {vr(A+2*d,2)}, {vr(t,2)}, {vr(48+2*i,2)}, {vr(A+2*d,2)} op_sel_hi:[1,0,1]")
    k("s_nop 1")
    for e in range(8): k(f"v_add_f32 v{A+e}, v{A+e}, v{A+e} row_ror:8")
    k("s_nop 1")
    for e in range(4): k(f"v_permlane16_swap_b32 v{A+e}, v{A+4+e}")
    k("s_nop 1")
    for e in range(4): k(f"v_add_f32 v{A+e}, v{A+e}, v{A+4+e}")
    k("s_nop 1")
    for e in range(2): k(f"v_permlane32_swap_b32 v{A+e}, v{A+2+e}")
    k("s_nop 1")
    for e in range(2): k(f"v_add_f32 v{A+e}, v{A+e}, v{A+2+e}")
    k("v_lshlrev_b32 v8, 5, v5\nv_and_b32 v9, 16, v2\nv_add_u32 v8, v8, v9\nv_lshrrev_b32 v9, 2, v2\nv_and_b32 v9, 8, v9\nv_add_u32 v8, v8, v9")
    k("v_and_b32 v9, 3, v1\nv_lshl_add_u32 v8, v9, 8, v8")
    k(f"ds_write_b64 v8, {vr(A,2)}")
    k("s_waitcnt lgkmcnt(0)\ns_barrier")
    k(f"s_cmp_lg_u32 s24, 4\ns_cbranch_scc1 {'k0_fin' if prof else end}")
    k("v_lshlrev_b32 v8, 2, v2")
    for i in range(4): k(f"ds_read_b32 v{16+i}, v8 offset:{256*i}")
    k(f"s_mul_i32 s3, s25, {3072*4}\ns_lshl_b32 s27, s26, 8\ns_add_u32 s3, s3, s27")
    k("s_waitcnt lgkmcnt(0)")
    k("v_add_f32 v16, v16, v17\nv_add_f32 v18, v18, v19\nv_add_f32 v16, v16, v18")
    k(f"buffer_store_dword v16, v8, s[20:23], s3 offen {OPT.stm}")
    k.dbg_mark(2, 62, 63)
    k("s_branch k0_fin" if prof else "s_endpgm")
    k("k0_pf:")
    k("s_bfe_u32 s38, s2, 0x30003\ns_lshl_b32 s38, s38, 2\ns_and_b32 s37, s24, 3\ns_add_u32 s37, s37, s38")
    k("s_waitcnt lgkmcnt(0)")
    k("s_cmp_ge_u32 s37, 10\ns_cbranch_scc1 k0_pfw")
    k.code_pf("k1_attn_kernel", "code_end_marker", 4, 40, 37)
    k("s_branch k0_fin" if prof else "s_endpgm")
    k("k0_pfw:")
    k.srd(32, 28, 512*8192 if OPT.wqpf else 0)
    k("v_lshrrev_b32 v4, 4, v2\nv_lshlrev_b32 v4, 13, v4\nv_bfe_u32 v5, v2, 1, 3\nv_lshl_add_u32 v4, v5, 10, v4\nv_and_b32 v5, 1, v2\nv_lshl_add_u32 v4, v5, 7, v4")
    k("s_sub_u32 s37, s37, 10\ns_lshl_b32 s37, s37, 15\ns_and_b32 s38, s2, 3\ns_lshl_b32 s38, s38, 8\ns_add_u32 s37, s37, s38")
    k("buffer_load_dword v6, v4, s[32:35], s37 offen nt")
    k("k0_fin:")
    if prof:
        k.stamp(1); k("s_waitcnt vmcnt(0)"); k.stamp(2)
        k("v_and_b32 v0, 0xff, v0\ns_cmp_lt_u32 s24, 2\ns_cbranch_scc1 k0_dump\ns_cmp_eq_u32 s24, 4\ns_cbranch_scc0 k0_end\nv_add_u32 v0, 128, v0")
        k("k0_dump:")
        k.dump_stamps(3, 6, 56)
    k(f"{end}:")
    k("s_endpgm")
    return k

def mod_loads(k, srd, voff, st, R, base, tag=None, fl=''):
    for i in range(4):
        if isinstance(base, int): k(f"s_mov_b32 s{st+i}, {base + i*12288}")
        else: k(f"s_add_u32 s{st+i}, {base}, {i*12288}")
        t = f"buffer_load_dwordx4 {vr(R+4*i,4)}, v{voff}, {sr(srd,4)}, s{st+i} offen {fl}"
        k.vmop(t, tag) if tag else k(t)

def mod_finish(k, R, s_add, mul=None):
    for h in range(2):
        k(f"v_pk_add_f32 {vr(R+2*h,2)}, {vr(R+2*h,2)}, {vr(R+4+2*h,2)}\nv_pk_add_f32 {vr(R+8+2*h,2)}, {vr(R+8+2*h,2)}, {vr(R+12+2*h,2)}")
    for h in range(2): k(f"v_pk_add_f32 {vr(R+2*h,2)}, {vr(R+2*h,2)}, {vr(R+8+2*h,2)}")
    for rep in range(2):
        for h in range(2): k(f"v_cvt_pk_bf16_f32 v{R+4+h}, v{R+2*h}, v{R+2*h+1}")
        for h in range(2): k(f"v_lshlrev_b32 v{R+2*h}, 16, v{R+4+h}\nv_and_b32 v{R+2*h+1}, 0xffff0000, v{R+4+h}")
        if rep == 0:
            for i in range(4): k(f"v_add_f32 v{R+i}, s{s_add}, v{R+i}")
    if mul is not None:
        for i in range(4): k(f"v_mul_f32 v{R+i}, {hexf(mul)}, v{R+i}")
```

```python
from common import *
from sched import fill, L, V, W, front, emit, It, merge
from k0 import mod_loads, mod_finish, C1
import k1t, k1p

MF = "v_mfma_f32_16x16x32_bf16"

SLOT = 16384
KB = 0
VB = 65536
PARB = 9*SLOT
FLAGB = PARB + 4096
WSLOT = [1, 4, 2, 5, 3, 6, 7, 8]

def O(db, qb): return (db*4+qb)*4
def LA(qb): return 128 + qb*4
def KF(i): return 144 + i*4
def VF(i): return 176 + i*4
ONES = 240
def Q(qb, s): return 128 + (qb*4+s)*4
def S(buf, kb, qb): return 64 + buf*32 + (kb*4+qb)*4
def P(buf, qb): return (32 + buf*16 if buf < 2 else 208 + (buf-2)*16) + qb*4
def MN(qb): return 192 + qb*4
V_KA = 8
V_VA = 12
V_DK = 20
V_DV = 24
V_L16 = 26
V_LS = 28
V_PF = 2
V_T = 208
def XR(slot, qb): return 128 + ((slot%4)*4+qb)*4
def QA(t, qb): return vr(192 + (qb*8+t)*4, 4) if qb < 2 else ar(((qb-2)*8+t)*4, 4)
def HK(b): return (lambda i: 64 + b*32 + i*4)
def HF(buf, qb): return 32 + (buf*4+qb)*4
def PAR(buf): return 64 + buf*16
V_PT = 96
V_WA = 112
V_DW = 124
V_PA = 125
def WF(buf, t): return 128 + (buf*8+t)*4
S_K, S_V, S_W, S_X, S_M, S_O = 8, 12, 16, 20, 24, 28
S_W4 = 32
S_KOFF, S_VOFF = 33, 34
S_CNT = 35
S_T0 = 36
S_RERUN = 44
S_WAVE = 45
S_W1 = 62

def emit_phase(k, mf, gaps):
    for f in gaps.get(-1, []): f(k) if callable(f) else k(f)
    for i, m in enumerate(mf):
        k(m)
        for f in gaps.get(i, []): f(k) if callable(f) else k(f)
    for g in gaps:
        assert g < len(mf), (g, len(mf))

def add(gaps, g, *items):
    gaps.setdefault(g, []).extend(items)

def qk_mfmas(buf, kf=KF, czero=False):
    r = []
    order = {0: [(kb,s,qb) for kb in range(2) for s in range(4) for qb in range(4)],
             1: [(kb,s,qb) for kb in range(2) for qb in range(4) for s in range(4)],
             2: [(kb,s,qb) for qb in range(4) for s in range(4) for kb in range(2)],
             4: [(kb,s if qb%2==0 else 3-s,qb) for kb in range(2) for qb in range(4) for s in range(4)],
             5: [(kb,s if kb%2==0 else 3-s,qb) for qb in range(4) for kb in range(2) for s in range(4)],
             3: [(kb,s,qb if s%2==0 else 3-qb) for kb in range(2) for s in range(4) for qb in range(4)]}[OPT.qko]
    seen = set()
    for kb, s, qb in order:
            if True:
                d = vr(S(buf, kb, qb), 4)
                started = (kb, qb) in seen; seen.add((kb, qb))
                c = d if started else ("0" if czero else vr(MN(qb), 4))
                r.append(f"{MF} {d}, {ar(kf(kb*4+s),4)}, {vr(Q(qb,s),4)}, {c}")
    return r

def pv_mfmas(buf, sumq, vf=VF, czero=False):
    r = []
    for qb in sumq:
        d = ar(LA(qb), 4)
        r.append(f"{MF} {d}, {ar(ONES,4)}, {vr(P(buf,qb),4)}, {'0' if czero else d}")
    order = {0: [(db,qb) for db in range(8) for qb in range(4)],
             1: [(db,qb) for qb in range(4) for db in range(8)],
             3: [(db if qb%2==0 else 7-db,qb) for qb in range(4) for db in range(8)],
             2: [(db,qb if db%2==0 else 3-qb) for db in range(8) for qb in range(4)]}[OPT.pvo]
    for db, qb in order:
        if True:
            d = ar(O(db, qb), 4)
            r.append(f"{MF} {d}, {ar(vf(db),4)}, {vr(P(buf,qb),4)}, {'0' if czero else d}")
    return r

def exps(buf, qbs):
    r = []
    for qb in qbs:
        for kb in range(2):
            for i in range(4):
                x = S(buf, kb, qb) + i
                r.append(f"v_exp_f32{OPT.e64} v{x}, v{x}")
    return r
def cvts(buf, qbs, pb=None):
    pb = buf if pb is None else pb
    r = []
    for qb in qbs:
        for kb in range(2):
            for h in range(2):
                x = S(buf, kb, qb) + 2*h
                r.append(f"v_cvt_pk_bf16_f32 v{P(pb,qb)+kb*2+h}, v{x}, v{x+1}" if not OPT.trunc else f"v_perm_b32 v{P(pb,qb)+kb*2+h}, v{x+1}, v{x}, s53")
    return r
def adds(buf, qbs, addq):
    r = []
    for qb in qbs:
        for kb in range(2):
            for i in range(4):
                x = S(buf, kb, qb) + i
                r.append(f"v_add_f32{OPT.a64} v{V_LS+qb}, v{x}, v{V_LS+qb}" if qb in addq else None)
    return r
def kreads(slot, blk, kf=KF):
    r = []
    for kb in range(2):
        for s in range(4):
            r.append(f"ds_read_b128 {ar(kf(kb*4+s),4)}, v{V_KA+s} offset:{KB+slot*SLOT+blk*8192+kb*4096}")
    return r
def vreads(slot, blk, vf=VF):
    r = []
    for db in range(8):
        for h in range(2):
            r.append(f"ds_read_b64_tr_b16 {ar(vf(db)+2*h,2)}, v{V_VA+db} offset:{slot*SLOT+blk*8192+h*4096}")
    return r
def dma_k(p): return f"buffer_load_dwordx4 v{V_DK+p}, {sr(S_K,4)}, s{S_KOFF} offen offset:{p*1024} {OPT.kvnt} lds"
def dma_v(p): return f"buffer_load_dwordx4 v{V_DV+(p&1)}, {sr(S_V,4)}, s{S_VOFF} offen offset:{p*1024} {OPT.kvnt} lds"

class Cfg:
    la = 4
    wb4 = 0
    nvm = 8
    npk = 10
    ne1 = 33
    nv1 = 11
    v19 = 1
    wb = 0
    pfo = 2
    pfc = (5, 2, 9)
    ppf = 0
    wocnt = 1
    bar2 = 0
    kvspread = 1
    w1pf = 0
    fine = 0
    kvper = 7
    x = 0
    pf = 2
    sumq = [1, 3]
    def addq(self): return [q for q in range(4) if q not in self.sumq]

def pv2_mfmas(pb, sumq, czero=False, order=None):
    r = []
    n = 0
    def pair(d, a0, a1, qb):
        nonlocal n
        js = (0, 1) if n % 2 == 0 else (1, 0); n += 1
        for i, j in enumerate(js):
            r.append(f"{MF} {d}, {ar(a1 if j else a0,4)}, {vr(P(pb+j,qb),4)}, {'0' if (czero and i == 0) else d}")
    for qb in sumq: pair(ar(LA(qb), 4), ONES, ONES, qb)
    for db in range(8):
        for q in range(4):
            qb = q if db % 2 == 0 else 3 - q
            pair(ar(O(db, qb), 4), VF(db), VF(8+db), qb)
    return r

def sm_stream(cfg, u):
    qs = range(4)
    E = exps(u & 1, qs); C = cvts(u & 1, qs, u & 3); A = adds(u & 1, qs, cfg.addq())
    r = []
    for i, e in enumerate(E):
        f = [A[i]] if A[i] else []
        if i % 2 == 1: f.append(C[i//2])
        r.append((e, f))
    return r

def vreads2(slot):
    r = []
    for db in range(8):
        for blk in range(2):
            for h in range(2):
                r.append((db, L(f"ds_read_b64_tr_b16 {ar(VF(8*blk+db)+2*h,2)}, v{V_VA+db} offset:{slot*SLOT+blk*8192+h*4096}", "V")))
    return r

def pack(k, mf, fixed, stream, lds, vm, deadlines=(), keep=False):
    n = len(mf)
    stream = list(stream); lds = list(lds); vm = list(vm)
    ready = []
    k.run(fixed.get(-1, []))
    ne = len(stream); ie = 0
    lastvm = -9; vm0 = list(vm)
    for g in range(n):
        k(mf[g]); k.run(fixed.get(g, []))
        left = 2
        if OPT.barfree and any(isinstance(x, str) and "s_barrier" in x for x in fixed.get(g, [])): left = 2 - OPT.barfree
        want_e = ie < ne and g < n-1 and (g % 2 == 0 or (ne - ie) > (n - g)//2)
        if g % 2 == 1 or not want_e:
            if vm and vm[0][0] <= g and g - lastvm >= (OPT.vsp if len(vm0) <= 8 else 4) and not (lds and lds[0][0] <= g and lds[0][2:] == ('urgent',)):
                k.run(vm.pop(0)[1]); left -= 2; lastvm = g
            else:
                c = [x for x in lds if x[0] <= g]
                c.sort(key=lambda x: 0 if len(x) > 2 else 1)
                if c:
                    lds.remove(c[0]); k.run([c[0][1]]); left -= 1
                    rem = len([y for y in range(g+1, n) if y % 2 == 1]) - 3
                    if len(c) > 1 and len(lds) + len(vm) > rem:
                        lds.remove(c[1]); k.run([c[1][1]]); left -= 1
        if want_e:
            e, f = stream[ie]; k(e); left -= 2
            ready += [(g, ie, x) for x in f]; ie += 1
        must = [x for x in ready if any(x[1] < idx and g + 1 >= dl for idx, dl in deadlines)]
        while ready and ready[0][0] < g and (left > 0 or ready[0] in must or len(ready) > OPT.bk or g == n-1):
            k(ready.pop(0)[2]); left -= 1
    assert ie == ne and not vm and not ready and (keep or not lds), (ie, ne, len(lds), len(vm), ready)
    return lds

R1 = 16

def iteration(k, cfg, t4, part="all", czero=False, pf=(), post=(), label=None, extra=()):
    ks = t4; vs = (t4 - 1) % 4; u = 2*t4
    k.c(f"---- iteration T%4={t4} {part} ----")
    ns = 2*len(cfg.sumq)
    pv = pv2_mfmas((u - 4) & 3, cfg.sumq, czero); npv = len(pv)
    st = sm_stream(cfg, u - 2)[32-R1:] + sm_stream(cfg, u - 1) + sm_stream(cfg, u)[:32-R1]
    dmas = [[f"s_add_u32 m0, s{S_W4}, {KB + ((t4+3)%4)*SLOT}\ns_nop 0" if p == 0 else "", dma_k(p)] for p in range(4)]
    dmas += [[f"s_add_u32 m0, s{S_W4}, {VB + ((t4+2)%4)*SLOT}\ns_add_u32 s{S_KOFF}, s{S_KOFF}, {SLOT}" if p == 0 else "", dma_v(p)] for p in range(4)]
    dmas[-1].append(f"s_add_u32 s{S_VOFF}, s{S_VOFF}, {SLOT}")
    ka = [L(x, "KA") for x in kreads(ks, 0)]; kb = kreads(ks, 1)
    vr_ = vreads2(vs)
    NE1 = cfg.ne1
    NV1 = cfg.nv1
    nvm = 16 if not (cfg.pf and cfg.pfo and cfg.v19) else (18 if part == "pv" else 19)
    bar = {ns-1: [f"s_waitcnt vmcnt({nvm}) lgkmcnt(0)\ns_barrier"]}
    if part == "tail":
        k.lg = []
        if OPT.fa and (OPT.na0 or OPT.na1): bar = {ns-1: ["s_waitcnt vmcnt(0) lgkmcnt(0)\ns_barrier"]}
        return pack(k, pv, bar, st[:R1+32], [(ns + 8*db + 7, x) for db, x in vr_], [(ns, x) for x in extra], keep=True)
    if part in ("all", "pv"):
        k.lg = []
        lds = [(ns, x) for x in ka] + [(ns + 8*db + 7, x) for db, x in vr_[:NV1]]
        pack(k, pv, bar, st[:NE1], lds, [(ns + OPT.v0, d) for d in dmas])
    if label: k(f"{label}:")
    if part in ("all", "first"):
        vm = [(40, [pf[1]])] if pf else []
        fixed = {-1: [W(lg="KA")], 30: [W(lg="KB0")], 46: [W(lg="KB1")]}
        if pf: fixed[38] = [pf[0]]
        if part == "first":
            NE1 = R1; NV1 = 0; k.lg = []
            fixed[-1] = ["s_waitcnt lgkmcnt(0)"]
            vm = [(2, [kv_setup(wh, t), dma_k(p) if wh == 'K' else dma_v(p)]) for wh, t in (('V',2),('K',4),('V',3)) for p in range(4)]
            if cfg.v19:
                dummy = f"s_mov_b32 s6, 0x80000\nbuffer_load_dword v{V_PF+3}, v{V_PF}, {sr(S_O,4)}, s6 offen"
                vm[3][1].append(dummy); vm[11][1].append(dummy)
            post = [f"s_mov_b32 s{S_KOFF}, {5*SLOT}\ns_mov_b32 s{S_VOFF}, {4*SLOT}"]
        lds = [(0, x) for db, x in vr_[NV1:]] + [(15, L(x, "KB0"), 'urgent') for x in kb[:4]] + [(31, L(x, "KB1"), 'urgent') for x in kb[4:]]
        pack(k, qk_mfmas(0) + qk_mfmas(1), fixed, st[NE1:], lds, vm, deadlines=[(R1 + 32 - NE1, 40)])
    for f in post: k(f)

def kv_setup(which, tile):
    if which == 'K': return f"s_add_u32 m0, s{S_W4}, {KB + (tile%4)*SLOT}\ns_mov_b32 s{S_KOFF}, {tile*SLOT}"
    return f"s_add_u32 m0, s{S_W4}, {VB + (tile%4)*SLOT}\ns_mov_b32 s{S_VOFF}, {tile*SLOT}"
def kv_group(which, tile):
    return [[kv_setup(which, tile), V(dma_k(p) if which == 'K' else dma_v(p), f"{which}{tile}")] for p in range(4)]

def rowmax_cross(k, regs, tmp):
    for sw in ("v_permlane32_swap_b32", "v_permlane16_swap_b32"):
        for i, r in enumerate(regs): k(f"v_mov_b32 v{tmp+i}, v{r}")
        k("s_nop 1")
        for i, r in enumerate(regs): k(f"{sw} v{tmp+i}, v{r}")
        k("s_nop 1")
        for i, r in enumerate(regs): k(f"v_max_f32 v{r}, v{r}, v{tmp+i}")

def gen_k1(cfg=None, prof=False):
    cfg = cfg or Cfg()
    k = Kern(NAME + "_kernel" if OPT.mk0 else "k1_attn_kernel", 256, 256, 160*1024, 512, 256, 102 if OPT.ff else (96 if prof else 64))
    k.prof = prof
    end = "k1_end"
    k(f"s_cmp_ge_u32 s2, 256\ns_cbranch_scc1 {end}")
    k.stamp(0)
    k.dbg_begin(1)
    k(f"s_load_dwordx2 s[52:53], s[0:1], {KA_WQ}")
    k(f"s_load_dwordx2 s[54:55], s[0:1], {KA_WS}")
    def more_ptrs():
        k(f"s_load_dwordx4 s[48:51], s[0:1], {KA_K}")
        k(f"s_load_dwordx2 s[46:47], s[0:1], {KA_WO}")
        k(f"s_load_dwordx4 s[56:59], s[0:1], {KA_WG}")
        k(f"s_load_dwordx2 s[60:61], s[0:1], {KA_WD}")
        if OPT.ff: k(f"s_load_dwordx2 s[98:99], s[0:1], {KA_OUT}")
        if OPT.mk0: k(f"s_load_dwordx4 s[{'64:67' if not prof else '92:95'}], s[0:1], {KA_C}")
        if OPT.mk0 and OPT.dflag: k(f"s_load_dwordx2 s[100:101], s[0:1], {KA_DBG}")
        k(f"s_load_dwordx2 s[0:1], s[0:1], {KA_X}")
    if OPT.mk0 or not OPT.lateptr: more_ptrs()
    k("v_lshrrev_b32 v1, 6, v0")
    k("v_and_b32 v2, 63, v0")
    k(f"v_readfirstlane_b32 s{S_WAVE}, v1")
    m = OPT.map4
    k(f"s_and_b32 s4, s2, {(8>>m)-1}\ns_bfe_u32 s5, s2, {((2+m)<<16)|3}\ns_lshl_b32 s5, s5, {3-m}\ns_add_u32 s4, s4, s5")
    k(f"s_bfe_u32 s5, s2, {(m<<16)|(3-m)}\ns_lshl_b32 s5, s5, {3-m}\ns_lshr_b32 s6, s2, {5+m}\ns_add_u32 s5, s5, s6")
    k(f"s_lshl_b32 s{S_W4}, s{S_WAVE}, 12")
    k(f"s_mov_b32 s{S_RERUN}, 0")
    k("v_lshrrev_b32 v3, 4, v2")
    k("v_and_b32 v4, 15, v2")
    k("v_lshrrev_b32 v5, 2, v4")
    k("v_and_b32 v6, 3, v2")
    k(f"v_lshlrev_b32 v{V_L16}, 4, v2")
    k("v_lshlrev_b32 v7, 2, v3\nv_xor_b32 v7, v7, v4\nv_lshlrev_b32 v7, 4, v7")
    k(f"v_lshl_add_u32 v{V_DW}, v1, 2, v3\nv_lshl_add_u32 v{V_DW}, v{V_DW}, 13, v7")
    k(f"s_lshl_b32 s{S_W1}, s{S_WAVE}, 10")
    if OPT.mk0: k1p.pre_wait(k)
    k("s_waitcnt lgkmcnt(0)")
    if OPT.lateptr and not OPT.mk0: more_ptrs()
    k("s_lshl_b32 s6, s4, 8")
    k(f"s_add_u32 s{S_W}, s52, s6\ns_addc_u32 s{S_W+1}, s53, 0\ns_sub_u32 s{S_W+2}, {512*8192}, s6\ns_mov_b32 s{S_W+3}, 0x20000")
    k.srd(S_M, 54, 4*12288, WS_MODP)
    k(f"s_lshl_b32 s6, s5, 2\ns_add_u32 s6, s6, s{S_WAVE}\ns_lshl_b32 s7, s6, 16")
    k(f"s_add_u32 s7, s7, 0x{WS_XH:x}")
    k(f"s_add_u32 s{S_X}, s54, s7\ns_addc_u32 s{S_X+1}, s55, 0\ns_mov_b32 s{S_X+2}, 0x10000\ns_mov_b32 s{S_X+3}, 0x20000")
    def w_step(j, st0=S_T0):
        r = []
        for p in range(2):
            st = st0 + p
            r.append([f"s_add_u32 m0, s{S_W1}, {WSLOT[j>>1]*SLOT + (j&1)*8192 + p*4096}\ns_mov_b32 s{st}, {(j*32 + p*16)*8192}",
                      lambda kk, st=st: kk.vmop(f"buffer_load_dwordx4 v{V_DW}, {sr(S_W,4)}, s{st} offen {OPT.wqnt} lds", f"W{j}")])
        return r
    def x_loads(j):
        r = []
        for qb in range(4):
            st = S_T0 + 4 + qb
            r.append([f"s_mov_b32 s{st}, {qb*16384 + (j>>2)*4096}",
                      lambda kk, qb=qb, st=st: kk.vmop(f"buffer_load_dwordx4 {vr(XR(j,qb),4)}, v{V_L16}, {sr(S_X,4)}, s{st} offen offset:{(j&3)*1024} {'sc1' if OPT.mk0 else ''}", f"X{j}" if j else f"X0_{qb}")])
        return r
    def run(items):
        for f in items:
            if isinstance(f, list): run(f)
            else: f(k) if callable(f) else k(f)
    LA_ = cfg.la
    def rem_srds():
        k("s_lshl_b32 s6, s4, 19")
        k(f"s_add_u32 s{S_K}, s48, s6\ns_addc_u32 s{S_K+1}, s49, 0\ns_mov_b32 s{S_K+2}, 0x80000\ns_mov_b32 s{S_K+3}, 0x20000")
        k(f"s_add_u32 s{S_V}, s50, s6\ns_addc_u32 s{S_V+1}, s51, 0\ns_mov_b32 s{S_V+2}, 0x80000\ns_mov_b32 s{S_V+3}, 0x20000")
        k(f"s_lshl_b32 s6, s5, 2\ns_add_u32 s6, s6, s{S_WAVE}\ns_lshl_b32 s6, s6, 19\ns_lshl_b32 s7, s4, 12\ns_add_u32 s6, s6, s7")
        k(f"s_add_u32 s6, s6, 0x{WS_OF:x}")
        k(f"s_add_u32 s{S_O}, s54, s6\ns_addc_u32 s{S_O+1}, s55, 0\ns_mov_b32 s{S_O+2}, {3*131072+4096}\ns_mov_b32 s{S_O+3}, 0x20000")
    def addr_setup():
        k("v_lshl_add_u32 v7, v3, 3, v5\nv_lshlrev_b32 v7, 8, v7\nv_lshl_add_u32 v7, v6, 4, v7")
        for s in range(4):
            k(f"v_xor_b32 v27, {s}, v5\nv_lshl_add_u32 v{V_WA+s}, v27, 6, v7")
            k(f"v_add_u32 v{V_WA+4+s}, 0x10000, v{V_WA+s}\nv_add_u32 v{V_WA+8+s}, 0x20000, v{V_WA+s}")
        k(f"v_lshlrev_b32 v{V_PA}, 5, v3\nv_add_u32 v{V_PA}, {PARB}, v{V_PA}")
        for s in range(4):
            k(f"v_or_b32 v27, {4*s}, v3\nv_xor_b32 v27, v27, v4\nv_lshlrev_b32 v27, 4, v27\nv_lshl_add_u32 v{V_KA+s}, v4, 8, v27")
        k("v_lshl_add_u32 v7, v3, 2, v5\nv_and_b32 v27, 7, v7\nv_lshlrev_b32 v7, 8, v7\nv_lshl_add_u32 v7, v6, 3, v7")
        k(f"v_add_u32 v7, {VB}, v7")
        for db in range(8):
            k(f"v_xor_b32 v30, {db}, v27\nv_lshl_add_u32 v{V_VA+db}, v30, 5, v7")
        k("v_lshlrev_b32 v7, 8, v3\nv_lshl_add_u32 v7, v1, 12, v7")
        for p in range(4):
            k(f"v_or_b32 v27, {4*p}, v3\nv_xor_b32 v27, v27, v4\nv_lshl_add_u32 v{V_DK+p}, v27, 4, v7")
        for p in range(2):
            k(f"v_or_b32 v27, {4*p}, v3\nv_lshlrev_b32 v27, 1, v27\nv_xor_b32 v27, v27, v4\nv_lshl_add_u32 v{V_DV+p}, v27, 4, v7")
        k("v_mov_b32 v27, 0x3f803f80")
        for i in range(4): k(f"v_accvgpr_write_b32 a{ONES+i}, v27")
    k("v_lshlrev_b32 v31, 4, v0")
    wdone = 0
    if OPT.mk0:
        n0, n1, n2 = OPT.mw0, OPT.mw0 + OPT.mw1, OPT.mw0 + OPT.mw1 + OPT.mw2
        k1p.CP = 64 if not prof else 92
        sv = lambda a, b: [run(w_step(j, S_T0+6)) for j in range(a, b)]
        k1p.body(k, lambda: sv(0, n0), lambda: sv(n0, n1), lambda: (sv(n1, n2), addr_setup()))
        wdone = n2
        mod_loads(k, S_M, 31, S_T0, V_PT, 0, "M", "sc1")
        run(x_loads(0)); rem_srds()
    else:
        mod_loads(k, S_M, 31, S_T0, V_PT, 0, "M")
        run(w_step(0)); run(x_loads(0))
        addr_setup(); k("s_waitcnt lgkmcnt(0)"); rem_srds()
    w_step0 = w_step
    w_step = lambda j: w_step0(j) if j >= wdone else []
    def wreads(j):
        c = j >> 1; base = WSLOT[c]*SLOT; bank = base >> 16; off = (base & 0xffff) + (j & 1)*8192
        return [L(f"ds_read_b64_tr_b16 {ar(WF(j&1,t)+2*h,2)}, v{V_WA+4*bank+(t>>1)} offset:{off + h*1024 + 8*(t&1)}", f"R{j}_{t}")
                for t in range(8) for h in range(2)]
    def preads(j):
        b = PAR(j & 1)
        return [L(f"ds_read_b128 {vr(b+4*i,4)}, v{V_PA} offset:{j*128 + (i&1)*16 + (i>>1)*2048}", f"P{j}") for i in range(4)]
    def hcalc(j):
        b = PAR(j & 1); r = []
        for qb in range(4):
            t = V_PT + (qb & 1)*8
            for i in range(8):
                r.append(f"v_fma_mix_f32 v{t+i}, v{XR(j,qb)+(i>>1)}, v{b+8+i}, v{b+i} op_sel:[{i&1},0,0] op_sel_hi:[1,0,0]")
            for d in range(4):
                r.append(f"v_cvt_pk_bf16_f32 v{HF(j&1,qb)+d}, v{t+2*d}, v{t+2*d+1}")
        return r
    k(f"s_cmp_ge_u32 s{S_WAVE}, 2\ns_cselect_b32 s6, 1.0, 0\nv_add_u32 v31, {PARB}, v31")
    k.vmwait("M")
    mod_finish(k, V_PT, 6, C1)
    k(f"ds_write_b128 v31, {vr(V_PT,4)}")
    if OPT.modk1 and not OPT.ff:
        k("s_cmp_ge_u32 s2, 2\ns_cbranch_scc1 k1_nomod\nv_lshlrev_b32 v30, 4, v0\ns_add_u32 s7, s2, 1\ns_lshl_b32 s7, s7, 12")
        mod_loads(k, S_M, 30, S_T0, 192, "s7")
        k(f"s_lshl_b32 s6, s2, 1\ns_cmp_lt_u32 s{S_WAVE}, s6\ns_cselect_b32 s6, 1.0, 0\ns_sub_u32 s{S_M}, s{S_M}, {WS_MODP - WS_MOD}\ns_subb_u32 s{S_M+1}, s{S_M+1}, 0\ns_waitcnt vmcnt(0)")
        mod_finish(k, 192, 6)
        k(f"buffer_store_dwordx4 v[192:195], v30, {sr(S_M,4)}, s7 offen\ns_waitcnt vmcnt(0)")
        k("k1_nomod:")
    run(x_loads(1)); run(w_step(1))
    k.vmwait("W0", "lgkmcnt(0)"); k("s_barrier")
    run(preads(0)); run(preads(1)); run(wreads(0))
    assert LA_ == 4
    pend = [g for j in range(2, LA_) for g in x_loads(j) + w_step(j)]
    k.wait(lg="P0")
    k.stamp(1) if cfg.fine < 2 else k1t.st(k, 'q5')
    for i, v in enumerate(hcalc(0)):
        if i % 12 == 0: k.wait(vm=f"X0_{i//12}")
        if i % 6 == 0 and pend: run(pend.pop(0))
        k(v)
    kvplan = {12: kv_group('K', 0), 13: kv_group('K', 1), 14: kv_group('V', 0)}
    for j in range(15):
        k.c(f"qproj stage {j}")
        if cfg.fine == 1 and j in (0, 2, 4, 8, 12): k.stamp(2 + (0, 2, 4, 8, 12).index(j))
        mf = []
        for t in range(8):
            for q in range(4):
                qb = q if t % 2 == 0 else 3 - q
                d = QA(t, qb)
                mf.append(f"{MF} {d}, {ar(WF(j&1,t),4)}, {vr(HF(j&1,qb),4)}, {d if j else '0'}")
        lds = (preads(j+2) if j < 14 else []) + wreads(j+1)
        valu = hcalc(j+1)
        jj = j + LA_
        if jj >= 16: pend += kvplan[j]
        elif cfg.wb4:
            pend += x_loads(jj)
            if jj % cfg.wb4 == 0:
                for j2 in range(jj, min(16, jj + cfg.wb4)): pend += w_step(j2)
        else: pend += x_loads(jj) + w_step(jj)
        nvm = min(len(pend), cfg.nvm)
        vm = pend[:nvm]; pend = pend[nvm:]
        if cfg.x == 1: valu = valu[:16]
        gaps = fill(32, lds, valu, vm, g0=1, valu_end=31)
        add(gaps, -1, W(lg=f"R{j}_3"))
        front(gaps, 12, W(lg=f"R{j}_7"))
        if j < 2 or j % 2 == 1 or not cfg.bar2:
            tgt = j+1 if (j < 1 or not cfg.bar2) else j+2
            if cfg.wb4 and j + 1 >= 4:
                if (j + 1) % cfg.wb4 == 0:
                    front(gaps, 0, W(vm=f"X{j+1}"), W(vm=f"W{min(15, j + cfg.wb4)}", barrier=True))
                else: front(gaps, 0, W(vm=f"X{j+1}"))
            elif tgt < wdone: front(gaps, 0, W(vm=f"X{j+1}"))
            else: front(gaps, 0, W(vm=f"W{tgt}", barrier=True))
        else:
            front(gaps, 0, W(vm=f"X{j+1}"))
        emit(k, mf, gaps)
    assert not pend
    k.stamp(2) if not cfg.fine else (k.stamp(7) if cfg.fine == 1 else None)
    PF_F, PF_W = S_X, S_W
    pfsetup = [f"s_cmp_eq_u32 s{S_WAVE}, 1\ns_cselect_b64 s[{PF_F}:{PF_F+1}], s[58:59], s[56:57]",
        f"s_cmp_eq_u32 s{S_WAVE}, 2\ns_cselect_b64 s[{PF_F}:{PF_F+1}], s[60:61], s[{PF_F}:{PF_F+1}]",
        f"s_mul_i32 s6, s2, {43*128}\ns_add_u32 s{PF_F}, s{PF_F}, s6\ns_addc_u32 s{PF_F+1}, s{PF_F+1}, 0",
        f"s_lshl_b32 s6, s4, 17\ns_and_b32 s7, s5, 3\ns_lshl_b32 s7, s7, 15",
        f"s_add_u32 s6, s6, s7\ns_lshl_b32 s7, s{S_WAVE}, 13\ns_add_u32 s6, s6, s7",
        f"s_add_u32 s{PF_W}, s46, s6\ns_addc_u32 s{PF_W+1}, s47, 0\ns_mov_b32 s{PF_W+2}, 0x2000",
        f"s_cmp_eq_u32 s{S_WAVE}, 3\ns_cselect_b32 s{PF_F+2}, 0, {43*128}"]
    if OPT.xpf and OPT.ff:
        pfsetup += [f"s_lshl_b32 s6, s5, 1\ns_bfe_u32 s7, s2, 0x10005\ns_add_u32 s6, s6, s7",
            f"s_lshl_b32 s6, s6, 2\ns_and_b32 s7, s2, 3\ns_add_u32 s6, s6, s7",
            f"s_lshl_b32 s6, s6, 2\ns_bfe_u32 s7, s2, 0x20003\ns_add_u32 s6, s6, s7",
            f"s_lshl_b32 s6, s6, 2\ns_add_u32 s6, s6, s{S_WAVE}",
            f"s_lshl_b32 s6, s6, 11\ns_add_u32 s{S_M}, s0, s6\ns_addc_u32 s{S_M+1}, s1, 0\ns_mov_b32 s{S_M+2}, 2048"]
    elif OPT.xpf:
        pfsetup += [f"s_bfe_u32 s6, s2, 0x10002\ns_lshl_b32 s6, s6, 3\ns_bfe_u32 s7, s2, 0x30003",
            f"s_add_u32 s6, s6, s7\ns_lshl_b32 s6, s6, 2\ns_and_b32 s7, s2, 3",
            f"s_add_u32 s6, s6, s7\ns_lshl_b32 s6, s6, 2\ns_lshr_b32 s7, s2, 6",
            f"s_add_u32 s6, s6, s7\ns_lshl_b32 s6, s6, 2\ns_add_u32 s6, s6, s{S_WAVE}",
            f"s_lshl_b32 s6, s6, 11\ns_add_u32 s{S_M}, s0, s6\ns_addc_u32 s{S_M+1}, s1, 0\ns_mov_b32 s{S_M+2}, 2048"]
    xcc_pub = []
    if OPT.loc:
        def pub(k):
            k.srd(36, 54, 32768, WS_FLAG)
            k(f"s_and_b32 s6, s2, 7\ns_lshl_b32 s6, s6, 2\ns_lshr_b32 s7, s2, 6\ns_add_u32 s6, s6, s7\ns_lshl_b32 s63, s6, 10\ns_bfe_u32 s7, s2, 0x30003")
            k(f"s_getreg_b32 s97, hwreg(HW_REG_XCC_ID, 0, 4)\ns_add_u32 s97, s97, 1\ns_lshl_b32 s6, s7, 2\ns_lshl_b32 s7, s7, 7")
            k(f"v_lshlrev_b32 v3, 3, v{V_L16}\nv_add_u32 v3, s6, v3\nv_mov_b32 v4, s97\nv_bfe_u32 v27, v{V_L16}, 4, 3\nv_lshlrev_b32 v27, 2, v27\nv_add_u32 v27, s7, v27")
            k(f"s_cmp_eq_u32 s{S_WAVE}, 1\ns_cbranch_scc0 k1_nx\ns_mov_b64 exec, 0xff")
            k(f"buffer_store_dword v4, v3, s[36:39], s63 offen offset:64 sc1\ns_mov_b64 exec, -1")
            k("k1_nx:")
        xcc_pub = [pub]
    V0, VD = V_PF, V_PF+3
    pfv = [f"v_lshrrev_b32 v{VD}, 8, v{V_L16}", f"v_lshlrev_b32 v{VD}, 24, v{VD}", f"v_lshl_add_u32 v{V0}, v{V_L16}, 3, v{VD}"]
    cf, cw, co = cfg.pfc
    def site(srd, c0, sh, off, fl):
        return [f"s_sub_u32 s6, s{S_CNT}, {c0}\ns_min_u32 s6, s6, 4\ns_lshl_b32 s6, s6, {sh}", f"buffer_load_dword v{VD}, v{V0}, {sr(srd,4)}, s6 offen offset:{off} {fl}"]
    pfs = [site(PF_F, cf, 11, 0, ""), site(S_M, OPT.xpf, 11, 0, "") if OPT.xpf else site(S_O, co, 17, 0, OPT.opf), site(PF_W, cw, 11, 0, OPT.wpf), site(S_O, co, 17, 2048, OPT.opf)]
    if OPT.l2w:
        P1, P2 = PF_F, 48
        pfsetup = pfsetup[3:6] + pfsetup[7:] + [
            f"s_lshr_b32 s6, s2, 3\ns_lshl_b32 s6, s6, 2\ns_add_u32 s{S_T0}, s6, s{S_WAVE}",
            f"s_cmp_lt_u32 s{S_T0}, 64\ns_cselect_b64 s[{P1}:{P1+1}], s[56:57], s[58:59]",
            f"s_and_b32 s6, s{S_T0}, 63\ns_mul_i32 s6, s6, {8*2752}\ns_and_b32 s7, s2, 3",
            f"s_mul_i32 s7, s7, 768\ns_add_u32 s6, s6, s7\ns_sub_u32 s7, {512*2752}, s6",
            f"s_add_u32 s{P1}, s{P1}, s6\ns_addc_u32 s{P1+1}, s{P1+1}, 0\ns_min_u32 s{P1+2}, s7, {8*2752}",
            f"s_mul_i32 s6, s{S_T0}, {11*1024}\ns_and_b32 s7, s2, 1\ns_lshl_b32 s7, s7, 9",
            f"s_add_u32 s6, s6, s7\ns_min_u32 s6, s6, {1376*1024}\ns_sub_u32 s7, {1376*1024}, s6",
            f"s_add_u32 s{P2}, s60, s6\ns_addc_u32 s{P2+1}, s61, 0\ns_min_u32 s{P2+2}, s7, {11*1024}\ns_mov_b32 s{P2+3}, 0x20000"]
        pfv += [f"v_and_b32 v6, 0x380, v{V0}", "v_min_u32 v6, 764, v6", f"v_bfe_u32 v3, v{V_L16}, 7, 1", "v_mul_u32_u24 v3, 2752, v3", f"v_add3_u32 v3, v3, v6, v{VD}",
                f"v_bfe_u32 v4, v{V_L16}, 6, 2", f"v_and_b32 v6, 0x180, v{V0}", "v_lshl_add_u32 v4, v4, 10, v6", f"v_add_u32 v4, v4, v{VD}"]
        pfs[0] = [f"s_sub_u32 s6, s{S_CNT}, {OPT.l2w}\ns_min_u32 s6, s6, 4\ns_mul_i32 s6, s6, {2*2752}", f"buffer_load_dword v6, v3, {sr(P1,4)}, s6 offen"]
        pfs[3] = [f"s_sub_u32 s6, s{S_CNT}, {OPT.l2d}\ns_min_u32 s6, s6, 3\ns_lshl_b32 s6, s6, 12", f"buffer_load_dword v6, v4, {sr(P2,4)}, s6 offen"]
    if OPT.loc or OPT.opt32:
        pfv += [f"v_lshrrev_b32 v{VD}, 9, v{V_L16}", f"v_lshlrev_b32 v{VD}, 24, v{VD}", f"v_lshl_add_u32 v7, v{V_L16}, 3, v{VD}"]
        si = OPT.lsite
        xs = pfs[si]
        pfs[si] = site(S_O, OPT.lpo, 17, 0, OPT.opf); pfs[si][1] = pfs[si][1].replace(f"v{V0},", "v7,")
    loopinit = f"s_mov_b32 s{S_CNT}, 8"
    k.c("merged head")
    if OPT.trunc: k("s_mov_b32 s53, 0x07060302")
    k.run(xcc_pub)
    k.wait(lg='all')
    def qk_q(buf, qb, czero):
        r = []
        for kb in range(2):
            for i in range(4):
                s_ = i if kb == 0 else 3 - i
                d = vr(S(buf, kb, qb), 4)
                c = d if i else ("0" if czero else vr(MN(qb), 4))
                nd = {f"Q{qb}": 2, f"KR{buf}": 0}
                if not czero: nd[f"MN{qb}"] = 2
                r.append(It(f"{MF} {d}, {ar(HK(buf)(kb*4+s_),4)}, {vr(Q(qb,s_),4)}, {c}", needs=nd, gives=f"S{buf}_{qb}"))
        return r
    mq = []
    for qb in range(4):
        for t in range(8):
            d = QA(t, qb)
            mq.append(It(f"{MF} {d}, {ar(WF(1,t),4)}, {vr(HF(1,qb),4)}, {d}", gives=f"A{t}_{qb}"))
    mq += qk_q(0,0,True) + qk_q(0,1,True) + qk_q(0,2,True) + qk_q(1,0,False) + qk_q(1,1,False) + qk_q(0,3,True) + qk_q(1,2,False) + qk_q(1,3,False)
    def conv(qb):
        r = []
        for s_ in range(4):
            for h in range(2):
                t = 2*s_ + h; nd = {f"A{t}_{qb}": 8}
                if qb < 2: a = 192 + (qb*8+t)*4
                else:
                    a = 224 + (t & 3)*4
                    for i in range(4): r.append(It(f"v_accvgpr_read_b32 v{a+i}, a{((qb-2)*8+t)*4+i}", needs=nd))
                for d in range(2): r.append(It(f"v_cvt_pk_bf16_f32 v{Q(qb,s_)+2*h+d}, v{a+2*d}, v{a+2*d+1}", needs=nd, gives=f"Q{qb}x"))
        r[-1].gives = f"Q{qb}"
        return r
    def rmax(qs):
        r = []
        for qb in qs:
            a = S(0, 0, qb); b = S(0, 1, qb); t = V_T + qb; nd = {f"S0_{qb}e": 8}
            r += [It(f"v_max3_f32 v{t}, v{a}, v{a+1}, v{a+2}", needs=nd), It(f"v_max3_f32 v{t+4}, v{b}, v{b+1}, v{b+2}"),
                  It(f"v_max3_f32 v{t}, v{t}, v{a+3}, v{b+3}"), It(f"v_max_f32 v{t}, v{t}, v{t+4}")]
        for n_, sw in enumerate(("v_permlane32_swap_b32", "v_permlane16_swap_b32")):
            for qb in qs: r.append(It(f"v_mov_b32 v{V_T+4+qb}, v{V_T+qb}", gives=f"mv{n_}_{qb}"))
            for qb in qs: r.append(It(f"{sw} v{V_T+4+qb}, v{V_T+qb}", cost=2, needs={f"mv{n_}_{qb}": 2}, gives=f"sw{n_}_{qb}"))
            for qb in qs: r.append(It(f"v_max_f32 v{V_T+qb}, v{V_T+qb}, v{V_T+4+qb}", needs={f"sw{n_}_{qb}": 1}))
        for qb in qs:
            for i in range(4): r.append(It(f"v_sub_f32 v{MN(qb)+i}, 0, v{V_T+qb}", gives=f"MN{qb}" if i == 3 else None))
        return r
    def sm0(qs, sub=True):
        r = []
        E = exps(0, qs); C = cvts(0, qs); A = adds(0, qs, cfg.addq())
        regs = [S(0, kb, qb) + i for qb in qs for kb in range(2) for i in range(4)]
        qof = [qb for qb in qs for _ in range(8)]
        n_ = len(E)
        for i in range(n_ + 2):
            if sub and i < n_: r.append(It(f"v_add_f32 v{regs[i]}, v{regs[i]}, v{MN(qof[i])}"))
            if 1 <= i <= n_: r.append(It(E[i-1], cost=2, gives=f"e{qs[0]}_{i-1}"))
            if i >= 2:
                if A[i-2]: r.append(It(A[i-2], needs={f"e{qs[0]}_{i-2}": 1}))
                if (i-2) % 2 == 1: r.append(It(C[(i-2)//2], needs={f"e{qs[0]}_{i-2}": 1}))
        return r
    last = {}
    for it in mq:
        if isinstance(it.gives, str) and it.gives.startswith("S"): last[it.gives] = it
    for g, it in last.items(): it.gives = g + "e"
    init = [It(f"v_mov_b32 v{V_LS+q}, 0") for q in range(4)] + [It(x) for x in pfv]
    vq = init + conv(0) + conv(1) + conv(2) + rmax([0, 1]) + conv(3) + sm0([0, 1]) + rmax([2, 3]) + sm0([2, 3])
    side = [It(W(vm="K0", barrier=True), cost=0, n=2)]
    for b in range(2):
        side += [It(L(x, f"HK{b}")) for x in kreads(0, b, HK(b))]
    side += [It(x, cost=0, n=3) for x in pfsetup]
    side += [It(W(lg="HK0"), cost=0, gives="KR0", needs={"A7_2": 0}), It(W(lg="HK1"), cost=0, gives="KR1")]
    G = lambda grp, nd=None: It(lambda kk, grp=grp: kk.run(grp), cost=2, n=3, needs=nd)
    side += [G(x) for x in kv_group('K', 2)] + [G(x, {"S0_2e": 0}) for x in kv_group('V', 1)]
    side += [It(W(vm="V0", barrier=True), cost=0, n=2, needs={"S0_3e": 0})]
    side += [It(x) for x in kreads(1, 0)] + [G(x) for x in kv_group('K', 3)] + [It(loopinit, cost=0, n=4)]
    merge(k, mq, vq, side)
    k("k1_first:")
    iteration(k, cfg, 1, "first")
    iteration(k, cfg, 2, "pv", czero=True)
    k.stamp(3) if not cfg.fine else None
    k("s_branch k1_pos2")
    k(".p2align 6")
    for _ in range(OPT.pad): k("s_nop 0")
    k("k1_loop:")
    iteration(k, cfg, 0, pf=pfs[0] if cfg.pf else ())
    iteration(k, cfg, 1, pf=pfs[1] if cfg.pf else ())
    iteration(k, cfg, 2, pf=pfs[2] if cfg.pf else (), label="k1_pos2")
    iteration(k, cfg, 3, pf=pfs[3] if cfg.pfo else (), post=[f"s_sub_u32 s{S_CNT}, s{S_CNT}, 1\ns_cmp_lg_u32 s{S_CNT}, 0\ns_cbranch_scc1 k1_loop"])
    k.stamp(4) if not cfg.fine else (k.stamp(1) if cfg.fine == 2 else None)
    if OPT.cpf2:
        k(f"s_cmp_ge_u32 s2, 16\ns_cbranch_scc1 k1_nocode\ns_lshr_b32 s6, s2, 3\ns_lshl_b32 s6, s6, 2\ns_add_u32 s6, s6, s{S_WAVE}")
        k.code_pf("k1_nocode", "code_end_marker", V_PF+1, S_M, 6)
        k("k1_nocode:")
    V_AW = 7
    AH = (lambda j: (j & 15) >> 1) if OPT.f2 else (lambda j: j >> 2)
    AS = (lambda j: (j >> 4)*2 + (j & 1)) if OPT.f2 else (lambda j: j & 3)
    def a_w(j):
        return [[f"s_add_u32 m0, s{S_W1}, {(j % OPT.anr)*8192 + p*4096}\n" + (f"s_xor_b32 s{S_T0+4+p}, s96, " if OPT.own else f"s_mov_b32 s{S_T0+4+p}, ") + f"{(AH(j)*512 + AS(j)*32 + p*16)*1024}",
                 V(f"buffer_load_dwordx4 v{V_AW}, {sr(S_M,4)}, s{S_T0+4+p} offen lds", f"AW{j}")] for p in range(2)]
    extra = []
    if OPT.fa:
        k(f"v_lshrrev_b32 v2, 8, v{V_L16}\nv_lshl_add_u32 v2, v1, 2, v2\nv_and_b32 v3, 7, v2\nv_lshlrev_b32 v3, 5, v3\nv_and_b32 v4, 0xf0, v{V_L16}")
        k(f"v_xor_b32 v3, v3, v4\nv_lshl_add_u32 v{V_AW}, v2, 10, v3")
        k(f"s_and_b32 s6, s2, 3\ns_lshl_b32 s6, s6, 17\ns_bfe_u32 s7, s2, 0x20003\ns_lshl_b32 s7, s7, 8\ns_add_u32 s6, s6, s7")
        k(f"s_add_u32 s{S_M}, s46, s6\ns_addc_u32 s{S_M+1}, s47, 0\ns_sub_u32 s{S_M+2}, {4096*1024}, s6\ns_mov_b32 s{S_M+3}, 0x20000")
        if OPT.own: k("s_bfe_u32 s96, s2, 0x30003\ns_lshl_b32 s96, s96, 19")
        k.vm = []
        if OPT.mearly:
            assert not OPT.mk0
            k.srd(48, 54, 4*12288, WS_MODP); k("v_lshlrev_b32 v6, 4, v0")
        if OPT.loc:
            k.srd(48, 54, 32768, WS_FLAG)
            k(f"buffer_load_dword v5, v27, s[48:51], s63 offen offset:64 sc1")
        if OPT.mk0:
            k.srd(48, 54, k1p.FA + 256*4096, WS_FLAG)
            k(f"s_lshl_b32 s6, s5, 5\ns_add_u32 s6, s6, s4\ns_lshl_b32 s6, s6, 12\ns_add_u32 s63, s6, {k1p.FA+3072}\nv_mov_b32 v27, 0")
        extra = [g for j in range(OPT.na0) for g in a_w(j)]
        if OPT.mk0: extra[0] = [V("buffer_load_dword v6, v27, s[48:51], s63 offen sc1", "WL")] + extra[0]
    ns = 2*len(cfg.sumq)
    LT = 240
    vq0 = []
    if OPT.t2:
        F31 = lambda blk, db: KF(blk*4+db) if db < 4 else VF(8*blk + db - 4)
        k.lg = []
        mq = []
        def chain(dst, As, Ps, qb, rev, needs, gives):
            order = list(range(len(As)))[::-1 if rev else 1]
            for n, i in enumerate(order):
                mq.append(It(f"{MF} {dst}, {ar(As[i],4)}, {vr(P(Ps[i],qb),4)}, {dst}", needs=needs, gives=gives if n == len(order)-1 else None))
        for n, qb in enumerate(cfg.sumq): chain(ar(LA(qb),4), [ONES]*2, [0, 1], qb, n % 2, None, None)
        for db in range(2):
            for q in range(4): chain(ar(O(db, q if db % 2 == 0 else 3-q),4), [VF(db), VF(8+db)], [0, 1], q if db % 2 == 0 else 3-q, q % 2, {"BAR": 0}, f"U{db}" if q == 3 else None)
        for q in range(4):
            if q in cfg.sumq: chain(ar(LA(q),4), [ONES]*2, [2, 3], q, 0, {f"P63_{q}": 2}, "SUM" if q == cfg.sumq[-1] else None)
            for db in range(2): chain(ar(O(db,q),4), [F31(0,db), F31(1,db)], [2, 3], q, db % 2, {f"P63_{q}": 2, "W0": 0}, f"O{db}" if q == 3 else None)
        for db in range(2, 8):
            for q in range(4):
                qb = q if db % 2 == 0 else 3-q
                chain(ar(O(db,qb),4), [VF(db), VF(8+db), F31(0,db), F31(1,db)], [0, 1, 2, 3], qb, q % 2, {f"W{db//2}": 0}, f"O{db}" if q == 3 else None)
        rdv = lambda db, nd: [It(L(f"ds_read_b64_tr_b16 {ar(F31(blk,db)+2*h,2)}, v{V_VA+db} offset:{3*SLOT+blk*8192+h*4096}", f"V{db//2}"), needs=nd) for blk in range(2) for h in range(2)]
        aw = [It(lambda kk, g=g: kk.run(g), cost=2) for j in range(OPT.na0 + OPT.na2) for g in a_w(j)]
        side = [It("s_waitcnt vmcnt(0) lgkmcnt(0)\ns_barrier", cost=0, gives="BAR")] + rdv(0, None) + rdv(1, None) + aw[:2*OPT.t2a] + rdv(2, None) + rdv(3, None)
        side += [It(f"s_mov_b32 s{S_T0+qb}, {qb*131072}", cost=0) for qb in range(4)]
        side += [It(W(lg="V0"), cost=0, gives="W0", needs={"P63_0": 0})] + rdv(4, {"U0": 0}) + rdv(5, {"U1": 0}) + [It(W(lg="V1"), cost=0, gives="W1")]
        r = aw[2*OPT.t2a:]; h1 = len(r)//2
        side += r[:h1] + [It(W(lg="V2"), cost=0, gives="W2")] + rdv(6, {"O2": 0}) + rdv(7, {"O3": 0}) + r[h1:] + [It(W(lg="all"), cost=0, gives="W3", needs={"O4": 0})]
        st_ = [(62, i, x) for i, x in enumerate(sm_stream(cfg, 62)) if i >= 32-R1] + [(63, i, x) for i, x in enumerate(sm_stream(cfg, 63))]
        prev = []
        for u, i, (e, f) in st_:
            vq0.append(It(e, cost=2, gives=f"e{u}_{i}")); vq0 += prev
            prev = [It(x, needs={f"e{u}_{i}": 1}, gives=f"P{u}_{i//8}" if (i % 8 == 7 and x is f[-1]) else None) for x in f]
        vq0 += prev
    else:
        rest = iteration(k, cfg, 0, "tail", extra=extra)
        k.stamp(5) if not cfg.fine else (k.stamp(2) if cfg.fine == 2 else None)
        k.lg = ["V0"]*len(k.lg)
        k.run([x[1] for x in rest])
        nrest = len(rest); dbw = 8 - (nrest + 3)//4
        mq = []
        for i, m in enumerate(pv2_mfmas(2, cfg.sumq)):
            db = (i - ns)//8
            it = It(m, gives="SUM" if i == ns-1 else (f"O{db}" if i >= ns and (i - ns) % 8 == 7 else None))
            if i == ns: it.needs = {"W0": 0}
            if i == ns + 8*dbw: it.needs = {"W1": 0}
            mq.append(it)
        side = [It(W(lg="V0"), cost=0, gives="W0")] + [It(f"s_mov_b32 s{S_T0+qb}, {qb*131072}", cost=0) for qb in range(4)]
        if OPT.fa:
            if OPT.mearly:
                side += [It(V(f"s_mov_b32 s6, {4096*(1+(i>>2)) + (i&3)*12288}\nbuffer_load_dwordx4 {vr(96+4*i,4)}, v6, s[48:51], s6 offen {'sc1' if OPT.mk0 else ''}", "M"), cost=2) for i in range(8)]
            side += [It(lambda kk, g=g: kk.run(g), cost=2) for j in range(OPT.na0, OPT.na0 + OPT.na2) for g in a_w(j)]
        side += [It(W(lg="all"), cost=0, gives="W1", needs={f"O{dbw-2}": 0})]
    vq = list(vq0)
    aq = cfg.addq()
    for n_, sw in enumerate(("v_permlane32_swap_b32", "v_permlane16_swap_b32")):
        for q in aq: vq.append(It(f"v_mov_b32 v{LT+4+q}, v{V_LS+q}", gives=f"a{n_}{q}"))
        for q in aq: vq.append(It(f"{sw} v{LT+4+q}, v{V_LS+q}", cost=2, needs={f"a{n_}{q}": 2}, gives=f"b{n_}{q}"))
        for q in aq: vq.append(It(f"v_add_f32 v{V_LS+q}, v{V_LS+q}, v{LT+4+q}", needs={f"b{n_}{q}": 1}))
    for q in cfg.sumq: vq.append(It(f"v_accvgpr_read_b32 v{V_LS+q}, a{LA(q)}", needs={"SUM": 8}))
    for q in range(4): vq.append(It(f"v_rcp_f32 v{LT+2*q}, v{V_LS+q}", cost=2))
    guard = [It(f"v_add_f32 v{LT+8}, v{V_LS}, v{V_LS+1}"), It(f"v_add_f32 v{LT+9}, v{V_LS+2}, v{V_LS+3}"), It(f"v_add_f32 v{LT+8}, v{LT+8}, v{LT+9}"),
           It(f"s_mov_b32 s7, {hexf(2.0**64)}\nv_cmp_nle_f32 vcc, v{LT+8}, s7"),
           It(f"s_lshl_b32 s7, s{S_WAVE}, 2\ns_add_u32 s7, s7, {FLAGB}\nv_mov_b32 v{LT+10}, s7"), It(f"v_mov_b32 v{LT+11}, {FLAGB}"),
           It(f"s_cmp_lg_u64 vcc, 0\ns_cselect_b32 s7, 1, 0\nv_mov_b32 v{LT+9}, s7"), It(L(f"ds_write_b32 v{LT+10}, v{LT+9}", "F"))]
    def check(k):
        k(f"ds_read_b128 {vr(LT+12,4)}, v{LT+11}\ns_waitcnt lgkmcnt(0)")
        k(f"v_or_b32 v{LT+12}, v{LT+12}, v{LT+13}\nv_or3_b32 v{LT+12}, v{LT+12}, v{LT+14}, v{LT+15}\ns_nop 0")
        k(f"v_readfirstlane_b32 s6, v{LT+12}")
        k(f"s_andn2_b32 s6, s6, s{S_RERUN}\ns_cmp_lg_u32 s6, 0\ns_cbranch_scc1 k1_fallback")
        if OPT.loc: k("v_cmp_ne_u32 vcc, s97, v5\ns_nop 0\ns_or_b32 s97, vcc_lo, vcc_hi")
    def flagprep(k):
        k.srd(S_K, 54, 4*32768 + 256*4096, WS_FLAG)
        k(f"s_and_b32 s6, s2, 7\ns_lshl_b32 s6, s6, 2\ns_lshr_b32 s7, s2, 6\ns_add_u32 s6, s6, s7\ns_lshl_b32 s63, s6, 10\ns_bfe_u32 s7, s2, 0x30003")
        k(f"v_lshlrev_b32 v2, 3, v{V_L16}\ns_lshl_b32 s6, s7, 2\nv_add_u32 v2, s6, v2\nv_mov_b32 v3, 0x{MAGIC:x}")
        k(f"v_bfe_u32 v27, v{V_L16}, 4, 3\nv_lshlrev_b32 v27, 2, v27\ns_lshl_b32 s6, s7, 7\nv_add_u32 v27, s6, v27")
        if OPT.mk0:
            k(f"s_lshl_b32 s6, s5, 5\ns_add_u32 s6, s6, s4\ns_lshl_b32 s6, s6, 12\ns_add_u32 s6, s6, {k1p.FA+3072}\ns_sub_u32 s6, s6, s63")
            k(f"v_and_b32 v4, 12, v27\nv_add_u32 v4, s6, v4\ns_mov_b32 exec_lo, 0\nv_mov_b32 v27, v4\ns_mov_b64 exec, -1")
    def raise_(k, lab, off):
        k(f"s_cmp_eq_u32 s{S_WAVE}, 1\ns_cbranch_scc0 {lab}")
        if OPT.loc:
            k(f"s_cmp_eq_u32 s97, 0\ns_cbranch_scc1 {lab}_l\nbuffer_wbl2 sc1\ns_waitcnt vmcnt(0)\n{lab}_l:")
        k("s_mov_b64 exec, 0xff")
        k(f"buffer_store_dword v3, v2, {sr(S_K,4)}, s63 offen offset:{off} sc1\ns_mov_b64 exec, -1")
        k(f"{lab}:")
    def midsig(k):
        k.wait(vm="OS1", lg='all', barrier=True)
        check(k); flagprep(k); raise_(k, "k1_nf1", 0)
    n_ = 0
    for s_ in range(4):
        for qb in range(4):
            t = 64 + (n_ & 3)*8; o = (96 if OPT.t2 else 32) + (n_ & 7)*4; n_ += 1
            for h in range(2):
                for i in range(4): vq.append(It(f"v_accvgpr_read_b32 v{t+4*h+i}, a{O(2*s_+h,qb)+i}", needs={f"O{2*s_+h}": 8}))
            if n_ <= cfg.npk:
                for i in range(8): vq.append(It(f"v_mul_f32 v{t+i}, v{t+i}, v{LT+2*qb}"))
            else:
                for i in range(4): vq.append(It(f"v_pk_mul_f32 {vr(t+2*i,2)}, {vr(t+2*i,2)}, {vr(LT+2*qb,2)} op_sel_hi:[1,0]"))
            for d in range(4): vq.append(It(f"v_cvt_pk_bf16_f32 v{o+d}, v{t+2*d}, v{t+2*d+1}"))
            vq.append(It(V(f"buffer_store_dwordx4 {vr(o,4)}, v{V_L16}, {sr(S_O,4)}, s{S_T0+qb} offen offset:{s_*1024} {OPT.lst if OPT.loc else ('sc1' if (n_ <= OPT.nsc1 or OPT.fa) else OPT.st1)}", "OST" if n_ > 8 else "OS1"), cost=2))
            if n_ == 2: vq[-1].gives = "ST0"; vq += guard
            if OPT.f2 and n_ == OPT.f2n: vq.append(It(midsig, cost=0, needs={"W1": 0}))
    if not OPT.fa: k.vm = []
    merge(k, mq, vq, side, budget=(lambda w: 2 if ("ST0" in w or not OPT.t2) else OPT.t2b))
    if OPT.fa:
        for j in range(OPT.na0 + OPT.na2, OPT.na0 + OPT.na2 + OPT.na1): k.run(a_w(j))
        assert OPT.na0 + OPT.na1 + OPT.na2 <= 14
        if OPT.a2:
            k(f"s_lshl_b32 s6, s5, 1\ns_bfe_u32 s7, s2, 0x10005\ns_add_u32 s6, s6, s7\ns_lshl_b32 s6, s6, 1\ns_and_b32 s7, s{S_WAVE}, 1\ns_add_u32 s6, s6, s7")
            k(f"s_lshr_b32 s52, s{S_WAVE}, 1\ns_lshl_b32 s{S_CNT}, s6, 1\ns_add_u32 s{S_CNT}, s{S_CNT}, s52")
            k(f"s_lshl_b32 s6, s6, 19\ns_and_b32 s7, s2, 3\ns_lshl_b32 s7, s7, 12\ns_add_u32 s6, s6, s7\ns_lshl_b32 s53, s52, 11\ns_add_u32 s6, s6, s53\ns_add_u32 s6, s6, 0x{WS_OF:x}")
            k(f"s_add_u32 s{S_X}, s54, s6\ns_addc_u32 s{S_X+1}, s55, 0\ns_mov_b32 s{S_X+2}, {4*131072}")
            k(f"s_lshl_b32 s52, s52, 18")
            if OPT.own: k("s_lshr_b32 s53, s96, 5\ns_or_b32 s52, s52, s53")
            k(f"s_xor_b32 s53, s52, 0x40000")
        else:
          k(f"s_lshl_b32 s6, s5, 1\ns_bfe_u32 s7, s2, 0x10005\ns_add_u32 s6, s6, s7\ns_lshl_b32 s6, s6, 2\ns_add_u32 s{S_CNT}, s6, s{S_WAVE}")
          k(f"s_lshl_b32 s6, s{S_CNT}, 18\ns_and_b32 s7, s2, 3\ns_lshl_b32 s7, s7, 12\ns_add_u32 s6, s6, s7\ns_add_u32 s6, s6, 0x{WS_OF:x}")
          k(f"s_add_u32 s{S_X}, s54, s6\ns_addc_u32 s{S_X+1}, s55, 0\ns_mov_b32 s{S_X+2}, {2*131072}")
        k(f"s_lshl_b32 s6, s{S_CNT}, 15\ns_lshl_b32 s7, s7, 9\ns_add_u32 s6, s6, s7\ns_bfe_u32 s7, s2, 0x20003\ns_lshl_b32 s7, s7, 12\ns_add_u32 s6, s6, s7\ns_add_u32 s6, s6, 0x{WS_PART:x}")
        k(f"s_add_u32 s{S_W}, s54, s6\ns_addc_u32 s{S_W+1}, s55, 0\ns_mov_b32 s{S_W+2}, {16384+4096}")
    V_W0 = 32
    def poll(k, lab, off):
        k("s_mov_b32 s7, 0")
        k(f"{lab}:")
        k(f"buffer_load_dword v3, v27, {sr(S_K,4)}, s63 offen offset:{off} sc1\ns_waitcnt vmcnt(0)\nv_cmp_ne_u32 vcc, 0x{MAGIC:x}, v3")
        k(f"s_cbranch_vccz {lab}_r\ns_add_u32 s7, s7, 1\ns_cmp_lt_u32 s7, 0x10000\ns_cbranch_scc1 {lab}")
        k(f"{lab}_r:")
        k(f"s_barrier\nv_mov_b32 v3, 0\ns_mov_b32 exec_lo, 0\nbuffer_store_dword v3, v27, {sr(S_K,4)}, s63 offen offset:{off}\ns_mov_b64 exec, -1\ns_branch {lab}_e" if OPT.mk0 else "")
        k(f"{lab}_ok:")
    if OPT.f2:
        for j in range(OPT.na0 + OPT.na1 + OPT.na2, OPT.na3): k.run(a_w(j))
        if OPT.ff: k1t.setup_early(k)
        k("s_nop 1")
        for t in range(8): k(f"v_add_u32 v{V_W0+t}, {-VB & 0xffffffff}, v{V_VA+t}\nv_add_u32 v{V_W0+8+t}, {VB}, v{V_VA+t}")
        k(f"s_cmp_eq_u32 s{S_WAVE}, 0\ns_cbranch_scc0 k1_poll_ok")
        poll(k, "k1_poll", 0)
        k("s_waitcnt vmcnt(0)\ns_barrier")
        k.stamp(6) if not cfg.fine else (k.stamp(3) if cfg.fine == 2 else k1t.st(k, 'x0'))
        raise_(k, "k1_nf2", 32)
    else:
        if OPT.fa and not OPT.early: k.wait(vm="OST")
        k("s_waitcnt lgkmcnt(0)\ns_barrier")
        check(k)
    if OPT.fa and not OPT.f2:
        def addrs():
            if OPT.a2:
                k("v_lshrrev_b32 v4, 1, v1\nv_lshlrev_b32 v4, 14, v4")
                for t in range(8): k(f"v_add_u32 v{V_W0+8+t}, v4, v{V_VA+t}\nv_add_u32 v{V_W0+t}, {-VB & 0xffffffff}, v{V_W0+8+t}")
                k(f"v_lshl_add_u32 v8, v1, 14, v{V_L16}\nv_xor_b32 v9, 0x8000, v8")
                if OPT.anr == 20:
                    k("v_add_u32 v8, 0x18000, v8\nv_add_u32 v9, 0x18000, v9")
                    for t in range(8): k(f"v_add_u32 v{V_VA+t}, {VB}, v{V_W0+8+t}")
            else:
                for t in range(8): k(f"v_add_u32 v{V_W0+t}, {-VB & 0xffffffff}, v{V_VA+t}\nv_add_u32 v{V_W0+8+t}, {VB}, v{V_VA+t}")
        flagprep(k)
        if OPT.early:
            addrs(); k1t.setup_early(k)
            k.wait(vm="OST", barrier=True)
        k.stamp(6) if not cfg.fine else (k.stamp(3) if cfg.fine == 2 else k1t.st(k, 'x0'))
        raise_(k, "k1_nf1", 0)
        if OPT.own:
            assert OPT.a2 and OPT.apre and not OPT.mk0
            k.vm = []
            for tb in range(4):
                for e in range(2):
                    k(f"s_xor_b32 s{S_T0+(tb&1)}, s{52+(tb>>1)}, {(tb&1)*131072}")
                    k.vmop(f"buffer_load_dwordx4 {ar((e*4 + tb)*4,4)}, v{V_L16}, {sr(S_X,4)}, s{S_T0+(tb&1)} offen offset:{e*1024} sc1", f"AB0_{tb}")
        if not OPT.early: addrs()
        wmid = [g for j in range(OPT.na0 + OPT.na1 + OPT.na2, OPT.anr) for g in a_w(j)]
        if not OPT.own: k.run(wmid)
        if OPT.ff and not OPT.early: k1t.setup_early(k)
        if OPT.mearly: k1t.m_finish(k, 96)
        if OPT.a2 and OPT.apre:
            k.lg = []
            k.run([L(f"ds_read_b64_tr_b16 {vr(192 + (e*8+t)*4 + 2*h, 2)}, v{V_W0+t} offset:{e*8192 + h*4096}", f"R0_{t}") for t in range(8) for e in range(2) for h in range(2)])
        if OPT.mk0:
            k(f"s_cmp_eq_u32 s{S_WAVE}, 0\ns_cbranch_scc0 k1_poll_ok")
            poll(k, "k1_poll", 0)
            k("s_waitcnt vmcnt(0)\ns_barrier\nk1_poll_e:")
        elif OPT.own:
            pass
        elif "0" in OPT.pall:
            assert OPT.a2 and OPT.na0 + OPT.na2 >= 8
            k1t.pollall(k, "k1_h0", 27)
        else:
            k(f"s_cmp_eq_u32 s{S_WAVE}, 0\ns_cbranch_scc0 k1_h0_c\ns_mov_b32 s7, 0")
            k1t.pollloop(k, "k1_h0", 27)
    if OPT.fa:
        if not OPT.own: k.vm = []
        if not (OPT.a2 and OPT.apre): k.lg = []
        if cfg.fine == 2: k.stamp(4); k("s_waitcnt lgkmcnt(0)")
        if cfg.fine == 3: k1t.st(k, 'y0')
        if OPT.a2:
            assert OPT.anr in (16, 20) and OPT.fce == 0
            NQ = OPT.anr//4
            AC = lambda t, tb: 64 + (tb*8+t)*4
            AW = lambda u, e, t, n=4, o=0: (ar if u & 1 else vr)(192 + (e*8+t)*4 + o, n)
            AB = lambda u, e, tb: ((u % 6)*8 + e*4 + tb)*4
            def a_b(u):
                return [[f"s_xor_b32 s{S_T0+(tb&1)}, s{52+(tb>>1)}, {(tb&1)*131072 + u*16384}",
                         V(f"buffer_load_dwordx4 {ar(AB(u,e,tb),4)}, v{V_L16}, {sr(S_X,4)}, s{S_T0+(tb&1)} offen offset:{e*1024} sc1", f"AB{u}_{tb}")] for tb in range(4) for e in range(2)]
            def a_reads(u):
                base = (u % NQ)*32768; off = base & 0xffff
                return [L(f"ds_read_b64_tr_b16 {AW(u,e,t,2,2*h)}, v{(V_W0, V_W0+8, V_VA)[base>>16]+t} offset:{off + e*8192 + h*4096}", f"R{u}_{t}") for t in range(8) for e in range(2) for h in range(2)]
            bq = [g for u in range(8) for g in a_b(u)]; nbq = OPT.a2b0
            if OPT.own: nbq = 8
            else: k.run(bq[:nbq])
            if not OPT.apre: k.run(a_reads(0))
            wq = [g for j in range(OPT.anr, 32) for g in a_w(j)]; nwq = 0; NWQ = len(wq)
            for u in range(8):
                k1t.st(k, f"a{u}")
                if u == 7:
                    k.wait(vm="AB7_3", lg="R7_7")
                    mq = []; vq = []; side = [It(f"s_mov_b32 s{S_T0}, 0\ns_mov_b32 s{S_T0+1}, 16384", cost=0)]
                    for tb in (2, 3, 0, 1):
                        for t_ in range(8):
                            t = t_ if tb % 2 == 0 else 7 - t_
                            d = vr(AC(t, tb), 4)
                            for i, e in enumerate((0, 1) if t_ % 2 == 0 else (1, 0)):
                                mq.append(It(f"{MF} {d}, {AW(u,e,t)}, {ar(AB(u,e,tb),4)}, {d}", gives=f"D{t}{tb}" if i else None))
                            if tb >= 2: side.append(It(f"ds_write_b128 v8, {d} offset:{((tb-2)*8+t)*1024}", cost=2, needs={f"D{t}{tb}": 8, f"w{len(side)-1}": OPT.awsp}, gives=f"w{len(side)}"))
                    side[0].gives = "w0"
                    merge(k, mq, [], side)
                    k("s_waitcnt lgkmcnt(0)\ns_barrier")
                    k1t.st(k, "a8")
                    k.lg = []
                    for tb in range(2):
                        for t in range(8): k.lgop(f"ds_read_b128 {vr(AC(t,tb+2),4)}, v9 offset:{(tb*8+t)*1024}", f"E{tb}{t>>1}")
                    n_ = 0
                    for tb in range(2):
                        for ns_ in range(4):
                            k.wait(lg=f"E{tb}{ns_}")
                            a = AC(2*ns_, tb); o = 192 + n_*4; n_ += 1
                            for i in range(0, 8, 2): k(f"v_pk_add_f32 {vr(a+i,2)}, {vr(a+i,2)}, {vr(a+64+i,2)}")
                            for d in range(4): k(f"v_cvt_pk_bf16_f32 v{o+d}, v{a+2*d}, v{a+2*d+1}")
                            k.vmop(f"buffer_store_dwordx4 {vr(o,4)}, v{V_L16}, {sr(S_W,4)}, s{S_T0+tb} offen offset:{ns_*1024} sc1", "PST")
                    break
                mf = []; n_ = 0
                for t in range(8):
                    for tb_ in range(4):
                        tb = tb_ if t % 2 == 0 else 3 - tb_
                        d = vr(AC(t, tb), 4)
                        for i, e in enumerate((0, 1) if n_ % 2 == 0 else (1, 0)):
                            mf.append(f"{MF} {d}, {AW(u,e,t)}, {ar(AB(u,e,tb),4)}, {d if (u or i) else '0'}")
                        n_ += 1
                vm = []
                while len(vm) < (OPT.ownn if (OPT.own and u == 0) else OPT.a2n):
                    wok = nwq < NWQ and u >= nwq//8 + 1
                    bok = nbq < 64 and nbq//8 - 6 < u
                    if wok and (not bok or NQ + nwq//8 - 1 <= nbq//8): vm.append(wq[nwq]); nwq += 1
                    elif bok: vm.append(bq[nbq]); nbq += 1
                    else: break
                assert nwq >= min(NWQ, (u + 3 - NQ)*8) and nbq >= min(64, (u + 2)*8), (u, nwq, nbq)
                if OPT.ff and u == 6: vm += ([] if OPT.mearly else k1t.m_loads(64)) + k1t.x_loads()
                if OPT.own and u == 0:
                    gaps = {}
                    for i, x in enumerate(wmid): add(gaps, 7 + 2*i, *x)
                    rd = a_reads(1)
                    for g in range(1, OPT.ownc):
                        if g not in gaps and rd: add(gaps, g, rd.pop(0))
                    assert not rd and OPT.ownp > 7 + 2*len(wmid) - 2
                    front(gaps, OPT.ownp, V(f"buffer_load_dword v3, v27, {sr(S_K,4)}, s63 offen sc1", "F1"))
                    add(gaps, OPT.ownc, W(vm="F1"), f"v_cmp_ne_u32 vcc, 0x{MAGIC:x}, v3\ns_cbranch_vccnz k1_spin1\nk1_spin1_ret:")
                    for i, x in enumerate(vm): add(gaps, min(63, OPT.ownc + 1 + i), *x)
                else:
                    gaps = k1t.spread(64, a_reads(u+1), vm, g1=56)
                if OPT.own and u == 1:
                    add(gaps, -1, W(vm="AB1_0", lg="R1_7"))
                    front(gaps, 0, "s_barrier")
                    for tb in range(1, 4): front(gaps, 2*tb-1, W(vm=f"AB1_{tb}"))
                elif u == 0:
                    add(gaps, -1, W(vm="AB0_0", lg="R0_1"))
                    for tb in range(1, 4): front(gaps, 2*tb-1, W(vm=f"AB0_{tb}"))
                    front(gaps, 13, W(lg="R0_7"))
                else:
                    add(gaps, -1, W(vm=f"AB{u}_3", lg=f"R{u}_7"))
                    front(gaps, 0, W(vm=f"AW{4*u+7}", barrier=True))
                if OPT.slowa: add(gaps, 63, f"s_sleep {OPT.slowa}"); add(gaps, 31, f"s_sleep {OPT.slowa}")
                emit(k, mf, gaps)
            assert nbq == 64 and nwq == NWQ
            k1t.MBASE = 64
            k1t.rest(k, 0)
    if OPT.fa and not OPT.a2:
        AC = lambda t, tb: 64 + (t*2+tb)*4
        AWF = lambda j, t: 128 + ((j&3)*8+t)*4
        ABF = lambda j, tb: (j*2+tb)*4
        def a_b(j):
            return [[f"s_mov_b32 s{S_T0+tb}, {tb*131072 + AH(j)*16384}",
                     V(f"buffer_load_dwordx4 {ar(ABF(j,tb),4)}, v{V_L16}, {sr(S_X,4)}, s{S_T0+tb} offen offset:{AS(j)*1024} sc1", f"AB{j}")] for tb in range(2)]
        def a_reads(p):
            r = []
            for t in range(8):
                for j in (2*p, 2*p+1):
                    base = (j % OPT.anr)*8192; off = base & 0xffff
                    r += [L(f"ds_read_b64_tr_b16 {vr(AWF(j,t)+2*h,2)}, v{(V_W0, V_VA, V_W0+8)[base >> 16]+t} offset:{off + h*4096}", f"R{p}_{t}") for h in range(2)]
            return r
        nb = OPT.nb0
        for j in range(nb): k.run(a_b(j))
        k.run(a_reads(0))
        nw = max(OPT.na3, OPT.na0 + OPT.na1 + OPT.na2) if OPT.f2 else OPT.anr; ncw = 0
        for p in range(16):
            mf = []; n_ = 0
            for t in range(8):
                for tb_ in range(2):
                    tb = tb_ if t % 2 == 0 else 1 - tb_
                    d = vr(AC(t, tb), 4)
                    for i, j in enumerate((2*p, 2*p+1) if n_ % 2 == 0 else (2*p+1, 2*p)):
                        mf.append(f"{MF} {d}, {vr(AWF(j,t),4)}, {ar(ABF(j,tb),4)}, {d if (p or i) else '0'}")
                    n_ += 1
            if p == 15 and OPT.amrg:
                k.wait(vm=f"AB{2*p+1}", lg=f"R{p}_3")
                mq = []; vq = []; n_ = 0
                for ns_ in range(4):
                    for tb_ in range(2):
                        tb = tb_ if ns_ % 2 == 0 else 1 - tb_
                        o = 128 + n_*4
                        for h_ in range(2):
                            h = h_ if n_ % 2 == 0 else 1 - h_
                            t = 2*ns_ + h; a = AC(t, tb); d = vr(a, 4)
                            for i, j in enumerate((2*p, 2*p+1) if h_ == 0 else (2*p+1, 2*p)):
                                mq.append(It(f"{MF} {d}, {vr(AWF(j,t),4)}, {ar(ABF(j,tb),4)}, {d}", gives=f"D{t}{tb}" if i else None, needs={"RR": 0} if len(mq) == 16 else None))
                            vq += [It(f"v_cvt_pk_bf16_f32 v{o+2*h+e}, v{a+2*e}, v{a+2*e+1}", needs={f"D{t}{tb}": 8}) for e in range(2)]
                        vq.append(It(V(f"buffer_store_dwordx4 {vr(o,4)}, v{V_L16}, {sr(S_W,4)}, s{S_T0+tb} offen offset:{ns_*1024} sc1", "PST"), cost=2))
                        n_ += 1
                merge(k, mq, vq, [It(f"s_mov_b32 s{S_T0}, 0\ns_mov_b32 s{S_T0+1}, 16384", cost=0), It(W(lg='all'), cost=0, gives="RR", needs={"D01": 0})])
                break
            vm = []
            for _ in range(OPT.nbs):
                wok = nw < 32 and (nw < OPT.anr or p >= (nw-OPT.anr)//2 + 1)
                if wok and (nb >= 32 or nw//2 - 1 - OPT.wlead <= nb//2): vm += a_w(nw); nw += 1
                elif nb < 32 and not (OPT.f2 and nb >= 16 and p < OPT.f2c): vm += a_b(nb); nb += 1
                elif wok: vm += a_w(nw); nw += 1
                elif OPT.ff and nw == 32 and ncw < OPT.fce and len(vm) <= 3 and k1t.a_last(k1t.cperm()[ncw], OPT.anr) <= p - 1:
                    vm += k1t.c_w(ncw); ncw += 1
            if OPT.ff and p == OPT.fxp: vm += k1t.x_loads()
            if OPT.ff and p in (OPT.fmp, OPT.fmp+1): vm += k1t.m_loads()[4*(p-OPT.fmp):4*(p-OPT.fmp)+4]
            if OPT.f2 and p == OPT.f2c - 1: vm.insert(len(vm)//2, [V(f"buffer_load_dword v3, v27, {sr(S_K,4)}, s63 offen offset:32 sc1", "F2")])
            if OPT.loc and p == OPT.lwb:
                vm.append([f"s_lshr_b32 s6, s2, 3\ns_or_b32 s6, s6, s{S_WAVE}\ns_cbranch_scc1 k1_nowb\nbuffer_wbl2 sc1\nk1_nowb:"])
            rd = a_reads(p+1) if p < 15 else []
            if OPT.ax == 1: rd = []
            if OPT.ax == 2: vm = []
            if OPT.ax == 3: rd = rd[:24]
            if OPT.ax == 4: vm = [x for x in vm if "m0" in x[0]]
            if OPT.amix:
                gaps = fill(32, [], [], vm, g0=1)
                fr = [g for g in range(1, 31) if g not in gaps]
                for i, g in enumerate(fr):
                    c = (len(rd) + len(fr) - i - 1)//(len(fr) - i) if (i % 2 == 0 or len(rd) >= 2*(len(fr)-i)) else len(rd)//(len(fr) - i)
                    for _ in range(c): add(gaps, g, rd.pop(0))
                assert not rd
            else:
                gaps = fill(32, rd, [], vm, g0=1, pair_lds=True)
            add(gaps, -1, W(vm=f"AB{2*p+1}", lg=f"R{p}_3"))
            if OPT.f2 and p == OPT.f2c:
                add(gaps, -1, W(vm="F2"), "v_cmp_ne_u32 vcc, 1, v3\ns_cbranch_vccnz k1_spin2\nk1_spin2_ret:")
            front(gaps, 12, W(lg=f"R{p}_7"))
            if OPT.slowa and OPT.slow0 <= p < OPT.slown: add(gaps, 31, f"s_sleep {OPT.slowa}")
            if 1 <= p < 15 and not OPT.anob: front(gaps, 0, W(vm=f"AW{2*p+3}", barrier=True))
            emit(k, mf, gaps)
            if cfg.fine == 2 and p == 1: k.stamp(5); k("s_waitcnt lgkmcnt(0)"); k.lg = []
        if cfg.fine == 2: k.stamp(6)
        assert nb == 32 and nw == 32
        k(f"s_mov_b32 s{S_T0}, 0\ns_mov_b32 s{S_T0+1}, 16384")
        n_ = 0
        for ns_ in range(4 if not OPT.amrg else 0):
            for tb in range(2):
                o = 128 + n_*4; n_ += 1
                for h in range(2):
                    a = AC(2*ns_+h, tb)
                    k(f"v_cvt_pk_bf16_f32 v{o+2*h}, v{a}, v{a+1}\nv_cvt_pk_bf16_f32 v{o+2*h+1}, v{a+2}, v{a+3}")
                k(f"buffer_store_dwordx4 {vr(o,4)}, v{V_L16}, {sr(S_W,4)}, s{S_T0+tb} offen offset:{ns_*1024} sc1")
        if OPT.ff: k1t.rest(k, ncw)
    k.dbg_mark(3, 100, 101, True); k.dbg_mark(4, 102, 103)
    if prof:
        k.stamp(6) if not (cfg.fine or OPT.fa) else None
        k("s_waitcnt vmcnt(0)")
        k.stamp(7) if cfg.fine != 1 else None
        k.dump_stamps(8, 54, 100)
    k(f"{end}:")
    k("s_endpgm")
    if OPT.own:
        k("k1_spin1:")
        k1t.pollall(k, "k1_sp1", 27)
        k("s_branch k1_spin1_ret")
    if OPT.f2:
        k("k1_spin2:")
        poll(k, "k1_poll2", 32)
        k("s_branch k1_spin2_ret")
    k("k1_fallback:")
    k(f"s_mov_b32 s{S_RERUN}, 1")
    k("v_and_b32 v2, 63, v0\nv_lshrrev_b32 v3, 4, v2\nv_and_b32 v4, 15, v2")
    k("v_lshlrev_b32 v5, 8, v4\nv_lshl_add_u32 v5, v3, 4, v5")
    for q in range(4): k(f"v_mov_b32 v{V_T+q}, 0xff800000")
    k("s_mov_b32 s6, 0")
    k("k1_fb_loop:")
    for s in range(4): k(f"buffer_load_dwordx4 {ar(KF(s),4)}, v5, {sr(S_K,4)}, s6 offen offset:{64*s}")
    k("s_waitcnt vmcnt(0)")
    for s in range(4):
        for qb in range(4):
            d = vr(S(0,0,qb),4)
            k(f"{MF} {d}, {ar(KF(s),4)}, {vr(Q(qb,s),4)}, {d if s else '0'}")
    k("s_nop 15")
    for qb in range(4):
        a = S(0,0,qb)
        k(f"v_max3_f32 v{V_T+qb}, v{V_T+qb}, v{a}, v{a+1}")
        k(f"v_max3_f32 v{V_T+qb}, v{V_T+qb}, v{a+2}, v{a+3}")
    k("s_add_u32 s6, s6, 4096\ns_cmp_lt_u32 s6, 0x80000\ns_cbranch_scc1 k1_fb_loop")
    rowmax_cross(k, [V_T+q for q in range(4)], V_T+4)
    for x in pfv: k(x)
    for qb in range(4):
        k(f"v_mov_b32 v{V_LS+qb}, 0")
        for i in range(4): k(f"v_sub_f32 v{MN(qb)+i}, 0, v{V_T+qb}")
    k("s_barrier")
    k.vm = []; k.lg = []
    for wh, t in (('K',0),('K',1),('V',0),('K',2),('V',1),('K',3)): run(kv_group(wh, t))
    k.wait(vm="V0", barrier=True)
    run(kreads(0, 0, HK(0))); k("s_waitcnt lgkmcnt(0)"); run(kreads(0, 1, HK(1)))
    for m in qk_mfmas(0, HK(0)): k(m)
    k("s_waitcnt lgkmcnt(0)\ns_barrier")
    run(kreads(1, 0))
    for m in qk_mfmas(1, HK(1)): k(m)
    merge(k, [], sm0([0, 1, 2, 3], sub=False))
    k(loopinit)
    k("s_branch k1_first")
    return k
```

```python
from common import *
from sched import *
from k0 import mod_loads, mod_finish
MF = "v_mfma_f32_16x16x32_bf16"
S_K, S_V, S_W, S_X, S_M, S_O, S_D = 8, 12, 16, 20, 24, 28, 48
S_T0, S_WAVE, S_W1 = 36, 45, 62
S_TT, S_MM, S_W3 = 33, 34, 35
V_L16 = 26
PAR2 = 9*16384 + 8192
SCR = 9*16384 + 4096 + 64
C_W, C_NW = 12288, 12
D_U, D_NW = 16384, 9
V_DC, V_DD = 20, 23
XR = 48

def spread(n, rd, vm, g0=1, g1=None):
    gaps = fill(n, [], [], vm, g0=g0)
    fr = [g for g in range(g0, (g1 or n-1)) if g not in gaps]
    rd = list(rd)
    for i, g in enumerate(fr):
        left = len(fr) - i
        c = -(-len(rd)//left) if (i % 2 == 0 or len(rd) >= 2*left) else len(rd)//left
        for _ in range(c): add(gaps, g, rd.pop(0))
    assert not rd
    return gaps

def a_last(i, anr):
    sl = range((i*C_W)//8192, (i*C_W + C_W - 1)//8192 + 1)
    return max(max(x for x in range(32) if x % anr == s_)//2 if s_ < anr else -1 for s_ in sl)
def cperm(): return sorted(range(C_NW), key=lambda i: (a_last(i, OPT.anr), i))
def c_last(i):
    P = cperm()
    sl = range((i*D_U)//C_W, (i*D_U + D_U - 1)//C_W + 1)
    return max(max(x for x in range(16) if P[x % C_NW] == s_)//2 for s_ in sl)
def dperm(): return sorted(range(D_NW), key=lambda i: (c_last(i), i))

def c_w(j):
    return [[(f"s_add_u32 m0, s{S_W3}, {cperm()[j % C_NW]*C_W}\ns_mov_b32 s{S_T0+6}, {j*32*2752}"),
             V(f"buffer_load_dwordx4 v{V_DC+p}, {sr(S_V,4)}, s{S_T0+6} offen offset:{p*1024} lds", f"CW{j}")] for p in range(3)]
def d_w(i):
    return [[f"s_add_u32 m0, s32, {dperm()[i % D_NW]*D_U}\ns_mov_b32 s{S_T0+7}, {i*128*1024 + p*(8192-1024)}",
             V(f"buffer_load_dwordx4 v{V_DD}, {sr(S_D,4)}, s{S_T0+7} offen offset:{p*1024} lds", f"DW{i}")] for p in range(4)]

def setup_early(k):
    k(f"s_lshl_b32 s{S_TT}, s5, 1\ns_bfe_u32 s6, s2, 0x10005\ns_add_u32 s{S_TT}, s{S_TT}, s6")
    k(f"s_and_b32 s{S_MM}, s2, 3\ns_lshl_b32 s{S_MM}, s{S_MM}, 2\ns_bfe_u32 s6, s2, 0x20003\ns_add_u32 s{S_MM}, s{S_MM}, s6")
    k.srd(52, 54, 4*12288, WS_MODP) if False else None
    k("v_lshlrev_b32 v31, 4, v0")
    k(f"s_mul_i32 s{S_W3}, s{S_WAVE}, 3072\ns_mul_i32 s6, s{S_MM}, 192\ns_min_u32 s6, s6, {14*192}")
    k(f"s_cmp_lt_u32 s{S_WAVE}, 2\ns_cselect_b64 s[{S_V}:{S_V+1}], s[56:57], s[58:59]")
    k(f"s_add_u32 s{S_V}, s{S_V}, s6\ns_addc_u32 s{S_V+1}, s{S_V+1}, 0\ns_sub_u32 s{S_V+2}, {512*2752}, s6")
    k(f"s_cmp_eq_u32 s{S_MM}, 15\ns_cselect_b32 s{S_V+2}, 0, s{S_V+2}")
    k(f"s_and_b32 s6, s{S_MM}, 7\ns_lshl_b32 s6, s6, 7\ns_lshl_b32 s{S_T0+4}, s{S_WAVE}, 15\ns_add_u32 s6, s6, s{S_T0+4}")
    k(f"s_add_u32 s{S_D}, s60, s6\ns_addc_u32 s{S_D+1}, s61, 0\ns_sub_u32 s{S_D+2}, {1376*1024}, s6\ns_mov_b32 s{S_D+3}, 0x20000")
    k(f"v_lshrrev_b32 v5, 4, v{V_L16}\nv_and_b32 v6, 1, v1\nv_lshlrev_b32 v6, 4, v6")
    for p in range(3):
        k(f"v_add_u32 v56, {64*p}, v5")
        k("v_mul_u32_u24 v57, 0x5556, v56\nv_lshrrev_b32 v57, 18, v57")
        k("v_mul_u32_u24 v58, 12, v57\nv_sub_u32 v58, v56, v58")
        k("v_lshrrev_b32 v59, 1, v57\nv_and_b32 v59, 2, v59\nv_xor_b32 v58, v58, v59")
        k("v_add_u32 v57, v57, v6\nv_mul_u32_u24 v57, 2752, v57")
        k(f"v_lshl_add_u32 v{V_DC+p}, v58, 4, v57")
        if p: k(f"v_subrev_u32 v{V_DC+p}, {1024*p}, v{V_DC+p}")
    k("v_lshrrev_b32 v56, 3, v5\nv_and_b32 v57, 7, v5\nv_and_b32 v58, 6, v56\nv_xor_b32 v57, v57, v58")
    k(f"v_lshlrev_b32 v56, 10, v56\nv_lshl_add_u32 v{V_DD}, v57, 4, v56")
    k("v_and_b32 v56, 7, v0\nv_bfe_u32 v57, v0, 3, 2\nv_lshrrev_b32 v58, 5, v0")
    k("v_lshlrev_b32 v24, 10, v58\nv_lshl_add_u32 v24, v57, 8, v24\nv_lshl_add_u32 v24, v56, 4, v24")
    k("v_lshlrev_b32 v25, 10, v56\nv_lshl_add_u32 v25, v58, 6, v25\nv_lshl_add_u32 v25, v57, 3, v25")
    k(f"v_lshlrev_b32 v28, 7, v58\nv_lshl_add_u32 v28, v57, 4, v28\nv_add_u32 v28, {PAR2}, v28")
    k(f"v_lshlrev_b32 v29, 4, v56\nv_add_u32 v29, {SCR}, v29\nv_lshl_add_u32 v30, v1, 2, v29")
    k(f"s_lshl_b32 s6, s{S_TT}, 4\ns_add_u32 s6, s6, s{S_MM}\ns_lshl_b32 s6, s6, 13")
    k(f"s_add_u32 s{S_O}, s0, s6\ns_addc_u32 s{S_O+1}, s1, 0\ns_mov_b32 s{S_O+2}, 8192")
    k.srd(56, 54, 4*12288, WS_MODP)

MBASE = 0
def m_loads(base=0):
    return [[f"s_mov_b32 s{S_T0+2}, {4096*(1+(i>>2)) + (i&3)*12288}", V(f"buffer_load_dwordx4 {ar(base+4*i,4)}, v31, s[56:59], s{S_T0+2} offen sc1", "M")] for i in range(8)]
def m_finish(k, R=None):
    if R is None:
        R = 64
        for i in range(32): k(f"v_accvgpr_read_b32 v{64+i}, a{MBASE+i}")
    k(f"s_mov_b32 s6, 0\ns_cmp_lt_u32 s{S_WAVE}, 2\ns_cselect_b32 s{S_T0+4}, 1.0, 0\nv_add_u32 v31, {PAR2}, v31")
    mod_finish(k, R, 6); mod_finish(k, R+16, S_T0+4)
    k(f"ds_write_b128 v31, {vr(R,4)}\nds_write_b128 v31, {vr(R+16,4)} offset:4096\ns_waitcnt lgkmcnt(0)")

def clean_ops():
    if not (OPT.loc and OPT.lcn): return []
    return [[f"s_mov_b32 s{S_T0+5}, {i*16384}", V(f"buffer_store_dwordx4 v[48:51], v{V_L16}, s[56:59], s{S_T0+5} offen offset:{e*1024} sc1", "CL")] for i in range(4) for e in range(4)]

def x_loads():
    return [[V(f"buffer_load_dwordx2 {vr(XR+pc*4+h*2,2)}, v25, {sr(S_O,4)}, 0 offen offset:{pc*512+h*32}", "X")] for pc in range(2) for h in range(2)]

def pollall(k, lab, va):
    k(f"s_mov_b32 s7, 0\n{lab}_b:")
    k(f"buffer_load_dword v3, v{va}, {sr(S_K,4)}, s63 offen sc1\ns_waitcnt vmcnt(0)\nv_cmp_ne_u32 vcc, 0x{MAGIC:x}, v3")
    k(f"s_cbranch_vccz {lab}_d\ns_add_u32 s7, s7, 1\ns_cmp_lt_u32 s7, 0x10000\ns_cbranch_scc1 {lab}_b\n{lab}_d:")

def pollloop(k, lab, va):
    ld = lambda r: f"buffer_load_dword v{r}, v{va}, {sr(S_K,4)}, s63 offen sc1"
    if OPT.pp:
        k(ld(3) + f"\ns_sleep {OPT.pp}")
        k(f"{lab}_b:")
        for a, b in ((5, 3), (3, 5)):
            k(ld(a) + f"\ns_waitcnt vmcnt(1)\nv_cmp_ne_u32 vcc, 0x{MAGIC:x}, v{b}\ns_cbranch_vccz {lab}_d")
        k(f"s_add_u32 s7, s7, 1\ns_cmp_lt_u32 s7, 0x10000\ns_cbranch_scc1 {lab}_b")
    else:
        k(f"{lab}_b:")
        k(ld(3) + f"\ns_waitcnt vmcnt(0)\nv_cmp_ne_u32 vcc, 0x{MAGIC:x}, v3")
        k(f"s_cbranch_vccz {lab}_d\ns_add_u32 s7, s7, 1\ns_cmp_lt_u32 s7, 0x10000\ns_cbranch_scc1 {lab}_b")
    k(f"{lab}_c:")
    k(f"s_waitcnt vmcnt(0)\n{lab}_d:\ns_barrier")

def handoff(k, ph, tag, mid=(), delay=True, nopoll=False):
    lab = f"k1_h{ph}"
    k(f"s_lshl_b32 s63, s{S_TT}, 11\ns_add_u32 s63, s63, {ph*32768}")
    k(f"v_lshlrev_b32 v2, 3, v{V_L16}\ns_lshl_b32 s6, s{S_MM}, 2\nv_add_u32 v2, s6, v2\nv_mov_b32 v3, 0x{MAGIC:x}")
    if ph == 2 and "2" in OPT.pall:
        k(f"v_bfe_u32 v4, v{V_L16}, 4, 2\nv_lshl_add_u32 v4, v1, 2, v4\nv_lshlrev_b32 v4, 2, v4\ns_lshl_b32 s6, s{S_MM}, 7\nv_add_u32 v4, s6, v4")
    else:
        k(f"v_bfe_u32 v4, v{V_L16}, 4, 4\nv_lshlrev_b32 v4, 2, v4\ns_lshl_b32 s6, s{S_MM}, 7\nv_add_u32 v4, s6, v4")
    k.wait(vm=tag, barrier=True)
    k(f"s_cmp_eq_u32 s{S_WAVE}, 1\ns_cbranch_scc0 {lab}_a\ns_mov_b64 exec, 0xffff")
    k(f"buffer_store_dword v3, v2, {sr(S_K,4)}, s63 offen sc1\ns_mov_b64 exec, -1")
    k(f"{lab}_a:")
    k.run(mid)
    if nopoll: return
    if str(ph) in OPT.pall:
        pollall(k, lab, 4); k.vm = []
        return
    k(f"s_cmp_eq_u32 s{S_WAVE}, 0\ns_cbranch_scc0 {lab}_c\ns_mov_b32 s7, 0")
    if delay: k(f"s_sleep {OPT.pdelay}")
    pollloop(k, lab, 4)
    k.vm = []

def st(k, name):
    names = OPT.fts.split(',')
    if name in names:
        k.stamp(1 + names.index(name))
        if getattr(k, 'prof', False): k("s_waitcnt lgkmcnt(0)"); k.lg = []

def rest(k, ncw):
    k.srd(S_X, 54, 4*2048*1024, WS_PART)
    k.srd(S_M, 54, 2048*1024, WS_H2)
    k(f"s_lshl_b32 s6, s{S_TT}, 4\ns_add_u32 s6, s6, s{S_MM}\ns_lshr_b32 s7, s6, 1\ns_lshl_b32 s7, s7, 14\ns_and_b32 s6, s6, 1\ns_lshl_b32 s6, s6, 7\ns_add_u32 s44, s7, s6")
    st(k, "s1")
    n1 = min(OPT.fc1, C_NW - ncw)
    PR, PA, AC, T, XF = 64, 96, 144, 160, 168
    handoff(k, 1, "PST", [g for j in range(ncw, ncw + n1) for g in c_w(j)] + ([] if OPT.mearly else [m_finish]), delay=False, nopoll=OPT.prog); ncw += n1
    k.lg = []
    if OPT.prog:
        k("s_barrier\ns_mov_b32 s7, 0\ns_mov_b32 s46, 0")
        k("k1_pg:")
        k(f"buffer_load_dword v3, v4, {sr(S_K,4)}, s63 offen sc1\ns_waitcnt vmcnt(0)\nv_cmp_eq_u32 vcc, 0x{MAGIC:x}, v3\ns_add_u32 s7, s7, 1")
        k("s_cmp_ge_u32 s7, 0x10000\ns_cselect_b32 s47, -1, vcc_lo\ns_andn2_b32 s47, s47, s46")
        for c in range(4):
            k(f"s_bfe_u32 s6, s47, {(4<<16) | (4*c)}\ns_cmp_eq_u32 s6, 15\ns_cbranch_scc0 k1_pg{c}\ns_or_b32 s46, s46, {15 << (4*c)}")
            for h in range(2):
                k(f"s_add_u32 s6, s44, {c*0x200000 + h*8192}\nbuffer_load_dwordx4 {vr(PR+(2*c+h)*4,4)}, v24, {sr(S_X,4)}, s6 offen sc1")
            k(f"k1_pg{c}:")
        k("s_cmp_lg_u32 s46, 0xffff\ns_cbranch_scc1 k1_pg")
        k.vm = ["S3"]
    st(k, "y1")
    for i in range(8 if not OPT.prog else 0):
        k(f"s_add_u32 s{S_T0+(i&3)}, s44, {(i>>1)*0x200000 + (i&1)*8192}")
        k.vmop(f"buffer_load_dwordx4 {vr(PR+i*4,4)}, v24, {sr(S_X,4)}, s{S_T0+(i&3)} offen sc1", f"S{i>>1}")
    k.srd(S_W, 54, 2048*1024, WS_X1)
    k(f"s_add_u32 s{S_T0+4}, s44, 8192")
    for wi in range(3):
        for pc in range(2):
            for h in range(2): k(f"ds_read_b128 {vr(PA+wi*16+pc*8+h*4,4)}, v28 offset:{wi*2048 + pc*1024 + h*64}")
    n2 = min(OPT.fc2, C_NW - ncw)
    for j in range(ncw, ncw + n2): k.run(c_w(j))
    ncw += n2
    for d in range(8): k(f"v_lshlrev_b32 v{XF+2*d}, 16, v{XR+d}\nv_and_b32 v{XF+2*d+1}, 0xffff0000, v{XR+d}")
    for sp in range(4):
        k.wait(vm=f"S{sp}" if not OPT.prog else "S3")
        for d in range(8):
            w = PR + sp*8 + d; t_ = T + 2*(d & 3)
            if sp == 0: k(f"v_lshlrev_b32 v{AC+2*d}, 16, v{w}\nv_and_b32 v{AC+2*d+1}, 0xffff0000, v{w}")
            else:
                k(f"v_lshlrev_b32 v{t_}, 16, v{w}\nv_and_b32 v{t_+1}, 0xffff0000, v{w}")
                k(f"v_pk_add_f32 {vr(AC+2*d,2)}, {vr(AC+2*d,2)}, {vr(t_,2)}")
    k("s_waitcnt lgkmcnt(0)")
    st(k, "p")
    for d in range(8): k(f"v_pk_fma_f32 {vr(AC+2*d,2)}, {vr(AC+2*d,2)}, {vr(PA+2*d,2)}, {vr(XF+2*d,2)}")
    for d in range(8): k(f"v_cvt_pk_bf16_f32 v{XR+d}, v{AC+2*d}, v{AC+2*d+1}")
    for d in range(8): k(f"v_lshlrev_b32 v{AC+2*d}, 16, v{XR+d}\nv_and_b32 v{AC+2*d+1}, 0xffff0000, v{XR+d}")
    def wsum(r):
        k(f"s_nop 1\nv_add_f32 v{r}, v{r}, v{r} row_ror:8")
        for sw in ("v_permlane16_swap_b32", "v_permlane32_swap_b32"):
            k(f"v_mov_b32 v{r+1}, v{r}\ns_nop 1\n{sw} v{r+1}, v{r}\ns_nop 1\nv_add_f32 v{r}, v{r}, v{r+1}")
    SO = ("s44", f"s{S_T0+4}")
    for i in range(4): k(f"v_pk_add_f32 {vr(T+2*i,2)}, {vr(AC+2*i,2)}, {vr(AC+8+2*i,2)}")
    for i in range(2): k(f"v_pk_add_f32 {vr(T+2*i,2)}, {vr(T+2*i,2)}, {vr(T+4+2*i,2)}")
    k(f"v_pk_add_f32 {vr(T,2)}, {vr(T,2)}, {vr(T+2,2)}\nv_add_f32 v{T}, v{T}, v{T+1}")
    for pc in range(2): k.vmop(f"buffer_store_dwordx4 {vr(XR+pc*4,4)}, v24, {sr(S_W,4)}, {SO[pc]} offen sc1", "HST")
    wsum(T)
    k(f"v_mul_f32 v14, {hexf(-1/128)}, v{T}")
    for i in range(8): k(f"v_pk_add_f32 {vr(AC+2*i,2)}, {vr(AC+2*i,2)}, v[14:15] op_sel_hi:[1,0]")
    for i in range(2): k(f"v_pk_mul_f32 {vr(T+2*i,2)}, {vr(AC+2*i,2)}, {vr(AC+2*i,2)}")
    for i in range(2, 8): k(f"v_pk_fma_f32 {vr(T+2*(i&1),2)}, {vr(AC+2*i,2)}, {vr(AC+2*i,2)}, {vr(T+2*(i&1),2)}")
    k(f"v_pk_add_f32 {vr(T,2)}, {vr(T,2)}, {vr(T+2,2)}\nv_add_f32 v{T}, v{T}, v{T+1}")
    wsum(T)
    k(f"ds_write_b32 v30, v14\nds_write_b32 v30, v{T} offset:128")
    for i in range(8): k(f"v_pk_mul_f32 {vr(AC+2*i,2)}, {vr(AC+2*i,2)}, {vr(PA+32+2*i,2)}")
    k("s_waitcnt lgkmcnt(0)\ns_barrier")
    k(f"ds_read_b128 {vr(T,4)}, v29\nds_read_b128 {vr(T+4,4)}, v29 offset:128\ns_waitcnt lgkmcnt(1)")
    k(f"v_pk_add_f32 v[12:13], {vr(T,2)}, {vr(T+2,2)}\nv_add_f32 v12, v12, v13\nv_mul_f32 v12, {hexf(-0.25)}, v12")
    for h in range(2): k(f"v_pk_add_f32 {vr(T+2*h,2)}, {vr(T+2*h,2)}, v[12:13] op_sel_hi:[1,0]")
    k(f"v_add_f32 v14, v14, v12\nv_pk_mul_f32 {vr(T,2)}, {vr(T,2)}, {vr(T,2)}\nv_pk_fma_f32 {vr(T,2)}, {vr(T+2,2)}, {vr(T+2,2)}, {vr(T,2)}\ns_waitcnt lgkmcnt(0)")
    k(f"v_pk_add_f32 {vr(T+4,2)}, {vr(T+4,2)}, {vr(T+6,2)}\nv_add_f32 v{T}, v{T}, v{T+1}\nv_add_f32 v{T+4}, v{T+4}, v{T+5}")
    k(f"v_mov_b32 v12, {hexf(1e-5)}\nv_fmac_f32 v12, {hexf(0.25)}, v{T}\nv_fmac_f32 v12, {hexf(1/512)}, v{T+4}\nv_rsq_f32 v12, v12\ns_nop 0")
    k("v_mul_f32 v14, v14, v12\nv_sub_f32 v14, 0, v14")
    for pc in range(2):
        for i in range(4*pc, 4*pc+4): k(f"v_pk_fma_f32 {vr(PA+16+2*i,2)}, {vr(PA+32+2*i,2)}, v[14:15], {vr(PA+16+2*i,2)} op_sel_hi:[1,0,1]")
        for i in range(4*pc, 4*pc+4): k(f"v_pk_fma_f32 {vr(AC+2*i,2)}, {vr(AC+2*i,2)}, v[12:13], {vr(PA+16+2*i,2)} op_sel_hi:[1,0,1]")
        for d in range(4*pc, 4*pc+4): k(f"v_cvt_pk_bf16_f32 v{PR+d}, v{AC+2*d}, v{AC+2*d+1}")
        k.vmop(f"buffer_store_dwordx4 {vr(PR+4*pc,4)}, v24, {sr(S_M,4)}, {SO[pc]} offen sc1", "HST")
    CA = lambda m, t, tb: 64 + ((t*2+m)*2+tb)*4
    CW = lambda j, m, t, n=4, o=0: (ar if (j >> 1) & 1 else vr)((128 if (j >> 1) & 1 else 160) + (((j & 1)*6+t)*2+m)*4 + o, n)
    CB = lambda j, tb: (j*2+tb)*4
    V_CW = 8
    k(f"v_lshrrev_b32 v56, 8, v{V_L16}\nv_bfe_u32 v57, v{V_L16}, 6, 2\nv_bfe_u32 v58, v{V_L16}, 4, 2")
    k("v_lshl_add_u32 v59, v56, 2, v57\nv_mul_u32_u24 v60, 192, v59\nv_lshl_add_u32 v60, v58, 3, v60\nv_and_b32 v61, 1, v56")
    for par in range(2):
        k(f"v_xor_b32 v62, {par}, v61\nv_lshl_add_u32 v{V_CW+par}, v62, 5, v60\nv_add_u32 v{V_CW+2+par}, {5*C_W}, v{V_CW+par}\nv_add_u32 v{V_CW+4+par}, {10*C_W}, v{V_CW+par}")
    k(f"s_lshl_b32 s6, s{S_TT}, 2\ns_add_u32 s6, s6, s{S_WAVE}\ns_lshl_b32 s44, s6, 15")
    k(f"s_mul_i32 s6, s6, {2*43*1024}\ns_mul_i32 s7, s{S_MM}, 3072\ns_add_u32 s6, s6, s7\ns_add_u32 s6, s6, 0x{WS_HF:x}")
    k(f"s_add_u32 s{S_X}, s54, s6\ns_addc_u32 s{S_X+1}, s55, 0\ns_mov_b32 s{S_X+2}, {43*1024+3072}")
    k(f"s_mov_b32 s{S_O}, s{S_X}\ns_mov_b32 s{S_O+1}, s{S_X+1}\ns_cmp_eq_u32 s{S_MM}, 14\ns_cselect_b32 s{S_O+2}, 0, s{S_X+2}")
    def c_reads(p):
        r = []
        for t in range(6):
            for m in range(2):
                for j in (2*p, 2*p+1):
                    sl = cperm()[j % C_NW]; bank = sl // 5; off = (sl % 5)*C_W
                    r += [L(f"ds_read_b64_tr_b16 {CW(j,m,t,2,2*h)}, v{V_CW+2*bank+(t&1)} offset:{off + m*6144 + h*3072 + (t>>1)*64}", f"R{p}_{t}") for h in range(2)]
        return r
    if OPT.loc:
        k(f"s_lshl_b32 s6, s{S_TT}, 2\ns_and_b32 s7, s{S_MM}, 3\ns_add_u32 s6, s6, s7\ns_lshl_b32 s6, s6, 2\ns_add_u32 s6, s6, s{S_WAVE}\ns_lshl_b32 s6, s6, 16")
        k(f"s_lshr_b32 s7, s{S_MM}, 2\ns_lshl_b32 s7, s7, 12\ns_add_u32 s6, s6, s7\ns_add_u32 s6, s6, 0x{WS_OF:x}\ns_add_u32 s56, s54, s6\ns_addc_u32 s57, s55, 0\ns_mov_b32 s58, {3*16384+4096}")
    st(k, "s2")
    n3 = min(OPT.fc3, C_NW - ncw)
    k.lg = []
    assert ncw - n2 >= 2
    handoff(k, 2, "HST", [g for j in range(ncw, ncw + n3) for g in c_w(j)] + c_reads(0), delay=OPT.fdl2); ncw += n3
    st(k, "y2")
    assert ncw >= 4
    k(f"s_cmp_eq_u32 s{S_MM}, 15\ns_cbranch_scc1 k1_c15")
    def c_b(j):
        return [[f"s_add_u32 s{S_T0+tb}, s44, {tb*16384 + (j>>2)*4096}",
                 V(f"buffer_load_dwordx4 {ar(CB(j,tb),4)}, v{V_L16}, {sr(S_M,4)}, s{S_T0+tb} offen offset:{(j&3)*1024} sc1", f"CB{j}")] for tb in range(2)]
    nb = OPT.fb0
    for j in range(nb): k.run(c_b(j))
    cl = clean_ops()
    nd = 0
    for p in range(8):
        if p == 7:
            st(k, "c7")
            k.wait(vm="CB15", lg="R7_1")
            mq = []; vq = []; n_ = 0
            for u in range(3):
                for tb in range(2):
                    o = 32 + (n_ & 3)*4
                    for h in range(2):
                        t = 2*u + h
                        for m in range(2):
                            d = vr(CA(m, t, tb), 4)
                            for i, j in enumerate((14, 15) if m == 0 else (15, 14)):
                                mq.append(It(f"{MF} {d}, {CW(j,m,t)}, {ar(CB(j,tb),4)}, {d}", gives=f"D{t}{tb}" if (m and i) else None, needs={"RR": 0} if len(mq) == 16 else None))
                        a = CA(0, t, tb); b = CA(1, t, tb)
                        vq += [It(f"v_mul_f32 v{a+i}, v{a+i}, v{b+i}", needs={f"D{t}{tb}": 8}) for i in range(4)]
                        vq += [It(f"v_cvt_pk_bf16_f32 v{o+2*h+e}, v{a+2*e}, v{a+2*e+1}") for e in range(2)]
                    vq.append(It(V(f"buffer_store_dwordx4 {vr(o,4)}, v{V_L16}, {sr(S_O if u else S_X,4)}, s{S_T0+tb} offen offset:{u*1024} sc1", "GST"), cost=2))
                    n_ += 1
            merge(k, mq, vq, [It(f"s_mov_b32 s{S_T0}, 0\ns_mov_b32 s{S_T0+1}, {43*1024}", cost=0), It(W(lg='all'), cost=0, gives="RR", needs={"D10": 0})])
            break
        mf = []; n_ = 0
        for t in range(6):
            for m in range(2):
                for tb_ in range(2):
                    tb = tb_ if m == 0 else 1 - tb_
                    d = vr(CA(m, t, tb), 4)
                    for i, j in enumerate((2*p, 2*p+1) if n_ % 2 == 0 else (2*p+1, 2*p)):
                        mf.append(f"{MF} {d}, {CW(j,m,t)}, {ar(CB(j,tb),4)}, {d if (p or i) else '0'}")
                    n_ += 1
        vm = []
        while len(vm) < OPT.fvm - 1:
            wok = ncw < 16 and (ncw < C_NW or p >= (ncw - C_NW)//2 + 1)
            if wok and (nb >= 16 or ncw//2 - 2 <= nb//2): vm += c_w(ncw); ncw += 1
            elif nb < 16: vm += c_b(nb); nb += 1
            elif ncw == 16 and nd < OPT.fde and c_last(dperm()[nd]) <= p - 1: vm += d_w(nd); nd += 1
            else: break
        assert ncw > 2*p + 3 + 2 or ncw == 16, (p, ncw)
        if p >= OPT.lc0:
            for _ in range(OPT.lcn):
                if cl: vm.insert((len(vm)*(_+1))//(OPT.lcn+1), cl.pop(0))
        if OPT.cx == 1: vm = [x for x in vm if "m0" not in x[0]]
        if OPT.cx == 3: vm = []
        gaps = spread(48, c_reads(p+1) if OPT.cx != 2 else [], vm)
        if p == 1: st(k, "c1")
        if p == 4: st(k, "c4")
        add(gaps, -1, W(vm=f"CB{2*p+1}", lg=f"R{p}_1"))
        front(gaps, 12, W(lg=f"R{p}_3")); front(gaps, 26, W(lg=f"R{p}_5"))
        if p >= 1: front(gaps, 0, W(vm=f"CW{2*p+3}", barrier=True))
        emit(k, mf, gaps)
    assert nb == 16 and ncw == 16 and not cl
    k("s_branch k1_c_done")
    k("k1_c15:")
    save = list(k.vm); k.vm = []
    for i in range(nd): k.run(d_w(i))
    k.run(clean_ops())
    k.vm = save
    k("k1_c_done:")
    V_DA = 8
    k("v_lshlrev_b32 v60, 7, v59\nv_lshl_add_u32 v60, v58, 3, v60\nv_bfe_u32 v61, v59, 1, 2\nv_lshrrev_b32 v62, 1, v1\nv_lshl_add_u32 v60, v62, 13, v60")
    for t in range(4):
        k(f"v_xor_b32 v62, {t}, v61\nv_lshl_add_u32 v{V_DA+t}, v62, 5, v60\nv_add_u32 v{V_DA+4+t}, 0x10000, v{V_DA+t}\nv_add_u32 v{V_DA+8+t}, 0x20000, v{V_DA+t}")
    k(f"s_lshl_b32 s6, s{S_TT}, 1\ns_lshr_b32 s7, s{S_MM}, 3\ns_add_u32 s6, s6, s7\ns_lshl_b32 s6, s6, 1\ns_and_b32 s7, s{S_WAVE}, 1\ns_add_u32 s6, s6, s7\ns_lshl_b32 s44, s6, 1")
    k(f"s_lshr_b32 s46, s{S_WAVE}, 1\ns_mul_i32 s6, s44, {43*1024}\ns_lshl_b32 s7, s46, 11\ns_add_u32 s6, s6, s7\ns_add_u32 s6, s6, 0x{WS_HF:x}")
    k(f"s_add_u32 s{S_M}, s54, s6\ns_addc_u32 s{S_M+1}, s55, 0\ns_sub_u32 s{S_M+2}, {2*43*1024}, s7")
    k(f"s_add_u32 s44, s44, s46\ns_mul_i32 s46, s46, {43*1024}\ns_sub_u32 s47, {43*1024}, s46")
    k(f"s_lshl_b32 s44, s44, 14\ns_and_b32 s7, s{S_MM}, 7\ns_lshl_b32 s6, s7, 7\ns_add_u32 s6, s6, s44")
    k(f"s_add_u32 s{S_V}, s98, s6\ns_addc_u32 s{S_V+1}, s99, 0\ns_sub_u32 s{S_V+2}, {2048*1024}, s6")
    k(f"s_lshl_b32 s6, s7, 11\ns_add_u32 s44, s44, s6\ns_lshl_b32 s7, s7, 8\ns_add_u32 s7, s7, {PAR2+6144}")
    k(f"v_bfe_u32 v57, v{V_L16}, 4, 4\nv_lshlrev_b32 v24, 10, v57\nv_lshl_add_u32 v24, v56, 4, v24")
    k("v_lshlrev_b32 v25, 4, v56\nv_add_u32 v25, s7, v25")
    XS = dperm()[2]*D_U
    k(f"v_lshl_add_u32 v28, v1, 12, v{V_L16}\nv_add_u32 v28, {XS}, v28\nv_xor_b32 v29, 0x2000, v28")
    DA = lambda t, tb: 64 + (tb*4+t)*4
    DW = lambda i, e, t: 128 + (((i & 1)*2+e)*4+t)*4
    DB = lambda i, e, tb: ((i*2+e)*2+tb)*4
    def d_b(i):
        return [[f"s_add_u32 s{S_T0+tb}, s{46+tb}, {i*4096}", V(f"buffer_load_dwordx4 {ar(DB(i,e,tb),4)}, v{V_L16}, {sr(S_M,4)}, s{S_T0+tb} offen offset:{e*1024} sc1", f"DB{i}")] for tb in range(2) for e in range(2)]
    def d_reads(i):
        base = dperm()[i % D_NW]*D_U; bank = base >> 16; off = base & 0xffff
        return [L(f"ds_read_b64_tr_b16 {vr(DW(i,e,t)+2*h,2)}, v{V_DA+4*bank+t} offset:{off + e*4096 + h*2048}", f"R{i}_{t}") for t in range(4) for e in range(2) for h in range(2)]
    st(k, "s3")
    k.lg = []
    assert nd >= 1
    xl = [[V(f"buffer_load_dwordx4 {vr(XR+4*s_,4)}, v{V_L16}, {sr(S_W,4)}, s44 offen offset:{1024*s_} sc1", "X1")] for s_ in range(2)]
    n4 = min(OPT.fd1, D_NW - nd)
    gbr = [L(f"ds_read_b128 {vr(32+4*t,4)}, v25 offset:{64*t}", "GB") for t in range(4)]
    handoff(k, 3, "GST", xl + [g for i in range(nd, nd + n4) for g in d_w(i)] + gbr + d_reads(0), delay=OPT.fdl3); nd += n4
    npub = nd
    assert OPT.fdr <= nd - n4 - 1
    st(k, "y3")
    assert nd >= 2
    nb = OPT.fdb0
    for i in range(nb): k.run(d_b(i))
    for d in range(8): k(f"v_lshlrev_b32 v{96+2*d}, 16, v{XR+d}\nv_and_b32 v{97+2*d}, 0xffff0000, v{XR+d}")
    lastbar = -1
    for i in range(11):
        mf = []; n_ = 0
        if i < 10:
            for t in range(4):
                for tb_ in range(2):
                    tb = tb_ if t % 2 == 0 else 1 - tb_
                    d = vr(DA(t, tb), 4)
                    for c, e in enumerate((0, 1) if n_ % 2 == 0 else (1, 0)):
                        mf.append(f"{MF} {d}, {vr(DW(i,e,t),4)}, {ar(DB(i,e,tb),4)}, {d if (i or c) else '0'}")
                    n_ += 1
        else:
            k.wait(vm="DB10", lg='all')
            k(f"s_cmp_ge_u32 s{S_WAVE}, 2\ns_cbranch_scc1 k1_d_skip")
            for e in (1, 0):
                if e == 0: k("k1_d_skip:")
                for tb in (1, 0):
                    for t in range(4):
                        d = vr(DA(t, tb), 4)
                        k(f"{MF} {d}, {vr(DW(i,e,t),4)}, {ar(DB(i,e,tb),4)}, {d}")
            break
        bar = i + 1 >= npub or i in (OPT.fdr, OPT.fdr + 1)
        if bar: lastbar = i
        vm = []
        if nb < 11: vm += d_b(nb); nb += 1
        if nd < 11 and (nd < D_NW or lastbar >= nd - D_NW + 1) and nd <= nb + OPT.fdl: vm = vm[:2] + d_w(nd) + vm[2:]; nd += 1
        assert nd > i + 2 or nd == 11, (i, nd)
        k.wait(vm=f"DB{i}", lg=f"R{i}_1")
        gaps = {}
        if bar: add(gaps, 0, W(vm=f"DW{i+1}", barrier=True))
        add(gaps, 6, W(lg=f"R{i}_3"))
        rd = d_reads(i+1)
        for g in range(16):
            if vm and g % 2 == 1: add(gaps, g, *vm.pop(0))
            elif rd: add(gaps, g, rd.pop(0), rd.pop(0))
        assert not vm and not rd
        emit(k, mf, gaps)
    assert nb == 11 and nd == 11 and lastbar >= 3
    st(k, "d1")
    k("s_nop 3")
    for t in range(4): k(f"ds_write_b128 v28, {vr(DA(t,1),4)} offset:{t*1024}")
    for e in range(0, 16, 2): k(f"v_pk_fma_f32 {vr(96+e,2)}, {vr(64+e,2)}, {vr(32+e,2)}, {vr(96+e,2)}")
    k("s_waitcnt lgkmcnt(0)\ns_barrier")
    for t in range(4): k(f"ds_read_b128 {vr(64+4*t,4)}, v29 offset:{t*1024}")
    for s_ in range(2):
        k(f"s_waitcnt lgkmcnt({2-2*s_})")
        for e in range(8*s_, 8*s_+8, 2): k(f"v_pk_fma_f32 {vr(64+e,2)}, {vr(64+e,2)}, {vr(32+e,2)}, {vr(96+e,2)}")
        o = 112 + 4*s_
        for d in range(4): k(f"v_cvt_pk_bf16_f32 v{o+d}, v{64+8*s_+2*d}, v{65+8*s_+2*d}")
        k(f"s_nop 1\nv_permlane32_swap_b32 v{o}, v{o+2}\nv_permlane32_swap_b32 v{o+1}, v{o+3}\ns_nop 1\nv_permlane16_swap_b32 v{o}, v{o+2}\nv_permlane16_swap_b32 v{o+1}, v{o+3}")
        k(f"buffer_store_dwordx4 {vr(o,4)}, v24, {sr(S_V,4)}, 0 offen offset:{64*s_} {OPT.st5}")
```

```python
import math, struct

NAME = "adaLN_cond__gqa_block_cached__glu_gated_bilinear__prompt"

KA_X, KA_K, KA_V, KA_WQ, KA_WO, KA_BX, KA_WG, KA_WU, KA_WD, KA_C, KA_WM, KA_OUT, KA_DBG, KA_WS = [8*i for i in range(14)]

WS_MOD  = 0x0
WS_MODP = 0x4000
WS_FLAG = 0x640000
WS_XH   = 0x10000
WS_H2   = 0x210000
WS_X1   = 0x410000
WS_OF   = 0x800000
WS_PART = 0x1800000
WS_HF   = 0x2800000
WS_DBG  = 0x4000000

MAGIC = 0x5ac3e19b

def f2u(x):
    return struct.unpack("<I", struct.pack("<f", x))[0]

def hexf(x):
    return "0x%08x" % f2u(x)

def vr(b, n=1):
    return f"v{b}" if n == 1 else f"v[{b}:{b+n-1}]"
def ar(b, n=1):
    return f"a{b}" if n == 1 else f"a[{b}:{b+n-1}]"
def sr(b, n=1):
    return f"s{b}" if n == 1 else f"s[{b}:{b+n-1}]"

class Kern:
    def __init__(self, name, grid, block, lds, vgpr, accum, sgpr=96):
        self.name = name; self.grid = grid; self.block = block; self.lds = lds
        self.vgpr = vgpr; self.accum = accum; self.sgpr = sgpr
        self.L = []
        self.vm = []
        self.lg = []
        self.nlab = 0
    def __call__(self, s):
        for ln in s.split("\n"):
            ln = ln.strip()
            if ln: self.L.append("    " + ln if not ln.endswith(":") else ln)
    def label(self, base):
        self.nlab += 1
        return f"{self.name}_{base}_{self.nlab}"
    def c(self, s):
        self.L.append("    ; " + s)
    def vmop(self, s, tag):
        self(s); self.vm.append(tag)
        assert len(self.vm) <= 63, "too many outstanding vmem ops"
    def vm_count_for(self, tag):
        idx = [i for i, t in enumerate(self.vm) if t == tag]
        if not idx: return None
        return len(self.vm) - 1 - idx[-1]
    def vmwait(self, tag, extra=""):
        n = self.vm_count_for(tag)
        if n is None:
            if extra: self(f"s_waitcnt {extra}")
            return
        self(f"s_waitcnt vmcnt({n}) {extra}")
        self.vm = self.vm[len(self.vm) - n:] if n else []
    def lgop(self, s, tag):
        self(s); self.lg.append(tag)
    def wait(self, vm=None, lg=None, barrier=False):
        parts = []
        if vm is not None:
            n = self.vm_count_for(vm)
            if n is not None:
                parts.append(f"vmcnt({n})"); self.vm = self.vm[len(self.vm) - n:] if n else []
        if lg is not None:
            if lg == 'all': n = 0 if self.lg else None
            else:
                idx = [i for i, t in enumerate(self.lg) if t == lg]
                n = len(self.lg) - 1 - idx[-1] if idx else None
            if n is not None:
                n = min(n, 15)
                parts.append(f"lgkmcnt({n})"); self.lg = self.lg[len(self.lg) - n:] if n else []
        if parts: self("s_waitcnt " + " ".join(parts))
        if barrier: self("s_barrier")
    def run(self, items):
        for f in items:
            if isinstance(f, (list, tuple)): self.run(f)
            else: f(self) if callable(f) else self(f)
    def dbg_begin(self, kidx):
        if not OPT.dbg: return
        self.sgpr = 102
        self(f"s_load_dwordx2 s[92:93], s[0:1], {KA_DBG}\ns_memrealtime s[96:97]\ns_waitcnt lgkmcnt(0)")
        self(f"s_sub_u32 s92, s92, {kidx*512}\ns_subb_u32 s93, s93, 0\ns_mov_b32 s94, 1280\ns_mov_b32 s95, 0x20000")
    def dbg_mark(self, slot, va, vb, start=False):
        if not OPT.dbg: return
        if not start: self("s_memrealtime s[96:97]\ns_waitcnt lgkmcnt(0)")
        else: self("s_not_b32 s96, s96")
        self(f"v_mov_b32 v{va}, s96\nv_mov_b32 v{vb}, {slot*4}\ns_mov_b64 exec, 1")
        for o in (0, 512, 1024): self(f"buffer_atomic_umax v{va}, v{vb}, s[92:95], 0 offen offset:{o}")
        self("s_mov_b64 exec, -1")
    def stamp(self, idx):
        if not getattr(self, 'prof', False): return
        if idx == 0 and OPT.hdbg:
            self.sgpr = 102; self(f"s_load_dwordx2 s[100:101], s[0:1], {KA_DBG}")
        self(f"s_memtime s[{64+4*idx}:{65+4*idx}]\ns_memrealtime s[{66+4*idx}:{67+4*idx}]")
    def dump_stamps(self, n, wsreg, vt):
        if not getattr(self, 'prof', False): return
        self("s_waitcnt lgkmcnt(0)")
        if OPT.hdbg:
            kid = int(self.name[1]); lab = self.label("nd")
            self(f"v_readfirstlane_b32 s60, v0\ns_lshr_b32 s60, s60, 6\ns_xor_b32 s61, s2, {OPT.hdbg-1}\ns_or_b32 s60, s60, s61\ns_cbranch_scc1 {lab}")
            self(f"s_add_u32 s60, s100, {(1-kid)*512}\ns_addc_u32 s61, s101, 0\ns_mov_b32 s62, 256\ns_mov_b32 s63, 0x20000\nv_mov_b32 v{vt}, 0")
            for i in range(n):
                self(f"v_mov_b32 v{vt+2}, s{66+4*i}\nbuffer_store_dword v{vt+2}, v{vt}, s[60:63], 0 offen offset:{kid*16+4*i}\ns_nop 1")
            self(f"{lab}:")
            return
        self(f"s_add_u32 s60, s{wsreg}, 0x{WS_DBG + (int(self.name[1]) if self.name[1].isdigit() else 1)*0x10000:x}\ns_addc_u32 s61, s{wsreg+1}, 0\ns_mov_b32 s62, 0x100000\ns_mov_b32 s63, 0x20000")
        self(f"v_lshrrev_b32 v{vt}, 6, v0\nv_lshl_add_u32 v{vt}, s2, 2, v{vt}\nv_lshlrev_b32 v{vt}, 6, v{vt}")
        for i in range(n):
            self(f"v_mov_b32 v{vt+2}, s{64+4*i}\nv_mov_b32 v{vt+3}, s{66+4*i}")
            self(f"buffer_store_dwordx2 v[{vt+2}:{vt+3}], v{vt}, s[60:63], 0 offen offset:{8*i}\ns_nop 1")
    def code_pf(self, start, end, vt, st, idx_sgpr):
        lab = self.label("pc")
        self(f"s_getpc_b64 s[{st}:{st+1}]")
        self(f"{lab}:")
        self(f"s_add_u32 s{st}, s{st}, {start}-{lab}\ns_addc_u32 s{st+1}, s{st+1}, 0")
        self(f"v_and_b32 v{vt}, 63, v0\nv_lshlrev_b32 v{vt}, 7, v{vt}\ns_lshl_b32 s{st+2}, s{idx_sgpr}, 13\nv_add_u32 v{vt}, s{st+2}, v{vt}")
        self(f"v_min_u32 v{vt}, {end}-{start}-4, v{vt}")
        self(f"global_load_dword v{vt+1}, v{vt}, s[{st}:{st+1}]")
    def srd(self, d, base, nbytes, off=0):
        if off:
            self(f"s_add_u32 s{d}, s{base}, 0x{off:x}")
            self(f"s_addc_u32 s{d+1}, s{base+1}, 0")
        else:
            self(f"s_mov_b32 s{d}, s{base}")
            self(f"s_mov_b32 s{d+1}, s{base+1}")
        self(f"s_mov_b32 s{d+2}, 0x{nbytes:x}")
        self(f"s_mov_b32 s{d+3}, 0x20000")
    def text(self):
        return f".globl {self.name}\n.p2align 8\n.type {self.name},@function\n{self.name}:\n" + "\n".join(self.L) + "\n"
    def desc(self):
        return f""".p2align 6
.amdhsa_kernel {self.name}
  .amdhsa_next_free_vgpr {self.vgpr}
  .amdhsa_next_free_sgpr {self.sgpr}
  .amdhsa_accum_offset {self.accum}
  .amdhsa_group_segment_fixed_size 0
  .amdhsa_kernarg_size 112
  .amdhsa_user_sgpr_count 2
  .amdhsa_user_sgpr_kernarg_segment_ptr 1
  .amdhsa_system_sgpr_workgroup_id_x 1
  .amdhsa_float_denorm_mode_32 3
  .amdhsa_float_denorm_mode_16_64 3
.end_amdhsa_kernel
"""
    def launch(self):
        if self.name == NAME + "_kernel" and not OPT.aslist: return f"; @launch grid=({self.grid},1,1) block=({self.block},1,1) lds={self.lds}\n"
        return f"; @launch kernel={self.name} grid=({self.grid},1,1) block=({self.block},1,1) lds={self.lds}\n"

HEADER = """; adaLN-conditioned block: LN+modulate -> Q proj -> attention over cached K/V -> O proj -> LN+modulate -> bilinear GLU
; k1: one workgroup per CU (4 waves x 512 registers, 160 KB LDS, so all 256 are co-resident): (head, 256 queries):
;   recomputes the true row max over all keys and redoes the attention with it (k1_fallback).
"""
def assemble(kerns):
    s = HEADER + "".join(k.launch() for k in kerns)
    s += '.amdgcn_target "amdgcn-amd-amdhsa--gfx950"\n.text\n'
    seen = []
    for k in kerns:
        if k.name in seen: continue
        seen.append(k.name); s += k.text()
    s += "code_end_marker:\n    s_endpgm\n"
    s += '.section .rodata,"a"\n'
    seen = []
    for k in kerns:
        if k.name in seen: continue
        seen.append(k.name); s += k.desc()
    return s

class Opt:
    st0 = ""; st1 = ""; st2 = "sc1"; st3 = "sc1"; st4 = "sc1"; st5 = "sc1"
    map4 = 1; d2 = 6; pf2 = 0; pf3 = 0; ramp4 = 1; la5 = 4; map5 = 0; hdbg = 0; stz = ""; stm = ""; own = 0; r0 = 1; ownp = 54; r0w = 8; r7 = 0; r7p = 4; r7b = 2; ownc = 52; ownn = 8; early = 1; pall = ""; t2 = 1; t2a = 2; t2b = 5; prog = 1; mearly = 0; apre = 1; awsp = 3; a2 = 1; a2b0 = 8; a2n = 14; l2w = 2; l2d = 2; lateptr = 1; trunc = 0; pp = 0; opt32 = 0; aslist = 1; mk0 = 0; pd0 = 4; dflag = 0; ilv = 1; wpl = 5; ptouch = 1; ptf = ""; mw0 = 2; mw1 = 0; mw2 = 0; loc = 0; lst = ""; lwb = 99; lpo = 2; lsite = 1; lc0 = 1; lcn = 4; f2 = 0; na3 = 18; f2n = 12; f2c = 3; fdr = 2; fdl = 4; fdq = 0; cx = 0; ff = 1; fce = 0; fc1 = 5; fc2 = 2; fc3 = 4; fb0 = 4; fvm = 9; fde = 5; fd1 = 3; fdb0 = 3; fxp = 14; fmp = 12; fdl2 = 0; fdl3 = 0; fts = ""; cpre4 = "0333"; amrg = 1; dearly = 8; slow0 = 0; cmrg = 1; modk1 = 1; xlate = 2; xp = 13; x1late = 0; a0n = 3; mrg = 1; ln1 = 1; kts = "a,y0,s1,y1,s2,y2"; k0t = 1; ax = 0; amix = 1; anob = 0; cpre5 = "03012"; fa = 1; na0 = 8; na1 = 0; na2 = 3; xpf = 3; anr = 16; nb0 = 6; nbs = 3; wlead = 0; cpf2 = 1; na3 = 18; nsc1 = 4; e64 = ""; a64 = ""; barfree = 0; pad = 0; dbg = 0; achain = 1; opf = ""; wpf = ""; bk = 14; vsp = 6; v0 = 12; idle = 0; slowa = 0; slown = 32; ont = ""; fused = 1; cnw = 9; cnb = 4; dnw = 12; dnb = 6; cpre = "030303"; dpre = 8; psleep = 0; pdelay = 8; rep = 16; dmid = 2; fst = "sc1"; fld = "sc1"; serp = 1; prio = 0; lprio = 0; o3 = "xa0123bc"; wqpf = 2; wqnt = "nt"; qko = 4; pvo = 2; xnt = "nt"; cpf = 1; kvnt = "nt"
OPT = Opt()
```

```python
from common import *
from sched import fill, L, V, W, front, emit, It, merge
from k0 import mod_loads, mod_finish, C1
import k1t, k1p

MF = "v_mfma_f32_16x16x32_bf16"

SLOT = 16384
KB = 0
VB = 65536
PARB = 9*SLOT
FLAGB = PARB + 4096
WSLOT = [1, 4, 2, 5, 3, 6, 7, 8]

def O(db, qb): return (db*4+qb)*4
def LA(qb): return 128 + qb*4
def KF(i): return 144 + i*4
def VF(i): return 176 + i*4
ONES = 240
def Q(qb, s): return 128 + (qb*4+s)*4
def S(buf, kb, qb): return 64 + buf*32 + (kb*4+qb)*4
def P(buf, qb): return (32 + buf*16 if buf < 2 else 208 + (buf-2)*16) + qb*4
def MN(qb): return 192 + qb*4
V_KA = 8
V_VA = 12
V_DK = 20
V_DV = 24
V_L16 = 26
V_LS = 28
V_PF = 2
V_T = 208
def XR(slot, qb): return 128 + ((slot%4)*4+qb)*4
def QA(t, qb): return vr(192 + (qb*8+t)*4, 4) if qb < 2 else ar(((qb-2)*8+t)*4, 4)
def HK(b): return (lambda i: 64 + b*32 + i*4)
def HF(buf, qb): return 32 + (buf*4+qb)*4
def PAR(buf): return 64 + buf*16
V_PT = 96
V_WA = 112
V_DW = 124
V_PA = 125
def WF(buf, t): return 128 + (buf*8+t)*4
S_K, S_V, S_W, S_X, S_M, S_O = 8, 12, 16, 20, 24, 28
S_W4 = 32
S_KOFF, S_VOFF = 33, 34
S_CNT = 35
S_T0 = 36
S_RERUN = 44
S_WAVE = 45
S_W1 = 62

def emit_phase(k, mf, gaps):
    for f in gaps.get(-1, []): f(k) if callable(f) else k(f)
    for i, m in enumerate(mf):
        k(m)
        for f in gaps.get(i, []): f(k) if callable(f) else k(f)
    for g in gaps:
        assert g < len(mf), (g, len(mf))

def add(gaps, g, *items):
    gaps.setdefault(g, []).extend(items)

def qk_mfmas(buf, kf=KF, czero=False):
    r = []
    order = {0: [(kb,s,qb) for kb in range(2) for s in range(4) for qb in range(4)],
             1: [(kb,s,qb) for kb in range(2) for qb in range(4) for s in range(4)],
             2: [(kb,s,qb) for qb in range(4) for s in range(4) for kb in range(2)],
             4: [(kb,s if qb%2==0 else 3-s,qb) for kb in range(2) for qb in range(4) for s in range(4)],
             5: [(kb,s if kb%2==0 else 3-s,qb) for qb in range(4) for kb in range(2) for s in range(4)],
             3: [(kb,s,qb if s%2==0 else 3-qb) for kb in range(2) for s in range(4) for qb in range(4)]}[OPT.qko]
    seen = set()
    for kb, s, qb in order:
            if True:
                d = vr(S(buf, kb, qb), 4)
                started = (kb, qb) in seen; seen.add((kb, qb))
                c = d if started else ("0" if czero else vr(MN(qb), 4))
                r.append(f"{MF} {d}, {ar(kf(kb*4+s),4)}, {vr(Q(qb,s),4)}, {c}")
    return r

def pv_mfmas(buf, sumq, vf=VF, czero=False):
    r = []
    for qb in sumq:
        d = ar(LA(qb), 4)
        r.append(f"{MF} {d}, {ar(ONES,4)}, {vr(P(buf,qb),4)}, {'0' if czero else d}")
    order = {0: [(db,qb) for db in range(8) for qb in range(4)],
             1: [(db,qb) for qb in range(4) for db in range(8)],
             3: [(db if qb%2==0 else 7-db,qb) for qb in range(4) for db in range(8)],
             2: [(db,qb if db%2==0 else 3-qb) for db in range(8) for qb in range(4)]}[OPT.pvo]
    for db, qb in order:
        if True:
            d = ar(O(db, qb), 4)
            r.append(f"{MF} {d}, {ar(vf(db),4)}, {vr(P(buf,qb),4)}, {'0' if czero else d}")
    return r

def exps(buf, qbs):
    r = []
    for qb in qbs:
        for kb in range(2):
            for i in range(4):
                x = S(buf, kb, qb) + i
                r.append(f"v_exp_f32{OPT.e64} v{x}, v{x}")
    return r
def cvts(buf, qbs, pb=None):
    pb = buf if pb is None else pb
    r = []
    for qb in qbs:
        for kb in range(2):
            for h in range(2):
                x = S(buf, kb, qb) + 2*h
                r.append(f"v_cvt_pk_bf16_f32 v{P(pb,qb)+kb*2+h}, v{x}, v{x+1}" if not OPT.trunc else f"v_perm_b32 v{P(pb,qb)+kb*2+h}, v{x+1}, v{x}, s53")
    return r
def adds(buf, qbs, addq):
    r = []
    for qb in qbs:
        for kb in range(2):
            for i in range(4):
                x = S(buf, kb, qb) + i
                r.append(f"v_add_f32{OPT.a64} v{V_LS+qb}, v{x}, v{V_LS+qb}" if qb in addq else None)
    return r
def kreads(slot, blk, kf=KF):
    r = []
    for kb in range(2):
        for s in range(4):
            r.append(f"ds_read_b128 {ar(kf(kb*4+s),4)}, v{V_KA+s} offset:{KB+slot*SLOT+blk*8192+kb*4096}")
    return r
def vreads(slot, blk, vf=VF):
    r = []
    for db in range(8):
        for h in range(2):
            r.append(f"ds_read_b64_tr_b16 {ar(vf(db)+2*h,2)}, v{V_VA+db} offset:{slot*SLOT+blk*8192+h*4096}")
    return r
def dma_k(p): return f"buffer_load_dwordx4 v{V_DK+p}, {sr(S_K,4)}, s{S_KOFF} offen offset:{p*1024} {OPT.kvnt} lds"
def dma_v(p): return f"buffer_load_dwordx4 v{V_DV+(p&1)}, {sr(S_V,4)}, s{S_VOFF} offen offset:{p*1024} {OPT.kvnt} lds"

class Cfg:
    la = 4
    wb4 = 0
    nvm = 8
    npk = 10
    ne1 = 33
    nv1 = 11
    v19 = 1
    wb = 0
    pfo = 2
    pfc = (5, 2, 9)
    ppf = 0
    wocnt = 1
    bar2 = 0
    kvspread = 1
    w1pf = 0
    fine = 0
    kvper = 7
    x = 0
    pf = 2
    sumq = [1, 3]
    def addq(self): return [q for q in range(4) if q not in self.sumq]

def pv2_mfmas(pb, sumq, czero=False, order=None):
    r = []
    n = 0
    def pair(d, a0, a1, qb):
        nonlocal n
        js = (0, 1) if n % 2 == 0 else (1, 0); n += 1
        for i, j in enumerate(js):
            r.append(f"{MF} {d}, {ar(a1 if j else a0,4)}, {vr(P(pb+j,qb),4)}, {'0' if (czero and i == 0) else d}")
    for qb in sumq: pair(ar(LA(qb), 4), ONES, ONES, qb)
    for db in range(8):
        for q in range(4):
            qb = q if db % 2 == 0 else 3 - q
            pair(ar(O(db, qb), 4), VF(db), VF(8+db), qb)
    return r

def sm_stream(cfg, u):
    qs = range(4)
    E = exps(u & 1, qs); C = cvts(u & 1, qs, u & 3); A = adds(u & 1, qs, cfg.addq())
    r = []
    for i, e in enumerate(E):
        f = [A[i]] if A[i] else []
        if i % 2 == 1: f.append(C[i//2])
        r.append((e, f))
    return r

def vreads2(slot):
    r = []
    for db in range(8):
        for blk in range(2):
            for h in range(2):
                r.append((db, L(f"ds_read_b64_tr_b16 {ar(VF(8*blk+db)+2*h,2)}, v{V_VA+db} offset:{slot*SLOT+blk*8192+h*4096}", "V")))
    return r

def pack(k, mf, fixed, stream, lds, vm, deadlines=(), keep=False):
    n = len(mf)
    stream = list(stream); lds = list(lds); vm = list(vm)
    ready = []
    k.run(fixed.get(-1, []))
    ne = len(stream); ie = 0
    lastvm = -9; vm0 = list(vm)
    for g in range(n):
        k(mf[g]); k.run(fixed.get(g, []))
        left = 2
        if OPT.barfree and any(isinstance(x, str) and "s_barrier" in x for x in fixed.get(g, [])): left = 2 - OPT.barfree
        want_e = ie < ne and g < n-1 and (g % 2 == 0 or (ne - ie) > (n - g)//2)
        if g % 2 == 1 or not want_e:
            if vm and vm[0][0] <= g and g - lastvm >= (OPT.vsp if len(vm0) <= 8 else 4) and not (lds and lds[0][0] <= g and lds[0][2:] == ('urgent',)):
                k.run(vm.pop(0)[1]); left -= 2; lastvm = g
            else:
                c = [x for x in lds if x[0] <= g]
                c.sort(key=lambda x: 0 if len(x) > 2 else 1)
                if c:
                    lds.remove(c[0]); k.run([c[0][1]]); left -= 1
                    rem = len([y for y in range(g+1, n) if y % 2 == 1]) - 3
                    if len(c) > 1 and len(lds) + len(vm) > rem:
                        lds.remove(c[1]); k.run([c[1][1]]); left -= 1
        if want_e:
            e, f = stream[ie]; k(e); left -= 2
            ready += [(g, ie, x) for x in f]; ie += 1
        must = [x for x in ready if any(x[1] < idx and g + 1 >= dl for idx, dl in deadlines)]
        while ready and ready[0][0] < g and (left > 0 or ready[0] in must or len(ready) > OPT.bk or g == n-1):
            k(ready.pop(0)[2]); left -= 1
    assert ie == ne and not vm and not ready and (keep or not lds), (ie, ne, len(lds), len(vm), ready)
    return lds

R1 = 16

def iteration(k, cfg, t4, part="all", czero=False, pf=(), post=(), label=None, extra=()):
    ks = t4; vs = (t4 - 1) % 4; u = 2*t4
    k.c(f"---- iteration T%4={t4} {part} ----")
    ns = 2*len(cfg.sumq)
    pv = pv2_mfmas((u - 4) & 3, cfg.sumq, czero); npv = len(pv)
    st = sm_stream(cfg, u - 2)[32-R1:] + sm_stream(cfg, u - 1) + sm_stream(cfg, u)[:32-R1]
    dmas = [[f"s_add_u32 m0, s{S_W4}, {KB + ((t4+3)%4)*SLOT}\ns_nop 0" if p == 0 else "", dma_k(p)] for p in range(4)]
    dmas += [[f"s_add_u32 m0, s{S_W4}, {VB + ((t4+2)%4)*SLOT}\ns_add_u32 s{S_KOFF}, s{S_KOFF}, {SLOT}" if p == 0 else "", dma_v(p)] for p in range(4)]
    dmas[-1].append(f"s_add_u32 s{S_VOFF}, s{S_VOFF}, {SLOT}")
    ka = [L(x, "KA") for x in kreads(ks, 0)]; kb = kreads(ks, 1)
    vr_ = vreads2(vs)
    NE1 = cfg.ne1
    NV1 = cfg.nv1
    nvm = 16 if not (cfg.pf and cfg.pfo and cfg.v19) else (18 if part == "pv" else 19)
    bar = {ns-1: [f"s_waitcnt vmcnt({nvm}) lgkmcnt(0)\ns_barrier"]}
    if part == "tail":
        k.lg = []
        if OPT.fa and (OPT.na0 or OPT.na1): bar = {ns-1: ["s_waitcnt vmcnt(0) lgkmcnt(0)\ns_barrier"]}
        return pack(k, pv, bar, st[:R1+32], [(ns + 8*db + 7, x) for db, x in vr_], [(ns, x) for x in extra], keep=True)
    if part in ("all", "pv"):
        k.lg = []
        lds = [(ns, x) for x in ka] + [(ns + 8*db + 7, x) for db, x in vr_[:NV1]]
        pack(k, pv, bar, st[:NE1], lds, [(ns + OPT.v0, d) for d in dmas])
    if label: k(f"{label}:")
    if part in ("all", "first"):
        vm = [(40, [pf[1]])] if pf else []
        fixed = {-1: [W(lg="KA")], 30: [W(lg="KB0")], 46: [W(lg="KB1")]}
        if pf: fixed[38] = [pf[0]]
        if part == "first":
            NE1 = R1; NV1 = 0; k.lg = []
            fixed[-1] = ["s_waitcnt lgkmcnt(0)"]
            vm = [(2, [kv_setup(wh, t), dma_k(p) if wh == 'K' else dma_v(p)]) for wh, t in (('V',2),('K',4),('V',3)) for p in range(4)]
            if cfg.v19:
                dummy = f"s_mov_b32 s6, 0x200000\nbuffer_load_dword v{V_PF+3}, v{V_PF}, {sr(S_O,4)}, s6 offen"
                vm[3][1].append(dummy); vm[11][1].append(dummy)
            post = [f"s_mov_b32 s{S_KOFF}, {5*SLOT}\ns_mov_b32 s{S_VOFF}, {4*SLOT}"]
        lds = [(0, x) for db, x in vr_[NV1:]] + [(15, L(x, "KB0"), 'urgent') for x in kb[:4]] + [(31, L(x, "KB1"), 'urgent') for x in kb[4:]]
        pack(k, qk_mfmas(0) + qk_mfmas(1), fixed, st[NE1:], lds, vm, deadlines=[(R1 + 32 - NE1, 40)])
    for f in post: k(f)

def kv_setup(which, tile):
    if which == 'K': return f"s_add_u32 m0, s{S_W4}, {KB + (tile%4)*SLOT}\ns_mov_b32 s{S_KOFF}, {tile*SLOT}"
    return f"s_add_u32 m0, s{S_W4}, {VB + (tile%4)*SLOT}\ns_mov_b32 s{S_VOFF}, {tile*SLOT}"
def kv_group(which, tile):
    return [[kv_setup(which, tile), V(dma_k(p) if which == 'K' else dma_v(p), f"{which}{tile}")] for p in range(4)]

def rowmax_cross(k, regs, tmp):
    for sw in ("v_permlane32_swap_b32", "v_permlane16_swap_b32"):
        for i, r in enumerate(regs): k(f"v_mov_b32 v{tmp+i}, v{r}")
        k("s_nop 1")
        for i, r in enumerate(regs): k(f"{sw} v{tmp+i}, v{r}")
        k("s_nop 1")
        for i, r in enumerate(regs): k(f"v_max_f32 v{r}, v{r}, v{tmp+i}")

def gen_k1(cfg=None, prof=False):
    cfg = cfg or Cfg()
    k = Kern(NAME + "_kernel" if OPT.mk0 else "k1_attn_kernel", 256, 256, 160*1024, 512, 256, 102 if OPT.ff else (96 if prof else 64))
    k.prof = prof
    end = "k1_end"
    k(f"s_cmp_ge_u32 s2, 256\ns_cbranch_scc1 {end}")
    k.stamp(0)
    k.dbg_begin(1)
    k(f"s_load_dwordx2 s[52:53], s[0:1], {KA_WQ}")
    k(f"s_load_dwordx2 s[54:55], s[0:1], {KA_WS}")
    def more_ptrs():
        k(f"s_load_dwordx4 s[48:51], s[0:1], {KA_K}")
        k(f"s_load_dwordx2 s[46:47], s[0:1], {KA_WO}")
        k(f"s_load_dwordx4 s[56:59], s[0:1], {KA_WG}")
        k(f"s_load_dwordx2 s[60:61], s[0:1], {KA_WD}")
        if OPT.ff: k(f"s_load_dwordx2 s[98:99], s[0:1], {KA_OUT}")
        if OPT.mk0: k(f"s_load_dwordx4 s[{'64:67' if not prof else '92:95'}], s[0:1], {KA_C}")
        if OPT.mk0 and OPT.dflag: k(f"s_load_dwordx2 s[100:101], s[0:1], {KA_DBG}")
        k(f"s_load_dwordx2 s[0:1], s[0:1], {KA_X}")
    if OPT.mk0 or not OPT.lateptr: more_ptrs()
    k("v_lshrrev_b32 v1, 6, v0")
    k("v_and_b32 v2, 63, v0")
    k(f"v_readfirstlane_b32 s{S_WAVE}, v1")
    m = OPT.map4
    k(f"s_and_b32 s4, s2, {(8>>m)-1}\ns_bfe_u32 s5, s2, {((2+m)<<16)|3}\ns_lshl_b32 s5, s5, {3-m}\ns_add_u32 s4, s4, s5")
    k(f"s_bfe_u32 s5, s2, {(m<<16)|(3-m)}\ns_lshl_b32 s5, s5, {3-m}\ns_lshr_b32 s6, s2, {5+m}\ns_add_u32 s5, s5, s6")
    k(f"s_lshl_b32 s{S_W4}, s{S_WAVE}, 12")
    k(f"s_mov_b32 s{S_RERUN}, 0")
    if OPT.r0:
        k(f"s_and_b32 s100, s{S_WAVE}, 1\ns_lshl_b32 s100, s100, 1\ns_lshr_b32 s6, s{S_WAVE}, 1\ns_add_u32 s100, s100, s6\ns_lshl_b32 s6, s5, 3\ns_add_u32 s100, s100, s6")
        k("s_bfe_u32 s101, s2, 0x10005\ns_lshl_b32 s101, s101, 17")
    k("v_lshrrev_b32 v3, 4, v2")
    k("v_and_b32 v4, 15, v2")
    k("v_lshrrev_b32 v5, 2, v4")
    k("v_and_b32 v6, 3, v2")
    k(f"v_lshlrev_b32 v{V_L16}, 4, v2")
    k("v_lshlrev_b32 v7, 2, v3\nv_xor_b32 v7, v7, v4\nv_lshlrev_b32 v7, 4, v7")
    k(f"v_lshl_add_u32 v{V_DW}, v1, 2, v3\nv_lshl_add_u32 v{V_DW}, v{V_DW}, 13, v7")
    k(f"s_lshl_b32 s{S_W1}, s{S_WAVE}, 10")
    if OPT.mk0: k1p.pre_wait(k)
    k("s_waitcnt lgkmcnt(0)")
    if OPT.lateptr and not OPT.mk0: more_ptrs()
    k("s_lshl_b32 s6, s4, 8")
    k(f"s_add_u32 s{S_W}, s52, s6\ns_addc_u32 s{S_W+1}, s53, 0\ns_sub_u32 s{S_W+2}, {512*8192}, s6\ns_mov_b32 s{S_W+3}, 0x20000")
    k.srd(S_M, 54, 4*12288, WS_MODP)
    if OPT.r0: k("s_lshl_b32 s7, s100, 15")
    else: k(f"s_lshl_b32 s6, s5, 2\ns_add_u32 s6, s6, s{S_WAVE}\ns_lshl_b32 s7, s6, 16")
    k(f"s_add_u32 s7, s7, 0x{WS_XH:x}")
    k(f"s_add_u32 s{S_X}, s54, s7\ns_addc_u32 s{S_X+1}, s55, 0\ns_mov_b32 s{S_X+2}, {0x28000 if OPT.r0 else 0x10000}\ns_mov_b32 s{S_X+3}, 0x20000")
    def w_step(j, st0=S_T0):
        r = []
        for p in range(2):
            st = st0 + p
            r.append([f"s_add_u32 m0, s{S_W1}, {WSLOT[j>>1]*SLOT + (j&1)*8192 + p*4096}\ns_mov_b32 s{st}, {(j*32 + p*16)*8192}",
                      lambda kk, st=st: kk.vmop(f"buffer_load_dwordx4 v{V_DW}, {sr(S_W,4)}, s{st} offen {OPT.wqnt} lds", f"W{j}")])
        return r
    def x_loads(j):
        r = []
        for qb in range(4):
            st = S_T0 + 4 + qb
            r.append([f"s_xor_b32 s{st}, s101, {(qb>>1)*131072 + (qb&1)*16384 + (j>>2)*4096}" if OPT.r0 else f"s_mov_b32 s{st}, {qb*16384 + (j>>2)*4096}",
                      lambda kk, qb=qb, st=st: kk.vmop(f"buffer_load_dwordx4 {vr(XR(j,qb),4)}, v{V_L16}, {sr(S_X,4)}, s{st} offen offset:{(j&3)*1024} {'sc1' if OPT.mk0 else ''}", f"X{j}" if j else f"X0_{qb}")])
        return r
    def run(items):
        for f in items:
            if isinstance(f, list): run(f)
            else: f(k) if callable(f) else k(f)
    LA_ = cfg.la
    def rem_srds():
        k("s_lshl_b32 s6, s4, 19")
        k(f"s_add_u32 s{S_K}, s48, s6\ns_addc_u32 s{S_K+1}, s49, 0\ns_mov_b32 s{S_K+2}, 0x80000\ns_mov_b32 s{S_K+3}, 0x20000")
        k(f"s_add_u32 s{S_V}, s50, s6\ns_addc_u32 s{S_V+1}, s51, 0\ns_mov_b32 s{S_V+2}, 0x80000\ns_mov_b32 s{S_V+3}, 0x20000")
        if OPT.r0: k("s_lshl_b32 s6, s100, 18\ns_lshl_b32 s7, s4, 12\ns_add_u32 s6, s6, s7")
        else: k(f"s_lshl_b32 s6, s5, 2\ns_add_u32 s6, s6, s{S_WAVE}\ns_lshl_b32 s6, s6, 19\ns_lshl_b32 s7, s4, 12\ns_add_u32 s6, s6, s7")
        k(f"s_add_u32 s6, s6, 0x{WS_OF:x}")
        k(f"s_add_u32 s{S_O}, s54, s6\ns_addc_u32 s{S_O+1}, s55, 0\ns_mov_b32 s{S_O+2}, {9*131072+4096 if OPT.r0 else 3*131072+4096}\ns_mov_b32 s{S_O+3}, 0x20000")
    def addr_setup():
        k("v_lshl_add_u32 v7, v3, 3, v5\nv_lshlrev_b32 v7, 8, v7\nv_lshl_add_u32 v7, v6, 4, v7")
        for s in range(4):
            k(f"v_xor_b32 v27, {s}, v5\nv_lshl_add_u32 v{V_WA+s}, v27, 6, v7")
            k(f"v_add_u32 v{V_WA+4+s}, 0x10000, v{V_WA+s}\nv_add_u32 v{V_WA+8+s}, 0x20000, v{V_WA+s}")
        k(f"v_lshlrev_b32 v{V_PA}, 5, v3\nv_add_u32 v{V_PA}, {PARB}, v{V_PA}")
        for s in range(4):
            k(f"v_or_b32 v27, {4*s}, v3\nv_xor_b32 v27, v27, v4\nv_lshlrev_b32 v27, 4, v27\nv_lshl_add_u32 v{V_KA+s}, v4, 8, v27")
        k("v_lshl_add_u32 v7, v3, 2, v5\nv_and_b32 v27, 7, v7\nv_lshlrev_b32 v7, 8, v7\nv_lshl_add_u32 v7, v6, 3, v7")
        k(f"v_add_u32 v7, {VB}, v7")
        for db in range(8):
            k(f"v_xor_b32 v30, {db}, v27\nv_lshl_add_u32 v{V_VA+db}, v30, 5, v7")
        k("v_lshlrev_b32 v7, 8, v3\nv_lshl_add_u32 v7, v1, 12, v7")
        for p in range(4):
            k(f"v_or_b32 v27, {4*p}, v3\nv_xor_b32 v27, v27, v4\nv_lshl_add_u32 v{V_DK+p}, v27, 4, v7")
        for p in range(2):
            k(f"v_or_b32 v27, {4*p}, v3\nv_lshlrev_b32 v27, 1, v27\nv_xor_b32 v27, v27, v4\nv_lshl_add_u32 v{V_DV+p}, v27, 4, v7")
        k("v_mov_b32 v27, 0x3f803f80")
        for i in range(4): k(f"v_accvgpr_write_b32 a{ONES+i}, v27")
    k("v_lshlrev_b32 v31, 4, v0")
    wdone = 0
    if OPT.mk0:
        n0, n1, n2 = OPT.mw0, OPT.mw0 + OPT.mw1, OPT.mw0 + OPT.mw1 + OPT.mw2
        k1p.CP = 64 if not prof else 92
        sv = lambda a, b: [run(w_step(j, S_T0+6)) for j in range(a, b)]
        k1p.body(k, lambda: sv(0, n0), lambda: sv(n0, n1), lambda: (sv(n1, n2), addr_setup()))
        wdone = n2
        mod_loads(k, S_M, 31, S_T0, V_PT, 0, "M", "sc1")
        run(x_loads(0)); rem_srds()
    else:
        mod_loads(k, S_M, 31, S_T0, V_PT, 0, "M")
        run(w_step(0)); run(x_loads(0))
        addr_setup(); k("s_waitcnt lgkmcnt(0)"); rem_srds()
    w_step0 = w_step
    w_step = lambda j: w_step0(j) if j >= wdone else []
    def wreads(j):
        c = j >> 1; base = WSLOT[c]*SLOT; bank = base >> 16; off = (base & 0xffff) + (j & 1)*8192
        return [L(f"ds_read_b64_tr_b16 {ar(WF(j&1,t)+2*h,2)}, v{V_WA+4*bank+(t>>1)} offset:{off + h*1024 + 8*(t&1)}", f"R{j}_{t}")
                for t in range(8) for h in range(2)]
    def preads(j):
        b = PAR(j & 1)
        return [L(f"ds_read_b128 {vr(b+4*i,4)}, v{V_PA} offset:{j*128 + (i&1)*16 + (i>>1)*2048}", f"P{j}") for i in range(4)]
    def hcalc(j):
        b = PAR(j & 1); r = []
        for qb in range(4):
            t = V_PT + (qb & 1)*8
            for i in range(8):
                r.append(f"v_fma_mix_f32 v{t+i}, v{XR(j,qb)+(i>>1)}, v{b+8+i}, v{b+i} op_sel:[{i&1},0,0] op_sel_hi:[1,0,0]")
            for d in range(4):
                r.append(f"v_cvt_pk_bf16_f32 v{HF(j&1,qb)+d}, v{t+2*d}, v{t+2*d+1}")
        return r
    k(f"s_cmp_ge_u32 s{S_WAVE}, 2\ns_cselect_b32 s6, 1.0, 0\nv_add_u32 v31, {PARB}, v31")
    k.vmwait("M")
    mod_finish(k, V_PT, 6, C1)
    k(f"ds_write_b128 v31, {vr(V_PT,4)}")
    if OPT.modk1 and not OPT.ff:
        k("s_cmp_ge_u32 s2, 2\ns_cbranch_scc1 k1_nomod\nv_lshlrev_b32 v30, 4, v0\ns_add_u32 s7, s2, 1\ns_lshl_b32 s7, s7, 12")
        mod_loads(k, S_M, 30, S_T0, 192, "s7")
        k(f"s_lshl_b32 s6, s2, 1\ns_cmp_lt_u32 s{S_WAVE}, s6\ns_cselect_b32 s6, 1.0, 0\ns_sub_u32 s{S_M}, s{S_M}, {WS_MODP - WS_MOD}\ns_subb_u32 s{S_M+1}, s{S_M+1}, 0\ns_waitcnt vmcnt(0)")
        mod_finish(k, 192, 6)
        k(f"buffer_store_dwordx4 v[192:195], v30, {sr(S_M,4)}, s7 offen\ns_waitcnt vmcnt(0)")
        k("k1_nomod:")
    run(x_loads(1)); run(w_step(1))
    k.vmwait("W0", "lgkmcnt(0)"); k("s_barrier")
    run(preads(0)); run(preads(1)); run(wreads(0))
    assert LA_ == 4
    pend = [g for j in range(2, LA_) for g in x_loads(j) + w_step(j)]
    k.wait(lg="P0")
    k.stamp(1) if cfg.fine < 2 else k1t.st(k, 'q5')
    for i, v in enumerate(hcalc(0)):
        if i % 12 == 0: k.wait(vm=f"X0_{i//12}")
        if i % 6 == 0 and pend: run(pend.pop(0))
        k(v)
    kvplan = {12: kv_group('K', 0), 13: kv_group('K', 1), 14: kv_group('V', 0)}
    for j in range(15):
        k.c(f"qproj stage {j}")
        if cfg.fine == 1 and j in (0, 2, 4, 8, 12): k.stamp(2 + (0, 2, 4, 8, 12).index(j))
        mf = []
        for t in range(8):
            for q in range(4):
                qb = q if t % 2 == 0 else 3 - q
                d = QA(t, qb)
                mf.append(f"{MF} {d}, {ar(WF(j&1,t),4)}, {vr(HF(j&1,qb),4)}, {d if j else '0'}")
        lds = (preads(j+2) if j < 14 else []) + wreads(j+1)
        valu = hcalc(j+1)
        jj = j + LA_
        if jj >= 16: pend += kvplan[j]
        elif cfg.wb4:
            pend += x_loads(jj)
            if jj % cfg.wb4 == 0:
                for j2 in range(jj, min(16, jj + cfg.wb4)): pend += w_step(j2)
        else: pend += x_loads(jj) + w_step(jj)
        nvm = min(len(pend), cfg.nvm)
        vm = pend[:nvm]; pend = pend[nvm:]
        if cfg.x == 1: valu = valu[:16]
        gaps = fill(32, lds, valu, vm, g0=1, valu_end=31)
        add(gaps, -1, W(lg=f"R{j}_3"))
        front(gaps, 12, W(lg=f"R{j}_7"))
        if j < 2 or j % 2 == 1 or not cfg.bar2:
            tgt = j+1 if (j < 1 or not cfg.bar2) else j+2
            if cfg.wb4 and j + 1 >= 4:
                if (j + 1) % cfg.wb4 == 0:
                    front(gaps, 0, W(vm=f"X{j+1}"), W(vm=f"W{min(15, j + cfg.wb4)}", barrier=True))
                else: front(gaps, 0, W(vm=f"X{j+1}"))
            elif tgt < wdone: front(gaps, 0, W(vm=f"X{j+1}"))
            else: front(gaps, 0, W(vm=f"W{tgt}", barrier=True))
        else:
            front(gaps, 0, W(vm=f"X{j+1}"))
        emit(k, mf, gaps)
    assert not pend
    k.stamp(2) if not cfg.fine else (k.stamp(7) if cfg.fine == 1 else None)
    PF_F, PF_W = S_X, S_W
    pfsetup = [f"s_cmp_eq_u32 s{S_WAVE}, 1\ns_cselect_b64 s[{PF_F}:{PF_F+1}], s[58:59], s[56:57]",
        f"s_cmp_eq_u32 s{S_WAVE}, 2\ns_cselect_b64 s[{PF_F}:{PF_F+1}], s[60:61], s[{PF_F}:{PF_F+1}]",
        f"s_mul_i32 s6, s2, {43*128}\ns_add_u32 s{PF_F}, s{PF_F}, s6\ns_addc_u32 s{PF_F+1}, s{PF_F+1}, 0",
        f"s_lshl_b32 s6, s4, 17\ns_and_b32 s7, s5, 3\ns_lshl_b32 s7, s7, 15",
        f"s_add_u32 s6, s6, s7\ns_lshl_b32 s7, s{S_WAVE}, 13\ns_add_u32 s6, s6, s7",
        f"s_add_u32 s{PF_W}, s46, s6\ns_addc_u32 s{PF_W+1}, s47, 0\ns_mov_b32 s{PF_W+2}, 0x2000",
        f"s_cmp_eq_u32 s{S_WAVE}, 3\ns_cselect_b32 s{PF_F+2}, 0, {43*128}"]
    if OPT.xpf and OPT.ff:
        pfsetup += [f"s_lshl_b32 s6, s5, 1\ns_bfe_u32 s7, s2, 0x10005\ns_add_u32 s6, s6, s7",
            f"s_lshl_b32 s6, s6, 2\ns_and_b32 s7, s2, 3\ns_add_u32 s6, s6, s7",
            f"s_lshl_b32 s6, s6, 2\ns_bfe_u32 s7, s2, 0x20003\ns_add_u32 s6, s6, s7",
            f"s_lshl_b32 s6, s6, 2\ns_add_u32 s6, s6, s{S_WAVE}",
            f"s_lshl_b32 s6, s6, 11\ns_add_u32 s{S_M}, s0, s6\ns_addc_u32 s{S_M+1}, s1, 0\ns_mov_b32 s{S_M+2}, 2048"]
    elif OPT.xpf:
        pfsetup += [f"s_bfe_u32 s6, s2, 0x10002\ns_lshl_b32 s6, s6, 3\ns_bfe_u32 s7, s2, 0x30003",
            f"s_add_u32 s6, s6, s7\ns_lshl_b32 s6, s6, 2\ns_and_b32 s7, s2, 3",
            f"s_add_u32 s6, s6, s7\ns_lshl_b32 s6, s6, 2\ns_lshr_b32 s7, s2, 6",
            f"s_add_u32 s6, s6, s7\ns_lshl_b32 s6, s6, 2\ns_add_u32 s6, s6, s{S_WAVE}",
            f"s_lshl_b32 s6, s6, 11\ns_add_u32 s{S_M}, s0, s6\ns_addc_u32 s{S_M+1}, s1, 0\ns_mov_b32 s{S_M+2}, 2048"]
    xcc_pub = []
    if OPT.loc:
        def pub(k):
            k.srd(36, 54, 32768, WS_FLAG)
            k(f"s_and_b32 s6, s2, 7\ns_lshl_b32 s6, s6, 2\ns_lshr_b32 s7, s2, 6\ns_add_u32 s6, s6, s7\ns_lshl_b32 s63, s6, 10\ns_bfe_u32 s7, s2, 0x30003")
            k(f"s_getreg_b32 s97, hwreg(HW_REG_XCC_ID, 0, 4)\ns_add_u32 s97, s97, 1\ns_lshl_b32 s6, s7, 2\ns_lshl_b32 s7, s7, 7")
            k(f"v_lshlrev_b32 v3, 3, v{V_L16}\nv_add_u32 v3, s6, v3\nv_mov_b32 v4, s97\nv_bfe_u32 v27, v{V_L16}, 4, 3\nv_lshlrev_b32 v27, 2, v27\nv_add_u32 v27, s7, v27")
            k(f"s_cmp_eq_u32 s{S_WAVE}, 1\ns_cbranch_scc0 k1_nx\ns_mov_b64 exec, 0xff")
            k(f"buffer_store_dword v4, v3, s[36:39], s63 offen offset:64 sc1\ns_mov_b64 exec, -1")
            k("k1_nx:")
        xcc_pub = [pub]
    V0, VD = V_PF, V_PF+3
    pfv = [f"v_lshrrev_b32 v{VD}, 8, v{V_L16}", f"v_lshlrev_b32 v{VD}, 24, v{VD}", f"v_lshl_add_u32 v{V0}, v{V_L16}, 3, v{VD}"]
    cf, cw, co = cfg.pfc
    def site(srd, c0, sh, off, fl):
        return [f"s_sub_u32 s6, s{S_CNT}, {c0}\ns_min_u32 s6, s6, 4\ns_lshl_b32 s6, s6, {sh}", f"buffer_load_dword v{VD}, v{V0}, {sr(srd,4)}, s6 offen offset:{off} {fl}"]
    pfs = [site(PF_F, cf, 11, 0, ""), site(S_M, OPT.xpf, 11, 0, "") if OPT.xpf else site(S_O, co, 17, 0, OPT.opf), site(PF_W, cw, 11, 0, OPT.wpf), site(S_O, co, 17, 2048, OPT.opf)]
    if OPT.l2w:
        P1, P2 = PF_F, 48
        pfsetup = pfsetup[3:6] + pfsetup[7:] + [
            f"s_lshr_b32 s6, s2, 3\ns_lshl_b32 s6, s6, 2\ns_add_u32 s{S_T0}, s6, s{S_WAVE}",
            f"s_cmp_lt_u32 s{S_T0}, 64\ns_cselect_b64 s[{P1}:{P1+1}], s[56:57], s[58:59]",
            f"s_and_b32 s6, s{S_T0}, 63\ns_mul_i32 s6, s6, {8*2752}\ns_and_b32 s7, s2, 3",
            f"s_mul_i32 s7, s7, 768\ns_add_u32 s6, s6, s7\ns_sub_u32 s7, {512*2752}, s6",
            f"s_add_u32 s{P1}, s{P1}, s6\ns_addc_u32 s{P1+1}, s{P1+1}, 0\ns_min_u32 s{P1+2}, s7, {8*2752}",
            f"s_mul_i32 s6, s{S_T0}, {11*1024}\ns_and_b32 s7, s2, 1\ns_lshl_b32 s7, s7, 9",
            f"s_add_u32 s6, s6, s7\ns_min_u32 s6, s6, {1376*1024}\ns_sub_u32 s7, {1376*1024}, s6",
            f"s_add_u32 s{P2}, s60, s6\ns_addc_u32 s{P2+1}, s61, 0\ns_min_u32 s{P2+2}, s7, {11*1024}\ns_mov_b32 s{P2+3}, 0x20000"]
        pfv += [f"v_and_b32 v6, 0x380, v{V0}", "v_min_u32 v6, 764, v6", f"v_bfe_u32 v3, v{V_L16}, 7, 1", "v_mul_u32_u24 v3, 2752, v3", f"v_add3_u32 v3, v3, v6, v{VD}",
                f"v_bfe_u32 v4, v{V_L16}, 6, 2", f"v_and_b32 v6, 0x180, v{V0}", "v_lshl_add_u32 v4, v4, 10, v6", f"v_add_u32 v4, v4, v{VD}"]
        pfs[0] = [f"s_sub_u32 s6, s{S_CNT}, {OPT.l2w}\ns_min_u32 s6, s6, 4\ns_mul_i32 s6, s6, {2*2752}", f"buffer_load_dword v6, v3, {sr(P1,4)}, s6 offen"]
        pfs[3] = [f"s_sub_u32 s6, s{S_CNT}, {OPT.l2d}\ns_min_u32 s6, s6, 3\ns_lshl_b32 s6, s6, 12", f"buffer_load_dword v6, v4, {sr(P2,4)}, s6 offen"]
    if OPT.loc or OPT.opt32:
        pfv += [f"v_lshrrev_b32 v{VD}, 9, v{V_L16}", f"v_lshlrev_b32 v{VD}, 24, v{VD}", f"v_lshl_add_u32 v7, v{V_L16}, 3, v{VD}"]
        si = OPT.lsite
        xs = pfs[si]
        pfs[si] = site(S_O, OPT.lpo, 17, 0, OPT.opf); pfs[si][1] = pfs[si][1].replace(f"v{V0},", "v7,")
    loopinit = f"s_mov_b32 s{S_CNT}, 8"
    k.c("merged head")
    if OPT.trunc: k("s_mov_b32 s53, 0x07060302")
    k.run(xcc_pub)
    k.wait(lg='all')
    def qk_q(buf, qb, czero):
        r = []
        for kb in range(2):
            for i in range(4):
                s_ = i if kb == 0 else 3 - i
                d = vr(S(buf, kb, qb), 4)
                c = d if i else ("0" if czero else vr(MN(qb), 4))
                nd = {f"Q{qb}": 2, f"KR{buf}": 0}
                if not czero: nd[f"MN{qb}"] = 2
                r.append(It(f"{MF} {d}, {ar(HK(buf)(kb*4+s_),4)}, {vr(Q(qb,s_),4)}, {c}", needs=nd, gives=f"S{buf}_{qb}"))
        return r
    mq = []
    for qb in range(4):
        for t in range(8):
            d = QA(t, qb)
            mq.append(It(f"{MF} {d}, {ar(WF(1,t),4)}, {vr(HF(1,qb),4)}, {d}", gives=f"A{t}_{qb}"))
    mq += qk_q(0,0,True) + qk_q(0,1,True) + qk_q(0,2,True) + qk_q(1,0,False) + qk_q(1,1,False) + qk_q(0,3,True) + qk_q(1,2,False) + qk_q(1,3,False)
    def conv(qb):
        r = []
        for s_ in range(4):
            for h in range(2):
                t = 2*s_ + h; nd = {f"A{t}_{qb}": 8}
                if qb < 2: a = 192 + (qb*8+t)*4
                else:
                    a = 224 + (t & 3)*4
                    for i in range(4): r.append(It(f"v_accvgpr_read_b32 v{a+i}, a{((qb-2)*8+t)*4+i}", needs=nd))
                for d in range(2): r.append(It(f"v_cvt_pk_bf16_f32 v{Q(qb,s_)+2*h+d}, v{a+2*d}, v{a+2*d+1}", needs=nd, gives=f"Q{qb}x"))
        r[-1].gives = f"Q{qb}"
        return r
    def rmax(qs):
        r = []
        for qb in qs:
            a = S(0, 0, qb); b = S(0, 1, qb); t = V_T + qb; nd = {f"S0_{qb}e": 8}
            r += [It(f"v_max3_f32 v{t}, v{a}, v{a+1}, v{a+2}", needs=nd), It(f"v_max3_f32 v{t+4}, v{b}, v{b+1}, v{b+2}"),
                  It(f"v_max3_f32 v{t}, v{t}, v{a+3}, v{b+3}"), It(f"v_max_f32 v{t}, v{t}, v{t+4}")]
        for n_, sw in enumerate(("v_permlane32_swap_b32", "v_permlane16_swap_b32")):
            for qb in qs: r.append(It(f"v_mov_b32 v{V_T+4+qb}, v{V_T+qb}", gives=f"mv{n_}_{qb}"))
            for qb in qs: r.append(It(f"{sw} v{V_T+4+qb}, v{V_T+qb}", cost=2, needs={f"mv{n_}_{qb}": 2}, gives=f"sw{n_}_{qb}"))
            for qb in qs: r.append(It(f"v_max_f32 v{V_T+qb}, v{V_T+qb}, v{V_T+4+qb}", needs={f"sw{n_}_{qb}": 1}))
        for qb in qs:
            for i in range(4): r.append(It(f"v_sub_f32 v{MN(qb)+i}, 0, v{V_T+qb}", gives=f"MN{qb}" if i == 3 else None))
        return r
    def sm0(qs, sub=True):
        r = []
        E = exps(0, qs); C = cvts(0, qs); A = adds(0, qs, cfg.addq())
        regs = [S(0, kb, qb) + i for qb in qs for kb in range(2) for i in range(4)]
        qof = [qb for qb in qs for _ in range(8)]
        n_ = len(E)
        for i in range(n_ + 2):
            if sub and i < n_: r.append(It(f"v_add_f32 v{regs[i]}, v{regs[i]}, v{MN(qof[i])}"))
            if 1 <= i <= n_: r.append(It(E[i-1], cost=2, gives=f"e{qs[0]}_{i-1}"))
            if i >= 2:
                if A[i-2]: r.append(It(A[i-2], needs={f"e{qs[0]}_{i-2}": 1}))
                if (i-2) % 2 == 1: r.append(It(C[(i-2)//2], needs={f"e{qs[0]}_{i-2}": 1}))
        return r
    last = {}
    for it in mq:
        if isinstance(it.gives, str) and it.gives.startswith("S"): last[it.gives] = it
    for g, it in last.items(): it.gives = g + "e"
    init = [It(f"v_mov_b32 v{V_LS+q}, 0") for q in range(4)] + [It(x) for x in pfv]
    vq = init + conv(0) + conv(1) + conv(2) + rmax([0, 1]) + conv(3) + sm0([0, 1]) + rmax([2, 3]) + sm0([2, 3])
    side = [It(W(vm="K0", barrier=True), cost=0, n=2)]
    for b in range(2):
        side += [It(L(x, f"HK{b}")) for x in kreads(0, b, HK(b))]
    side += [It(x, cost=0, n=3) for x in pfsetup]
    side += [It(W(lg="HK0"), cost=0, gives="KR0", needs={"A7_2": 0}), It(W(lg="HK1"), cost=0, gives="KR1")]
    G = lambda grp, nd=None: It(lambda kk, grp=grp: kk.run(grp), cost=2, n=3, needs=nd)
    side += [G(x) for x in kv_group('K', 2)] + [G(x, {"S0_2e": 0}) for x in kv_group('V', 1)]
    side += [It(W(vm="V0", barrier=True), cost=0, n=2, needs={"S0_3e": 0})]
    side += [It(x) for x in kreads(1, 0)] + [G(x) for x in kv_group('K', 3)] + [It(loopinit, cost=0, n=4)]
    merge(k, mq, vq, side)
    k("k1_first:")
    iteration(k, cfg, 1, "first")
    iteration(k, cfg, 2, "pv", czero=True)
    k.stamp(3) if not cfg.fine else None
    k("s_branch k1_pos2")
    k(".p2align 6")
    for _ in range(OPT.pad): k("s_nop 0")
    k("k1_loop:")
    iteration(k, cfg, 0, pf=pfs[0] if cfg.pf else ())
    iteration(k, cfg, 1, pf=pfs[1] if cfg.pf else ())
    iteration(k, cfg, 2, pf=pfs[2] if cfg.pf else (), label="k1_pos2")
    iteration(k, cfg, 3, pf=pfs[3] if cfg.pfo else (), post=[f"s_sub_u32 s{S_CNT}, s{S_CNT}, 1\ns_cmp_lg_u32 s{S_CNT}, 0\ns_cbranch_scc1 k1_loop"])
    k.stamp(4) if not cfg.fine else (k.stamp(1) if cfg.fine == 2 else None)
    if OPT.cpf2:
        k(f"s_cmp_ge_u32 s2, 16\ns_cbranch_scc1 k1_nocode\ns_lshr_b32 s6, s2, 3\ns_lshl_b32 s6, s6, 2\ns_add_u32 s6, s6, s{S_WAVE}")
        k.code_pf("k1_nocode", "code_end_marker", V_PF+1, S_M, 6)
        k("k1_nocode:")
    V_AW = 7
    AH = (lambda j: (j & 15) >> 1) if OPT.f2 else (lambda j: j >> 2)
    AS = (lambda j: (j >> 4)*2 + (j & 1)) if OPT.f2 else (lambda j: j & 3)
    HT = (lambda u: 1 if 1 <= u <= 4 else 0) if OPT.r0 else (lambda u: 0)
    HX = (lambda u: 0 if u == 0 else (3 + u if u <= 4 else u - 4)) if OPT.r0 else (lambda u: u)
    def a_w(j):
        return [[f"s_add_u32 m0, s{S_W1}, {(j % OPT.anr)*8192 + p*4096}\n" + (f"s_xor_b32 s{S_T0+4+p}, s{96 + HT(j>>2)}, " if (OPT.own or OPT.r0) else f"s_mov_b32 s{S_T0+4+p}, ") + f"{(HX(AH(j))*512 + AS(j)*32 + p*16)*1024}",
                 V(f"buffer_load_dwordx4 v{V_AW}, {sr(S_M,4)}, s{S_T0+4+p} offen lds", f"AW{j}")] for p in range(2)]
    extra = []
    if OPT.fa:
        k(f"v_lshrrev_b32 v2, 8, v{V_L16}\nv_lshl_add_u32 v2, v1, 2, v2\nv_and_b32 v3, 7, v2\nv_lshlrev_b32 v3, 5, v3\nv_and_b32 v4, 0xf0, v{V_L16}")
        k(f"v_xor_b32 v3, v3, v4\nv_lshl_add_u32 v{V_AW}, v2, 10, v3")
        k(f"s_and_b32 s6, s2, 3\ns_lshl_b32 s6, s6, 17\ns_bfe_u32 s7, s2, 0x20003\ns_lshl_b32 s7, s7, 8\ns_add_u32 s6, s6, s7")
        k(f"s_add_u32 s{S_M}, s46, s6\ns_addc_u32 s{S_M+1}, s47, 0\ns_sub_u32 s{S_M+2}, {4096*1024}, s6\ns_mov_b32 s{S_M+3}, 0x20000")
        if OPT.r0: k("s_lshl_b32 s97, s101, 4")
        if OPT.own or OPT.r0: k("s_bfe_u32 s96, s2, 0x30003\ns_lshl_b32 s96, s96, 19")
        k.vm = []
        if OPT.mearly:
            assert not OPT.mk0
            k.srd(48, 54, 4*12288, WS_MODP); k("v_lshlrev_b32 v6, 4, v0")
        if OPT.loc:
            k.srd(48, 54, 32768, WS_FLAG)
            k(f"buffer_load_dword v5, v27, s[48:51], s63 offen offset:64 sc1")
        if OPT.mk0:
            k.srd(48, 54, k1p.FA + 256*4096, WS_FLAG)
            k(f"s_lshl_b32 s6, s5, 5\ns_add_u32 s6, s6, s4\ns_lshl_b32 s6, s6, 12\ns_add_u32 s63, s6, {k1p.FA+3072}\nv_mov_b32 v27, 0")
        extra = [g for j in range(OPT.na0) for g in a_w(j)]
        if OPT.mk0: extra[0] = [V("buffer_load_dword v6, v27, s[48:51], s63 offen sc1", "WL")] + extra[0]
    ns = 2*len(cfg.sumq)
    LT = 240
    vq0 = []
    if OPT.t2:
        F31 = lambda blk, db: KF(blk*4+db) if db < 4 else VF(8*blk + db - 4)
        k.lg = []
        mq = []
        def chain(dst, As, Ps, qb, rev, needs, gives):
            order = list(range(len(As)))[::-1 if rev else 1]
            for n, i in enumerate(order):
                mq.append(It(f"{MF} {dst}, {ar(As[i],4)}, {vr(P(Ps[i],qb),4)}, {dst}", needs=needs, gives=gives if n == len(order)-1 else None))
        for n, qb in enumerate(cfg.sumq): chain(ar(LA(qb),4), [ONES]*2, [0, 1], qb, n % 2, None, None)
        for db in range(2):
            for q in range(4): chain(ar(O(db, q if db % 2 == 0 else 3-q),4), [VF(db), VF(8+db)], [0, 1], q if db % 2 == 0 else 3-q, q % 2, {"BAR": 0}, f"U{db}" if q == 3 else None)
        for q in range(4):
            if q in cfg.sumq: chain(ar(LA(q),4), [ONES]*2, [2, 3], q, 0, {f"P63_{q}": 2}, "SUM" if q == cfg.sumq[-1] else None)
            for db in range(2): chain(ar(O(db,q),4), [F31(0,db), F31(1,db)], [2, 3], q, db % 2, {f"P63_{q}": 2, "W0": 0}, f"O{db}" if q == 3 else None)
        for db in range(2, 8):
            for q in range(4):
                qb = q if db % 2 == 0 else 3-q
                chain(ar(O(db,qb),4), [VF(db), VF(8+db), F31(0,db), F31(1,db)], [0, 1, 2, 3], qb, q % 2, {f"W{db//2}": 0}, f"O{db}" if q == 3 else None)
        rdv = lambda db, nd: [It(L(f"ds_read_b64_tr_b16 {ar(F31(blk,db)+2*h,2)}, v{V_VA+db} offset:{3*SLOT+blk*8192+h*4096}", f"V{db//2}"), needs=nd) for blk in range(2) for h in range(2)]
        aw = [It(lambda kk, g=g: kk.run(g), cost=2) for j in range(OPT.na0 + OPT.na2) for g in a_w(j)]
        side = [It("s_waitcnt vmcnt(0) lgkmcnt(0)\ns_barrier", cost=0, gives="BAR")] + rdv(0, None) + rdv(1, None) + aw[:2*OPT.t2a] + rdv(2, None) + rdv(3, None)
        side += [It(f"s_lshl_b32 s{S_T0+qb}, s101, 3\ns_xor_b32 s{S_T0+qb}, s{S_T0+qb}, {(qb>>1)*0x100000 + (qb&1)*131072}" if OPT.r0 else f"s_mov_b32 s{S_T0+qb}, {qb*131072}", cost=0) for qb in range(4)]
        side += [It(W(lg="V0"), cost=0, gives="W0", needs={"P63_0": 0})] + rdv(4, {"U0": 0}) + rdv(5, {"U1": 0}) + [It(W(lg="V1"), cost=0, gives="W1")]
        r = aw[2*OPT.t2a:]; h1 = len(r)//2
        side += r[:h1] + [It(W(lg="V2"), cost=0, gives="W2")] + rdv(6, {"O2": 0}) + rdv(7, {"O3": 0}) + r[h1:] + [It(W(lg="all"), cost=0, gives="W3", needs={"O4": 0})]
        st_ = [(62, i, x) for i, x in enumerate(sm_stream(cfg, 62)) if i >= 32-R1] + [(63, i, x) for i, x in enumerate(sm_stream(cfg, 63))]
        prev = []
        for u, i, (e, f) in st_:
            vq0.append(It(e, cost=2, gives=f"e{u}_{i}")); vq0 += prev
            prev = [It(x, needs={f"e{u}_{i}": 1}, gives=f"P{u}_{i//8}" if (i % 8 == 7 and x is f[-1]) else None) for x in f]
        vq0 += prev
    else:
        rest = iteration(k, cfg, 0, "tail", extra=extra)
        k.stamp(5) if not cfg.fine else (k.stamp(2) if cfg.fine == 2 else None)
        k.lg = ["V0"]*len(k.lg)
        k.run([x[1] for x in rest])
        nrest = len(rest); dbw = 8 - (nrest + 3)//4
        mq = []
        for i, m in enumerate(pv2_mfmas(2, cfg.sumq)):
            db = (i - ns)//8
            it = It(m, gives="SUM" if i == ns-1 else (f"O{db}" if i >= ns and (i - ns) % 8 == 7 else None))
            if i == ns: it.needs = {"W0": 0}
            if i == ns + 8*dbw: it.needs = {"W1": 0}
            mq.append(it)
        side = [It(W(lg="V0"), cost=0, gives="W0")] + [It(f"s_mov_b32 s{S_T0+qb}, {qb*131072}", cost=0) for qb in range(4)]
        if OPT.fa:
            if OPT.mearly:
                side += [It(V(f"s_mov_b32 s6, {4096*(1+(i>>2)) + (i&3)*12288}\nbuffer_load_dwordx4 {vr(96+4*i,4)}, v6, s[48:51], s6 offen {'sc1' if OPT.mk0 else ''}", "M"), cost=2) for i in range(8)]
            side += [It(lambda kk, g=g: kk.run(g), cost=2) for j in range(OPT.na0, OPT.na0 + OPT.na2) for g in a_w(j)]
        side += [It(W(lg="all"), cost=0, gives="W1", needs={f"O{dbw-2}": 0})]
    vq = list(vq0)
    aq = cfg.addq()
    for n_, sw in enumerate(("v_permlane32_swap_b32", "v_permlane16_swap_b32")):
        for q in aq: vq.append(It(f"v_mov_b32 v{LT+4+q}, v{V_LS+q}", gives=f"a{n_}{q}"))
        for q in aq: vq.append(It(f"{sw} v{LT+4+q}, v{V_LS+q}", cost=2, needs={f"a{n_}{q}": 2}, gives=f"b{n_}{q}"))
        for q in aq: vq.append(It(f"v_add_f32 v{V_LS+q}, v{V_LS+q}, v{LT+4+q}", needs={f"b{n_}{q}": 1}))
    for q in cfg.sumq: vq.append(It(f"v_accvgpr_read_b32 v{V_LS+q}, a{LA(q)}", needs={"SUM": 8}))
    for q in range(4): vq.append(It(f"v_rcp_f32 v{LT+2*q}, v{V_LS+q}", cost=2))
    guard = [It(f"v_add_f32 v{LT+8}, v{V_LS}, v{V_LS+1}"), It(f"v_add_f32 v{LT+9}, v{V_LS+2}, v{V_LS+3}"), It(f"v_add_f32 v{LT+8}, v{LT+8}, v{LT+9}"),
           It(f"s_mov_b32 s7, {hexf(2.0**64)}\nv_cmp_nle_f32 vcc, v{LT+8}, s7"),
           It(f"s_lshl_b32 s7, s{S_WAVE}, 2\ns_add_u32 s7, s7, {FLAGB}\nv_mov_b32 v{LT+10}, s7"), It(f"v_mov_b32 v{LT+11}, {FLAGB}"),
           It(f"s_cmp_lg_u64 vcc, 0\ns_cselect_b32 s7, 1, 0\nv_mov_b32 v{LT+9}, s7"), It(L(f"ds_write_b32 v{LT+10}, v{LT+9}", "F"))]
    def check(k):
        k(f"ds_read_b128 {vr(LT+12,4)}, v{LT+11}\ns_waitcnt lgkmcnt(0)")
        k(f"v_or_b32 v{LT+12}, v{LT+12}, v{LT+13}\nv_or3_b32 v{LT+12}, v{LT+12}, v{LT+14}, v{LT+15}\ns_nop 0")
        k(f"v_readfirstlane_b32 s6, v{LT+12}")
        k(f"s_andn2_b32 s6, s6, s{S_RERUN}\ns_cmp_lg_u32 s6, 0\ns_cbranch_scc1 k1_fallback")
        if OPT.loc: k("v_cmp_ne_u32 vcc, s97, v5\ns_nop 0\ns_or_b32 s97, vcc_lo, vcc_hi")
    def flagprep(k):
        k.srd(S_K, 54, 4*32768 + 256*4096, WS_FLAG)
        k(f"s_and_b32 s6, s2, 7\ns_lshl_b32 s6, s6, 2\ns_lshr_b32 s7, s2, 6\ns_add_u32 s6, s6, s7\ns_lshl_b32 s63, s6, 10\ns_bfe_u32 s7, s2, 0x30003")
        k(f"v_lshlrev_b32 v2, 3, v{V_L16}\ns_lshl_b32 s6, s7, 2\nv_add_u32 v2, s6, v2\nv_mov_b32 v3, 0x{MAGIC:x}")
        k(f"v_bfe_u32 v27, v{V_L16}, 4, 3\nv_lshlrev_b32 v27, 2, v27\ns_lshl_b32 s6, s7, 7\nv_add_u32 v27, s6, v27")
        if OPT.mk0:
            k(f"s_lshl_b32 s6, s5, 5\ns_add_u32 s6, s6, s4\ns_lshl_b32 s6, s6, 12\ns_add_u32 s6, s6, {k1p.FA+3072}\ns_sub_u32 s6, s6, s63")
            k(f"v_and_b32 v4, 12, v27\nv_add_u32 v4, s6, v4\ns_mov_b32 exec_lo, 0\nv_mov_b32 v27, v4\ns_mov_b64 exec, -1")
    def raise_(k, lab, off):
        k(f"s_cmp_eq_u32 s{S_WAVE}, 1\ns_cbranch_scc0 {lab}")
        if OPT.loc:
            k(f"s_cmp_eq_u32 s97, 0\ns_cbranch_scc1 {lab}_l\nbuffer_wbl2 sc1\ns_waitcnt vmcnt(0)\n{lab}_l:")
        k("s_mov_b64 exec, 0xff")
        k(f"buffer_store_dword v3, v2, {sr(S_K,4)}, s63 offen offset:{off} sc1\ns_mov_b64 exec, -1")
        k(f"{lab}:")
    def midsig(k):
        k.wait(vm="OS1", lg='all', barrier=True)
        check(k); flagprep(k); raise_(k, "k1_nf1", 0)
    n_ = 0
    for s_ in range(4):
        for qb in range(4):
            t = 64 + (n_ & 3)*8; o = (96 if OPT.t2 else 32) + (n_ & 7)*4
            if OPT.r0: t = 64 + (n_ & 1)*8; o = 96 + (s_*2+qb)*4 if qb < 2 else 80 + ((s_*2+qb) & 3)*4
            n_ += 1
            for h in range(2):
                for i in range(4): vq.append(It(f"v_accvgpr_read_b32 v{t+4*h+i}, a{O(2*s_+h,qb)+i}", needs={f"O{2*s_+h}": 8}))
            if n_ <= cfg.npk:
                for i in range(8): vq.append(It(f"v_mul_f32 v{t+i}, v{t+i}, v{LT+2*qb}"))
            else:
                for i in range(4): vq.append(It(f"v_pk_mul_f32 {vr(t+2*i,2)}, {vr(t+2*i,2)}, {vr(LT+2*qb,2)} op_sel_hi:[1,0]"))
            for d in range(4): vq.append(It(f"v_cvt_pk_bf16_f32 v{o+d}, v{t+2*d}, v{t+2*d+1}"))
            vq.append(It(V(f"buffer_store_dwordx4 {vr(o,4)}, v{V_L16}, {sr(S_O,4)}, s{S_T0+qb} offen offset:{s_*1024} {OPT.lst if OPT.loc else ('sc1' if (n_ <= OPT.nsc1 or OPT.fa) else OPT.st1)}", "OST" if n_ > 8 else "OS1"), cost=2))
            if n_ == 2: vq[-1].gives = "ST0"; vq += guard
            if OPT.f2 and n_ == OPT.f2n: vq.append(It(midsig, cost=0, needs={"W1": 0}))
    if not OPT.fa: k.vm = []
    merge(k, mq, vq, side, budget=(lambda w: 2 if ("ST0" in w or not OPT.t2) else OPT.t2b))
    if OPT.fa:
        for j in range(OPT.na0 + OPT.na2, OPT.na0 + OPT.na2 + OPT.na1): k.run(a_w(j))
        assert OPT.na0 + OPT.na1 + OPT.na2 <= 14
        if OPT.a2:
            k(f"s_lshl_b32 s6, s5, 1\ns_bfe_u32 s7, s2, 0x10005\ns_add_u32 s6, s6, s7\ns_lshl_b32 s6, s6, 1\ns_and_b32 s7, s{S_WAVE}, 1\ns_add_u32 s6, s6, s7")
            k(f"s_lshr_b32 s52, s{S_WAVE}, 1\ns_lshl_b32 s{S_CNT}, s6, 1\ns_add_u32 s{S_CNT}, s{S_CNT}, s52")
            k(f"s_lshl_b32 s6, s6, 19\ns_and_b32 s7, s2, 3\ns_lshl_b32 s7, s7, 12\ns_add_u32 s6, s6, s7\ns_lshl_b32 s53, s52, 11\ns_add_u32 s6, s6, s53\ns_add_u32 s6, s6, 0x{WS_OF:x}")
            k(f"s_add_u32 s{S_X}, s54, s6\ns_addc_u32 s{S_X+1}, s55, 0\ns_mov_b32 s{S_X+2}, {4*131072}")
            k(f"s_lshl_b32 s52, s52, 18")
            if OPT.r0: k("s_lshr_b32 s100, s101, 1\ns_or_b32 s100, s100, s52")
            if OPT.own or OPT.r0: k("s_lshr_b32 s53, s96, 5\ns_or_b32 s52, s52, s53")
            k(f"s_xor_b32 s53, s52, 0x40000" if not OPT.r7 else f"s_lshr_b32 s53, s{S_WAVE}, 1\ns_lshl_b32 s53, s53, 11")
        else:
          k(f"s_lshl_b32 s6, s5, 1\ns_bfe_u32 s7, s2, 0x10005\ns_add_u32 s6, s6, s7\ns_lshl_b32 s6, s6, 2\ns_add_u32 s{S_CNT}, s6, s{S_WAVE}")
          k(f"s_lshl_b32 s6, s{S_CNT}, 18\ns_and_b32 s7, s2, 3\ns_lshl_b32 s7, s7, 12\ns_add_u32 s6, s6, s7\ns_add_u32 s6, s6, 0x{WS_OF:x}")
          k(f"s_add_u32 s{S_X}, s54, s6\ns_addc_u32 s{S_X+1}, s55, 0\ns_mov_b32 s{S_X+2}, {2*131072}")
        k(f"s_lshl_b32 s6, s{S_CNT}, 15\ns_lshl_b32 s7, s7, 9\ns_add_u32 s6, s6, s7\ns_bfe_u32 s7, s2, 0x20003\ns_lshl_b32 s7, s7, 12\ns_add_u32 s6, s6, s7\ns_add_u32 s6, s6, 0x{WS_PART:x}")
        k(f"s_add_u32 s{S_W}, s54, s6\ns_addc_u32 s{S_W+1}, s55, 0\ns_mov_b32 s{S_W+2}, {16384+4096}")
    V_W0 = 32
    def poll(k, lab, off):
        k("s_mov_b32 s7, 0")
        k(f"{lab}:")
        k(f"buffer_load_dword v3, v27, {sr(S_K,4)}, s63 offen offset:{off} sc1\ns_waitcnt vmcnt(0)\nv_cmp_ne_u32 vcc, 0x{MAGIC:x}, v3")
        k(f"s_cbranch_vccz {lab}_r\ns_add_u32 s7, s7, 1\ns_cmp_lt_u32 s7, 0x10000\ns_cbranch_scc1 {lab}")
        k(f"{lab}_r:")
        k(f"s_barrier\nv_mov_b32 v3, 0\ns_mov_b32 exec_lo, 0\nbuffer_store_dword v3, v27, {sr(S_K,4)}, s63 offen offset:{off}\ns_mov_b64 exec, -1\ns_branch {lab}_e" if OPT.mk0 else "")
        k(f"{lab}_ok:")
    if OPT.f2:
        for j in range(OPT.na0 + OPT.na1 + OPT.na2, OPT.na3): k.run(a_w(j))
        if OPT.ff: k1t.setup_early(k)
        k("s_nop 1")
        for t in range(8): k(f"v_add_u32 v{V_W0+t}, {-VB & 0xffffffff}, v{V_VA+t}\nv_add_u32 v{V_W0+8+t}, {VB}, v{V_VA+t}")
        k(f"s_cmp_eq_u32 s{S_WAVE}, 0\ns_cbranch_scc0 k1_poll_ok")
        poll(k, "k1_poll", 0)
        k("s_waitcnt vmcnt(0)\ns_barrier")
        k.stamp(6) if not cfg.fine else (k.stamp(3) if cfg.fine == 2 else k1t.st(k, 'x0'))
        raise_(k, "k1_nf2", 32)
    else:
        if OPT.fa and not OPT.early: k.wait(vm="OST")
        if OPT.r0: k.wait(vm="AW3")
        k("s_waitcnt lgkmcnt(0)\ns_barrier")
        check(k)
    if OPT.fa and not OPT.f2:
        def addrs():
            if OPT.a2:
                k("v_lshrrev_b32 v4, 1, v1\nv_lshlrev_b32 v4, 14, v4")
                for t in range(8): k(f"v_add_u32 v{V_W0+8+t}, v4, v{V_VA+t}\nv_add_u32 v{V_W0+t}, {-VB & 0xffffffff}, v{V_W0+8+t}")
                k(f"v_lshl_add_u32 v8, v1, 14, v{V_L16}\nv_xor_b32 v9, 0x8000, v8")
                if OPT.anr == 20:
                    k("v_add_u32 v8, 0x18000, v8\nv_add_u32 v9, 0x18000, v9")
                    for t in range(8): k(f"v_add_u32 v{V_VA+t}, {VB}, v{V_W0+8+t}")
            else:
                for t in range(8): k(f"v_add_u32 v{V_W0+t}, {-VB & 0xffffffff}, v{V_VA+t}\nv_add_u32 v{V_W0+8+t}, {VB}, v{V_VA+t}")
        flagprep(k)
        if OPT.early:
            if OPT.r0:
                assert OPT.a2 and OPT.t2 and OPT.anr == 16 and OPT.l2w and OPT.xpf
                for t in range(8): k(f"v_add_u32 v{64+t}, {-VB & 0xffffffff}, v{V_VA+t}")
                k.lg = []
                for b_ in (1, 0):
                    k.run([L(f"ds_read_b64_tr_b16 {(ar if b_ else vr)(192 + (e*8+t)*4 + 2*h, 2)}, v{64+t} offset:{(2*b_+e)*8192 + h*4096}", "R0") for t in range(8) for e in range(2) for h in range(2)])
                    if b_:
                        for i in range(32): k(f"v_accvgpr_write_b32 a{i}, v{96+i}")
            addrs(); k1t.setup_early(k)
            if OPT.r7 == 2:
                k(f"v_lshrrev_b32 v4, 8, v{V_L16}\nv_bfe_u32 v5, v{V_L16}, 6, 2\nv_cmp_eq_u32 vcc, v4, v5\nv_bfe_u32 v4, v{V_L16}, 4, 1\nv_lshlrev_b32 v4, 4, v4")
                k(f"v_mov_b32 v5, 0x3f80\nv_lshlrev_b32 v5, v4, v5\nv_cndmask_b32 v5, 0, v5, vcc\nv_bfe_u32 v4, v{V_L16}, 5, 1\nv_cmp_eq_u32 vcc, 0, v4\nv_mov_b32 v58, 0\nv_mov_b32 v59, 0")
                k("v_cndmask_b32 v56, 0, v5, vcc\nv_cndmask_b32 v57, v5, v58, vcc\nv_mov_b32 v60, 0\nv_mov_b32 v61, 0\nv_mov_b32 v62, v56\nv_mov_b32 v63, v57")
            k.wait(vm="OST", lg="R0" if OPT.r0 else None, barrier=True)
        k.stamp(6) if not cfg.fine else (k.stamp(3) if cfg.fine == 2 else k1t.st(k, 'x0'))
        raise_(k, "k1_nf1", 0)
        if OPT.own:
            assert OPT.a2 and OPT.apre and not OPT.mk0
            k.vm = []
            for tb in range(4):
                for e in range(2):
                    k(f"s_xor_b32 s{S_T0+(tb&1)}, s{52+(tb>>1)}, {(tb&1)*131072}")
                    k.vmop(f"buffer_load_dwordx4 {ar((e*4 + tb)*4,4)}, v{V_L16}, {sr(S_X,4)}, s{S_T0+(tb&1)} offen offset:{e*1024} sc1", f"AB0_{tb}")
        if not OPT.early: addrs()
        wmid = [g for j in range(OPT.na0 + OPT.na1 + OPT.na2, OPT.anr) for g in a_w(j)]
        if not (OPT.own or OPT.r0): k.run(wmid)
        if OPT.ff and not OPT.early: k1t.setup_early(k)
        if OPT.mearly: k1t.m_finish(k, 96)
        if OPT.a2 and OPT.apre and not OPT.r0:
            k.lg = []
            k.run([L(f"ds_read_b64_tr_b16 {vr(192 + (e*8+t)*4 + 2*h, 2)}, v{V_W0+t} offset:{e*8192 + h*4096}", f"R0_{t}") for t in range(8) for e in range(2) for h in range(2)])
        if OPT.mk0:
            k(f"s_cmp_eq_u32 s{S_WAVE}, 0\ns_cbranch_scc0 k1_poll_ok")
            poll(k, "k1_poll", 0)
            k("s_waitcnt vmcnt(0)\ns_barrier\nk1_poll_e:")
        elif OPT.own or OPT.r0:
            pass
        elif "0" in OPT.pall:
            assert OPT.a2 and OPT.na0 + OPT.na2 >= 8
            k1t.pollall(k, "k1_h0", 27)
        else:
            k(f"s_cmp_eq_u32 s{S_WAVE}, 0\ns_cbranch_scc0 k1_h0_c\ns_mov_b32 s7, 0")
            k1t.pollloop(k, "k1_h0", 27)
    if OPT.fa:
        if not OPT.own: k.vm = []
        if not (OPT.a2 and OPT.apre): k.lg = []
        if cfg.fine == 2: k.stamp(4); k("s_waitcnt lgkmcnt(0)")
        if cfg.fine == 3: k1t.st(k, 'y0')
        if OPT.a2:
            assert OPT.anr in (16, 20) and OPT.fce == 0
            NQ = OPT.anr//4
            AC = lambda t, tb: 64 + (tb*8+t)*4
            AW = lambda u, e, t, n=4, o=0: (ar if u & 1 else vr)(192 + (e*8+t)*4 + o, n)
            AB = lambda u, e, tb: ((u % 6)*8 + e*4 + tb)*4
            def a_b(u):
                if OPT.r7 and u == 7:
                    return [[f"s_xor_b32 s{S_T0+tb}, s52, {tb*131072 + HX(u)*16384}\ns_sub_u32 s{S_T0+tb}, s{S_T0+tb}, s53",
                             V(f"buffer_load_dwordx4 {ar(((u % 6)*8 + s_*2 + tb)*4,4)}, v{V_L16}, {sr(S_X,4)}, s{S_T0+tb} offen offset:{s_*1024} sc1", "AB7_3")] for s_ in (2, 3, 0, 1) for tb in range(2)]
                return [[f"s_xor_b32 s{S_T0+(tb&1)}, s{100 if HT(u) else 52}, {tb*131072 + HX(u)*16384}",
                         V(f"buffer_load_dwordx4 {ar(AB(u,e,tb),4)}, v{V_L16}, {sr(S_X,4)}, s{S_T0+(tb&1)} offen offset:{e*1024} sc1", f"AB{u}_{tb}")] for tb in range(4) for e in range(2)]
            def a_reads(u, b_=1):
                base = (u % NQ)*32768; off = base & 0xffff
                if OPT.r7 and u == 7:
                    return [L(f"ds_read_b64_tr_b16 {AW(b_,e,t,2,2*h)}, v{V_VA+t} offset:{off + (2*b_+e)*8192 + h*4096}", f"R7_{t}" if b_ else "R8") for t in range(8) for e in range(2) for h in range(2)]
                return [L(f"ds_read_b64_tr_b16 {AW(u,e,t,2,2*h)}, v{(V_W0, V_W0+8, V_VA)[base>>16]+t} offset:{off + e*8192 + h*4096}", f"R{u}_{t}") for t in range(8) for e in range(2) for h in range(2)]
            bq = [g for u in range(8) for g in a_b(u)]; nbq = OPT.a2b0
            if OPT.own or OPT.r0: nbq = 8
            else: k.run(bq[:nbq])
            if not OPT.apre: k.run(a_reads(0))
            wq = [g for j in range(OPT.anr, 32) for g in a_w(j)]; nwq = 0; NWQ = len(wq)
            for u in range(8):
                k1t.st(k, f"a{u}")
                if u == 7 and OPT.r7:
                    assert OPT.anr == 16
                    k.wait(vm="AB7_3", lg="R7_7")
                    B7 = lambda s_, tb: ar(((u % 6)*8 + s_*2 + tb)*4, 4)
                    mf = []; n_ = 0
                    for t in range(8):
                        for tb_ in range(2):
                            tb = tb_ if t % 2 == 0 else 1 - tb_
                            d = vr(AC(t, tb), 4)
                            for e in ((0, 1) if n_ % 2 == 0 else (1, 0)): mf.append(f"{MF} {d}, {AW(1,e,t)}, {B7(2+e,tb)}, {d}")
                            n_ += 1
                    if OPT.r7 == 2:
                        mq = [It(x) for x in mf]; vq = []; n_ = 0
                        for ns_ in range(4):
                            for tb in (2, 3):
                                a = AC(2*ns_, tb); o = 32 + (n_ & 3)*4
                                vq += [It(f"v_cvt_pk_bf16_f32 v{o+d_}, v{a+2*d_}, v{a+2*d_+1}") for d_ in range(4)]
                                vq.append(It(L(f"ds_write_b128 v8, {vr(o,4)} offset:{n_*1024}", "XW"), cost=2))
                                n_ += 1
                        merge(k, mq, vq, [It(f"s_mov_b32 s{S_T0}, 0\ns_mov_b32 s{S_T0+1}, 16384", cost=0)] + [It(x) for x in a_reads(7, 0)], budget=3)
                        k.wait(lg='all')
                        k1t.st(k, "a8")
                        mq = []; vq = []; side = [It("s_barrier", cost=0)]; n_ = 0
                        side += [It(L(f"ds_read_b128 {vr(128+4*n,4)}, v9 offset:{n*1024}", f"E{n//4}")) for n in range(8)]
                        side += [It(W(lg="E0"), cost=0, gives="E0"), It(W(lg="E1"), cost=0, gives="E1")]
                        sel = []
                        for ns_ in range(4):
                            for tb in range(2):
                                o = 160 + n_*4; a = AC(2*ns_, tb)
                                for h in range(2):
                                    t = 2*ns_ + h; d = vr(AC(t, tb), 4)
                                    for e in ((0, 1) if h == 0 else (1, 0)): mq.append(It(f"{MF} {d}, {AW(0,e,t)}, {B7(e,tb)}, {d}"))
                                    sel.append(It(f"{MF} {d}, {vr(56+4*h,4)}, {vr(128+4*n_,4)}, {d}", needs={f"E{n_//4}": 0}, gives=f"D{t}{tb}"))
                                if n_ >= 2: mq += sel; sel = []
                                vq += [It(f"v_cvt_pk_bf16_f32 v{o+d_}, v{a+2*d_}, v{a+2*d_+1}", needs={f"D{2*ns_+(d_>>1)}{tb}": 8}) for d_ in range(4)]
                                vq.append(It(V(f"buffer_store_dwordx4 {vr(o,4)}, v{V_L16}, {sr(S_W,4)}, s{S_T0+tb} offen offset:{ns_*1024} sc1", "PST"), cost=2))
                                n_ += 1
                    else:
                        gaps = {}; rd = a_reads(7, 0)
                        wr = [L(f"ds_write_b128 v8, {vr(AC(t,tb),4)} offset:{((tb-2)*8+t)*1024}", "XW") for t in range(8) for tb in (2, 3)]
                        for g in range(32):
                            if g % 2 == 0: add(gaps, g, wr.pop(0))
                            else: add(gaps, g, rd.pop(0), rd.pop(0))
                        add(gaps, 1, f"s_mov_b32 s{S_T0}, 0\ns_mov_b32 s{S_T0+1}, 16384")
                        emit(k, mf, gaps)
                        k.wait(lg='all')
                        k1t.st(k, "a8")
                        mq = []; vq = []; side = [It("s_barrier", cost=0)]; n_ = 0
                        for ns_ in range(4):
                            for tb in range(2):
                                o = 32 + (n_ & 3)*4
                                for h in range(2):
                                    t = 2*ns_ + h; d = vr(AC(t, tb), 4)
                                    for i, e in enumerate((0, 1) if h == 0 else (1, 0)):
                                        mq.append(It(f"{MF} {d}, {AW(0,e,t)}, {B7(e,tb)}, {d}", gives=f"D{t}{tb}" if i else None))
                                    side.append(It(L(f"ds_read_b128 {vr(AC(t,tb+2),4)}, v9 offset:{(tb*8+t)*1024}", f"E{n_}"), gives=f"I{n_}" if h else None))
                                a = AC(2*ns_, tb)
                                vq.append(It(W(lg=f"E{n_}"), cost=0, needs={f"I{min(7, n_+1)}": 0, f"D{2*ns_}{tb}": 4}))
                                if n_ < OPT.r7p: vq += [It(f"v_add_f32 v{a+i}, v{a+i}, v{a+64+i}", needs={f"D{2*ns_+(i>>2)}{tb}": 8}) for i in range(8)]
                                else: vq += [It(f"v_pk_add_f32 {vr(a+i,2)}, {vr(a+i,2)}, {vr(a+64+i,2)}", needs={f"D{2*ns_+(i>>2)}{tb}": 8}) for i in range(0, 8, 2)]
                                vq += [It(f"v_cvt_pk_bf16_f32 v{o+d_}, v{a+2*d_}, v{a+2*d_+1}") for d_ in range(4)]
                                vq.append(It(V(f"buffer_store_dwordx4 {vr(o,4)}, v{V_L16}, {sr(S_W,4)}, s{S_T0+tb} offen offset:{ns_*1024} sc1", "PST"), cost=2))
                                n_ += 1
                    merge(k, mq, vq, side, budget=OPT.r7b)
                    break
                if u == 7:
                    k.wait(vm="AB7_3", lg="R7_7")
                    mq = []; vq = []; side = [It(f"s_mov_b32 s{S_T0}, 0\ns_mov_b32 s{S_T0+1}, 16384", cost=0)]
                    for tb in (2, 3, 0, 1):
                        for t_ in range(8):
                            t = t_ if tb % 2 == 0 else 7 - t_
                            d = vr(AC(t, tb), 4)
                            for i, e in enumerate((0, 1) if t_ % 2 == 0 else (1, 0)):
                                mq.append(It(f"{MF} {d}, {AW(u,e,t)}, {ar(AB(u,e,tb),4)}, {d}", gives=f"D{t}{tb}" if i else None))
                            if tb >= 2: side.append(It(f"ds_write_b128 v8, {d} offset:{((tb-2)*8+t)*1024}", cost=2, needs={f"D{t}{tb}": 8, f"w{len(side)-1}": OPT.awsp}, gives=f"w{len(side)}"))
                    side[0].gives = "w0"
                    merge(k, mq, [], side)
                    k("s_waitcnt lgkmcnt(0)\ns_barrier")
                    k1t.st(k, "a8")
                    k.lg = []
                    for tb in range(2):
                        for t in range(8): k.lgop(f"ds_read_b128 {vr(AC(t,tb+2),4)}, v9 offset:{(tb*8+t)*1024}", f"E{tb}{t>>1}")
                    n_ = 0
                    for tb in range(2):
                        for ns_ in range(4):
                            k.wait(lg=f"E{tb}{ns_}")
                            a = AC(2*ns_, tb); o = 192 + n_*4; n_ += 1
                            for i in range(0, 8, 2): k(f"v_pk_add_f32 {vr(a+i,2)}, {vr(a+i,2)}, {vr(a+64+i,2)}")
                            for d in range(4): k(f"v_cvt_pk_bf16_f32 v{o+d}, v{a+2*d}, v{a+2*d+1}")
                            k.vmop(f"buffer_store_dwordx4 {vr(o,4)}, v{V_L16}, {sr(S_W,4)}, s{S_T0+tb} offen offset:{ns_*1024} sc1", "PST")
                    break
                mf = []; n_ = 0
                for t in range(8):
                    for tb_ in range(4):
                        tb = tb_ if t % 2 == 0 else 3 - tb_
                        d = vr(AC(t, tb), 4)
                        for i, e in enumerate((0, 1) if n_ % 2 == 0 else (1, 0)):
                            z = (u == 0 or (OPT.r0 and u == 1 and tb >= 2)) and i == 0
                            mf.append(f"{MF} {d}, {AW(u,e,t)}, {ar(AB(u,e,tb),4)}, {'0' if z else d}")
                        n_ += 1
                if OPT.r0 and u == 0:
                    mf = []; n_ = 0
                    for b_ in (1, 0):
                        for t in range(8):
                            for tb_ in range(2):
                                tb = tb_ if t % 2 == 0 else 1 - tb_
                                d = vr(AC(t, tb), 4)
                                for i, e in enumerate((0, 1) if n_ % 2 == 0 else (1, 0)):
                                    mf.append(f"{MF} {d}, {AW(b_,e,t)}, {ar(((2*b_+e)*2+tb)*4,4)}, {'0' if (b_ and i == 0) else d}")
                                n_ += 1
                vm = []
                while len(vm) < (OPT.ownn if ((OPT.own or OPT.r0) and u == 0) else OPT.a2n):
                    wok = nwq < NWQ and u >= nwq//8 + 1
                    bok = nbq < 64 and nbq//8 - 6 < u
                    if wok and (not bok or NQ + nwq//8 - 1 <= nbq//8): vm.append(wq[nwq]); nwq += 1
                    elif bok: vm.append(bq[nbq]); nbq += 1
                    else: break
                assert nwq >= min(NWQ, (u + 3 - NQ)*8) and nbq >= min(64, (u + 2)*8), (u, nwq, nbq)
                if OPT.ff and u == 6: vm += ([] if OPT.mearly else k1t.m_loads(64)) + k1t.x_loads()
                if OPT.r0 and u == 0:
                    gaps = {}
                    wm = wmid + wq[:OPT.r0w]; nwq = OPT.r0w
                    for i, x in enumerate(wm): add(gaps, (30*i)//len(wm), *x)
                    rd = a_reads(1)
                    for g in range(31, 47): add(gaps, g, rd.pop(0), rd.pop(0))
                    add(gaps, -1, W(lg="R0"))
                    front(gaps, OPT.ownp, V(f"buffer_load_dword v3, v27, {sr(S_K,4)}, s63 offen sc1", "F1"))
                    add(gaps, 63, W(vm="F1"), f"v_cmp_ne_u32 vcc, 0x{MAGIC:x}, v3\ns_cbranch_vccnz k1_spin1\nk1_spin1_ret:")
                    for x in vm: add(gaps, 63, *x)
                    emit(k, mf, gaps)
                    continue
                if OPT.own and u == 0:
                    gaps = {}
                    for i, x in enumerate(wmid): add(gaps, 7 + 2*i, *x)
                    rd = a_reads(1)
                    for g in range(1, OPT.ownc):
                        if g not in gaps and rd: add(gaps, g, rd.pop(0))
                    assert not rd and OPT.ownp > 7 + 2*len(wmid) - 2
                    front(gaps, OPT.ownp, V(f"buffer_load_dword v3, v27, {sr(S_K,4)}, s63 offen sc1", "F1"))
                    add(gaps, OPT.ownc, W(vm="F1"), f"v_cmp_ne_u32 vcc, 0x{MAGIC:x}, v3\ns_cbranch_vccnz k1_spin1\nk1_spin1_ret:")
                    for i, x in enumerate(vm): add(gaps, min(63, OPT.ownc + 1 + i), *x)
                else:
                    gaps = k1t.spread(64, a_reads(u+1), vm, g1=56)
                if (OPT.own or OPT.r0) and u == 1:
                    add(gaps, -1, W(vm="AB1_0", lg="R1_7"))
                    front(gaps, 0, "s_barrier")
                    for tb in range(1, 4): front(gaps, 2*tb-1, W(vm=f"AB1_{tb}"))
                elif u == 0:
                    add(gaps, -1, W(vm="AB0_0", lg="R0_1"))
                    for tb in range(1, 4): front(gaps, 2*tb-1, W(vm=f"AB0_{tb}"))
                    front(gaps, 13, W(lg="R0_7"))
                else:
                    add(gaps, -1, W(vm=f"AB{u}_3", lg=f"R{u}_7"))
                    front(gaps, 0, W(vm=f"AW{4*u+7}", barrier=True))
                if OPT.slowa: add(gaps, 63, f"s_sleep {OPT.slowa}"); add(gaps, 31, f"s_sleep {OPT.slowa}")
                emit(k, mf, gaps)
            assert nbq == 64 and nwq == NWQ
            k1t.MBASE = 64
            k1t.rest(k, 0)
    if OPT.fa and not OPT.a2:
        AC = lambda t, tb: 64 + (t*2+tb)*4
        AWF = lambda j, t: 128 + ((j&3)*8+t)*4
        ABF = lambda j, tb: (j*2+tb)*4
        def a_b(j):
            return [[f"s_mov_b32 s{S_T0+tb}, {tb*131072 + AH(j)*16384}",
                     V(f"buffer_load_dwordx4 {ar(ABF(j,tb),4)}, v{V_L16}, {sr(S_X,4)}, s{S_T0+tb} offen offset:{AS(j)*1024} sc1", f"AB{j}")] for tb in range(2)]
        def a_reads(p):
            r = []
            for t in range(8):
                for j in (2*p, 2*p+1):
                    base = (j % OPT.anr)*8192; off = base & 0xffff
                    r += [L(f"ds_read_b64_tr_b16 {vr(AWF(j,t)+2*h,2)}, v{(V_W0, V_VA, V_W0+8)[base >> 16]+t} offset:{off + h*4096}", f"R{p}_{t}") for h in range(2)]
            return r
        nb = OPT.nb0
        for j in range(nb): k.run(a_b(j))
        k.run(a_reads(0))
        nw = max(OPT.na3, OPT.na0 + OPT.na1 + OPT.na2) if OPT.f2 else OPT.anr; ncw = 0
        for p in range(16):
            mf = []; n_ = 0
            for t in range(8):
                for tb_ in range(2):
                    tb = tb_ if t % 2 == 0 else 1 - tb_
                    d = vr(AC(t, tb), 4)
                    for i, j in enumerate((2*p, 2*p+1) if n_ % 2 == 0 else (2*p+1, 2*p)):
                        mf.append(f"{MF} {d}, {vr(AWF(j,t),4)}, {ar(ABF(j,tb),4)}, {d if (p or i) else '0'}")
                    n_ += 1
            if p == 15 and OPT.amrg:
                k.wait(vm=f"AB{2*p+1}", lg=f"R{p}_3")
                mq = []; vq = []; n_ = 0
                for ns_ in range(4):
                    for tb_ in range(2):
                        tb = tb_ if ns_ % 2 == 0 else 1 - tb_
                        o = 128 + n_*4
                        for h_ in range(2):
                            h = h_ if n_ % 2 == 0 else 1 - h_
                            t = 2*ns_ + h; a = AC(t, tb); d = vr(a, 4)
                            for i, j in enumerate((2*p, 2*p+1) if h_ == 0 else (2*p+1, 2*p)):
                                mq.append(It(f"{MF} {d}, {vr(AWF(j,t),4)}, {ar(ABF(j,tb),4)}, {d}", gives=f"D{t}{tb}" if i else None, needs={"RR": 0} if len(mq) == 16 else None))
                            vq += [It(f"v_cvt_pk_bf16_f32 v{o+2*h+e}, v{a+2*e}, v{a+2*e+1}", needs={f"D{t}{tb}": 8}) for e in range(2)]
                        vq.append(It(V(f"buffer_store_dwordx4 {vr(o,4)}, v{V_L16}, {sr(S_W,4)}, s{S_T0+tb} offen offset:{ns_*1024} sc1", "PST"), cost=2))
                        n_ += 1
                merge(k, mq, vq, [It(f"s_mov_b32 s{S_T0}, 0\ns_mov_b32 s{S_T0+1}, 16384", cost=0), It(W(lg='all'), cost=0, gives="RR", needs={"D01": 0})])
                break
            vm = []
            for _ in range(OPT.nbs):
                wok = nw < 32 and (nw < OPT.anr or p >= (nw-OPT.anr)//2 + 1)
                if wok and (nb >= 32 or nw//2 - 1 - OPT.wlead <= nb//2): vm += a_w(nw); nw += 1
                elif nb < 32 and not (OPT.f2 and nb >= 16 and p < OPT.f2c): vm += a_b(nb); nb += 1
                elif wok: vm += a_w(nw); nw += 1
                elif OPT.ff and nw == 32 and ncw < OPT.fce and len(vm) <= 3 and k1t.a_last(k1t.cperm()[ncw], OPT.anr) <= p - 1:
                    vm += k1t.c_w(ncw); ncw += 1
            if OPT.ff and p == OPT.fxp: vm += k1t.x_loads()
            if OPT.ff and p in (OPT.fmp, OPT.fmp+1): vm += k1t.m_loads()[4*(p-OPT.fmp):4*(p-OPT.fmp)+4]
            if OPT.f2 and p == OPT.f2c - 1: vm.insert(len(vm)//2, [V(f"buffer_load_dword v3, v27, {sr(S_K,4)}, s63 offen offset:32 sc1", "F2")])
            if OPT.loc and p == OPT.lwb:
                vm.append([f"s_lshr_b32 s6, s2, 3\ns_or_b32 s6, s6, s{S_WAVE}\ns_cbranch_scc1 k1_nowb\nbuffer_wbl2 sc1\nk1_nowb:"])
            rd = a_reads(p+1) if p < 15 else []
            if OPT.ax == 1: rd = []
            if OPT.ax == 2: vm = []
            if OPT.ax == 3: rd = rd[:24]
            if OPT.ax == 4: vm = [x for x in vm if "m0" in x[0]]
            if OPT.amix:
                gaps = fill(32, [], [], vm, g0=1)
                fr = [g for g in range(1, 31) if g not in gaps]
                for i, g in enumerate(fr):
                    c = (len(rd) + len(fr) - i - 1)//(len(fr) - i) if (i % 2 == 0 or len(rd) >= 2*(len(fr)-i)) else len(rd)//(len(fr) - i)
                    for _ in range(c): add(gaps, g, rd.pop(0))
                assert not rd
            else:
                gaps = fill(32, rd, [], vm, g0=1, pair_lds=True)
            add(gaps, -1, W(vm=f"AB{2*p+1}", lg=f"R{p}_3"))
            if OPT.f2 and p == OPT.f2c:
                add(gaps, -1, W(vm="F2"), "v_cmp_ne_u32 vcc, 1, v3\ns_cbranch_vccnz k1_spin2\nk1_spin2_ret:")
            front(gaps, 12, W(lg=f"R{p}_7"))
            if OPT.slowa and OPT.slow0 <= p < OPT.slown: add(gaps, 31, f"s_sleep {OPT.slowa}")
            if 1 <= p < 15 and not OPT.anob: front(gaps, 0, W(vm=f"AW{2*p+3}", barrier=True))
            emit(k, mf, gaps)
            if cfg.fine == 2 and p == 1: k.stamp(5); k("s_waitcnt lgkmcnt(0)"); k.lg = []
        if cfg.fine == 2: k.stamp(6)
        assert nb == 32 and nw == 32
        k(f"s_mov_b32 s{S_T0}, 0\ns_mov_b32 s{S_T0+1}, 16384")
        n_ = 0
        for ns_ in range(4 if not OPT.amrg else 0):
            for tb in range(2):
                o = 128 + n_*4; n_ += 1
                for h in range(2):
                    a = AC(2*ns_+h, tb)
                    k(f"v_cvt_pk_bf16_f32 v{o+2*h}, v{a}, v{a+1}\nv_cvt_pk_bf16_f32 v{o+2*h+1}, v{a+2}, v{a+3}")
                k(f"buffer_store_dwordx4 {vr(o,4)}, v{V_L16}, {sr(S_W,4)}, s{S_T0+tb} offen offset:{ns_*1024} sc1")
        if OPT.ff: k1t.rest(k, ncw)
    k.dbg_mark(3, 100, 101, True); k.dbg_mark(4, 102, 103)
    if prof:
        k.stamp(6) if not (cfg.fine or OPT.fa) else None
        k("s_waitcnt vmcnt(0)")
        k.stamp(7) if cfg.fine != 1 else None
        k.dump_stamps(8, 54, 100)
    k(f"{end}:")
    k("s_endpgm")
    if OPT.own or OPT.r0:
        k("k1_spin1:")
        k1t.pollall(k, "k1_sp1", 27)
        k("s_branch k1_spin1_ret")
    if OPT.f2:
        k("k1_spin2:")
        poll(k, "k1_poll2", 32)
        k("s_branch k1_spin2_ret")
    k("k1_fallback:")
    k(f"s_mov_b32 s{S_RERUN}, 1")
    k("v_and_b32 v2, 63, v0\nv_lshrrev_b32 v3, 4, v2\nv_and_b32 v4, 15, v2")
    k("v_lshlrev_b32 v5, 8, v4\nv_lshl_add_u32 v5, v3, 4, v5")
    for q in range(4): k(f"v_mov_b32 v{V_T+q}, 0xff800000")
    k("s_mov_b32 s6, 0")
    k("k1_fb_loop:")
    for s in range(4): k(f"buffer_load_dwordx4 {ar(KF(s),4)}, v5, {sr(S_K,4)}, s6 offen offset:{64*s}")
    k("s_waitcnt vmcnt(0)")
    for s in range(4):
        for qb in range(4):
            d = vr(S(0,0,qb),4)
            k(f"{MF} {d}, {ar(KF(s),4)}, {vr(Q(qb,s),4)}, {d if s else '0'}")
    k("s_nop 15")
    for qb in range(4):
        a = S(0,0,qb)
        k(f"v_max3_f32 v{V_T+qb}, v{V_T+qb}, v{a}, v{a+1}")
        k(f"v_max3_f32 v{V_T+qb}, v{V_T+qb}, v{a+2}, v{a+3}")
    k("s_add_u32 s6, s6, 4096\ns_cmp_lt_u32 s6, 0x80000\ns_cbranch_scc1 k1_fb_loop")
    rowmax_cross(k, [V_T+q for q in range(4)], V_T+4)
    for x in pfv: k(x)
    for qb in range(4):
        k(f"v_mov_b32 v{V_LS+qb}, 0")
        for i in range(4): k(f"v_sub_f32 v{MN(qb)+i}, 0, v{V_T+qb}")
    k("s_barrier")
    k.vm = []; k.lg = []
    for wh, t in (('K',0),('K',1),('V',0),('K',2),('V',1),('K',3)): run(kv_group(wh, t))
    k.wait(vm="V0", barrier=True)
    run(kreads(0, 0, HK(0))); k("s_waitcnt lgkmcnt(0)"); run(kreads(0, 1, HK(1)))
    for m in qk_mfmas(0, HK(0)): k(m)
    k("s_waitcnt lgkmcnt(0)\ns_barrier")
    run(kreads(1, 0))
    for m in qk_mfmas(1, HK(1)): k(m)
    merge(k, [], sm0([0, 1, 2, 3], sub=False))
    k(loopinit)
    k("s_branch k1_first")
    return k
```

```python
import math, struct

NAME = "adaLN_cond__gqa_block_cached__glu_gated_bilinear__prompt"

KA_X, KA_K, KA_V, KA_WQ, KA_WO, KA_BX, KA_WG, KA_WU, KA_WD, KA_C, KA_WM, KA_OUT, KA_DBG, KA_WS = [8*i for i in range(14)]

WS_MOD  = 0x0
WS_MODP = 0x4000
WS_FLAG = 0x640000
WS_XH   = 0x10000
WS_H2   = 0x210000
WS_X1   = 0x410000
WS_OF   = 0x800000
WS_PART = 0x1800000
WS_HF   = 0x2800000
WS_DBG  = 0x4000000

MAGIC = 0x5ac3e19b

def f2u(x):
    return struct.unpack("<I", struct.pack("<f", x))[0]

def hexf(x):
    return "0x%08x" % f2u(x)

def vr(b, n=1):
    return f"v{b}" if n == 1 else f"v[{b}:{b+n-1}]"
def ar(b, n=1):
    return f"a{b}" if n == 1 else f"a[{b}:{b+n-1}]"
def sr(b, n=1):
    return f"s{b}" if n == 1 else f"s[{b}:{b+n-1}]"

class Kern:
    def __init__(self, name, grid, block, lds, vgpr, accum, sgpr=96):
        self.name = name; self.grid = grid; self.block = block; self.lds = lds
        self.vgpr = vgpr; self.accum = accum; self.sgpr = sgpr
        self.L = []
        self.vm = []
        self.lg = []
        self.nlab = 0
    def __call__(self, s):
        for ln in s.split("\n"):
            ln = ln.strip()
            if ln: self.L.append("    " + ln if not ln.endswith(":") else ln)
    def label(self, base):
        self.nlab += 1
        return f"{self.name}_{base}_{self.nlab}"
    def c(self, s):
        self.L.append("    ; " + s)
    def vmop(self, s, tag):
        self(s); self.vm.append(tag)
        assert len(self.vm) <= 63, "too many outstanding vmem ops"
    def vm_count_for(self, tag):
        idx = [i for i, t in enumerate(self.vm) if t == tag]
        if not idx: return None
        return len(self.vm) - 1 - idx[-1]
    def vmwait(self, tag, extra=""):
        n = self.vm_count_for(tag)
        if n is None:
            if extra: self(f"s_waitcnt {extra}")
            return
        self(f"s_waitcnt vmcnt({n}) {extra}")
        self.vm = self.vm[len(self.vm) - n:] if n else []
    def lgop(self, s, tag):
        self(s); self.lg.append(tag)
    def wait(self, vm=None, lg=None, barrier=False):
        parts = []
        if vm is not None:
            n = self.vm_count_for(vm)
            if n is not None:
                parts.append(f"vmcnt({n})"); self.vm = self.vm[len(self.vm) - n:] if n else []
        if lg is not None:
            if lg == 'all': n = 0 if self.lg else None
            else:
                idx = [i for i, t in enumerate(self.lg) if t == lg]
                n = len(self.lg) - 1 - idx[-1] if idx else None
            if n is not None:
                n = min(n, 15)
                parts.append(f"lgkmcnt({n})"); self.lg = self.lg[len(self.lg) - n:] if n else []
        if parts: self("s_waitcnt " + " ".join(parts))
        if barrier: self("s_barrier")
    def run(self, items):
        for f in items:
            if isinstance(f, (list, tuple)): self.run(f)
            else: f(self) if callable(f) else self(f)
    def dbg_begin(self, kidx):
        if not OPT.dbg: return
        self.sgpr = 102
        self(f"s_load_dwordx2 s[92:93], s[0:1], {KA_DBG}\ns_memrealtime s[96:97]\ns_waitcnt lgkmcnt(0)")
        self(f"s_sub_u32 s92, s92, {kidx*512}\ns_subb_u32 s93, s93, 0\ns_mov_b32 s94, 1280\ns_mov_b32 s95, 0x20000")
    def dbg_mark(self, slot, va, vb, start=False):
        if not OPT.dbg: return
        if not start: self("s_memrealtime s[96:97]\ns_waitcnt lgkmcnt(0)")
        else: self("s_not_b32 s96, s96")
        self(f"v_mov_b32 v{va}, s96\nv_mov_b32 v{vb}, {slot*4}\ns_mov_b64 exec, 1")
        for o in (0, 512, 1024): self(f"buffer_atomic_umax v{va}, v{vb}, s[92:95], 0 offen offset:{o}")
        self("s_mov_b64 exec, -1")
    def stamp(self, idx):
        if not getattr(self, 'prof', False): return
        if idx == 0 and OPT.hdbg:
            self.sgpr = 102; self(f"s_load_dwordx2 s[100:101], s[0:1], {KA_DBG}")
        self(f"s_memtime s[{64+4*idx}:{65+4*idx}]\ns_memrealtime s[{66+4*idx}:{67+4*idx}]")
    def dump_stamps(self, n, wsreg, vt):
        if not getattr(self, 'prof', False): return
        self("s_waitcnt lgkmcnt(0)")
        if OPT.hdbg:
            kid = int(self.name[1]); lab = self.label("nd")
            self(f"v_readfirstlane_b32 s60, v0\ns_lshr_b32 s60, s60, 6\ns_xor_b32 s61, s2, {OPT.hdbg-1}\ns_or_b32 s60, s60, s61\ns_cbranch_scc1 {lab}")
            self(f"s_add_u32 s60, s100, {(1-kid)*512}\ns_addc_u32 s61, s101, 0\ns_mov_b32 s62, 256\ns_mov_b32 s63, 0x20000\nv_mov_b32 v{vt}, 0")
            for i in range(n):
                self(f"v_mov_b32 v{vt+2}, s{66+4*i}\nbuffer_store_dword v{vt+2}, v{vt}, s[60:63], 0 offen offset:{kid*16+4*i}\ns_nop 1")
            self(f"{lab}:")
            return
        self(f"s_add_u32 s60, s{wsreg}, 0x{WS_DBG + (int(self.name[1]) if self.name[1].isdigit() else 1)*0x10000:x}\ns_addc_u32 s61, s{wsreg+1}, 0\ns_mov_b32 s62, 0x100000\ns_mov_b32 s63, 0x20000")
        self(f"v_lshrrev_b32 v{vt}, 6, v0\nv_lshl_add_u32 v{vt}, s2, 2, v{vt}\nv_lshlrev_b32 v{vt}, 6, v{vt}")
        for i in range(n):
            self(f"v_mov_b32 v{vt+2}, s{64+4*i}\nv_mov_b32 v{vt+3}, s{66+4*i}")
            self(f"buffer_store_dwordx2 v[{vt+2}:{vt+3}], v{vt}, s[60:63], 0 offen offset:{8*i}\ns_nop 1")
    def code_pf(self, start, end, vt, st, idx_sgpr):
        lab = self.label("pc")
        self(f"s_getpc_b64 s[{st}:{st+1}]")
        self(f"{lab}:")
        self(f"s_add_u32 s{st}, s{st}, {start}-{lab}\ns_addc_u32 s{st+1}, s{st+1}, 0")
        self(f"v_and_b32 v{vt}, 63, v0\nv_lshlrev_b32 v{vt}, 7, v{vt}\ns_lshl_b32 s{st+2}, s{idx_sgpr}, 13\nv_add_u32 v{vt}, s{st+2}, v{vt}")
        self(f"v_min_u32 v{vt}, {end}-{start}-4, v{vt}")
        assert vt % 2 == 0
        self(f"v_mov_b32 v{vt+1}, s{st+1}\nv_add_co_u32 v{vt}, vcc, s{st}, v{vt}\ns_nop 1\nv_addc_co_u32 v{vt+1}, vcc, 0, v{vt+1}, vcc")
        self(f"global_load_dword v{vt+2}, v[{vt}:{vt+1}], off")
    def srd(self, d, base, nbytes, off=0):
        if off:
            self(f"s_add_u32 s{d}, s{base}, 0x{off:x}")
            self(f"s_addc_u32 s{d+1}, s{base+1}, 0")
        else:
            self(f"s_mov_b32 s{d}, s{base}")
            self(f"s_mov_b32 s{d+1}, s{base+1}")
        self(f"s_mov_b32 s{d+2}, 0x{nbytes:x}")
        self(f"s_mov_b32 s{d+3}, 0x20000")
    def text(self):
        return f".globl {self.name}\n.p2align 8\n.type {self.name},@function\n{self.name}:\n" + "\n".join(self.L) + "\n"
    def desc(self):
        return f""".p2align 6
.amdhsa_kernel {self.name}
  .amdhsa_next_free_vgpr {self.vgpr}
  .amdhsa_next_free_sgpr {self.sgpr}
  .amdhsa_accum_offset {self.accum}
  .amdhsa_group_segment_fixed_size 0
  .amdhsa_kernarg_size 112
  .amdhsa_user_sgpr_count 2
  .amdhsa_user_sgpr_kernarg_segment_ptr 1
  .amdhsa_system_sgpr_workgroup_id_x 1
  .amdhsa_float_denorm_mode_32 3
  .amdhsa_float_denorm_mode_16_64 3
.end_amdhsa_kernel
"""
    def launch(self):
        if self.name == NAME + "_kernel" and not OPT.aslist: return f"; @launch grid=({self.grid},1,1) block=({self.block},1,1) lds={self.lds}\n"
        return f"; @launch kernel={self.name} grid=({self.grid},1,1) block=({self.block},1,1) lds={self.lds}\n"

HEADER = """; adaLN-conditioned block: LN+modulate -> Q proj -> attention over cached K/V -> O proj -> LN+modulate -> bilinear GLU
; k1: one workgroup per CU (4 waves x 512 registers, 160 KB LDS, so all 256 are co-resident): (head, 256 queries):
;   recomputes the true row max over all keys and redoes the attention with it (k1_fallback).
"""
def assemble(kerns):
    s = HEADER + "".join(k.launch() for k in kerns)
    s += '.amdgcn_target "amdgcn-amd-amdhsa--gfx950"\n.text\n'
    seen = []
    for k in kerns:
        if k.name in seen: continue
        seen.append(k.name); s += k.text()
    s += "code_end_marker:\n    s_endpgm\n"
    s += '.section .rodata,"a"\n'
    seen = []
    for k in kerns:
        if k.name in seen: continue
        seen.append(k.name); s += k.desc()
    return s

class Opt:
    st0 = ""; st1 = ""; st2 = "sc1"; st3 = "sc1"; st4 = "sc1"; st5 = "sc1"
    map4 = 1; d2 = 6; pf2 = 0; pf3 = 0; ramp4 = 1; la5 = 4; map5 = 0; a3 = 0; a3o = "L0,H0,L1,L2,H1,L3,L4,L5"; a3d = 1; a3n = 7; a3b0 = 8; a3p = 20; a3s = 8; cp2 = 1; mdr = 1; hdbg = 0; stz = ""; stm = ""; own = 0; r0 = 1; ownp = 54; r0w = 8; r7 = 0; r7p = 4; r7b = 2; ownc = 52; ownn = 8; early = 1; pall = ""; t2 = 1; t2a = 2; t2b = 5; prog = 1; mearly = 0; apre = 1; awsp = 3; a2 = 1; a2b0 = 8; a2n = 14; l2w = 2; l2d = 2; lateptr = 1; trunc = 0; pp = 0; opt32 = 0; aslist = 1; mk0 = 0; pd0 = 4; dflag = 0; ilv = 1; wpl = 5; ptouch = 1; ptf = ""; mw0 = 2; mw1 = 0; mw2 = 0; loc = 0; lst = ""; lwb = 99; lpo = 2; lsite = 1; lc0 = 1; lcn = 4; f2 = 0; na3 = 18; f2n = 12; f2c = 3; fdr = 2; fdl = 4; fdq = 0; cx = 0; ff = 1; fce = 0; fc1 = 3; fc2 = 4; fc3 = 5; fb0 = 4; fvm = 11; fde = 6; fd1 = 2; fdb0 = 3; fxp = 14; fmp = 12; fdl2 = 0; fdl3 = 0; fts = ""; cpre4 = "0333"; amrg = 1; dearly = 8; slow0 = 0; cmrg = 1; modk1 = 1; xlate = 2; xp = 13; x1late = 0; a0n = 3; mrg = 1; ln1 = 1; kts = "a,y0,s1,y1,s2,y2"; k0t = 1; ax = 0; amix = 1; anob = 0; cpre5 = "03012"; fa = 1; na0 = 8; na1 = 0; na2 = 3; xpf = 3; anr = 16; nb0 = 6; nbs = 3; wlead = 0; cpf2 = 1; na3 = 18; nsc1 = 4; e64 = ""; a64 = ""; barfree = 0; pad = 0; dbg = 0; achain = 1; opf = ""; wpf = ""; bk = 14; vsp = 6; v0 = 12; idle = 0; slowa = 0; slown = 32; ont = ""; fused = 1; cnw = 9; cnb = 4; dnw = 12; dnb = 6; cpre = "030303"; dpre = 8; psleep = 0; pdelay = 8; rep = 16; dmid = 2; fst = "sc1"; fld = "sc1"; serp = 1; prio = 0; lprio = 0; o3 = "xa0123bc"; wqpf = 2; wqnt = "nt"; qko = 4; pvo = 2; xnt = "nt"; cpf = 1; kvnt = "nt"
OPT = Opt()
```

```python
from common import *
from sched import fill, L, V, W, front, emit, It, merge
from k0 import mod_loads, mod_finish, C1
import k1t, k1p

MF = "v_mfma_f32_16x16x32_bf16"

SLOT = 16384
KB = 0
VB = 65536
PARB = 9*SLOT
FLAGB = PARB + 4096
WSLOT = [1, 4, 2, 5, 3, 6, 7, 8]

def O(db, qb): return (db*4+qb)*4
def LA(qb): return 128 + qb*4
def KF(i): return 144 + i*4
def VF(i): return 176 + i*4
ONES = 240
def Q(qb, s): return 128 + (qb*4+s)*4
def S(buf, kb, qb): return 64 + buf*32 + (kb*4+qb)*4
def P(buf, qb): return (32 + buf*16 if buf < 2 else 208 + (buf-2)*16) + qb*4
def MN(qb): return 192 + qb*4
V_KA = 8
V_VA = 12
V_DK = 20
V_DV = 24
V_L16 = 26
V_LS = 28
V_PF = 2
V_T = 208
def XR(slot, qb): return 128 + ((slot%4)*4+qb)*4
def QA(t, qb): return vr(192 + (qb*8+t)*4, 4) if qb < 2 else ar(((qb-2)*8+t)*4, 4)
def HK(b): return (lambda i: 64 + b*32 + i*4)
def HF(buf, qb): return 32 + (buf*4+qb)*4
def PAR(buf): return 64 + buf*16
V_PT = 96
V_WA = 112
V_DW = 124
V_PA = 125
def WF(buf, t): return 128 + (buf*8+t)*4
S_K, S_V, S_W, S_X, S_M, S_O = 8, 12, 16, 20, 24, 28
S_W4 = 32
S_KOFF, S_VOFF = 33, 34
S_CNT = 35
S_T0 = 36
S_RERUN = 44
S_WAVE = 45
S_W1 = 62

def emit_phase(k, mf, gaps):
    for f in gaps.get(-1, []): f(k) if callable(f) else k(f)
    for i, m in enumerate(mf):
        k(m)
        for f in gaps.get(i, []): f(k) if callable(f) else k(f)
    for g in gaps:
        assert g < len(mf), (g, len(mf))

def add(gaps, g, *items):
    gaps.setdefault(g, []).extend(items)

def qk_mfmas(buf, kf=KF, czero=False):
    r = []
    order = {0: [(kb,s,qb) for kb in range(2) for s in range(4) for qb in range(4)],
             1: [(kb,s,qb) for kb in range(2) for qb in range(4) for s in range(4)],
             2: [(kb,s,qb) for qb in range(4) for s in range(4) for kb in range(2)],
             4: [(kb,s if qb%2==0 else 3-s,qb) for kb in range(2) for qb in range(4) for s in range(4)],
             5: [(kb,s if kb%2==0 else 3-s,qb) for qb in range(4) for kb in range(2) for s in range(4)],
             3: [(kb,s,qb if s%2==0 else 3-qb) for kb in range(2) for s in range(4) for qb in range(4)]}[OPT.qko]
    seen = set()
    for kb, s, qb in order:
            if True:
                d = vr(S(buf, kb, qb), 4)
                started = (kb, qb) in seen; seen.add((kb, qb))
                c = d if started else ("0" if czero else vr(MN(qb), 4))
                r.append(f"{MF} {d}, {ar(kf(kb*4+s),4)}, {vr(Q(qb,s),4)}, {c}")
    return r

def pv_mfmas(buf, sumq, vf=VF, czero=False):
    r = []
    for qb in sumq:
        d = ar(LA(qb), 4)
        r.append(f"{MF} {d}, {ar(ONES,4)}, {vr(P(buf,qb),4)}, {'0' if czero else d}")
    order = {0: [(db,qb) for db in range(8) for qb in range(4)],
             1: [(db,qb) for qb in range(4) for db in range(8)],
             3: [(db if qb%2==0 else 7-db,qb) for qb in range(4) for db in range(8)],
             2: [(db,qb if db%2==0 else 3-qb) for db in range(8) for qb in range(4)]}[OPT.pvo]
    for db, qb in order:
        if True:
            d = ar(O(db, qb), 4)
            r.append(f"{MF} {d}, {ar(vf(db),4)}, {vr(P(buf,qb),4)}, {'0' if czero else d}")
    return r

def exps(buf, qbs):
    r = []
    for qb in qbs:
        for kb in range(2):
            for i in range(4):
                x = S(buf, kb, qb) + i
                r.append(f"v_exp_f32{OPT.e64} v{x}, v{x}")
    return r
def cvts(buf, qbs, pb=None):
    pb = buf if pb is None else pb
    r = []
    for qb in qbs:
        for kb in range(2):
            for h in range(2):
                x = S(buf, kb, qb) + 2*h
                r.append(f"v_cvt_pk_bf16_f32 v{P(pb,qb)+kb*2+h}, v{x}, v{x+1}" if not OPT.trunc else f"v_perm_b32 v{P(pb,qb)+kb*2+h}, v{x+1}, v{x}, s53")
    return r
def adds(buf, qbs, addq):
    r = []
    for qb in qbs:
        for kb in range(2):
            for i in range(4):
                x = S(buf, kb, qb) + i
                r.append(f"v_add_f32{OPT.a64} v{V_LS+qb}, v{x}, v{V_LS+qb}" if qb in addq else None)
    return r
def kreads(slot, blk, kf=KF):
    r = []
    for kb in range(2):
        for s in range(4):
            r.append(f"ds_read_b128 {ar(kf(kb*4+s),4)}, v{V_KA+s} offset:{KB+slot*SLOT+blk*8192+kb*4096}")
    return r
def vreads(slot, blk, vf=VF):
    r = []
    for db in range(8):
        for h in range(2):
            r.append(f"ds_read_b64_tr_b16 {ar(vf(db)+2*h,2)}, v{V_VA+db} offset:{slot*SLOT+blk*8192+h*4096}")
    return r
def dma_k(p): return f"buffer_load_dwordx4 v{V_DK+p}, {sr(S_K,4)}, s{S_KOFF} offen offset:{p*1024} {OPT.kvnt} lds"
def dma_v(p): return f"buffer_load_dwordx4 v{V_DV+(p&1)}, {sr(S_V,4)}, s{S_VOFF} offen offset:{p*1024} {OPT.kvnt} lds"

class Cfg:
    la = 4
    wb4 = 0
    nvm = 8
    npk = 10
    ne1 = 33
    nv1 = 11
    v19 = 1
    wb = 0
    pfo = 2
    pfc = (5, 2, 9)
    ppf = 0
    wocnt = 1
    bar2 = 0
    kvspread = 1
    w1pf = 0
    fine = 0
    kvper = 7
    x = 0
    pf = 2
    sumq = [1, 3]
    def addq(self): return [q for q in range(4) if q not in self.sumq]

def pv2_mfmas(pb, sumq, czero=False, order=None):
    r = []
    n = 0
    def pair(d, a0, a1, qb):
        nonlocal n
        js = (0, 1) if n % 2 == 0 else (1, 0); n += 1
        for i, j in enumerate(js):
            r.append(f"{MF} {d}, {ar(a1 if j else a0,4)}, {vr(P(pb+j,qb),4)}, {'0' if (czero and i == 0) else d}")
    for qb in sumq: pair(ar(LA(qb), 4), ONES, ONES, qb)
    for db in range(8):
        for q in range(4):
            qb = q if db % 2 == 0 else 3 - q
            pair(ar(O(db, qb), 4), VF(db), VF(8+db), qb)
    return r

def sm_stream(cfg, u):
    qs = range(4)
    E = exps(u & 1, qs); C = cvts(u & 1, qs, u & 3); A = adds(u & 1, qs, cfg.addq())
    r = []
    for i, e in enumerate(E):
        f = [A[i]] if A[i] else []
        if i % 2 == 1: f.append(C[i//2])
        r.append((e, f))
    return r

def vreads2(slot):
    r = []
    for db in range(8):
        for blk in range(2):
            for h in range(2):
                r.append((db, L(f"ds_read_b64_tr_b16 {ar(VF(8*blk+db)+2*h,2)}, v{V_VA+db} offset:{slot*SLOT+blk*8192+h*4096}", "V")))
    return r

def pack(k, mf, fixed, stream, lds, vm, deadlines=(), keep=False):
    n = len(mf)
    stream = list(stream); lds = list(lds); vm = list(vm)
    ready = []
    k.run(fixed.get(-1, []))
    ne = len(stream); ie = 0
    lastvm = -9; vm0 = list(vm)
    for g in range(n):
        k(mf[g]); k.run(fixed.get(g, []))
        left = 2
        if OPT.barfree and any(isinstance(x, str) and "s_barrier" in x for x in fixed.get(g, [])): left = 2 - OPT.barfree
        want_e = ie < ne and g < n-1 and (g % 2 == 0 or (ne - ie) > (n - g)//2)
        if g % 2 == 1 or not want_e:
            if vm and vm[0][0] <= g and g - lastvm >= (OPT.vsp if len(vm0) <= 8 else 4) and not (lds and lds[0][0] <= g and lds[0][2:] == ('urgent',)):
                k.run(vm.pop(0)[1]); left -= 2; lastvm = g
            else:
                c = [x for x in lds if x[0] <= g]
                c.sort(key=lambda x: 0 if len(x) > 2 else 1)
                if c:
                    lds.remove(c[0]); k.run([c[0][1]]); left -= 1
                    rem = len([y for y in range(g+1, n) if y % 2 == 1]) - 3
                    if len(c) > 1 and len(lds) + len(vm) > rem:
                        lds.remove(c[1]); k.run([c[1][1]]); left -= 1
        if want_e:
            e, f = stream[ie]; k(e); left -= 2
            ready += [(g, ie, x) for x in f]; ie += 1
        must = [x for x in ready if any(x[1] < idx and g + 1 >= dl for idx, dl in deadlines)]
        while ready and ready[0][0] < g and (left > 0 or ready[0] in must or len(ready) > OPT.bk or g == n-1):
            k(ready.pop(0)[2]); left -= 1
    assert ie == ne and not vm and not ready and (keep or not lds), (ie, ne, len(lds), len(vm), ready)
    return lds

R1 = 16

def iteration(k, cfg, t4, part="all", czero=False, pf=(), post=(), label=None, extra=()):
    ks = t4; vs = (t4 - 1) % 4; u = 2*t4
    k.c(f"---- iteration T%4={t4} {part} ----")
    ns = 2*len(cfg.sumq)
    pv = pv2_mfmas((u - 4) & 3, cfg.sumq, czero); npv = len(pv)
    st = sm_stream(cfg, u - 2)[32-R1:] + sm_stream(cfg, u - 1) + sm_stream(cfg, u)[:32-R1]
    dmas = [[f"s_add_u32 m0, s{S_W4}, {KB + ((t4+3)%4)*SLOT}\ns_nop 0" if p == 0 else "", dma_k(p)] for p in range(4)]
    dmas += [[f"s_add_u32 m0, s{S_W4}, {VB + ((t4+2)%4)*SLOT}\ns_add_u32 s{S_KOFF}, s{S_KOFF}, {SLOT}" if p == 0 else "", dma_v(p)] for p in range(4)]
    dmas[-1].append(f"s_add_u32 s{S_VOFF}, s{S_VOFF}, {SLOT}")
    ka = [L(x, "KA") for x in kreads(ks, 0)]; kb = kreads(ks, 1)
    vr_ = vreads2(vs)
    NE1 = cfg.ne1
    NV1 = cfg.nv1
    nvm = 16 if not (cfg.pf and cfg.pfo and cfg.v19) else (18 if part == "pv" else 19)
    bar = {ns-1: [f"s_waitcnt vmcnt({nvm}) lgkmcnt(0)\ns_barrier"]}
    if part == "tail":
        k.lg = []
        if OPT.fa and (OPT.na0 or OPT.na1): bar = {ns-1: ["s_waitcnt vmcnt(0) lgkmcnt(0)\ns_barrier"]}
        return pack(k, pv, bar, st[:R1+32], [(ns + 8*db + 7, x) for db, x in vr_], [(ns, x) for x in extra], keep=True)
    if part in ("all", "pv"):
        k.lg = []
        lds = [(ns, x) for x in ka] + [(ns + 8*db + 7, x) for db, x in vr_[:NV1]]
        pack(k, pv, bar, st[:NE1], lds, [(ns + OPT.v0, d) for d in dmas])
    if label: k(f"{label}:")
    if part in ("all", "first"):
        vm = [(40, [pf[1]])] if pf else []
        fixed = {-1: [W(lg="KA")], 30: [W(lg="KB0")], 46: [W(lg="KB1")]}
        if pf: fixed[38] = [pf[0]]
        if part == "first":
            NE1 = R1; NV1 = 0; k.lg = []
            fixed[-1] = ["s_waitcnt lgkmcnt(0)"]
            vm = [(2, [kv_setup(wh, t), dma_k(p) if wh == 'K' else dma_v(p)]) for wh, t in (('V',2),('K',4),('V',3)) for p in range(4)]
            if cfg.v19:
                dummy = f"s_mov_b32 s6, 0x200000\nbuffer_load_dword v{V_PF+3}, v{V_PF}, {sr(S_O,4)}, s6 offen"
                vm[3][1].append(dummy); vm[11][1].append(dummy)
            post = [f"s_mov_b32 s{S_KOFF}, {5*SLOT}\ns_mov_b32 s{S_VOFF}, {4*SLOT}"]
        lds = [(0, x) for db, x in vr_[NV1:]] + [(15, L(x, "KB0"), 'urgent') for x in kb[:4]] + [(31, L(x, "KB1"), 'urgent') for x in kb[4:]]
        pack(k, qk_mfmas(0) + qk_mfmas(1), fixed, st[NE1:], lds, vm, deadlines=[(R1 + 32 - NE1, 40)])
    for f in post: k(f)

def kv_setup(which, tile):
    if which == 'K': return f"s_add_u32 m0, s{S_W4}, {KB + (tile%4)*SLOT}\ns_mov_b32 s{S_KOFF}, {tile*SLOT}"
    return f"s_add_u32 m0, s{S_W4}, {VB + (tile%4)*SLOT}\ns_mov_b32 s{S_VOFF}, {tile*SLOT}"
def kv_group(which, tile):
    return [[kv_setup(which, tile), V(dma_k(p) if which == 'K' else dma_v(p), f"{which}{tile}")] for p in range(4)]

def rowmax_cross(k, regs, tmp):
    for sw in ("v_permlane32_swap_b32", "v_permlane16_swap_b32"):
        for i, r in enumerate(regs): k(f"v_mov_b32 v{tmp+i}, v{r}")
        k("s_nop 1")
        for i, r in enumerate(regs): k(f"{sw} v{tmp+i}, v{r}")
        k("s_nop 1")
        for i, r in enumerate(regs): k(f"v_max_f32 v{r}, v{r}, v{tmp+i}")

def gen_k1(cfg=None, prof=False):
    cfg = cfg or Cfg()
    k = Kern(NAME + "_kernel" if OPT.mk0 else "k1_attn_kernel", 256, 256, 160*1024, 512, 256, 102 if OPT.ff else (96 if prof else 64))
    k.prof = prof
    end = "k1_end"
    k(f"s_cmp_ge_u32 s2, 256\ns_cbranch_scc1 {end}")
    k.stamp(0)
    k.dbg_begin(1)
    k(f"s_load_dwordx2 s[52:53], s[0:1], {KA_WQ}")
    k(f"s_load_dwordx2 s[54:55], s[0:1], {KA_WS}")
    def more_ptrs():
        k(f"s_load_dwordx4 s[48:51], s[0:1], {KA_K}")
        k(f"s_load_dwordx2 s[46:47], s[0:1], {KA_WO}")
        k(f"s_load_dwordx4 s[56:59], s[0:1], {KA_WG}")
        k(f"s_load_dwordx2 s[60:61], s[0:1], {KA_WD}")
        if OPT.ff: k(f"s_load_dwordx2 s[98:99], s[0:1], {KA_OUT}")
        if OPT.mk0: k(f"s_load_dwordx4 s[{'64:67' if not prof else '92:95'}], s[0:1], {KA_C}")
        if OPT.mk0 and OPT.dflag: k(f"s_load_dwordx2 s[100:101], s[0:1], {KA_DBG}")
        k(f"s_load_dwordx2 s[0:1], s[0:1], {KA_X}")
    if OPT.mk0 or not OPT.lateptr: more_ptrs()
    k("v_lshrrev_b32 v1, 6, v0")
    k("v_and_b32 v2, 63, v0")
    k(f"v_readfirstlane_b32 s{S_WAVE}, v1")
    m = OPT.map4
    k(f"s_and_b32 s4, s2, {(8>>m)-1}\ns_bfe_u32 s5, s2, {((2+m)<<16)|3}\ns_lshl_b32 s5, s5, {3-m}\ns_add_u32 s4, s4, s5")
    k(f"s_bfe_u32 s5, s2, {(m<<16)|(3-m)}\ns_lshl_b32 s5, s5, {3-m}\ns_lshr_b32 s6, s2, {5+m}\ns_add_u32 s5, s5, s6")
    k(f"s_lshl_b32 s{S_W4}, s{S_WAVE}, 12")
    k(f"s_mov_b32 s{S_RERUN}, 0")
    if OPT.r0:
        k(f"s_and_b32 s100, s{S_WAVE}, 1\ns_lshl_b32 s100, s100, 1\ns_lshr_b32 s6, s{S_WAVE}, 1\ns_add_u32 s100, s100, s6\ns_lshl_b32 s6, s5, 3\ns_add_u32 s100, s100, s6")
        k("s_bfe_u32 s101, s2, 0x10005\ns_lshl_b32 s101, s101, 17")
    k("v_lshrrev_b32 v3, 4, v2")
    k("v_and_b32 v4, 15, v2")
    k("v_lshrrev_b32 v5, 2, v4")
    k("v_and_b32 v6, 3, v2")
    k(f"v_lshlrev_b32 v{V_L16}, 4, v2")
    k("v_lshlrev_b32 v7, 2, v3\nv_xor_b32 v7, v7, v4\nv_lshlrev_b32 v7, 4, v7")
    k(f"v_lshl_add_u32 v{V_DW}, v1, 2, v3\nv_lshl_add_u32 v{V_DW}, v{V_DW}, 13, v7")
    k(f"s_lshl_b32 s{S_W1}, s{S_WAVE}, 10")
    if OPT.mk0: k1p.pre_wait(k)
    k("s_waitcnt lgkmcnt(0)")
    if OPT.lateptr and not OPT.mk0: more_ptrs()
    k("s_lshl_b32 s6, s4, 8")
    k(f"s_add_u32 s{S_W}, s52, s6\ns_addc_u32 s{S_W+1}, s53, 0\ns_sub_u32 s{S_W+2}, {512*8192}, s6\ns_mov_b32 s{S_W+3}, 0x20000")
    k.srd(S_M, 54, 4*12288, WS_MODP)
    if OPT.r0: k("s_lshl_b32 s7, s100, 15")
    else: k(f"s_lshl_b32 s6, s5, 2\ns_add_u32 s6, s6, s{S_WAVE}\ns_lshl_b32 s7, s6, 16")
    k(f"s_add_u32 s7, s7, 0x{WS_XH:x}")
    k(f"s_add_u32 s{S_X}, s54, s7\ns_addc_u32 s{S_X+1}, s55, 0\ns_mov_b32 s{S_X+2}, {0x28000 if OPT.r0 else 0x10000}\ns_mov_b32 s{S_X+3}, 0x20000")
    def w_step(j, st0=S_T0):
        r = []
        for p in range(2):
            st = st0 + p
            r.append([f"s_add_u32 m0, s{S_W1}, {WSLOT[j>>1]*SLOT + (j&1)*8192 + p*4096}\ns_mov_b32 s{st}, {(j*32 + p*16)*8192}",
                      lambda kk, st=st: kk.vmop(f"buffer_load_dwordx4 v{V_DW}, {sr(S_W,4)}, s{st} offen {OPT.wqnt} lds", f"W{j}")])
        return r
    def x_loads(j):
        r = []
        for qb in range(4):
            st = S_T0 + 4 + qb
            r.append([f"s_xor_b32 s{st}, s101, {(qb>>1)*131072 + (qb&1)*16384 + (j>>2)*4096}" if OPT.r0 else f"s_mov_b32 s{st}, {qb*16384 + (j>>2)*4096}",
                      lambda kk, qb=qb, st=st: kk.vmop(f"buffer_load_dwordx4 {vr(XR(j,qb),4)}, v{V_L16}, {sr(S_X,4)}, s{st} offen offset:{(j&3)*1024} {'sc1' if OPT.mk0 else ''}", f"X{j}" if j else f"X0_{qb}")])
        return r
    def run(items):
        for f in items:
            if isinstance(f, list): run(f)
            else: f(k) if callable(f) else k(f)
    LA_ = cfg.la
    def rem_srds():
        k("s_lshl_b32 s6, s4, 19")
        k(f"s_add_u32 s{S_K}, s48, s6\ns_addc_u32 s{S_K+1}, s49, 0\ns_mov_b32 s{S_K+2}, 0x80000\ns_mov_b32 s{S_K+3}, 0x20000")
        k(f"s_add_u32 s{S_V}, s50, s6\ns_addc_u32 s{S_V+1}, s51, 0\ns_mov_b32 s{S_V+2}, 0x80000\ns_mov_b32 s{S_V+3}, 0x20000")
        if OPT.r0: k("s_lshl_b32 s6, s100, 18\ns_lshl_b32 s7, s4, 12\ns_add_u32 s6, s6, s7")
        else: k(f"s_lshl_b32 s6, s5, 2\ns_add_u32 s6, s6, s{S_WAVE}\ns_lshl_b32 s6, s6, 19\ns_lshl_b32 s7, s4, 12\ns_add_u32 s6, s6, s7")
        k(f"s_add_u32 s6, s6, 0x{WS_OF:x}")
        k(f"s_add_u32 s{S_O}, s54, s6\ns_addc_u32 s{S_O+1}, s55, 0\ns_mov_b32 s{S_O+2}, {9*131072+4096 if OPT.r0 else 3*131072+4096}\ns_mov_b32 s{S_O+3}, 0x20000")
    def addr_setup():
        k("v_lshl_add_u32 v7, v3, 3, v5\nv_lshlrev_b32 v7, 8, v7\nv_lshl_add_u32 v7, v6, 4, v7")
        for s in range(4):
            k(f"v_xor_b32 v27, {s}, v5\nv_lshl_add_u32 v{V_WA+s}, v27, 6, v7")
            k(f"v_add_u32 v{V_WA+4+s}, 0x10000, v{V_WA+s}\nv_add_u32 v{V_WA+8+s}, 0x20000, v{V_WA+s}")
        k(f"v_lshlrev_b32 v{V_PA}, 5, v3\nv_add_u32 v{V_PA}, {PARB}, v{V_PA}")
        for s in range(4):
            k(f"v_or_b32 v27, {4*s}, v3\nv_xor_b32 v27, v27, v4\nv_lshlrev_b32 v27, 4, v27\nv_lshl_add_u32 v{V_KA+s}, v4, 8, v27")
        k("v_lshl_add_u32 v7, v3, 2, v5\nv_and_b32 v27, 7, v7\nv_lshlrev_b32 v7, 8, v7\nv_lshl_add_u32 v7, v6, 3, v7")
        k(f"v_add_u32 v7, {VB}, v7")
        for db in range(8):
            k(f"v_xor_b32 v30, {db}, v27\nv_lshl_add_u32 v{V_VA+db}, v30, 5, v7")
        k("v_lshlrev_b32 v7, 8, v3\nv_lshl_add_u32 v7, v1, 12, v7")
        for p in range(4):
            k(f"v_or_b32 v27, {4*p}, v3\nv_xor_b32 v27, v27, v4\nv_lshl_add_u32 v{V_DK+p}, v27, 4, v7")
        for p in range(2):
            k(f"v_or_b32 v27, {4*p}, v3\nv_lshlrev_b32 v27, 1, v27\nv_xor_b32 v27, v27, v4\nv_lshl_add_u32 v{V_DV+p}, v27, 4, v7")
        k("v_mov_b32 v27, 0x3f803f80")
        for i in range(4): k(f"v_accvgpr_write_b32 a{ONES+i}, v27")
    k("v_lshlrev_b32 v31, 4, v0")
    wdone = 0
    if OPT.mk0:
        n0, n1, n2 = OPT.mw0, OPT.mw0 + OPT.mw1, OPT.mw0 + OPT.mw1 + OPT.mw2
        k1p.CP = 64 if not prof else 92
        sv = lambda a, b: [run(w_step(j, S_T0+6)) for j in range(a, b)]
        k1p.body(k, lambda: sv(0, n0), lambda: sv(n0, n1), lambda: (sv(n1, n2), addr_setup()))
        wdone = n2
        mod_loads(k, S_M, 31, S_T0, V_PT, 0, "M", "sc1")
        run(x_loads(0)); rem_srds()
    else:
        mod_loads(k, S_M, 31, S_T0, V_PT, 0, "M")
        run(w_step(0)); run(x_loads(0))
        addr_setup(); k("s_waitcnt lgkmcnt(0)"); rem_srds()
    w_step0 = w_step
    w_step = lambda j: w_step0(j) if j >= wdone else []
    def wreads(j):
        c = j >> 1; base = WSLOT[c]*SLOT; bank = base >> 16; off = (base & 0xffff) + (j & 1)*8192
        return [L(f"ds_read_b64_tr_b16 {ar(WF(j&1,t)+2*h,2)}, v{V_WA+4*bank+(t>>1)} offset:{off + h*1024 + 8*(t&1)}", f"R{j}_{t}")
                for t in range(8) for h in range(2)]
    def preads(j):
        b = PAR(j & 1)
        return [L(f"ds_read_b128 {vr(b+4*i,4)}, v{V_PA} offset:{j*128 + (i&1)*16 + (i>>1)*2048}", f"P{j}") for i in range(4)]
    def hcalc(j):
        b = PAR(j & 1); r = []
        for qb in range(4):
            t = V_PT + (qb & 1)*8
            for i in range(8):
                r.append(f"v_fma_mix_f32 v{t+i}, v{XR(j,qb)+(i>>1)}, v{b+8+i}, v{b+i} op_sel:[{i&1},0,0] op_sel_hi:[1,0,0]")
            for d in range(4):
                r.append(f"v_cvt_pk_bf16_f32 v{HF(j&1,qb)+d}, v{t+2*d}, v{t+2*d+1}")
        return r
    k(f"s_cmp_ge_u32 s{S_WAVE}, 2\ns_cselect_b32 s6, 1.0, 0\nv_add_u32 v31, {PARB}, v31")
    k.vmwait("M")
    mod_finish(k, V_PT, 6, C1)
    k(f"ds_write_b128 v31, {vr(V_PT,4)}")
    if OPT.modk1 and not OPT.ff:
        k("s_cmp_ge_u32 s2, 2\ns_cbranch_scc1 k1_nomod\nv_lshlrev_b32 v30, 4, v0\ns_add_u32 s7, s2, 1\ns_lshl_b32 s7, s7, 12")
        mod_loads(k, S_M, 30, S_T0, 192, "s7")
        k(f"s_lshl_b32 s6, s2, 1\ns_cmp_lt_u32 s{S_WAVE}, s6\ns_cselect_b32 s6, 1.0, 0\ns_sub_u32 s{S_M}, s{S_M}, {WS_MODP - WS_MOD}\ns_subb_u32 s{S_M+1}, s{S_M+1}, 0\ns_waitcnt vmcnt(0)")
        mod_finish(k, 192, 6)
        k(f"buffer_store_dwordx4 v[192:195], v30, {sr(S_M,4)}, s7 offen\ns_waitcnt vmcnt(0)")
        k("k1_nomod:")
    run(x_loads(1)); run(w_step(1))
    k.vmwait("W0", "lgkmcnt(0)"); k("s_barrier")
    run(preads(0)); run(preads(1)); run(wreads(0))
    assert LA_ == 4
    pend = [g for j in range(2, LA_) for g in x_loads(j) + w_step(j)]
    k.wait(lg="P0")
    k.stamp(1) if cfg.fine < 2 else k1t.st(k, 'q5')
    for i, v in enumerate(hcalc(0)):
        if i % 12 == 0: k.wait(vm=f"X0_{i//12}")
        if i % 6 == 0 and pend: run(pend.pop(0))
        k(v)
    kvplan = {12: kv_group('K', 0), 13: kv_group('K', 1), 14: kv_group('V', 0)}
    for j in range(15):
        k.c(f"qproj stage {j}")
        if cfg.fine == 1 and j in (0, 2, 4, 8, 12): k.stamp(2 + (0, 2, 4, 8, 12).index(j))
        mf = []
        for t in range(8):
            for q in range(4):
                qb = q if t % 2 == 0 else 3 - q
                d = QA(t, qb)
                mf.append(f"{MF} {d}, {ar(WF(j&1,t),4)}, {vr(HF(j&1,qb),4)}, {d if j else '0'}")
        lds = (preads(j+2) if j < 14 else []) + wreads(j+1)
        valu = hcalc(j+1)
        jj = j + LA_
        if jj >= 16: pend += kvplan[j]
        elif cfg.wb4:
            pend += x_loads(jj)
            if jj % cfg.wb4 == 0:
                for j2 in range(jj, min(16, jj + cfg.wb4)): pend += w_step(j2)
        else: pend += x_loads(jj) + w_step(jj)
        nvm = min(len(pend), cfg.nvm)
        vm = pend[:nvm]; pend = pend[nvm:]
        if cfg.x == 1: valu = valu[:16]
        gaps = fill(32, lds, valu, vm, g0=1, valu_end=31)
        add(gaps, -1, W(lg=f"R{j}_3"))
        front(gaps, 12, W(lg=f"R{j}_7"))
        if j < 2 or j % 2 == 1 or not cfg.bar2:
            tgt = j+1 if (j < 1 or not cfg.bar2) else j+2
            if cfg.wb4 and j + 1 >= 4:
                if (j + 1) % cfg.wb4 == 0:
                    front(gaps, 0, W(vm=f"X{j+1}"), W(vm=f"W{min(15, j + cfg.wb4)}", barrier=True))
                else: front(gaps, 0, W(vm=f"X{j+1}"))
            elif tgt < wdone: front(gaps, 0, W(vm=f"X{j+1}"))
            else: front(gaps, 0, W(vm=f"W{tgt}", barrier=True))
        else:
            front(gaps, 0, W(vm=f"X{j+1}"))
        emit(k, mf, gaps)
    assert not pend
    k.stamp(2) if not cfg.fine else (k.stamp(7) if cfg.fine == 1 else None)
    PF_F, PF_W = S_X, S_W
    pfsetup = [f"s_cmp_eq_u32 s{S_WAVE}, 1\ns_cselect_b64 s[{PF_F}:{PF_F+1}], s[58:59], s[56:57]",
        f"s_cmp_eq_u32 s{S_WAVE}, 2\ns_cselect_b64 s[{PF_F}:{PF_F+1}], s[60:61], s[{PF_F}:{PF_F+1}]",
        f"s_mul_i32 s6, s2, {43*128}\ns_add_u32 s{PF_F}, s{PF_F}, s6\ns_addc_u32 s{PF_F+1}, s{PF_F+1}, 0",
        f"s_lshl_b32 s6, s4, 17\ns_and_b32 s7, s5, 3\ns_lshl_b32 s7, s7, 15",
        f"s_add_u32 s6, s6, s7\ns_lshl_b32 s7, s{S_WAVE}, 13\ns_add_u32 s6, s6, s7",
        f"s_add_u32 s{PF_W}, s46, s6\ns_addc_u32 s{PF_W+1}, s47, 0\ns_mov_b32 s{PF_W+2}, 0x2000",
        f"s_cmp_eq_u32 s{S_WAVE}, 3\ns_cselect_b32 s{PF_F+2}, 0, {43*128}"]
    if OPT.xpf and OPT.ff:
        pfsetup += [f"s_lshl_b32 s6, s5, 1\ns_bfe_u32 s7, s2, 0x10005\ns_add_u32 s6, s6, s7",
            f"s_lshl_b32 s6, s6, 2\ns_and_b32 s7, s2, 3\ns_add_u32 s6, s6, s7",
            f"s_lshl_b32 s6, s6, 2\ns_bfe_u32 s7, s2, 0x20003\ns_add_u32 s6, s6, s7",
            f"s_lshl_b32 s6, s6, 2\ns_add_u32 s6, s6, s{S_WAVE}",
            f"s_lshl_b32 s6, s6, 11\ns_add_u32 s{S_M}, s0, s6\ns_addc_u32 s{S_M+1}, s1, 0\ns_mov_b32 s{S_M+2}, 2048"]
    elif OPT.xpf:
        pfsetup += [f"s_bfe_u32 s6, s2, 0x10002\ns_lshl_b32 s6, s6, 3\ns_bfe_u32 s7, s2, 0x30003",
            f"s_add_u32 s6, s6, s7\ns_lshl_b32 s6, s6, 2\ns_and_b32 s7, s2, 3",
            f"s_add_u32 s6, s6, s7\ns_lshl_b32 s6, s6, 2\ns_lshr_b32 s7, s2, 6",
            f"s_add_u32 s6, s6, s7\ns_lshl_b32 s6, s6, 2\ns_add_u32 s6, s6, s{S_WAVE}",
            f"s_lshl_b32 s6, s6, 11\ns_add_u32 s{S_M}, s0, s6\ns_addc_u32 s{S_M+1}, s1, 0\ns_mov_b32 s{S_M+2}, 2048"]
    xcc_pub = []
    if OPT.loc:
        def pub(k):
            k.srd(36, 54, 32768, WS_FLAG)
            k(f"s_and_b32 s6, s2, 7\ns_lshl_b32 s6, s6, 2\ns_lshr_b32 s7, s2, 6\ns_add_u32 s6, s6, s7\ns_lshl_b32 s63, s6, 10\ns_bfe_u32 s7, s2, 0x30003")
            k(f"s_getreg_b32 s97, hwreg(HW_REG_XCC_ID, 0, 4)\ns_add_u32 s97, s97, 1\ns_lshl_b32 s6, s7, 2\ns_lshl_b32 s7, s7, 7")
            k(f"v_lshlrev_b32 v3, 3, v{V_L16}\nv_add_u32 v3, s6, v3\nv_mov_b32 v4, s97\nv_bfe_u32 v27, v{V_L16}, 4, 3\nv_lshlrev_b32 v27, 2, v27\nv_add_u32 v27, s7, v27")
            k(f"s_cmp_eq_u32 s{S_WAVE}, 1\ns_cbranch_scc0 k1_nx\ns_mov_b64 exec, 0xff")
            k(f"buffer_store_dword v4, v3, s[36:39], s63 offen offset:64 sc1\ns_mov_b64 exec, -1")
            k("k1_nx:")
        xcc_pub = [pub]
    V0, VD = V_PF, V_PF+3
    pfv = [f"v_lshrrev_b32 v{VD}, 8, v{V_L16}", f"v_lshlrev_b32 v{VD}, 24, v{VD}", f"v_lshl_add_u32 v{V0}, v{V_L16}, 3, v{VD}"]
    cf, cw, co = cfg.pfc
    def site(srd, c0, sh, off, fl):
        return [f"s_sub_u32 s6, s{S_CNT}, {c0}\ns_min_u32 s6, s6, 4\ns_lshl_b32 s6, s6, {sh}", f"buffer_load_dword v{VD}, v{V0}, {sr(srd,4)}, s6 offen offset:{off} {fl}"]
    pfs = [site(PF_F, cf, 11, 0, ""), site(S_M, OPT.xpf, 11, 0, "") if OPT.xpf else site(S_O, co, 17, 0, OPT.opf), site(PF_W, cw, 11, 0, OPT.wpf), site(S_O, co, 17, 2048, OPT.opf)]
    if OPT.l2w:
        P1, P2 = PF_F, 48
        pfsetup = pfsetup[3:6] + pfsetup[7:] + [
            f"s_lshr_b32 s6, s2, 3\ns_lshl_b32 s6, s6, 2\ns_add_u32 s{S_T0}, s6, s{S_WAVE}",
            f"s_cmp_lt_u32 s{S_T0}, 64\ns_cselect_b64 s[{P1}:{P1+1}], s[56:57], s[58:59]",
            f"s_and_b32 s6, s{S_T0}, 63\ns_mul_i32 s6, s6, {8*2752}\ns_and_b32 s7, s2, 3",
            f"s_mul_i32 s7, s7, 768\ns_add_u32 s6, s6, s7\ns_sub_u32 s7, {512*2752}, s6",
            f"s_add_u32 s{P1}, s{P1}, s6\ns_addc_u32 s{P1+1}, s{P1+1}, 0\ns_min_u32 s{P1+2}, s7, {8*2752}",
            f"s_mul_i32 s6, s{S_T0}, {11*1024}\ns_and_b32 s7, s2, 1\ns_lshl_b32 s7, s7, 9",
            f"s_add_u32 s6, s6, s7\ns_min_u32 s6, s6, {1376*1024}\ns_sub_u32 s7, {1376*1024}, s6",
            f"s_add_u32 s{P2}, s60, s6\ns_addc_u32 s{P2+1}, s61, 0\ns_min_u32 s{P2+2}, s7, {11*1024}\ns_mov_b32 s{P2+3}, 0x20000"]
        pfv += [f"v_and_b32 v6, 0x380, v{V0}", "v_min_u32 v6, 764, v6", f"v_bfe_u32 v3, v{V_L16}, 7, 1", "v_mul_u32_u24 v3, 2752, v3", f"v_add3_u32 v3, v3, v6, v{VD}",
                f"v_bfe_u32 v4, v{V_L16}, 6, 2", f"v_and_b32 v6, 0x180, v{V0}", "v_lshl_add_u32 v4, v4, 10, v6", f"v_add_u32 v4, v4, v{VD}"]
        pfs[0] = [f"s_sub_u32 s6, s{S_CNT}, {OPT.l2w}\ns_min_u32 s6, s6, 4\ns_mul_i32 s6, s6, {2*2752}", f"buffer_load_dword v6, v3, {sr(P1,4)}, s6 offen"]
        pfs[3] = [f"s_sub_u32 s6, s{S_CNT}, {OPT.l2d}\ns_min_u32 s6, s6, 3\ns_lshl_b32 s6, s6, 12", f"buffer_load_dword v6, v4, {sr(P2,4)}, s6 offen"]
    if OPT.loc or OPT.opt32:
        pfv += [f"v_lshrrev_b32 v{VD}, 9, v{V_L16}", f"v_lshlrev_b32 v{VD}, 24, v{VD}", f"v_lshl_add_u32 v7, v{V_L16}, 3, v{VD}"]
        si = OPT.lsite
        xs = pfs[si]
        pfs[si] = site(S_O, OPT.lpo, 17, 0, OPT.opf); pfs[si][1] = pfs[si][1].replace(f"v{V0},", "v7,")
    loopinit = f"s_mov_b32 s{S_CNT}, 8"
    k.c("merged head")
    if OPT.trunc: k("s_mov_b32 s53, 0x07060302")
    k.run(xcc_pub)
    k.wait(lg='all')
    def qk_q(buf, qb, czero):
        r = []
        for kb in range(2):
            for i in range(4):
                s_ = i if kb == 0 else 3 - i
                d = vr(S(buf, kb, qb), 4)
                c = d if i else ("0" if czero else vr(MN(qb), 4))
                nd = {f"Q{qb}": 2, f"KR{buf}": 0}
                if not czero: nd[f"MN{qb}"] = 2
                r.append(It(f"{MF} {d}, {ar(HK(buf)(kb*4+s_),4)}, {vr(Q(qb,s_),4)}, {c}", needs=nd, gives=f"S{buf}_{qb}"))
        return r
    mq = []
    for qb in range(4):
        for t in range(8):
            d = QA(t, qb)
            mq.append(It(f"{MF} {d}, {ar(WF(1,t),4)}, {vr(HF(1,qb),4)}, {d}", gives=f"A{t}_{qb}"))
    mq += qk_q(0,0,True) + qk_q(0,1,True) + qk_q(0,2,True) + qk_q(1,0,False) + qk_q(1,1,False) + qk_q(0,3,True) + qk_q(1,2,False) + qk_q(1,3,False)
    def conv(qb):
        r = []
        for s_ in range(4):
            for h in range(2):
                t = 2*s_ + h; nd = {f"A{t}_{qb}": 8}
                if qb < 2: a = 192 + (qb*8+t)*4
                else:
                    a = 224 + (t & 3)*4
                    for i in range(4): r.append(It(f"v_accvgpr_read_b32 v{a+i}, a{((qb-2)*8+t)*4+i}", needs=nd))
                for d in range(2): r.append(It(f"v_cvt_pk_bf16_f32 v{Q(qb,s_)+2*h+d}, v{a+2*d}, v{a+2*d+1}", needs=nd, gives=f"Q{qb}x"))
        r[-1].gives = f"Q{qb}"
        return r
    def rmax(qs):
        r = []
        for qb in qs:
            a = S(0, 0, qb); b = S(0, 1, qb); t = V_T + qb; nd = {f"S0_{qb}e": 8}
            r += [It(f"v_max3_f32 v{t}, v{a}, v{a+1}, v{a+2}", needs=nd), It(f"v_max3_f32 v{t+4}, v{b}, v{b+1}, v{b+2}"),
                  It(f"v_max3_f32 v{t}, v{t}, v{a+3}, v{b+3}"), It(f"v_max_f32 v{t}, v{t}, v{t+4}")]
        for n_, sw in enumerate(("v_permlane32_swap_b32", "v_permlane16_swap_b32")):
            for qb in qs: r.append(It(f"v_mov_b32 v{V_T+4+qb}, v{V_T+qb}", gives=f"mv{n_}_{qb}"))
            for qb in qs: r.append(It(f"{sw} v{V_T+4+qb}, v{V_T+qb}", cost=2, needs={f"mv{n_}_{qb}": 2}, gives=f"sw{n_}_{qb}"))
            for qb in qs: r.append(It(f"v_max_f32 v{V_T+qb}, v{V_T+qb}, v{V_T+4+qb}", needs={f"sw{n_}_{qb}": 1}))
        for qb in qs:
            for i in range(4): r.append(It(f"v_sub_f32 v{MN(qb)+i}, 0, v{V_T+qb}", gives=f"MN{qb}" if i == 3 else None))
        return r
    def sm0(qs, sub=True):
        r = []
        E = exps(0, qs); C = cvts(0, qs); A = adds(0, qs, cfg.addq())
        regs = [S(0, kb, qb) + i for qb in qs for kb in range(2) for i in range(4)]
        qof = [qb for qb in qs for _ in range(8)]
        n_ = len(E)
        for i in range(n_ + 2):
            if sub and i < n_: r.append(It(f"v_add_f32 v{regs[i]}, v{regs[i]}, v{MN(qof[i])}"))
            if 1 <= i <= n_: r.append(It(E[i-1], cost=2, gives=f"e{qs[0]}_{i-1}"))
            if i >= 2:
                if A[i-2]: r.append(It(A[i-2], needs={f"e{qs[0]}_{i-2}": 1}))
                if (i-2) % 2 == 1: r.append(It(C[(i-2)//2], needs={f"e{qs[0]}_{i-2}": 1}))
        return r
    last = {}
    for it in mq:
        if isinstance(it.gives, str) and it.gives.startswith("S"): last[it.gives] = it
    for g, it in last.items(): it.gives = g + "e"
    init = [It(f"v_mov_b32 v{V_LS+q}, 0") for q in range(4)] + [It(x) for x in pfv]
    vq = init + conv(0) + conv(1) + conv(2) + rmax([0, 1]) + conv(3) + sm0([0, 1]) + rmax([2, 3]) + sm0([2, 3])
    side = [It(W(vm="K0", barrier=True), cost=0, n=2)]
    for b in range(2):
        side += [It(L(x, f"HK{b}")) for x in kreads(0, b, HK(b))]
    side += [It(x, cost=0, n=3) for x in pfsetup]
    side += [It(W(lg="HK0"), cost=0, gives="KR0", needs={"A7_2": 0}), It(W(lg="HK1"), cost=0, gives="KR1")]
    G = lambda grp, nd=None: It(lambda kk, grp=grp: kk.run(grp), cost=2, n=3, needs=nd)
    side += [G(x) for x in kv_group('K', 2)] + [G(x, {"S0_2e": 0}) for x in kv_group('V', 1)]
    side += [It(W(vm="V0", barrier=True), cost=0, n=2, needs={"S0_3e": 0})]
    side += [It(x) for x in kreads(1, 0)] + [G(x) for x in kv_group('K', 3)] + [It(loopinit, cost=0, n=4)]
    merge(k, mq, vq, side)
    k("k1_first:")
    iteration(k, cfg, 1, "first")
    iteration(k, cfg, 2, "pv", czero=True)
    k.stamp(3) if not cfg.fine else None
    k("s_branch k1_pos2")
    k(".p2align 6")
    for _ in range(OPT.pad): k("s_nop 0")
    k("k1_loop:")
    iteration(k, cfg, 0, pf=pfs[0] if cfg.pf else ())
    iteration(k, cfg, 1, pf=pfs[1] if cfg.pf else ())
    iteration(k, cfg, 2, pf=pfs[2] if cfg.pf else (), label="k1_pos2")
    iteration(k, cfg, 3, pf=pfs[3] if cfg.pfo else (), post=[f"s_sub_u32 s{S_CNT}, s{S_CNT}, 1\ns_cmp_lg_u32 s{S_CNT}, 0\ns_cbranch_scc1 k1_loop"])
    k.stamp(4) if not cfg.fine else (k.stamp(1) if cfg.fine == 2 else None)
    if OPT.cpf2:
        k(f"s_cmp_ge_u32 s2, 16\ns_cbranch_scc1 k1_nocode\ns_lshr_b32 s6, s2, 3\ns_lshl_b32 s6, s6, 2\ns_add_u32 s6, s6, s{S_WAVE}")
        k.code_pf("k1_nocode", "code_end_marker", 240, S_M, 6)
        k("k1_nocode:")
    V_AW = 7
    AH = (lambda j: (j & 15) >> 1) if OPT.f2 else (lambda j: j >> 2)
    AS = (lambda j: (j >> 4)*2 + (j & 1)) if OPT.f2 else (lambda j: j & 3)
    HT = (lambda u: 1 if 1 <= u <= 4 else 0) if OPT.r0 else (lambda u: 0)
    HX = (lambda u: 0 if u == 0 else (3 + u if u <= 4 else u - 4)) if OPT.r0 else (lambda u: u)
    A3U = lambda j: 0 if j < 4 else (j - 4) % 3 + 1
    A3S = lambda j: j if j < 4 else (j - 4)//3
    def a_w(j):
        if OPT.a3:
            return [[f"s_add_u32 m0, s{S_W1}, {j*8192 + p*4096}\ns_xor_b32 s{S_T0+4+p}, s96, {(A3U(j)*512 + A3S(j)*32 + p*16)*1024}",
                     V(f"buffer_load_dwordx4 v{V_AW}, {sr(S_M,4)}, s{S_T0+4+p} offen lds", f"AW{j}")] for p in range(2)]
        return [[f"s_add_u32 m0, s{S_W1}, {(j % OPT.anr)*8192 + p*4096}\n" + (f"s_xor_b32 s{S_T0+4+p}, s{96 + HT(j>>2)}, " if (OPT.own or OPT.r0) else f"s_mov_b32 s{S_T0+4+p}, ") + f"{(HX(AH(j))*512 + AS(j)*32 + p*16)*1024}",
                 V(f"buffer_load_dwordx4 v{V_AW}, {sr(S_M,4)}, s{S_T0+4+p} offen lds", f"AW{j}")] for p in range(2)]
    extra = []
    if OPT.fa:
        k(f"v_lshrrev_b32 v2, 8, v{V_L16}\nv_lshl_add_u32 v2, v1, 2, v2\nv_and_b32 v3, 7, v2\nv_lshlrev_b32 v3, 5, v3\nv_and_b32 v4, 0xf0, v{V_L16}")
        k(f"v_xor_b32 v3, v3, v4\nv_lshl_add_u32 v{V_AW}, v2, 10, v3")
        k(f"s_and_b32 s6, s2, 3\ns_lshl_b32 s6, s6, 17\ns_bfe_u32 s7, s2, 0x20003\ns_lshl_b32 s7, s7, 8\ns_add_u32 s6, s6, s7")
        k(f"s_add_u32 s{S_M}, s46, s6\ns_addc_u32 s{S_M+1}, s47, 0\ns_sub_u32 s{S_M+2}, {4096*1024}, s6\ns_mov_b32 s{S_M+3}, 0x20000")
        if OPT.r0: k("s_lshl_b32 s97, s101, 4")
        if OPT.own or OPT.r0 or OPT.a3: k("s_bfe_u32 s96, s2, 0x30003\ns_lshl_b32 s96, s96, 19")
        k.vm = []
        if OPT.mearly:
            assert not OPT.mk0
            k.srd(48, 54, 4*12288, WS_MODP); k("v_lshlrev_b32 v6, 4, v0")
        if OPT.loc:
            k.srd(48, 54, 32768, WS_FLAG)
            k(f"buffer_load_dword v5, v27, s[48:51], s63 offen offset:64 sc1")
        if OPT.mk0:
            k.srd(48, 54, k1p.FA + 256*4096, WS_FLAG)
            k(f"s_lshl_b32 s6, s5, 5\ns_add_u32 s6, s6, s4\ns_lshl_b32 s6, s6, 12\ns_add_u32 s63, s6, {k1p.FA+3072}\nv_mov_b32 v27, 0")
        extra = [g for j in range(OPT.na0) for g in a_w(j)]
        if OPT.mk0: extra[0] = [V("buffer_load_dword v6, v27, s[48:51], s63 offen sc1", "WL")] + extra[0]
    ns = 2*len(cfg.sumq)
    LT = 240
    vq0 = []
    if OPT.t2:
        F31 = lambda blk, db: KF(blk*4+db) if db < 4 else VF(8*blk + db - 4)
        k.lg = []
        mq = []
        def chain(dst, As, Ps, qb, rev, needs, gives):
            order = list(range(len(As)))[::-1 if rev else 1]
            for n, i in enumerate(order):
                mq.append(It(f"{MF} {dst}, {ar(As[i],4)}, {vr(P(Ps[i],qb),4)}, {dst}", needs=needs, gives=gives if n == len(order)-1 else None))
        for n, qb in enumerate(cfg.sumq): chain(ar(LA(qb),4), [ONES]*2, [0, 1], qb, n % 2, None, None)
        for db in range(2):
            for q in range(4): chain(ar(O(db, q if db % 2 == 0 else 3-q),4), [VF(db), VF(8+db)], [0, 1], q if db % 2 == 0 else 3-q, q % 2, {"BAR": 0}, f"U{db}" if q == 3 else None)
        for q in range(4):
            if q in cfg.sumq: chain(ar(LA(q),4), [ONES]*2, [2, 3], q, 0, {f"P63_{q}": 2}, "SUM" if q == cfg.sumq[-1] else None)
            for db in range(2): chain(ar(O(db,q),4), [F31(0,db), F31(1,db)], [2, 3], q, db % 2, {f"P63_{q}": 2, "W0": 0}, f"O{db}" if q == 3 else None)
        for db in range(2, 8):
            for q in range(4):
                qb = q if db % 2 == 0 else 3-q
                chain(ar(O(db,qb),4), [VF(db), VF(8+db), F31(0,db), F31(1,db)], [0, 1, 2, 3], qb, q % 2, {f"W{db//2}": 0}, f"O{db}" if q == 3 else None)
        rdv = lambda db, nd: [It(L(f"ds_read_b64_tr_b16 {ar(F31(blk,db)+2*h,2)}, v{V_VA+db} offset:{3*SLOT+blk*8192+h*4096}", f"V{db//2}"), needs=nd) for blk in range(2) for h in range(2)]
        aw = [It(lambda kk, g=g: kk.run(g), cost=2) for j in range(OPT.na0 + OPT.na2) for g in a_w(j)]
        side = [It("s_waitcnt vmcnt(0) lgkmcnt(0)\ns_barrier", cost=0, gives="BAR")] + rdv(0, None) + rdv(1, None) + aw[:2*OPT.t2a] + rdv(2, None) + rdv(3, None)
        side += [It(f"s_lshl_b32 s{S_T0+qb}, s101, 3\ns_xor_b32 s{S_T0+qb}, s{S_T0+qb}, {(qb>>1)*0x100000 + (qb&1)*131072}" if OPT.r0 else f"s_mov_b32 s{S_T0+qb}, {qb*131072}", cost=0) for qb in range(4)]
        side += [It(W(lg="V0"), cost=0, gives="W0", needs={"P63_0": 0})] + rdv(4, {"U0": 0}) + rdv(5, {"U1": 0}) + [It(W(lg="V1"), cost=0, gives="W1")]
        r = aw[2*OPT.t2a:]; h1 = len(r)//2
        side += r[:h1] + [It(W(lg="V2"), cost=0, gives="W2")] + rdv(6, {"O2": 0}) + rdv(7, {"O3": 0}) + r[h1:] + [It(W(lg="all"), cost=0, gives="W3", needs={"O4": 0})]
        st_ = [(62, i, x) for i, x in enumerate(sm_stream(cfg, 62)) if i >= 32-R1] + [(63, i, x) for i, x in enumerate(sm_stream(cfg, 63))]
        prev = []
        for u, i, (e, f) in st_:
            vq0.append(It(e, cost=2, gives=f"e{u}_{i}")); vq0 += prev
            prev = [It(x, needs={f"e{u}_{i}": 1}, gives=f"P{u}_{i//8}" if (i % 8 == 7 and x is f[-1]) else None) for x in f]
        vq0 += prev
    else:
        rest = iteration(k, cfg, 0, "tail", extra=extra)
        k.stamp(5) if not cfg.fine else (k.stamp(2) if cfg.fine == 2 else None)
        k.lg = ["V0"]*len(k.lg)
        k.run([x[1] for x in rest])
        nrest = len(rest); dbw = 8 - (nrest + 3)//4
        mq = []
        for i, m in enumerate(pv2_mfmas(2, cfg.sumq)):
            db = (i - ns)//8
            it = It(m, gives="SUM" if i == ns-1 else (f"O{db}" if i >= ns and (i - ns) % 8 == 7 else None))
            if i == ns: it.needs = {"W0": 0}
            if i == ns + 8*dbw: it.needs = {"W1": 0}
            mq.append(it)
        side = [It(W(lg="V0"), cost=0, gives="W0")] + [It(f"s_mov_b32 s{S_T0+qb}, {qb*131072}", cost=0) for qb in range(4)]
        if OPT.fa:
            if OPT.mearly:
                side += [It(V(f"s_mov_b32 s6, {4096*(1+(i>>2)) + (i&3)*12288}\nbuffer_load_dwordx4 {vr(96+4*i,4)}, v6, s[48:51], s6 offen {'sc1' if OPT.mk0 else ''}", "M"), cost=2) for i in range(8)]
            side += [It(lambda kk, g=g: kk.run(g), cost=2) for j in range(OPT.na0, OPT.na0 + OPT.na2) for g in a_w(j)]
        side += [It(W(lg="all"), cost=0, gives="W1", needs={f"O{dbw-2}": 0})]
    vq = list(vq0)
    aq = cfg.addq()
    for n_, sw in enumerate(("v_permlane32_swap_b32", "v_permlane16_swap_b32")):
        for q in aq: vq.append(It(f"v_mov_b32 v{LT+4+q}, v{V_LS+q}", gives=f"a{n_}{q}"))
        for q in aq: vq.append(It(f"{sw} v{LT+4+q}, v{V_LS+q}", cost=2, needs={f"a{n_}{q}": 2}, gives=f"b{n_}{q}"))
        for q in aq: vq.append(It(f"v_add_f32 v{V_LS+q}, v{V_LS+q}, v{LT+4+q}", needs={f"b{n_}{q}": 1}))
    for q in cfg.sumq: vq.append(It(f"v_accvgpr_read_b32 v{V_LS+q}, a{LA(q)}", needs={"SUM": 8}))
    for q in range(4): vq.append(It(f"v_rcp_f32 v{LT+2*q}, v{V_LS+q}", cost=2))
    guard = [It(f"v_add_f32 v{LT+8}, v{V_LS}, v{V_LS+1}"), It(f"v_add_f32 v{LT+9}, v{V_LS+2}, v{V_LS+3}"), It(f"v_add_f32 v{LT+8}, v{LT+8}, v{LT+9}"),
           It(f"s_mov_b32 s7, {hexf(2.0**64)}\nv_cmp_nle_f32 vcc, v{LT+8}, s7"),
           It(f"s_lshl_b32 s7, s{S_WAVE}, 2\ns_add_u32 s7, s7, {FLAGB}\nv_mov_b32 v{LT+10}, s7"), It(f"v_mov_b32 v{LT+11}, {FLAGB}"),
           It(f"s_cmp_lg_u64 vcc, 0\ns_cselect_b32 s7, 1, 0\nv_mov_b32 v{LT+9}, s7"), It(L(f"ds_write_b32 v{LT+10}, v{LT+9}", "F"))]
    def check(k):
        k(f"ds_read_b128 {vr(LT+12,4)}, v{LT+11}\ns_waitcnt lgkmcnt(0)")
        k(f"v_or_b32 v{LT+12}, v{LT+12}, v{LT+13}\nv_or3_b32 v{LT+12}, v{LT+12}, v{LT+14}, v{LT+15}\ns_nop 0")
        k(f"v_readfirstlane_b32 s6, v{LT+12}")
        k(f"s_andn2_b32 s6, s6, s{S_RERUN}\ns_cmp_lg_u32 s6, 0\ns_cbranch_scc1 k1_fallback")
        if OPT.loc: k("v_cmp_ne_u32 vcc, s97, v5\ns_nop 0\ns_or_b32 s97, vcc_lo, vcc_hi")
    def flagprep(k):
        k.srd(S_K, 54, 4*32768 + 256*4096, WS_FLAG)
        k(f"s_and_b32 s6, s2, 7\ns_lshl_b32 s6, s6, 2\ns_lshr_b32 s7, s2, 6\ns_add_u32 s6, s6, s7\ns_lshl_b32 s63, s6, 10\ns_bfe_u32 s7, s2, 0x30003")
        k(f"v_lshlrev_b32 v2, 3, v{V_L16}\ns_lshl_b32 s6, s7, 2\nv_add_u32 v2, s6, v2\nv_mov_b32 v3, 0x{MAGIC:x}")
        k(f"v_bfe_u32 v27, v{V_L16}, 4, 3\nv_lshlrev_b32 v27, 2, v27\ns_lshl_b32 s6, s7, 7\nv_add_u32 v27, s6, v27")
        if OPT.a3:
            k("s_and_b32 s6, s7, 4\ns_lshl_b32 s7, s6, 7\nv_add_u32 v2, s7, v2\ns_lshl_b32 s6, s6, 2\nv_and_b32 v27, -17, v27\nv_or_b32 v27, s6, v27".replace("-17", "0xffffffef"))
        if OPT.mk0:
            k(f"s_lshl_b32 s6, s5, 5\ns_add_u32 s6, s6, s4\ns_lshl_b32 s6, s6, 12\ns_add_u32 s6, s6, {k1p.FA+3072}\ns_sub_u32 s6, s6, s63")
            k(f"v_and_b32 v4, 12, v27\nv_add_u32 v4, s6, v4\ns_mov_b32 exec_lo, 0\nv_mov_b32 v27, v4\ns_mov_b64 exec, -1")
    def raise_(k, lab, off):
        k(f"s_cmp_eq_u32 s{S_WAVE}, 1\ns_cbranch_scc0 {lab}")
        if OPT.loc:
            k(f"s_cmp_eq_u32 s97, 0\ns_cbranch_scc1 {lab}_l\nbuffer_wbl2 sc1\ns_waitcnt vmcnt(0)\n{lab}_l:")
        k(f"s_mov_b64 exec, {15 if OPT.a3 else 0xff}")
        k(f"buffer_store_dword v3, v2, {sr(S_K,4)}, s63 offen offset:{off} sc1\ns_mov_b64 exec, -1")
        k(f"{lab}:")
    def midsig(k):
        k.wait(vm="OS1", lg='all', barrier=True)
        check(k); flagprep(k); raise_(k, "k1_nf1", 0)
    n_ = 0
    for s_ in range(4):
        for qb in range(4):
            t = 64 + (n_ & 3)*8; o = (96 if OPT.t2 else 32) + (n_ & 7)*4
            if OPT.r0: t = 64 + (n_ & 1)*8; o = 96 + (s_*2+qb)*4 if qb < 2 else 80 + ((s_*2+qb) & 3)*4
            n_ += 1
            for h in range(2):
                for i in range(4): vq.append(It(f"v_accvgpr_read_b32 v{t+4*h+i}, a{O(2*s_+h,qb)+i}", needs={f"O{2*s_+h}": 8}))
            if n_ <= cfg.npk:
                for i in range(8): vq.append(It(f"v_mul_f32 v{t+i}, v{t+i}, v{LT+2*qb}"))
            else:
                for i in range(4): vq.append(It(f"v_pk_mul_f32 {vr(t+2*i,2)}, {vr(t+2*i,2)}, {vr(LT+2*qb,2)} op_sel_hi:[1,0]"))
            for d in range(4): vq.append(It(f"v_cvt_pk_bf16_f32 v{o+d}, v{t+2*d}, v{t+2*d+1}"))
            vq.append(It(V(f"buffer_store_dwordx4 {vr(o,4)}, v{V_L16}, {sr(S_O,4)}, s{S_T0+qb} offen offset:{s_*1024} {OPT.lst if OPT.loc else ('sc1' if (n_ <= OPT.nsc1 or OPT.fa) else OPT.st1)}", "OST" if n_ > 8 else "OS1"), cost=2))
            if n_ == 2: vq[-1].gives = "ST0"; vq += guard
            if OPT.a3: vq += [It(f"v_accvgpr_write_b32 a{O(2*s_,qb)+d}, v{o+d}") for d in range(4)]
            if OPT.f2 and n_ == OPT.f2n: vq.append(It(midsig, cost=0, needs={"W1": 0}))
    if not OPT.fa: k.vm = []
    merge(k, mq, vq, side, budget=(lambda w: 2 if ("ST0" in w or not OPT.t2) else OPT.t2b))
    if OPT.fa:
        for j in range(OPT.na0 + OPT.na2, OPT.na0 + OPT.na2 + OPT.na1): k.run(a_w(j))
        assert OPT.na0 + OPT.na1 + OPT.na2 <= 14
        if OPT.a3:
            k(f"s_lshl_b32 s6, s5, 2\ns_add_u32 s{S_CNT}, s6, s{S_WAVE}\ns_lshl_b32 s6, s{S_CNT}, 19\ns_and_b32 s7, s2, 3\ns_lshl_b32 s53, s7, 12\ns_add_u32 s6, s6, s53\ns_add_u32 s6, s6, 0x{WS_OF:x}")
            k(f"s_add_u32 s{S_X}, s54, s6\ns_addc_u32 s{S_X+1}, s55, 0\ns_mov_b32 s{S_X+2}, {4*131072}\ns_lshr_b32 s52, s96, 5")
            k(f"s_lshl_b32 s7, s7, 1\ns_bfe_u32 s6, s2, 0x10005\ns_add_u32 s7, s7, s6\ns_lshl_b32 s7, s7, 21\ns_lshl_b32 s6, s{S_CNT}, 16\ns_add_u32 s6, s6, s7")
            k(f"s_bfe_u32 s7, s2, 0x20003\ns_lshl_b32 s7, s7, 12\ns_add_u32 s6, s6, s7\ns_add_u32 s6, s6, 0x{WS_PART:x}")
            k(f"s_add_u32 s{S_W}, s54, s6\ns_addc_u32 s{S_W+1}, s55, 0\ns_mov_b32 s{S_W+2}, {3*16384+4096}")
        elif OPT.a2:
            k(f"s_lshl_b32 s6, s5, 1\ns_bfe_u32 s7, s2, 0x10005\ns_add_u32 s6, s6, s7\ns_lshl_b32 s6, s6, 1\ns_and_b32 s7, s{S_WAVE}, 1\ns_add_u32 s6, s6, s7")
            k(f"s_lshr_b32 s52, s{S_WAVE}, 1\ns_lshl_b32 s{S_CNT}, s6, 1\ns_add_u32 s{S_CNT}, s{S_CNT}, s52")
            k(f"s_lshl_b32 s6, s6, 19\ns_and_b32 s7, s2, 3\ns_lshl_b32 s7, s7, 12\ns_add_u32 s6, s6, s7\ns_lshl_b32 s53, s52, 11\ns_add_u32 s6, s6, s53\ns_add_u32 s6, s6, 0x{WS_OF:x}")
            k(f"s_add_u32 s{S_X}, s54, s6\ns_addc_u32 s{S_X+1}, s55, 0\ns_mov_b32 s{S_X+2}, {4*131072}")
            k(f"s_lshl_b32 s52, s52, 18")
            if OPT.r0: k("s_lshr_b32 s100, s101, 1\ns_or_b32 s100, s100, s52")
            if OPT.own or OPT.r0: k("s_lshr_b32 s53, s96, 5\ns_or_b32 s52, s52, s53")
            k(f"s_xor_b32 s53, s52, 0x40000" if not OPT.r7 else f"s_lshr_b32 s53, s{S_WAVE}, 1\ns_lshl_b32 s53, s53, 11")
        else:
          k(f"s_lshl_b32 s6, s5, 1\ns_bfe_u32 s7, s2, 0x10005\ns_add_u32 s6, s6, s7\ns_lshl_b32 s6, s6, 2\ns_add_u32 s{S_CNT}, s6, s{S_WAVE}")
          k(f"s_lshl_b32 s6, s{S_CNT}, 18\ns_and_b32 s7, s2, 3\ns_lshl_b32 s7, s7, 12\ns_add_u32 s6, s6, s7\ns_add_u32 s6, s6, 0x{WS_OF:x}")
          k(f"s_add_u32 s{S_X}, s54, s6\ns_addc_u32 s{S_X+1}, s55, 0\ns_mov_b32 s{S_X+2}, {2*131072}")
        if not OPT.a3: k(f"s_lshl_b32 s6, s{S_CNT}, 15\ns_lshl_b32 s7, s7, 9\ns_add_u32 s6, s6, s7\ns_bfe_u32 s7, s2, 0x20003\ns_lshl_b32 s7, s7, 12\ns_add_u32 s6, s6, s7\ns_add_u32 s6, s6, 0x{WS_PART:x}")
        if not OPT.a3: k(f"s_add_u32 s{S_W}, s54, s6\ns_addc_u32 s{S_W+1}, s55, 0\ns_mov_b32 s{S_W+2}, {16384+4096}")
    V_W0 = 32
    def poll(k, lab, off):
        k("s_mov_b32 s7, 0")
        k(f"{lab}:")
        k(f"buffer_load_dword v3, v27, {sr(S_K,4)}, s63 offen offset:{off} sc1\ns_waitcnt vmcnt(0)\nv_cmp_ne_u32 vcc, 0x{MAGIC:x}, v3")
        k(f"s_cbranch_vccz {lab}_r\ns_add_u32 s7, s7, 1\ns_cmp_lt_u32 s7, 0x10000\ns_cbranch_scc1 {lab}")
        k(f"{lab}_r:")
        k(f"s_barrier\nv_mov_b32 v3, 0\ns_mov_b32 exec_lo, 0\nbuffer_store_dword v3, v27, {sr(S_K,4)}, s63 offen offset:{off}\ns_mov_b64 exec, -1\ns_branch {lab}_e" if OPT.mk0 else "")
        k(f"{lab}_ok:")
    if OPT.f2:
        for j in range(OPT.na0 + OPT.na1 + OPT.na2, OPT.na3): k.run(a_w(j))
        if OPT.ff: k1t.setup_early(k)
        k("s_nop 1")
        for t in range(8): k(f"v_add_u32 v{V_W0+t}, {-VB & 0xffffffff}, v{V_VA+t}\nv_add_u32 v{V_W0+8+t}, {VB}, v{V_VA+t}")
        k(f"s_cmp_eq_u32 s{S_WAVE}, 0\ns_cbranch_scc0 k1_poll_ok")
        poll(k, "k1_poll", 0)
        k("s_waitcnt vmcnt(0)\ns_barrier")
        k.stamp(6) if not cfg.fine else (k.stamp(3) if cfg.fine == 2 else k1t.st(k, 'x0'))
        raise_(k, "k1_nf2", 32)
    else:
        if OPT.fa and not OPT.early: k.wait(vm="OST")
        if OPT.r0 or OPT.a3: k.wait(vm="AW3")
        k("s_waitcnt lgkmcnt(0)\ns_barrier")
        check(k)
    AC3 = lambda t, tb: 64 + (tb*8+t)*4
    B3 = lambda j, tb: O(2*j, tb) if j < 4 else (128 + ((j-4)*4+tb)*4 if j < 8 else ((j-8)*4+tb)*4)
    Lo, Hi = [0, 1, 2, 3], [4, 5, 6, 7]
    pr = lambda p: [2*p, 2*p+1]
    U3 = [(Lo, pr(0)), (Hi, pr(0)), (Lo, pr(1)), (Hi, pr(1))]
    U3 += [({'L': Lo, 'H': Hi}[c[0]], pr(2 + int(c[1]))) for c in OPT.a3o.split(',')]
    rem = [j for j in range(4, 16) if not any(ts == Hi and j in js for ts, js in U3)]
    assert len(rem) % 4 == 0
    for ts in ([4, 5], [6, 7]):
        for i in range(0, len(rem), 4): U3.append((ts, rem[i:i+4]))
    assert len(U3) == 16
    W3 = lambda n, ti, ji, nj: 192 + (n & 1)*32 + (ti*nj + ji)*4
    def a3_reads(n):
        ts, js = U3[n]
        return [L(f"ds_read_b64_tr_b16 {vr(W3(n,ti,ji,len(js))+2*h,2)}, v{(V_VA if j >= 8 else V_W0)+t} offset:{(j*8192 & 0xffff) + h*4096}", f"R{n}")
                for ti, t in enumerate(ts) for ji, j in enumerate(js) for h in range(2)]
    started = set()
    def a3_mf(n):
        ts, js = U3[n]; r = []; c = 0
        for ti, t in enumerate(ts):
            for tb_ in range(4):
                tb = tb_ if ti % 2 == 0 else 3 - tb_
                d = vr(AC3(t, tb), 4)
                for ji in (range(len(js)) if c % 2 == 0 else range(len(js)-1, -1, -1)):
                    r.append((f"{MF} {d}, {vr(W3(n,ti,ji,len(js)),4)}, {ar(B3(js[ji],tb),4)}, {d if (t, tb) in started else '0'}", t, tb))
                    started.add((t, tb))
                c += 1
        return r
    def a3_pre(k):
        k.lg = []
        k.run(a3_reads(0))
        for n in range(OPT.a3d):
            k.wait(lg=f"R{n}")
            emit(k, [x[0] for x in a3_mf(n)], k1t.spread(32, a3_reads(n+1), [], g0=0, g1=24))
    if OPT.fa and not OPT.f2:
        def addrs():
            if OPT.a2 and not OPT.a3:
                k("v_lshrrev_b32 v4, 1, v1\nv_lshlrev_b32 v4, 14, v4")
                for t in range(8): k(f"v_add_u32 v{V_W0+8+t}, v4, v{V_VA+t}\nv_add_u32 v{V_W0+t}, {-VB & 0xffffffff}, v{V_W0+8+t}")
                k(f"v_lshl_add_u32 v8, v1, 14, v{V_L16}\nv_xor_b32 v9, 0x8000, v8")
                if OPT.anr == 20:
                    k("v_add_u32 v8, 0x18000, v8\nv_add_u32 v9, 0x18000, v9")
                    for t in range(8): k(f"v_add_u32 v{V_VA+t}, {VB}, v{V_W0+8+t}")
            else:
                for t in range(8): k(f"v_add_u32 v{V_W0+t}, {-VB & 0xffffffff}, v{V_VA+t}\nv_add_u32 v{V_W0+8+t}, {VB}, v{V_VA+t}")
        flagprep(k)
        if OPT.early:
            if OPT.r0:
                assert OPT.a2 and OPT.t2 and OPT.anr == 16 and OPT.l2w and OPT.xpf
                for t in range(8): k(f"v_add_u32 v{64+t}, {-VB & 0xffffffff}, v{V_VA+t}")
                k.lg = []
                for b_ in (1, 0):
                    k.run([L(f"ds_read_b64_tr_b16 {(ar if b_ else vr)(192 + (e*8+t)*4 + 2*h, 2)}, v{64+t} offset:{(2*b_+e)*8192 + h*4096}", "R0") for t in range(8) for e in range(2) for h in range(2)])
                    if b_:
                        for i in range(32): k(f"v_accvgpr_write_b32 a{i}, v{96+i}")
            addrs(); k1t.setup_early(k)
            if OPT.r7 == 2:
                k(f"v_lshrrev_b32 v4, 8, v{V_L16}\nv_bfe_u32 v5, v{V_L16}, 6, 2\nv_cmp_eq_u32 vcc, v4, v5\nv_bfe_u32 v4, v{V_L16}, 4, 1\nv_lshlrev_b32 v4, 4, v4")
                k(f"v_mov_b32 v5, 0x3f80\nv_lshlrev_b32 v5, v4, v5\nv_cndmask_b32 v5, 0, v5, vcc\nv_bfe_u32 v4, v{V_L16}, 5, 1\nv_cmp_eq_u32 vcc, 0, v4\nv_mov_b32 v58, 0\nv_mov_b32 v59, 0")
                k("v_cndmask_b32 v56, 0, v5, vcc\nv_cndmask_b32 v57, v5, v58, vcc\nv_mov_b32 v60, 0\nv_mov_b32 v61, 0\nv_mov_b32 v62, v56\nv_mov_b32 v63, v57")
            if OPT.a3: a3_pre(k)
            k.wait(vm="OST", lg="R0" if OPT.r0 else None, barrier=True)
        k.stamp(6) if not cfg.fine else (k.stamp(3) if cfg.fine == 2 else k1t.st(k, 'x0'))
        raise_(k, "k1_nf1", 0)
        if OPT.own:
            assert OPT.a2 and OPT.apre and not OPT.mk0
            k.vm = []
            for tb in range(4):
                for e in range(2):
                    k(f"s_xor_b32 s{S_T0+(tb&1)}, s{52+(tb>>1)}, {(tb&1)*131072}")
                    k.vmop(f"buffer_load_dwordx4 {ar((e*4 + tb)*4,4)}, v{V_L16}, {sr(S_X,4)}, s{S_T0+(tb&1)} offen offset:{e*1024} sc1", f"AB0_{tb}")
        if not OPT.early: addrs()
        wmid = [g for j in range(OPT.na0 + OPT.na1 + OPT.na2, OPT.anr) for g in a_w(j)]
        if not (OPT.own or OPT.r0 or OPT.a3): k.run(wmid)
        if OPT.ff and not OPT.early: k1t.setup_early(k)
        if OPT.mearly: k1t.m_finish(k, 96)
        if OPT.a2 and OPT.apre and not OPT.r0 and not OPT.a3:
            k.lg = []
            k.run([L(f"ds_read_b64_tr_b16 {vr(192 + (e*8+t)*4 + 2*h, 2)}, v{V_W0+t} offset:{e*8192 + h*4096}", f"R0_{t}") for t in range(8) for e in range(2) for h in range(2)])
        if OPT.mk0:
            k(f"s_cmp_eq_u32 s{S_WAVE}, 0\ns_cbranch_scc0 k1_poll_ok")
            poll(k, "k1_poll", 0)
            k("s_waitcnt vmcnt(0)\ns_barrier\nk1_poll_e:")
        elif OPT.own or OPT.r0 or OPT.a3:
            pass
        elif "0" in OPT.pall:
            assert OPT.a2 and OPT.na0 + OPT.na2 >= 8
            k1t.pollall(k, "k1_h0", 27)
        else:
            k(f"s_cmp_eq_u32 s{S_WAVE}, 0\ns_cbranch_scc0 k1_h0_c\ns_mov_b32 s7, 0")
            k1t.pollloop(k, "k1_h0", 27)
    if OPT.fa:
        if not OPT.own: k.vm = []
        if not (OPT.a2 and OPT.apre): k.lg = []
        if cfg.fine == 2: k.stamp(4); k("s_waitcnt lgkmcnt(0)")
        if cfg.fine == 3: k1t.st(k, 'y0')
        if OPT.a3:
            assert OPT.anr == 16 and OPT.fce == 0 and OPT.early and not OPT.r0
            bq = [[f"s_xor_b32 s{S_T0+(tb&1)}, s52, {tb*131072 + A3U(j)*16384}",
                   V(f"buffer_load_dwordx4 {ar(B3(j,tb),4)}, v{V_L16}, {sr(S_X,4)}, s{S_T0+(tb&1)} offen offset:{A3S(j)*1024} sc1", f"B{j}")] for j in range(4, 16) for tb in range(4)]
            lastu = {t: max(n for n in range(16) if t in U3[n][0]) for t in range(8)}
            wm = list(wmid); n_ = 0; tailq = []
            for n in range(OPT.a3d, 16):
                k1t.st(k, f"u{n}")
                mfs = a3_mf(n)
                if n >= lastu[1]:
                    if n == lastu[1]: mq = []; vq = []; side = [It("\n".join(f"s_mov_b32 s{S_T0+4+tb}, {tb*16384}" for tb in range(4)), cost=0)]
                    pos = len(mq)
                    for i, (m_, t, tb) in enumerate(mfs):
                        fin = n == lastu[t] and not any(t2 == t and tb2 == tb for _, t2, tb2 in mfs[i+1:])
                        mq.append(It(m_, gives=[f"m{len(mq)}"] + ([f"D{t}{tb}"] if fin else []), needs={f"G{n}": 0} if i == 0 else None))
                    side.append(It(W(vm=f"B{max(U3[n][1])}", lg=f"R{n}"), cost=0, gives=f"G{n}", needs={f"m{pos-6}": 0} if pos else None))
                    if n < 15: side += [It(x, needs={f"m{pos}": 0}) for x in a3_reads(n+1)]
                    if n == lastu[1]: side += [It(lambda kk, g=g: kk.run(g), cost=2) for g in k1t.m_loads(192) + k1t.x_loads()]
                    for ns_ in range(4):
                        if lastu[2*ns_+1] == n:
                            for tb in range(4):
                                o = 8 + (n_ & 1)*4 if False else 56 + (n_ & 1)*4; a = AC3(2*ns_, tb); n_ += 1
                                vq += [It(f"v_cvt_pk_bf16_f32 v{o+d_}, v{a+2*d_}, v{a+2*d_+1}", needs={f"D{2*ns_+(d_>>1)}{tb}": 8}) for d_ in range(4)]
                                vq.append(It(V(f"buffer_store_dwordx4 {vr(o,4)}, v{V_L16}, {sr(S_W,4)}, s{S_T0+4+tb} offen offset:{ns_*1024} sc1", "PST"), cost=2,
                                             needs={f"st{n_-1}": OPT.a3s} if n_ > 1 else None, gives=f"st{n_}"))
                    continue
                vm = []
                if n < 4:
                    per = -(-len(wmid)//max(1, 3 - OPT.a3d)) if n < 3 else len(wm)
                    vm = wm[:per]; wm = wm[per:]
                else:
                    vm = bq[:OPT.a3n]; bq = bq[OPT.a3n:]
                gaps = k1t.spread(32, a3_reads(n+1), vm, g1=28)
                if n == 3:
                    front(gaps, OPT.a3p, V(f"buffer_load_dword v3, v27, {sr(S_K,4)}, s63 offen sc1", "F1"))
                    add(gaps, 31, W(vm="F1"), f"v_cmp_ne_u32 vcc, 0x{MAGIC:x}, v3\ns_cbranch_vccnz k1_spin1\nk1_spin1_ret:")
                    for x in bq[:OPT.a3b0]: add(gaps, 31, *x)
                    bq = bq[OPT.a3b0:]
                add(gaps, -1, W(vm=f"B{max(U3[n][1])}" if n >= 4 else None, lg=f"R{n}"))
                if n == 4: front(gaps, 0, "s_barrier")
                emit(k, [x[0] for x in mfs], gaps)
            assert not bq and not wm
            merge(k, mq, vq, side)
            k1t.MBASE = 192
            k1t.rest(k, 0)
        elif OPT.a2:
            assert OPT.anr in (16, 20) and OPT.fce == 0
            NQ = OPT.anr//4
            AC = lambda t, tb: 64 + (tb*8+t)*4
            AW = lambda u, e, t, n=4, o=0: (ar if u & 1 else vr)(192 + (e*8+t)*4 + o, n)
            AB = lambda u, e, tb: ((u % 6)*8 + e*4 + tb)*4
            def a_b(u):
                if OPT.r7 and u == 7:
                    return [[f"s_xor_b32 s{S_T0+tb}, s52, {tb*131072 + HX(u)*16384}\ns_sub_u32 s{S_T0+tb}, s{S_T0+tb}, s53",
                             V(f"buffer_load_dwordx4 {ar(((u % 6)*8 + s_*2 + tb)*4,4)}, v{V_L16}, {sr(S_X,4)}, s{S_T0+tb} offen offset:{s_*1024} sc1", "AB7_3")] for s_ in (2, 3, 0, 1) for tb in range(2)]
                return [[f"s_xor_b32 s{S_T0+(tb&1)}, s{100 if HT(u) else 52}, {tb*131072 + HX(u)*16384}",
                         V(f"buffer_load_dwordx4 {ar(AB(u,e,tb),4)}, v{V_L16}, {sr(S_X,4)}, s{S_T0+(tb&1)} offen offset:{e*1024} sc1", f"AB{u}_{tb}")] for tb in range(4) for e in range(2)]
            def a_reads(u, b_=1):
                base = (u % NQ)*32768; off = base & 0xffff
                if OPT.r7 and u == 7:
                    return [L(f"ds_read_b64_tr_b16 {AW(b_,e,t,2,2*h)}, v{V_VA+t} offset:{off + (2*b_+e)*8192 + h*4096}", f"R7_{t}" if b_ else "R8") for t in range(8) for e in range(2) for h in range(2)]
                return [L(f"ds_read_b64_tr_b16 {AW(u,e,t,2,2*h)}, v{(V_W0, V_W0+8, V_VA)[base>>16]+t} offset:{off + e*8192 + h*4096}", f"R{u}_{t}") for t in range(8) for e in range(2) for h in range(2)]
            bq = [g for u in range(8) for g in a_b(u)]; nbq = OPT.a2b0
            if OPT.own or OPT.r0: nbq = 8
            else: k.run(bq[:nbq])
            if not OPT.apre: k.run(a_reads(0))
            wq = [g for j in range(OPT.anr, 32) for g in a_w(j)]; nwq = 0; NWQ = len(wq)
            for u in range(8):
                k1t.st(k, f"a{u}")
                if u == 7 and OPT.r7:
                    assert OPT.anr == 16
                    k.wait(vm="AB7_3", lg="R7_7")
                    B7 = lambda s_, tb: ar(((u % 6)*8 + s_*2 + tb)*4, 4)
                    mf = []; n_ = 0
                    for t in range(8):
                        for tb_ in range(2):
                            tb = tb_ if t % 2 == 0 else 1 - tb_
                            d = vr(AC(t, tb), 4)
                            for e in ((0, 1) if n_ % 2 == 0 else (1, 0)): mf.append(f"{MF} {d}, {AW(1,e,t)}, {B7(2+e,tb)}, {d}")
                            n_ += 1
                    if OPT.r7 == 2:
                        mq = [It(x) for x in mf]; vq = []; n_ = 0
                        for ns_ in range(4):
                            for tb in (2, 3):
                                a = AC(2*ns_, tb); o = 32 + (n_ & 3)*4
                                vq += [It(f"v_cvt_pk_bf16_f32 v{o+d_}, v{a+2*d_}, v{a+2*d_+1}") for d_ in range(4)]
                                vq.append(It(L(f"ds_write_b128 v8, {vr(o,4)} offset:{n_*1024}", "XW"), cost=2))
                                n_ += 1
                        merge(k, mq, vq, [It(f"s_mov_b32 s{S_T0}, 0\ns_mov_b32 s{S_T0+1}, 16384", cost=0)] + [It(x) for x in a_reads(7, 0)], budget=3)
                        k.wait(lg='all')
                        k1t.st(k, "a8")
                        mq = []; vq = []; side = [It("s_barrier", cost=0)]; n_ = 0
                        side += [It(L(f"ds_read_b128 {vr(128+4*n,4)}, v9 offset:{n*1024}", f"E{n//4}")) for n in range(8)]
                        side += [It(W(lg="E0"), cost=0, gives="E0"), It(W(lg="E1"), cost=0, gives="E1")]
                        sel = []
                        for ns_ in range(4):
                            for tb in range(2):
                                o = 160 + n_*4; a = AC(2*ns_, tb)
                                for h in range(2):
                                    t = 2*ns_ + h; d = vr(AC(t, tb), 4)
                                    for e in ((0, 1) if h == 0 else (1, 0)): mq.append(It(f"{MF} {d}, {AW(0,e,t)}, {B7(e,tb)}, {d}"))
                                    sel.append(It(f"{MF} {d}, {vr(56+4*h,4)}, {vr(128+4*n_,4)}, {d}", needs={f"E{n_//4}": 0}, gives=f"D{t}{tb}"))
                                if n_ >= 2: mq += sel; sel = []
                                vq += [It(f"v_cvt_pk_bf16_f32 v{o+d_}, v{a+2*d_}, v{a+2*d_+1}", needs={f"D{2*ns_+(d_>>1)}{tb}": 8}) for d_ in range(4)]
                                vq.append(It(V(f"buffer_store_dwordx4 {vr(o,4)}, v{V_L16}, {sr(S_W,4)}, s{S_T0+tb} offen offset:{ns_*1024} sc1", "PST"), cost=2))
                                n_ += 1
                    else:
                        gaps = {}; rd = a_reads(7, 0)
                        wr = [L(f"ds_write_b128 v8, {vr(AC(t,tb),4)} offset:{((tb-2)*8+t)*1024}", "XW") for t in range(8) for tb in (2, 3)]
                        for g in range(32):
                            if g % 2 == 0: add(gaps, g, wr.pop(0))
                            else: add(gaps, g, rd.pop(0), rd.pop(0))
                        add(gaps, 1, f"s_mov_b32 s{S_T0}, 0\ns_mov_b32 s{S_T0+1}, 16384")
                        emit(k, mf, gaps)
                        k.wait(lg='all')
                        k1t.st(k, "a8")
                        mq = []; vq = []; side = [It("s_barrier", cost=0)]; n_ = 0
                        for ns_ in range(4):
                            for tb in range(2):
                                o = 32 + (n_ & 3)*4
                                for h in range(2):
                                    t = 2*ns_ + h; d = vr(AC(t, tb), 4)
                                    for i, e in enumerate((0, 1) if h == 0 else (1, 0)):
                                        mq.append(It(f"{MF} {d}, {AW(0,e,t)}, {B7(e,tb)}, {d}", gives=f"D{t}{tb}" if i else None))
                                    side.append(It(L(f"ds_read_b128 {vr(AC(t,tb+2),4)}, v9 offset:{(tb*8+t)*1024}", f"E{n_}"), gives=f"I{n_}" if h else None))
                                a = AC(2*ns_, tb)
                                vq.append(It(W(lg=f"E{n_}"), cost=0, needs={f"I{min(7, n_+1)}": 0, f"D{2*ns_}{tb}": 4}))
                                if n_ < OPT.r7p: vq += [It(f"v_add_f32 v{a+i}, v{a+i}, v{a+64+i}", needs={f"D{2*ns_+(i>>2)}{tb}": 8}) for i in range(8)]
                                else: vq += [It(f"v_pk_add_f32 {vr(a+i,2)}, {vr(a+i,2)}, {vr(a+64+i,2)}", needs={f"D{2*ns_+(i>>2)}{tb}": 8}) for i in range(0, 8, 2)]
                                vq += [It(f"v_cvt_pk_bf16_f32 v{o+d_}, v{a+2*d_}, v{a+2*d_+1}") for d_ in range(4)]
                                vq.append(It(V(f"buffer_store_dwordx4 {vr(o,4)}, v{V_L16}, {sr(S_W,4)}, s{S_T0+tb} offen offset:{ns_*1024} sc1", "PST"), cost=2))
                                n_ += 1
                    merge(k, mq, vq, side, budget=OPT.r7b)
                    break
                if u == 7:
                    k.wait(vm="AB7_3", lg="R7_7")
                    mq = []; vq = []; side = [It(f"s_mov_b32 s{S_T0}, 0\ns_mov_b32 s{S_T0+1}, 16384", cost=0)]
                    for tb in (2, 3, 0, 1):
                        for t_ in range(8):
                            t = t_ if tb % 2 == 0 else 7 - t_
                            d = vr(AC(t, tb), 4)
                            for i, e in enumerate((0, 1) if t_ % 2 == 0 else (1, 0)):
                                mq.append(It(f"{MF} {d}, {AW(u,e,t)}, {ar(AB(u,e,tb),4)}, {d}", gives=f"D{t}{tb}" if i else None))
                            if tb >= 2: side.append(It(f"ds_write_b128 v8, {d} offset:{((tb-2)*8+t)*1024}", cost=2, needs={f"D{t}{tb}": 8, f"w{len(side)-1}": OPT.awsp}, gives=f"w{len(side)}"))
                    side[0].gives = "w0"
                    merge(k, mq, [], side)
                    k("s_waitcnt lgkmcnt(0)\ns_barrier")
                    k1t.st(k, "a8")
                    k.lg = []
                    for tb in range(2):
                        for t in range(8): k.lgop(f"ds_read_b128 {vr(AC(t,tb+2),4)}, v9 offset:{(tb*8+t)*1024}", f"E{tb}{t>>1}")
                    n_ = 0
                    for tb in range(2):
                        for ns_ in range(4):
                            k.wait(lg=f"E{tb}{ns_}")
                            a = AC(2*ns_, tb); o = 192 + n_*4; n_ += 1
                            for i in range(0, 8, 2): k(f"v_pk_add_f32 {vr(a+i,2)}, {vr(a+i,2)}, {vr(a+64+i,2)}")
                            for d in range(4): k(f"v_cvt_pk_bf16_f32 v{o+d}, v{a+2*d}, v{a+2*d+1}")
                            k.vmop(f"buffer_store_dwordx4 {vr(o,4)}, v{V_L16}, {sr(S_W,4)}, s{S_T0+tb} offen offset:{ns_*1024} sc1", "PST")
                    break
                mf = []; n_ = 0
                for t in range(8):
                    for tb_ in range(4):
                        tb = tb_ if t % 2 == 0 else 3 - tb_
                        d = vr(AC(t, tb), 4)
                        for i, e in enumerate((0, 1) if n_ % 2 == 0 else (1, 0)):
                            z = (u == 0 or (OPT.r0 and u == 1 and tb >= 2)) and i == 0
                            mf.append(f"{MF} {d}, {AW(u,e,t)}, {ar(AB(u,e,tb),4)}, {'0' if z else d}")
                        n_ += 1
                if OPT.r0 and u == 0:
                    mf = []; n_ = 0
                    for b_ in (1, 0):
                        for t in range(8):
                            for tb_ in range(2):
                                tb = tb_ if t % 2 == 0 else 1 - tb_
                                d = vr(AC(t, tb), 4)
                                for i, e in enumerate((0, 1) if n_ % 2 == 0 else (1, 0)):
                                    mf.append(f"{MF} {d}, {AW(b_,e,t)}, {ar(((2*b_+e)*2+tb)*4,4)}, {'0' if (b_ and i == 0) else d}")
                                n_ += 1
                vm = []
                while len(vm) < (OPT.ownn if ((OPT.own or OPT.r0) and u == 0) else OPT.a2n):
                    wok = nwq < NWQ and u >= nwq//8 + 1
                    bok = nbq < 64 and nbq//8 - 6 < u
                    if wok and (not bok or NQ + nwq//8 - 1 <= nbq//8): vm.append(wq[nwq]); nwq += 1
                    elif bok: vm.append(bq[nbq]); nbq += 1
                    else: break
                assert nwq >= min(NWQ, (u + 3 - NQ)*8) and nbq >= min(64, (u + 2)*8), (u, nwq, nbq)
                if OPT.ff and u == 6: vm += ([] if OPT.mearly else k1t.m_loads(64)) + k1t.x_loads()
                if OPT.r0 and u == 0:
                    gaps = {}
                    wm = wmid + wq[:OPT.r0w]; nwq = OPT.r0w
                    for i, x in enumerate(wm): add(gaps, (30*i)//len(wm), *x)
                    rd = a_reads(1)
                    for g in range(31, 47): add(gaps, g, rd.pop(0), rd.pop(0))
                    add(gaps, -1, W(lg="R0"))
                    front(gaps, OPT.ownp, V(f"buffer_load_dword v3, v27, {sr(S_K,4)}, s63 offen sc1", "F1"))
                    add(gaps, 63, W(vm="F1"), f"v_cmp_ne_u32 vcc, 0x{MAGIC:x}, v3\ns_cbranch_vccnz k1_spin1\nk1_spin1_ret:")
                    for x in vm: add(gaps, 63, *x)
                    emit(k, mf, gaps)
                    continue
                if OPT.own and u == 0:
                    gaps = {}
                    for i, x in enumerate(wmid): add(gaps, 7 + 2*i, *x)
                    rd = a_reads(1)
                    for g in range(1, OPT.ownc):
                        if g not in gaps and rd: add(gaps, g, rd.pop(0))
                    assert not rd and OPT.ownp > 7 + 2*len(wmid) - 2
                    front(gaps, OPT.ownp, V(f"buffer_load_dword v3, v27, {sr(S_K,4)}, s63 offen sc1", "F1"))
                    add(gaps, OPT.ownc, W(vm="F1"), f"v_cmp_ne_u32 vcc, 0x{MAGIC:x}, v3\ns_cbranch_vccnz k1_spin1\nk1_spin1_ret:")
                    for i, x in enumerate(vm): add(gaps, min(63, OPT.ownc + 1 + i), *x)
                else:
                    gaps = k1t.spread(64, a_reads(u+1), vm, g1=56)
                if (OPT.own or OPT.r0) and u == 1:
                    add(gaps, -1, W(vm="AB1_0", lg="R1_7"))
                    front(gaps, 0, "s_barrier")
                    for tb in range(1, 4): front(gaps, 2*tb-1, W(vm=f"AB1_{tb}"))
                elif u == 0:
                    add(gaps, -1, W(vm="AB0_0", lg="R0_1"))
                    for tb in range(1, 4): front(gaps, 2*tb-1, W(vm=f"AB0_{tb}"))
                    front(gaps, 13, W(lg="R0_7"))
                else:
                    add(gaps, -1, W(vm=f"AB{u}_3", lg=f"R{u}_7"))
                    front(gaps, 0, W(vm=f"AW{4*u+7}", barrier=True))
                if OPT.slowa: add(gaps, 63, f"s_sleep {OPT.slowa}"); add(gaps, 31, f"s_sleep {OPT.slowa}")
                emit(k, mf, gaps)
            assert nbq == 64 and nwq == NWQ
            k1t.MBASE = 64
            k1t.rest(k, 0)
    if OPT.fa and not OPT.a2:
        AC = lambda t, tb: 64 + (t*2+tb)*4
        AWF = lambda j, t: 128 + ((j&3)*8+t)*4
        ABF = lambda j, tb: (j*2+tb)*4
        def a_b(j):
            return [[f"s_mov_b32 s{S_T0+tb}, {tb*131072 + AH(j)*16384}",
                     V(f"buffer_load_dwordx4 {ar(ABF(j,tb),4)}, v{V_L16}, {sr(S_X,4)}, s{S_T0+tb} offen offset:{AS(j)*1024} sc1", f"AB{j}")] for tb in range(2)]
        def a_reads(p):
            r = []
            for t in range(8):
                for j in (2*p, 2*p+1):
                    base = (j % OPT.anr)*8192; off = base & 0xffff
                    r += [L(f"ds_read_b64_tr_b16 {vr(AWF(j,t)+2*h,2)}, v{(V_W0, V_VA, V_W0+8)[base >> 16]+t} offset:{off + h*4096}", f"R{p}_{t}") for h in range(2)]
            return r
        nb = OPT.nb0
        for j in range(nb): k.run(a_b(j))
        k.run(a_reads(0))
        nw = max(OPT.na3, OPT.na0 + OPT.na1 + OPT.na2) if OPT.f2 else OPT.anr; ncw = 0
        for p in range(16):
            mf = []; n_ = 0
            for t in range(8):
                for tb_ in range(2):
                    tb = tb_ if t % 2 == 0 else 1 - tb_
                    d = vr(AC(t, tb), 4)
                    for i, j in enumerate((2*p, 2*p+1) if n_ % 2 == 0 else (2*p+1, 2*p)):
                        mf.append(f"{MF} {d}, {vr(AWF(j,t),4)}, {ar(ABF(j,tb),4)}, {d if (p or i) else '0'}")
                    n_ += 1
            if p == 15 and OPT.amrg:
                k.wait(vm=f"AB{2*p+1}", lg=f"R{p}_3")
                mq = []; vq = []; n_ = 0
                for ns_ in range(4):
                    for tb_ in range(2):
                        tb = tb_ if ns_ % 2 == 0 else 1 - tb_
                        o = 128 + n_*4
                        for h_ in range(2):
                            h = h_ if n_ % 2 == 0 else 1 - h_
                            t = 2*ns_ + h; a = AC(t, tb); d = vr(a, 4)
                            for i, j in enumerate((2*p, 2*p+1) if h_ == 0 else (2*p+1, 2*p)):
                                mq.append(It(f"{MF} {d}, {vr(AWF(j,t),4)}, {ar(ABF(j,tb),4)}, {d}", gives=f"D{t}{tb}" if i else None, needs={"RR": 0} if len(mq) == 16 else None))
                            vq += [It(f"v_cvt_pk_bf16_f32 v{o+2*h+e}, v{a+2*e}, v{a+2*e+1}", needs={f"D{t}{tb}": 8}) for e in range(2)]
                        vq.append(It(V(f"buffer_store_dwordx4 {vr(o,4)}, v{V_L16}, {sr(S_W,4)}, s{S_T0+tb} offen offset:{ns_*1024} sc1", "PST"), cost=2))
                        n_ += 1
                merge(k, mq, vq, [It(f"s_mov_b32 s{S_T0}, 0\ns_mov_b32 s{S_T0+1}, 16384", cost=0), It(W(lg='all'), cost=0, gives="RR", needs={"D01": 0})])
                break
            vm = []
            for _ in range(OPT.nbs):
                wok = nw < 32 and (nw < OPT.anr or p >= (nw-OPT.anr)//2 + 1)
                if wok and (nb >= 32 or nw//2 - 1 - OPT.wlead <= nb//2): vm += a_w(nw); nw += 1
                elif nb < 32 and not (OPT.f2 and nb >= 16 and p < OPT.f2c): vm += a_b(nb); nb += 1
                elif wok: vm += a_w(nw); nw += 1
                elif OPT.ff and nw == 32 and ncw < OPT.fce and len(vm) <= 3 and k1t.a_last(k1t.cperm()[ncw], OPT.anr) <= p - 1:
                    vm += k1t.c_w(ncw); ncw += 1
            if OPT.ff and p == OPT.fxp: vm += k1t.x_loads()
            if OPT.ff and p in (OPT.fmp, OPT.fmp+1): vm += k1t.m_loads()[4*(p-OPT.fmp):4*(p-OPT.fmp)+4]
            if OPT.f2 and p == OPT.f2c - 1: vm.insert(len(vm)//2, [V(f"buffer_load_dword v3, v27, {sr(S_K,4)}, s63 offen offset:32 sc1", "F2")])
            if OPT.loc and p == OPT.lwb:
                vm.append([f"s_lshr_b32 s6, s2, 3\ns_or_b32 s6, s6, s{S_WAVE}\ns_cbranch_scc1 k1_nowb\nbuffer_wbl2 sc1\nk1_nowb:"])
            rd = a_reads(p+1) if p < 15 else []
            if OPT.ax == 1: rd = []
            if OPT.ax == 2: vm = []
            if OPT.ax == 3: rd = rd[:24]
            if OPT.ax == 4: vm = [x for x in vm if "m0" in x[0]]
            if OPT.amix:
                gaps = fill(32, [], [], vm, g0=1)
                fr = [g for g in range(1, 31) if g not in gaps]
                for i, g in enumerate(fr):
                    c = (len(rd) + len(fr) - i - 1)//(len(fr) - i) if (i % 2 == 0 or len(rd) >= 2*(len(fr)-i)) else len(rd)//(len(fr) - i)
                    for _ in range(c): add(gaps, g, rd.pop(0))
                assert not rd
            else:
                gaps = fill(32, rd, [], vm, g0=1, pair_lds=True)
            add(gaps, -1, W(vm=f"AB{2*p+1}", lg=f"R{p}_3"))
            if OPT.f2 and p == OPT.f2c:
                add(gaps, -1, W(vm="F2"), "v_cmp_ne_u32 vcc, 1, v3\ns_cbranch_vccnz k1_spin2\nk1_spin2_ret:")
            front(gaps, 12, W(lg=f"R{p}_7"))
            if OPT.slowa and OPT.slow0 <= p < OPT.slown: add(gaps, 31, f"s_sleep {OPT.slowa}")
            if 1 <= p < 15 and not OPT.anob: front(gaps, 0, W(vm=f"AW{2*p+3}", barrier=True))
            emit(k, mf, gaps)
            if cfg.fine == 2 and p == 1: k.stamp(5); k("s_waitcnt lgkmcnt(0)"); k.lg = []
        if cfg.fine == 2: k.stamp(6)
        assert nb == 32 and nw == 32
        k(f"s_mov_b32 s{S_T0}, 0\ns_mov_b32 s{S_T0+1}, 16384")
        n_ = 0
        for ns_ in range(4 if not OPT.amrg else 0):
            for tb in range(2):
                o = 128 + n_*4; n_ += 1
                for h in range(2):
                    a = AC(2*ns_+h, tb)
                    k(f"v_cvt_pk_bf16_f32 v{o+2*h}, v{a}, v{a+1}\nv_cvt_pk_bf16_f32 v{o+2*h+1}, v{a+2}, v{a+3}")
                k(f"buffer_store_dwordx4 {vr(o,4)}, v{V_L16}, {sr(S_W,4)}, s{S_T0+tb} offen offset:{ns_*1024} sc1")
        if OPT.ff: k1t.rest(k, ncw)
    k.dbg_mark(3, 100, 101, True); k.dbg_mark(4, 102, 103)
    if prof:
        k.stamp(6) if not (cfg.fine or OPT.fa) else None
        k("s_waitcnt vmcnt(0)")
        k.stamp(7) if cfg.fine != 1 else None
        k.dump_stamps(8, 54, 100)
    k(f"{end}:")
    k("s_endpgm")
    if OPT.own or OPT.r0 or OPT.a3:
        k("k1_spin1:")
        k1t.pollall(k, "k1_sp1", 27)
        k("s_branch k1_spin1_ret")
    if OPT.f2:
        k("k1_spin2:")
        poll(k, "k1_poll2", 32)
        k("s_branch k1_spin2_ret")
    k("k1_fallback:")
    k(f"s_mov_b32 s{S_RERUN}, 1")
    k("v_and_b32 v2, 63, v0\nv_lshrrev_b32 v3, 4, v2\nv_and_b32 v4, 15, v2")
    k("v_lshlrev_b32 v5, 8, v4\nv_lshl_add_u32 v5, v3, 4, v5")
    for q in range(4): k(f"v_mov_b32 v{V_T+q}, 0xff800000")
    k("s_mov_b32 s6, 0")
    k("k1_fb_loop:")
    for s in range(4): k(f"buffer_load_dwordx4 {ar(KF(s),4)}, v5, {sr(S_K,4)}, s6 offen offset:{64*s}")
    k("s_waitcnt vmcnt(0)")
    for s in range(4):
        for qb in range(4):
            d = vr(S(0,0,qb),4)
            k(f"{MF} {d}, {ar(KF(s),4)}, {vr(Q(qb,s),4)}, {d if s else '0'}")
    k("s_nop 15")
    for qb in range(4):
        a = S(0,0,qb)
        k(f"v_max3_f32 v{V_T+qb}, v{V_T+qb}, v{a}, v{a+1}")
        k(f"v_max3_f32 v{V_T+qb}, v{V_T+qb}, v{a+2}, v{a+3}")
    k("s_add_u32 s6, s6, 4096\ns_cmp_lt_u32 s6, 0x80000\ns_cbranch_scc1 k1_fb_loop")
    rowmax_cross(k, [V_T+q for q in range(4)], V_T+4)
    for x in pfv: k(x)
    for qb in range(4):
        k(f"v_mov_b32 v{V_LS+qb}, 0")
        for i in range(4): k(f"v_sub_f32 v{MN(qb)+i}, 0, v{V_T+qb}")
    k("s_barrier")
    k.vm = []; k.lg = []
    for wh, t in (('K',0),('K',1),('V',0),('K',2),('V',1),('K',3)): run(kv_group(wh, t))
    k.wait(vm="V0", barrier=True)
    run(kreads(0, 0, HK(0))); k("s_waitcnt lgkmcnt(0)"); run(kreads(0, 1, HK(1)))
    for m in qk_mfmas(0, HK(0)): k(m)
    k("s_waitcnt lgkmcnt(0)\ns_barrier")
    run(kreads(1, 0))
    for m in qk_mfmas(1, HK(1)): k(m)
    merge(k, [], sm0([0, 1, 2, 3], sub=False))
    k(loopinit)
    k("s_branch k1_first")
    return k
```

```python
from common import *
from sched import *
from k0 import mod_loads, mod_finish
MF = "v_mfma_f32_16x16x32_bf16"
S_K, S_V, S_W, S_X, S_M, S_O, S_D = 8, 12, 16, 20, 24, 28, 48
S_T0, S_WAVE, S_W1 = 36, 45, 62
S_TT, S_MM, S_W3 = 33, 34, 35
V_L16 = 26
PAR2 = 9*16384 + 8192
SCR = 9*16384 + 4096 + 64
C_W, C_NW = 12288, 12
D_U, D_NW = 16384, 9
V_DC, V_DD = 20, 23
XR = 48

def spread(n, rd, vm, g0=1, g1=None):
    gaps = fill(n, [], [], vm, g0=g0)
    fr = [g for g in range(g0, (g1 or n-1)) if g not in gaps]
    rd = list(rd)
    for i, g in enumerate(fr):
        left = len(fr) - i
        c = -(-len(rd)//left) if (i % 2 == 0 or len(rd) >= 2*left) else len(rd)//left
        for _ in range(c): add(gaps, g, rd.pop(0))
    assert not rd
    return gaps

def a_last(i, anr):
    sl = range((i*C_W)//8192, (i*C_W + C_W - 1)//8192 + 1)
    return max(max(x for x in range(32) if x % anr == s_)//2 if s_ < anr else -1 for s_ in sl)
def cperm(): return [8, 9, 10, 11, 0, 1, 2, 3, 4, 5, 6, 7] if (OPT.fce == 0 and OPT.cp2) else sorted(range(C_NW), key=lambda i: (a_last(i, OPT.anr), i))
def c_last(i):
    P = cperm()
    sl = range((i*D_U)//C_W, (i*D_U + D_U - 1)//C_W + 1)
    return max(max(x for x in range(16) if P[x % C_NW] == s_)//2 for s_ in sl)
def dperm(): return sorted(range(D_NW), key=lambda i: (c_last(i), i))

def c_w(j):
    return [[(f"s_add_u32 m0, s{S_W3}, {cperm()[j % C_NW]*C_W}\ns_mov_b32 s{S_T0+6}, {j*32*2752}"),
             V(f"buffer_load_dwordx4 v{V_DC+p}, {sr(S_V,4)}, s{S_T0+6} offen offset:{p*1024} lds", f"CW{j}")] for p in range(3)]
def d_w(i):
    return [[f"s_add_u32 m0, s32, {dperm()[i % D_NW]*D_U}\ns_mov_b32 s{S_T0+7}, {i*128*1024 + p*(8192-1024)}",
             V(f"buffer_load_dwordx4 v{V_DD}, {sr(S_D,4)}, s{S_T0+7} offen offset:{p*1024} lds", f"DW{i}")] for p in range(4)]

def setup_early(k):
    k(f"s_lshl_b32 s{S_TT}, s5, 1\ns_bfe_u32 s6, s2, 0x10005\ns_add_u32 s{S_TT}, s{S_TT}, s6")
    k(f"s_and_b32 s{S_MM}, s2, 3\ns_lshl_b32 s{S_MM}, s{S_MM}, 2\ns_bfe_u32 s6, s2, 0x20003\ns_add_u32 s{S_MM}, s{S_MM}, s6")
    k.srd(52, 54, 4*12288, WS_MODP) if False else None
    k("v_lshlrev_b32 v31, 4, v0")
    k(f"s_mul_i32 s{S_W3}, s{S_WAVE}, 3072\ns_mul_i32 s6, s{S_MM}, 192\ns_min_u32 s6, s6, {14*192}")
    k(f"s_cmp_lt_u32 s{S_WAVE}, 2\ns_cselect_b64 s[{S_V}:{S_V+1}], s[56:57], s[58:59]")
    k(f"s_add_u32 s{S_V}, s{S_V}, s6\ns_addc_u32 s{S_V+1}, s{S_V+1}, 0\ns_sub_u32 s{S_V+2}, {512*2752}, s6")
    k(f"s_cmp_eq_u32 s{S_MM}, 15\ns_cselect_b32 s{S_V+2}, 0, s{S_V+2}")
    k(f"s_and_b32 s6, s{S_MM}, 7\ns_lshl_b32 s6, s6, 7\ns_lshl_b32 s{S_T0+4}, s{S_WAVE}, 15\ns_add_u32 s6, s6, s{S_T0+4}")
    k(f"s_add_u32 s{S_D}, s60, s6\ns_addc_u32 s{S_D+1}, s61, 0\ns_sub_u32 s{S_D+2}, {1376*1024}, s6\ns_mov_b32 s{S_D+3}, 0x20000")
    k(f"v_lshrrev_b32 v5, 4, v{V_L16}\nv_and_b32 v6, 1, v1\nv_lshlrev_b32 v6, 4, v6")
    for p in range(3):
        k(f"v_add_u32 v56, {64*p}, v5")
        k("v_mul_u32_u24 v57, 0x5556, v56\nv_lshrrev_b32 v57, 18, v57")
        k("v_mul_u32_u24 v58, 12, v57\nv_sub_u32 v58, v56, v58")
        k("v_lshrrev_b32 v59, 1, v57\nv_and_b32 v59, 2, v59\nv_xor_b32 v58, v58, v59")
        k("v_add_u32 v57, v57, v6\nv_mul_u32_u24 v57, 2752, v57")
        k(f"v_lshl_add_u32 v{V_DC+p}, v58, 4, v57")
        if p: k(f"v_subrev_u32 v{V_DC+p}, {1024*p}, v{V_DC+p}")
    k("v_lshrrev_b32 v56, 3, v5\nv_and_b32 v57, 7, v5\nv_and_b32 v58, 6, v56\nv_xor_b32 v57, v57, v58")
    k(f"v_lshlrev_b32 v56, 10, v56\nv_lshl_add_u32 v{V_DD}, v57, 4, v56")
    k("v_and_b32 v56, 7, v0\nv_bfe_u32 v57, v0, 3, 2\nv_lshrrev_b32 v58, 5, v0")
    k("v_lshlrev_b32 v24, 10, v58\nv_lshl_add_u32 v24, v57, 8, v24\nv_lshl_add_u32 v24, v56, 4, v24")
    k("v_lshlrev_b32 v25, 10, v56\nv_lshl_add_u32 v25, v58, 6, v25\nv_lshl_add_u32 v25, v57, 3, v25")
    k(f"v_lshlrev_b32 v28, 7, v58\nv_lshl_add_u32 v28, v57, 4, v28\nv_add_u32 v28, {PAR2}, v28")
    k(f"v_lshlrev_b32 v29, 4, v56\nv_add_u32 v29, {SCR}, v29\nv_lshl_add_u32 v30, v1, 2, v29")
    k(f"s_lshl_b32 s6, s{S_TT}, 4\ns_add_u32 s6, s6, s{S_MM}\ns_lshl_b32 s6, s6, 13")
    k(f"s_add_u32 s{S_O}, s0, s6\ns_addc_u32 s{S_O+1}, s1, 0\ns_mov_b32 s{S_O+2}, 8192")
    k.srd(56, 54, 4*12288, WS_MODP)

MBASE = 0
def m_loads(base=0):
    return [[f"s_mov_b32 s{S_T0+2}, {4096*(1+(i>>2)) + (i&3)*12288}", V(f"buffer_load_dwordx4 {ar(base+4*i,4)}, v31, s[56:59], s{S_T0+2} offen sc1", "M")] for i in range(8)]
def m_finish(k, R=None):
    if R is None:
        R = 64
        for i in range(32): k(f"v_accvgpr_read_b32 v{64+i}, a{MBASE+i}")
    k(f"s_mov_b32 s6, 0\ns_cmp_lt_u32 s{S_WAVE}, 2\ns_cselect_b32 s{S_T0+4}, 1.0, 0\nv_add_u32 v31, {PAR2}, v31")
    mod_finish(k, R, 6); mod_finish(k, R+16, S_T0+4)
    k(f"ds_write_b128 v31, {vr(R,4)}\nds_write_b128 v31, {vr(R+16,4)} offset:4096\ns_waitcnt lgkmcnt(0)")

def clean_ops():
    if not (OPT.loc and OPT.lcn): return []
    return [[f"s_mov_b32 s{S_T0+5}, {i*16384}", V(f"buffer_store_dwordx4 v[48:51], v{V_L16}, s[56:59], s{S_T0+5} offen offset:{e*1024} sc1", "CL")] for i in range(4) for e in range(4)]

def x_loads():
    return [[V(f"buffer_load_dwordx2 {vr(XR+pc*4+h*2,2)}, v25, {sr(S_O,4)}, 0 offen offset:{pc*512+h*32}", "X")] for pc in range(2) for h in range(2)]

def pollall(k, lab, va):
    k(f"s_mov_b32 s7, 0\n{lab}_b:")
    k(f"buffer_load_dword v3, v{va}, {sr(S_K,4)}, s63 offen sc1\ns_waitcnt vmcnt(0)\nv_cmp_ne_u32 vcc, 0x{MAGIC:x}, v3")
    k(f"s_cbranch_vccz {lab}_d\ns_add_u32 s7, s7, 1\ns_cmp_lt_u32 s7, 0x10000\ns_cbranch_scc1 {lab}_b\n{lab}_d:")

def pollloop(k, lab, va):
    ld = lambda r: f"buffer_load_dword v{r}, v{va}, {sr(S_K,4)}, s63 offen sc1"
    if OPT.pp:
        k(ld(3) + f"\ns_sleep {OPT.pp}")
        k(f"{lab}_b:")
        for a, b in ((5, 3), (3, 5)):
            k(ld(a) + f"\ns_waitcnt vmcnt(1)\nv_cmp_ne_u32 vcc, 0x{MAGIC:x}, v{b}\ns_cbranch_vccz {lab}_d")
        k(f"s_add_u32 s7, s7, 1\ns_cmp_lt_u32 s7, 0x10000\ns_cbranch_scc1 {lab}_b")
    else:
        k(f"{lab}_b:")
        k(ld(3) + f"\ns_waitcnt vmcnt(0)\nv_cmp_ne_u32 vcc, 0x{MAGIC:x}, v3")
        k(f"s_cbranch_vccz {lab}_d\ns_add_u32 s7, s7, 1\ns_cmp_lt_u32 s7, 0x10000\ns_cbranch_scc1 {lab}_b")
    k(f"{lab}_c:")
    k(f"s_waitcnt vmcnt(0)\n{lab}_d:\ns_barrier")

def handoff(k, ph, tag, mid=(), delay=True, nopoll=False):
    lab = f"k1_h{ph}"
    k(f"s_lshl_b32 s63, s{S_TT}, 11\ns_add_u32 s63, s63, {ph*32768}")
    k(f"v_lshlrev_b32 v2, 3, v{V_L16}\ns_lshl_b32 s6, s{S_MM}, 2\nv_add_u32 v2, s6, v2\nv_mov_b32 v3, 0x{MAGIC:x}")
    if ph == 2 and "2" in OPT.pall:
        k(f"v_bfe_u32 v4, v{V_L16}, 4, 2\nv_lshl_add_u32 v4, v1, 2, v4\nv_lshlrev_b32 v4, 2, v4\ns_lshl_b32 s6, s{S_MM}, 7\nv_add_u32 v4, s6, v4")
    else:
        k(f"v_bfe_u32 v4, v{V_L16}, 4, 4\nv_lshlrev_b32 v4, 2, v4\ns_lshl_b32 s6, s{S_MM}, 7\nv_add_u32 v4, s6, v4")
    wide = ph == 1 and OPT.a3
    if wide:
        k(f"s_lshl_b32 s63, s5, 12\ns_add_u32 s63, s63, {ph*32768}\ns_and_b32 s6, s2, 3\ns_lshl_b32 s6, s6, 3\ns_bfe_u32 s7, s2, 0x30003\ns_add_u32 s6, s6, s7\ns_lshl_b32 s6, s6, 2")
        k(f"v_lshlrev_b32 v2, 3, v{V_L16}\nv_add_u32 v2, s6, v2\ns_and_b32 s6, s{S_TT}, 1\ns_lshl_b32 s6, s6, 4\ns_add_u32 s6, s6, s{S_MM}\ns_lshl_b32 s6, s6, 7")
        k(f"v_bfe_u32 v4, v{V_L16}, 4, 5\nv_lshlrev_b32 v4, 2, v4\nv_add_u32 v4, s6, v4")
    k.wait(vm=tag, barrier=True)
    k(f"s_cmp_eq_u32 s{S_WAVE}, 1\ns_cbranch_scc0 {lab}_a\n" + ("s_mov_b32 exec_hi, 0" if wide else "s_mov_b64 exec, 0xffff"))
    k(f"buffer_store_dword v3, v2, {sr(S_K,4)}, s63 offen sc1\ns_mov_b64 exec, -1")
    k(f"{lab}_a:")
    k.run(mid)
    if nopoll: return
    if str(ph) in OPT.pall:
        pollall(k, lab, 4); k.vm = []
        return
    k(f"s_cmp_eq_u32 s{S_WAVE}, 0\ns_cbranch_scc0 {lab}_c\ns_mov_b32 s7, 0")
    if delay: k(f"s_sleep {OPT.pdelay}")
    pollloop(k, lab, 4)
    k.vm = []

def st(k, name):
    names = OPT.fts.split(',')
    if name in names:
        k.stamp(1 + names.index(name))
        if getattr(k, 'prof', False): k("s_waitcnt lgkmcnt(0)"); k.lg = []

def rest(k, ncw):
    NSP = 8 if OPT.a3 else 4
    k.srd(S_X, 54, NSP*2048*1024, WS_PART)
    k.srd(S_M, 54, 2048*1024, WS_H2)
    k(f"s_lshl_b32 s6, s{S_TT}, 4\ns_add_u32 s6, s6, s{S_MM}\ns_lshr_b32 s7, s6, 1\ns_lshl_b32 s7, s7, 14\ns_and_b32 s6, s6, 1\ns_lshl_b32 s6, s6, 7\ns_add_u32 s44, s7, s6")
    st(k, "s1")
    n1 = min(OPT.fc1, C_NW - ncw)
    PR, PA, AC, T, XF = (192 if OPT.a3 else 64), 96, 144, 160, 168
    assert OPT.prog or not OPT.a3
    if OPT.mdr:
        k.wait(vm="M"); m_finish(k)
    handoff(k, 1, "PST", [g for j in range(ncw, ncw + n1) for g in c_w(j)] + ([] if (OPT.mearly or OPT.mdr) else [m_finish]), delay=False, nopoll=OPT.prog); ncw += n1
    k.lg = []
    if OPT.prog:
        k(("" if OPT.mdr else "s_barrier\n") + "s_mov_b32 s7, 0\ns_mov_b32 s46, 0")
        k("k1_pg:")
        k(f"buffer_load_dword v3, v4, {sr(S_K,4)}, s63 offen sc1\ns_waitcnt vmcnt(0)\nv_cmp_eq_u32 vcc, 0x{MAGIC:x}, v3\ns_add_u32 s7, s7, 1")
        k("s_cmp_ge_u32 s7, 0x10000\ns_cselect_b32 s47, -1, vcc_lo\ns_andn2_b32 s47, s47, s46")
        for c in range(NSP):
            k(f"s_bfe_u32 s6, s47, {(4<<16) | (4*c)}\ns_cmp_eq_u32 s6, 15\ns_cbranch_scc0 k1_pg{c}\ns_or_b32 s46, s46, 0x{15 << (4*c):x}")
            for h in range(2):
                k(f"s_add_u32 s6, s44, {c*0x200000 + h*8192}\nbuffer_load_dwordx4 {vr(PR+(2*c+h)*4,4)}, v24, {sr(S_X,4)}, s6 offen sc1")
            k(f"k1_pg{c}:")
        k(f"s_cmp_lg_u32 s46, {-1 if OPT.a3 else 0xffff}\ns_cbranch_scc1 k1_pg")
        k.vm = ["S3"]
    st(k, "y1")
    for i in range(8 if not OPT.prog else 0):
        k(f"s_add_u32 s{S_T0+(i&3)}, s44, {(i>>1)*0x200000 + (i&1)*8192}")
        k.vmop(f"buffer_load_dwordx4 {vr(PR+i*4,4)}, v24, {sr(S_X,4)}, s{S_T0+(i&3)} offen sc1", f"S{i>>1}")
    k.srd(S_W, 54, 2048*1024, WS_X1)
    k(f"s_add_u32 s{S_T0+4}, s44, 8192")
    for wi in range(3):
        for pc in range(2):
            for h in range(2): k(f"ds_read_b128 {vr(PA+wi*16+pc*8+h*4,4)}, v28 offset:{wi*2048 + pc*1024 + h*64}")
    n2 = min(OPT.fc2, C_NW - ncw)
    for j in range(ncw, ncw + n2): k.run(c_w(j))
    ncw += n2
    for d in range(8): k(f"v_lshlrev_b32 v{XF+2*d}, 16, v{XR+d}\nv_and_b32 v{XF+2*d+1}, 0xffff0000, v{XR+d}")
    for sp in range(NSP):
        k.wait(vm=f"S{sp}" if not OPT.prog else "S3")
        for d in range(8):
            w = PR + sp*8 + d; t_ = T + 2*(d & 3)
            if sp == 0: k(f"v_lshlrev_b32 v{AC+2*d}, 16, v{w}\nv_and_b32 v{AC+2*d+1}, 0xffff0000, v{w}")
            else:
                k(f"v_lshlrev_b32 v{t_}, 16, v{w}\nv_and_b32 v{t_+1}, 0xffff0000, v{w}")
                k(f"v_pk_add_f32 {vr(AC+2*d,2)}, {vr(AC+2*d,2)}, {vr(t_,2)}")
    k("s_waitcnt lgkmcnt(0)")
    st(k, "p")
    for d in range(8): k(f"v_pk_fma_f32 {vr(AC+2*d,2)}, {vr(AC+2*d,2)}, {vr(PA+2*d,2)}, {vr(XF+2*d,2)}")
    for d in range(8): k(f"v_cvt_pk_bf16_f32 v{XR+d}, v{AC+2*d}, v{AC+2*d+1}")
    for d in range(8): k(f"v_lshlrev_b32 v{AC+2*d}, 16, v{XR+d}\nv_and_b32 v{AC+2*d+1}, 0xffff0000, v{XR+d}")
    def wsum(r):
        k(f"s_nop 1\nv_add_f32 v{r}, v{r}, v{r} row_ror:8")
        for sw in ("v_permlane16_swap_b32", "v_permlane32_swap_b32"):
            k(f"v_mov_b32 v{r+1}, v{r}\ns_nop 1\n{sw} v{r+1}, v{r}\ns_nop 1\nv_add_f32 v{r}, v{r}, v{r+1}")
    SO = ("s44", f"s{S_T0+4}")
    for i in range(4): k(f"v_pk_add_f32 {vr(T+2*i,2)}, {vr(AC+2*i,2)}, {vr(AC+8+2*i,2)}")
    for i in range(2): k(f"v_pk_add_f32 {vr(T+2*i,2)}, {vr(T+2*i,2)}, {vr(T+4+2*i,2)}")
    k(f"v_pk_add_f32 {vr(T,2)}, {vr(T,2)}, {vr(T+2,2)}\nv_add_f32 v{T}, v{T}, v{T+1}")
    for pc in range(2): k.vmop(f"buffer_store_dwordx4 {vr(XR+pc*4,4)}, v24, {sr(S_W,4)}, {SO[pc]} offen sc1", "HST")
    wsum(T)
    k(f"v_mul_f32 v14, {hexf(-1/128)}, v{T}")
    for i in range(8): k(f"v_pk_add_f32 {vr(AC+2*i,2)}, {vr(AC+2*i,2)}, v[14:15] op_sel_hi:[1,0]")
    for i in range(2): k(f"v_pk_mul_f32 {vr(T+2*i,2)}, {vr(AC+2*i,2)}, {vr(AC+2*i,2)}")
    for i in range(2, 8): k(f"v_pk_fma_f32 {vr(T+2*(i&1),2)}, {vr(AC+2*i,2)}, {vr(AC+2*i,2)}, {vr(T+2*(i&1),2)}")
    k(f"v_pk_add_f32 {vr(T,2)}, {vr(T,2)}, {vr(T+2,2)}\nv_add_f32 v{T}, v{T}, v{T+1}")
    wsum(T)
    k(f"ds_write_b32 v30, v14\nds_write_b32 v30, v{T} offset:128")
    for i in range(8): k(f"v_pk_mul_f32 {vr(AC+2*i,2)}, {vr(AC+2*i,2)}, {vr(PA+32+2*i,2)}")
    k("s_waitcnt lgkmcnt(0)\ns_barrier")
    k(f"ds_read_b128 {vr(T,4)}, v29\nds_read_b128 {vr(T+4,4)}, v29 offset:128\ns_waitcnt lgkmcnt(1)")
    k(f"v_pk_add_f32 v[12:13], {vr(T,2)}, {vr(T+2,2)}\nv_add_f32 v12, v12, v13\nv_mul_f32 v12, {hexf(-0.25)}, v12")
    for h in range(2): k(f"v_pk_add_f32 {vr(T+2*h,2)}, {vr(T+2*h,2)}, v[12:13] op_sel_hi:[1,0]")
    k(f"v_add_f32 v14, v14, v12\nv_pk_mul_f32 {vr(T,2)}, {vr(T,2)}, {vr(T,2)}\nv_pk_fma_f32 {vr(T,2)}, {vr(T+2,2)}, {vr(T+2,2)}, {vr(T,2)}\ns_waitcnt lgkmcnt(0)")
    k(f"v_pk_add_f32 {vr(T+4,2)}, {vr(T+4,2)}, {vr(T+6,2)}\nv_add_f32 v{T}, v{T}, v{T+1}\nv_add_f32 v{T+4}, v{T+4}, v{T+5}")
    k(f"v_mov_b32 v12, {hexf(1e-5)}\nv_fmac_f32 v12, {hexf(0.25)}, v{T}\nv_fmac_f32 v12, {hexf(1/512)}, v{T+4}\nv_rsq_f32 v12, v12\ns_nop 0")
    k("v_mul_f32 v14, v14, v12\nv_sub_f32 v14, 0, v14")
    for pc in range(2):
        for i in range(4*pc, 4*pc+4): k(f"v_pk_fma_f32 {vr(PA+16+2*i,2)}, {vr(PA+32+2*i,2)}, v[14:15], {vr(PA+16+2*i,2)} op_sel_hi:[1,0,1]")
        for i in range(4*pc, 4*pc+4): k(f"v_pk_fma_f32 {vr(AC+2*i,2)}, {vr(AC+2*i,2)}, v[12:13], {vr(PA+16+2*i,2)} op_sel_hi:[1,0,1]")
        for d in range(4*pc, 4*pc+4): k(f"v_cvt_pk_bf16_f32 v{PR+d}, v{AC+2*d}, v{AC+2*d+1}")
        k.vmop(f"buffer_store_dwordx4 {vr(PR+4*pc,4)}, v24, {sr(S_M,4)}, {SO[pc]} offen sc1", "HST")
    CA = lambda m, t, tb: 64 + ((t*2+m)*2+tb)*4
    CW = lambda j, m, t, n=4, o=0: (ar if (j >> 1) & 1 else vr)((128 if (j >> 1) & 1 else 160) + (((j & 1)*6+t)*2+m)*4 + o, n)
    CB = lambda j, tb: (j*2+tb)*4
    V_CW = 8
    k(f"v_lshrrev_b32 v56, 8, v{V_L16}\nv_bfe_u32 v57, v{V_L16}, 6, 2\nv_bfe_u32 v58, v{V_L16}, 4, 2")
    k("v_lshl_add_u32 v59, v56, 2, v57\nv_mul_u32_u24 v60, 192, v59\nv_lshl_add_u32 v60, v58, 3, v60\nv_and_b32 v61, 1, v56")
    for par in range(2):
        k(f"v_xor_b32 v62, {par}, v61\nv_lshl_add_u32 v{V_CW+par}, v62, 5, v60\nv_add_u32 v{V_CW+2+par}, {5*C_W}, v{V_CW+par}\nv_add_u32 v{V_CW+4+par}, {10*C_W}, v{V_CW+par}")
    k(f"s_lshl_b32 s6, s{S_TT}, 2\ns_add_u32 s6, s6, s{S_WAVE}\ns_lshl_b32 s44, s6, 15")
    k(f"s_mul_i32 s6, s6, {2*43*1024}\ns_mul_i32 s7, s{S_MM}, 3072\ns_add_u32 s6, s6, s7\ns_add_u32 s6, s6, 0x{WS_HF:x}")
    k(f"s_add_u32 s{S_X}, s54, s6\ns_addc_u32 s{S_X+1}, s55, 0\ns_mov_b32 s{S_X+2}, {43*1024+3072}")
    k(f"s_mov_b32 s{S_O}, s{S_X}\ns_mov_b32 s{S_O+1}, s{S_X+1}\ns_cmp_eq_u32 s{S_MM}, 14\ns_cselect_b32 s{S_O+2}, 0, s{S_X+2}")
    def c_reads(p):
        r = []
        for t in range(6):
            for m in range(2):
                for j in (2*p, 2*p+1):
                    sl = cperm()[j % C_NW]; bank = sl // 5; off = (sl % 5)*C_W
                    r += [L(f"ds_read_b64_tr_b16 {CW(j,m,t,2,2*h)}, v{V_CW+2*bank+(t&1)} offset:{off + m*6144 + h*3072 + (t>>1)*64}", f"R{p}_{t}") for h in range(2)]
        return r
    if OPT.loc:
        k(f"s_lshl_b32 s6, s{S_TT}, 2\ns_and_b32 s7, s{S_MM}, 3\ns_add_u32 s6, s6, s7\ns_lshl_b32 s6, s6, 2\ns_add_u32 s6, s6, s{S_WAVE}\ns_lshl_b32 s6, s6, 16")
        k(f"s_lshr_b32 s7, s{S_MM}, 2\ns_lshl_b32 s7, s7, 12\ns_add_u32 s6, s6, s7\ns_add_u32 s6, s6, 0x{WS_OF:x}\ns_add_u32 s56, s54, s6\ns_addc_u32 s57, s55, 0\ns_mov_b32 s58, {3*16384+4096}")
    st(k, "s2")
    n3 = min(OPT.fc3, C_NW - ncw)
    k.lg = []
    assert ncw - n2 >= 2
    handoff(k, 2, "HST", [g for j in range(ncw, ncw + n3) for g in c_w(j)] + c_reads(0), delay=OPT.fdl2); ncw += n3
    st(k, "y2")
    assert ncw >= 4
    k(f"s_cmp_eq_u32 s{S_MM}, 15\ns_cbranch_scc1 k1_c15")
    def c_b(j):
        return [[f"s_add_u32 s{S_T0+tb}, s44, {tb*16384 + (j>>2)*4096}",
                 V(f"buffer_load_dwordx4 {ar(CB(j,tb),4)}, v{V_L16}, {sr(S_M,4)}, s{S_T0+tb} offen offset:{(j&3)*1024} sc1", f"CB{j}")] for tb in range(2)]
    nb = OPT.fb0
    for j in range(nb): k.run(c_b(j))
    cl = clean_ops()
    nd = 0
    for p in range(8):
        if p == 7:
            st(k, "c7")
            k.wait(vm="CB15", lg="R7_1")
            mq = []; vq = []; n_ = 0
            for u in range(3):
                for tb in range(2):
                    o = 32 + (n_ & 3)*4
                    for h in range(2):
                        t = 2*u + h
                        for m in range(2):
                            d = vr(CA(m, t, tb), 4)
                            for i, j in enumerate((14, 15) if m == 0 else (15, 14)):
                                mq.append(It(f"{MF} {d}, {CW(j,m,t)}, {ar(CB(j,tb),4)}, {d}", gives=f"D{t}{tb}" if (m and i) else None, needs={"RR": 0} if len(mq) == 16 else None))
                        a = CA(0, t, tb); b = CA(1, t, tb)
                        vq += [It(f"v_mul_f32 v{a+i}, v{a+i}, v{b+i}", needs={f"D{t}{tb}": 8}) for i in range(4)]
                        vq += [It(f"v_cvt_pk_bf16_f32 v{o+2*h+e}, v{a+2*e}, v{a+2*e+1}") for e in range(2)]
                    vq.append(It(V(f"buffer_store_dwordx4 {vr(o,4)}, v{V_L16}, {sr(S_O if u else S_X,4)}, s{S_T0+tb} offen offset:{u*1024} sc1", "GST"), cost=2))
                    n_ += 1
            merge(k, mq, vq, [It(f"s_mov_b32 s{S_T0}, 0\ns_mov_b32 s{S_T0+1}, {43*1024}", cost=0), It(W(lg='all'), cost=0, gives="RR", needs={"D10": 0})])
            break
        mf = []; n_ = 0
        for t in range(6):
            for m in range(2):
                for tb_ in range(2):
                    tb = tb_ if m == 0 else 1 - tb_
                    d = vr(CA(m, t, tb), 4)
                    for i, j in enumerate((2*p, 2*p+1) if n_ % 2 == 0 else (2*p+1, 2*p)):
                        mf.append(f"{MF} {d}, {CW(j,m,t)}, {ar(CB(j,tb),4)}, {d if (p or i) else '0'}")
                    n_ += 1
        vm = []
        while len(vm) < OPT.fvm - 1:
            wok = ncw < 16 and (ncw < C_NW or p >= (ncw - C_NW)//2 + 1)
            if wok and (nb >= 16 or ncw//2 - 2 <= nb//2): vm += c_w(ncw); ncw += 1
            elif nb < 16: vm += c_b(nb); nb += 1
            elif ncw == 16 and nd < OPT.fde and c_last(dperm()[nd]) <= p - 1: vm += d_w(nd); nd += 1
            else: break
        assert ncw > 2*p + 3 + 2 or ncw == 16, (p, ncw)
        if p >= OPT.lc0:
            for _ in range(OPT.lcn):
                if cl: vm.insert((len(vm)*(_+1))//(OPT.lcn+1), cl.pop(0))
        if OPT.cx == 1: vm = [x for x in vm if "m0" not in x[0]]
        if OPT.cx == 3: vm = []
        gaps = spread(48, c_reads(p+1) if OPT.cx != 2 else [], vm)
        if p == 1: st(k, "c1")
        if p == 4: st(k, "c4")
        add(gaps, -1, W(vm=f"CB{2*p+1}", lg=f"R{p}_1"))
        front(gaps, 12, W(lg=f"R{p}_3")); front(gaps, 26, W(lg=f"R{p}_5"))
        if p >= 1: front(gaps, 0, W(vm=f"CW{2*p+3}", barrier=True))
        emit(k, mf, gaps)
    assert nb == 16 and ncw == 16 and not cl
    k("s_branch k1_c_done")
    k("k1_c15:")
    save = list(k.vm); k.vm = []
    for i in range(nd): k.run(d_w(i))
    k.run(clean_ops())
    k.vm = save
    k("k1_c_done:")
    V_DA = 8
    k("v_lshlrev_b32 v60, 7, v59\nv_lshl_add_u32 v60, v58, 3, v60\nv_bfe_u32 v61, v59, 1, 2\nv_lshrrev_b32 v62, 1, v1\nv_lshl_add_u32 v60, v62, 13, v60")
    for t in range(4):
        k(f"v_xor_b32 v62, {t}, v61\nv_lshl_add_u32 v{V_DA+t}, v62, 5, v60\nv_add_u32 v{V_DA+4+t}, 0x10000, v{V_DA+t}\nv_add_u32 v{V_DA+8+t}, 0x20000, v{V_DA+t}")
    k(f"s_lshl_b32 s6, s{S_TT}, 1\ns_lshr_b32 s7, s{S_MM}, 3\ns_add_u32 s6, s6, s7\ns_lshl_b32 s6, s6, 1\ns_and_b32 s7, s{S_WAVE}, 1\ns_add_u32 s6, s6, s7\ns_lshl_b32 s44, s6, 1")
    k(f"s_lshr_b32 s46, s{S_WAVE}, 1\ns_mul_i32 s6, s44, {43*1024}\ns_lshl_b32 s7, s46, 11\ns_add_u32 s6, s6, s7\ns_add_u32 s6, s6, 0x{WS_HF:x}")
    k(f"s_add_u32 s{S_M}, s54, s6\ns_addc_u32 s{S_M+1}, s55, 0\ns_sub_u32 s{S_M+2}, {2*43*1024}, s7")
    k(f"s_add_u32 s44, s44, s46\ns_mul_i32 s46, s46, {43*1024}\ns_sub_u32 s47, {43*1024}, s46")
    k(f"s_lshl_b32 s44, s44, 14\ns_and_b32 s7, s{S_MM}, 7\ns_lshl_b32 s6, s7, 7\ns_add_u32 s6, s6, s44")
    k(f"s_add_u32 s{S_V}, s98, s6\ns_addc_u32 s{S_V+1}, s99, 0\ns_sub_u32 s{S_V+2}, {2048*1024}, s6")
    k(f"s_lshl_b32 s6, s7, 11\ns_add_u32 s44, s44, s6\ns_lshl_b32 s7, s7, 8\ns_add_u32 s7, s7, {PAR2+6144}")
    k(f"v_bfe_u32 v57, v{V_L16}, 4, 4\nv_lshlrev_b32 v24, 10, v57\nv_lshl_add_u32 v24, v56, 4, v24")
    k("v_lshlrev_b32 v25, 4, v56\nv_add_u32 v25, s7, v25")
    XS = dperm()[2]*D_U
    k(f"v_lshl_add_u32 v28, v1, 12, v{V_L16}\nv_add_u32 v28, {XS}, v28\nv_xor_b32 v29, 0x2000, v28")
    DA = lambda t, tb: 64 + (tb*4+t)*4
    DW = lambda i, e, t: 128 + (((i & 1)*2+e)*4+t)*4
    DB = lambda i, e, tb: ((i*2+e)*2+tb)*4
    def d_b(i):
        return [[f"s_add_u32 s{S_T0+tb}, s{46+tb}, {i*4096}", V(f"buffer_load_dwordx4 {ar(DB(i,e,tb),4)}, v{V_L16}, {sr(S_M,4)}, s{S_T0+tb} offen offset:{e*1024} sc1", f"DB{i}")] for tb in range(2) for e in range(2)]
    def d_reads(i):
        base = dperm()[i % D_NW]*D_U; bank = base >> 16; off = base & 0xffff
        return [L(f"ds_read_b64_tr_b16 {vr(DW(i,e,t)+2*h,2)}, v{V_DA+4*bank+t} offset:{off + e*4096 + h*2048}", f"R{i}_{t}") for t in range(4) for e in range(2) for h in range(2)]
    st(k, "s3")
    k.lg = []
    assert nd >= 1
    xl = [[V(f"buffer_load_dwordx4 {vr(XR+4*s_,4)}, v{V_L16}, {sr(S_W,4)}, s44 offen offset:{1024*s_} sc1", "X1")] for s_ in range(2)]
    n4 = min(OPT.fd1, D_NW - nd)
    gbr = [L(f"ds_read_b128 {vr(32+4*t,4)}, v25 offset:{64*t}", "GB") for t in range(4)]
    handoff(k, 3, "GST", xl + [g for i in range(nd, nd + n4) for g in d_w(i)] + gbr + d_reads(0), delay=OPT.fdl3); nd += n4
    npub = nd
    assert OPT.fdr <= nd - n4 - 1
    st(k, "y3")
    assert nd >= 2
    nb = OPT.fdb0
    for i in range(nb): k.run(d_b(i))
    for d in range(8): k(f"v_lshlrev_b32 v{96+2*d}, 16, v{XR+d}\nv_and_b32 v{97+2*d}, 0xffff0000, v{XR+d}")
    lastbar = -1
    for i in range(11):
        mf = []; n_ = 0
        if i < 10:
            for t in range(4):
                for tb_ in range(2):
                    tb = tb_ if t % 2 == 0 else 1 - tb_
                    d = vr(DA(t, tb), 4)
                    for c, e in enumerate((0, 1) if n_ % 2 == 0 else (1, 0)):
                        mf.append(f"{MF} {d}, {vr(DW(i,e,t),4)}, {ar(DB(i,e,tb),4)}, {d if (i or c) else '0'}")
                    n_ += 1
        else:
            k.wait(vm="DB10", lg='all')
            k(f"s_cmp_ge_u32 s{S_WAVE}, 2\ns_cbranch_scc1 k1_d_skip")
            for e in (1, 0):
                if e == 0: k("k1_d_skip:")
                for tb in (1, 0):
                    for t in range(4):
                        d = vr(DA(t, tb), 4)
                        k(f"{MF} {d}, {vr(DW(i,e,t),4)}, {ar(DB(i,e,tb),4)}, {d}")
            break
        bar = i + 1 >= npub or i in (OPT.fdr, OPT.fdr + 1)
        if bar: lastbar = i
        vm = []
        if nb < 11: vm += d_b(nb); nb += 1
        if nd < 11 and (nd < D_NW or lastbar >= nd - D_NW + 1) and nd <= nb + OPT.fdl: vm = vm[:2] + d_w(nd) + vm[2:]; nd += 1
        assert nd > i + 2 or nd == 11, (i, nd)
        k.wait(vm=f"DB{i}", lg=f"R{i}_1")
        gaps = {}
        if bar: add(gaps, 0, W(vm=f"DW{i+1}", barrier=True))
        add(gaps, 6, W(lg=f"R{i}_3"))
        rd = d_reads(i+1)
        for g in range(16):
            if vm and g % 2 == 1: add(gaps, g, *vm.pop(0))
            elif rd: add(gaps, g, rd.pop(0), rd.pop(0))
        assert not vm and not rd
        emit(k, mf, gaps)
    assert nb == 11 and nd == 11 and lastbar >= 3
    st(k, "d1")
    k("s_nop 3")
    for t in range(4): k(f"ds_write_b128 v28, {vr(DA(t,1),4)} offset:{t*1024}")
    for e in range(0, 16, 2): k(f"v_pk_fma_f32 {vr(96+e,2)}, {vr(64+e,2)}, {vr(32+e,2)}, {vr(96+e,2)}")
    k("s_waitcnt lgkmcnt(0)\ns_barrier")
    for t in range(4): k(f"ds_read_b128 {vr(64+4*t,4)}, v29 offset:{t*1024}")
    for s_ in range(2):
        k(f"s_waitcnt lgkmcnt({2-2*s_})")
        for e in range(8*s_, 8*s_+8, 2): k(f"v_pk_fma_f32 {vr(64+e,2)}, {vr(64+e,2)}, {vr(32+e,2)}, {vr(96+e,2)}")
        o = 112 + 4*s_
        for d in range(4): k(f"v_cvt_pk_bf16_f32 v{o+d}, v{64+8*s_+2*d}, v{65+8*s_+2*d}")
        k(f"s_nop 1\nv_permlane32_swap_b32 v{o}, v{o+2}\nv_permlane32_swap_b32 v{o+1}, v{o+3}\ns_nop 1\nv_permlane16_swap_b32 v{o}, v{o+2}\nv_permlane16_swap_b32 v{o+1}, v{o+3}")
        k(f"buffer_store_dwordx4 {vr(o,4)}, v24, {sr(S_V,4)}, 0 offen offset:{64*s_} {OPT.st5}")
```
